```python
import torch

def _softmax(x, axis=-1):
    return torch.softmax(x, dim=axis)
def _gelu(x):
    return torch.nn.functional.gelu(x, approximate="tanh")
def _silu(x):
    return torch.nn.functional.silu(x)
def _sigmoid(x):
    return torch.sigmoid(x)
def _layernorm(x, axis=-1, eps=1e-5):
    m = x.mean(dim=axis, keepdim=True)
    v = x.var(dim=axis, keepdim=True, unbiased=False)
    return (x - m) / torch.sqrt(v + eps)
def _scatter_add(tgt, idx, src, axis=0):
    return tgt.clone().index_add_(axis, idx, src)
def _segment_sum(src, seg, n):
    out = torch.zeros((n,) + src.shape[1:], dtype=src.dtype)
    return out.index_add_(0, seg, src)
def _pad(x, pw):
    flat = tuple(v for pair in reversed(pw) for v in pair)
    return torch.nn.functional.pad(x, flat)

kernel_name = 'standalone__softmax_full_mha__prompt'

def setup_inputs():

    _w = (lambda a: (lambda t: t.to(torch.bfloat16) if t.is_floating_point() else t)(torch.as_tensor(a)))
    B, S, D = 1, 2048, 448
    return {
        "x": _w((lambda *s: torch.randn(*s, dtype=torch.bfloat16) * 0.2)(B, S, D)),
        "wqkv": _w((lambda *s: torch.randn(*s, dtype=torch.bfloat16) * 0.2)(D, 3 * D)),
        "wo": _w((lambda *s: torch.randn(*s, dtype=torch.bfloat16) * 0.05)(D, D)),
    }

def reference(x, wqkv, wo):
    B, S, D = x.shape
    H = 16; Dh = D // H
    qkv = (lambda x, *d: x.permute(*d))((x @ wqkv).reshape(B, S, 3, H, Dh), 2, 0, 3, 1, 4)
    q, k, v = qkv[0], qkv[1], qkv[2]
    scale = Dh ** -0.5
    scores = torch.einsum("bhqd,bhkd->bhqk", q, k) * scale
    p = _softmax(scores, axis=-1)
    o = torch.einsum("bhqk,bhkd->bhqd", p, v)
    return (lambda x, *d: x.permute(*d))(o, 0, 2, 1, 3).reshape(B, S, D) @ wo
```

```python
import sys, struct, math

NAME = "standalone__softmax_full_mha__prompt"
KV_OFF = 0
Q_OFF = 4 << 20
O_OFF = 6 << 20
TS_OFF = 8 << 20
WS_BYTES = 268435456
X_BYTES = 2048 * 448 * 2
W_BYTES = 448 * 1344 * 2
WO_BYTES = 448 * 448 * 2
OUT_BYTES = 2048 * 448 * 2
QSCALE = 28 ** -0.5 * math.log2(math.e)

def f32bits(x):
    return struct.unpack("<I", struct.pack("<f", x))[0]

class A:
    def __init__(self):
        self.l = []
    def __call__(self, s):
        for line in s.strip("\n").split("\n"):
            self.l.append("    " + line.strip())
    def lab(self, n):
        self.l.append(n + ":")
    def raw(self, s):
        self.l.append(s)
    def text(self):
        return "\n".join(self.l) + "\n"

def vr(b, n):
    return f"v[{b}:{b+n-1}]"

def srd(a, d, lo, hi, nbytes):
    a(f"s_mov_b32 s{d}, s{lo}")
    a(f"s_and_b32 s{d+1}, s{hi}, 0xffff")
    a(f"s_mov_b32 s{d+2}, {nbytes}")
    a(f"s_mov_b32 s{d+3}, 0x20000")

def kstart(a, name):
    a.raw(f".globl {name}")
    a.raw(".p2align 8")
    a.raw(f".type {name},@function")
    a.lab(name)

def desc(name, nv, acc, ns=96):
    return f""".section .rodata,"a"
.p2align 6
.amdhsa_kernel {name}
  .amdhsa_next_free_vgpr {nv}
  .amdhsa_next_free_sgpr {ns}
  .amdhsa_accum_offset {acc}
  .amdhsa_group_segment_fixed_size 0
  .amdhsa_kernarg_size 48
  .amdhsa_user_sgpr_count 2
  .amdhsa_user_sgpr_kernarg_segment_ptr 1
  .amdhsa_system_sgpr_workgroup_id_x 1
.end_amdhsa_kernel
"""

TS = "--ts" in sys.argv
MAP = 2
for arg in sys.argv:
    if arg.startswith("--maph="):
        MAP = int(arg[7:])

class Stamps:
    def __init__(self, a, kidx):
        self.a = a; self.n = 0; self.kidx = kidx
    def __call__(self):
        if not TS: return
        a = self.a
        b = 64 + 4 * self.n
        a(f"s_memrealtime s[{b}:{b+1}]")
        a(f"s_memtime s[{b+2}:{b+3}]")
        self.n += 1
    def dump(self, ws_lo, ws_hi, swave):
        if not TS: return
        a = self.a
        a("s_waitcnt lgkmcnt(0)")
        srd(a, 60, ws_lo, ws_hi, WS_BYTES)
        a(f"s_lshl_b32 s58, s2, 2")
        a(f"s_add_u32 s58, s58, s{swave}")
        a(f"s_lshl_b32 s58, s58, 6")
        a(f"s_add_u32 s58, s58, {TS_OFF + self.kidx * (1 << 20)}")
        a("s_mov_b64 exec, 1")
        a("v_mov_b32 v2, 0")
        for i in range(self.n):
            b = 64 + 4 * i
            a(f"v_mov_b32 v4, s{b}")
            a(f"v_mov_b32 v5, s{b+2}")
            a(f"buffer_store_dwordx2 v[4:5], v2, s[60:63], s58 offen offset:{8*i}")
            a("s_nop 1")
        a("s_waitcnt vmcnt(0)")

def decode_hb(a, sh, sb):
    nhg = 16 >> MAP
    lg = int(math.log2(nhg))
    a(f"s_and_b32 s{sh}, s2, {nhg-1}")
    a(f"s_lshl_b32 s{sh}, s{sh}, {MAP}")
    a(f"s_lshr_b32 s3, s2, 3")
    a(f"s_and_b32 s{sb}, s3, {(1<<MAP)-1}")
    a(f"s_add_u32 s{sh}, s{sh}, s{sb}")
    a(f"s_lshr_b32 s3, s3, {MAP}")
    a(f"s_and_b32 s{sb}, s2, 7")
    a(f"s_lshr_b32 s{sb}, s{sb}, {lg}")
    a(f"s_mul_i32 s{sb}, s{sb}, {32>>MAP}")
    a(f"s_add_u32 s{sb}, s{sb}, s3")

HI = "0xffffffff"

def set_exec(a, lo, hi):
    a(f"s_mov_b32 exec_lo, {lo}")
    a(f"s_mov_b32 exec_hi, {hi}")

def k_qkv(a):
    name = "qkv_kernel"
    kstart(a, name)
    ts = Stamps(a, 0)
    ts()
    a("s_cmp_ge_u32 s2, 256")
    a("s_cbranch_scc1 L_qkv_end")
    a("s_load_dwordx4 s[4:7], s[0:1], 0")
    a("s_load_dwordx2 s[8:9], s[0:1], 40")
    sH, sB, sW = 10, 11, 12
    decode_hb(a, sH, sB)
    a("v_lshrrev_b32 v1, 6, v0")
    a("v_and_b32 v0, 63, v0")
    a(f"v_readfirstlane_b32 s{sW}, v1")
    a("v_and_b32 v2, 31, v0")
    a("v_mul_u32_u24 v2, 896, v2")
    a("v_lshrrev_b32 v3, 5, v0")
    a("v_lshl_add_u32 v2, v3, 4, v2")
    a(f"s_lshl_b32 s13, s{sB}, 2")
    a(f"s_add_u32 s13, s13, s{sW}")
    a("s_mul_i32 s14, s13, 28672")
    a("v_lshrrev_b32 v3, 2, v0")
    a("v_mul_u32_u24 v3, 2688, v3")
    a("v_and_b32 v4, 3, v0")
    a("v_lshl_add_u32 v3, v4, 4, v3")
    a(f"s_mul_i32 s15, s{sH}, 56")
    a("s_and_b32 s15, s15, 0xfffffff0")
    a(f"s_mul_i32 s3, s{sW}, 43008")
    a("s_add_u32 s15, s15, s3")
    a(f"s_mul_i32 s28, s{sW}, 3072")
    a("v_lshrrev_b32 v5, 5, v0")
    a("v_lshlrev_b32 v5, 9, v5")
    a("v_bfe_u32 v6, v0, 2, 2")
    a("v_lshl_add_u32 v5, v6, 6, v5")
    a("v_bfe_u32 v6, v0, 4, 1")
    a("v_lshl_add_u32 v5, v6, 5, v5")
    a("v_lshl_add_u32 v5, v4, 3, v5")
    a(f"s_and_b32 s3, s{sH}, 1")
    a("s_lshl_b32 s3, s3, 3")
    a("v_add_u32 v5, s3, v5")
    a("v_add_u32 v6, 0xc000, v5")
    a("v_lshlrev_b32 v7, 4, v0")
    a("s_waitcnt lgkmcnt(0)")
    srd(a, 16, 4, 5, X_BYTES)
    srd(a, 20, 6, 7, W_BYTES)
    srd(a, 24, 8, 9, WS_BYTES)
    XF = 64
    for g in range(7):
        for p in range(3):
            a(f"s_add_u32 m0, s28, {g*12288 + p*1024}")
            a(f"s_add_u32 s3, s15, {g*172032 + p*896}")
            a(f"buffer_load_dwordx4 v3, s[20:23], s3 offen lds")
        for i in range(4):
            s = 4*g + i
            a(f"buffer_load_dwordx4 {vr(XF+4*s,4)}, v2, s[16:19], s14 offen offset:{32*s}")
    ts()
    AQ, AK, AV = 16, 32, 48
    WF = 176
    def rd(s):
        buf = WF + 12 * (s % 3)
        for p in range(3):
            for r in range(2):
                off = (s*3 + p) * 1024 + r * 256
                base = "v5"
                if off >= 0xc000:
                    off -= 0xc000; base = "v6"
                a(f"ds_read_b64_tr_b16 {vr(buf+4*p+2*r,2)}, {base} offset:{off}")
    def sync(g):
        a(f"s_waitcnt vmcnt({49 - 7*(g+1)})")
        a("s_barrier")
    sync(0)
    ts()
    rd(0); rd(1)
    for s in range(28):
        n = s + 2
        if n < 28:
            if n % 4 == 0:
                sync(n // 4)
            rd(n)
            a("s_waitcnt lgkmcnt(12)")
        elif n == 28:
            a("s_waitcnt lgkmcnt(6)")
        else:
            a("s_waitcnt lgkmcnt(0)")
        buf = WF + 12 * (s % 3)
        x = vr(XF + 4*s, 4)
        c = lambda acc: "0" if s == 0 else vr(acc, 16)
        a(f"v_mfma_f32_32x32x16_bf16 {vr(AQ,16)}, {vr(buf,4)}, {x}, {c(AQ)}")
        a(f"v_mfma_f32_32x32x16_bf16 {vr(AK,16)}, {vr(buf+4,4)}, {x}, {c(AK)}")
        a(f"v_mfma_f32_32x32x16_bf16 {vr(AV,16)}, {x}, {vr(buf+8,4)}, {c(AV)}")
    ts()
    a(f"s_mov_b32 s3, {f32bits(QSCALE):#x}")
    a("s_nop 7")
    a("s_nop 3")
    for r in range(16):
        a(f"v_mul_f32 v{AQ+r}, s3, v{AQ+r}")
    set_exec(a, 0, HI)
    for r in range(12, 16):
        a(f"v_mov_b32 v{AQ+r}, 0")
        a(f"v_mov_b32 v{AK+r}, 0")
    set_exec(a, HI, HI)
    a(f"v_mul_f32 v8, v{AQ}, v{AK}")
    for r in range(1, 16):
        a(f"v_fmac_f32 v8, v{AQ+r}, v{AK+r}")
    a("v_mov_b32 v9, v8")
    PQ, PK, PV = 64, 72, 80
    for i in range(8):
        a(f"v_cvt_pk_bf16_f32 v{PK+i}, v{AK+2*i}, v{AK+2*i+1}")
    a("v_permlane32_swap_b32 v8, v9")
    for i in range(8):
        a(f"v_cvt_pk_bf16_f32 v{PV+i}, v{AV+2*i}, v{AV+2*i+1}")
    a("v_add_f32 v8, v8, v9")
    for i in range(8):
        a(f"v_cvt_pk_bf16_f32 v{PQ+i}, v{AQ+2*i}, v{AQ+2*i+1}")
    a("v_mov_b32 v9, 0")
    set_exec(a, 0, HI)
    a(f"v_cvt_pk_bf16_f32 v{PQ+6}, -v8, v9")
    a(f"v_mov_b32 v{PK+6}, 0x3f803f80")
    a(f"v_mov_b32 v{PK+7}, 0x3f80")
    set_exec(a, "0x10000000", "0x10000000")
    a("v_mov_b32 v9, 0x3f803f80")
    set_exec(a, "0xf0000000", "0xf0000000")
    for i in range(8):
        a(f"v_mov_b32 v{PV+i}, v9")
    set_exec(a, HI, HI)
    a(f"s_lshl_b32 s3, s{sH}, 6")
    a("s_add_u32 s3, s3, s13")
    a("s_lshl_b32 s29, s3, 12")
    a("s_lshl_b32 s30, s3, 11")
    a(f"s_add_u32 s30, s30, {Q_OFF}")
    a(f"buffer_store_dwordx4 {vr(PK,4)}, v7, s[24:27], s29 offen")
    a(f"buffer_store_dwordx4 {vr(PK+4,4)}, v7, s[24:27], s29 offen offset:1024")
    a(f"buffer_store_dwordx4 {vr(PV,4)}, v7, s[24:27], s29 offen offset:2048")
    a(f"buffer_store_dwordx4 {vr(PV+4,4)}, v7, s[24:27], s29 offen offset:3072")
    a(f"buffer_store_dwordx4 {vr(PQ,4)}, v7, s[24:27], s30 offen")
    a(f"buffer_store_dwordx4 {vr(PQ+4,4)}, v7, s[24:27], s30 offen offset:1024")
    ts()
    if TS:
        a("s_waitcnt vmcnt(0)")
        ts()
    ts.dump(8, 9, sW)
    a.lab("L_qkv_end")
    a("s_endpgm")
    return name, 212, 84*1024 + 64

def k_attn(a):
    name = "attn_kernel"
    kstart(a, name)
    ts = Stamps(a, 1)
    ts()
    a("s_cmp_ge_u32 s2, 256")
    a("s_cbranch_scc1 L_attn_end")
    a("s_load_dwordx2 s[8:9], s[0:1], 40")
    sH, sB, sW = 10, 11, 12
    decode_hb(a, sH, sB)
    a("v_lshrrev_b32 v1, 6, v0")
    a("v_and_b32 v0, 63, v0")
    a(f"v_readfirstlane_b32 s{sW}, v1")
    a("v_lshlrev_b32 v1, 4, v0")
    Q, S0, P, KV, O = 8, 40, 72, 80, 144
    S = [S0, S0 + 16]
    a("s_waitcnt lgkmcnt(0)")
    srd(a, 24, 8, 9, WS_BYTES)
    a(f"s_lshl_b32 s3, s{sH}, 18")
    a(f"s_lshl_b32 s4, s{sW}, 12")
    a("s_add_u32 s3, s3, s4")
    a("s_add_u32 s16, s8, s3")
    a("s_addc_u32 s17, s9, 0")
    a("s_and_b32 s17, s17, 0xffff")
    a(f"s_mov_b32 s18, {256*1024}")
    a("s_mov_b32 s19, 0x20000")
    for i in range(4):
        a(f"s_add_u32 s3, s{sW}, {1+i}")
        a("s_and_b32 s3, s3, 3")
        a(f"s_lshl_b32 s4, s{sB}, 2")
        a("s_add_u32 s3, s3, s4")
        a(f"s_lshl_b32 s4, s{sH}, 6")
        a("s_add_u32 s3, s3, s4")
        a("s_lshl_b32 s3, s3, 11")
        a(f"s_add_u32 s3, s3, {Q_OFF}")
        a(f"buffer_load_dwordx4 {vr(Q+8*i,4)}, v1, s[24:27], s3 offen")
        a(f"buffer_load_dwordx4 {vr(Q+8*i+4,4)}, v1, s[24:27], s3 offen offset:1024")
    a("s_mov_b32 s31, 0")
    def ldkv(slot):
        for f in range(4):
            a(f"buffer_load_dwordx4 {vr(KV+16*slot+4*f,4)}, v1, s[16:19], s20 offen offset:{1024*f}")
        a("s_add_u32 s20, s20, 16384")
        a("s_and_b32 s20, s20, 0x3ffff")
    a.lab("L_attn_main")
    a(f"s_lshl_b32 s20, s{sB}, 14")
    for r in range(4):
        a(f"v_mov_b32 v{KV+16*3+12+r}, 0")
        a(f"v_mov_b32 v{P+4+r}, 0")
    for sl in range(3):
        ldkv(sl)
    for r in range(64):
        a(f"v_mov_b32 v{O+r}, 0")
    a("s_mov_b32 s21, 4")
    a("s_waitcnt vmcnt(8)")
    ts()
    def mS(part, t):
        slot = (t // 4) % 4; qt = t % 4
        d = vr(S[t % 2], 16)
        a(f"v_mfma_f32_32x32x16_bf16 {d}, {vr(KV+16*slot+4*part,4)}, {vr(Q+8*qt+4*part,4)}, {'0' if part == 0 else d}")
    def mPV(part, t):
        slot = (t // 4) % 4; qt = t % 4
        d = vr(O + 16*qt, 16)
        a(f"v_mfma_f32_32x32x16_bf16 {d}, {vr(KV+16*slot+8+4*part,4)}, {vr(P+4*part,4)}, {d}")
    def EC(t, g):
        s = S[t % 2] + 4*g
        for r in range(4):
            a(f"v_exp_f32 v{s+r}, v{s+r}")
        a(f"v_cvt_pk_bf16_f32 v{P+2*g}, v{s}, v{s+1}")
        a(f"v_cvt_pk_bf16_f32 v{P+2*g+1}, v{s+2}, v{s+3}")
    mS(0, 0); mS(1, 0)
    a("s_nop 7")
    a("s_nop 3")
    a.raw(".p2align 6")
    a.lab("L_attn_loop")
    for t in range(16):
        if t % 4 == 3:
            a("s_waitcnt vmcnt(8)")
        mS(0, t+1)
        EC(t, 0)
        mPV(1, (t - 1) % 16)
        if t % 4 == 0:
            ldkv((t // 4 + 3) % 4)
        EC(t, 1)
        mS(1, t+1)
        EC(t, 2)
        mPV(0, t)
        EC(t, 3)
    a("s_sub_u32 s21, s21, 1")
    a("s_cmp_lg_u32 s21, 0")
    a("s_cbranch_scc1 L_attn_loop")
    mPV(1, 15)
    ts()
    a("s_nop 7")
    a("s_nop 3")
    a(f"s_mov_b32 s4, {f32bits(2.0**62):#x}")
    a(f"s_mov_b32 s5, {f32bits(2.0**-62):#x}")
    a(f"v_max3_f32 v2, v{O+12}, v{O+16+12}, v{O+32+12}")
    a(f"v_add_f32 v3, v{O+12}, v{O+16+12}")
    a(f"v_add_f32 v3, v3, v{O+32+12}")
    a(f"v_add_f32 v3, v3, v{O+48+12}")
    a("v_cmp_nge_f32 s[6:7], s4, v3")
    a(f"v_cmp_nle_f32 vcc, s5, v{O+48+12}")
    a("s_or_b64 s[6:7], s[6:7], vcc")
    a("s_cmp_lg_u32 s7, 0")
    a("s_cselect_b32 s6, 1, 0")
    a("v_mov_b32 v2, s6")
    a(f"s_lshl_b32 s3, s{sW}, 2")
    a("s_add_u32 s3, s3, 49152")
    a("v_mov_b32 v3, s3")
    a("ds_write_b32 v3, v2")
    for i in range(3):
        a(f"s_add_u32 s3, s{sW}, {1+i}")
        a("s_and_b32 s3, s3, 3")
        a("s_mul_i32 s3, s3, 12288")
        a(f"s_add_u32 s3, s3, {4096*i}")
        a(f"v_add_u32 v{4+i}, s3, v1")
        for g in range(4):
            a(f"ds_write_b128 v{4+i}, {vr(O+16*i+4*g,4)} offset:{1024*g}")
    a(f"s_mul_i32 s3, s{sW}, 12288")
    a("v_add_u32 v4, s3, v1")
    a("v_mov_b32 v3, 49152")
    a("s_waitcnt lgkmcnt(0)")
    a("s_barrier")
    a(f"ds_read_b128 {vr(S0,4)}, v3")
    for i in range(3):
        for g in range(4):
            a(f"ds_read_b128 {vr(O+16*i+4*g,4)}, v4 offset:{4096*i+1024*g}")
    a("s_waitcnt lgkmcnt(12)")
    a(f"v_or_b32 v2, v{S0}, v{S0+1}")
    a(f"v_or3_b32 v2, v2, v{S0+2}, v{S0+3}")
    a("s_nop 0")
    a("v_readfirstlane_b32 s3, v2")
    a("s_nop 3")
    a("s_cmp_gt_u32 s3, s31")
    a("s_cbranch_scc1 L_attn_fallback")
    F = O + 48
    for i in range(3):
        a(f"s_waitcnt lgkmcnt({8-4*i})")
        for r in range(16):
            a(f"v_add_f32 v{F+r}, v{F+r}, v{O+16*i+r}")
    a(f"v_mov_b32 v2, v{F+12}")
    a(f"v_mov_b32 v3, v{F+12}")
    a("s_nop 1")
    a("v_permlane32_swap_b32 v2, v3")
    a("s_nop 1")
    a("v_rcp_f32 v3, v3")
    set_exec(a, 0, HI)
    a(f"v_mov_b32 v{F+12}, 0")
    set_exec(a, HI, HI)
    for r in range(16):
        a(f"v_mul_f32 v{F+r}, v{F+r}, v3")
    for i in range(8):
        a(f"v_cvt_pk_bf16_f32 v{P+i}, v{F+2*i}, v{F+2*i+1}")
    a(f"s_lshl_b32 s3, s{sB}, 2")
    a(f"s_add_u32 s3, s3, s{sW}")
    a("s_lshl_b32 s3, s3, 4")
    a(f"s_add_u32 s3, s3, s{sH}")
    a("s_lshl_b32 s3, s3, 11")
    a(f"s_add_u32 s3, s3, {O_OFF}")
    a(f"buffer_store_dwordx4 {vr(P,4)}, v1, s[24:27], s3 offen")
    a(f"buffer_store_dwordx4 {vr(P+4,4)}, v1, s[24:27], s3 offen offset:1024")
    ts()
    if TS:
        a("s_waitcnt vmcnt(0)")
        ts()
    ts.dump(8, 9, sW)
    a.lab("L_attn_end")
    a("s_endpgm")
    a.lab("L_attn_fallback")
    a("s_waitcnt vmcnt(0) lgkmcnt(0)")
    a("s_barrier")
    a("s_mov_b32 s31, 1")
    set_exec(a, 0, HI)
    for i in range(4):
        a(f"v_mov_b32 v{Q+8*i+6}, 0")
        a(f"v_mov_b32 v{Q+8*i+7}, 0")
    set_exec(a, HI, HI)
    M = P
    for i in range(4):
        a(f"v_mov_b32 v{M+i}, 0xff800000")
    a("s_mov_b32 s20, 0")
    a("s_mov_b32 s21, 16")
    a.lab("L_attn_fb_loop")
    a(f"buffer_load_dwordx4 {vr(KV,4)}, v1, s[16:19], s20 offen")
    a(f"buffer_load_dwordx4 {vr(KV+4,4)}, v1, s[16:19], s20 offen offset:1024")
    a("s_add_u32 s20, s20, 16384")
    a("s_waitcnt vmcnt(0)")
    for i in range(4):
        d = vr(S0, 16)
        a(f"v_mfma_f32_32x32x16_bf16 {d}, {vr(KV,4)}, {vr(Q+8*i,4)}, 0")
        a(f"v_mfma_f32_32x32x16_bf16 {d}, {vr(KV+4,4)}, {vr(Q+8*i+4,4)}, {d}")
        a("s_nop 15")
        for r in range(0, 16, 2):
            a(f"v_max3_f32 v{M+i}, v{M+i}, v{S0+r}, v{S0+r+1}")
        a("s_nop 1")
    a("s_sub_u32 s21, s21, 1")
    a("s_cmp_lg_u32 s21, 0")
    a("s_cbranch_scc1 L_attn_fb_loop")
    for i in range(4):
        a(f"v_mov_b32 v2, v{M+i}")
        a("s_nop 1")
        a(f"v_permlane32_swap_b32 v2, v{M+i}")
        a("s_nop 1")
        a(f"v_max_f32 v{M+i}, v{M+i}, v2")
        a(f"s_add_u32 s3, s{sW}, {1+i}")
        a("s_and_b32 s3, s3, 3")
        a("s_lshl_b32 s3, s3, 10")
        a(f"v_lshl_add_u32 v{4+i}, v0, 2, s3")
        a(f"s_lshl_b32 s4, s{sW}, 8")
        a(f"v_add_u32 v3, s4, v{4+i}")
        a(f"ds_write_b32 v3, v{M+i}")
    a("s_waitcnt lgkmcnt(0)")
    a("s_barrier")
    for i in range(4):
        for w in range(4):
            a(f"ds_read_b32 v{S0+w}, v{4+i} offset:{256*w}")
        a("s_waitcnt lgkmcnt(0)")
        a(f"v_max3_f32 v2, v{S0}, v{S0+1}, v{S0+2}")
        a(f"v_max_f32 v2, v2, v{S0+3}")
        a("v_sub_f32 v2, 0, v2")
        a("v_and_b32 v3, 0xffff0000, v2")
        a(f"v_sub_f32 v{S0}, v2, v3")
        a(f"v_and_b32 v{S0+1}, 0xffff0000, v{S0}")
        a(f"v_sub_f32 v{S0+2}, v{S0}, v{S0+1}")
        a("v_lshrrev_b32 v3, 16, v3")
        set_exec(a, 0, HI)
        a(f"v_or_b32 v{Q+8*i+6}, v3, v{S0+1}")
        a(f"v_lshrrev_b32 v{Q+8*i+7}, 16, v{S0+2}")
        set_exec(a, HI, HI)
    a("s_barrier")
    a("s_branch L_attn_main")
    return name, 208, 49152 + 64

def k_out(a):
    name = "oproj_kernel"
    kstart(a, name)
    ts = Stamps(a, 2)
    ts()
    a("s_cmp_ge_u32 s2, 256")
    a("s_cbranch_scc1 L_out_end")
    a("s_load_dwordx4 s[4:7], s[0:1], 16")
    a("s_load_dwordx2 s[8:9], s[0:1], 40")
    sW = 12
    a("v_lshrrev_b32 v1, 6, v0")
    a("v_and_b32 v0, 63, v0")
    a(f"v_readfirstlane_b32 s{sW}, v1")
    a("s_and_b32 s10, s2, 7")
    a("s_lshr_b32 s3, s2, 5")
    a("s_lshl_b32 s3, s3, 3")
    a("s_add_u32 s10, s10, s3")
    a("s_bfe_u32 s11, s2, 0x20003")
    a("s_lshl_b32 s11, s11, 2")
    a(f"s_add_u32 s11, s11, s{sW}")
    a("v_lshlrev_b32 v1, 4, v0")
    a("v_lshrrev_b32 v3, 2, v0")
    a("v_mul_u32_u24 v3, 896, v3")
    a("v_and_b32 v4, 3, v0")
    a("v_lshl_add_u32 v3, v4, 4, v3")
    a("s_mul_i32 s13, s11, 56")
    a("s_and_b32 s15, s13, 0xfffffff0")
    a(f"s_mul_i32 s28, s{sW}, {29*1024}")
    a("v_lshrrev_b32 v5, 5, v0")
    a("v_lshlrev_b32 v5, 8, v5")
    a("v_bfe_u32 v6, v0, 2, 2")
    a("v_lshl_add_u32 v5, v6, 6, v5")
    a("v_bfe_u32 v6, v0, 4, 1")
    a("v_lshl_add_u32 v5, v6, 5, v5")
    a("v_lshl_add_u32 v5, v4, 3, v5")
    a("s_and_b32 s3, s11, 1")
    a("s_lshl_b32 s3, s3, 3")
    a("s_add_u32 s3, s3, s28")
    a("v_add_u32 v5, s3, v5")
    a("s_waitcnt lgkmcnt(0)")
    srd(a, 16, 4, 5, WO_BYTES)
    srd(a, 20, 6, 7, OUT_BYTES)
    srd(a, 24, 8, 9, WS_BYTES)
    OF = 64
    a("s_lshl_b32 s14, s10, 15")
    a(f"s_add_u32 s14, s14, {O_OFF}")
    nissued = []
    di = 0
    for hh in range(16):
        need = min(29, (28*hh + 31) // 16 + 1)
        while di < need:
            a(f"s_add_u32 m0, s28, {di*1024}")
            a(f"s_add_u32 s3, s15, {di*14336}")
            a("buffer_load_dwordx4 v3, s[16:19], s3 offen lds")
            di += 1
        if hh % 2 == 0 and hh > 0:
            a("s_add_u32 s14, s14, 4096")
        for u in range(2):
            a(f"buffer_load_dwordx4 {vr(OF+8*hh+4*u,4)}, v1, s[24:27], s14 offen offset:{(hh%2)*2048+u*1024}")
        nissued.append(di + 2*(hh+1))
    total = nissued[-1]
    ts()
    ACC = 16
    WF = 32
    def rd(hh):
        a(f"s_waitcnt vmcnt({total - nissued[hh]})")
        buf = WF + 8 * (hh % 4)
        for u in range(2):
            for r in range(2):
                a(f"ds_read_b64_tr_b16 {vr(buf+4*u+2*r,2)}, v5 offset:{(28*hh+16*u+8*r)*64}")
    rd(0);
    ts()
    rd(1)
    for hh in range(16):
        if hh + 2 < 16:
            rd(hh + 2)
            a("s_waitcnt lgkmcnt(8)")
        elif hh + 2 == 16:
            a("s_waitcnt lgkmcnt(4)")
        else:
            a("s_waitcnt lgkmcnt(0)")
        buf = WF + 8 * (hh % 4)
        for u in range(2):
            c = "0" if (hh == 0 and u == 0) else vr(ACC, 16)
            a(f"v_mfma_f32_32x32x16_bf16 {vr(ACC,16)}, {vr(buf+4*u,4)}, {vr(OF+8*hh+4*u,4)}, {c}")
    ts()
    a("v_and_b32 v2, 31, v0")
    a("v_mul_u32_u24 v2, 896, v2")
    a("v_lshrrev_b32 v3, 5, v0")
    a("v_lshl_add_u32 v2, v3, 3, v2")
    a("s_mul_i32 s3, s10, 28672")
    a("s_add_u32 s3, s3, s13")
    a("s_nop 7")
    for i in range(8):
        a(f"v_cvt_pk_bf16_f32 v{WF+i}, v{ACC+2*i}, v{ACC+2*i+1}")
    for g in range(3):
        a(f"buffer_store_dwordx2 {vr(WF+2*g,2)}, v2, s[20:23], s3 offen offset:{16*g}")
    set_exec(a, HI, 0)
    a(f"buffer_store_dwordx2 {vr(WF+6,2)}, v2, s[20:23], s3 offen offset:48")
    ts()
    if TS:
        a("s_waitcnt vmcnt(0)")
        ts()
    ts.dump(8, 9, sW)
    a.lab("L_out_end")
    a("s_endpgm")
    return name, 192, 4*29*1024 + 64

def main():
    a = A()
    ks = [k_qkv(a), k_attn(a), k_out(a)]
    head = open(f"cdna_kernels/{NAME}.s.ref").read().split("; Override")[0]
    out = head
    for n, nv, lds in ks:
        out += f"; @launch kernel={n} grid=(256,1,1) block=(256,1,1) lds={lds}\n"
    out += '.amdgcn_target "amdgcn-amd-amdhsa--gfx950"\n.text\n'
    out += a.text()
    for n, nv, lds in ks:
        out += desc(n, nv, nv)
    o = [x for x in sys.argv[1:] if not x.startswith("--")]
    path = o[0] if o else f"cdna_kernels/{NAME}.s"
    open(path, "w").write(out)
main()
```

```python
import sys, struct, math

NAME = "standalone__softmax_full_mha__prompt"
KV_OFF = 0
O_OFF = 6 << 20
TS_OFF = 8 << 20
FL_OFF = 5 << 20
WS_BYTES = 268435456
X_BYTES = 2048 * 448 * 2
W_BYTES = 448 * 1344 * 2
WO_BYTES = 448 * 448 * 2
OUT_BYTES = 2048 * 448 * 2
QSCALE = 28 ** -0.5 * math.log2(math.e)

def opt(name, default):
    for arg in sys.argv:
        if arg.startswith(f"--{name}="):
            return int(arg.split("=")[1])
    return default
TS = "--ts" in sys.argv
MAP = opt("maph", 3)
ROT = opt("rot", 1)
FSH = opt("fsh", 7)
FLAGPOS = opt("flagpos", 16)

def f32bits(x):
    return struct.unpack("<I", struct.pack("<f", x))[0]

class A:
    def __init__(self):
        self.l = []
    def __call__(self, s):
        for line in s.strip("\n").split("\n"):
            self.l.append("    " + line.strip())
    def lab(self, n):
        self.l.append(n + ":")
    def raw(self, s):
        self.l.append(s)
    def text(self):
        return "\n".join(self.l) + "\n"

def vr(b, n, k="v"):
    return f"{k}[{b}:{b+n-1}]"
def ar(b, n):
    return vr(b, n, "a")

def srd(a, d, lo, hi, nbytes):
    a(f"s_mov_b32 s{d}, s{lo}")
    a(f"s_and_b32 s{d+1}, s{hi}, 0xffff")
    a(f"s_mov_b32 s{d+2}, {nbytes}")
    a(f"s_mov_b32 s{d+3}, 0x20000")

HI = "0xffffffff"
def set_exec(a, lo, hi):
    a(f"s_mov_b32 exec_lo, {lo}")
    a(f"s_mov_b32 exec_hi, {hi}")

class Stamps:
    def __init__(self, a):
        self.a = a; self.n = 0; self.names = []
    def __call__(self, name, cyc=False):
        if not TS: return
        b = 66 + 2 * self.n
        assert b + 1 < 102
        self.a(f"s_memtime s[{b}:{b+1}]" if cyc else f"s_memrealtime s[{b}:{b+1}]")
        self.names.append(name + ("(cyc)" if cyc else ""))
        self.n += 1
    def dump(self):
        if not TS: return
        a = self.a
        a("s_waitcnt lgkmcnt(0)")
        a(f"s_lshl_b32 s3, s2, 2")
        a(f"s_add_u32 s3, s3, s{sW}")
        a(f"s_lshl_b32 s3, s3, 7")
        a(f"s_add_u32 s3, s3, {TS_OFF}")
        a("s_mov_b64 exec, 1")
        a("v_mov_b32 v2, 0")
        for i in range(self.n):
            a(f"v_mov_b32 v4, s{66+2*i}")
            a(f"buffer_store_dword v4, v2, s[{WS}:{WS+3}], s3 offen offset:{4*i}")
            a("s_nop 1")
        a("s_waitcnt vmcnt(0)")
        open("stamps.txt", "w").write(",".join(self.names))

X, W, WO, OUT, DBG, WS, KVS = 16, 20, 24, 28, 32, 36, 40
sH, sB, sW, sT = 44, 45, 46, 47
sKC, sXB, sWB, sXM, sWM = 48, 49, 50, 51, 52
sA, sBb = 53, 54
sKV, sIT, sEX, sWoM, sWoS, sCNT, sROT = 55, 56, 57, 58, 59, 60, 61
sT3, sCS4 = 62, 63
L_WKV, L_WQ, L_XR = 0, 57344, 86016 + 1024
L_WO, L_CMB = 0, 114688
LDS_BYTES = 163840
vLane, vL16 = 0, 1
vX = [2, 3, 4, 5]
vWk, vWv, vWq = 6, 7, 8
vXR = [9, 10, 11, 12]
vWR, vWR2 = 13, 14
AK, AV, AQ = 16, 32, 48
XF = 64
KV = 192
WF = 208
Q, S0, P = 64, 96, 128
S = [S0, S0 + 16]

def decode_hb(a):
    nhg = 16 >> MAP
    lg = int(math.log2(nhg))
    a(f"s_and_b32 s{sH}, s2, {nhg-1}")
    a(f"s_lshl_b32 s{sH}, s{sH}, {MAP}")
    a(f"s_lshr_b32 s3, s2, 3")
    a(f"s_and_b32 s{sB}, s3, {(1<<MAP)-1}")
    a(f"s_add_u32 s{sH}, s{sH}, s{sB}")
    a(f"s_lshr_b32 s3, s3, {MAP}")
    a(f"s_and_b32 s{sB}, s2, 7")
    a(f"s_lshr_b32 s{sB}, s{sB}, {lg}")
    a(f"s_mul_i32 s{sB}, s{sB}, {32>>MAP}")
    a(f"s_add_u32 s{sB}, s{sB}, s3")

def mfma(a, d, x, y, c):
    a(f"v_mfma_f32_32x32x16_bf16 {d}, {x}, {y}, {c}")

SLEEP = opt("sleep", 2)
def poll(a, label, vaddr, mask, srdn):
    a(f"s_mov_b32 s{sCNT}, 0x100000")
    set_exec(a, mask, 0)
    a(f"s_branch {label}_in")
    a.lab(label)
    if SLEEP: a(f"s_sleep {SLEEP}")
    a.lab(label + "_in")
    a(f"buffer_load_dword v15, v{vaddr}, s[{srdn}:{srdn+3}], 0 offen sc1")
    a(f"s_sub_u32 s{sCNT}, s{sCNT}, 1")
    a(f"s_cbranch_scc1 {label}_done")
    a("s_waitcnt vmcnt(0)")
    a(f"v_cmp_eq_u32 vcc, 0, v15")
    a(f"s_cbranch_vccnz {label}")
    a.lab(label + "_done")
    set_exec(a, HI, HI)

def kernel(a):
    name = NAME + "_kernel"
    a.raw(f".globl {name}")
    a.raw(".p2align 8")
    a.raw(f".type {name},@function")
    a.lab(name)
    ts = Stamps(a)
    ts("start")
    a("s_cmp_ge_u32 s2, 256")
    a("s_cbranch_scc1 L_end")
    a("s_load_dwordx8 s[4:11], s[0:1], 0")
    a("s_load_dwordx4 s[12:15], s[0:1], 32")
    decode_hb(a)
    a("v_lshrrev_b32 v1, 6, v0")
    a("v_and_b32 v0, 63, v0")
    a(f"v_readfirstlane_b32 s{sW}, v1")
    a("v_lshrrev_b32 v2, 3, v0")
    a("v_mul_u32_u24 v2, 896, v2")
    a("v_and_b32 v3, 7, v0")
    a("v_lshrrev_b32 v4, 4, v0")
    a("v_xor_b32 v3, v3, v4")
    a("v_lshl_add_u32 v2, v3, 4, v2")
    a("v_xor_b32 v3, 64, v2")
    a("v_add_u32 v3, 6144, v3")
    a("v_add_u32 v4, 12288, v2")
    a("v_add_u32 v5, 12288, v3")
    a(f"v_lshrrev_b32 v{vWq}, 2, v0")
    a(f"v_mul_u32_u24 v{vWq}, 2688, v{vWq}")
    a("v_and_b32 v15, 3, v0")
    a(f"v_lshl_add_u32 v{vWq}, v15, 4, v{vWq}")
    a(f"v_add_u32 v{vWk}, 896, v{vWq}")
    a(f"v_add_u32 v{vWv}, 768, v{vWq}")
    a(f"s_lshl_b32 s{sT}, s{sB}, 2")
    a(f"s_add_u32 s{sT}, s{sT}, s{sW}")
    a(f"s_mul_i32 s{sXB}, s{sT}, 28672")
    a(f"s_mul_i32 s{sWB}, s{sH}, 56")
    a(f"s_and_b32 s{sWB}, s{sWB}, 0xfffffff0")
    a(f"s_mul_i32 s3, s{sW}, 43008")
    a(f"s_add_u32 s{sWB}, s{sWB}, s3")
    a(f"s_lshl_b32 s{sXM}, s{sW}, 14")
    a(f"s_add_u32 s{sXM}, s{sXM}, {L_XR}")
    a(f"s_lshl_b32 s{sWM}, s{sW}, 11")
    if ROT:
        a(f"s_lshl_b32 s3, s{sB}, 1")
        a(f"s_add_u32 s3, s3, s{sH}")
        a(f"s_mul_i32 s{sA}, s3, 37")
        a(f"s_lshr_b32 s{sA}, s{sA}, 8")
        a(f"s_mul_i32 s{sA}, s{sA}, 7")
        a(f"s_sub_u32 s{sROT}, s3, s{sA}")
    else:
        a(f"s_mov_b32 s{sROT}, 0")
    a(f"s_mov_b32 s{sKC}, s{sROT}")
    a("s_waitcnt lgkmcnt(0)")
    srd(a, X, 4, 5, X_BYTES)
    srd(a, W, 6, 7, W_BYTES)
    srd(a, WS, 14, 15, WS_BYTES)
    a("s_cmp_lg_u32 s2, 0")
    a("s_cbranch_scc1 L_noclear")
    a("v_lshrrev_b32 v9, 1, v0")
    a(f"v_lshlrev_b32 v9, {FSH}, v9")
    a("v_and_b32 v10, 1, v0")
    a("v_lshl_add_u32 v9, v10, 4, v9")
    a(f"s_lshl_b32 s3, s{sW}, {FSH+6}")
    a(f"s_add_u32 s3, s3, {FL_OFF}")
    a(f"s_add_u32 s{sA}, s3, {32 << FSH}")
    for r in range(4):
        a(f"v_mov_b32 v{16+r}, 0")
    a(f"buffer_store_dwordx4 v[16:19], v9, s[{WS}:{WS+3}], s3 offen sc1")
    a(f"buffer_store_dwordx4 v[16:19], v9, s[{WS}:{WS+3}], s{sA} offen sc1")
    a.lab("L_noclear")
    def adv_kc():
        a(f"s_add_u32 s{sKC}, s{sKC}, 1")
        a(f"s_cmp_eq_u32 s{sKC}, 7")
        a(f"s_cselect_b32 s{sKC}, 0, s{sKC}")
    def issue_ops(c):
        def w0():
            a(f"s_mul_i32 s{sBb}, s{sKC}, 172032")
            a(f"s_add_u32 m0, s{sWM}, {L_WKV + c*8192}")
            a(f"s_add_u32 s{sBb}, s{sBb}, s{sWB}")
            a(f"buffer_load_dwordx4 v{vWk}, s[{W}:{W+3}], s{sBb} offen lds")
        def w1():
            a(f"buffer_load_dwordx4 v{vWv}, s[{W}:{W+3}], s{sBb} offen offset:1024 lds")
        def xq(q):
            def f():
                if q == 0:
                    a(f"s_lshl_b32 s{sA}, s{sKC}, 7")
                    a(f"s_add_u32 m0, s{sXM}, {(c%4)*4096}")
                    a(f"s_add_u32 s{sA}, s{sA}, s{sXB}")
                a(f"buffer_load_dwordx4 v{vX[q]}, s[{X}:{X+3}], s{sA} offen offset:{1024*q} lds")
                if q == 3: adv_kc()
            return f
        return [w0, w1, xq(0), xq(1), xq(2), xq(3)]
    def issue_q(c):
        def f():
            a(f"s_mul_i32 s{sBb}, s{sKC}, 172032")
            a(f"s_lshr_b32 s{sA}, s{sWM}, 1")
            a(f"s_add_u32 m0, s{sA}, {L_WQ + c*4096}")
            a(f"s_add_u32 s{sBb}, s{sBb}, s{sWB}")
            a(f"buffer_load_dwordx4 v{vWq}, s[{W}:{W+3}], s{sBb} offen lds")
            adv_kc()
        return f
    for f in issue_ops(0) + issue_ops(1): f()
    ts("iss01")
    srd(a, WO, 8, 9, WO_BYTES)
    srd(a, OUT, 10, 11, OUT_BYTES)
    srd(a, DBG, 12, 13, 256)
    a(f"s_lshl_b32 s3, s{sH}, 18")
    a(f"s_lshl_b32 s{sA}, s{sW}, 12")
    a(f"s_add_u32 s3, s3, s{sA}")
    a(f"s_add_u32 s{KVS}, s14, s3")
    a(f"s_addc_u32 s{KVS+1}, s15, 0")
    a(f"s_and_b32 s{KVS+1}, s{KVS+1}, 0xffff")
    a(f"s_mov_b32 s{KVS+2}, {256*1024}")
    a(f"s_mov_b32 s{KVS+3}, 0x20000")
    a("v_lshlrev_b32 v1, 4, v0")
    a("v_and_b32 v9, 31, v0")
    a("v_lshlrev_b32 v9, 7, v9")
    a("v_bfe_u32 v10, v0, 1, 3")
    a("v_lshrrev_b32 v11, 5, v0")
    a("v_xor_b32 v10, v10, v11")
    a("v_lshl_add_u32 v9, v10, 4, v9")
    a(f"v_add_u32 v9, s{sXM}, v9")
    a("v_xor_b32 v10, 32, v9")
    a("v_xor_b32 v11, 64, v9")
    a("v_xor_b32 v12, 96, v9")
    a(f"v_lshrrev_b32 v{vWR}, 5, v0")
    a(f"v_lshlrev_b32 v{vWR}, 9, v{vWR}")
    a(f"v_bfe_u32 v{vWR2}, v0, 2, 2")
    a(f"v_lshl_add_u32 v{vWR}, v{vWR2}, 6, v{vWR}")
    a(f"v_bfe_u32 v{vWR2}, v0, 4, 1")
    a(f"v_lshl_add_u32 v{vWR}, v{vWR2}, 5, v{vWR}")
    a(f"v_lshl_add_u32 v{vWR}, v15, 3, v{vWR}")
    a(f"s_and_b32 s3, s{sH}, 1")
    a("s_lshl_b32 s3, s3, 3")
    a(f"v_add_u32 v{vWR}, s3, v{vWR}")
    a(f"v_add_u32 v{vWR2}, {L_WQ}, v{vWR}")
    for r in range(64):
        a(f"v_accvgpr_write_b32 a{r}, 0")
    a(f"s_mov_b32 s{sEX}, 0")
    def rd(c, i):
        a(f"ds_read_b128 {vr(XF+16*c+4*i,4)}, v{vXR[i]} offset:{(c%4)*4096}")
        for p in range(2):
            for r in range(2):
                a(f"ds_read_b64_tr_b16 {vr(WF+8*i+4*p+2*r,2)}, v{vWR} offset:{L_WKV + ((c*4+i)*2+p)*1024 + r*256}")
    def mm(c, i):
        x = vr(XF+16*c+4*i, 4)
        first = (c == 0 and i == 0)
        mfma(a, vr(AK,16), vr(WF+8*i,4), x, "0" if first else vr(AK,16))
        mfma(a, vr(AV,16), x, vr(WF+8*i+4,4), "0" if first else vr(AV,16))
    a("v_mov_b32 v244, 0")
    a("v_mov_b32 v245, 1")
    for f in issue_ops(2): f()
    def goload():
        a(f"buffer_load_dword v246, v244, s[{DBG}:{DBG+3}], 0 offen sc1")
    pend = {0: issue_ops(3), 1: issue_ops(4), 2: issue_ops(5), 3: issue_ops(6),
            4: [issue_q(k) for k in range(4)], 5: [issue_q(k) for k in range(4, 7)] + [goload], 6: []}
    waitn = {0: 12, 1: 12, 2: 12, 3: 12, 4: 12, 5: 6 + 4, 6: 8}
    for c in range(7):
        ops = pend[c]
        def op():
            if ops: ops.pop(0)()
        a(f"s_waitcnt vmcnt({waitn[c]})")
        a("s_barrier")
        if c == 0: ts("c0")
        if c == 3: ts("c3")
        rd(c, 0); rd(c, 1); rd(c, 2)
        if c == 0:
            a(f"s_add_u32 s3, s2, s{sW}")
            a("s_cmp_lg_u32 s3, 0")
            a("s_cbranch_scc1 L_nogo")
            set_exec(a, 1, 0)
            a(f"buffer_store_dword v245, v244, s[{DBG}:{DBG+3}], 0 offen sc1")
            set_exec(a, HI, HI)
            a.lab("L_nogo")
        op(); op()
        a("s_waitcnt lgkmcnt(10)")
        mm(c, 0)
        rd(c, 3)
        op()
        a("s_waitcnt lgkmcnt(10)")
        mm(c, 1)
        op()
        a("s_waitcnt lgkmcnt(5)")
        mm(c, 2)
        op()
        a("s_waitcnt lgkmcnt(0)")
        mm(c, 3)
        op()
    ts("kv_mm")
    a(f"s_lshl_b32 s{sKV}, s{sB}, 14")
    a("v_mov_b32 v15, 0")
    set_exec(a, "0x10000000", "0x10000000")
    a("v_mov_b32 v15, 0x3f803f80")
    set_exec(a, HI, HI)
    a("s_nop 4")
    for i in range(8):
        a(f"v_cvt_pk_bf16_f32 v{KV+i}, v{AK+2*i}, v{AK+2*i+1}")
    set_exec(a, 0, HI)
    a(f"v_mov_b32 v{KV+6}, 0x3f803f80")
    a(f"v_mov_b32 v{KV+7}, 0x3f80")
    for r in range(12, 16):
        a(f"v_mov_b32 v{AK+r}, 0")
    set_exec(a, HI, HI)
    a(f"buffer_store_dwordx4 {vr(KV,4)}, v1, s[{KVS}:{KVS+3}], s{sKV} offen sc1")
    a(f"buffer_store_dwordx4 {vr(KV+4,4)}, v1, s[{KVS}:{KVS+3}], s{sKV} offen offset:1024 sc1")
    for i in range(8):
        a(f"v_cvt_pk_bf16_f32 v{KV+8+i}, v{AV+2*i}, v{AV+2*i+1}")
    set_exec(a, "0xf0000000", "0xf0000000")
    for i in range(8):
        a(f"v_mov_b32 v{KV+8+i}, v15")
    set_exec(a, HI, HI)
    a(f"buffer_store_dwordx4 {vr(KV+8,4)}, v1, s[{KVS}:{KVS+3}], s{sKV} offen offset:2048 sc1")
    a(f"buffer_store_dwordx4 {vr(KV+12,4)}, v1, s[{KVS}:{KVS+3}], s{sKV} offen offset:3072 sc1")
    ts("kv_st")
    a("s_waitcnt vmcnt(4)")
    a("s_barrier")
    def rdq(s):
        for r in range(2):
            a(f"ds_read_b64_tr_b16 {vr(WF+4*(s%8)+2*r,2)}, v{vWR2} offset:{s*1024 + r*256}")
    for s in range(6): rdq(s)
    a(f"s_lshl_b32 s3, s{sH}, 4")
    a(f"s_add_u32 s{sA}, s3, s{sB}")
    a(f"s_lshl_b32 s{sA}, s{sA}, {FSH}")
    a(f"s_lshl_b32 s{sBb}, s{sW}, 2")
    a(f"s_add_u32 s{sBb}, s{sBb}, {FL_OFF}")
    a(f"s_add_u32 s{sA}, s{sA}, s{sBb}")
    a(f"v_mov_b32 v2, s{sA}")
    a("v_mov_b32 v3, 1")
    a("v_add_u32 v4, s3, v0")
    a(f"v_lshlrev_b32 v4, {FSH}, v4")
    a(f"v_add_u32 v4, s{sBb}, v4")
    a(f"s_lshl_b32 s3, s{sW}, 6")
    a(f"s_add_u32 s3, s3, s{sB}")
    a("v_lshl_add_u32 v5, v0, 4, s3")
    a(f"v_lshlrev_b32 v5, {FSH}, v5")
    a(f"s_and_b32 s3, s{sH}, 3")
    a("s_lshl_b32 s3, s3, 2")
    a(f"s_add_u32 s3, s3, {FL_OFF + 16}")
    a("v_add_u32 v5, s3, v5")
    for s in range(28):
        if s + 6 < 28:
            rdq(s + 6)
            a("s_waitcnt lgkmcnt(12)")
        else:
            a(f"s_waitcnt lgkmcnt({2*(27-s)})")
        mfma(a, vr(AQ,16), vr(WF+4*(s%8),4), vr(XF+4*s,4), "0" if s == 0 else vr(AQ,16))
        if s + 1 == FLAGPOS:
            a("v_readfirstlane_b32 s3, v246")
            a("s_waitcnt vmcnt(0)")
            a("s_cmp_lg_u32 s3, 0")
            a("s_cbranch_scc1 L_go_ok")
            poll(a, "L_pollgo", 244, 1, DBG)
            a.lab("L_go_ok")
            set_exec(a, 1, 0)
            a(f"buffer_store_dword v3, v2, s[{WS}:{WS+3}], 0 offen sc1")
            set_exec(a, HI, HI)
            ts("kv_flag")
    a(f"s_mov_b32 s3, {f32bits(QSCALE):#x}")
    a(f"s_lshl_b32 s{sA}, s{sW}, 11")
    a(f"s_add_u32 s{sA}, s{sA}, {L_CMB}")
    a(f"v_add_u32 v6, s{sA}, v1")
    for i in range(3):
        a(f"s_add_u32 s{sA}, s{sW}, {1+i}")
        a(f"s_and_b32 s{sA}, s{sA}, 3")
        a(f"s_lshl_b32 s{sA}, s{sA}, 11")
        a(f"s_add_u32 s{sA}, s{sA}, {L_CMB}")
        a(f"v_add_u32 v{7+i}, s{sA}, v1")
    for r in range(16):
        a(f"v_mul_f32 v{AQ+r}, s3, v{AQ+r}")
    set_exec(a, 0, HI)
    for r in range(12, 16):
        a(f"v_mov_b32 v{AQ+r}, 0")
    set_exec(a, HI, HI)
    a(f"v_mul_f32 v10, v{AQ}, v{AK}")
    for r in range(1, 16):
        a(f"v_fmac_f32 v10, v{AQ+r}, v{AK+r}")
    a("v_mov_b32 v11, v10")
    Q3 = Q + 24
    for i in range(4):
        a(f"v_cvt_pk_bf16_f32 v{Q3+i}, v{AQ+2*i}, v{AQ+2*i+1}")
    a("v_permlane32_swap_b32 v10, v11")
    a(f"ds_write_b128 v6, {vr(Q3,4)}")
    for i in range(4, 8):
        a(f"v_cvt_pk_bf16_f32 v{Q3+i}, v{AQ+2*i}, v{AQ+2*i+1}")
    a("v_add_f32 v10, v10, v11")
    a("v_mov_b32 v11, 0")
    set_exec(a, 0, HI)
    a(f"v_cvt_pk_bf16_f32 v{Q3+6}, -v10, v11")
    set_exec(a, HI, HI)
    a(f"ds_write_b128 v6, {vr(Q3+4,4)} offset:1024")
    a("s_waitcnt lgkmcnt(0)")
    a("s_barrier")
    for i in range(3):
        a(f"ds_read_b128 {vr(Q+8*i,4)}, v{7+i}")
        a(f"ds_read_b128 {vr(Q+8*i+4,4)}, v{7+i} offset:1024")
    a("v_lshrrev_b32 v10, 4, v0")
    a("v_mul_u32_u24 v6, 896, v10")
    a("v_lshlrev_b32 v10, 2, v10")
    a("v_and_b32 v11, 15, v0")
    a("v_xor_b32 v10, v10, v11")
    a("v_lshl_add_u32 v6, v10, 4, v6")
    a(f"s_lshr_b32 s{sCS4}, s{sH}, 2")
    a(f"s_and_b32 s{sT3}, s{sH}, 3")
    a(f"s_lshl_b32 s3, s{sB}, 2")
    a(f"s_add_u32 s{sT3}, s{sT3}, s3")
    ts("q_done")
    poll(a, "L_poll1", 4, "0xffff", WS)
    ts("poll1")
    def ldkv(slot, tail=True):
        for f in range(4):
            a(f"buffer_load_dwordx4 {vr(KV+16*slot+4*f,4)}, v1, s[{KVS}:{KVS+3}], s{sKV} offen offset:{1024*f} sc1")
    def advkv1(): a(f"s_add_u32 s{sKV}, s{sKV}, 16384")
    def advkv2(): a(f"s_and_b32 s{sKV}, s{sKV}, 0x3ffff")
    def wo_m0(): a(f"s_add_u32 m0, m0, 1024")
    def wo_s(): a(f"s_add_u32 s{sWoS}, s{sWoS}, 3584")
    def wo_ld(): a(f"buffer_load_dwordx4 v6, s[{WO}:{WO+3}], s{sWoS} offen lds")
    a.lab("L_main")
    a(f"s_mul_i32 s{sWoS}, s{sCS4}, 224")
    a(f"s_and_b32 s{sWoS}, s{sWoS}, 0xffffffc0")
    a(f"s_mul_i32 s3, s{sW}, {28*3584}")
    a(f"s_add_u32 s{sWoS}, s{sWoS}, s3")
    a(f"s_mul_i32 s3, s{sW}, {28*1024}")
    a(f"s_add_u32 m0, s3, {L_WO}")
    a(f"s_mov_b32 s{KVS+2}, {256*1024}")
    a(f"s_lshl_b32 s{sKV}, s{sB}, 14")
    for sl in (1, 2):
        advkv1(); advkv2()
        ldkv(sl)
        for _ in range(2):
            wo_ld(); wo_m0(); wo_s()
    advkv1(); advkv2()
    for r in range(4):
        a(f"v_mov_b32 v{KV+16*3+12+r}, 0")
        a(f"v_mov_b32 v{P+4+r}, 0")
    a(f"s_mov_b32 s{sIT}, 13")
    a("s_waitcnt lgkmcnt(0)")
    def mS(part, t):
        slot = (t // 4) % 4; qt = t % 4
        d = vr(S[t % 2], 16)
        mfma(a, d, vr(KV+16*slot+4*part,4), vr(Q+8*qt+4*part,4), "0" if part == 0 else d)
    def mPV(part, t):
        slot = (t // 4) % 4; qt = t % 4
        d = ar(16*qt, 16)
        mfma(a, d, vr(KV+16*slot+8+4*part,4), vr(P+4*part,4), d)
    def EC(t, g):
        s = S[t % 2] + 4*g
        for r in range(4):
            a(f"v_exp_f32 v{s+r}, v{s+r}")
        a(f"v_cvt_pk_bf16_f32 v{P+2*g}, v{s}, v{s+1}")
        a(f"v_cvt_pk_bf16_f32 v{P+2*g+1}, v{s+2}, v{s+3}")
    mS(0, 0); mS(1, 0)
    ts("att0", cyc=True)
    a("s_nop 7")
    a("s_nop 3")
    a.raw(".p2align 6")
    a.lab("L_loop")
    NWO = [1, 1, 2, 2]
    for t in range(16):
        j = t // 4; st = t % 4
        f = [None] * 4
        if st == 0:
            f[2] = advkv1; f[3] = advkv2
        if st == 1:
            f[1] = wo_m0; f[2] = wo_s
            f[3] = lambda: a(f"s_sub_u32 s{sIT}, s{sIT}, 1")
        if st == 2:
            if NWO[j] == 2:
                f[1] = wo_m0; f[2] = wo_s
            f[3] = lambda: a(f"s_waitcnt vmcnt({8 + NWO[j] + NWO[(j-1)%4] + NWO[(j-2)%4]})")
        if st == 3:
            f[0] = lambda: a(f"s_cmp_gt_i32 s{sIT}, 0")
            f[1] = lambda: a(f"s_cselect_b32 s{KVS+2}, {256*1024}, 0")
            if j == 3:
                f[3] = lambda: a(f"s_cmp_gt_i32 s{sIT}, -3")
        mS(0, t+1)
        if st == 1 or (st == 2 and NWO[j] == 2):
            wo_ld()
        if f[0]: f[0]()
        EC(t, 0)
        mPV(1, (t - 1) % 16)
        if st == 0:
            ldkv((j + 3) % 4)
        if f[1]: f[1]()
        EC(t, 1)
        mS(1, t+1)
        if f[2]: f[2]()
        EC(t, 2)
        mPV(0, t)
        if f[3]: f[3]()
        EC(t, 3)
    a("s_cbranch_scc1 L_loop")
    a("s_nop 0")
    mPV(1, 15)
    ts("att1", cyc=True)
    ts("att1")
    a(f"s_mov_b32 s4, {f32bits(2.0**62):#x}")
    a(f"s_mov_b32 s5, {f32bits(2.0**-62):#x}")
    for i in range(3):
        a(f"s_add_u32 s3, s{sW}, {1+i}")
        a("s_and_b32 s3, s3, 3")
        a("s_mul_i32 s3, s3, 12288")
        a(f"s_add_u32 s3, s3, {L_CMB + 4096*i}")
        a(f"v_add_u32 v{7+i}, s3, v1")
    for i in range(3):
        a(f"v_accvgpr_read_b32 v{10+i}, a{16*i+12}")
        for g in range(3):
            a(f"ds_write_b128 v{7+i}, {ar(16*i+4*g,4)} offset:{1024*g}")
    F = S0
    for r in range(16):
        a(f"v_accvgpr_read_b32 v{F+r}, a{48+r}")
    a("v_add_f32 v10, v10, v11")
    a("v_add_f32 v10, v10, v12")
    a(f"v_add_f32 v10, v10, v{F+12}")
    a("v_cmp_nge_f32 s[6:7], s4, v10")
    a(f"v_cmp_nle_f32 vcc, s5, v{F+12}")
    a("s_or_b64 s[6:7], s[6:7], vcc")
    a("s_cmp_lg_u32 s7, 0")
    a("s_cselect_b32 s6, 1.0, 0")
    a(f"s_cmp_lg_u32 s{sEX}, 0")
    a("s_cselect_b32 s6, 0, s6")
    set_exec(a, 0, HI)
    a(f"v_mov_b32 v{F+13}, s6")
    for i in range(3):
        a(f"v_accvgpr_write_b32 a{16*i+13}, v{F+13}")
    set_exec(a, HI, HI)
    for i in range(3):
        a(f"ds_write_b128 v{7+i}, {ar(16*i+12,4)} offset:3072")
    a(f"s_mul_i32 s3, s{sW}, 12288")
    a(f"s_add_u32 s3, s3, {L_CMB}")
    a("v_add_u32 v7, s3, v1")
    a("s_waitcnt vmcnt(0) lgkmcnt(0)")
    a("s_barrier")
    R = 136
    for i in range(3):
        for g in range(4):
            a(f"ds_read_b128 {vr(R+16*i+4*g,4)}, v7 offset:{4096*i+1024*g}")
    a(f"s_lshl_b32 s3, s{sT}, 4")
    a(f"s_add_u32 s3, s3, s{sH}")
    a("s_lshl_b32 s3, s3, 11")
    a(f"s_add_u32 s3, s3, {O_OFF}")
    for i in range(3):
        a(f"s_waitcnt lgkmcnt({8-4*i})")
        for r in range(16):
            a(f"v_add_f32 v{F+r}, v{F+r}, v{R+16*i+r}")
    a(f"v_mov_b32 v10, v{F+12}")
    a(f"v_mov_b32 v11, v{F+12}")
    a(f"v_cmp_neq_f32 s[6:7], 0, v{F+13}")
    a("s_nop 0")
    a("v_permlane32_swap_b32 v10, v11")
    a("s_cmp_lg_u32 s7, 0")
    a("s_cbranch_scc1 L_fallback")
    a("v_rcp_f32 v11, v11")
    set_exec(a, 0, HI)
    a(f"v_mov_b32 v{F+12}, 0")
    set_exec(a, HI, HI)
    for r in range(16):
        a(f"v_mul_f32 v{F+r}, v{F+r}, v11")
    for i in range(8):
        a(f"v_cvt_pk_bf16_f32 v{P+i}, v{F+2*i}, v{F+2*i+1}")
    a(f"buffer_store_dwordx4 {vr(P,4)}, v1, s[{WS}:{WS+3}], s3 offen sc1")
    a(f"buffer_store_dwordx4 {vr(P+4,4)}, v1, s[{WS}:{WS+3}], s3 offen offset:1024 sc1")
    ts("o_st")
    a(f"s_and_b32 s3, s{sCS4}, 1")
    a("s_lshl_b32 s3, s3, 5")
    a(f"s_mul_i32 s{sA}, s{sW}, 56")
    a(f"s_add_u32 s3, s3, s{sA}")
    a("v_bfe_u32 v7, v0, 4, 1")
    a("v_lshlrev_b32 v7, 5, v7")
    a("v_and_b32 v8, 3, v0")
    a("v_lshl_add_u32 v7, v8, 3, v7")
    a("v_add_u32 v7, s3, v7")
    a("v_and_b32 v7, 255, v7")
    a("v_bfe_u32 v8, v0, 2, 2")
    a("v_lshlrev_b32 v9, 6, v8")
    a("v_xor_b32 v7, v7, v9")
    a("v_lshl_add_u32 v9, v8, 8, v7")
    a("v_lshrrev_b32 v8, 5, v0")
    a("v_lshl_add_u32 v7, v8, 10, v9")
    a("v_add_u32 v8, 0x10000, v7")
    a("v_add_u32 v9, 0x10000, v9")
    def rdwo(hh):
        for u in range(2):
            for r in range(2):
                off = L_WO + (28*hh + 16*u + 8*r) * 256
                base = 7
                if off >= 0x10000:
                    off -= 0x10000; base = 8
                if hh == 15 and u == 1 and r == 1:
                    base = 9
                a(f"ds_read_b64_tr_b16 {ar(8*hh+4*u+2*r,2)}, v{base} offset:{off}")
    for hh in range(8): rdwo(hh)
    a("s_waitcnt vmcnt(0)")
    set_exec(a, 1, 0)
    a(f"buffer_store_dword v3, v2, s[{WS}:{WS+3}], 0 offen offset:16 sc1")
    set_exec(a, HI, HI)
    ts("o_flag")
    for hh in range(8, 16): rdwo(hh)
    a(f"s_lshl_b32 s3, s{sT3}, 2")
    a(f"s_add_u32 s3, s3, s{sW}")
    a("s_lshl_b32 s3, s3, 13")
    a(f"s_add_u32 s3, s3, {O_OFF}")
    a(f"s_add_u32 s{sA}, s3, 4096")
    a(f"s_lshl_b32 s{sBb}, s{sW}, 13")
    a(f"s_add_u32 s{sBb}, s{sBb}, {L_CMB}")
    a(f"v_add_u32 v10, s{sBb}, v1")
    a(f"v_add_u32 v11, {L_CMB}, v1")
    a("v_and_b32 v12, 31, v0")
    a("v_mul_u32_u24 v12, 896, v12")
    a("v_lshrrev_b32 v13, 5, v0")
    a("v_lshl_add_u32 v12, v13, 4, v12")
    a(f"s_mul_i32 s{sKV}, s{sT3}, 28672")
    a(f"s_lshl_b32 s{sBb}, s{sCS4}, 2")
    a(f"s_add_u32 s{sBb}, s{sBb}, s{sW}")
    a(f"s_mul_i32 s{sBb}, s{sBb}, 56")
    a(f"s_add_u32 s{sKV}, s{sKV}, s{sBb}")
    a("s_barrier")
    poll(a, "L_poll2", 5, "0xf", WS)
    ts("poll2")
    OF = 64
    for f in range(8):
        a(f"buffer_load_dwordx4 {vr(OF+4*f,4)}, v1, s[{WS}:{WS+3}], {'s3' if f < 4 else 's%d' % sA} offen offset:{1024*(f%4)} sc1")
    for f in range(8):
        a(f"s_waitcnt vmcnt({7-f})")
        a(f"ds_write_b128 v10, {vr(OF+4*f,4)} offset:{1024*f}")
    a("s_waitcnt lgkmcnt(0)")
    a("s_barrier")
    ts("o_ld")
    ACC = 16
    for f in range(12):
        a(f"ds_read_b128 {vr(OF+4*f,4)}, v11 offset:{1024*f}")
    for f in range(32):
        if f + 12 < 32:
            a(f"ds_read_b128 {vr(OF+4*(f+12),4)}, v11 offset:{1024*(f+12)}")
            a("s_waitcnt lgkmcnt(12)")
        else:
            a(f"s_waitcnt lgkmcnt({31-f})")
        mfma(a, vr(ACC,16), ar(4*f,4), vr(OF+4*f,4), "0" if f == 0 else vr(ACC,16))
    a("s_nop 7")
    a("s_nop 3")
    D = 32
    for i in range(8):
        a(f"v_cvt_pk_bf16_f32 v{D+i}, v{ACC+2*i}, v{ACC+2*i+1}")
    a(f"v_permlane32_swap_b32 v{D}, v{D+2}")
    a(f"v_permlane32_swap_b32 v{D+1}, v{D+3}")
    a(f"v_permlane32_swap_b32 v{D+4}, v{D+6}")
    a(f"v_permlane32_swap_b32 v{D+5}, v{D+7}")
    a(f"buffer_store_dwordx4 {vr(D,4)}, v12, s[{OUT}:{OUT+3}], s{sKV} offen")
    set_exec(a, HI, 0)
    a(f"buffer_store_dwordx4 {vr(D+4,4)}, v12, s[{OUT}:{OUT+3}], s{sKV} offen offset:32")
    set_exec(a, 0, HI)
    a(f"buffer_store_dwordx2 {vr(D+4,2)}, v12, s[{OUT}:{OUT+3}], s{sKV} offen offset:32")
    ts("out_st")
    if TS:
        a("s_waitcnt vmcnt(0)")
        ts("end")
    ts.dump()
    a.lab("L_end")
    a("s_endpgm")
    a.lab("L_fallback")
    a("s_barrier")
    a(f"s_mov_b32 s{sEX}, 1")
    a(f"s_mov_b32 s{KVS+2}, {256*1024}")
    set_exec(a, 0, HI)
    for i in range(4):
        a(f"v_mov_b32 v{Q+8*i+6}, 0")
        a(f"v_mov_b32 v{Q+8*i+7}, 0")
    set_exec(a, HI, HI)
    M = P
    for i in range(4):
        a(f"v_mov_b32 v{M+i}, 0xff800000")
    for r in range(64):
        a(f"v_accvgpr_write_b32 a{r}, 0")
    a(f"s_lshl_b32 s{sKV}, s{sB}, 14")
    a(f"s_mov_b32 s{sIT}, 16")
    a.lab("L_fb_loop")
    advkv1(); advkv2()
    ldkv(0)
    a("s_waitcnt vmcnt(0)")
    for i in range(4):
        d = vr(S0, 16)
        mfma(a, d, vr(KV,4), vr(Q+8*i,4), "0")
        mfma(a, d, vr(KV+4,4), vr(Q+8*i+4,4), d)
        a("s_nop 15")
        for r in range(0, 16, 2):
            a(f"v_max3_f32 v{M+i}, v{M+i}, v{S0+r}, v{S0+r+1}")
        a("s_nop 1")
    a(f"s_sub_u32 s{sIT}, s{sIT}, 1")
    a(f"s_cmp_lg_u32 s{sIT}, 0")
    a("s_cbranch_scc1 L_fb_loop")
    for i in range(4):
        a(f"v_mov_b32 v12, v{M+i}")
        a("s_nop 1")
        a(f"v_permlane32_swap_b32 v12, v{M+i}")
        a("s_nop 1")
        a(f"v_max_f32 v{M+i}, v{M+i}, v12")
        a(f"s_add_u32 s3, s{sW}, {1+i}")
        a("s_and_b32 s3, s3, 3")
        a("s_lshl_b32 s3, s3, 10")
        a(f"s_add_u32 s3, s3, {L_CMB}")
        a(f"v_lshl_add_u32 v{7+i}, v0, 2, s3")
        a(f"s_lshl_b32 s4, s{sW}, 8")
        a(f"v_add_u32 v13, s4, v{7+i}")
        a(f"ds_write_b32 v13, v{M+i}")
    a("s_waitcnt lgkmcnt(0)")
    a("s_barrier")
    for i in range(4):
        for w in range(4):
            a(f"ds_read_b32 v{S0+w}, v{7+i} offset:{256*w}")
        a("s_waitcnt lgkmcnt(0)")
        a(f"v_max3_f32 v12, v{S0}, v{S0+1}, v{S0+2}")
        a(f"v_max_f32 v12, v12, v{S0+3}")
        a("v_sub_f32 v12, 0, v12")
        a("v_and_b32 v13, 0xffff0000, v12")
        a(f"v_sub_f32 v{S0}, v12, v13")
        a(f"v_and_b32 v{S0+1}, 0xffff0000, v{S0}")
        a(f"v_sub_f32 v{S0+2}, v{S0}, v{S0+1}")
        a("v_lshrrev_b32 v13, 16, v13")
        set_exec(a, 0, HI)
        a(f"v_or_b32 v{Q+8*i+6}, v13, v{S0+1}")
        a(f"v_lshrrev_b32 v{Q+8*i+7}, 16, v{S0+2}")
        set_exec(a, HI, HI)
    a("s_barrier")
    a("s_branch L_main")
    return name

def main():
    a = A()
    name = kernel(a)
    head = open(f"cdna_kernels/{NAME}.s.ref").read().split("; Override")[0]
    out = head
    out += f"; @launch grid=(256,1,1) block=(256,1,1) lds={LDS_BYTES}\n"
    out += '.amdgcn_target "amdgcn-amd-amdhsa--gfx950"\n.text\n'
    out += a.text()
    out += f""".section .rodata,"a"
.p2align 6
.amdhsa_kernel {name}
  .amdhsa_next_free_vgpr 384
  .amdhsa_next_free_sgpr 102
  .amdhsa_accum_offset 256
  .amdhsa_group_segment_fixed_size 0
  .amdhsa_kernarg_size 48
  .amdhsa_user_sgpr_count 2
  .amdhsa_user_sgpr_kernarg_segment_ptr 1
  .amdhsa_system_sgpr_workgroup_id_x 1
.end_amdhsa_kernel
"""
    o = [x for x in sys.argv[1:] if not x.startswith("--")]
    path = o[0] if o else f"cdna_kernels/{NAME}.s"
    open(path, "w").write(out)
main()
```

```python
import sys, struct, math

NAME = "standalone__softmax_full_mha__prompt"
FL_OFF = 5 << 20
O_OFF = 6 << 20
TS_OFF = 8 << 20
WS_BYTES = 268435456
X_BYTES = 2048 * 448 * 2
W_BYTES = 448 * 1344 * 2
WO_BYTES = 448 * 448 * 2
OUT_BYTES = 2048 * 448 * 2
KV_BYTES = 4 << 20
V_BASE = 28672
QSCALE = 28 ** -0.5 * math.log2(math.e)

def opt(name, default):
    for arg in sys.argv:
        if arg.startswith(f"--{name}="):
            return int(arg.split("=")[1])
    return default
TS = "--ts" in sys.argv
TSG = opt("tsg", 0)
MAP = opt("maph", 3)
ROT = opt("rot", 1)
FSH = opt("fsh", 7)
FLAGPOS = opt("flagpos", 16)
SLEEP = opt("sleep", 2)
LA = opt("la", 2)

def f32bits(x):
    return struct.unpack("<I", struct.pack("<f", x))[0]

class A:
    def __init__(self):
        self.l = []
    def __call__(self, s):
        for line in s.strip("\n").split("\n"):
            self.l.append("    " + line.strip())
    def lab(self, n):
        self.l.append(n + ":")
    def raw(self, s):
        self.l.append(s)
    def text(self):
        return "\n".join(self.l) + "\n"

def vr(b, n, k="v"):
    return f"{k}[{b}:{b+n-1}]"
def ar(b, n):
    return vr(b, n, "a")
def sr(b):
    return f"s[{b}:{b+3}]"

def srd(a, d, lo, hi, nbytes):
    a(f"s_mov_b32 s{d}, s{lo}")
    a(f"s_and_b32 s{d+1}, s{hi}, 0xffff")
    a(f"s_mov_b32 s{d+2}, {nbytes}")
    a(f"s_mov_b32 s{d+3}, 0x20000")

HI = "0xffffffff"
def set_exec(a, lo, hi):
    if lo == HI and hi == HI:
        a("s_mov_b64 exec, -1")
    elif hi == 0 and lo in (1, "0xf"):
        a(f"s_mov_b64 exec, {int(str(lo), 0)}")
    else:
        a(f"s_mov_b32 exec_lo, {lo}")
        a(f"s_mov_b32 exec_hi, {hi}")

class Stamps:
    def __init__(self, a):
        self.a = a; self.idx = {}; self.names = []
    def __call__(self, name, cyc=False, grp=0):
        if not TS: return
        if name != "start" and grp != TSG: return
        nm = name + ("(cyc)" if cyc else "")
        if nm not in self.idx:
            self.idx[nm] = len(self.names); self.names.append(nm)
        b = 66 + 2 * self.idx[nm]
        assert b + 1 < 102
        self.a(f"s_memtime s[{b}:{b+1}]" if cyc else f"s_memrealtime s[{b}:{b+1}]")
    def dump(self):
        if not TS: return
        a = self.a
        a("s_waitcnt lgkmcnt(0)")
        a(f"s_lshl_b32 s3, s2, 2")
        a(f"s_add_u32 s3, s3, s{sW}")
        a(f"s_lshl_b32 s3, s3, 7")
        a(f"s_add_u32 s3, s3, {TS_OFF}")
        a("s_mov_b64 exec, 1")
        a("v_mov_b32 v2, 0")
        for i in range(len(self.names)):
            a(f"v_mov_b32 v4, s{66+2*i}")
            a(f"buffer_store_dword v4, v2, {sr(WS)}, s3 offen offset:{4*i}")
            a("s_nop 1")
        a("s_waitcnt vmcnt(0)")
        open("stamps.txt", "w").write(",".join(self.names))

X, W, WO, OUT, DBG, WS, KVS = 16, 20, 24, 28, 32, 36, 40
sH, sB, sW, sT = 44, 45, 46, 47
sKC, sXB, sWB, sXM, sWM = 48, 49, 50, 51, 52
sA, sBb = 53, 54
sKV, sIT, sWQ, sWoS, sCNT = 55, 56, 57, 58, 59
sVM = 60
sT3, sCS4 = 62, 63
L_WKV, L_WQ, L_XR = 0, 57344, 86016
L_WO, L_CMB = 0, 114688
LDS_BYTES = 163840
vX = [2, 3, 4, 5]
vW0, vW1, vWq = 6, 7, 8
vXR = [9, 10, 11, 12]
vWR = [13, 14]
vQR = 176
A0, A1, AQ = 16, 32, 48
XF = 64
KV = 192
WF = 208
PK = 192
vZ, vOne, vGo = 177, 178, 179
vFl, vP1, vP2 = 180, 181, 182
vKo, vV0, vV1 = 183, 184, 185
vFl2 = 186
Q, S0, P = 64, 96, 128
S = [S0, S0 + 16]

def decode_hb(a):
    nhg = 16 >> MAP
    lg = int(math.log2(nhg))
    a(f"s_and_b32 s{sH}, s2, {nhg-1}")
    a(f"s_lshl_b32 s{sH}, s{sH}, {MAP}")
    a(f"s_lshr_b32 s3, s2, 3")
    a(f"s_and_b32 s{sB}, s3, {(1<<MAP)-1}")
    a(f"s_add_u32 s{sH}, s{sH}, s{sB}")
    a(f"s_lshr_b32 s3, s3, {MAP}")
    a(f"s_and_b32 s{sB}, s2, 7")
    a(f"s_lshr_b32 s{sB}, s{sB}, {lg}")
    a(f"s_mul_i32 s{sB}, s{sB}, {32>>MAP}")
    a(f"s_add_u32 s{sB}, s{sB}, s3")

def mfma(a, d, x, y, c):
    a(f"v_mfma_f32_32x32x16_bf16 {d}, {x}, {y}, {c}")

def poll(a, label, vaddr, lo, hi, srdn, off=0):
    a(f"s_mov_b32 s{sCNT}, 0x100000")
    set_exec(a, lo, hi)
    a(f"s_branch {label}_in")
    a.lab(label)
    if SLEEP: a(f"s_sleep {SLEEP}")
    a.lab(label + "_in")
    a(f"buffer_load_dword v15, v{vaddr}, {sr(srdn)}, 0 offen offset:{off} sc1")
    a(f"s_sub_u32 s{sCNT}, s{sCNT}, 1")
    a(f"s_cbranch_scc1 {label}_done")
    a("s_waitcnt vmcnt(0)")
    a(f"v_cmp_eq_u32 vcc, 0, v15")
    a(f"s_cbranch_vccnz {label}")
    a.lab(label + "_done")
    set_exec(a, HI, HI)

def kernel(a):
    name = NAME + "_kernel"
    a.raw(f".globl {name}")
    a.raw(".p2align 8")
    a.raw(f".type {name},@function")
    a.lab(name)
    ts = Stamps(a)
    ts("start")
    a("s_cmp_ge_u32 s2, 256")
    a("s_cbranch_scc1 L_end")
    a("s_load_dwordx8 s[4:11], s[0:1], 0")
    a("s_load_dwordx4 s[12:15], s[0:1], 32")
    decode_hb(a)
    a("v_lshrrev_b32 v1, 6, v0")
    a("v_and_b32 v0, 63, v0")
    a(f"v_readfirstlane_b32 s{sW}, v1")
    a("v_lshrrev_b32 v7, 3, v0")
    a("v_mul_u32_u24 v2, 896, v7")
    a("v_and_b32 v6, 7, v0")
    a("v_lshrrev_b32 v4, 4, v0")
    a("v_xor_b32 v3, v6, v4")
    a("v_lshl_add_u32 v2, v3, 4, v2")
    a("v_xor_b32 v3, 64, v2")
    a("v_add_u32 v3, 6144, v3")
    a("v_and_b32 v4, 1, v4")
    a("v_lshlrev_b32 v4, 2, v4")
    a("v_xor_b32 v6, v6, v4")
    a("v_mul_u32_u24 v7, 2688, v7")
    a(f"v_lshl_add_u32 v{vW0}, v6, 4, v7")
    a(f"v_add_u32 v{vW1}, {8*2688-1024}, v{vW0}")
    a("v_add_u32 v4, 12288, v2")
    a("v_add_u32 v5, 12288, v3")
    a(f"s_lshl_b32 s{sT}, s{sB}, 2")
    a(f"s_add_u32 s{sT}, s{sT}, s{sW}")
    a(f"s_mul_i32 s{sXB}, s{sT}, 28672")
    a(f"s_mul_i32 s3, s{sW}, 43008")
    a(f"s_lshl_b32 s{sWB}, s{sH}, 7")
    a(f"s_add_u32 s{sWB}, s{sWB}, s3")
    a(f"s_add_u32 s{sWB}, s{sWB}, 896")
    a(f"s_mul_i32 s{sWQ}, s{sH}, 56")
    a(f"s_and_b32 s{sWQ}, s{sWQ}, 0xfffffff0")
    a(f"s_add_u32 s{sWQ}, s{sWQ}, s3")
    a(f"s_lshl_b32 s{sXM}, s{sW}, 14")
    a(f"s_add_u32 s{sXM}, s{sXM}, {L_XR}")
    a(f"s_lshl_b32 s{sWM}, s{sW}, 11")
    if ROT:
        a(f"s_lshl_b32 s3, s{sB}, 1")
        a(f"s_add_u32 s3, s3, s{sH}")
        a(f"s_mul_i32 s{sA}, s3, 37")
        a(f"s_lshr_b32 s{sA}, s{sA}, 8")
        a(f"s_mul_i32 s{sA}, s{sA}, 7")
        a(f"s_sub_u32 s{sKC}, s3, s{sA}")
    else:
        a(f"s_mov_b32 s{sKC}, 0")
    a("s_waitcnt lgkmcnt(0)")
    ts("karg", grp=1)
    srd(a, X, 4, 5, X_BYTES)
    srd(a, W, 6, 7, W_BYTES)
    a(f"s_cmp_lt_u32 s{sH}, 14")
    a(f"s_cselect_b32 s{W+2}, {W_BYTES}, 0")
    srd(a, WS, 14, 15, WS_BYTES)
    a("s_cmp_lg_u32 s2, 0")
    a("s_cbranch_scc1 L_noclear")
    a("v_lshrrev_b32 v9, 2, v0")
    a(f"v_lshlrev_b32 v9, {FSH}, v9")
    a("v_and_b32 v10, 3, v0")
    a("v_lshl_add_u32 v9, v10, 4, v9")
    a(f"s_lshl_b32 s3, s{sW}, {FSH+5}")
    a(f"s_add_u32 s3, s3, {FL_OFF}")
    a(f"s_add_u32 s{sA}, s3, {16 << FSH}")
    for r in range(4):
        a(f"v_mov_b32 v{16+r}, 0")
    a(f"buffer_store_dwordx4 v[16:19], v9, {sr(WS)}, s3 offen sc1")
    a(f"buffer_store_dwordx4 v[16:19], v9, {sr(WS)}, s{sA} offen sc1")
    a.lab("L_noclear")
    def adv_kc():
        a(f"s_add_u32 s{sKC}, s{sKC}, 1")
        a(f"s_cmp_eq_u32 s{sKC}, 7")
        a(f"s_cselect_b32 s{sKC}, 0, s{sKC}")
    def issue_ops(c):
        def w0():
            a(f"s_mul_i32 s{sBb}, s{sKC}, 172032")
            a(f"s_add_u32 m0, s{sWM}, {L_WKV + c*8192}")
            a(f"s_add_u32 s{sBb}, s{sBb}, s{sWB}")
            a(f"buffer_load_dwordx4 v{vW0}, {sr(W)}, s{sBb} offen lds")
        def w1():
            a(f"buffer_load_dwordx4 v{vW1}, {sr(W)}, s{sBb} offen offset:1024 lds")
        def xq(q):
            def f():
                if q == 0:
                    a(f"s_lshl_b32 s{sA}, s{sKC}, 7")
                    a(f"s_add_u32 m0, s{sXM}, {(c%4)*4096}")
                    a(f"s_add_u32 s{sA}, s{sA}, s{sXB}")
                a(f"buffer_load_dwordx4 v{vX[q]}, {sr(X)}, s{sA} offen offset:{1024*q} lds")
                if q == 3: adv_kc()
            return f
        return [w0, w1, xq(0), xq(1), xq(2), xq(3)]
    def issue_q(c):
        def f():
            if c == 0: a(f"s_mov_b32 s{W+2}, {W_BYTES}")
            a(f"s_mul_i32 s{sBb}, s{sKC}, 172032")
            a(f"s_lshr_b32 s{sA}, s{sWM}, 1")
            a(f"s_add_u32 m0, s{sA}, {L_WQ + c*4096}")
            a(f"s_add_u32 s{sBb}, s{sBb}, s{sWQ}")
            a(f"buffer_load_dwordx4 v{vWq}, {sr(W)}, s{sBb} offen lds")
            adv_kc()
        return f
    for c in range(LA):
        for f in issue_ops(c): f()
    ts("iss01", grp=1)
    srd(a, WO, 8, 9, WO_BYTES)
    srd(a, OUT, 10, 11, OUT_BYTES)
    srd(a, DBG, 12, 13, 256)
    srd(a, KVS, 14, 15, KV_BYTES)
    a(f"s_mov_b32 s{sVM}, 0x0fffffff")
    a(f"s_mov_b32 s{sVM+1}, 0x0fffffff")
    a("v_lshlrev_b32 v1, 4, v0")
    a("v_and_b32 v15, 3, v0")
    a(f"v_lshrrev_b32 v{vWq}, 2, v0")
    a(f"v_mul_u32_u24 v{vWq}, 2688, v{vWq}")
    a(f"v_lshl_add_u32 v{vWq}, v15, 4, v{vWq}")
    a("v_and_b32 v9, 31, v0")
    a(f"v_lshlrev_b32 v{vV0}, 4, v9")
    a("v_lshlrev_b32 v9, 7, v9")
    a("v_bfe_u32 v10, v0, 1, 3")
    a("v_lshrrev_b32 v11, 5, v0")
    a(f"v_mul_u32_u24 v{vV1}, 7168, v11")
    a(f"v_add_u32 v{vV0}, v{vV0}, v{vV1}")
    a("v_xor_b32 v10, v10, v11")
    a("v_lshl_add_u32 v9, v10, 4, v9")
    a(f"v_add_u32 v9, s{sXM}, v9")
    a("v_xor_b32 v10, 32, v9")
    a("v_xor_b32 v12, 96, v9")
    a("v_bfe_u32 v16, v0, 2, 2")
    a("v_lshl_add_u32 v17, v11, 3, v16")
    a("v_xor_b32 v11, 64, v9")
    a("v_bfe_u32 v18, v0, 4, 1")
    a("v_lshlrev_b32 v18, 5, v18")
    a("v_lshrrev_b32 v19, 1, v15")
    a("v_and_b32 v20, 1, v15")
    a("v_lshl_add_u32 v19, v20, 1, v19")
    a("v_lshl_add_u32 v19, v19, 3, v18")
    a("v_lshl_add_u32 v20, v15, 3, v18")
    a(f"v_lshl_add_u32 v{vQR}, v17, 6, v19")
    a(f"v_add_u32 v{vQR}, {L_WQ}, v{vQR}")
    a(f"s_cmp_lt_u32 s{sH}, 7")
    a("s_cselect_b64 vcc, -1, 0")
    a("v_cndmask_b32 v19, v20, v19, vcc")
    a("v_lshrrev_b32 v16, 1, v16")
    a("v_lshl_add_u32 v19, v16, 6, v19")
    a(f"v_lshl_add_u32 v{vWR[0]}, v17, 7, v19")
    a(f"v_xor_b32 v{vWR[1]}, 64, v{vWR[0]}")
    a(f"v_mov_b32 v{vZ}, 0")
    a(f"v_mov_b32 v{vOne}, 1")
    a(f"s_lshl_b32 s3, s{sH}, 2")
    a(f"s_add_u32 s{sA}, s3, s{sW}")
    a(f"s_lshl_b32 s{sA}, s{sA}, {FSH}")
    a(f"s_lshl_b32 s{sBb}, s{sB}, 2")
    a(f"s_add_u32 s{sA}, s{sA}, s{sBb}")
    a(f"s_add_u32 s{sA}, s{sA}, {FL_OFF}")
    a(f"v_mov_b32 v{vFl}, s{sA}")
    a(f"s_lshl_b32 s{sA}, s{sT}, {FSH}")
    a(f"s_add_u32 s{sA}, s{sA}, s3")
    a(f"s_add_u32 s{sA}, s{sA}, {FL_OFF + (64 << FSH)}")
    a(f"v_mov_b32 v{vFl2}, s{sA}")
    a(f"s_mul_i32 s4, s{sH}, 56")
    a("s_and_b32 s5, s4, 0xfffffff0")
    a("v_mov_b32 v16, s5")
    a("s_add_u32 s5, s5, 62")
    set_exec(a, "0xffff0000", 0)
    a("v_mov_b32 v16, s5")
    a("s_add_u32 s5, s4, 896")
    set_exec(a, 0, "0xffff")
    a("v_mov_b32 v16, s5")
    a("s_add_u32 s5, s4, 950")
    set_exec(a, 0, "0xffff0000")
    a("v_mov_b32 v16, s5")
    set_exec(a, HI, HI)
    a("v_lshrrev_b32 v16, 7, v16")
    a(f"v_lshlrev_b32 v16, {FSH+2}, v16")
    a("v_and_b32 v17, 15, v0")
    a("v_lshl_add_u32 v16, v17, 2, v16")
    a(f"s_lshl_b32 s3, s{sW}, {FSH}")
    a(f"s_add_u32 s3, s3, {FL_OFF}")
    a(f"v_add_u32 v{vP1}, s3, v16")
    a(f"s_and_b32 s3, s{sH}, 3")
    a(f"s_add_u32 s3, s3, s{sBb}")
    a(f"s_lshl_b32 s3, s3, {FSH}")
    a(f"s_lshl_b32 s{sA}, s{sW}, 4")
    a(f"s_add_u32 s3, s3, s{sA}")
    a(f"s_add_u32 s3, s3, {FL_OFF + (64 << FSH)}")
    a(f"v_lshl_add_u32 v{vP2}, v0, 2, s3")
    for r in range(64):
        a(f"v_accvgpr_write_b32 a{r}, 0")
    def goload():
        a(f"buffer_load_dword v{vGo}, v{vZ}, {sr(DBG)}, 0 offen sc1")
    def rd(c, i):
        a(f"ds_read_b128 {vr(XF+16*c+4*i,4)}, v{vXR[i]} offset:{(c%4)*4096}")
        for p in range(2):
            for r in range(2):
                a(f"ds_read_b64_tr_b16 {vr(WF+8*i+4*p+2*r,2)}, v{vWR[p]} offset:{L_WKV + (c*4+i)*2048 + r*512}")
    def phase1a(kind):
        def mm(c, i):
            x = vr(XF+16*c+4*i, 4)
            first = (c == 0 and i == 0)
            for p, acc in ((0, A0), (1, A1)):
                w = vr(WF+8*i+4*p, 4)
                if kind == "K": mfma(a, vr(acc,16), w, x, "0" if first else vr(acc,16))
                else: mfma(a, vr(acc,16), x, w, "0" if first else vr(acc,16))
        qops = [issue_q(k) for k in range(7)] + [goload]
        allops = [issue_ops(c) for c in range(LA, 7)] + [qops[:4], qops[4:]] + [[]] * 3
        issued = 6 * LA
        for c in range(7):
            ops = list(allops[c])
            nops = len(ops)
            def op():
                if ops: ops.pop(0)()
            ts(f"pre{c}", grp=1)
            a(f"s_waitcnt vmcnt({issued - 6*(c+1)})")
            ts(f"w{c}", grp=1)
            a("s_barrier")
            if c == 0: ts("c0")
            rd(c, 0); rd(c, 1)
            if c == 0 and kind == "K":
                a(f"s_add_u32 s3, s2, s{sW}")
                a("s_cmp_lg_u32 s3, 0")
                a("s_cbranch_scc1 L_nogo")
                set_exec(a, 1, 0)
                a(f"buffer_store_dword v{vOne}, v{vZ}, {sr(DBG)}, 0 offen sc1")
                set_exec(a, HI, HI)
                a.lab("L_nogo")
            if c > 0: mm(c-1, 2)
            rd(c, 2)
            op()
            if c > 0: mm(c-1, 3)
            op()
            a("s_waitcnt lgkmcnt(10)")
            rd(c, 3)
            mm(c, 0)
            op(); op()
            a("s_waitcnt lgkmcnt(10)")
            mm(c, 1)
            op(); op()
            a("s_waitcnt lgkmcnt(0)")
            issued += nops
        mm(6, 2); mm(6, 3)
        ts("kv_mm"); ts("kv_mm", grp=1)
        a(f"s_lshl_b32 s{sKV}, s{sT}, 16")
        if kind == "K":
            a(f"s_lshl_b32 s3, s{sH}, 12")
            a(f"s_add_u32 s3, s3, s{sKV}")
            a("s_nop 7")
        else:
            a(f"s_lshl_b32 s3, s{sH}, 10")
            a(f"s_add_u32 s3, s3, s{sKV}")
            a(f"s_add_u32 s3, s3, {V_BASE - 7*1024}")
            a(f"s_add_u32 s{sA}, s3, 14336")
            a(f"s_cmp_lt_u32 s{sH}, 14")
            a(f"s_cselect_b32 s{KVS+2}, {KV_BYTES}, 0")
            a("s_nop 3")
        for p, acc in ((0, A0), (1, A1)):
            for f in range(2):
                for i in range(4):
                    a(f"v_cvt_pk_bf16_f32 v{PK+8*p+4*f+i}, v{acc+8*f+2*i}, v{acc+8*f+2*i+1}")
                d = vr(PK+8*p+4*f, 4)
                if kind == "K":
                    a(f"buffer_store_dwordx4 {d}, v1, {sr(KVS)}, s3 offen offset:{2048*p+1024*f} sc1")
                else:
                    a(f"buffer_store_dwordx4 {d}, v{vV0}, {sr(KVS)}, {'s3' if f == 0 else 's%d' % sA} offen offset:{512*p} sc1")
    a(f"s_cmp_lt_u32 s{sH}, 7")
    a("s_cbranch_scc0 L_vline")
    phase1a("K")
    a("s_branch L_q")
    a.lab("L_vline")
    phase1a("V")
    a.lab("L_q")
    ts("kv_st")
    a("s_waitcnt vmcnt(4)")
    a("s_barrier")
    def rdq(s):
        for r in range(2):
            a(f"ds_read_b64_tr_b16 {vr(WF+4*(s%8)+2*r,2)}, v{vQR} offset:{s*1024 + r*256}")
    for s in range(6): rdq(s)
    a(f"s_mov_b32 s{KVS+2}, {KV_BYTES}")
    a(f"s_mul_i32 s4, s{sH}, 56")
    a("s_lshr_b32 s5, s4, 4")
    a("s_lshl_b32 s5, s5, 9")
    a(f"v_add_u32 v{vKo}, s5, v1")
    a("s_lshl_b32 s5, s4, 3")
    a(f"s_add_u32 s5, s5, {V_BASE}")
    a(f"v_add_u32 v{vV0}, s5, v{vV0}")
    a(f"v_add_u32 v{vV1}, 14336, v{vV0}")
    for s in range(28):
        if s + 6 < 28:
            rdq(s + 6)
            a("s_waitcnt lgkmcnt(12)")
        else:
            a(f"s_waitcnt lgkmcnt({2*(27-s)})")
        mfma(a, vr(AQ,16), vr(WF+4*(s%8),4), vr(XF+4*s,4), "0" if s == 0 else vr(AQ,16))
        if s + 1 == FLAGPOS:
            a(f"v_readfirstlane_b32 s3, v{vGo}")
            a("s_waitcnt vmcnt(0)")
            a("s_cmp_lg_u32 s3, 0")
            a("s_cbranch_scc1 L_go_ok")
            poll(a, "L_pollgo", vZ, 1, 0, DBG)
            a.lab("L_go_ok")
            set_exec(a, 1, 0)
            a(f"buffer_store_dword v{vOne}, v{vFl}, {sr(WS)}, 0 offen sc1")
            set_exec(a, HI, HI)
            ts("kv_flag")
    a("v_mov_b32 v15, 0")
    set_exec(a, "0x10000000", "0x10000000")
    a("v_mov_b32 v15, 0x3f803f80")
    set_exec(a, HI, HI)
    for sl in range(4):
        for r in range(8):
            a(f"v_mov_b32 v{KV+16*sl+8+r}, v15")
    ts("q_mm")
    def ldk(slot):
        for f in range(2):
            a(f"buffer_load_dwordx4 {vr(KV+16*slot+4*f,4)}, v{vKo}, {sr(KVS)}, s{sKV} offen offset:{1024*f} sc1")
    def ldv(slot):
        a(f"s_mov_b64 exec, s[{sVM}:{sVM+1}]")
        a(f"buffer_load_dwordx4 {vr(KV+16*slot+8,4)}, v{vV0}, {sr(KVS)}, s{sKV} offen sc1")
        a(f"buffer_load_dwordx4 {vr(KV+16*slot+12,4)}, v{vV1}, {sr(KVS)}, s{sKV} offen sc1")
        a("s_mov_b64 exec, -1")
    def advkv1(): a(f"s_add_u32 s{sKV}, s{sKV}, 0x40000")
    def advkv2(): a(f"s_and_b32 s{sKV}, s{sKV}, 0x3fffff")
    a(f"s_mov_b32 s3, {f32bits(QSCALE):#x}")
    a(f"s_lshl_b32 s{sA}, s{sW}, 11")
    a(f"s_add_u32 s{sA}, s{sA}, {L_CMB}")
    a(f"v_add_u32 v6, s{sA}, v1")
    for r in range(16):
        a(f"v_mul_f32 v{AQ+r}, s3, v{AQ+r}")
    Q3 = Q + 24
    for i in range(8):
        a(f"v_cvt_pk_bf16_f32 v{Q3+i}, v{AQ+2*i}, v{AQ+2*i+1}")
    a(f"s_bitcmp1_b32 s{sH}, 0")
    a("s_cselect_b32 exec_lo, -1, 0")
    a("s_mov_b32 exec_hi, 0")
    a(f"v_mov_b32 v{Q3}, 0")
    a(f"v_mov_b32 v{Q3+1}, 0")
    a("s_cselect_b32 exec_hi, 0, -1")
    a("s_mov_b32 exec_lo, 0")
    a(f"v_mov_b32 v{Q3+6}, 0")
    a(f"v_mov_b32 v{Q3+7}, 0")
    set_exec(a, HI, HI)
    a(f"ds_write_b128 v6, {vr(Q3,4)}")
    a(f"ds_write_b128 v6, {vr(Q3+4,4)} offset:1024")
    for i in range(3):
        a(f"s_add_u32 s{sA}, s{sW}, {1+i}")
        a(f"s_and_b32 s{sA}, s{sA}, 3")
        a(f"s_lshl_b32 s{sA}, s{sA}, 11")
        a(f"s_add_u32 s{sA}, s{sA}, {L_CMB}")
        a(f"v_add_u32 v{7+i}, s{sA}, v1")
    a("s_waitcnt lgkmcnt(0)")
    a("s_barrier")
    for i in range(3):
        a(f"ds_read_b128 {vr(Q+8*i,4)}, v{7+i}")
        a(f"ds_read_b128 {vr(Q+8*i+4,4)}, v{7+i} offset:1024")
    a("v_lshrrev_b32 v10, 4, v0")
    a("v_mul_u32_u24 v6, 896, v10")
    a("v_lshlrev_b32 v10, 2, v10")
    a("v_and_b32 v11, 15, v0")
    a("v_xor_b32 v10, v10, v11")
    a("v_lshl_add_u32 v6, v10, 4, v6")
    a(f"s_lshr_b32 s{sCS4}, s{sH}, 2")
    a(f"s_and_b32 s{sT3}, s{sH}, 3")
    a(f"s_lshl_b32 s3, s{sB}, 2")
    a(f"s_add_u32 s{sT3}, s{sT3}, s3")
    def wo_m0(): a(f"s_add_u32 m0, m0, 1024")
    def wo_s(): a(f"s_add_u32 s{sWoS}, s{sWoS}, 3584")
    def wo_ld(): a(f"buffer_load_dwordx4 v6, {sr(WO)}, s{sWoS} offen lds")
    a(f"s_mul_i32 s{sWoS}, s{sCS4}, 224")
    a(f"s_and_b32 s{sWoS}, s{sWoS}, 0xffffffc0")
    a(f"s_mul_i32 s{sA}, s{sW}, 28")
    a(f"s_min_u32 s{sA}, s{sA}, 82")
    a(f"s_mul_i32 s3, s{sA}, 3584")
    a(f"s_add_u32 s{sWoS}, s{sWoS}, s3")
    a(f"s_lshl_b32 s3, s{sA}, 10")
    a(f"s_add_u32 m0, s3, {L_WO}")
    for r in range(4):
        a(f"v_mov_b32 v{P+4+r}, 0")
    a(f"s_mov_b32 s{sIT}, 13")
    for i in range(3):
        a(f"s_add_u32 s3, s{sW}, {1+i}")
        a("s_and_b32 s3, s3, 3")
        a("s_mul_i32 s3, s3, 12288")
        a(f"s_add_u32 s3, s3, {L_CMB + 4096*i}")
        a(f"v_add_u32 v{7+i}, s3, v1")
    a(f"s_mul_i32 s3, s{sW}, 12288")
    a(f"s_add_u32 s3, s3, {L_CMB}")
    a("v_add_u32 v10, s3, v1")
    ts("q_done")
    poll(a, "L_poll1", vP1, HI, HI, WS)
    ts("poll1")
    for sl in range(3):
        ldk(sl); ldv(sl); advkv1(); advkv2()
    a("s_waitcnt vmcnt(8) lgkmcnt(0)")
    ts("kv0")
    def mS(part, t):
        slot = (t // 4) % 4; qt = t % 4
        d = vr(S[t % 2], 16)
        mfma(a, d, vr(KV+16*slot+4*part,4), vr(Q+8*qt+4*part,4), "0" if part == 0 else d)
    def mPV(part, t):
        slot = (t // 4) % 4; qt = t % 4
        d = ar(16*qt, 16)
        mfma(a, d, vr(KV+16*slot+8+4*part,4), vr(P+4*part,4), d)
    def EC(t, g):
        s = S[t % 2] + 4*g
        for r in range(4):
            a(f"v_exp_f32 v{s+r}, v{s+r}")
        a(f"v_cvt_pk_bf16_f32 v{P+2*g}, v{s}, v{s+1}")
        a(f"v_cvt_pk_bf16_f32 v{P+2*g+1}, v{s+2}, v{s+3}")
    mS(0, 0); mS(1, 0)
    ts("att0", cyc=True)
    a("s_nop 7")
    a("s_nop 3")
    a.raw(".p2align 6")
    a.lab("L_loop")
    def step(t, last=False):
        j = t // 4; st = t % 4
        f = [None] * 4
        if not last:
            if st == 0:
                f[2] = advkv1; f[3] = advkv2
            if st == 1:
                f[1] = wo_m0; f[2] = wo_s
                f[3] = lambda: a(f"s_sub_u32 s{sIT}, s{sIT}, 1")
            if st == 2:
                f[1] = wo_m0; f[2] = wo_s
                f[3] = lambda: a(f"s_waitcnt vmcnt(10)")
            if st == 3:
                f[0] = lambda: a(f"s_cmp_gt_i32 s{sIT}, 0")
                f[1] = lambda: a(f"s_cselect_b32 s{KVS+2}, {KV_BYTES}, 0")
                if j == 2:
                    f[3] = lambda: a(f"s_cmp_eq_i32 s{sIT}, -2")
        else:
            def wr(i, g):
                return lambda: a(f"ds_write_b128 v{7+i}, {ar(16*i+4*g,4)} offset:{1024*g}")
            if st >= 1:
                f[3] = wr(st-1, 0)
            if st >= 2:
                f[0] = wr(st-2, 1); f[1] = wr(st-2, 2); f[2] = wr(st-2, 3)
        if not (last and st == 3):
            mS(0, t+1)
        if st == 0 and not last:
            ldk((j + 3) % 4)
        if not last and st in (1, 2):
            wo_ld()
        if f[0]: f[0]()
        EC(t, 0)
        mPV(1, (t - 1) % 16)
        if st == 0 and not last:
            ldv((j + 3) % 4)
        if f[1]: f[1]()
        EC(t, 1)
        if not (last and st == 3):
            mS(1, t+1)
        if f[2]: f[2]()
        EC(t, 2)
        mPV(0, t)
        if f[3]: f[3]()
        EC(t, 3)
    for t in range(12): step(t)
    a("s_cbranch_scc1 L_last")
    for t in range(12, 16): step(t)
    a("s_branch L_loop")
    a.lab("L_last")
    for t in range(12, 16): step(t, last=True)
    a(f"ds_write_b128 v9, {ar(32+4,4)} offset:1024")
    a(f"ds_write_b128 v9, {ar(32+8,4)} offset:2048")
    mPV(1, 15)
    a(f"ds_write_b128 v9, {ar(32+12,4)} offset:3072")
    ts("att1", cyc=True)
    ts("att1")
    a(f"s_mov_b32 s4, {f32bits(2.0**62):#x}")
    a(f"s_mov_b32 s5, {f32bits(2.0**-62):#x}")
    a("s_waitcnt vmcnt(0) lgkmcnt(0)")
    a("s_barrier")
    R = 16
    F = S0
    for i in range(3):
        for g in range(4):
            a(f"ds_read_b128 {vr(R+16*i+4*g,4)}, v10 offset:{4096*i+1024*g}")
    for r in range(16):
        a(f"v_accvgpr_read_b32 v{F+r}, a{48+r}")
    a(f"s_lshl_b32 s3, s{sT}, 4")
    a(f"s_add_u32 s3, s3, s{sH}")
    a("s_lshl_b32 s3, s3, 11")
    a(f"s_add_u32 s3, s3, {O_OFF}")
    for i in range(3):
        a(f"s_waitcnt lgkmcnt({8-4*i})")
        for r in range(16):
            a(f"v_add_f32 v{F+r}, v{F+r}, v{R+16*i+r}")
    a(f"v_cmp_nge_f32 s[6:7], s4, v{F+12}")
    a(f"v_cmp_nle_f32 vcc, s5, v{F+12}")
    a("s_or_b64 s[6:7], s[6:7], vcc")
    a("s_cmp_lg_u32 s7, 0")
    a("s_cbranch_scc1 L_fallback")
    a.lab("L_norm")
    a(f"v_mov_b32 v10, v{F+12}")
    a(f"v_mov_b32 v11, v{F+12}")
    a("s_nop 1")
    a("v_permlane32_swap_b32 v10, v11")
    a("s_nop 1")
    a("v_rcp_f32 v11, v11")
    set_exec(a, 0, HI)
    a(f"v_mov_b32 v{F+12}, 0")
    set_exec(a, HI, HI)
    for r in range(16):
        a(f"v_mul_f32 v{F+r}, v{F+r}, v11")
    for i in range(8):
        a(f"v_cvt_pk_bf16_f32 v{P+i}, v{F+2*i}, v{F+2*i+1}")
    a(f"buffer_store_dwordx4 {vr(P,4)}, v1, {sr(WS)}, s3 offen sc1")
    a(f"buffer_store_dwordx4 {vr(P+4,4)}, v1, {sr(WS)}, s3 offen offset:1024 sc1")
    ts("o_st")
    a(f"s_and_b32 s3, s{sCS4}, 1")
    a("s_lshl_b32 s3, s3, 5")
    a(f"s_mul_i32 s{sA}, s{sW}, 56")
    a(f"s_add_u32 s3, s3, s{sA}")
    a("v_bfe_u32 v7, v0, 4, 1")
    a("v_lshlrev_b32 v7, 5, v7")
    a("v_and_b32 v8, 3, v0")
    a("v_lshl_add_u32 v7, v8, 3, v7")
    a("v_add_u32 v7, s3, v7")
    a("v_and_b32 v7, 255, v7")
    a("v_bfe_u32 v8, v0, 2, 2")
    a("v_lshlrev_b32 v9, 6, v8")
    a("v_xor_b32 v7, v7, v9")
    a("v_lshl_add_u32 v9, v8, 8, v7")
    a("v_lshrrev_b32 v8, 5, v0")
    a("v_lshl_add_u32 v7, v8, 10, v9")
    a("v_add_u32 v8, 0x10000, v7")
    a("v_add_u32 v9, 0x10000, v9")
    def rdwo(hh):
        for u in range(2):
            for r in range(2):
                off = L_WO + (28*hh + 16*u + 8*r) * 256
                base = 7
                if off >= 0x10000:
                    off -= 0x10000; base = 8
                if hh == 15 and u == 1 and r == 1:
                    base = 9
                a(f"ds_read_b64_tr_b16 {ar(8*hh+4*u+2*r,2)}, v{base} offset:{off}")
    for hh in range(8): rdwo(hh)
    a("s_waitcnt vmcnt(0)")
    set_exec(a, 1, 0)
    a(f"buffer_store_dword v{vOne}, v{vFl2}, {sr(WS)}, 0 offen sc1")
    set_exec(a, HI, HI)
    ts("o_flag")
    for hh in range(8, 16): rdwo(hh)
    a(f"s_lshl_b32 s3, s{sT3}, 2")
    a(f"s_add_u32 s3, s3, s{sW}")
    a("s_lshl_b32 s3, s3, 13")
    a(f"s_add_u32 s3, s3, {O_OFF}")
    a(f"s_add_u32 s{sA}, s3, 4096")
    a(f"s_lshl_b32 s{sBb}, s{sW}, 13")
    a(f"s_add_u32 s{sBb}, s{sBb}, {L_CMB}")
    a(f"v_add_u32 v10, s{sBb}, v1")
    a(f"v_add_u32 v11, {L_CMB}, v1")
    a("v_and_b32 v12, 31, v0")
    a("v_mul_u32_u24 v12, 896, v12")
    a("v_lshrrev_b32 v13, 5, v0")
    a("v_lshl_add_u32 v12, v13, 4, v12")
    a(f"s_mul_i32 s{sKV}, s{sT3}, 28672")
    a(f"s_lshl_b32 s{sBb}, s{sCS4}, 2")
    a(f"s_add_u32 s{sBb}, s{sBb}, s{sW}")
    a(f"s_mul_i32 s{sBb}, s{sBb}, 56")
    a(f"s_add_u32 s{sKV}, s{sKV}, s{sBb}")
    a("s_barrier")
    poll(a, "L_poll2", vP2, "0xf", 0, WS)
    ts("poll2")
    OF = 48
    for f in range(8):
        a(f"buffer_load_dwordx4 {vr(OF+4*f,4)}, v1, {sr(WS)}, {'s3' if f < 4 else 's%d' % sA} offen offset:{1024*(f%4)} sc1")
    for f in range(8):
        a(f"s_waitcnt vmcnt({7-f})")
        a(f"ds_write_b128 v10, {vr(OF+4*f,4)} offset:{1024*f}")
    a("s_waitcnt lgkmcnt(0)")
    a("s_barrier")
    ts("o_ld")
    ACC = 16
    for f in range(12):
        a(f"ds_read_b128 {vr(OF+4*f,4)}, v11 offset:{1024*f}")
    for f in range(32):
        if f + 12 < 32:
            a(f"ds_read_b128 {vr(OF+4*(f+12),4)}, v11 offset:{1024*(f+12)}")
            a("s_waitcnt lgkmcnt(12)")
        else:
            a(f"s_waitcnt lgkmcnt({31-f})")
        mfma(a, vr(ACC,16), ar(4*f,4), vr(OF+4*f,4), "0" if f == 0 else vr(ACC,16))
    a("s_nop 7")
    a("s_nop 3")
    D = 32
    for i in range(8):
        a(f"v_cvt_pk_bf16_f32 v{D+i}, v{ACC+2*i}, v{ACC+2*i+1}")
    a(f"v_permlane32_swap_b32 v{D}, v{D+2}")
    a(f"v_permlane32_swap_b32 v{D+1}, v{D+3}")
    a(f"v_permlane32_swap_b32 v{D+4}, v{D+6}")
    a(f"v_permlane32_swap_b32 v{D+5}, v{D+7}")
    a(f"buffer_store_dwordx4 {vr(D,4)}, v12, {sr(OUT)}, s{sKV} offen")
    set_exec(a, HI, 0)
    a(f"buffer_store_dwordx4 {vr(D+4,4)}, v12, {sr(OUT)}, s{sKV} offen offset:32")
    set_exec(a, 0, HI)
    a(f"buffer_store_dwordx2 {vr(D+4,2)}, v12, {sr(OUT)}, s{sKV} offen offset:32")
    ts("out_st")
    if TS:
        a("s_waitcnt vmcnt(0)")
        ts("end")
    ts.dump()
    a.lab("L_end")
    a("s_endpgm")
    a.lab("L_fallback")
    a(f"s_lshl_b32 s6, s{sW}, {FSH}")
    a(f"v_subrev_u32 v12, s6, v{vP1}")
    for w in range(4):
        poll(a, f"L_pollfb{w}", 12, HI, HI, WS, off=w << FSH)
    a(f"s_mov_b32 s{KVS+2}, {KV_BYTES}")
    a("v_mov_b32 v12, 0xff800000")
    a(f"s_mov_b32 s{sKV}, 0")
    SS = S0 + 16
    a.lab("L_fb1")
    ldk(0)
    a(f"s_add_u32 s{sKV}, s{sKV}, 0x10000")
    a("s_waitcnt vmcnt(0)")
    mfma(a, vr(SS,16), vr(KV,4), vr(Q3,4), "0")
    mfma(a, vr(SS,16), vr(KV+4,4), vr(Q3+4,4), vr(SS,16))
    a("s_nop 15")
    for r in range(0, 16, 2):
        a(f"v_max3_f32 v12, v12, v{SS+r}, v{SS+r+1}")
    a(f"s_cmp_lt_u32 s{sKV}, {KV_BYTES}")
    a("s_cbranch_scc1 L_fb1")
    a("v_mov_b32 v13, v12")
    a("s_nop 1")
    a("v_permlane32_swap_b32 v12, v13")
    a("s_nop 1")
    a("v_max_f32 v12, v12, v13")
    for r in range(16):
        a(f"v_mov_b32 v{F+r}, 0")
    a("v_mov_b32 v15, 0")
    set_exec(a, "0x10000000", "0x10000000")
    a("v_mov_b32 v15, 0x3f803f80")
    set_exec(a, HI, HI)
    for r in range(8):
        a(f"v_mov_b32 v{KV+8+r}, v15")
    a(f"s_mov_b32 s{sKV}, 0")
    a.lab("L_fb2")
    ldk(0); ldv(0)
    a(f"s_add_u32 s{sKV}, s{sKV}, 0x10000")
    a("s_waitcnt vmcnt(0)")
    mfma(a, vr(SS,16), vr(KV,4), vr(Q3,4), "0")
    mfma(a, vr(SS,16), vr(KV+4,4), vr(Q3+4,4), vr(SS,16))
    a("s_nop 15")
    for r in range(16):
        a(f"v_sub_f32 v{SS+r}, v{SS+r}, v12")
    for r in range(16):
        a(f"v_exp_f32 v{SS+r}, v{SS+r}")
    a("s_nop 0")
    for i in range(8):
        a(f"v_cvt_pk_bf16_f32 v{P+i}, v{SS+2*i}, v{SS+2*i+1}")
    a("s_nop 1")
    mfma(a, vr(F,16), vr(KV+8,4), vr(P,4), vr(F,16))
    mfma(a, vr(F,16), vr(KV+12,4), vr(P+4,4), vr(F,16))
    a(f"s_cmp_lt_u32 s{sKV}, {KV_BYTES}")
    a("s_cbranch_scc1 L_fb2")
    a("s_nop 15")
    a("s_branch L_norm")
    return name

def main():
    a = A()
    name = kernel(a)
    head = open(f"cdna_kernels/{NAME}.s.ref").read().split("; Override")[0]
    out = head
    out += f"; @launch grid=(256,1,1) block=(256,1,1) lds={LDS_BYTES}\n"
    out += '.amdgcn_target "amdgcn-amd-amdhsa--gfx950"\n.text\n'
    out += a.text()
    out += f""".section .rodata,"a"
.p2align 6
.amdhsa_kernel {name}
  .amdhsa_next_free_vgpr 384
  .amdhsa_next_free_sgpr 102
  .amdhsa_accum_offset 256
  .amdhsa_group_segment_fixed_size 0
  .amdhsa_kernarg_size 48
  .amdhsa_user_sgpr_count 2
  .amdhsa_user_sgpr_kernarg_segment_ptr 1
  .amdhsa_system_sgpr_workgroup_id_x 1
.end_amdhsa_kernel
"""
    o = [x for x in sys.argv[1:] if not x.startswith("--")]
    path = o[0] if o else f"cdna_kernels/{NAME}.s"
    open(path, "w").write(out)
main()
```

```python
import sys, struct, math

NAME = "standalone__softmax_full_mha__prompt"
FL_OFF = 5 << 20
O_OFF = 6 << 20
TS_OFF = 8 << 20
WS_BYTES = 268435456
X_BYTES = 2048 * 448 * 2
W_BYTES = 448 * 1344 * 2
WO_BYTES = 448 * 448 * 2
OUT_BYTES = 2048 * 448 * 2
KV_BYTES = 4 << 20
V_BASE = 28672
V_LINE = 1152
V_PLANE = 7 * V_LINE
QSCALE = 28 ** -0.5 * math.log2(math.e)

def opt(name, default):
    for arg in sys.argv:
        if arg.startswith(f"--{name}="):
            return int(arg.split("=")[1])
    return default
TS = "--ts" in sys.argv
TSG = opt("tsg", 0)
MAP = opt("maph", 3)
FSH = opt("fsh", 8)
FLAGPOS = opt("flagpos", 20)
NQ = [int(c) for c in "%08d" % opt("nq", 700)]
assert sum(NQ) == 7
SLEEP = opt("sleep", 1)
LA = opt("la", 2)
PF = opt("pf", 0)
ROT = opt("rot", 1)
PREPOLL = opt("prepoll", 1)

def f32bits(x):
    return struct.unpack("<I", struct.pack("<f", x))[0]

class A:
    def __init__(self):
        self.l = []
    def __call__(self, s):
        for line in s.strip("\n").split("\n"):
            self.l.append("    " + line.strip())
    def lab(self, n):
        self.l.append(n + ":")
    def raw(self, s):
        self.l.append(s)
    def text(self):
        return "\n".join(self.l) + "\n"

def vr(b, n, k="v"):
    return f"{k}[{b}:{b+n-1}]"
def sr(b):
    return f"s[{b}:{b+3}]"

def srd(a, d, lo, hi, nbytes):
    a(f"s_mov_b32 s{d}, s{lo}")
    a(f"s_and_b32 s{d+1}, s{hi}, 0xffff")
    a(f"s_mov_b32 s{d+2}, {nbytes}")
    a(f"s_mov_b32 s{d+3}, 0x20000")

HI = "0xffffffff"
def set_exec(a, lo, hi):
    if lo == HI and hi == HI:
        a("s_mov_b64 exec, -1")
    elif hi == 0 and lo in (1, "0xf"):
        a(f"s_mov_b64 exec, {int(str(lo), 0)}")
    else:
        a(f"s_mov_b32 exec_lo, {lo}")
        a(f"s_mov_b32 exec_hi, {hi}")

class Stamps:
    def __init__(self, a):
        self.a = a; self.idx = {}; self.names = []
    def __call__(self, name, cyc=False, grp=0):
        if not TS: return
        if name != "start" and grp != TSG: return
        nm = name + ("(cyc)" if cyc else "")
        if nm not in self.idx:
            self.idx[nm] = len(self.names); self.names.append(nm)
        b = 66 + 2 * self.idx[nm]
        assert b + 1 < 102
        self.a(f"s_memtime s[{b}:{b+1}]" if cyc else f"s_memrealtime s[{b}:{b+1}]")
    def dump(self):
        if not TS: return
        a = self.a
        if "--dbg" in sys.argv:
            sel = ["start", "start", "c0", "kv_mm", "b7", "q_done", "kv0", "att1", "o_flag", "o_ld", "end"]
            a("s_waitcnt lgkmcnt(0)")
            a(f"s_cmp_lg_u32 s{sW}, 0")
            a("s_cbranch_scc1 L_end")
            a("s_mov_b64 exec, 1")
            a("v_mov_b32 v2, 0")
            for i, nm in enumerate(sel):
                a(f"v_mov_b32 v4, s{66+2*self.idx[nm]}")
                if i == 0: a("v_not_b32 v4, v4")
                a(f"buffer_atomic_umax v4, v2, {sr(DBG)}, 0 offen offset:{8+4*i} sc1")
                a("s_nop 1")
            for i, nm in enumerate(["end", "kv0", "c0"]):
                a(f"s_sub_u32 s3, s{66+2*self.idx[nm]}, s66")
                a("v_mov_b32 v4, s3")
                a(f"buffer_atomic_umax v4, v2, {sr(DBG)}, 0 offen offset:{52+4*i} sc1")
                a("s_nop 1")
            a("s_waitcnt vmcnt(0)")
            return
        a("s_waitcnt lgkmcnt(0)")
        a(f"s_lshl_b32 s3, s2, 2")
        a(f"s_add_u32 s3, s3, s{sW}")
        a(f"s_lshl_b32 s3, s3, 7")
        a(f"s_add_u32 s3, s3, {TS_OFF}")
        a("s_mov_b64 exec, 1")
        a("v_mov_b32 v2, 0")
        for i in range(18):
            a(f"v_mov_b32 v4, s{66+2*i}")
            a(f"buffer_store_dword v4, v2, {sr(WS)}, s3 offen offset:{4*i}")
            a("s_nop 1")
        a("s_waitcnt vmcnt(0)")

X, W, WO, OUT, DBG, WS, KVS = 16, 20, 24, 28, 32, 36, 40
sH, sB, sW, sT = 44, 45, 46, 47
sKC, sXB, sWB, sXM, sWM = 48, 49, 50, 51, 52
sRDY, sTODO, sAV, sRET = 48, 49, 50, 64
sA, sBb = 53, 54
sKV, sIT, sWQ, sWoS, sCNT = 55, 56, 57, 58, 59
sKQ, sLD = 60, 61
WQS = KVS
sT3, sCS4 = 62, 63
L_WKV, L_WQ, L_XR = 0, 57344, 86016
L_WO, L_CMB = 0, 114688
LDS_BYTES = 163840
vXR = [2, 3, 4, 5]
vWR = [6, 7]
vQR, vOne, vFl, vFl2, vP1, vMk = 8, 9, 10, 11, 12, 13
vKo, vV0, vV1 = 14, 16, 17
vT = [18, 19, 20, 21, 22, 23]
A0, A1 = 24, 40
AQ = A0
XF = 56
WF = 168
PK = 200
Q, S0, P, KV, O = 40, 72, 104, 112, 176
S = [S0, S0 + 16]

def decode_hb(a):
    nhg = 16 >> MAP
    lg = int(math.log2(nhg))
    a(f"s_and_b32 s{sH}, s2, {nhg-1}")
    a(f"s_lshl_b32 s{sH}, s{sH}, {MAP}")
    a(f"s_lshr_b32 s3, s2, 3")
    a(f"s_and_b32 s{sB}, s3, {(1<<MAP)-1}")
    a(f"s_add_u32 s{sH}, s{sH}, s{sB}")
    a(f"s_lshr_b32 s3, s3, {MAP}")
    a(f"s_and_b32 s{sB}, s2, 7")
    a(f"s_lshr_b32 s{sB}, s{sB}, {lg}")
    a(f"s_mul_i32 s{sB}, s{sB}, {32>>MAP}")
    a(f"s_add_u32 s{sB}, s{sB}, s3")

def mfma(a, d, x, y, c):
    a(f"v_mfma_f32_32x32x16_bf16 {d}, {x}, {y}, {c}")

def flag_read(a, vaddr, srdn, off=0):
    a("v_mov_b32 v15, 0")
    a(f"buffer_atomic_or v15, v{vaddr}, {sr(srdn)}, 0 offen offset:{off} sc0 sc1")

def poll(a, label, vaddr, lo, hi, srdn, smask, off=0, atomic=True):
    a(f"s_mov_b32 s{sCNT}, 0x100000")
    set_exec(a, lo, hi)
    a(f"s_branch {label}_in")
    a.lab(label)
    if SLEEP: a(f"s_sleep {SLEEP}")
    a.lab(label + "_in")
    if atomic: flag_read(a, vaddr, srdn, off)
    else: a(f"buffer_load_dword v15, v{vaddr}, {sr(srdn)}, 0 offen offset:{off} sc1")
    a(f"s_sub_u32 s{sCNT}, s{sCNT}, 1")
    a(f"s_cbranch_scc1 {label}_done")
    a("s_waitcnt vmcnt(0)")
    a(f"v_and_b32 v15, {smask}, v15")
    a(f"v_cmp_ne_u32 vcc, {smask}, v15")
    a(f"s_cbranch_vccnz {label}")
    a.lab(label + "_done")
    set_exec(a, HI, HI)

def kv_poll_addr(a, vd, t0):
    a(f"s_mul_i32 s4, s{sH}, 56")
    a("s_and_b32 s5, s4, 0xfffffff0")
    a(f"v_mov_b32 v{t0}, s5")
    a("s_add_u32 s5, s5, 62")
    a(f"v_writelane_b32 v{t0}, s5, 1")
    a("s_add_u32 s5, s4, 896")
    a(f"v_writelane_b32 v{t0}, s5, 2")
    a("s_add_u32 s5, s4, 950")
    a(f"v_writelane_b32 v{t0}, s5, 3")
    a(f"v_lshrrev_b32 v{t0}, 7, v{t0}")
    a(f"v_lshlrev_b32 v{t0}, {FSH+4}, v{t0}")
    a(f"s_and_b32 s3, s{sH}, 3")
    a(f"s_lshl2_add_u32 s3, s3, s{sW}")
    a(f"s_lshl_b32 s3, s3, {FSH}")
    a(f"s_add_u32 s3, s3, {FL_OFF}")
    a(f"v_add_u32 v{vd}, s3, v{t0}")

def mask_addr(a, vd):
    a(f"s_add_u32 s3, s{sW}, 3")
    a("s_and_b32 s3, s3, 3")
    a("s_mul_i32 s3, s3, 12288")
    a(f"s_add_u32 s3, s3, {L_CMB + 8192}")
    a(f"v_mov_b32 v{vd}, s3")

def helper(a, ts):
    vX = [2, 3, 4, 5]
    vW0, vW1, vWq = 6, 7, 8
    vZ, vOn, vP, vM, vWo, vF = 9, 10, 11, 12, 13, 14
    a("v_lshrrev_b32 v7, 3, v0")
    a("v_mul_u32_u24 v2, 896, v7")
    a("v_and_b32 v6, 7, v0")
    a("v_lshrrev_b32 v4, 4, v0")
    a("v_xor_b32 v3, v6, v4")
    a("v_lshl_add_u32 v2, v3, 4, v2")
    a("v_xor_b32 v3, 64, v2")
    a("v_add_u32 v3, 6144, v3")
    a("v_and_b32 v4, 1, v4")
    a("v_lshlrev_b32 v4, 2, v4")
    a("v_xor_b32 v6, v6, v4")
    a("v_mul_u32_u24 v7, 2688, v7")
    a(f"v_lshl_add_u32 v{vW0}, v6, 4, v7")
    a(f"v_add_u32 v{vW1}, {8*2688-1024}, v{vW0}")
    a("v_add_u32 v4, 12288, v2")
    a("v_add_u32 v5, 12288, v3")
    a(f"s_mul_i32 s{sXB}, s{sT}, 28672")
    a(f"s_mul_i32 s{sWQ}, s{sW}, 43008")
    a(f"s_lshl_b32 s{sWB}, s{sH}, 7")
    a(f"s_add_u32 s{sWB}, s{sWB}, s{sWQ}")
    a(f"s_add_u32 s{sWB}, s{sWB}, 896")
    a(f"s_lshl_b32 s{sXM}, s{sW}, 14")
    a(f"s_add_u32 s{sXM}, s{sXM}, {L_XR}")
    a(f"s_lshl_b32 s{sWM}, s{sW}, 11")
    a(f"s_lshl_b32 s3, s{sB}, 1")
    a(f"s_add_u32 s3, s3, s{sH}")
    a(f"s_mul_i32 s{sA}, s3, 37")
    a(f"s_lshr_b32 s{sA}, s{sA}, 8")
    a(f"s_mul_i32 s{sA}, s{sA}, 7")
    a(f"s_sub_u32 s{sKC}, s3, s{sA}")
    a(f"s_mov_b32 s{sKQ}, s{sKC}")
    a(f"s_mov_b32 s{X+2}, {X_BYTES}")
    a(f"s_mov_b32 s{X+3}, 0x20000")
    a(f"s_cmp_lt_u32 s{sH}, 14")
    a(f"s_cselect_b32 s{W+2}, {W_BYTES}, 0")
    a(f"s_mov_b32 s{W+3}, 0x20000")
    a("s_waitcnt lgkmcnt(0)")
    a(f"s_mov_b32 s{X}, s4")
    a(f"s_and_b32 s{X+1}, s5, 0xffff")
    a(f"s_mov_b32 s{W}, s6")
    a(f"s_and_b32 s{W+1}, s7, 0xffff")
    def adv_kc():
        a(f"s_add_u32 s{sKC}, s{sKC}, 1")
        a(f"s_cmp_eq_u32 s{sKC}, 7")
        a(f"s_cselect_b32 s{sKC}, 0, s{sKC}")
    def issue(c):
        a(f"s_mul_i32 s{sBb}, s{sKC}, 172032")
        a(f"s_add_u32 m0, s{sWM}, {L_WKV + c*8192}")
        a(f"s_add_u32 s{sBb}, s{sBb}, s{sWB}")
        a(f"buffer_load_dwordx4 v{vW0}, {sr(W)}, s{sBb} offen lds")
        a(f"buffer_load_dwordx4 v{vW1}, {sr(W)}, s{sBb} offen offset:1024 lds")
        a(f"s_lshl_b32 s{sA}, s{sKC}, 7")
        a(f"s_add_u32 m0, s{sXM}, {(c%4)*4096}")
        a(f"s_add_u32 s{sA}, s{sA}, s{sXB}")
        for q in range(4):
            a(f"buffer_load_dwordx4 v{vX[q]}, {sr(X)}, s{sA} offen offset:{1024*q} lds")
        adv_kc()
    for c in range(2): issue(c)
    ts("h_iss", grp=1)
    srd(a, WS, 14, 15, WS_BYTES)
    srd(a, DBG, 12, 13, 256)
    srd(a, WO, 8, 9, WO_BYTES)
    a("v_lshlrev_b32 v1, 4, v0")
    a("v_and_b32 v15, 3, v0")
    a(f"v_lshrrev_b32 v{vWq}, 2, v0")
    a(f"v_mul_u32_u24 v{vWq}, 2688, v{vWq}")
    a(f"v_lshl_add_u32 v{vWq}, v15, 4, v{vWq}")
    a(f"s_mul_i32 s3, s{sH}, 56")
    a("s_and_b32 s3, s3, 0xfffffff0")
    a(f"s_add_u32 s{sWQ}, s{sWQ}, s3")
    a(f"v_mov_b32 v{vZ}, 0")
    kv_poll_addr(a, vP, 16)
    mask_addr(a, vM)
    srd(a, WQS, 6, 7, W_BYTES)
    a(f"s_lshr_b32 s{sIT}, s{sWM}, 1")
    qn = [0]
    def issue_q():
        c = qn[0]; qn[0] += 1
        a(f"s_mul_i32 s{sBb}, s{sKQ}, 172032")
        a(f"s_add_u32 m0, s{sIT}, {L_WQ + c*4096}")
        a(f"s_add_u32 s{sBb}, s{sBb}, s{sWQ}")
        a(f"buffer_load_dwordx4 v{vWq}, {sr(WQS)}, s{sBb} offen lds")
        a(f"s_add_u32 s{sKQ}, s{sKQ}, 1")
        a(f"s_cmp_eq_u32 s{sKQ}, 7")
        a(f"s_cselect_b32 s{sKQ}, 0, s{sKQ}")
    order = [0]*6 + [1]*6
    for c in range(7):
        if c + 2 < 7:
            issue(c + 2); order += [c + 2] * 6
        for i in range(NQ[c]):
            issue_q(); order.append(-1)
        last = max(i for i, x in enumerate(order) if x == c)
        a(f"s_waitcnt vmcnt({len(order) - 1 - last})")
        ts(f"w{c}", grp=1)
        a("s_barrier")
    if NQ[7]:
        a("s_barrier")
        for i in range(NQ[7]): issue_q()
    a(f"s_cmp_lg_u32 s{sW}, 0")
    a("s_cbranch_scc1 L_pollgo_done")
    poll(a, "L_pollgo", vZ, 1, 0, DBG, 1, atomic=False)
    a("s_waitcnt vmcnt(0)")
    ts("h_wq", grp=1)
    a("s_barrier")
    def poll_mask():
        set_exec(a, "0xf", 0)
        flag_read(a, vP, WS)
        a("s_waitcnt vmcnt(0)")
        a("v_readlane_b32 s4, v15, 0")
        a("v_readlane_b32 s5, v15, 1")
        a("v_readlane_b32 s6, v15, 2")
        a("v_readlane_b32 s7, v15, 3")
        a("s_and_b32 s4, s4, s5")
        a("s_and_b32 s6, s6, s7")
        a("s_and_b32 s4, s4, s6")
        a("s_lshl_b32 s5, s4, 16")
        a("s_or_b32 s4, s4, s5")
        a(f"s_lshr_b32 s4, s4, s{sB}")
        a("s_and_b32 s4, s4, 0xffff")
        a("s_cmp_eq_u32 s4, 0xffff")
        a("s_cselect_b32 s4, 0x7ffff, s4")
        a("v_mov_b32 v15, s4")
        a(f"ds_write_b32 v{vM}, v15")
        set_exec(a, HI, HI)
    if PREPOLL:
        a(f"s_sleep {PREPOLL}")
        poll_mask()
    else:
        a(f"ds_write_b32 v{vM}, v{vZ}")
        a("s_mov_b32 s4, 0")
    a("s_waitcnt lgkmcnt(0)")
    a("s_barrier")
    a(f"s_mov_b32 s{sCNT}, 0x100000")
    a.lab("L_hpoll")
    a("s_cmp_eq_u32 s4, 0x7ffff")
    a("s_cbranch_scc1 L_hpoll_done")
    a(f"s_sub_u32 s{sCNT}, s{sCNT}, 1")
    a("s_cbranch_scc1 L_hpoll_giveup")
    poll_mask()
    if SLEEP: a(f"s_sleep {SLEEP}")
    a("s_branch L_hpoll")
    a.lab("L_hpoll_giveup")
    a("v_mov_b32 v15, 0x7ffff")
    a(f"ds_write_b32 v{vM}, v15")
    a.lab("L_hpoll_done")
    ts("h_all", grp=1)
    a("v_lshrrev_b32 v16, 4, v0")
    a(f"v_mul_u32_u24 v{vWo}, 896, v16")
    a("v_lshlrev_b32 v16, 2, v16")
    a("v_and_b32 v17, 15, v0")
    a("v_xor_b32 v16, v16, v17")
    a(f"v_lshl_add_u32 v{vWo}, v16, 4, v{vWo}")
    a(f"s_mul_i32 s{sWoS}, s{sCS4}, 224")
    a(f"s_and_b32 s{sWoS}, s{sWoS}, 0xffffffc0")
    a(f"s_mul_i32 s3, s{sW}, {28*3584}")
    a(f"s_add_u32 s{sWoS}, s{sWoS}, s3")
    a(f"s_mul_i32 s3, s{sW}, {28*1024}")
    a(f"s_add_u32 m0, s3, {L_WO}")
    a(f"s_mov_b32 s{sIT}, 28")
    a("s_sleep 16")
    a.lab("L_wo")
    a("s_sleep 3")
    a(f"buffer_load_dwordx4 v{vWo}, {sr(WO)}, s{sWoS} offen lds")
    a("s_add_u32 m0, m0, 1024")
    a(f"s_add_u32 s{sWoS}, s{sWoS}, 3584")
    a(f"s_sub_u32 s{sIT}, s{sIT}, 1")
    a(f"s_cmp_lg_u32 s{sIT}, 0")
    a("s_cbranch_scc1 L_wo")
    a(f"s_lshl_b32 s3, s{sT3}, {FSH}")
    a(f"s_add_u32 s3, s3, {FL_OFF + (256 << FSH)}")
    a(f"v_mov_b32 v{vP}, s3")
    a(f"s_lshl_b32 s4, s{sW}, 2")
    a("s_lshl_b32 s4, 15, s4")
    a(f"s_lshl_b32 s3, s{sT3}, 2")
    a(f"s_add_u32 s3, s3, s{sW}")
    a("s_lshl_b32 s3, s3, 13")
    a(f"s_add_u32 s3, s3, {O_OFF}")
    a(f"s_add_u32 s{sA}, s3, 4096")
    a(f"s_lshl_b32 s{sBb}, s{sW}, 13")
    a(f"s_add_u32 s{sBb}, s{sBb}, {L_CMB}")
    a(f"v_add_u32 v{vM}, s{sBb}, v1")
    a("s_waitcnt vmcnt(0) lgkmcnt(0)")
    ts("h_wo", grp=1)
    a("s_barrier")
    poll(a, "L_poll2", vP, 1, 0, WS, "s4")
    ts("h_poll2", grp=1)
    for f in range(8):
        a(f"buffer_load_dwordx4 {vr(32+4*f,4)}, v1, {sr(WS)}, {'s3' if f < 4 else 's%d' % sA} offen offset:{1024*(f%4)} sc1")
    a("s_barrier")
    for f in range(8):
        a(f"s_waitcnt vmcnt({7-f})")
        a(f"ds_write_b128 v{vM}, {vr(32+4*f,4)} offset:{1024*f}")
    a("s_waitcnt lgkmcnt(0)")
    ts("h_stage", grp=1)
    a("s_barrier")
    if TS and TSG == 1: ts.dump()
    a("s_endpgm")

def kernel(a):
    name = NAME + "_kernel"
    a.raw(f".globl {name}")
    a.raw(".p2align 8")
    a.raw(f".type {name},@function")
    a.lab(name)
    ts = Stamps(a)
    ts("start")
    a("s_cmp_ge_u32 s2, 256")
    a("s_cbranch_scc1 L_end")
    a("s_load_dwordx8 s[4:11], s[0:1], 0")
    a("s_load_dwordx4 s[12:15], s[0:1], 32")
    a("v_lshrrev_b32 v1, 6, v0")
    a("v_and_b32 v0, 63, v0")
    a(f"v_readfirstlane_b32 s{sA}, v1")
    decode_hb(a)
    a(f"s_and_b32 s{sW}, s{sA}, 3")
    a(f"s_lshl_b32 s{sT}, s{sB}, 2")
    a(f"s_and_b32 s{sT3}, s{sH}, 3")
    a(f"s_add_u32 s{sT3}, s{sT3}, s{sT}")
    a(f"s_add_u32 s{sT}, s{sT}, s{sW}")
    a(f"s_lshr_b32 s{sCS4}, s{sH}, 2")
    a(f"s_cmp_lt_u32 s{sA}, 4")
    a("s_cbranch_scc1 L_compute")
    helper(a, ts)
    a.lab("L_compute")
    t0, t1, t2, t3, t4, t5 = vT
    a("s_waitcnt lgkmcnt(0)")
    srd(a, WS, 14, 15, WS_BYTES)
    srd(a, DBG, 12, 13, 256)
    a("v_mov_b32 v250, 1")
    a("v_mov_b32 v251, 0")
    a(f"v_lshlrev_b32 v252, {FSH}, v0")
    a(f"s_lshl_b32 s{sLD}, s{sW}, 3")
    a(f"s_or_b32 s{sLD}, s{sLD}, s2")
    a(f"s_cmp_ge_u32 s{sLD}, 8")
    a("s_cbranch_scc1 L_nocand")
    set_exec(a, 1, 0)
    a(f"buffer_atomic_add v250, v251, {sr(DBG)}, 0 offen offset:128 sc0 sc1")
    set_exec(a, HI, HI)
    a.lab("L_nocand")
    a("v_lshlrev_b32 v1, 4, v0")
    a("v_and_b32 v15, 3, v0")
    a("v_and_b32 v2, 31, v0")
    a(f"v_lshlrev_b32 v{vV0}, 4, v2")
    a("v_lshlrev_b32 v2, 7, v2")
    a("v_bfe_u32 v3, v0, 1, 3")
    a("v_lshrrev_b32 v4, 5, v0")
    a(f"v_mul_u32_u24 v{vV1}, {V_PLANE}, v4")
    a(f"v_add_u32 v{vV0}, v{vV0}, v{vV1}")
    a("v_xor_b32 v3, v3, v4")
    a("v_lshl_add_u32 v2, v3, 4, v2")
    a(f"s_lshl_b32 s3, s{sW}, 14")
    a(f"s_add_u32 s3, s3, {L_XR}")
    a("v_add_u32 v2, s3, v2")
    a("v_xor_b32 v3, 32, v2")
    a("v_xor_b32 v5, 96, v2")
    a(f"v_bfe_u32 v{t0}, v0, 2, 2")
    a(f"v_lshl_add_u32 v{t1}, v4, 3, v{t0}")
    a("v_xor_b32 v4, 64, v2")
    a(f"v_bfe_u32 v{t2}, v0, 4, 1")
    a(f"v_lshlrev_b32 v{t2}, 5, v{t2}")
    a(f"v_lshrrev_b32 v{t3}, 1, v15")
    a(f"v_and_b32 v{t4}, 1, v15")
    a(f"v_lshl_add_u32 v{t3}, v{t4}, 1, v{t3}")
    a(f"v_lshl_add_u32 v{t3}, v{t3}, 3, v{t2}")
    a(f"v_lshl_add_u32 v{t4}, v15, 3, v{t2}")
    a(f"v_lshl_add_u32 v{vQR}, v{t1}, 6, v{t3}")
    a(f"v_add_u32 v{vQR}, {L_WQ}, v{vQR}")
    a(f"s_cmp_lt_u32 s{sH}, 7")
    a("s_cselect_b64 vcc, -1, 0")
    a(f"v_cndmask_b32 v{t3}, v{t4}, v{t3}, vcc")
    a(f"v_lshrrev_b32 v{t0}, 1, v{t0}")
    a(f"v_lshl_add_u32 v{t3}, v{t0}, 6, v{t3}")
    a(f"v_lshl_add_u32 v{vWR[0]}, v{t1}, 7, v{t3}")
    a(f"v_xor_b32 v{vWR[1]}, 64, v{vWR[0]}")
    mask_addr(a, vMk)
    a(f"s_lshl_b32 s3, 1, s{sB}")
    a(f"v_mov_b32 v{vOne}, s3")
    a(f"s_lshl_b32 s3, s{sH}, 4")
    a(f"s_add_u32 s3, s3, s{sW}")
    a(f"v_lshl_add_u32 v{vP1}, v0, 2, s3")
    a(f"v_lshlrev_b32 v{vP1}, {FSH}, v{vP1}")
    a(f"v_add_u32 v{vP1}, {FL_OFF}, v{vP1}")
    a(f"s_lshl_b32 s{sA}, s{sT}, {FSH}")
    a(f"s_add_u32 s{sA}, s{sA}, {FL_OFF + (256 << FSH)}")
    a(f"v_mov_b32 v{vFl2}, s{sA}")
    a(f"v_lshrrev_b32 v{vFl}, 3, v0")
    a(f"v_mul_u32_u24 v{vFl}, {V_PLANE}, v{vFl}")
    a(f"v_and_b32 v{t0}, 7, v0")
    a(f"v_lshl_add_u32 v{vFl}, v{t0}, 4, v{vFl}")
    a(f"v_cmp_eq_u32 vcc, 0, v{t0}")
    a(f"v_mov_b32 v{t1}, 0x3f803f80")
    a("s_nop 0")
    for r in range(4):
        a(f"v_cndmask_b32 v{216+r}, 0, v{t1}, vcc")
    srd(a, OUT, 10, 11, OUT_BYTES)
    srd(a, KVS, 14, 15, KV_BYTES)
    def rd(c, i):
        a(f"ds_read_b128 {vr(XF+16*c+4*i,4)}, v{vXR[i]} offset:{(c%4)*4096}")
        for p in range(2):
            for r in range(2):
                a(f"ds_read_b64_tr_b16 {vr(WF+8*i+4*p+2*r,2)}, v{vWR[p]} offset:{L_WKV + (c*4+i)*2048 + r*512}")
    def phase1a(kind):
        def mm(c, i):
            x = vr(XF+16*c+4*i, 4)
            first = (c == 0 and i == 0)
            for p, acc in ((0, A0), (1, A1)):
                w = vr(WF+8*i+4*p, 4)
                if kind == "K": mfma(a, vr(acc,16), w, x, "0" if first else vr(acc,16))
                else: mfma(a, vr(acc,16), x, w, "0" if first else vr(acc,16))
        for c in range(7):
            a("s_barrier")
            if c == 0: ts("c0")
            rd(c, 0); rd(c, 1)
            if c == 0:
                a("s_waitcnt vmcnt(0)")
                a(f"v_readfirstlane_b32 s{sLD}, v250")
                a(f"s_mov_b32 s3, {FL_OFF}")
                a(f"s_cmp_lg_u32 s{sLD}, 0")
                a(f"s_cbranch_scc1 L_noclear{kind}")
                for i in range(5):
                    a(f"buffer_store_dword v251, v252, {sr(WS)}, s3 offen sc1")
                    a(f"s_add_u32 s3, s3, {64 << FSH}")
                a.lab(f"L_noclear{kind}")
            if c == 4:
                a(f"s_cmp_lg_u32 s{sLD}, 0")
                a(f"s_cbranch_scc1 L_nogo{kind}")
                a("v_mov_b32 v250, 1")
                a("s_waitcnt vmcnt(0)")
                set_exec(a, 1, 0)
                a(f"buffer_store_dword v250, v251, {sr(DBG)}, 0 offen sc1")
                set_exec(a, HI, HI)
                a.lab(f"L_nogo{kind}")
            if c > 0: mm(c-1, 2)
            rd(c, 2)
            if c > 0: mm(c-1, 3)
            a("s_waitcnt lgkmcnt(10)")
            rd(c, 3)
            mm(c, 0)
            a("s_waitcnt lgkmcnt(10)")
            mm(c, 1)
            a("s_waitcnt lgkmcnt(0)")
        mm(6, 2); mm(6, 3)
        ts("kv_mm")
        a(f"s_lshl_b32 s{sKV}, s{sT}, 16")
        if kind == "K":
            a(f"s_lshl_b32 s3, s{sH}, 12")
            a(f"s_add_u32 s3, s3, s{sKV}")
            a("s_nop 7")
        else:
            a(f"s_mul_i32 s3, s{sH}, {V_LINE}")
            a(f"s_add_u32 s3, s3, s{sKV}")
            a(f"s_add_u32 s3, s3, {V_BASE - 7*V_LINE}")
            a(f"s_add_u32 s{sA}, s3, {2*V_PLANE}")
            a(f"s_cmp_lt_u32 s{sH}, 14")
            a(f"s_cselect_b32 s{KVS+2}, {KV_BYTES}, 0")
            set_exec(a, HI, 0)
            a(f"buffer_store_dwordx4 v[216:219], v{vFl}, {sr(KVS)}, s3 offen offset:1024 sc1")
            set_exec(a, HI, HI)
        for p, acc in ((0, A0), (1, A1)):
            for f in range(2):
                for i in range(4):
                    a(f"v_cvt_pk_bf16_f32 v{PK+8*p+4*f+i}, v{acc+8*f+2*i}, v{acc+8*f+2*i+1}")
                d = vr(PK+8*p+4*f, 4)
                if kind == "K":
                    a(f"buffer_store_dwordx4 {d}, v1, {sr(KVS)}, s3 offen offset:{2048*p+1024*f} sc1")
                else:
                    a(f"buffer_store_dwordx4 {d}, v{vV0}, {sr(KVS)}, {'s3' if f == 0 else 's%d' % sA} offen offset:{512*p} sc1")
    a(f"s_cmp_lt_u32 s{sH}, 7")
    a("s_cbranch_scc0 L_vline")
    phase1a("K")
    a("s_branch L_q")
    a.lab("L_vline")
    phase1a("V")
    a.lab("L_q")
    ts("kv_st")
    if NQ[7]: a("s_barrier")
    a(f"s_mul_i32 s4, s{sH}, 56")
    a("s_lshr_b32 s5, s4, 4")
    a("s_lshl_b32 s5, s5, 9")
    a(f"v_add_u32 v{vKo}, s5, v1")
    a("s_lshr_b32 s4, s4, 1")
    a(f"v_and_b32 v{t0}, 31, v0")
    a(f"v_add_u32 v{t1}, s4, v{t0}")
    a(f"v_lshrrev_b32 v{t2}, 6, v{t1}")
    a(f"v_lshl_add_u32 v{t1}, v{t2}, 3, v{t1}")
    a("s_lshr_b32 s5, s4, 6")
    a("s_mul_i32 s5, s5, 72")
    a("s_add_u32 s5, s5, 36")
    a(f"v_add_u32 v{t2}, s5, v{t0}")
    a(f"v_cmp_gt_u32 vcc, 28, v{t0}")
    a(f"v_add_u32 v{vV1}, {V_BASE}, v{vV1}")
    a("s_nop 0")
    a(f"v_cndmask_b32 v{t1}, v{t2}, v{t1}, vcc")
    a(f"v_lshl_add_u32 v{vV0}, v{t1}, 4, v{vV1}")
    a(f"v_add_u32 v{vV1}, {2*V_PLANE}, v{vV0}")
    for r in range(220, 240):
        a(f"v_mov_b32 v{r}, 0")
    a(f"s_mov_b32 s{KVS+2}, {KV_BYTES}")
    a("s_barrier")
    ts("b7")
    def rdq(s):
        for r in range(2):
            a(f"ds_read_b64_tr_b16 {vr(WF+4*(s%8)+2*r,2)}, v{vQR} offset:{s*1024 + r*256}")
    for s in range(6): rdq(s)
    for s in range(28):
        if s + 6 < 28:
            rdq(s + 6)
            a("s_waitcnt lgkmcnt(12)")
        else:
            a(f"s_waitcnt lgkmcnt({2*(27-s)})")
        mfma(a, vr(AQ,16), vr(WF+4*(s%8),4), vr(XF+4*s,4), "0" if s == 0 else vr(AQ,16))
        if s + 1 == FLAGPOS:
            a("s_waitcnt vmcnt(0)")
            set_exec(a, "0xf", 0)
            a(f"buffer_atomic_or v{vOne}, v{vP1}, {sr(WS)}, 0 offen sc1")
            set_exec(a, HI, HI)
            ts("kv_flag")
    ts("q_mm")
    a(f"s_mov_b32 s3, {f32bits(QSCALE):#x}")
    a(f"s_lshl_b32 s{sA}, s{sW}, 11")
    a(f"s_add_u32 s{sA}, s{sA}, {L_CMB}")
    a(f"v_add_u32 v{t0}, s{sA}, v1")
    for r in range(176, 184):
        a(f"v_mov_b32 v{r}, 0")
    for r in range(16):
        a(f"v_mul_f32 v{AQ+r}, s3, v{AQ+r}")
    Q3 = Q + 24
    for i in range(8):
        a(f"v_cvt_pk_bf16_f32 v{Q3+i}, v{AQ+2*i}, v{AQ+2*i+1}")
    a(f"s_bitcmp1_b32 s{sH}, 0")
    a("s_cselect_b32 exec_lo, -1, 0")
    a("s_mov_b32 exec_hi, 0")
    a(f"v_mov_b32 v{Q3}, 0")
    a(f"v_mov_b32 v{Q3+1}, 0")
    a("s_cselect_b32 exec_hi, 0, -1")
    a("s_mov_b32 exec_lo, 0")
    a(f"v_mov_b32 v{Q3+6}, 0")
    a(f"v_mov_b32 v{Q3+7}, 0")
    set_exec(a, HI, HI)
    a(f"ds_write_b128 v{t0}, {vr(Q3,4)}")
    a(f"ds_write_b128 v{t0}, {vr(Q3+4,4)} offset:1024")
    for i in range(3):
        a(f"s_add_u32 s{sA}, s{sW}, {1+i}")
        a(f"s_and_b32 s{sA}, s{sA}, 3")
        a(f"s_lshl_b32 s{sA}, s{sA}, 11")
        a(f"s_add_u32 s{sA}, s{sA}, {L_CMB}")
        a(f"v_add_u32 v{vT[1+i]}, s{sA}, v1")
    for r in range(4):
        a(f"v_mov_b32 v{KV+48+12+r}, 0")
    a(f"s_mov_b32 s{sRDY}, 0")
    a(f"s_mov_b32 s{sTODO}, 0x7ffff")
    a("s_waitcnt lgkmcnt(0)")
    a("s_barrier")
    for i in range(3):
        a(f"ds_read_b128 {vr(Q+8*i,4)}, v{vT[1+i]}")
        a(f"ds_read_b128 {vr(Q+8*i+4,4)}, v{vT[1+i]} offset:1024")
    ts("q_done")
    def ldk(slot):
        for f in range(2):
            a(f"buffer_load_dwordx4 {vr(KV+16*slot+4*f,4)}, v{vKo}, {sr(KVS)}, s{sKV} offen offset:{1024*f} sc1")
    def ldv(slot):
        a(f"buffer_load_dwordx4 {vr(KV+16*slot+8,4)}, v{vV0}, {sr(KVS)}, s{sKV} offen sc1")
        a(f"buffer_load_dwordx4 {vr(KV+16*slot+12,4)}, v{vV1}, {sr(KVS)}, s{sKV} offen sc1")
    npick = [0]
    def pick_ops():
        n = npick[0]; npick[0] += 1
        def p0(): a(f"s_and_b32 s{sAV}, s{sRDY}, s{sTODO}")
        def p1():
            a(f"s_cbranch_scc0 L_slow{n}")
            a.lab(f"L_back{n}")
        def p2(): a(f"s_ff1_i32_b32 s{sAV}, s{sAV}")
        def p3(): a(f"s_bitset0_b32 s{sTODO}, s{sAV}")
        def p4(): a(f"s_lshl2_add_u32 s{sBb}, s{sAV}, s{sT}")
        def p5(): a(f"s_and_b32 s{sBb}, s{sBb}, 63")
        def p6(): a(f"s_and_b32 s{sAV}, s{sAV}, 16")
        def p7(): a(f"s_lshl2_add_u32 s{sBb}, s{sAV}, s{sBb}")
        def p8(): a(f"s_lshl_b32 s{sKV}, s{sBb}, 16")
        return [p0, p1, p2, p3, p4, p5, p6, p7, p8]
    for sl in range(3):
        for f in pick_ops(): f()
        ldk(sl); ldv(sl)
        if sl == 0: ts("pick0")
    for f in pick_ops(): f()
    for r in range(184, 220):
        a(f"v_mov_b32 v{r}, 0")
    for r in range(4):
        a(f"v_mov_b32 v{P+4+r}, 0")
    a(f"s_mov_b32 s{sIT}, 3")
    vC = vT[1:4]; vCR = vT[4]
    a("s_waitcnt lgkmcnt(0)")
    for i in range(3):
        a(f"s_add_u32 s3, s{sW}, {1+i}")
        a("s_and_b32 s3, s3, 3")
        a("s_mul_i32 s3, s3, 12288")
        a(f"s_add_u32 s3, s3, {L_CMB + 4096*i}")
        a(f"v_add_u32 v{vC[i]}, s3, v1")
    a(f"s_mul_i32 s3, s{sW}, 12288")
    a(f"s_add_u32 s3, s3, {L_CMB}")
    a(f"v_add_u32 v{vCR}, s3, v1")
    a("s_waitcnt vmcnt(8)")
    ts("kv0")
    def mS(part, t):
        slot = (t // 4) % 4; qt = t % 4
        d = vr(S[t % 2], 16)
        mfma(a, d, vr(KV+16*slot+4*part,4), vr(Q+8*qt+4*part,4), "0" if part == 0 else d)
    def mPV(part, t):
        slot = (t // 4) % 4; qt = t % 4
        d = vr(O + 16*qt, 16)
        mfma(a, d, vr(KV+16*slot+8+4*part,4), vr(P+4*part,4), d)
    def EC(t, g):
        s = S[t % 2] + 4*g
        for r in range(4):
            a(f"v_exp_f32 v{s+r}, v{s+r}")
        a(f"v_cvt_pk_bf16_f32 v{P+2*g}, v{s}, v{s+1}")
        a(f"v_cvt_pk_bf16_f32 v{P+2*g+1}, v{s+2}, v{s+3}")
    mS(0, 0); mS(1, 0)
    ts("att0", cyc=True)
    a("s_nop 7")
    a("s_nop 3")
    a.raw(".p2align 6")
    a.lab("L_loop")
    def tile(j, last=False):
        fs = [None] * 16
        if not last:
            fs[11] = lambda: a("s_waitcnt vmcnt(8)")
            po = pick_ops()
            for k, f in enumerate(po): fs[2 + k] = f
            if j == 2:
                fs[14] = lambda: a(f"s_sub_u32 s{sIT}, s{sIT}, 1")
        else:
            def wr(i, g):
                return lambda: a(f"ds_write_b128 v{vC[i]}, {vr(O+16*i+4*g,4)} offset:{1024*g}")
            for i in range(3):
                fs[4*(i+1) + 3] = wr(i, 0)
                if i < 2:
                    for g in range(1, 4): fs[4*(i+2) + g - 1] = wr(i, g)
        for st in range(4):
            t = 4*j + st
            f = fs[4*st:4*st+4]
            if not (last and st == 3): mS(0, t+1)
            if st == 0 and not last: ldk((j + 3) % 4)
            if f[0]: f[0]()
            EC(t, 0)
            mPV(1, (t - 1) % 16)
            if st == 0 and not last: ldv((j + 3) % 4)
            if f[1]: f[1]()
            EC(t, 1)
            if not (last and st == 3): mS(1, t+1)
            if f[2]: f[2]()
            EC(t, 2)
            mPV(0, t)
            if f[3]: f[3]()
            EC(t, 3)
    for j in range(3): tile(j)
    a("s_cbranch_scc1 L_last")
    tile(3)
    a("s_branch L_loop")
    a.lab("L_last")
    tile(3, last=True)
    a(f"ds_write_b128 v{vC[2]}, {vr(O+32+4,4)} offset:1024")
    a(f"ds_write_b128 v{vC[2]}, {vr(O+32+8,4)} offset:2048")
    mPV(1, 15)
    a(f"ds_write_b128 v{vC[2]}, {vr(O+32+12,4)} offset:3072")
    ts("att1", cyc=True)
    ts("att1")
    a(f"s_mov_b32 s4, {f32bits(2.0**62):#x}")
    a(f"s_mov_b32 s5, {f32bits(2.0**-62):#x}")
    a("s_waitcnt vmcnt(0) lgkmcnt(0)")
    a("s_barrier")
    R = O
    F = O + 48
    for i in range(3):
        for g in range(4):
            a(f"ds_read_b128 {vr(R+16*i+4*g,4)}, v{vCR} offset:{4096*i+1024*g}")
    a(f"s_lshl_b32 s3, s{sT}, 4")
    a(f"s_add_u32 s3, s3, s{sH}")
    a("s_lshl_b32 s3, s3, 11")
    a(f"s_add_u32 s3, s3, {O_OFF}")
    for i in range(3):
        a(f"s_waitcnt lgkmcnt({8-4*i})")
        for r in range(16):
            a(f"v_add_f32 v{F+r}, v{F+r}, v{R+16*i+r}")
    a(f"v_cmp_nge_f32 s[6:7], s4, v{F+12}")
    a(f"v_cmp_nle_f32 vcc, s5, v{F+12}")
    a("s_or_b64 s[6:7], s[6:7], vcc")
    a("s_cmp_lg_u32 s7, 0")
    a("s_cbranch_scc1 L_fallback")
    a.lab("L_norm")
    a(f"v_mov_b32 v{t0}, v{F+12}")
    a(f"v_mov_b32 v{t1}, v{F+12}")
    a("s_nop 1")
    a(f"v_permlane32_swap_b32 v{t0}, v{t1}")
    a("s_nop 1")
    a(f"v_rcp_f32 v{t1}, v{t1}")
    set_exec(a, 0, HI)
    a(f"v_mov_b32 v{F+12}, 0")
    set_exec(a, HI, HI)
    for r in range(16):
        a(f"v_mul_f32 v{F+r}, v{F+r}, v{t1}")
    PO = 240
    for i in range(8):
        a(f"v_cvt_pk_bf16_f32 v{PO+i}, v{F+2*i}, v{F+2*i+1}")
    a(f"buffer_store_dwordx4 {vr(PO,4)}, v1, {sr(WS)}, s3 offen sc1")
    a(f"buffer_store_dwordx4 {vr(PO+4,4)}, v1, {sr(WS)}, s3 offen offset:1024 sc1")
    ts("o_st")
    WOF, OF, ACC, D = 40, 168, 24, 232
    a(f"s_and_b32 s3, s{sCS4}, 1")
    a("s_lshl_b32 s3, s3, 5")
    a(f"s_mul_i32 s{sA}, s{sW}, 56")
    a(f"s_add_u32 s3, s3, s{sA}")
    a(f"v_bfe_u32 v{t0}, v0, 4, 1")
    a(f"v_lshlrev_b32 v{t0}, 5, v{t0}")
    a(f"v_and_b32 v{t1}, 3, v0")
    a(f"v_lshl_add_u32 v{t0}, v{t1}, 3, v{t0}")
    a(f"v_add_u32 v{t0}, s3, v{t0}")
    a(f"v_and_b32 v{t0}, 255, v{t0}")
    a(f"v_bfe_u32 v{t1}, v0, 2, 2")
    a(f"v_lshlrev_b32 v{t2}, 6, v{t1}")
    a(f"v_xor_b32 v{t0}, v{t0}, v{t2}")
    a(f"v_lshl_add_u32 v{t2}, v{t1}, 8, v{t0}")
    a(f"v_lshrrev_b32 v{t1}, 5, v0")
    a(f"v_lshl_add_u32 v{t0}, v{t1}, 10, v{t2}")
    a(f"v_add_u32 v{t1}, 0x10000, v{t0}")
    a(f"v_add_u32 v{t2}, 0x10000, v{t2}")
    def rdwo(hh):
        for u in range(2):
            for r in range(2):
                off = L_WO + (28*hh + 16*u + 8*r) * 256
                base = t0
                if off >= 0x10000:
                    off -= 0x10000; base = t1
                if hh == 15 and u == 1 and r == 1:
                    base = t2
                a(f"ds_read_b64_tr_b16 {vr(WOF+8*hh+4*u+2*r,2)}, v{base} offset:{off}")
    a(f"s_lshl_b32 s3, 1, s{sH}")
    a(f"v_mov_b32 v{vOne}, s3")
    for hh in range(6): rdwo(hh)
    a("s_waitcnt vmcnt(0)")
    set_exec(a, 1, 0)
    a(f"buffer_atomic_or v{vOne}, v{vFl2}, {sr(WS)}, 0 offen sc1")
    set_exec(a, HI, HI)
    ts("o_flag")
    for hh in range(6, 16): rdwo(hh)
    a(f"v_add_u32 v{t3}, {L_CMB}, v1")
    a(f"v_and_b32 v{t4}, 31, v0")
    a(f"v_mul_u32_u24 v{t4}, 896, v{t4}")
    a(f"v_lshrrev_b32 v{t5}, 5, v0")
    a(f"v_lshl_add_u32 v{t4}, v{t5}, 4, v{t4}")
    a(f"s_mul_i32 s{sKV}, s{sT3}, 28672")
    a(f"s_lshl_b32 s{sBb}, s{sCS4}, 2")
    a(f"s_add_u32 s{sBb}, s{sBb}, s{sW}")
    a(f"s_mul_i32 s{sBb}, s{sBb}, 56")
    a(f"s_add_u32 s{sKV}, s{sKV}, s{sBb}")
    a("s_barrier")
    a("s_barrier")
    ts("o_ld")
    NR = 16
    for f in range(12):
        a(f"ds_read_b128 {vr(OF+4*(f%NR),4)}, v{t3} offset:{1024*f}")
    for f in range(32):
        if f + 12 < 32:
            a(f"ds_read_b128 {vr(OF+4*((f+12)%NR),4)}, v{t3} offset:{1024*(f+12)}")
            a("s_waitcnt lgkmcnt(12)")
        else:
            a(f"s_waitcnt lgkmcnt({31-f})")
        mfma(a, vr(ACC,16), vr(WOF+4*f,4), vr(OF+4*(f%NR),4), "0" if f == 0 else vr(ACC,16))
    a("s_nop 7")
    a("s_nop 3")
    for i in range(8):
        a(f"v_cvt_pk_bf16_f32 v{D+i}, v{ACC+2*i}, v{ACC+2*i+1}")
    a(f"v_permlane32_swap_b32 v{D}, v{D+2}")
    a(f"v_permlane32_swap_b32 v{D+1}, v{D+3}")
    a(f"v_permlane32_swap_b32 v{D+4}, v{D+6}")
    a(f"v_permlane32_swap_b32 v{D+5}, v{D+7}")
    a(f"buffer_store_dwordx4 {vr(D,4)}, v{t4}, {sr(OUT)}, s{sKV} offen")
    set_exec(a, HI, 0)
    a(f"buffer_store_dwordx4 {vr(D+4,4)}, v{t4}, {sr(OUT)}, s{sKV} offen offset:32")
    set_exec(a, 0, HI)
    a(f"buffer_store_dwordx2 {vr(D+4,2)}, v{t4}, {sr(OUT)}, s{sKV} offen offset:32")
    ts("out_st")
    if TS:
        a("s_waitcnt vmcnt(0)")
        ts("end")
    if TS and TSG == 0: ts.dump()
    a.lab("L_end")
    a("s_endpgm")
    for n in range(npick[0]):
        a.lab(f"L_slow{n}")
        a(f"ds_read_b32 v15, v{vMk}")
        a("s_waitcnt lgkmcnt(0)")
        a(f"v_readfirstlane_b32 s{sRDY}, v15")
        a("s_nop 0")
        a(f"s_and_b32 s{sAV}, s{sRDY}, s{sTODO}")
        a(f"s_cbranch_scc0 L_slow{n}")
        a(f"s_branch L_back{n}")
    a.lab("L_fallback")
    a(f"s_mov_b32 s{sA}, s3")
    kv_poll_addr(a, vP1, t0)
    a(f"s_lshl_b32 s6, s{sW}, {FSH}")
    a(f"v_subrev_u32 v{vP1}, s6, v{vP1}")
    for w in range(4):
        poll(a, f"L_pollfb{w}", vP1, "0xf", 0, WS, "0xffff", off=w << FSH)
    a(f"s_mov_b32 s3, s{sA}")
    a(f"v_mov_b32 v{t0}, 0xff800000")
    a(f"s_mov_b32 s{sKV}, 0")
    SS = S0
    a.lab("L_fb1")
    ldk(0)
    a(f"s_add_u32 s{sKV}, s{sKV}, 0x10000")
    a("s_waitcnt vmcnt(0)")
    mfma(a, vr(SS,16), vr(KV,4), vr(Q3,4), "0")
    mfma(a, vr(SS,16), vr(KV+4,4), vr(Q3+4,4), vr(SS,16))
    a("s_nop 15")
    for r in range(0, 16, 2):
        a(f"v_max3_f32 v{t0}, v{t0}, v{SS+r}, v{SS+r+1}")
    a(f"s_cmp_lt_u32 s{sKV}, {KV_BYTES}")
    a("s_cbranch_scc1 L_fb1")
    a(f"v_mov_b32 v{t1}, v{t0}")
    a("s_nop 1")
    a(f"v_permlane32_swap_b32 v{t0}, v{t1}")
    a("s_nop 1")
    a(f"v_max_f32 v{t0}, v{t0}, v{t1}")
    for r in range(16):
        a(f"v_mov_b32 v{F+r}, 0")
    a(f"s_mov_b32 s{sKV}, 0")
    a.lab("L_fb2")
    ldk(0); ldv(0)
    a(f"s_add_u32 s{sKV}, s{sKV}, 0x10000")
    a("s_waitcnt vmcnt(0)")
    mfma(a, vr(SS,16), vr(KV,4), vr(Q3,4), "0")
    mfma(a, vr(SS,16), vr(KV+4,4), vr(Q3+4,4), vr(SS,16))
    a("s_nop 15")
    for r in range(16):
        a(f"v_sub_f32 v{SS+r}, v{SS+r}, v{t0}")
    for r in range(16):
        a(f"v_exp_f32 v{SS+r}, v{SS+r}")
    a("s_nop 0")
    for i in range(8):
        a(f"v_cvt_pk_bf16_f32 v{P+i}, v{SS+2*i}, v{SS+2*i+1}")
    a("s_nop 1")
    mfma(a, vr(F,16), vr(KV+8,4), vr(P,4), vr(F,16))
    mfma(a, vr(F,16), vr(KV+12,4), vr(P+4,4), vr(F,16))
    a(f"s_cmp_lt_u32 s{sKV}, {KV_BYTES}")
    a("s_cbranch_scc1 L_fb2")
    a("s_nop 15")
    a("s_branch L_norm")
    if TS:
        open("stamps.txt", "w").write(",".join(ts.names))
    return name

def main():
    a = A()
    name = kernel(a)
    head = open(f"cdna_kernels/{NAME}.s.ref").read().split("; Override")[0]
    out = head
    out += f"; @launch grid=(256,1,1) block=(512,1,1) lds={LDS_BYTES}\n"
    out += '.amdgcn_target "amdgcn-amd-amdhsa--gfx950"\n.text\n'
    out += a.text()
    out += f""".section .rodata,"a"
.p2align 6
.amdhsa_kernel {name}
  .amdhsa_next_free_vgpr 256
  .amdhsa_next_free_sgpr 102
  .amdhsa_accum_offset 256
  .amdhsa_group_segment_fixed_size 0
  .amdhsa_kernarg_size 48
  .amdhsa_user_sgpr_count 2
  .amdhsa_user_sgpr_kernarg_segment_ptr 1
  .amdhsa_system_sgpr_workgroup_id_x 1
.end_amdhsa_kernel
"""
    o = [x for x in sys.argv[1:] if not x.startswith("--")]
    path = o[0] if o else f"cdna_kernels/{NAME}.s"
    open(path, "w").write(out)
main()
```

```python
import sys, struct, math

NAME = "standalone__softmax_full_mha__prompt"
FL_OFF = 5 << 20
O_OFF = 6 << 20
TS_OFF = 8 << 20
WS_BYTES = 268435456
X_BYTES = 2048 * 448 * 2
W_BYTES = 448 * 1344 * 2
WO_BYTES = 448 * 448 * 2
OUT_BYTES = 2048 * 448 * 2
KV_BYTES = 4 << 20
V_BASE = 28672
V_LINE = 1152
V_PLANE = 7 * V_LINE
QSCALE = 28 ** -0.5 * math.log2(math.e)

def opt(name, default):
    for arg in sys.argv:
        if arg.startswith(f"--{name}="):
            return int(arg.split("=")[1])
    return default
TS = "--ts" in sys.argv
TSG = opt("tsg", 0)
MAP = opt("maph", 3)
FSH = opt("fsh", 8)
FLAGPOS = opt("flagpos", 20)
NQ = [int(c) for c in "%08d" % opt("nq", 700)]
assert sum(NQ) == 7
SLEEP = opt("sleep", 1)
LA = opt("la", 2)
PF = opt("pf", 0)
ROT = opt("rot", 1)
PREPOLL = opt("prepoll", 1)

def f32bits(x):
    return struct.unpack("<I", struct.pack("<f", x))[0]

class A:
    def __init__(self):
        self.l = []
    def __call__(self, s):
        for line in s.strip("\n").split("\n"):
            self.l.append("    " + line.strip())
    def lab(self, n):
        self.l.append(n + ":")
    def raw(self, s):
        self.l.append(s)
    def text(self):
        return "\n".join(self.l) + "\n"

def vr(b, n, k="v"):
    return f"{k}[{b}:{b+n-1}]"
def sr(b):
    return f"s[{b}:{b+3}]"

def srd(a, d, lo, hi, nbytes):
    a(f"s_mov_b32 s{d}, s{lo}")
    a(f"s_and_b32 s{d+1}, s{hi}, 0xffff")
    a(f"s_mov_b32 s{d+2}, {nbytes}")
    a(f"s_mov_b32 s{d+3}, 0x20000")

HI = "0xffffffff"
def set_exec(a, lo, hi):
    if lo == HI and hi == HI:
        a("s_mov_b64 exec, -1")
    elif hi == 0 and lo in (1, "0xf"):
        a(f"s_mov_b64 exec, {int(str(lo), 0)}")
    else:
        a(f"s_mov_b32 exec_lo, {lo}")
        a(f"s_mov_b32 exec_hi, {hi}")

class Stamps:
    def __init__(self, a):
        self.a = a; self.idx = {}; self.names = []
    def __call__(self, name, cyc=False, grp=0):
        if not TS: return
        if name != "start" and grp != TSG: return
        nm = name + ("(cyc)" if cyc else "")
        if nm not in self.idx:
            self.idx[nm] = len(self.names); self.names.append(nm)
        b = 66 + 2 * self.idx[nm]
        assert b + 1 < 102
        self.a(f"s_memtime s[{b}:{b+1}]" if cyc else f"s_memrealtime s[{b}:{b+1}]")
    def dump(self):
        if not TS: return
        a = self.a
        sp = [x for x in sys.argv if x.startswith("--spin=")]
        if sp:
            hi, lo, m = sp[0][7:].split(",")
            a("s_waitcnt lgkmcnt(0)")
            a(f"s_sub_u32 s3, s{66+2*self.idx[hi]}, s{66+2*self.idx[lo]}")
            a(f"s_mul_i32 s3, s3, {m}")
            a(f"s_add_u32 s3, s3, s{66+2*self.idx['end']}")
            a.lab("L_spin")
            a("s_memrealtime s[4:5]")
            a("s_waitcnt lgkmcnt(0)")
            a("s_sub_u32 s4, s4, s3")
            a("s_cmp_lt_i32 s4, 0")
            a("s_cbranch_scc1 L_spin")
            return
        if "--dbg" in sys.argv:
            sel = ["start", "start", "c0", "kv_mm", "b7", "q_done", "kv0", "att1", "o_flag", "o_ld", "end"]
            a("s_waitcnt lgkmcnt(0)")
            a(f"s_cmp_lg_u32 s{sW}, 0")
            a("s_cbranch_scc1 L_end")
            a("s_mov_b64 exec, 1")
            a("v_mov_b32 v2, 0")
            for i, nm in enumerate(sel):
                a(f"v_mov_b32 v4, s{66+2*self.idx[nm]}")
                if i == 0: a("v_not_b32 v4, v4")
                a(f"buffer_atomic_umax v4, v2, {sr(DBG)}, 0 offen offset:{8+4*i} sc1")
                a("s_nop 1")
            for i, nm in enumerate(["end", "kv0", "c0"]):
                a(f"s_sub_u32 s3, s{66+2*self.idx[nm]}, s66")
                a("v_mov_b32 v4, s3")
                a(f"buffer_atomic_umax v4, v2, {sr(DBG)}, 0 offen offset:{52+4*i} sc1")
                a("s_nop 1")
            a("s_waitcnt vmcnt(0)")
            return
        a("s_waitcnt lgkmcnt(0)")
        a(f"s_lshl_b32 s3, s2, 2")
        a(f"s_add_u32 s3, s3, s{sW}")
        a(f"s_lshl_b32 s3, s3, 7")
        a(f"s_add_u32 s3, s3, {TS_OFF}")
        a("s_mov_b64 exec, 1")
        a("v_mov_b32 v2, 0")
        for i in range(18):
            a(f"v_mov_b32 v4, s{66+2*i}")
            a(f"buffer_store_dword v4, v2, {sr(WS)}, s3 offen offset:{4*i}")
            a("s_nop 1")
        a("s_waitcnt vmcnt(0)")

X, W, WO, OUT, DBG, WS, KVS = 16, 20, 24, 28, 32, 36, 40
sH, sB, sW, sT = 44, 45, 46, 47
sKC, sXB, sWB, sXM, sWM = 48, 49, 50, 51, 52
sRDY, sTODO, sAV, sRET = 48, 49, 50, 64
sA, sBb = 53, 54
sKV, sIT, sWQ, sWoS, sCNT = 55, 56, 57, 58, 59
sKQ, sLD = 60, 61
WQS = KVS
sT3, sCS4 = 62, 63
L_WKV, L_WQ, L_XR = 0, 57344, 86016
L_WO, L_CMB = 0, 114688
LDS_BYTES = 163840
vXR = [2, 3, 4, 5]
vWR = [6, 7]
vQR, vOne, vFl, vFl2, vP1, vMk = 8, 9, 10, 11, 12, 13
vKo, vV0, vV1 = 14, 16, 17
vT = [18, 19, 20, 21, 22, 23]
A0, A1 = 24, 40
AQ = A0
XF = 56
WF = 168
PK = 200
Q, S0, P, KV, O = 40, 72, 104, 112, 176
S = [S0, S0 + 16]

def decode_hb(a):
    nhg = 16 >> MAP
    lg = int(math.log2(nhg))
    a(f"s_and_b32 s{sH}, s2, {nhg-1}")
    a(f"s_lshl_b32 s{sH}, s{sH}, {MAP}")
    a(f"s_lshr_b32 s3, s2, 3")
    a(f"s_and_b32 s{sB}, s3, {(1<<MAP)-1}")
    a(f"s_add_u32 s{sH}, s{sH}, s{sB}")
    a(f"s_lshr_b32 s3, s3, {MAP}")
    a(f"s_and_b32 s{sB}, s2, 7")
    a(f"s_lshr_b32 s{sB}, s{sB}, {lg}")
    a(f"s_mul_i32 s{sB}, s{sB}, {32>>MAP}")
    a(f"s_add_u32 s{sB}, s{sB}, s3")

def mfma(a, d, x, y, c):
    a(f"v_mfma_f32_32x32x16_bf16 {d}, {x}, {y}, {c}")

def flag_read(a, vaddr, srdn, off=0):
    a("v_mov_b32 v15, 0")
    a(f"buffer_atomic_or v15, v{vaddr}, {sr(srdn)}, 0 offen offset:{off} sc0 sc1")

def poll(a, label, vaddr, lo, hi, srdn, smask, off=0, atomic=True):
    a(f"s_mov_b32 s{sCNT}, 0x100000")
    set_exec(a, lo, hi)
    a(f"s_branch {label}_in")
    a.lab(label)
    if SLEEP: a(f"s_sleep {SLEEP}")
    a.lab(label + "_in")
    if atomic: flag_read(a, vaddr, srdn, off)
    else: a(f"buffer_load_dword v15, v{vaddr}, {sr(srdn)}, 0 offen offset:{off} sc1")
    a(f"s_sub_u32 s{sCNT}, s{sCNT}, 1")
    a(f"s_cbranch_scc1 {label}_done")
    a("s_waitcnt vmcnt(0)")
    a(f"v_and_b32 v15, {smask}, v15")
    a(f"v_cmp_ne_u32 vcc, {smask}, v15")
    a(f"s_cbranch_vccnz {label}")
    a.lab(label + "_done")
    set_exec(a, HI, HI)

def kv_poll_addr(a, vd, t0):
    a(f"s_mul_i32 s4, s{sH}, 56")
    a("s_and_b32 s5, s4, 0xfffffff0")
    a(f"v_mov_b32 v{t0}, s5")
    a("s_add_u32 s5, s5, 62")
    a(f"v_writelane_b32 v{t0}, s5, 1")
    a("s_add_u32 s5, s4, 896")
    a(f"v_writelane_b32 v{t0}, s5, 2")
    a("s_add_u32 s5, s4, 950")
    a(f"v_writelane_b32 v{t0}, s5, 3")
    a(f"v_lshrrev_b32 v{t0}, 7, v{t0}")
    a(f"v_lshlrev_b32 v{t0}, {FSH+4}, v{t0}")
    a(f"s_and_b32 s3, s{sH}, 3")
    a(f"s_lshl2_add_u32 s3, s3, s{sW}")
    a(f"s_lshl_b32 s3, s3, {FSH}")
    a(f"s_add_u32 s3, s3, {FL_OFF}")
    a(f"v_add_u32 v{vd}, s3, v{t0}")

def mask_addr(a, vd):
    a(f"s_add_u32 s3, s{sW}, 3")
    a("s_and_b32 s3, s3, 3")
    a("s_mul_i32 s3, s3, 12288")
    a(f"s_add_u32 s3, s3, {L_CMB + 8192}")
    a(f"v_mov_b32 v{vd}, s3")

def helper(a, ts):
    vX = [2, 3, 4, 5]
    vW0, vW1, vWq = 6, 7, 8
    vZ, vOn, vP, vM, vWo, vF = 9, 10, 11, 12, 13, 14
    a("v_lshrrev_b32 v7, 3, v0")
    a("v_mul_u32_u24 v2, 896, v7")
    a("v_and_b32 v6, 7, v0")
    a("v_lshrrev_b32 v4, 4, v0")
    a("v_xor_b32 v3, v6, v4")
    a("v_lshl_add_u32 v2, v3, 4, v2")
    a("v_xor_b32 v3, 64, v2")
    a("v_add_u32 v3, 6144, v3")
    a("v_and_b32 v4, 1, v4")
    a("v_lshlrev_b32 v4, 2, v4")
    a("v_xor_b32 v6, v6, v4")
    a("v_mul_u32_u24 v7, 2688, v7")
    a(f"v_lshl_add_u32 v{vW0}, v6, 4, v7")
    a(f"v_add_u32 v{vW1}, {8*2688-1024}, v{vW0}")
    a("v_add_u32 v4, 12288, v2")
    a("v_add_u32 v5, 12288, v3")
    a(f"s_mul_i32 s{sXB}, s{sT}, 28672")
    a(f"s_mul_i32 s{sWQ}, s{sW}, 43008")
    a(f"s_lshl_b32 s{sWB}, s{sH}, 7")
    a(f"s_add_u32 s{sWB}, s{sWB}, s{sWQ}")
    a(f"s_add_u32 s{sWB}, s{sWB}, 896")
    a(f"s_lshl_b32 s{sXM}, s{sW}, 14")
    a(f"s_add_u32 s{sXM}, s{sXM}, {L_XR}")
    a(f"s_lshl_b32 s{sWM}, s{sW}, 11")
    a(f"s_lshl_b32 s3, s{sB}, 1")
    a(f"s_add_u32 s3, s3, s{sH}")
    a(f"s_mul_i32 s{sA}, s3, 37")
    a(f"s_lshr_b32 s{sA}, s{sA}, 8")
    a(f"s_mul_i32 s{sA}, s{sA}, 7")
    a(f"s_sub_u32 s{sKC}, s3, s{sA}")
    a(f"s_mov_b32 s{sKQ}, s{sKC}")
    a(f"s_mov_b32 s{X+2}, {X_BYTES}")
    a(f"s_mov_b32 s{X+3}, 0x20000")
    a(f"s_cmp_lt_u32 s{sH}, 14")
    a(f"s_cselect_b32 s{W+2}, {W_BYTES}, 0")
    a(f"s_mov_b32 s{W+3}, 0x20000")
    a("s_waitcnt lgkmcnt(0)")
    a(f"s_mov_b32 s{X}, s4")
    a(f"s_and_b32 s{X+1}, s5, 0xffff")
    a(f"s_mov_b32 s{W}, s6")
    a(f"s_and_b32 s{W+1}, s7, 0xffff")
    def adv_kc():
        a(f"s_add_u32 s{sKC}, s{sKC}, 1")
        a(f"s_cmp_eq_u32 s{sKC}, 7")
        a(f"s_cselect_b32 s{sKC}, 0, s{sKC}")
    def issue(c):
        a(f"s_mul_i32 s{sBb}, s{sKC}, 172032")
        a(f"s_add_u32 m0, s{sWM}, {L_WKV + c*8192}")
        a(f"s_add_u32 s{sBb}, s{sBb}, s{sWB}")
        a(f"buffer_load_dwordx4 v{vW0}, {sr(W)}, s{sBb} offen lds")
        a(f"buffer_load_dwordx4 v{vW1}, {sr(W)}, s{sBb} offen offset:1024 lds")
        a(f"s_lshl_b32 s{sA}, s{sKC}, 7")
        a(f"s_add_u32 m0, s{sXM}, {(c%4)*4096}")
        a(f"s_add_u32 s{sA}, s{sA}, s{sXB}")
        for q in range(4):
            a(f"buffer_load_dwordx4 v{vX[q]}, {sr(X)}, s{sA} offen offset:{1024*q} lds")
        adv_kc()
    for c in range(2): issue(c)
    ts("h_iss", grp=1)
    srd(a, WS, 14, 15, WS_BYTES)
    srd(a, DBG, 12, 13, 256)
    srd(a, WO, 8, 9, WO_BYTES)
    a("v_lshlrev_b32 v1, 4, v0")
    a("v_and_b32 v15, 3, v0")
    a(f"v_lshrrev_b32 v{vWq}, 2, v0")
    a(f"v_mul_u32_u24 v{vWq}, 2688, v{vWq}")
    a(f"v_lshl_add_u32 v{vWq}, v15, 4, v{vWq}")
    a(f"s_mul_i32 s3, s{sH}, 56")
    a("s_and_b32 s3, s3, 0xfffffff0")
    a(f"s_add_u32 s{sWQ}, s{sWQ}, s3")
    a(f"v_mov_b32 v{vZ}, 0")
    kv_poll_addr(a, vP, 16)
    mask_addr(a, vM)
    srd(a, WQS, 6, 7, W_BYTES)
    a(f"s_lshr_b32 s{sIT}, s{sWM}, 1")
    qn = [0]
    def issue_q():
        c = qn[0]; qn[0] += 1
        a(f"s_mul_i32 s{sBb}, s{sKQ}, 172032")
        a(f"s_add_u32 m0, s{sIT}, {L_WQ + c*4096}")
        a(f"s_add_u32 s{sBb}, s{sBb}, s{sWQ}")
        a(f"buffer_load_dwordx4 v{vWq}, {sr(WQS)}, s{sBb} offen lds")
        a(f"s_add_u32 s{sKQ}, s{sKQ}, 1")
        a(f"s_cmp_eq_u32 s{sKQ}, 7")
        a(f"s_cselect_b32 s{sKQ}, 0, s{sKQ}")
    order = [0]*6 + [1]*6
    for c in range(7):
        if c + 2 < 7:
            issue(c + 2); order += [c + 2] * 6
        for i in range(NQ[c]):
            issue_q(); order.append(-1)
        last = max(i for i, x in enumerate(order) if x == c)
        a(f"s_waitcnt vmcnt({len(order) - 1 - last})")
        ts(f"w{c}", grp=1)
        a("s_barrier")
    if NQ[7]:
        a("s_barrier")
        for i in range(NQ[7]): issue_q()
    a(f"s_cmp_lg_u32 s{sW}, 0")
    a("s_cbranch_scc1 L_pollgo_done")
    poll(a, "L_pollgo", vZ, 1, 0, DBG, 1, atomic=False)
    a("s_waitcnt vmcnt(0)")
    ts("h_wq", grp=1)
    a("s_barrier")
    def poll_mask():
        set_exec(a, "0xf", 0)
        flag_read(a, vP, WS)
        a("s_waitcnt vmcnt(0)")
        a("v_readlane_b32 s4, v15, 0")
        a("v_readlane_b32 s5, v15, 1")
        a("v_readlane_b32 s6, v15, 2")
        a("v_readlane_b32 s7, v15, 3")
        a("s_and_b32 s4, s4, s5")
        a("s_and_b32 s6, s6, s7")
        a("s_and_b32 s4, s4, s6")
        a("s_lshl_b32 s5, s4, 16")
        a("s_or_b32 s4, s4, s5")
        a(f"s_lshr_b32 s4, s4, s{sB}")
        a("s_and_b32 s4, s4, 0xffff")
        a("s_cmp_eq_u32 s4, 0xffff")
        a("s_cselect_b32 s4, 0x7ffff, s4")
        a("v_mov_b32 v15, s4")
        a(f"ds_write_b32 v{vM}, v15")
        set_exec(a, HI, HI)
    if PREPOLL:
        a(f"s_sleep {PREPOLL}")
        poll_mask()
    else:
        a(f"ds_write_b32 v{vM}, v{vZ}")
        a("s_mov_b32 s4, 0")
    a("s_waitcnt lgkmcnt(0)")
    a("s_barrier")
    a(f"s_mov_b32 s{sCNT}, 0x100000")
    a.lab("L_hpoll")
    a("s_cmp_eq_u32 s4, 0x7ffff")
    a("s_cbranch_scc1 L_hpoll_done")
    a(f"s_sub_u32 s{sCNT}, s{sCNT}, 1")
    a("s_cbranch_scc1 L_hpoll_giveup")
    poll_mask()
    if SLEEP: a(f"s_sleep {SLEEP}")
    a("s_branch L_hpoll")
    a.lab("L_hpoll_giveup")
    a("v_mov_b32 v15, 0x7ffff")
    a(f"ds_write_b32 v{vM}, v15")
    a.lab("L_hpoll_done")
    ts("h_all", grp=1)
    a("v_lshrrev_b32 v16, 4, v0")
    a(f"v_mul_u32_u24 v{vWo}, 896, v16")
    a("v_lshlrev_b32 v16, 2, v16")
    a("v_and_b32 v17, 15, v0")
    a("v_xor_b32 v16, v16, v17")
    a(f"v_lshl_add_u32 v{vWo}, v16, 4, v{vWo}")
    a(f"s_mul_i32 s{sWoS}, s{sCS4}, 224")
    a(f"s_and_b32 s{sWoS}, s{sWoS}, 0xffffffc0")
    a(f"s_mul_i32 s3, s{sW}, {28*3584}")
    a(f"s_add_u32 s{sWoS}, s{sWoS}, s3")
    a(f"s_mul_i32 s3, s{sW}, {28*1024}")
    a(f"s_add_u32 m0, s3, {L_WO}")
    a(f"s_mov_b32 s{sIT}, 28")
    a("s_sleep 16")
    a.lab("L_wo")
    a("s_sleep 3")
    a(f"buffer_load_dwordx4 v{vWo}, {sr(WO)}, s{sWoS} offen lds")
    a("s_add_u32 m0, m0, 1024")
    a(f"s_add_u32 s{sWoS}, s{sWoS}, 3584")
    a(f"s_sub_u32 s{sIT}, s{sIT}, 1")
    a(f"s_cmp_lg_u32 s{sIT}, 0")
    a("s_cbranch_scc1 L_wo")
    a(f"s_lshl_b32 s3, s{sT3}, {FSH}")
    a(f"s_add_u32 s3, s3, {FL_OFF + (256 << FSH)}")
    a(f"v_mov_b32 v{vP}, s3")
    a(f"s_lshl_b32 s4, s{sW}, 2")
    a("s_lshl_b32 s4, 15, s4")
    a(f"s_lshl_b32 s3, s{sT3}, 2")
    a(f"s_add_u32 s3, s3, s{sW}")
    a("s_lshl_b32 s3, s3, 13")
    a(f"s_add_u32 s3, s3, {O_OFF}")
    a(f"s_add_u32 s{sA}, s3, 4096")
    a(f"s_lshl_b32 s{sBb}, s{sW}, 13")
    a(f"s_add_u32 s{sBb}, s{sBb}, {L_CMB}")
    a(f"v_add_u32 v{vM}, s{sBb}, v1")
    a("s_waitcnt vmcnt(0) lgkmcnt(0)")
    ts("h_wo", grp=1)
    a("s_barrier")
    poll(a, "L_poll2", vP, 1, 0, WS, "s4")
    ts("h_poll2", grp=1)
    for f in range(8):
        a(f"buffer_load_dwordx4 {vr(32+4*f,4)}, v1, {sr(WS)}, {'s3' if f < 4 else 's%d' % sA} offen offset:{1024*(f%4)} sc1")
    a("s_barrier")
    for f in range(8):
        a(f"s_waitcnt vmcnt({7-f})")
        a(f"ds_write_b128 v{vM}, {vr(32+4*f,4)} offset:{1024*f}")
    a("s_waitcnt lgkmcnt(0)")
    ts("h_stage", grp=1)
    a("s_barrier")
    if TS and TSG == 1: ts.dump()
    a("s_endpgm")

def kernel(a):
    name = NAME + "_kernel"
    a.raw(f".globl {name}")
    a.raw(".p2align 8")
    a.raw(f".type {name},@function")
    a.lab(name)
    ts = Stamps(a)
    ts("start")
    a("s_cmp_ge_u32 s2, 256")
    a("s_cbranch_scc1 L_end")
    a("s_load_dwordx8 s[4:11], s[0:1], 0")
    a("s_load_dwordx4 s[12:15], s[0:1], 32")
    a("v_lshrrev_b32 v1, 6, v0")
    a("v_and_b32 v0, 63, v0")
    a(f"v_readfirstlane_b32 s{sA}, v1")
    decode_hb(a)
    a(f"s_and_b32 s{sW}, s{sA}, 3")
    a(f"s_lshl_b32 s{sT}, s{sB}, 2")
    a(f"s_and_b32 s{sT3}, s{sH}, 3")
    a(f"s_add_u32 s{sT3}, s{sT3}, s{sT}")
    a(f"s_add_u32 s{sT}, s{sT}, s{sW}")
    a(f"s_lshr_b32 s{sCS4}, s{sH}, 2")
    a(f"s_cmp_lt_u32 s{sA}, 4")
    a("s_cbranch_scc1 L_compute")
    helper(a, ts)
    a.lab("L_compute")
    t0, t1, t2, t3, t4, t5 = vT
    a("s_waitcnt lgkmcnt(0)")
    srd(a, WS, 14, 15, WS_BYTES)
    srd(a, DBG, 12, 13, 256)
    a("v_mov_b32 v250, 1")
    a("v_mov_b32 v251, 0")
    a(f"v_lshlrev_b32 v252, {FSH}, v0")
    a(f"s_lshl_b32 s{sLD}, s{sW}, 3")
    a(f"s_or_b32 s{sLD}, s{sLD}, s2")
    a(f"s_cmp_ge_u32 s{sLD}, 8")
    a("s_cbranch_scc1 L_nocand")
    set_exec(a, 1, 0)
    a(f"buffer_atomic_add v250, v251, {sr(DBG)}, 0 offen offset:128 sc0 sc1")
    set_exec(a, HI, HI)
    a.lab("L_nocand")
    a("v_lshlrev_b32 v1, 4, v0")
    a("v_and_b32 v15, 3, v0")
    a("v_and_b32 v2, 31, v0")
    a(f"v_lshlrev_b32 v{vV0}, 4, v2")
    a("v_lshlrev_b32 v2, 7, v2")
    a("v_bfe_u32 v3, v0, 1, 3")
    a("v_lshrrev_b32 v4, 5, v0")
    a(f"v_mul_u32_u24 v{vV1}, {V_PLANE}, v4")
    a(f"v_add_u32 v{vV0}, v{vV0}, v{vV1}")
    a("v_xor_b32 v3, v3, v4")
    a("v_lshl_add_u32 v2, v3, 4, v2")
    a(f"s_lshl_b32 s3, s{sW}, 14")
    a(f"s_add_u32 s3, s3, {L_XR}")
    a("v_add_u32 v2, s3, v2")
    a("v_xor_b32 v3, 32, v2")
    a("v_xor_b32 v5, 96, v2")
    a(f"v_bfe_u32 v{t0}, v0, 2, 2")
    a(f"v_lshl_add_u32 v{t1}, v4, 3, v{t0}")
    a("v_xor_b32 v4, 64, v2")
    a(f"v_bfe_u32 v{t2}, v0, 4, 1")
    a(f"v_lshlrev_b32 v{t2}, 5, v{t2}")
    a(f"v_lshrrev_b32 v{t3}, 1, v15")
    a(f"v_and_b32 v{t4}, 1, v15")
    a(f"v_lshl_add_u32 v{t3}, v{t4}, 1, v{t3}")
    a(f"v_lshl_add_u32 v{t3}, v{t3}, 3, v{t2}")
    a(f"v_lshl_add_u32 v{t4}, v15, 3, v{t2}")
    a(f"v_lshl_add_u32 v{vQR}, v{t1}, 6, v{t3}")
    a(f"v_add_u32 v{vQR}, {L_WQ}, v{vQR}")
    a(f"s_cmp_lt_u32 s{sH}, 7")
    a("s_cselect_b64 vcc, -1, 0")
    a(f"v_cndmask_b32 v{t3}, v{t4}, v{t3}, vcc")
    a(f"v_lshrrev_b32 v{t0}, 1, v{t0}")
    a(f"v_lshl_add_u32 v{t3}, v{t0}, 6, v{t3}")
    a(f"v_lshl_add_u32 v{vWR[0]}, v{t1}, 7, v{t3}")
    a(f"v_xor_b32 v{vWR[1]}, 64, v{vWR[0]}")
    mask_addr(a, vMk)
    a(f"s_lshl_b32 s3, 1, s{sB}")
    a(f"v_mov_b32 v{vOne}, s3")
    a(f"s_lshl_b32 s3, s{sH}, 4")
    a(f"s_add_u32 s3, s3, s{sW}")
    a(f"v_lshl_add_u32 v{vP1}, v0, 2, s3")
    a(f"v_lshlrev_b32 v{vP1}, {FSH}, v{vP1}")
    a(f"v_add_u32 v{vP1}, {FL_OFF}, v{vP1}")
    a(f"s_lshl_b32 s{sA}, s{sT}, {FSH}")
    a(f"s_add_u32 s{sA}, s{sA}, {FL_OFF + (256 << FSH)}")
    a(f"v_mov_b32 v{vFl2}, s{sA}")
    a(f"v_lshrrev_b32 v{vFl}, 3, v0")
    a(f"v_mul_u32_u24 v{vFl}, {V_PLANE}, v{vFl}")
    a(f"v_and_b32 v{t0}, 7, v0")
    a(f"v_lshl_add_u32 v{vFl}, v{t0}, 4, v{vFl}")
    a(f"v_cmp_eq_u32 vcc, 0, v{t0}")
    a(f"v_mov_b32 v{t1}, 0x3f803f80")
    a("s_nop 0")
    for r in range(4):
        a(f"v_cndmask_b32 v{216+r}, 0, v{t1}, vcc")
    srd(a, OUT, 10, 11, OUT_BYTES)
    srd(a, KVS, 14, 15, KV_BYTES)
    def rd(c, i):
        a(f"ds_read_b128 {vr(XF+16*c+4*i,4)}, v{vXR[i]} offset:{(c%4)*4096}")
        for p in range(2):
            for r in range(2):
                a(f"ds_read_b64_tr_b16 {vr(WF+8*i+4*p+2*r,2)}, v{vWR[p]} offset:{L_WKV + (c*4+i)*2048 + r*512}")
    def phase1a(kind):
        def mm(c, i):
            x = vr(XF+16*c+4*i, 4)
            first = (c == 0 and i == 0)
            for p, acc in ((0, A0), (1, A1)):
                w = vr(WF+8*i+4*p, 4)
                if kind == "K": mfma(a, vr(acc,16), w, x, "0" if first else vr(acc,16))
                else: mfma(a, vr(acc,16), x, w, "0" if first else vr(acc,16))
        for c in range(7):
            a("s_barrier")
            if c == 0: ts("c0")
            rd(c, 0); rd(c, 1)
            if c == 0:
                a("s_waitcnt vmcnt(0)")
                a(f"v_readfirstlane_b32 s{sLD}, v250")
                a(f"s_mov_b32 s3, {FL_OFF}")
                a(f"s_cmp_lg_u32 s{sLD}, 0")
                a(f"s_cbranch_scc1 L_noclear{kind}")
                for i in range(5):
                    a(f"buffer_store_dword v251, v252, {sr(WS)}, s3 offen sc1")
                    a(f"s_add_u32 s3, s3, {64 << FSH}")
                a.lab(f"L_noclear{kind}")
            if c == 4:
                a(f"s_cmp_lg_u32 s{sLD}, 0")
                a(f"s_cbranch_scc1 L_nogo{kind}")
                a("v_mov_b32 v250, 1")
                a("s_waitcnt vmcnt(0)")
                set_exec(a, 1, 0)
                a(f"buffer_store_dword v250, v251, {sr(DBG)}, 0 offen sc1")
                set_exec(a, HI, HI)
                a.lab(f"L_nogo{kind}")
            if c > 0: mm(c-1, 2)
            rd(c, 2)
            if c > 0: mm(c-1, 3)
            a("s_waitcnt lgkmcnt(10)")
            rd(c, 3)
            mm(c, 0)
            a("s_waitcnt lgkmcnt(10)")
            mm(c, 1)
            a("s_waitcnt lgkmcnt(0)")
        mm(6, 2); mm(6, 3)
        ts("kv_mm")
        a(f"s_lshl_b32 s{sKV}, s{sT}, 16")
        if kind == "K":
            a(f"s_lshl_b32 s3, s{sH}, 12")
            a(f"s_add_u32 s3, s3, s{sKV}")
            a("s_nop 7")
        else:
            a(f"s_mul_i32 s3, s{sH}, {V_LINE}")
            a(f"s_add_u32 s3, s3, s{sKV}")
            a(f"s_add_u32 s3, s3, {V_BASE - 7*V_LINE}")
            a(f"s_add_u32 s{sA}, s3, {2*V_PLANE}")
            a(f"s_cmp_lt_u32 s{sH}, 14")
            a(f"s_cselect_b32 s{KVS+2}, {KV_BYTES}, 0")
            set_exec(a, HI, 0)
            a(f"buffer_store_dwordx4 v[216:219], v{vFl}, {sr(KVS)}, s3 offen offset:1024 sc1")
            set_exec(a, HI, HI)
        for p, acc in ((0, A0), (1, A1)):
            for f in range(2):
                for i in range(4):
                    a(f"v_cvt_pk_bf16_f32 v{PK+8*p+4*f+i}, v{acc+8*f+2*i}, v{acc+8*f+2*i+1}")
                d = vr(PK+8*p+4*f, 4)
                if kind == "K":
                    a(f"buffer_store_dwordx4 {d}, v1, {sr(KVS)}, s3 offen offset:{2048*p+1024*f} sc1")
                else:
                    a(f"buffer_store_dwordx4 {d}, v{vV0}, {sr(KVS)}, {'s3' if f == 0 else 's%d' % sA} offen offset:{512*p} sc1")
    a(f"s_cmp_lt_u32 s{sH}, 7")
    a("s_cbranch_scc0 L_vline")
    phase1a("K")
    a("s_branch L_q")
    a.lab("L_vline")
    phase1a("V")
    a.lab("L_q")
    ts("kv_st")
    if NQ[7]: a("s_barrier")
    a(f"s_mul_i32 s4, s{sH}, 56")
    a("s_lshr_b32 s5, s4, 4")
    a("s_lshl_b32 s5, s5, 9")
    a(f"v_add_u32 v{vKo}, s5, v1")
    a("s_lshr_b32 s4, s4, 1")
    a(f"v_and_b32 v{t0}, 31, v0")
    a(f"v_add_u32 v{t1}, s4, v{t0}")
    a(f"v_lshrrev_b32 v{t2}, 6, v{t1}")
    a(f"v_lshl_add_u32 v{t1}, v{t2}, 3, v{t1}")
    a("s_lshr_b32 s5, s4, 6")
    a("s_mul_i32 s5, s5, 72")
    a("s_add_u32 s5, s5, 36")
    a(f"v_add_u32 v{t2}, s5, v{t0}")
    a(f"v_cmp_gt_u32 vcc, 28, v{t0}")
    a(f"v_add_u32 v{vV1}, {V_BASE}, v{vV1}")
    a("s_nop 0")
    a(f"v_cndmask_b32 v{t1}, v{t2}, v{t1}, vcc")
    a(f"v_lshl_add_u32 v{vV0}, v{t1}, 4, v{vV1}")
    a(f"v_add_u32 v{vV1}, {2*V_PLANE}, v{vV0}")
    for r in range(220, 240):
        a(f"v_mov_b32 v{r}, 0")
    a(f"s_mov_b32 s{KVS+2}, {KV_BYTES}")
    a("s_barrier")
    ts("b7")
    def rdq(s):
        for r in range(2):
            a(f"ds_read_b64_tr_b16 {vr(WF+4*(s%8)+2*r,2)}, v{vQR} offset:{s*1024 + r*256}")
    for s in range(6): rdq(s)
    for s in range(28):
        if s + 6 < 28:
            rdq(s + 6)
            a("s_waitcnt lgkmcnt(12)")
        else:
            a(f"s_waitcnt lgkmcnt({2*(27-s)})")
        mfma(a, vr(AQ,16), vr(WF+4*(s%8),4), vr(XF+4*s,4), "0" if s == 0 else vr(AQ,16))
        if s + 1 == FLAGPOS:
            a("s_waitcnt vmcnt(0)")
            set_exec(a, "0xf", 0)
            a(f"buffer_atomic_or v{vOne}, v{vP1}, {sr(WS)}, 0 offen sc1")
            set_exec(a, HI, HI)
            ts("kv_flag")
    ts("q_mm")
    a(f"s_mov_b32 s3, {f32bits(QSCALE):#x}")
    a(f"s_lshl_b32 s{sA}, s{sW}, 11")
    a(f"s_add_u32 s{sA}, s{sA}, {L_CMB}")
    a(f"v_add_u32 v{t0}, s{sA}, v1")
    for r in range(176, 184):
        a(f"v_mov_b32 v{r}, 0")
    for r in range(16):
        a(f"v_mul_f32 v{AQ+r}, s3, v{AQ+r}")
    Q3 = Q + 24
    for i in range(8):
        a(f"v_cvt_pk_bf16_f32 v{Q3+i}, v{AQ+2*i}, v{AQ+2*i+1}")
    a(f"s_bitcmp1_b32 s{sH}, 0")
    a("s_cselect_b32 exec_lo, -1, 0")
    a("s_mov_b32 exec_hi, 0")
    a(f"v_mov_b32 v{Q3}, 0")
    a(f"v_mov_b32 v{Q3+1}, 0")
    a("s_cselect_b32 exec_hi, 0, -1")
    a("s_mov_b32 exec_lo, 0")
    a(f"v_mov_b32 v{Q3+6}, 0")
    a(f"v_mov_b32 v{Q3+7}, 0")
    set_exec(a, HI, HI)
    a(f"ds_write_b128 v{t0}, {vr(Q3,4)}")
    a(f"ds_write_b128 v{t0}, {vr(Q3+4,4)} offset:1024")
    for i in range(3):
        a(f"s_add_u32 s{sA}, s{sW}, {1+i}")
        a(f"s_and_b32 s{sA}, s{sA}, 3")
        a(f"s_lshl_b32 s{sA}, s{sA}, 11")
        a(f"s_add_u32 s{sA}, s{sA}, {L_CMB}")
        a(f"v_add_u32 v{vT[1+i]}, s{sA}, v1")
    for r in range(4):
        a(f"v_mov_b32 v{KV+48+12+r}, 0")
    a(f"s_mov_b32 s{sRDY}, 0")
    a(f"s_mov_b32 s{sTODO}, 0x7ffff")
    a("s_waitcnt lgkmcnt(0)")
    a("s_barrier")
    for i in range(3):
        a(f"ds_read_b128 {vr(Q+8*i,4)}, v{vT[1+i]}")
        a(f"ds_read_b128 {vr(Q+8*i+4,4)}, v{vT[1+i]} offset:1024")
    ts("q_done")
    def ldk(slot):
        for f in range(2):
            a(f"buffer_load_dwordx4 {vr(KV+16*slot+4*f,4)}, v{vKo}, {sr(KVS)}, s{sKV} offen offset:{1024*f} sc1")
    def ldv(slot):
        a(f"buffer_load_dwordx4 {vr(KV+16*slot+8,4)}, v{vV0}, {sr(KVS)}, s{sKV} offen sc1")
        a(f"buffer_load_dwordx4 {vr(KV+16*slot+12,4)}, v{vV1}, {sr(KVS)}, s{sKV} offen sc1")
    npick = [0]
    def pick_ops():
        n = npick[0]; npick[0] += 1
        def p0(): a(f"s_and_b32 s{sAV}, s{sRDY}, s{sTODO}")
        def p1():
            a(f"s_cbranch_scc0 L_slow{n}")
            a.lab(f"L_back{n}")
        def p2(): a(f"s_ff1_i32_b32 s{sAV}, s{sAV}")
        def p3(): a(f"s_bitset0_b32 s{sTODO}, s{sAV}")
        def p4(): a(f"s_lshl2_add_u32 s{sBb}, s{sAV}, s{sT}")
        def p5(): a(f"s_and_b32 s{sBb}, s{sBb}, 63")
        def p6(): a(f"s_and_b32 s{sAV}, s{sAV}, 16")
        def p7(): a(f"s_lshl2_add_u32 s{sBb}, s{sAV}, s{sBb}")
        def p8(): a(f"s_lshl_b32 s{sKV}, s{sBb}, 16")
        return [p0, p1, p2, p3, p4, p5, p6, p7, p8]
    for sl in range(3):
        for f in pick_ops(): f()
        ldk(sl); ldv(sl)
        if sl == 0: ts("pick0")
    for f in pick_ops(): f()
    for r in range(184, 220):
        a(f"v_mov_b32 v{r}, 0")
    for r in range(4):
        a(f"v_mov_b32 v{P+4+r}, 0")
    a(f"s_mov_b32 s{sIT}, 3")
    vC = vT[1:4]; vCR = vT[4]
    a("s_waitcnt lgkmcnt(0)")
    for i in range(3):
        a(f"s_add_u32 s3, s{sW}, {1+i}")
        a("s_and_b32 s3, s3, 3")
        a("s_mul_i32 s3, s3, 12288")
        a(f"s_add_u32 s3, s3, {L_CMB + 4096*i}")
        a(f"v_add_u32 v{vC[i]}, s3, v1")
    a(f"s_mul_i32 s3, s{sW}, 12288")
    a(f"s_add_u32 s3, s3, {L_CMB}")
    a(f"v_add_u32 v{vCR}, s3, v1")
    a("s_waitcnt vmcnt(8)")
    ts("kv0")
    def mS(part, t):
        slot = (t // 4) % 4; qt = t % 4
        d = vr(S[t % 2], 16)
        mfma(a, d, vr(KV+16*slot+4*part,4), vr(Q+8*qt+4*part,4), "0" if part == 0 else d)
    def mPV(part, t):
        slot = (t // 4) % 4; qt = t % 4
        d = vr(O + 16*qt, 16)
        mfma(a, d, vr(KV+16*slot+8+4*part,4), vr(P+4*part,4), d)
    def EC(t, g):
        s = S[t % 2] + 4*g
        for r in range(4):
            a(f"v_exp_f32 v{s+r}, v{s+r}")
        a(f"v_cvt_pk_bf16_f32 v{P+2*g}, v{s}, v{s+1}")
        a(f"v_cvt_pk_bf16_f32 v{P+2*g+1}, v{s+2}, v{s+3}")
    mS(0, 0); mS(1, 0)
    ts("att0", cyc=True)
    a("s_nop 7")
    a("s_nop 3")
    a.raw(".p2align 6")
    a.lab("L_loop")
    def tile(j, last=False):
        fs = [None] * 16
        if not last:
            fs[11] = lambda: a("s_waitcnt vmcnt(8)")
            po = pick_ops()
            for k, f in enumerate(po): fs[2 + k] = f
            if j == 2:
                fs[14] = lambda: a(f"s_sub_u32 s{sIT}, s{sIT}, 1")
        else:
            def wr(i, g):
                return lambda: a(f"ds_write_b128 v{vC[i]}, {vr(O+16*i+4*g,4)} offset:{1024*g}")
            for i in range(3):
                fs[4*(i+1) + 3] = wr(i, 0)
                if i < 2:
                    for g in range(1, 4): fs[4*(i+2) + g - 1] = wr(i, g)
        for st in range(4):
            t = 4*j + st
            f = fs[4*st:4*st+4]
            if not (last and st == 3): mS(0, t+1)
            if st == 0 and not last: ldk((j + 3) % 4)
            if f[0]: f[0]()
            EC(t, 0)
            mPV(1, (t - 1) % 16)
            if st == 0 and not last: ldv((j + 3) % 4)
            if f[1]: f[1]()
            EC(t, 1)
            if not (last and st == 3): mS(1, t+1)
            if f[2]: f[2]()
            EC(t, 2)
            mPV(0, t)
            if f[3]: f[3]()
            EC(t, 3)
    for j in range(3): tile(j)
    a("s_cbranch_scc1 L_last")
    tile(3)
    a("s_branch L_loop")
    a.lab("L_last")
    tile(3, last=True)
    a(f"ds_write_b128 v{vC[2]}, {vr(O+32+4,4)} offset:1024")
    a(f"ds_write_b128 v{vC[2]}, {vr(O+32+8,4)} offset:2048")
    mPV(1, 15)
    a(f"ds_write_b128 v{vC[2]}, {vr(O+32+12,4)} offset:3072")
    ts("att1", cyc=True)
    ts("att1")
    a(f"s_mov_b32 s4, {f32bits(2.0**62):#x}")
    a(f"s_mov_b32 s5, {f32bits(2.0**-62):#x}")
    a("s_waitcnt vmcnt(0) lgkmcnt(0)")
    a("s_barrier")
    R = O
    F = O + 48
    for i in range(3):
        for g in range(4):
            a(f"ds_read_b128 {vr(R+16*i+4*g,4)}, v{vCR} offset:{4096*i+1024*g}")
    a(f"s_lshl_b32 s3, s{sT}, 4")
    a(f"s_add_u32 s3, s3, s{sH}")
    a("s_lshl_b32 s3, s3, 11")
    a(f"s_add_u32 s3, s3, {O_OFF}")
    for i in range(3):
        a(f"s_waitcnt lgkmcnt({8-4*i})")
        for r in range(16):
            a(f"v_add_f32 v{F+r}, v{F+r}, v{R+16*i+r}")
    a(f"v_cmp_nge_f32 s[6:7], s4, v{F+12}")
    a(f"v_cmp_nle_f32 vcc, s5, v{F+12}")
    a("s_or_b64 s[6:7], s[6:7], vcc")
    a("s_cmp_lg_u32 s7, 0")
    a("s_cbranch_scc1 L_fallback")
    a.lab("L_norm")
    a(f"v_mov_b32 v{t0}, v{F+12}")
    a(f"v_mov_b32 v{t1}, v{F+12}")
    a("s_nop 1")
    a(f"v_permlane32_swap_b32 v{t0}, v{t1}")
    a("s_nop 1")
    a(f"v_rcp_f32 v{t1}, v{t1}")
    set_exec(a, 0, HI)
    a(f"v_mov_b32 v{F+12}, 0")
    set_exec(a, HI, HI)
    for r in range(16):
        a(f"v_mul_f32 v{F+r}, v{F+r}, v{t1}")
    PO = 240
    for i in range(8):
        a(f"v_cvt_pk_bf16_f32 v{PO+i}, v{F+2*i}, v{F+2*i+1}")
    a(f"buffer_store_dwordx4 {vr(PO,4)}, v1, {sr(WS)}, s3 offen sc1")
    a(f"buffer_store_dwordx4 {vr(PO+4,4)}, v1, {sr(WS)}, s3 offen offset:1024 sc1")
    ts("o_st")
    WOF, OF, ACC, D = 40, 168, 24, 232
    a(f"s_and_b32 s3, s{sCS4}, 1")
    a("s_lshl_b32 s3, s3, 5")
    a(f"s_mul_i32 s{sA}, s{sW}, 56")
    a(f"s_add_u32 s3, s3, s{sA}")
    a(f"v_bfe_u32 v{t0}, v0, 4, 1")
    a(f"v_lshlrev_b32 v{t0}, 5, v{t0}")
    a(f"v_and_b32 v{t1}, 3, v0")
    a(f"v_lshl_add_u32 v{t0}, v{t1}, 3, v{t0}")
    a(f"v_add_u32 v{t0}, s3, v{t0}")
    a(f"v_and_b32 v{t0}, 255, v{t0}")
    a(f"v_bfe_u32 v{t1}, v0, 2, 2")
    a(f"v_lshlrev_b32 v{t2}, 6, v{t1}")
    a(f"v_xor_b32 v{t0}, v{t0}, v{t2}")
    a(f"v_lshl_add_u32 v{t2}, v{t1}, 8, v{t0}")
    a(f"v_lshrrev_b32 v{t1}, 5, v0")
    a(f"v_lshl_add_u32 v{t0}, v{t1}, 10, v{t2}")
    a(f"v_add_u32 v{t1}, 0x10000, v{t0}")
    a(f"v_add_u32 v{t2}, 0x10000, v{t2}")
    def rdwo(hh):
        for u in range(2):
            for r in range(2):
                off = L_WO + (28*hh + 16*u + 8*r) * 256
                base = t0
                if off >= 0x10000:
                    off -= 0x10000; base = t1
                if hh == 15 and u == 1 and r == 1:
                    base = t2
                a(f"ds_read_b64_tr_b16 {vr(WOF+8*hh+4*u+2*r,2)}, v{base} offset:{off}")
    a(f"s_lshl_b32 s3, 1, s{sH}")
    a(f"v_mov_b32 v{vOne}, s3")
    for hh in range(6): rdwo(hh)
    a("s_waitcnt vmcnt(0)")
    set_exec(a, 1, 0)
    a(f"buffer_atomic_or v{vOne}, v{vFl2}, {sr(WS)}, 0 offen sc1")
    set_exec(a, HI, HI)
    ts("o_flag")
    for hh in range(6, 16): rdwo(hh)
    a(f"v_add_u32 v{t3}, {L_CMB}, v1")
    a(f"v_and_b32 v{t4}, 31, v0")
    a(f"v_mul_u32_u24 v{t4}, 896, v{t4}")
    a(f"v_lshrrev_b32 v{t5}, 5, v0")
    a(f"v_lshl_add_u32 v{t4}, v{t5}, 4, v{t4}")
    a(f"s_mul_i32 s{sKV}, s{sT3}, 28672")
    a(f"s_lshl_b32 s{sBb}, s{sCS4}, 2")
    a(f"s_add_u32 s{sBb}, s{sBb}, s{sW}")
    a(f"s_mul_i32 s{sBb}, s{sBb}, 56")
    a(f"s_add_u32 s{sKV}, s{sKV}, s{sBb}")
    a("s_barrier")
    a("s_barrier")
    ts("o_ld")
    NR = 16
    for f in range(12):
        a(f"ds_read_b128 {vr(OF+4*(f%NR),4)}, v{t3} offset:{1024*f}")
    for f in range(32):
        if f + 12 < 32:
            a(f"ds_read_b128 {vr(OF+4*((f+12)%NR),4)}, v{t3} offset:{1024*(f+12)}")
            a("s_waitcnt lgkmcnt(12)")
        else:
            a(f"s_waitcnt lgkmcnt({31-f})")
        mfma(a, vr(ACC,16), vr(WOF+4*f,4), vr(OF+4*(f%NR),4), "0" if f == 0 else vr(ACC,16))
    a("s_nop 7")
    a("s_nop 3")
    for i in range(8):
        a(f"v_cvt_pk_bf16_f32 v{D+i}, v{ACC+2*i}, v{ACC+2*i+1}")
    a(f"v_permlane32_swap_b32 v{D}, v{D+2}")
    a(f"v_permlane32_swap_b32 v{D+1}, v{D+3}")
    a(f"v_permlane32_swap_b32 v{D+4}, v{D+6}")
    a(f"v_permlane32_swap_b32 v{D+5}, v{D+7}")
    a(f"buffer_store_dwordx4 {vr(D,4)}, v{t4}, {sr(OUT)}, s{sKV} offen")
    set_exec(a, HI, 0)
    a(f"buffer_store_dwordx4 {vr(D+4,4)}, v{t4}, {sr(OUT)}, s{sKV} offen offset:32")
    set_exec(a, 0, HI)
    a(f"buffer_store_dwordx2 {vr(D+4,2)}, v{t4}, {sr(OUT)}, s{sKV} offen offset:32")
    ts("out_st")
    if TS:
        a("s_waitcnt vmcnt(0)")
        ts("end")
    if TS and TSG == 0: ts.dump()
    a.lab("L_end")
    a("s_endpgm")
    for n in range(npick[0]):
        a.lab(f"L_slow{n}")
        a(f"ds_read_b32 v15, v{vMk}")
        a("s_waitcnt lgkmcnt(0)")
        a(f"v_readfirstlane_b32 s{sRDY}, v15")
        a("s_nop 0")
        a(f"s_and_b32 s{sAV}, s{sRDY}, s{sTODO}")
        a(f"s_cbranch_scc0 L_slow{n}")
        a(f"s_branch L_back{n}")
    a.lab("L_fallback")
    a(f"s_mov_b32 s{sA}, s3")
    kv_poll_addr(a, vP1, t0)
    a(f"s_lshl_b32 s6, s{sW}, {FSH}")
    a(f"v_subrev_u32 v{vP1}, s6, v{vP1}")
    for w in range(4):
        poll(a, f"L_pollfb{w}", vP1, "0xf", 0, WS, "0xffff", off=w << FSH)
    a(f"s_mov_b32 s3, s{sA}")
    a(f"v_mov_b32 v{t0}, 0xff800000")
    a(f"s_mov_b32 s{sKV}, 0")
    SS = S0
    a.lab("L_fb1")
    ldk(0)
    a(f"s_add_u32 s{sKV}, s{sKV}, 0x10000")
    a("s_waitcnt vmcnt(0)")
    mfma(a, vr(SS,16), vr(KV,4), vr(Q3,4), "0")
    mfma(a, vr(SS,16), vr(KV+4,4), vr(Q3+4,4), vr(SS,16))
    a("s_nop 15")
    for r in range(0, 16, 2):
        a(f"v_max3_f32 v{t0}, v{t0}, v{SS+r}, v{SS+r+1}")
    a(f"s_cmp_lt_u32 s{sKV}, {KV_BYTES}")
    a("s_cbranch_scc1 L_fb1")
    a(f"v_mov_b32 v{t1}, v{t0}")
    a("s_nop 1")
    a(f"v_permlane32_swap_b32 v{t0}, v{t1}")
    a("s_nop 1")
    a(f"v_max_f32 v{t0}, v{t0}, v{t1}")
    for r in range(16):
        a(f"v_mov_b32 v{F+r}, 0")
    a(f"s_mov_b32 s{sKV}, 0")
    a.lab("L_fb2")
    ldk(0); ldv(0)
    a(f"s_add_u32 s{sKV}, s{sKV}, 0x10000")
    a("s_waitcnt vmcnt(0)")
    mfma(a, vr(SS,16), vr(KV,4), vr(Q3,4), "0")
    mfma(a, vr(SS,16), vr(KV+4,4), vr(Q3+4,4), vr(SS,16))
    a("s_nop 15")
    for r in range(16):
        a(f"v_sub_f32 v{SS+r}, v{SS+r}, v{t0}")
    for r in range(16):
        a(f"v_exp_f32 v{SS+r}, v{SS+r}")
    a("s_nop 0")
    for i in range(8):
        a(f"v_cvt_pk_bf16_f32 v{P+i}, v{SS+2*i}, v{SS+2*i+1}")
    a("s_nop 1")
    mfma(a, vr(F,16), vr(KV+8,4), vr(P,4), vr(F,16))
    mfma(a, vr(F,16), vr(KV+12,4), vr(P+4,4), vr(F,16))
    a(f"s_cmp_lt_u32 s{sKV}, {KV_BYTES}")
    a("s_cbranch_scc1 L_fb2")
    a("s_nop 15")
    a("s_branch L_norm")
    if TS:
        open("stamps.txt", "w").write(",".join(ts.names))
    return name

def main():
    a = A()
    name = kernel(a)
    head = open(f"cdna_kernels/{NAME}.s.ref").read().split("; Override")[0]
    out = head
    out += f"; @launch grid=(256,1,1) block=(512,1,1) lds={LDS_BYTES}\n"
    out += '.amdgcn_target "amdgcn-amd-amdhsa--gfx950"\n.text\n'
    out += a.text()
    out += f""".section .rodata,"a"
.p2align 6
.amdhsa_kernel {name}
  .amdhsa_next_free_vgpr 256
  .amdhsa_next_free_sgpr 102
  .amdhsa_accum_offset 256
  .amdhsa_group_segment_fixed_size 0
  .amdhsa_kernarg_size 48
  .amdhsa_user_sgpr_count 2
  .amdhsa_user_sgpr_kernarg_segment_ptr 1
  .amdhsa_system_sgpr_workgroup_id_x 1
.end_amdhsa_kernel
"""
    o = [x for x in sys.argv[1:] if not x.startswith("--")]
    path = o[0] if o else f"cdna_kernels/{NAME}.s"
    open(path, "w").write(out)
main()
```

```python
import sys, struct, math

NAME = "standalone__softmax_full_mha__prompt"
FL_OFF = 5 << 20
O_OFF = 6 << 20
TS_OFF = 8 << 20
WS_BYTES = 268435456
X_BYTES = 2048 * 448 * 2
W_BYTES = 448 * 1344 * 2
WO_BYTES = 448 * 448 * 2
OUT_BYTES = 2048 * 448 * 2
KV_BYTES = 4 << 20
V_BASE = 28672
V_LINE = 1152
V_PLANE = 7 * V_LINE
QSCALE = 28 ** -0.5 * math.log2(math.e)

def opt(name, default):
    for arg in sys.argv:
        if arg.startswith(f"--{name}="):
            return int(arg.split("=")[1])
    return default
TS = "--ts" in sys.argv
TSG = opt("tsg", 0)
MAP = opt("maph", 3)
FSH = opt("fsh", 8)
FLAGPOS = opt("flagpos", 20)
NQ = [int(c) for c in "%08d" % opt("nq", 700)]
assert sum(NQ) == 7
SLEEP = opt("sleep", 1)
LA = opt("la", 2)
PF = opt("pf", 0)
ROT = opt("rot", 1)
PREPOLL = opt("prepoll", 1)

def f32bits(x):
    return struct.unpack("<I", struct.pack("<f", x))[0]

class A:
    def __init__(self):
        self.l = []
    def __call__(self, s):
        for line in s.strip("\n").split("\n"):
            self.l.append("    " + line.strip())
    def lab(self, n):
        self.l.append(n + ":")
    def raw(self, s):
        self.l.append(s)
    def text(self):
        return "\n".join(self.l) + "\n"

def vr(b, n, k="v"):
    return f"{k}[{b}:{b+n-1}]"
def sr(b):
    return f"s[{b}:{b+3}]"

def srd(a, d, lo, hi, nbytes):
    a(f"s_mov_b32 s{d}, s{lo}")
    a(f"s_and_b32 s{d+1}, s{hi}, 0xffff")
    a(f"s_mov_b32 s{d+2}, {nbytes}")
    a(f"s_mov_b32 s{d+3}, 0x20000")

HI = "0xffffffff"
def set_exec(a, lo, hi):
    if lo == HI and hi == HI:
        a("s_mov_b64 exec, -1")
    elif hi == 0 and lo in (1, "0xf"):
        a(f"s_mov_b64 exec, {int(str(lo), 0)}")
    else:
        a(f"s_mov_b32 exec_lo, {lo}")
        a(f"s_mov_b32 exec_hi, {hi}")

class Stamps:
    def __init__(self, a):
        self.a = a; self.idx = {}; self.names = []
    def __call__(self, name, cyc=False, grp=0):
        if not TS: return
        if name != "start" and grp != TSG: return
        nm = name + ("(cyc)" if cyc else "")
        if nm not in self.idx:
            self.idx[nm] = len(self.names); self.names.append(nm)
        b = 66 + 2 * self.idx[nm]
        assert b + 1 < 102
        self.a(f"s_memtime s[{b}:{b+1}]" if cyc else f"s_memrealtime s[{b}:{b+1}]")
    def dump(self):
        if not TS: return
        a = self.a
        a("s_waitcnt lgkmcnt(0)")
        a(f"s_lshl_b32 s3, s2, 2")
        a(f"s_add_u32 s3, s3, s{sW}")
        a(f"s_lshl_b32 s3, s3, 7")
        a(f"s_add_u32 s3, s3, {TS_OFF}")
        a("s_mov_b64 exec, 1")
        a("v_mov_b32 v2, 0")
        for i in range(18):
            a(f"v_mov_b32 v4, s{66+2*i}")
            a(f"buffer_store_dword v4, v2, {sr(WS)}, s3 offen offset:{4*i}")
            a("s_nop 1")
        a("s_waitcnt vmcnt(0)")

X, W, WO, OUT, DBG, WS, KVS = 16, 20, 24, 28, 32, 36, 40
sH, sB, sW, sT = 44, 45, 46, 47
sKC, sXB, sWB, sXM, sWM = 48, 49, 50, 51, 52
sRDY, sTODO, sAV, sRET = 48, 49, 50, 64
sA, sBb = 53, 54
sKV, sIT, sWQ, sWoS, sCNT = 55, 56, 57, 58, 59
sKQ, sLD = 60, 61
WQS = KVS
sT3, sCS4 = 62, 63
L_WKV, L_WQ, L_XR = 0, 57344, 86016
L_WO, L_CMB = 0, 114688
LDS_BYTES = 163840
vXR = [2, 3, 4, 5]
vWR = [6, 7]
vQR, vOne, vFl, vFl2, vP1, vMk = 8, 9, 10, 11, 12, 13
vKo, vV0, vV1 = 14, 16, 17
vT = [18, 19, 20, 21, 22, 23]
A0, A1 = 24, 40
AQ = A0
XF = 56
WF = 168
PK = 200
Q, S0, P, KV, O = 40, 72, 104, 112, 176
S = [S0, S0 + 16]

def decode_hb(a):
    nhg = 16 >> MAP
    lg = int(math.log2(nhg))
    a(f"s_and_b32 s{sH}, s2, {nhg-1}")
    a(f"s_lshl_b32 s{sH}, s{sH}, {MAP}")
    a(f"s_lshr_b32 s3, s2, 3")
    a(f"s_and_b32 s{sB}, s3, {(1<<MAP)-1}")
    a(f"s_add_u32 s{sH}, s{sH}, s{sB}")
    a(f"s_lshr_b32 s3, s3, {MAP}")
    a(f"s_and_b32 s{sB}, s2, 7")
    a(f"s_lshr_b32 s{sB}, s{sB}, {lg}")
    a(f"s_mul_i32 s{sB}, s{sB}, {32>>MAP}")
    a(f"s_add_u32 s{sB}, s{sB}, s3")

def mfma(a, d, x, y, c):
    a(f"v_mfma_f32_32x32x16_bf16 {d}, {x}, {y}, {c}")

def flag_read(a, vaddr, srdn, off=0):
    a("v_mov_b32 v15, 0")
    a(f"buffer_atomic_or v15, v{vaddr}, {sr(srdn)}, 0 offen offset:{off} sc0 sc1")

def poll(a, label, vaddr, lo, hi, srdn, smask, off=0, atomic=True):
    a(f"s_mov_b32 s{sCNT}, 0x100000")
    set_exec(a, lo, hi)
    a(f"s_branch {label}_in")
    a.lab(label)
    if SLEEP: a(f"s_sleep {SLEEP}")
    a.lab(label + "_in")
    if atomic: flag_read(a, vaddr, srdn, off)
    else: a(f"buffer_load_dword v15, v{vaddr}, {sr(srdn)}, 0 offen offset:{off} sc1")
    a(f"s_sub_u32 s{sCNT}, s{sCNT}, 1")
    a(f"s_cbranch_scc1 {label}_done")
    a("s_waitcnt vmcnt(0)")
    a(f"v_and_b32 v15, {smask}, v15")
    a(f"v_cmp_ne_u32 vcc, {smask}, v15")
    a(f"s_cbranch_vccnz {label}")
    a.lab(label + "_done")
    set_exec(a, HI, HI)

def kv_poll_addr(a, vd, t0):
    a(f"s_mul_i32 s4, s{sH}, 56")
    a("s_and_b32 s5, s4, 0xfffffff0")
    a(f"v_mov_b32 v{t0}, s5")
    a("s_add_u32 s5, s5, 62")
    a(f"v_writelane_b32 v{t0}, s5, 1")
    a("s_add_u32 s5, s4, 896")
    a(f"v_writelane_b32 v{t0}, s5, 2")
    a("s_add_u32 s5, s4, 950")
    a(f"v_writelane_b32 v{t0}, s5, 3")
    a(f"v_lshrrev_b32 v{t0}, 7, v{t0}")
    a(f"v_lshlrev_b32 v{t0}, {FSH+4}, v{t0}")
    a(f"s_and_b32 s3, s{sH}, 3")
    a(f"s_lshl2_add_u32 s3, s3, s{sW}")
    a(f"s_lshl_b32 s3, s3, {FSH}")
    a(f"s_add_u32 s3, s3, {FL_OFF}")
    a(f"v_add_u32 v{vd}, s3, v{t0}")

def mask_addr(a, vd):
    a(f"s_add_u32 s3, s{sW}, 3")
    a("s_and_b32 s3, s3, 3")
    a("s_mul_i32 s3, s3, 12288")
    a(f"s_add_u32 s3, s3, {L_CMB + 8192}")
    a(f"v_mov_b32 v{vd}, s3")

def helper(a, ts):
    vX = [2, 3, 4, 5]
    vW0, vW1, vWq = 6, 7, 8
    vZ, vOn, vP, vM, vWo, vF = 9, 10, 11, 12, 13, 14
    a("v_lshrrev_b32 v7, 3, v0")
    a("v_mul_u32_u24 v2, 896, v7")
    a("v_and_b32 v6, 7, v0")
    a("v_lshrrev_b32 v4, 4, v0")
    a("v_xor_b32 v3, v6, v4")
    a("v_lshl_add_u32 v2, v3, 4, v2")
    a("v_xor_b32 v3, 64, v2")
    a("v_add_u32 v3, 6144, v3")
    a("v_and_b32 v4, 1, v4")
    a("v_lshlrev_b32 v4, 2, v4")
    a("v_xor_b32 v6, v6, v4")
    a("v_mul_u32_u24 v7, 2688, v7")
    a(f"v_lshl_add_u32 v{vW0}, v6, 4, v7")
    a(f"v_add_u32 v{vW1}, {8*2688-1024}, v{vW0}")
    a("v_add_u32 v4, 12288, v2")
    a("v_add_u32 v5, 12288, v3")
    a(f"s_mul_i32 s{sXB}, s{sT}, 28672")
    a(f"s_mul_i32 s{sWQ}, s{sW}, 43008")
    a(f"s_lshl_b32 s{sWB}, s{sH}, 7")
    a(f"s_add_u32 s{sWB}, s{sWB}, s{sWQ}")
    a(f"s_add_u32 s{sWB}, s{sWB}, 896")
    a(f"s_lshl_b32 s{sXM}, s{sW}, 14")
    a(f"s_add_u32 s{sXM}, s{sXM}, {L_XR}")
    a(f"s_lshl_b32 s{sWM}, s{sW}, 11")
    a(f"s_lshl_b32 s3, s{sB}, 1")
    a(f"s_add_u32 s3, s3, s{sH}")
    a(f"s_mul_i32 s{sA}, s3, 37")
    a(f"s_lshr_b32 s{sA}, s{sA}, 8")
    a(f"s_mul_i32 s{sA}, s{sA}, 7")
    a(f"s_sub_u32 s{sKC}, s3, s{sA}")
    a(f"s_mov_b32 s{sKQ}, s{sKC}")
    a(f"s_mov_b32 s{X+2}, {X_BYTES}")
    a(f"s_mov_b32 s{X+3}, 0x20000")
    a(f"s_cmp_lt_u32 s{sH}, 14")
    a(f"s_cselect_b32 s{W+2}, {W_BYTES}, 0")
    a(f"s_mov_b32 s{W+3}, 0x20000")
    a("s_waitcnt lgkmcnt(0)")
    a(f"s_mov_b32 s{X}, s4")
    a(f"s_and_b32 s{X+1}, s5, 0xffff")
    a(f"s_mov_b32 s{W}, s6")
    a(f"s_and_b32 s{W+1}, s7, 0xffff")
    def adv_kc():
        a(f"s_add_u32 s{sKC}, s{sKC}, 1")
        a(f"s_cmp_eq_u32 s{sKC}, 7")
        a(f"s_cselect_b32 s{sKC}, 0, s{sKC}")
    def issue(c):
        a(f"s_mul_i32 s{sBb}, s{sKC}, 172032")
        a(f"s_add_u32 m0, s{sWM}, {L_WKV + c*8192}")
        a(f"s_add_u32 s{sBb}, s{sBb}, s{sWB}")
        a(f"buffer_load_dwordx4 v{vW0}, {sr(W)}, s{sBb} offen lds")
        a(f"buffer_load_dwordx4 v{vW1}, {sr(W)}, s{sBb} offen offset:1024 lds")
        a(f"s_lshl_b32 s{sA}, s{sKC}, 7")
        a(f"s_add_u32 m0, s{sXM}, {(c%4)*4096}")
        a(f"s_add_u32 s{sA}, s{sA}, s{sXB}")
        for q in range(4):
            a(f"buffer_load_dwordx4 v{vX[q]}, {sr(X)}, s{sA} offen offset:{1024*q} lds")
        adv_kc()
    for c in range(2): issue(c)
    ts("h_iss", grp=1)
    srd(a, WS, 14, 15, WS_BYTES)
    srd(a, DBG, 12, 13, 256)
    srd(a, WO, 8, 9, WO_BYTES)
    a("v_lshlrev_b32 v1, 4, v0")
    a("v_and_b32 v15, 3, v0")
    a(f"v_lshrrev_b32 v{vWq}, 2, v0")
    a(f"v_mul_u32_u24 v{vWq}, 2688, v{vWq}")
    a(f"v_lshl_add_u32 v{vWq}, v15, 4, v{vWq}")
    a(f"s_mul_i32 s3, s{sH}, 56")
    a("s_and_b32 s3, s3, 0xfffffff0")
    a(f"s_add_u32 s{sWQ}, s{sWQ}, s3")
    a(f"v_mov_b32 v{vZ}, 0")
    kv_poll_addr(a, vP, 16)
    mask_addr(a, vM)
    srd(a, WQS, 6, 7, W_BYTES)
    a(f"s_lshr_b32 s{sIT}, s{sWM}, 1")
    qn = [0]
    def issue_q():
        c = qn[0]; qn[0] += 1
        a(f"s_mul_i32 s{sBb}, s{sKQ}, 172032")
        a(f"s_add_u32 m0, s{sIT}, {L_WQ + c*4096}")
        a(f"s_add_u32 s{sBb}, s{sBb}, s{sWQ}")
        a(f"buffer_load_dwordx4 v{vWq}, {sr(WQS)}, s{sBb} offen lds")
        a(f"s_add_u32 s{sKQ}, s{sKQ}, 1")
        a(f"s_cmp_eq_u32 s{sKQ}, 7")
        a(f"s_cselect_b32 s{sKQ}, 0, s{sKQ}")
    order = [0]*6 + [1]*6
    for c in range(7):
        if c + 2 < 7:
            issue(c + 2); order += [c + 2] * 6
        for i in range(NQ[c]):
            issue_q(); order.append(-1)
        last = max(i for i, x in enumerate(order) if x == c)
        a(f"s_waitcnt vmcnt({len(order) - 1 - last})")
        ts(f"w{c}", grp=1)
        a("s_barrier")
    if NQ[7]:
        a("s_barrier")
        for i in range(NQ[7]): issue_q()
    a(f"s_cmp_lg_u32 s{sW}, 0")
    a("s_cbranch_scc1 L_pollgo_done")
    poll(a, "L_pollgo", vZ, 1, 0, DBG, 1, atomic=False)
    a("s_waitcnt vmcnt(0)")
    ts("h_wq", grp=1)
    a("s_barrier")
    def poll_mask():
        set_exec(a, "0xf", 0)
        flag_read(a, vP, WS)
        a("s_waitcnt vmcnt(0)")
        a("v_readlane_b32 s4, v15, 0")
        a("v_readlane_b32 s5, v15, 1")
        a("v_readlane_b32 s6, v15, 2")
        a("v_readlane_b32 s7, v15, 3")
        a("s_and_b32 s4, s4, s5")
        a("s_and_b32 s6, s6, s7")
        a("s_and_b32 s4, s4, s6")
        a("s_lshl_b32 s5, s4, 16")
        a("s_or_b32 s4, s4, s5")
        a(f"s_lshr_b32 s4, s4, s{sB}")
        a("s_and_b32 s4, s4, 0xffff")
        a("s_cmp_eq_u32 s4, 0xffff")
        a("s_cselect_b32 s4, 0x7ffff, s4")
        a("v_mov_b32 v15, s4")
        a(f"ds_write_b32 v{vM}, v15")
        set_exec(a, HI, HI)
    if PREPOLL:
        a(f"s_sleep {PREPOLL}")
        poll_mask()
    else:
        a(f"ds_write_b32 v{vM}, v{vZ}")
        a("s_mov_b32 s4, 0")
    a("s_waitcnt lgkmcnt(0)")
    a("s_barrier")
    a(f"s_mov_b32 s{sCNT}, 0x100000")
    a.lab("L_hpoll")
    a("s_cmp_eq_u32 s4, 0x7ffff")
    a("s_cbranch_scc1 L_hpoll_done")
    a(f"s_sub_u32 s{sCNT}, s{sCNT}, 1")
    a("s_cbranch_scc1 L_hpoll_giveup")
    poll_mask()
    if SLEEP: a(f"s_sleep {SLEEP}")
    a("s_branch L_hpoll")
    a.lab("L_hpoll_giveup")
    a("v_mov_b32 v15, 0x7ffff")
    a(f"ds_write_b32 v{vM}, v15")
    a.lab("L_hpoll_done")
    ts("h_all", grp=1)
    a("v_lshrrev_b32 v16, 4, v0")
    a(f"v_mul_u32_u24 v{vWo}, 896, v16")
    a("v_lshlrev_b32 v16, 2, v16")
    a("v_and_b32 v17, 15, v0")
    a("v_xor_b32 v16, v16, v17")
    a(f"v_lshl_add_u32 v{vWo}, v16, 4, v{vWo}")
    a(f"s_mul_i32 s{sWoS}, s{sCS4}, 224")
    a(f"s_and_b32 s{sWoS}, s{sWoS}, 0xffffffc0")
    a(f"s_mul_i32 s3, s{sW}, {28*3584}")
    a(f"s_add_u32 s{sWoS}, s{sWoS}, s3")
    a(f"s_mul_i32 s3, s{sW}, {28*1024}")
    a(f"s_add_u32 m0, s3, {L_WO}")
    a(f"s_mov_b32 s{sIT}, 28")
    a("s_sleep 16")
    a.lab("L_wo")
    a("s_sleep 3")
    a(f"buffer_load_dwordx4 v{vWo}, {sr(WO)}, s{sWoS} offen lds")
    a("s_add_u32 m0, m0, 1024")
    a(f"s_add_u32 s{sWoS}, s{sWoS}, 3584")
    a(f"s_sub_u32 s{sIT}, s{sIT}, 1")
    a(f"s_cmp_lg_u32 s{sIT}, 0")
    a("s_cbranch_scc1 L_wo")
    a(f"s_lshl_b32 s3, s{sT3}, {FSH}")
    a(f"s_add_u32 s3, s3, {FL_OFF + (256 << FSH)}")
    a(f"v_mov_b32 v{vP}, s3")
    a(f"s_lshl_b32 s4, s{sW}, 2")
    a("s_lshl_b32 s4, 15, s4")
    a(f"s_lshl_b32 s3, s{sT3}, 2")
    a(f"s_add_u32 s3, s3, s{sW}")
    a("s_lshl_b32 s3, s3, 13")
    a(f"s_add_u32 s3, s3, {O_OFF}")
    a(f"s_add_u32 s{sA}, s3, 4096")
    a(f"s_lshl_b32 s{sBb}, s{sW}, 13")
    a(f"s_add_u32 s{sBb}, s{sBb}, {L_CMB}")
    a(f"v_add_u32 v{vM}, s{sBb}, v1")
    a("s_waitcnt vmcnt(0) lgkmcnt(0)")
    ts("h_wo", grp=1)
    a("s_barrier")
    poll(a, "L_poll2", vP, 1, 0, WS, "s4")
    ts("h_poll2", grp=1)
    for f in range(8):
        a(f"buffer_load_dwordx4 {vr(32+4*f,4)}, v1, {sr(WS)}, {'s3' if f < 4 else 's%d' % sA} offen offset:{1024*(f%4)} sc1")
    a("s_barrier")
    for f in range(8):
        a(f"s_waitcnt vmcnt({7-f})")
        a(f"ds_write_b128 v{vM}, {vr(32+4*f,4)} offset:{1024*f}")
    a("s_waitcnt lgkmcnt(0)")
    ts("h_stage", grp=1)
    a("s_barrier")
    if TS and TSG == 1: ts.dump()
    a("s_endpgm")

def kernel(a):
    name = NAME + "_kernel"
    a.raw(f".globl {name}")
    a.raw(".p2align 8")
    a.raw(f".type {name},@function")
    a.lab(name)
    ts = Stamps(a)
    ts("start")
    a("s_cmp_ge_u32 s2, 256")
    a("s_cbranch_scc1 L_end")
    a("s_load_dwordx8 s[4:11], s[0:1], 0")
    a("s_load_dwordx4 s[12:15], s[0:1], 32")
    a("v_lshrrev_b32 v1, 6, v0")
    a("v_and_b32 v0, 63, v0")
    a(f"v_readfirstlane_b32 s{sA}, v1")
    decode_hb(a)
    a(f"s_and_b32 s{sW}, s{sA}, 3")
    a(f"s_lshl_b32 s{sT}, s{sB}, 2")
    a(f"s_and_b32 s{sT3}, s{sH}, 3")
    a(f"s_add_u32 s{sT3}, s{sT3}, s{sT}")
    a(f"s_add_u32 s{sT}, s{sT}, s{sW}")
    a(f"s_lshr_b32 s{sCS4}, s{sH}, 2")
    a(f"s_cmp_lt_u32 s{sA}, 4")
    a("s_cbranch_scc1 L_compute")
    helper(a, ts)
    a.lab("L_compute")
    t0, t1, t2, t3, t4, t5 = vT
    a("s_waitcnt lgkmcnt(0)")
    srd(a, WS, 14, 15, WS_BYTES)
    srd(a, DBG, 12, 13, 256)
    a("v_mov_b32 v250, 1")
    a("v_mov_b32 v251, 0")
    a(f"v_lshlrev_b32 v252, {FSH}, v0")
    a(f"s_lshl_b32 s{sLD}, s{sW}, 3")
    a(f"s_or_b32 s{sLD}, s{sLD}, s2")
    a(f"s_cmp_ge_u32 s{sLD}, 8")
    a("s_cbranch_scc1 L_nocand")
    set_exec(a, 1, 0)
    a(f"buffer_atomic_add v250, v251, {sr(DBG)}, 0 offen offset:128 sc0 sc1")
    set_exec(a, HI, HI)
    a.lab("L_nocand")
    a("v_lshlrev_b32 v1, 4, v0")
    a("v_and_b32 v15, 3, v0")
    a("v_and_b32 v2, 31, v0")
    a(f"v_lshlrev_b32 v{vV0}, 4, v2")
    a("v_lshlrev_b32 v2, 7, v2")
    a("v_bfe_u32 v3, v0, 1, 3")
    a("v_lshrrev_b32 v4, 5, v0")
    a(f"v_mul_u32_u24 v{vV1}, {V_PLANE}, v4")
    a(f"v_add_u32 v{vV0}, v{vV0}, v{vV1}")
    a("v_xor_b32 v3, v3, v4")
    a("v_lshl_add_u32 v2, v3, 4, v2")
    a(f"s_lshl_b32 s3, s{sW}, 14")
    a(f"s_add_u32 s3, s3, {L_XR}")
    a("v_add_u32 v2, s3, v2")
    a("v_xor_b32 v3, 32, v2")
    a("v_xor_b32 v5, 96, v2")
    a(f"v_bfe_u32 v{t0}, v0, 2, 2")
    a(f"v_lshl_add_u32 v{t1}, v4, 3, v{t0}")
    a("v_xor_b32 v4, 64, v2")
    a(f"v_bfe_u32 v{t2}, v0, 4, 1")
    a(f"v_lshlrev_b32 v{t2}, 5, v{t2}")
    a(f"v_lshrrev_b32 v{t3}, 1, v15")
    a(f"v_and_b32 v{t4}, 1, v15")
    a(f"v_lshl_add_u32 v{t3}, v{t4}, 1, v{t3}")
    a(f"v_lshl_add_u32 v{t3}, v{t3}, 3, v{t2}")
    a(f"v_lshl_add_u32 v{t4}, v15, 3, v{t2}")
    a(f"v_lshl_add_u32 v{vQR}, v{t1}, 6, v{t3}")
    a(f"v_add_u32 v{vQR}, {L_WQ}, v{vQR}")
    a(f"s_cmp_lt_u32 s{sH}, 7")
    a("s_cselect_b64 vcc, -1, 0")
    a(f"v_cndmask_b32 v{t3}, v{t4}, v{t3}, vcc")
    a(f"v_lshrrev_b32 v{t0}, 1, v{t0}")
    a(f"v_lshl_add_u32 v{t3}, v{t0}, 6, v{t3}")
    a(f"v_lshl_add_u32 v{vWR[0]}, v{t1}, 7, v{t3}")
    a(f"v_xor_b32 v{vWR[1]}, 64, v{vWR[0]}")
    mask_addr(a, vMk)
    a(f"s_lshl_b32 s3, 1, s{sB}")
    a(f"v_mov_b32 v{vOne}, s3")
    a(f"s_lshl_b32 s3, s{sH}, 4")
    a(f"s_add_u32 s3, s3, s{sW}")
    a(f"v_lshl_add_u32 v{vP1}, v0, 2, s3")
    a(f"v_lshlrev_b32 v{vP1}, {FSH}, v{vP1}")
    a(f"v_add_u32 v{vP1}, {FL_OFF}, v{vP1}")
    a(f"s_lshl_b32 s{sA}, s{sT}, {FSH}")
    a(f"s_add_u32 s{sA}, s{sA}, {FL_OFF + (256 << FSH)}")
    a(f"v_mov_b32 v{vFl2}, s{sA}")
    a(f"v_lshrrev_b32 v{vFl}, 3, v0")
    a(f"v_mul_u32_u24 v{vFl}, {V_PLANE}, v{vFl}")
    a(f"v_and_b32 v{t0}, 7, v0")
    a(f"v_lshl_add_u32 v{vFl}, v{t0}, 4, v{vFl}")
    a(f"v_cmp_eq_u32 vcc, 0, v{t0}")
    a(f"v_mov_b32 v{t1}, 0x3f803f80")
    a("s_nop 0")
    for r in range(4):
        a(f"v_cndmask_b32 v{216+r}, 0, v{t1}, vcc")
    srd(a, OUT, 10, 11, OUT_BYTES)
    srd(a, KVS, 14, 15, KV_BYTES)
    def rd(c, i):
        a(f"ds_read_b128 {vr(XF+16*c+4*i,4)}, v{vXR[i]} offset:{(c%4)*4096}")
        for p in range(2):
            for r in range(2):
                a(f"ds_read_b64_tr_b16 {vr(WF+8*i+4*p+2*r,2)}, v{vWR[p]} offset:{L_WKV + (c*4+i)*2048 + r*512}")
    def phase1a(kind):
        def mm(c, i):
            x = vr(XF+16*c+4*i, 4)
            first = (c == 0 and i == 0)
            for p, acc in ((0, A0), (1, A1)):
                w = vr(WF+8*i+4*p, 4)
                if kind == "K": mfma(a, vr(acc,16), w, x, "0" if first else vr(acc,16))
                else: mfma(a, vr(acc,16), x, w, "0" if first else vr(acc,16))
        for c in range(7):
            a("s_barrier")
            if c == 0: ts("c0")
            rd(c, 0); rd(c, 1)
            if c == 0:
                a("s_waitcnt vmcnt(0)")
                a(f"v_readfirstlane_b32 s{sLD}, v250")
                a(f"s_mov_b32 s3, {FL_OFF}")
                a(f"s_cmp_lg_u32 s{sLD}, 0")
                a(f"s_cbranch_scc1 L_noclear{kind}")
                for i in range(5):
                    a(f"buffer_store_dword v251, v252, {sr(WS)}, s3 offen sc1")
                    a(f"s_add_u32 s3, s3, {64 << FSH}")
                a.lab(f"L_noclear{kind}")
            if c == 4:
                a(f"s_cmp_lg_u32 s{sLD}, 0")
                a(f"s_cbranch_scc1 L_nogo{kind}")
                a("v_mov_b32 v250, 1")
                a("s_waitcnt vmcnt(0)")
                set_exec(a, 1, 0)
                a(f"buffer_store_dword v250, v251, {sr(DBG)}, 0 offen sc1")
                set_exec(a, HI, HI)
                a.lab(f"L_nogo{kind}")
            if c > 0: mm(c-1, 2)
            rd(c, 2)
            if c > 0: mm(c-1, 3)
            a("s_waitcnt lgkmcnt(10)")
            rd(c, 3)
            mm(c, 0)
            a("s_waitcnt lgkmcnt(10)")
            mm(c, 1)
            a("s_waitcnt lgkmcnt(0)")
        mm(6, 2); mm(6, 3)
        ts("kv_mm")
        a(f"s_lshl_b32 s{sKV}, s{sT}, 16")
        if kind == "K":
            a(f"s_lshl_b32 s3, s{sH}, 12")
            a(f"s_add_u32 s3, s3, s{sKV}")
            a("s_nop 7")
        else:
            a(f"s_mul_i32 s3, s{sH}, {V_LINE}")
            a(f"s_add_u32 s3, s3, s{sKV}")
            a(f"s_add_u32 s3, s3, {V_BASE - 7*V_LINE}")
            a(f"s_add_u32 s{sA}, s3, {2*V_PLANE}")
            a(f"s_cmp_lt_u32 s{sH}, 14")
            a(f"s_cselect_b32 s{KVS+2}, {KV_BYTES}, 0")
            set_exec(a, HI, 0)
            a(f"buffer_store_dwordx4 v[216:219], v{vFl}, {sr(KVS)}, s3 offen offset:1024 sc1")
            set_exec(a, HI, HI)
        for p, acc in ((0, A0), (1, A1)):
            for f in range(2):
                for i in range(4):
                    a(f"v_cvt_pk_bf16_f32 v{PK+8*p+4*f+i}, v{acc+8*f+2*i}, v{acc+8*f+2*i+1}")
                d = vr(PK+8*p+4*f, 4)
                if kind == "K":
                    a(f"buffer_store_dwordx4 {d}, v1, {sr(KVS)}, s3 offen offset:{2048*p+1024*f} sc1")
                else:
                    a(f"buffer_store_dwordx4 {d}, v{vV0}, {sr(KVS)}, {'s3' if f == 0 else 's%d' % sA} offen offset:{512*p} sc1")
    a(f"s_cmp_lt_u32 s{sH}, 7")
    a("s_cbranch_scc0 L_vline")
    phase1a("K")
    a("s_branch L_q")
    a.lab("L_vline")
    phase1a("V")
    a.lab("L_q")
    ts("kv_st")
    if NQ[7]: a("s_barrier")
    a(f"s_mul_i32 s4, s{sH}, 56")
    a("s_lshr_b32 s5, s4, 4")
    a("s_lshl_b32 s5, s5, 9")
    a(f"v_add_u32 v{vKo}, s5, v1")
    a("s_lshr_b32 s4, s4, 1")
    a(f"v_and_b32 v{t0}, 31, v0")
    a(f"v_add_u32 v{t1}, s4, v{t0}")
    a(f"v_lshrrev_b32 v{t2}, 6, v{t1}")
    a(f"v_lshl_add_u32 v{t1}, v{t2}, 3, v{t1}")
    a("s_lshr_b32 s5, s4, 6")
    a("s_mul_i32 s5, s5, 72")
    a("s_add_u32 s5, s5, 36")
    a(f"v_add_u32 v{t2}, s5, v{t0}")
    a(f"v_cmp_gt_u32 vcc, 28, v{t0}")
    a(f"v_add_u32 v{vV1}, {V_BASE}, v{vV1}")
    a("s_nop 0")
    a(f"v_cndmask_b32 v{t1}, v{t2}, v{t1}, vcc")
    a(f"v_lshl_add_u32 v{vV0}, v{t1}, 4, v{vV1}")
    a(f"v_add_u32 v{vV1}, {2*V_PLANE}, v{vV0}")
    for r in range(220, 240):
        a(f"v_mov_b32 v{r}, 0")
    a(f"s_mov_b32 s{KVS+2}, {KV_BYTES}")
    a("s_barrier")
    ts("b7")
    def rdq(s):
        for r in range(2):
            a(f"ds_read_b64_tr_b16 {vr(WF+4*(s%8)+2*r,2)}, v{vQR} offset:{s*1024 + r*256}")
    for s in range(6): rdq(s)
    for s in range(28):
        if s + 6 < 28:
            rdq(s + 6)
            a("s_waitcnt lgkmcnt(12)")
        else:
            a(f"s_waitcnt lgkmcnt({2*(27-s)})")
        mfma(a, vr(AQ,16), vr(WF+4*(s%8),4), vr(XF+4*s,4), "0" if s == 0 else vr(AQ,16))
        if s + 1 == FLAGPOS:
            a("s_waitcnt vmcnt(0)")
            set_exec(a, "0xf", 0)
            a(f"buffer_atomic_or v{vOne}, v{vP1}, {sr(WS)}, 0 offen sc1")
            set_exec(a, HI, HI)
            ts("kv_flag")
    ts("q_mm")
    a(f"s_mov_b32 s3, {f32bits(QSCALE):#x}")
    a(f"s_lshl_b32 s{sA}, s{sW}, 11")
    a(f"s_add_u32 s{sA}, s{sA}, {L_CMB}")
    a(f"v_add_u32 v{t0}, s{sA}, v1")
    for r in range(176, 184):
        a(f"v_mov_b32 v{r}, 0")
    for r in range(16):
        a(f"v_mul_f32 v{AQ+r}, s3, v{AQ+r}")
    Q3 = Q + 24
    for i in range(8):
        a(f"v_cvt_pk_bf16_f32 v{Q3+i}, v{AQ+2*i}, v{AQ+2*i+1}")
    a(f"s_bitcmp1_b32 s{sH}, 0")
    a("s_cselect_b32 exec_lo, -1, 0")
    a("s_mov_b32 exec_hi, 0")
    a(f"v_mov_b32 v{Q3}, 0")
    a(f"v_mov_b32 v{Q3+1}, 0")
    a("s_cselect_b32 exec_hi, 0, -1")
    a("s_mov_b32 exec_lo, 0")
    a(f"v_mov_b32 v{Q3+6}, 0")
    a(f"v_mov_b32 v{Q3+7}, 0")
    set_exec(a, HI, HI)
    a(f"ds_write_b128 v{t0}, {vr(Q3,4)}")
    a(f"ds_write_b128 v{t0}, {vr(Q3+4,4)} offset:1024")
    for i in range(3):
        a(f"s_add_u32 s{sA}, s{sW}, {1+i}")
        a(f"s_and_b32 s{sA}, s{sA}, 3")
        a(f"s_lshl_b32 s{sA}, s{sA}, 11")
        a(f"s_add_u32 s{sA}, s{sA}, {L_CMB}")
        a(f"v_add_u32 v{vT[1+i]}, s{sA}, v1")
    for r in range(4):
        a(f"v_mov_b32 v{KV+48+12+r}, 0")
    a(f"s_mov_b32 s{sRDY}, 0")
    a(f"s_mov_b32 s{sTODO}, 0x7ffff")
    a("s_waitcnt lgkmcnt(0)")
    a("s_barrier")
    for i in range(3):
        a(f"ds_read_b128 {vr(Q+8*i,4)}, v{vT[1+i]}")
        a(f"ds_read_b128 {vr(Q+8*i+4,4)}, v{vT[1+i]} offset:1024")
    ts("q_done")
    def ldk(slot):
        for f in range(2):
            a(f"buffer_load_dwordx4 {vr(KV+16*slot+4*f,4)}, v{vKo}, {sr(KVS)}, s{sKV} offen offset:{1024*f} sc1")
    def ldv(slot):
        a(f"buffer_load_dwordx4 {vr(KV+16*slot+8,4)}, v{vV0}, {sr(KVS)}, s{sKV} offen sc1")
        a(f"buffer_load_dwordx4 {vr(KV+16*slot+12,4)}, v{vV1}, {sr(KVS)}, s{sKV} offen sc1")
    npick = [0]
    def pick_ops():
        n = npick[0]; npick[0] += 1
        def p0(): a(f"s_and_b32 s{sAV}, s{sRDY}, s{sTODO}")
        def p1():
            a(f"s_cbranch_scc0 L_slow{n}")
            a.lab(f"L_back{n}")
        def p2(): a(f"s_ff1_i32_b32 s{sAV}, s{sAV}")
        def p3(): a(f"s_bitset0_b32 s{sTODO}, s{sAV}")
        def p4(): a(f"s_lshl2_add_u32 s{sBb}, s{sAV}, s{sT}")
        def p5(): a(f"s_and_b32 s{sBb}, s{sBb}, 63")
        def p6(): a(f"s_and_b32 s{sAV}, s{sAV}, 16")
        def p7(): a(f"s_lshl2_add_u32 s{sBb}, s{sAV}, s{sBb}")
        def p8(): a(f"s_lshl_b32 s{sKV}, s{sBb}, 16")
        return [p0, p1, p2, p3, p4, p5, p6, p7, p8]
    for sl in range(3):
        for f in pick_ops(): f()
        ldk(sl); ldv(sl)
        if sl == 0: ts("pick0")
    for f in pick_ops(): f()
    for r in range(184, 220):
        a(f"v_mov_b32 v{r}, 0")
    for r in range(4):
        a(f"v_mov_b32 v{P+4+r}, 0")
    a(f"s_mov_b32 s{sIT}, 3")
    vC = vT[1:4]; vCR = vT[4]
    a("s_waitcnt lgkmcnt(0)")
    for i in range(3):
        a(f"s_add_u32 s3, s{sW}, {1+i}")
        a("s_and_b32 s3, s3, 3")
        a("s_mul_i32 s3, s3, 12288")
        a(f"s_add_u32 s3, s3, {L_CMB + 4096*i}")
        a(f"v_add_u32 v{vC[i]}, s3, v1")
    a(f"s_mul_i32 s3, s{sW}, 12288")
    a(f"s_add_u32 s3, s3, {L_CMB}")
    a(f"v_add_u32 v{vCR}, s3, v1")
    a("s_waitcnt vmcnt(8)")
    ts("kv0")
    def mS(part, t):
        slot = (t // 4) % 4; qt = t % 4
        d = vr(S[t % 2], 16)
        mfma(a, d, vr(KV+16*slot+4*part,4), vr(Q+8*qt+4*part,4), "0" if part == 0 else d)
    def mPV(part, t):
        slot = (t // 4) % 4; qt = t % 4
        d = vr(O + 16*qt, 16)
        mfma(a, d, vr(KV+16*slot+8+4*part,4), vr(P+4*part,4), d)
    def EC(t, g):
        s = S[t % 2] + 4*g
        for r in range(4):
            a(f"v_exp_f32 v{s+r}, v{s+r}")
        a(f"v_cvt_pk_bf16_f32 v{P+2*g}, v{s}, v{s+1}")
        a(f"v_cvt_pk_bf16_f32 v{P+2*g+1}, v{s+2}, v{s+3}")
    mS(0, 0); mS(1, 0)
    ts("att0", cyc=True)
    a("s_nop 7")
    a("s_nop 3")
    a.raw(".p2align 6")
    a.lab("L_loop")
    def tile(j, last=False):
        fs = [None] * 16
        if not last:
            fs[11] = lambda: a("s_waitcnt vmcnt(8)")
            po = pick_ops()
            for k, f in enumerate(po): fs[2 + k] = f
            if j == 2:
                fs[14] = lambda: a(f"s_sub_u32 s{sIT}, s{sIT}, 1")
        else:
            def wr(i, g):
                return lambda: a(f"ds_write_b128 v{vC[i]}, {vr(O+16*i+4*g,4)} offset:{1024*g}")
            for i in range(3):
                fs[4*(i+1) + 3] = wr(i, 0)
                if i < 2:
                    for g in range(1, 4): fs[4*(i+2) + g - 1] = wr(i, g)
        for st in range(4):
            t = 4*j + st
            f = fs[4*st:4*st+4]
            if not (last and st == 3): mS(0, t+1)
            if st == 0 and not last: ldk((j + 3) % 4)
            if f[0]: f[0]()
            EC(t, 0)
            mPV(1, (t - 1) % 16)
            if st == 0 and not last: ldv((j + 3) % 4)
            if f[1]: f[1]()
            EC(t, 1)
            if not (last and st == 3): mS(1, t+1)
            if f[2]: f[2]()
            EC(t, 2)
            mPV(0, t)
            if f[3]: f[3]()
            EC(t, 3)
    for j in range(3): tile(j)
    a("s_cbranch_scc1 L_last")
    tile(3)
    a("s_branch L_loop")
    a.lab("L_last")
    tile(3, last=True)
    a(f"ds_write_b128 v{vC[2]}, {vr(O+32+4,4)} offset:1024")
    a(f"ds_write_b128 v{vC[2]}, {vr(O+32+8,4)} offset:2048")
    mPV(1, 15)
    a(f"ds_write_b128 v{vC[2]}, {vr(O+32+12,4)} offset:3072")
    ts("att1", cyc=True)
    ts("att1")
    a(f"s_mov_b32 s4, {f32bits(2.0**62):#x}")
    a(f"s_mov_b32 s5, {f32bits(2.0**-62):#x}")
    a("s_waitcnt vmcnt(0) lgkmcnt(0)")
    a("s_barrier")
    R = O
    F = O + 48
    for i in range(3):
        for g in range(4):
            a(f"ds_read_b128 {vr(R+16*i+4*g,4)}, v{vCR} offset:{4096*i+1024*g}")
    a(f"s_lshl_b32 s3, s{sT}, 4")
    a(f"s_add_u32 s3, s3, s{sH}")
    a("s_lshl_b32 s3, s3, 11")
    a(f"s_add_u32 s3, s3, {O_OFF}")
    for i in range(3):
        a(f"s_waitcnt lgkmcnt({8-4*i})")
        for r in range(16):
            a(f"v_add_f32 v{F+r}, v{F+r}, v{R+16*i+r}")
    a(f"v_cmp_nge_f32 s[6:7], s4, v{F+12}")
    a(f"v_cmp_nle_f32 vcc, s5, v{F+12}")
    a("s_or_b64 s[6:7], s[6:7], vcc")
    a("s_cmp_lg_u32 s7, 0")
    a("s_cbranch_scc1 L_fallback")
    a.lab("L_norm")
    a(f"v_mov_b32 v{t0}, v{F+12}")
    a(f"v_mov_b32 v{t1}, v{F+12}")
    a("s_nop 1")
    a(f"v_permlane32_swap_b32 v{t0}, v{t1}")
    a("s_nop 1")
    a(f"v_rcp_f32 v{t1}, v{t1}")
    set_exec(a, 0, HI)
    a(f"v_mov_b32 v{F+12}, 0")
    set_exec(a, HI, HI)
    for r in range(16):
        a(f"v_mul_f32 v{F+r}, v{F+r}, v{t1}")
    PO = 240
    for i in range(8):
        a(f"v_cvt_pk_bf16_f32 v{PO+i}, v{F+2*i}, v{F+2*i+1}")
    a(f"buffer_store_dwordx4 {vr(PO,4)}, v1, {sr(WS)}, s3 offen sc1")
    a(f"buffer_store_dwordx4 {vr(PO+4,4)}, v1, {sr(WS)}, s3 offen offset:1024 sc1")
    ts("o_st")
    WOF, OF, ACC, D = 40, 168, 24, 232
    a(f"s_and_b32 s3, s{sCS4}, 1")
    a("s_lshl_b32 s3, s3, 5")
    a(f"s_mul_i32 s{sA}, s{sW}, 56")
    a(f"s_add_u32 s3, s3, s{sA}")
    a(f"v_bfe_u32 v{t0}, v0, 4, 1")
    a(f"v_lshlrev_b32 v{t0}, 5, v{t0}")
    a(f"v_and_b32 v{t1}, 3, v0")
    a(f"v_lshl_add_u32 v{t0}, v{t1}, 3, v{t0}")
    a(f"v_add_u32 v{t0}, s3, v{t0}")
    a(f"v_and_b32 v{t0}, 255, v{t0}")
    a(f"v_bfe_u32 v{t1}, v0, 2, 2")
    a(f"v_lshlrev_b32 v{t2}, 6, v{t1}")
    a(f"v_xor_b32 v{t0}, v{t0}, v{t2}")
    a(f"v_lshl_add_u32 v{t2}, v{t1}, 8, v{t0}")
    a(f"v_lshrrev_b32 v{t1}, 5, v0")
    a(f"v_lshl_add_u32 v{t0}, v{t1}, 10, v{t2}")
    a(f"v_add_u32 v{t1}, 0x10000, v{t0}")
    a(f"v_add_u32 v{t2}, 0x10000, v{t2}")
    def rdwo(hh):
        for u in range(2):
            for r in range(2):
                off = L_WO + (28*hh + 16*u + 8*r) * 256
                base = t0
                if off >= 0x10000:
                    off -= 0x10000; base = t1
                if hh == 15 and u == 1 and r == 1:
                    base = t2
                a(f"ds_read_b64_tr_b16 {vr(WOF+8*hh+4*u+2*r,2)}, v{base} offset:{off}")
    a(f"s_lshl_b32 s3, 1, s{sH}")
    a(f"v_mov_b32 v{vOne}, s3")
    for hh in range(6): rdwo(hh)
    a("s_waitcnt vmcnt(0)")
    set_exec(a, 1, 0)
    a(f"buffer_atomic_or v{vOne}, v{vFl2}, {sr(WS)}, 0 offen sc1")
    set_exec(a, HI, HI)
    ts("o_flag")
    for hh in range(6, 16): rdwo(hh)
    a(f"v_add_u32 v{t3}, {L_CMB}, v1")
    a(f"v_and_b32 v{t4}, 31, v0")
    a(f"v_mul_u32_u24 v{t4}, 896, v{t4}")
    a(f"v_lshrrev_b32 v{t5}, 5, v0")
    a(f"v_lshl_add_u32 v{t4}, v{t5}, 4, v{t4}")
    a(f"s_mul_i32 s{sKV}, s{sT3}, 28672")
    a(f"s_lshl_b32 s{sBb}, s{sCS4}, 2")
    a(f"s_add_u32 s{sBb}, s{sBb}, s{sW}")
    a(f"s_mul_i32 s{sBb}, s{sBb}, 56")
    a(f"s_add_u32 s{sKV}, s{sKV}, s{sBb}")
    a("s_barrier")
    a("s_barrier")
    ts("o_ld")
    NR = 16
    for f in range(12):
        a(f"ds_read_b128 {vr(OF+4*(f%NR),4)}, v{t3} offset:{1024*f}")
    for f in range(32):
        if f + 12 < 32:
            a(f"ds_read_b128 {vr(OF+4*((f+12)%NR),4)}, v{t3} offset:{1024*(f+12)}")
            a("s_waitcnt lgkmcnt(12)")
        else:
            a(f"s_waitcnt lgkmcnt({31-f})")
        mfma(a, vr(ACC,16), vr(WOF+4*f,4), vr(OF+4*(f%NR),4), "0" if f == 0 else vr(ACC,16))
    a("s_nop 7")
    a("s_nop 3")
    for i in range(8):
        a(f"v_cvt_pk_bf16_f32 v{D+i}, v{ACC+2*i}, v{ACC+2*i+1}")
    a(f"v_permlane32_swap_b32 v{D}, v{D+2}")
    a(f"v_permlane32_swap_b32 v{D+1}, v{D+3}")
    a(f"v_permlane32_swap_b32 v{D+4}, v{D+6}")
    a(f"v_permlane32_swap_b32 v{D+5}, v{D+7}")
    a(f"buffer_store_dwordx4 {vr(D,4)}, v{t4}, {sr(OUT)}, s{sKV} offen")
    set_exec(a, HI, 0)
    a(f"buffer_store_dwordx4 {vr(D+4,4)}, v{t4}, {sr(OUT)}, s{sKV} offen offset:32")
    set_exec(a, 0, HI)
    a(f"buffer_store_dwordx2 {vr(D+4,2)}, v{t4}, {sr(OUT)}, s{sKV} offen offset:32")
    ts("out_st")
    if TS:
        a("s_waitcnt vmcnt(0)")
        ts("end")
    if TS and TSG == 0: ts.dump()
    a.lab("L_end")
    a("s_endpgm")
    for n in range(npick[0]):
        a.lab(f"L_slow{n}")
        a(f"ds_read_b32 v15, v{vMk}")
        a("s_waitcnt lgkmcnt(0)")
        a(f"v_readfirstlane_b32 s{sRDY}, v15")
        a("s_nop 0")
        a(f"s_and_b32 s{sAV}, s{sRDY}, s{sTODO}")
        a(f"s_cbranch_scc0 L_slow{n}")
        a(f"s_branch L_back{n}")
    a.lab("L_fallback")
    a(f"s_mov_b32 s{sA}, s3")
    kv_poll_addr(a, vP1, t0)
    a(f"s_lshl_b32 s6, s{sW}, {FSH}")
    a(f"v_subrev_u32 v{vP1}, s6, v{vP1}")
    for w in range(4):
        poll(a, f"L_pollfb{w}", vP1, "0xf", 0, WS, "0xffff", off=w << FSH)
    a(f"s_mov_b32 s3, s{sA}")
    a(f"v_mov_b32 v{t0}, 0xff800000")
    a(f"s_mov_b32 s{sKV}, 0")
    SS = S0
    a.lab("L_fb1")
    ldk(0)
    a(f"s_add_u32 s{sKV}, s{sKV}, 0x10000")
    a("s_waitcnt vmcnt(0)")
    mfma(a, vr(SS,16), vr(KV,4), vr(Q3,4), "0")
    mfma(a, vr(SS,16), vr(KV+4,4), vr(Q3+4,4), vr(SS,16))
    a("s_nop 15")
    for r in range(0, 16, 2):
        a(f"v_max3_f32 v{t0}, v{t0}, v{SS+r}, v{SS+r+1}")
    a(f"s_cmp_lt_u32 s{sKV}, {KV_BYTES}")
    a("s_cbranch_scc1 L_fb1")
    a(f"v_mov_b32 v{t1}, v{t0}")
    a("s_nop 1")
    a(f"v_permlane32_swap_b32 v{t0}, v{t1}")
    a("s_nop 1")
    a(f"v_max_f32 v{t0}, v{t0}, v{t1}")
    for r in range(16):
        a(f"v_mov_b32 v{F+r}, 0")
    a(f"s_mov_b32 s{sKV}, 0")
    a.lab("L_fb2")
    ldk(0); ldv(0)
    a(f"s_add_u32 s{sKV}, s{sKV}, 0x10000")
    a("s_waitcnt vmcnt(0)")
    mfma(a, vr(SS,16), vr(KV,4), vr(Q3,4), "0")
    mfma(a, vr(SS,16), vr(KV+4,4), vr(Q3+4,4), vr(SS,16))
    a("s_nop 15")
    for r in range(16):
        a(f"v_sub_f32 v{SS+r}, v{SS+r}, v{t0}")
    for r in range(16):
        a(f"v_exp_f32 v{SS+r}, v{SS+r}")
    a("s_nop 0")
    for i in range(8):
        a(f"v_cvt_pk_bf16_f32 v{P+i}, v{SS+2*i}, v{SS+2*i+1}")
    a("s_nop 1")
    mfma(a, vr(F,16), vr(KV+8,4), vr(P,4), vr(F,16))
    mfma(a, vr(F,16), vr(KV+12,4), vr(P+4,4), vr(F,16))
    a(f"s_cmp_lt_u32 s{sKV}, {KV_BYTES}")
    a("s_cbranch_scc1 L_fb2")
    a("s_nop 15")
    a("s_branch L_norm")
    if TS:
        open("stamps.txt", "w").write(",".join(ts.names))
    return name

def main():
    a = A()
    name = kernel(a)
    head = open(f"cdna_kernels/{NAME}.s.ref").read().split("; Override")[0]
    out = head
    out += f"; @launch grid=(256,1,1) block=(512,1,1) lds={LDS_BYTES}\n"
    out += '.amdgcn_target "amdgcn-amd-amdhsa--gfx950"\n.text\n'
    out += a.text()
    out += f""".section .rodata,"a"
.p2align 6
.amdhsa_kernel {name}
  .amdhsa_next_free_vgpr 256
  .amdhsa_next_free_sgpr 102
  .amdhsa_accum_offset 256
  .amdhsa_group_segment_fixed_size 0
  .amdhsa_kernarg_size 48
  .amdhsa_user_sgpr_count 2
  .amdhsa_user_sgpr_kernarg_segment_ptr 1
  .amdhsa_system_sgpr_workgroup_id_x 1
.end_amdhsa_kernel
"""
    o = [x for x in sys.argv[1:] if not x.startswith("--")]
    path = o[0] if o else f"cdna_kernels/{NAME}.s"
    open(path, "w").write(out)
main()
```

```python
import sys, struct, math

NAME = "standalone__softmax_full_mha__prompt"
FL_OFF = 5 << 20
O_OFF = 6 << 20
TS_OFF = 8 << 20
WS_BYTES = 268435456
X_BYTES = 2048 * 448 * 2
W_BYTES = 448 * 1344 * 2
WO_BYTES = 448 * 448 * 2
OUT_BYTES = 2048 * 448 * 2
KV_BYTES = 4 << 20
V_BASE = 28672
V_LINE = 1152
V_PLANE = 7 * V_LINE
QSCALE = 28 ** -0.5 * math.log2(math.e)

def opt(name, default):
    for arg in sys.argv:
        if arg.startswith(f"--{name}="):
            return int(arg.split("=")[1])
    return default
TS = "--ts" in sys.argv
TSG = opt("tsg", 0)
MAP = opt("maph", 3)
FSH = opt("fsh", 8)
FLAGPOS = opt("flagpos", 20)
NQ = [int(c) for c in "%08d" % opt("nq", 700)]
assert sum(NQ) == 7
SLEEP = opt("sleep", 1)
LA = opt("la", 2)
PF = opt("pf", 0)
ROT = opt("rot", 1)
PREPOLL = opt("prepoll", 1)

def f32bits(x):
    return struct.unpack("<I", struct.pack("<f", x))[0]

class A:
    def __init__(self):
        self.l = []
    def __call__(self, s):
        for line in s.strip("\n").split("\n"):
            self.l.append("    " + line.strip())
    def lab(self, n):
        self.l.append(n + ":")
    def raw(self, s):
        self.l.append(s)
    def text(self):
        return "\n".join(self.l) + "\n"

def vr(b, n, k="v"):
    return f"{k}[{b}:{b+n-1}]"
def sr(b):
    return f"s[{b}:{b+3}]"

def srd(a, d, lo, hi, nbytes):
    a(f"s_mov_b32 s{d}, s{lo}")
    a(f"s_and_b32 s{d+1}, s{hi}, 0xffff")
    a(f"s_mov_b32 s{d+2}, {nbytes}")
    a(f"s_mov_b32 s{d+3}, 0x20000")

HI = "0xffffffff"
def set_exec(a, lo, hi):
    if lo == HI and hi == HI:
        a("s_mov_b64 exec, -1")
    elif hi == 0 and lo in (1, "0xf"):
        a(f"s_mov_b64 exec, {int(str(lo), 0)}")
    else:
        a(f"s_mov_b32 exec_lo, {lo}")
        a(f"s_mov_b32 exec_hi, {hi}")

class Stamps:
    def __init__(self, a):
        self.a = a; self.idx = {}; self.names = []
    def __call__(self, name, cyc=False, grp=0):
        if not TS: return
        if name != "start" and grp != TSG: return
        nm = name + ("(cyc)" if cyc else "")
        if nm not in self.idx:
            self.idx[nm] = len(self.names); self.names.append(nm)
        b = 66 + 2 * self.idx[nm]
        assert b + 1 < 102
        self.a(f"s_memtime s[{b}:{b+1}]" if cyc else f"s_memrealtime s[{b}:{b+1}]")
    def dump(self):
        if not TS: return
        a = self.a
        sp = [x for x in sys.argv if x.startswith("--spin=")]
        if sp:
            hi, lo, m = sp[0][7:].split(",")
            a("s_waitcnt lgkmcnt(0)")
            if lo == "G":
                a("v_mov_b32 v2, 0")
                a(f"buffer_load_dword v4, v2, {sr(DBG)}, 0 offen offset:192 sc1")
                a("s_waitcnt vmcnt(0)")
                a("v_readfirstlane_b32 s4, v4")
                a("s_nop 0")
                a("s_not_b32 s4, s4")
                a(f"s_sub_u32 s3, s{66+2*self.idx[hi]}, s4")
            else:
                a(f"s_sub_u32 s3, s{66+2*self.idx[hi]}, s{66+2*self.idx[lo]}")
            only = opt("only", -1)
            if only >= 0:
                a("s_and_b32 s4, s2, 7")
                a(f"s_cmp_eq_u32 s4, {only}")
                a("s_cselect_b32 s3, s3, 0")
            a(f"s_mul_i32 s3, s3, {m}")
            a(f"s_add_u32 s3, s3, s{66+2*self.idx['end']}")
            a.lab("L_spin")
            a("s_memrealtime s[4:5]")
            a("s_waitcnt lgkmcnt(0)")
            a("s_sub_u32 s4, s4, s3")
            a("s_cmp_lt_i32 s4, 0")
            a("s_cbranch_scc1 L_spin")
            return
        if "--dbg" in sys.argv:
            sel = ["start", "start", "c0", "kv_mm", "b7", "q_done", "kv0", "att1", "o_flag", "o_ld", "end"]
            a("s_waitcnt lgkmcnt(0)")
            a(f"s_cmp_lg_u32 s{sW}, 0")
            a("s_cbranch_scc1 L_end")
            a("s_mov_b64 exec, 1")
            a("v_mov_b32 v2, 0")
            for i, nm in enumerate(sel):
                a(f"v_mov_b32 v4, s{66+2*self.idx[nm]}")
                if i == 0: a("v_not_b32 v4, v4")
                a(f"buffer_atomic_umax v4, v2, {sr(DBG)}, 0 offen offset:{8+4*i} sc1")
                a("s_nop 1")
            for i, nm in enumerate(["end", "kv0", "c0"]):
                a(f"s_sub_u32 s3, s{66+2*self.idx[nm]}, s66")
                a("v_mov_b32 v4, s3")
                a(f"buffer_atomic_umax v4, v2, {sr(DBG)}, 0 offen offset:{52+4*i} sc1")
                a("s_nop 1")
            a("s_waitcnt vmcnt(0)")
            return
        a("s_waitcnt lgkmcnt(0)")
        a(f"s_lshl_b32 s3, s2, 2")
        a(f"s_add_u32 s3, s3, s{sW}")
        a(f"s_lshl_b32 s3, s3, 7")
        a(f"s_add_u32 s3, s3, {TS_OFF}")
        a("s_mov_b64 exec, 1")
        a("v_mov_b32 v2, 0")
        for i in range(18):
            a(f"v_mov_b32 v4, s{66+2*i}")
            a(f"buffer_store_dword v4, v2, {sr(WS)}, s3 offen offset:{4*i}")
            a("s_nop 1")
        a("s_waitcnt vmcnt(0)")

X, W, WO, OUT, DBG, WS, KVS = 16, 20, 24, 28, 32, 36, 40
sH, sB, sW, sT = 44, 45, 46, 47
sKC, sXB, sWB, sXM, sWM = 48, 49, 50, 51, 52
sRDY, sTODO, sAV, sRET = 48, 49, 50, 64
sA, sBb = 53, 54
sKV, sIT, sWQ, sWoS, sCNT = 55, 56, 57, 58, 59
sKQ, sLD = 60, 61
WQS = KVS
sT3, sCS4 = 62, 63
L_WKV, L_WQ, L_XR = 0, 57344, 86016
L_WO, L_CMB = 0, 114688
LDS_BYTES = 163840
vXR = [2, 3, 4, 5]
vWR = [6, 7]
vQR, vOne, vFl, vFl2, vP1, vMk = 8, 9, 10, 11, 12, 13
vKo, vV0, vV1 = 14, 16, 17
vT = [18, 19, 20, 21, 22, 23]
A0, A1 = 24, 40
AQ = A0
XF = 56
WF = 168
PK = 200
Q, S0, P, KV, O = 40, 72, 104, 112, 176
S = [S0, S0 + 16]

def decode_hb(a):
    nhg = 16 >> MAP
    lg = int(math.log2(nhg))
    a(f"s_and_b32 s{sH}, s2, {nhg-1}")
    a(f"s_lshl_b32 s{sH}, s{sH}, {MAP}")
    a(f"s_lshr_b32 s3, s2, 3")
    a(f"s_and_b32 s{sB}, s3, {(1<<MAP)-1}")
    a(f"s_add_u32 s{sH}, s{sH}, s{sB}")
    a(f"s_lshr_b32 s3, s3, {MAP}")
    a(f"s_and_b32 s{sB}, s2, 7")
    a(f"s_lshr_b32 s{sB}, s{sB}, {lg}")
    a(f"s_mul_i32 s{sB}, s{sB}, {32>>MAP}")
    a(f"s_add_u32 s{sB}, s{sB}, s3")

def mfma(a, d, x, y, c):
    a(f"v_mfma_f32_32x32x16_bf16 {d}, {x}, {y}, {c}")

def flag_read(a, vaddr, srdn, off=0):
    a("v_mov_b32 v15, 0")
    a(f"buffer_atomic_or v15, v{vaddr}, {sr(srdn)}, 0 offen offset:{off} sc0 sc1")

def poll(a, label, vaddr, lo, hi, srdn, smask, off=0, atomic=True):
    a(f"s_mov_b32 s{sCNT}, 0x100000")
    set_exec(a, lo, hi)
    a(f"s_branch {label}_in")
    a.lab(label)
    if SLEEP: a(f"s_sleep {SLEEP}")
    a.lab(label + "_in")
    if atomic: flag_read(a, vaddr, srdn, off)
    else: a(f"buffer_load_dword v15, v{vaddr}, {sr(srdn)}, 0 offen offset:{off} sc1")
    a(f"s_sub_u32 s{sCNT}, s{sCNT}, 1")
    a(f"s_cbranch_scc1 {label}_done")
    a("s_waitcnt vmcnt(0)")
    a(f"v_and_b32 v15, {smask}, v15")
    a(f"v_cmp_ne_u32 vcc, {smask}, v15")
    a(f"s_cbranch_vccnz {label}")
    a.lab(label + "_done")
    set_exec(a, HI, HI)

def kv_poll_addr(a, vd, t0):
    a(f"s_mul_i32 s4, s{sH}, 56")
    a("s_and_b32 s5, s4, 0xfffffff0")
    a(f"v_mov_b32 v{t0}, s5")
    a("s_add_u32 s5, s5, 62")
    a(f"v_writelane_b32 v{t0}, s5, 1")
    a("s_add_u32 s5, s4, 896")
    a(f"v_writelane_b32 v{t0}, s5, 2")
    a("s_add_u32 s5, s4, 950")
    a(f"v_writelane_b32 v{t0}, s5, 3")
    a(f"v_lshrrev_b32 v{t0}, 7, v{t0}")
    a(f"v_lshlrev_b32 v{t0}, {FSH+4}, v{t0}")
    a(f"s_and_b32 s3, s{sH}, 3")
    a(f"s_lshl2_add_u32 s3, s3, s{sW}")
    a(f"s_lshl_b32 s3, s3, {FSH}")
    a(f"s_add_u32 s3, s3, {FL_OFF}")
    a(f"v_add_u32 v{vd}, s3, v{t0}")

def mask_addr(a, vd):
    a(f"s_add_u32 s3, s{sW}, 3")
    a("s_and_b32 s3, s3, 3")
    a("s_mul_i32 s3, s3, 12288")
    a(f"s_add_u32 s3, s3, {L_CMB + 8192}")
    a(f"v_mov_b32 v{vd}, s3")

def helper(a, ts):
    vX = [2, 3, 4, 5]
    vW0, vW1, vWq = 6, 7, 8
    vZ, vOn, vP, vM, vWo, vF = 9, 10, 11, 12, 13, 14
    a("v_lshrrev_b32 v7, 3, v0")
    a("v_mul_u32_u24 v2, 896, v7")
    a("v_and_b32 v6, 7, v0")
    a("v_lshrrev_b32 v4, 4, v0")
    a("v_xor_b32 v3, v6, v4")
    a("v_lshl_add_u32 v2, v3, 4, v2")
    a("v_xor_b32 v3, 64, v2")
    a("v_add_u32 v3, 6144, v3")
    a("v_and_b32 v4, 1, v4")
    a("v_lshlrev_b32 v4, 2, v4")
    a("v_xor_b32 v6, v6, v4")
    a("v_mul_u32_u24 v7, 2688, v7")
    a(f"v_lshl_add_u32 v{vW0}, v6, 4, v7")
    a(f"v_add_u32 v{vW1}, {8*2688-1024}, v{vW0}")
    a("v_add_u32 v4, 12288, v2")
    a("v_add_u32 v5, 12288, v3")
    a(f"s_mul_i32 s{sXB}, s{sT}, 28672")
    a(f"s_mul_i32 s{sWQ}, s{sW}, 43008")
    a(f"s_lshl_b32 s{sWB}, s{sH}, 7")
    a(f"s_add_u32 s{sWB}, s{sWB}, s{sWQ}")
    a(f"s_add_u32 s{sWB}, s{sWB}, 896")
    a(f"s_lshl_b32 s{sXM}, s{sW}, 14")
    a(f"s_add_u32 s{sXM}, s{sXM}, {L_XR}")
    a(f"s_lshl_b32 s{sWM}, s{sW}, 11")
    a(f"s_lshl_b32 s3, s{sB}, 1")
    a(f"s_add_u32 s3, s3, s{sH}")
    a(f"s_mul_i32 s{sA}, s3, 37")
    a(f"s_lshr_b32 s{sA}, s{sA}, 8")
    a(f"s_mul_i32 s{sA}, s{sA}, 7")
    a(f"s_sub_u32 s{sKC}, s3, s{sA}")
    a(f"s_mov_b32 s{sKQ}, s{sKC}")
    a(f"s_mov_b32 s{X+2}, {X_BYTES}")
    a(f"s_mov_b32 s{X+3}, 0x20000")
    a(f"s_cmp_lt_u32 s{sH}, 14")
    a(f"s_cselect_b32 s{W+2}, {W_BYTES}, 0")
    a(f"s_mov_b32 s{W+3}, 0x20000")
    a("s_waitcnt lgkmcnt(0)")
    a(f"s_mov_b32 s{X}, s4")
    a(f"s_and_b32 s{X+1}, s5, 0xffff")
    a(f"s_mov_b32 s{W}, s6")
    a(f"s_and_b32 s{W+1}, s7, 0xffff")
    def adv_kc():
        a(f"s_add_u32 s{sKC}, s{sKC}, 1")
        a(f"s_cmp_eq_u32 s{sKC}, 7")
        a(f"s_cselect_b32 s{sKC}, 0, s{sKC}")
    def issue(c):
        a(f"s_mul_i32 s{sBb}, s{sKC}, 172032")
        a(f"s_add_u32 m0, s{sWM}, {L_WKV + c*8192}")
        a(f"s_add_u32 s{sBb}, s{sBb}, s{sWB}")
        a(f"buffer_load_dwordx4 v{vW0}, {sr(W)}, s{sBb} offen lds")
        a(f"buffer_load_dwordx4 v{vW1}, {sr(W)}, s{sBb} offen offset:1024 lds")
        a(f"s_lshl_b32 s{sA}, s{sKC}, 7")
        a(f"s_add_u32 m0, s{sXM}, {(c%4)*4096}")
        a(f"s_add_u32 s{sA}, s{sA}, s{sXB}")
        for q in range(4):
            a(f"buffer_load_dwordx4 v{vX[q]}, {sr(X)}, s{sA} offen offset:{1024*q} lds")
        adv_kc()
    for c in range(2): issue(c)
    ts("h_iss", grp=1)
    srd(a, WS, 14, 15, WS_BYTES)
    srd(a, DBG, 12, 13, 256)
    srd(a, WO, 8, 9, WO_BYTES)
    a("v_lshlrev_b32 v1, 4, v0")
    a("v_and_b32 v15, 3, v0")
    a(f"v_lshrrev_b32 v{vWq}, 2, v0")
    a(f"v_mul_u32_u24 v{vWq}, 2688, v{vWq}")
    a(f"v_lshl_add_u32 v{vWq}, v15, 4, v{vWq}")
    a(f"s_mul_i32 s3, s{sH}, 56")
    a("s_and_b32 s3, s3, 0xfffffff0")
    a(f"s_add_u32 s{sWQ}, s{sWQ}, s3")
    a(f"v_mov_b32 v{vZ}, 0")
    kv_poll_addr(a, vP, 16)
    mask_addr(a, vM)
    srd(a, WQS, 6, 7, W_BYTES)
    a(f"s_lshr_b32 s{sIT}, s{sWM}, 1")
    qn = [0]
    def issue_q():
        c = qn[0]; qn[0] += 1
        a(f"s_mul_i32 s{sBb}, s{sKQ}, 172032")
        a(f"s_add_u32 m0, s{sIT}, {L_WQ + c*4096}")
        a(f"s_add_u32 s{sBb}, s{sBb}, s{sWQ}")
        a(f"buffer_load_dwordx4 v{vWq}, {sr(WQS)}, s{sBb} offen lds")
        a(f"s_add_u32 s{sKQ}, s{sKQ}, 1")
        a(f"s_cmp_eq_u32 s{sKQ}, 7")
        a(f"s_cselect_b32 s{sKQ}, 0, s{sKQ}")
    order = [0]*6 + [1]*6
    for c in range(7):
        if c + 2 < 7:
            issue(c + 2); order += [c + 2] * 6
        for i in range(NQ[c]):
            issue_q(); order.append(-1)
        last = max(i for i, x in enumerate(order) if x == c)
        a(f"s_waitcnt vmcnt({len(order) - 1 - last})")
        ts(f"w{c}", grp=1)
        a("s_barrier")
    if NQ[7]:
        a("s_barrier")
        for i in range(NQ[7]): issue_q()
    a(f"s_cmp_lg_u32 s{sW}, 0")
    a("s_cbranch_scc1 L_pollgo_done")
    poll(a, "L_pollgo", vZ, 1, 0, DBG, 1, atomic=False)
    a("s_waitcnt vmcnt(0)")
    ts("h_wq", grp=1)
    a("s_barrier")
    def poll_mask():
        set_exec(a, "0xf", 0)
        flag_read(a, vP, WS)
        a("s_waitcnt vmcnt(0)")
        a("v_readlane_b32 s4, v15, 0")
        a("v_readlane_b32 s5, v15, 1")
        a("v_readlane_b32 s6, v15, 2")
        a("v_readlane_b32 s7, v15, 3")
        a("s_and_b32 s4, s4, s5")
        a("s_and_b32 s6, s6, s7")
        a("s_and_b32 s4, s4, s6")
        a("s_lshl_b32 s5, s4, 16")
        a("s_or_b32 s4, s4, s5")
        a(f"s_lshr_b32 s4, s4, s{sB}")
        a("s_and_b32 s4, s4, 0xffff")
        a("s_cmp_eq_u32 s4, 0xffff")
        a("s_cselect_b32 s4, 0x7ffff, s4")
        a("v_mov_b32 v15, s4")
        a(f"ds_write_b32 v{vM}, v15")
        set_exec(a, HI, HI)
    if PREPOLL:
        a(f"s_sleep {PREPOLL}")
        poll_mask()
    else:
        a(f"ds_write_b32 v{vM}, v{vZ}")
        a("s_mov_b32 s4, 0")
    a("s_waitcnt lgkmcnt(0)")
    a("s_barrier")
    a(f"s_mov_b32 s{sCNT}, 0x100000")
    a.lab("L_hpoll")
    a("s_cmp_eq_u32 s4, 0x7ffff")
    a("s_cbranch_scc1 L_hpoll_done")
    a(f"s_sub_u32 s{sCNT}, s{sCNT}, 1")
    a("s_cbranch_scc1 L_hpoll_giveup")
    poll_mask()
    if SLEEP: a(f"s_sleep {SLEEP}")
    a("s_branch L_hpoll")
    a.lab("L_hpoll_giveup")
    a("v_mov_b32 v15, 0x7ffff")
    a(f"ds_write_b32 v{vM}, v15")
    a.lab("L_hpoll_done")
    ts("h_all", grp=1)
    a("v_lshrrev_b32 v16, 4, v0")
    a(f"v_mul_u32_u24 v{vWo}, 896, v16")
    a("v_lshlrev_b32 v16, 2, v16")
    a("v_and_b32 v17, 15, v0")
    a("v_xor_b32 v16, v16, v17")
    a(f"v_lshl_add_u32 v{vWo}, v16, 4, v{vWo}")
    a(f"s_mul_i32 s{sWoS}, s{sCS4}, 224")
    a(f"s_and_b32 s{sWoS}, s{sWoS}, 0xffffffc0")
    a(f"s_mul_i32 s3, s{sW}, {28*3584}")
    a(f"s_add_u32 s{sWoS}, s{sWoS}, s3")
    a(f"s_mul_i32 s3, s{sW}, {28*1024}")
    a(f"s_add_u32 m0, s3, {L_WO}")
    a(f"s_mov_b32 s{sIT}, 28")
    a("s_sleep 16")
    a.lab("L_wo")
    a("s_sleep 3")
    a(f"buffer_load_dwordx4 v{vWo}, {sr(WO)}, s{sWoS} offen lds")
    a("s_add_u32 m0, m0, 1024")
    a(f"s_add_u32 s{sWoS}, s{sWoS}, 3584")
    a(f"s_sub_u32 s{sIT}, s{sIT}, 1")
    a(f"s_cmp_lg_u32 s{sIT}, 0")
    a("s_cbranch_scc1 L_wo")
    a(f"s_lshl_b32 s3, s{sT3}, {FSH}")
    a(f"s_add_u32 s3, s3, {FL_OFF + (256 << FSH)}")
    a(f"v_mov_b32 v{vP}, s3")
    a(f"s_lshl_b32 s4, s{sW}, 2")
    a("s_lshl_b32 s4, 15, s4")
    a(f"s_lshl_b32 s3, s{sT3}, 2")
    a(f"s_add_u32 s3, s3, s{sW}")
    a("s_lshl_b32 s3, s3, 13")
    a(f"s_add_u32 s3, s3, {O_OFF}")
    a(f"s_add_u32 s{sA}, s3, 4096")
    a(f"s_lshl_b32 s{sBb}, s{sW}, 13")
    a(f"s_add_u32 s{sBb}, s{sBb}, {L_CMB}")
    a(f"v_add_u32 v{vM}, s{sBb}, v1")
    a("s_waitcnt vmcnt(0) lgkmcnt(0)")
    ts("h_wo", grp=1)
    a("s_barrier")
    poll(a, "L_poll2", vP, 1, 0, WS, "s4")
    ts("h_poll2", grp=1)
    for f in range(8):
        a(f"buffer_load_dwordx4 {vr(32+4*f,4)}, v1, {sr(WS)}, {'s3' if f < 4 else 's%d' % sA} offen offset:{1024*(f%4)} sc1")
    a("s_barrier")
    for f in range(8):
        a(f"s_waitcnt vmcnt({7-f})")
        a(f"ds_write_b128 v{vM}, {vr(32+4*f,4)} offset:{1024*f}")
    a("s_waitcnt lgkmcnt(0)")
    ts("h_stage", grp=1)
    a("s_barrier")
    if TS and TSG == 1: ts.dump()
    a("s_endpgm")

def kernel(a):
    name = NAME + "_kernel"
    a.raw(f".globl {name}")
    a.raw(".p2align 8")
    a.raw(f".type {name},@function")
    a.lab(name)
    ts = Stamps(a)
    ts("start")
    a("s_cmp_ge_u32 s2, 256")
    a("s_cbranch_scc1 L_end")
    a("s_load_dwordx8 s[4:11], s[0:1], 0")
    a("s_load_dwordx4 s[12:15], s[0:1], 32")
    a("v_lshrrev_b32 v1, 6, v0")
    a("v_and_b32 v0, 63, v0")
    a(f"v_readfirstlane_b32 s{sA}, v1")
    decode_hb(a)
    a(f"s_and_b32 s{sW}, s{sA}, 3")
    a(f"s_lshl_b32 s{sT}, s{sB}, 2")
    a(f"s_and_b32 s{sT3}, s{sH}, 3")
    a(f"s_add_u32 s{sT3}, s{sT3}, s{sT}")
    a(f"s_add_u32 s{sT}, s{sT}, s{sW}")
    a(f"s_lshr_b32 s{sCS4}, s{sH}, 2")
    a(f"s_cmp_lt_u32 s{sA}, 4")
    a("s_cbranch_scc1 L_compute")
    helper(a, ts)
    a.lab("L_compute")
    t0, t1, t2, t3, t4, t5 = vT
    a("s_waitcnt lgkmcnt(0)")
    srd(a, WS, 14, 15, WS_BYTES)
    srd(a, DBG, 12, 13, 256)
    a("v_mov_b32 v250, 1")
    a("v_mov_b32 v251, 0")
    a(f"v_lshlrev_b32 v252, {FSH}, v0")
    a(f"s_lshl_b32 s{sLD}, s{sW}, 3")
    a(f"s_or_b32 s{sLD}, s{sLD}, s2")
    a(f"s_cmp_ge_u32 s{sLD}, 8")
    a("s_cbranch_scc1 L_nocand")
    set_exec(a, 1, 0)
    a(f"buffer_atomic_add v250, v251, {sr(DBG)}, 0 offen offset:128 sc0 sc1")
    if any(x.startswith("--spin=") for x in sys.argv):
        a("v_mov_b32 v253, s66")
        a("v_not_b32 v253, v253")
        a(f"buffer_atomic_umax v253, v251, {sr(DBG)}, 0 offen offset:192 sc1")
    set_exec(a, HI, HI)
    a.lab("L_nocand")
    a("v_lshlrev_b32 v1, 4, v0")
    a("v_and_b32 v15, 3, v0")
    a("v_and_b32 v2, 31, v0")
    a(f"v_lshlrev_b32 v{vV0}, 4, v2")
    a("v_lshlrev_b32 v2, 7, v2")
    a("v_bfe_u32 v3, v0, 1, 3")
    a("v_lshrrev_b32 v4, 5, v0")
    a(f"v_mul_u32_u24 v{vV1}, {V_PLANE}, v4")
    a(f"v_add_u32 v{vV0}, v{vV0}, v{vV1}")
    a("v_xor_b32 v3, v3, v4")
    a("v_lshl_add_u32 v2, v3, 4, v2")
    a(f"s_lshl_b32 s3, s{sW}, 14")
    a(f"s_add_u32 s3, s3, {L_XR}")
    a("v_add_u32 v2, s3, v2")
    a("v_xor_b32 v3, 32, v2")
    a("v_xor_b32 v5, 96, v2")
    a(f"v_bfe_u32 v{t0}, v0, 2, 2")
    a(f"v_lshl_add_u32 v{t1}, v4, 3, v{t0}")
    a("v_xor_b32 v4, 64, v2")
    a(f"v_bfe_u32 v{t2}, v0, 4, 1")
    a(f"v_lshlrev_b32 v{t2}, 5, v{t2}")
    a(f"v_lshrrev_b32 v{t3}, 1, v15")
    a(f"v_and_b32 v{t4}, 1, v15")
    a(f"v_lshl_add_u32 v{t3}, v{t4}, 1, v{t3}")
    a(f"v_lshl_add_u32 v{t3}, v{t3}, 3, v{t2}")
    a(f"v_lshl_add_u32 v{t4}, v15, 3, v{t2}")
    a(f"v_lshl_add_u32 v{vQR}, v{t1}, 6, v{t3}")
    a(f"v_add_u32 v{vQR}, {L_WQ}, v{vQR}")
    a(f"s_cmp_lt_u32 s{sH}, 7")
    a("s_cselect_b64 vcc, -1, 0")
    a(f"v_cndmask_b32 v{t3}, v{t4}, v{t3}, vcc")
    a(f"v_lshrrev_b32 v{t0}, 1, v{t0}")
    a(f"v_lshl_add_u32 v{t3}, v{t0}, 6, v{t3}")
    a(f"v_lshl_add_u32 v{vWR[0]}, v{t1}, 7, v{t3}")
    a(f"v_xor_b32 v{vWR[1]}, 64, v{vWR[0]}")
    mask_addr(a, vMk)
    a(f"s_lshl_b32 s3, 1, s{sB}")
    a(f"v_mov_b32 v{vOne}, s3")
    a(f"s_lshl_b32 s3, s{sH}, 4")
    a(f"s_add_u32 s3, s3, s{sW}")
    a(f"v_lshl_add_u32 v{vP1}, v0, 2, s3")
    a(f"v_lshlrev_b32 v{vP1}, {FSH}, v{vP1}")
    a(f"v_add_u32 v{vP1}, {FL_OFF}, v{vP1}")
    a(f"s_lshl_b32 s{sA}, s{sT}, {FSH}")
    a(f"s_add_u32 s{sA}, s{sA}, {FL_OFF + (256 << FSH)}")
    a(f"v_mov_b32 v{vFl2}, s{sA}")
    a(f"v_lshrrev_b32 v{vFl}, 3, v0")
    a(f"v_mul_u32_u24 v{vFl}, {V_PLANE}, v{vFl}")
    a(f"v_and_b32 v{t0}, 7, v0")
    a(f"v_lshl_add_u32 v{vFl}, v{t0}, 4, v{vFl}")
    a(f"v_cmp_eq_u32 vcc, 0, v{t0}")
    a(f"v_mov_b32 v{t1}, 0x3f803f80")
    a("s_nop 0")
    for r in range(4):
        a(f"v_cndmask_b32 v{216+r}, 0, v{t1}, vcc")
    srd(a, OUT, 10, 11, OUT_BYTES)
    srd(a, KVS, 14, 15, KV_BYTES)
    def rd(c, i):
        a(f"ds_read_b128 {vr(XF+16*c+4*i,4)}, v{vXR[i]} offset:{(c%4)*4096}")
        for p in range(2):
            for r in range(2):
                a(f"ds_read_b64_tr_b16 {vr(WF+8*i+4*p+2*r,2)}, v{vWR[p]} offset:{L_WKV + (c*4+i)*2048 + r*512}")
    def phase1a(kind):
        def mm(c, i):
            x = vr(XF+16*c+4*i, 4)
            first = (c == 0 and i == 0)
            for p, acc in ((0, A0), (1, A1)):
                w = vr(WF+8*i+4*p, 4)
                if kind == "K": mfma(a, vr(acc,16), w, x, "0" if first else vr(acc,16))
                else: mfma(a, vr(acc,16), x, w, "0" if first else vr(acc,16))
        for c in range(7):
            a("s_barrier")
            if c == 0: ts("c0")
            rd(c, 0); rd(c, 1)
            if c == 0:
                a("s_waitcnt vmcnt(0)")
                a(f"v_readfirstlane_b32 s{sLD}, v250")
                a(f"s_mov_b32 s3, {FL_OFF}")
                a(f"s_cmp_lg_u32 s{sLD}, 0")
                a(f"s_cbranch_scc1 L_noclear{kind}")
                for i in range(5):
                    a(f"buffer_store_dword v251, v252, {sr(WS)}, s3 offen sc1")
                    a(f"s_add_u32 s3, s3, {64 << FSH}")
                a.lab(f"L_noclear{kind}")
            if c == 4:
                a(f"s_cmp_lg_u32 s{sLD}, 0")
                a(f"s_cbranch_scc1 L_nogo{kind}")
                a("v_mov_b32 v250, 1")
                a("s_waitcnt vmcnt(0)")
                set_exec(a, 1, 0)
                a(f"buffer_store_dword v250, v251, {sr(DBG)}, 0 offen sc1")
                set_exec(a, HI, HI)
                a.lab(f"L_nogo{kind}")
            if c > 0: mm(c-1, 2)
            rd(c, 2)
            if c > 0: mm(c-1, 3)
            a("s_waitcnt lgkmcnt(10)")
            rd(c, 3)
            mm(c, 0)
            a("s_waitcnt lgkmcnt(10)")
            mm(c, 1)
            a("s_waitcnt lgkmcnt(0)")
        mm(6, 2); mm(6, 3)
        ts("kv_mm")
        a(f"s_lshl_b32 s{sKV}, s{sT}, 16")
        if kind == "K":
            a(f"s_lshl_b32 s3, s{sH}, 12")
            a(f"s_add_u32 s3, s3, s{sKV}")
            a("s_nop 7")
        else:
            a(f"s_mul_i32 s3, s{sH}, {V_LINE}")
            a(f"s_add_u32 s3, s3, s{sKV}")
            a(f"s_add_u32 s3, s3, {V_BASE - 7*V_LINE}")
            a(f"s_add_u32 s{sA}, s3, {2*V_PLANE}")
            a(f"s_cmp_lt_u32 s{sH}, 14")
            a(f"s_cselect_b32 s{KVS+2}, {KV_BYTES}, 0")
            set_exec(a, HI, 0)
            a(f"buffer_store_dwordx4 v[216:219], v{vFl}, {sr(KVS)}, s3 offen offset:1024 sc1")
            set_exec(a, HI, HI)
        for p, acc in ((0, A0), (1, A1)):
            for f in range(2):
                for i in range(4):
                    a(f"v_cvt_pk_bf16_f32 v{PK+8*p+4*f+i}, v{acc+8*f+2*i}, v{acc+8*f+2*i+1}")
                d = vr(PK+8*p+4*f, 4)
                if kind == "K":
                    a(f"buffer_store_dwordx4 {d}, v1, {sr(KVS)}, s3 offen offset:{2048*p+1024*f} sc1")
                else:
                    a(f"buffer_store_dwordx4 {d}, v{vV0}, {sr(KVS)}, {'s3' if f == 0 else 's%d' % sA} offen offset:{512*p} sc1")
    a(f"s_cmp_lt_u32 s{sH}, 7")
    a("s_cbranch_scc0 L_vline")
    phase1a("K")
    a("s_branch L_q")
    a.lab("L_vline")
    phase1a("V")
    a.lab("L_q")
    ts("kv_st")
    if NQ[7]: a("s_barrier")
    a(f"s_mul_i32 s4, s{sH}, 56")
    a("s_lshr_b32 s5, s4, 4")
    a("s_lshl_b32 s5, s5, 9")
    a(f"v_add_u32 v{vKo}, s5, v1")
    a("s_lshr_b32 s4, s4, 1")
    a(f"v_and_b32 v{t0}, 31, v0")
    a(f"v_add_u32 v{t1}, s4, v{t0}")
    a(f"v_lshrrev_b32 v{t2}, 6, v{t1}")
    a(f"v_lshl_add_u32 v{t1}, v{t2}, 3, v{t1}")
    a("s_lshr_b32 s5, s4, 6")
    a("s_mul_i32 s5, s5, 72")
    a("s_add_u32 s5, s5, 36")
    a(f"v_add_u32 v{t2}, s5, v{t0}")
    a(f"v_cmp_gt_u32 vcc, 28, v{t0}")
    a(f"v_add_u32 v{vV1}, {V_BASE}, v{vV1}")
    a("s_nop 0")
    a(f"v_cndmask_b32 v{t1}, v{t2}, v{t1}, vcc")
    a(f"v_lshl_add_u32 v{vV0}, v{t1}, 4, v{vV1}")
    a(f"v_add_u32 v{vV1}, {2*V_PLANE}, v{vV0}")
    for r in range(220, 240):
        a(f"v_mov_b32 v{r}, 0")
    a(f"s_mov_b32 s{KVS+2}, {KV_BYTES}")
    a("s_barrier")
    ts("b7")
    def rdq(s):
        for r in range(2):
            a(f"ds_read_b64_tr_b16 {vr(WF+4*(s%8)+2*r,2)}, v{vQR} offset:{s*1024 + r*256}")
    for s in range(6): rdq(s)
    for s in range(28):
        if s + 6 < 28:
            rdq(s + 6)
            a("s_waitcnt lgkmcnt(12)")
        else:
            a(f"s_waitcnt lgkmcnt({2*(27-s)})")
        mfma(a, vr(AQ,16), vr(WF+4*(s%8),4), vr(XF+4*s,4), "0" if s == 0 else vr(AQ,16))
        if s + 1 == FLAGPOS:
            a("s_waitcnt vmcnt(0)")
            set_exec(a, "0xf", 0)
            a(f"buffer_atomic_or v{vOne}, v{vP1}, {sr(WS)}, 0 offen sc1")
            set_exec(a, HI, HI)
            ts("kv_flag")
    ts("q_mm")
    a(f"s_mov_b32 s3, {f32bits(QSCALE):#x}")
    a(f"s_lshl_b32 s{sA}, s{sW}, 11")
    a(f"s_add_u32 s{sA}, s{sA}, {L_CMB}")
    a(f"v_add_u32 v{t0}, s{sA}, v1")
    for r in range(176, 184):
        a(f"v_mov_b32 v{r}, 0")
    for r in range(16):
        a(f"v_mul_f32 v{AQ+r}, s3, v{AQ+r}")
    Q3 = Q + 24
    for i in range(8):
        a(f"v_cvt_pk_bf16_f32 v{Q3+i}, v{AQ+2*i}, v{AQ+2*i+1}")
    a(f"s_bitcmp1_b32 s{sH}, 0")
    a("s_cselect_b32 exec_lo, -1, 0")
    a("s_mov_b32 exec_hi, 0")
    a(f"v_mov_b32 v{Q3}, 0")
    a(f"v_mov_b32 v{Q3+1}, 0")
    a("s_cselect_b32 exec_hi, 0, -1")
    a("s_mov_b32 exec_lo, 0")
    a(f"v_mov_b32 v{Q3+6}, 0")
    a(f"v_mov_b32 v{Q3+7}, 0")
    set_exec(a, HI, HI)
    a(f"ds_write_b128 v{t0}, {vr(Q3,4)}")
    a(f"ds_write_b128 v{t0}, {vr(Q3+4,4)} offset:1024")
    for i in range(3):
        a(f"s_add_u32 s{sA}, s{sW}, {1+i}")
        a(f"s_and_b32 s{sA}, s{sA}, 3")
        a(f"s_lshl_b32 s{sA}, s{sA}, 11")
        a(f"s_add_u32 s{sA}, s{sA}, {L_CMB}")
        a(f"v_add_u32 v{vT[1+i]}, s{sA}, v1")
    for r in range(4):
        a(f"v_mov_b32 v{KV+48+12+r}, 0")
    a(f"s_mov_b32 s{sRDY}, 0")
    a(f"s_mov_b32 s{sTODO}, 0x7ffff")
    a("s_waitcnt lgkmcnt(0)")
    a("s_barrier")
    for i in range(3):
        a(f"ds_read_b128 {vr(Q+8*i,4)}, v{vT[1+i]}")
        a(f"ds_read_b128 {vr(Q+8*i+4,4)}, v{vT[1+i]} offset:1024")
    ts("q_done")
    def ldk(slot):
        for f in range(2):
            a(f"buffer_load_dwordx4 {vr(KV+16*slot+4*f,4)}, v{vKo}, {sr(KVS)}, s{sKV} offen offset:{1024*f} sc1")
    def ldv(slot):
        a(f"buffer_load_dwordx4 {vr(KV+16*slot+8,4)}, v{vV0}, {sr(KVS)}, s{sKV} offen sc1")
        a(f"buffer_load_dwordx4 {vr(KV+16*slot+12,4)}, v{vV1}, {sr(KVS)}, s{sKV} offen sc1")
    npick = [0]
    def pick_ops():
        n = npick[0]; npick[0] += 1
        def p0(): a(f"s_and_b32 s{sAV}, s{sRDY}, s{sTODO}")
        def p1():
            a(f"s_cbranch_scc0 L_slow{n}")
            a.lab(f"L_back{n}")
        def p2(): a(f"s_ff1_i32_b32 s{sAV}, s{sAV}")
        def p3(): a(f"s_bitset0_b32 s{sTODO}, s{sAV}")
        def p4(): a(f"s_lshl2_add_u32 s{sBb}, s{sAV}, s{sT}")
        def p5(): a(f"s_and_b32 s{sBb}, s{sBb}, 63")
        def p6(): a(f"s_and_b32 s{sAV}, s{sAV}, 16")
        def p7(): a(f"s_lshl2_add_u32 s{sBb}, s{sAV}, s{sBb}")
        def p8(): a(f"s_lshl_b32 s{sKV}, s{sBb}, 16")
        return [p0, p1, p2, p3, p4, p5, p6, p7, p8]
    for sl in range(3):
        for f in pick_ops(): f()
        ldk(sl); ldv(sl)
        if sl == 0: ts("pick0")
    for f in pick_ops(): f()
    for r in range(184, 220):
        a(f"v_mov_b32 v{r}, 0")
    for r in range(4):
        a(f"v_mov_b32 v{P+4+r}, 0")
    a(f"s_mov_b32 s{sIT}, 3")
    vC = vT[1:4]; vCR = vT[4]
    a("s_waitcnt lgkmcnt(0)")
    for i in range(3):
        a(f"s_add_u32 s3, s{sW}, {1+i}")
        a("s_and_b32 s3, s3, 3")
        a("s_mul_i32 s3, s3, 12288")
        a(f"s_add_u32 s3, s3, {L_CMB + 4096*i}")
        a(f"v_add_u32 v{vC[i]}, s3, v1")
    a(f"s_mul_i32 s3, s{sW}, 12288")
    a(f"s_add_u32 s3, s3, {L_CMB}")
    a(f"v_add_u32 v{vCR}, s3, v1")
    a("s_waitcnt vmcnt(8)")
    ts("kv0")
    def mS(part, t):
        slot = (t // 4) % 4; qt = t % 4
        d = vr(S[t % 2], 16)
        mfma(a, d, vr(KV+16*slot+4*part,4), vr(Q+8*qt+4*part,4), "0" if part == 0 else d)
    def mPV(part, t):
        slot = (t // 4) % 4; qt = t % 4
        d = vr(O + 16*qt, 16)
        mfma(a, d, vr(KV+16*slot+8+4*part,4), vr(P+4*part,4), d)
    def EC(t, g):
        s = S[t % 2] + 4*g
        for r in range(4):
            a(f"v_exp_f32 v{s+r}, v{s+r}")
        a(f"v_cvt_pk_bf16_f32 v{P+2*g}, v{s}, v{s+1}")
        a(f"v_cvt_pk_bf16_f32 v{P+2*g+1}, v{s+2}, v{s+3}")
    mS(0, 0); mS(1, 0)
    ts("att0", cyc=True)
    a("s_nop 7")
    a("s_nop 3")
    a.raw(".p2align 6")
    a.lab("L_loop")
    def tile(j, last=False):
        fs = [None] * 16
        if not last:
            fs[11] = lambda: a("s_waitcnt vmcnt(8)")
            po = pick_ops()
            for k, f in enumerate(po): fs[2 + k] = f
            if j == 2:
                fs[14] = lambda: a(f"s_sub_u32 s{sIT}, s{sIT}, 1")
        else:
            def wr(i, g):
                return lambda: a(f"ds_write_b128 v{vC[i]}, {vr(O+16*i+4*g,4)} offset:{1024*g}")
            for i in range(3):
                fs[4*(i+1) + 3] = wr(i, 0)
                if i < 2:
                    for g in range(1, 4): fs[4*(i+2) + g - 1] = wr(i, g)
        for st in range(4):
            t = 4*j + st
            f = fs[4*st:4*st+4]
            if not (last and st == 3): mS(0, t+1)
            if st == 0 and not last: ldk((j + 3) % 4)
            if f[0]: f[0]()
            EC(t, 0)
            mPV(1, (t - 1) % 16)
            if st == 0 and not last: ldv((j + 3) % 4)
            if f[1]: f[1]()
            EC(t, 1)
            if not (last and st == 3): mS(1, t+1)
            if f[2]: f[2]()
            EC(t, 2)
            mPV(0, t)
            if f[3]: f[3]()
            EC(t, 3)
    for j in range(3): tile(j)
    a("s_cbranch_scc1 L_last")
    tile(3)
    a("s_branch L_loop")
    a.lab("L_last")
    tile(3, last=True)
    a(f"ds_write_b128 v{vC[2]}, {vr(O+32+4,4)} offset:1024")
    a(f"ds_write_b128 v{vC[2]}, {vr(O+32+8,4)} offset:2048")
    mPV(1, 15)
    a(f"ds_write_b128 v{vC[2]}, {vr(O+32+12,4)} offset:3072")
    ts("att1", cyc=True)
    ts("att1")
    a(f"s_mov_b32 s4, {f32bits(2.0**62):#x}")
    a(f"s_mov_b32 s5, {f32bits(2.0**-62):#x}")
    a("s_waitcnt vmcnt(0) lgkmcnt(0)")
    a("s_barrier")
    R = O
    F = O + 48
    for i in range(3):
        for g in range(4):
            a(f"ds_read_b128 {vr(R+16*i+4*g,4)}, v{vCR} offset:{4096*i+1024*g}")
    a(f"s_lshl_b32 s3, s{sT}, 4")
    a(f"s_add_u32 s3, s3, s{sH}")
    a("s_lshl_b32 s3, s3, 11")
    a(f"s_add_u32 s3, s3, {O_OFF}")
    for i in range(3):
        a(f"s_waitcnt lgkmcnt({8-4*i})")
        for r in range(16):
            a(f"v_add_f32 v{F+r}, v{F+r}, v{R+16*i+r}")
    a(f"v_cmp_nge_f32 s[6:7], s4, v{F+12}")
    a(f"v_cmp_nle_f32 vcc, s5, v{F+12}")
    a("s_or_b64 s[6:7], s[6:7], vcc")
    a("s_cmp_lg_u32 s7, 0")
    a("s_cbranch_scc1 L_fallback")
    a.lab("L_norm")
    a(f"v_mov_b32 v{t0}, v{F+12}")
    a(f"v_mov_b32 v{t1}, v{F+12}")
    a("s_nop 1")
    a(f"v_permlane32_swap_b32 v{t0}, v{t1}")
    a("s_nop 1")
    a(f"v_rcp_f32 v{t1}, v{t1}")
    set_exec(a, 0, HI)
    a(f"v_mov_b32 v{F+12}, 0")
    set_exec(a, HI, HI)
    for r in range(16):
        a(f"v_mul_f32 v{F+r}, v{F+r}, v{t1}")
    PO = 240
    for i in range(8):
        a(f"v_cvt_pk_bf16_f32 v{PO+i}, v{F+2*i}, v{F+2*i+1}")
    a(f"buffer_store_dwordx4 {vr(PO,4)}, v1, {sr(WS)}, s3 offen sc1")
    a(f"buffer_store_dwordx4 {vr(PO+4,4)}, v1, {sr(WS)}, s3 offen offset:1024 sc1")
    ts("o_st")
    WOF, OF, ACC, D = 40, 168, 24, 232
    a(f"s_and_b32 s3, s{sCS4}, 1")
    a("s_lshl_b32 s3, s3, 5")
    a(f"s_mul_i32 s{sA}, s{sW}, 56")
    a(f"s_add_u32 s3, s3, s{sA}")
    a(f"v_bfe_u32 v{t0}, v0, 4, 1")
    a(f"v_lshlrev_b32 v{t0}, 5, v{t0}")
    a(f"v_and_b32 v{t1}, 3, v0")
    a(f"v_lshl_add_u32 v{t0}, v{t1}, 3, v{t0}")
    a(f"v_add_u32 v{t0}, s3, v{t0}")
    a(f"v_and_b32 v{t0}, 255, v{t0}")
    a(f"v_bfe_u32 v{t1}, v0, 2, 2")
    a(f"v_lshlrev_b32 v{t2}, 6, v{t1}")
    a(f"v_xor_b32 v{t0}, v{t0}, v{t2}")
    a(f"v_lshl_add_u32 v{t2}, v{t1}, 8, v{t0}")
    a(f"v_lshrrev_b32 v{t1}, 5, v0")
    a(f"v_lshl_add_u32 v{t0}, v{t1}, 10, v{t2}")
    a(f"v_add_u32 v{t1}, 0x10000, v{t0}")
    a(f"v_add_u32 v{t2}, 0x10000, v{t2}")
    def rdwo(hh):
        for u in range(2):
            for r in range(2):
                off = L_WO + (28*hh + 16*u + 8*r) * 256
                base = t0
                if off >= 0x10000:
                    off -= 0x10000; base = t1
                if hh == 15 and u == 1 and r == 1:
                    base = t2
                a(f"ds_read_b64_tr_b16 {vr(WOF+8*hh+4*u+2*r,2)}, v{base} offset:{off}")
    a(f"s_lshl_b32 s3, 1, s{sH}")
    a(f"v_mov_b32 v{vOne}, s3")
    for hh in range(6): rdwo(hh)
    a("s_waitcnt vmcnt(0)")
    set_exec(a, 1, 0)
    a(f"buffer_atomic_or v{vOne}, v{vFl2}, {sr(WS)}, 0 offen sc1")
    set_exec(a, HI, HI)
    ts("o_flag")
    for hh in range(6, 16): rdwo(hh)
    a(f"v_add_u32 v{t3}, {L_CMB}, v1")
    a(f"v_and_b32 v{t4}, 31, v0")
    a(f"v_mul_u32_u24 v{t4}, 896, v{t4}")
    a(f"v_lshrrev_b32 v{t5}, 5, v0")
    a(f"v_lshl_add_u32 v{t4}, v{t5}, 4, v{t4}")
    a(f"s_mul_i32 s{sKV}, s{sT3}, 28672")
    a(f"s_lshl_b32 s{sBb}, s{sCS4}, 2")
    a(f"s_add_u32 s{sBb}, s{sBb}, s{sW}")
    a(f"s_mul_i32 s{sBb}, s{sBb}, 56")
    a(f"s_add_u32 s{sKV}, s{sKV}, s{sBb}")
    a("s_barrier")
    a("s_barrier")
    ts("o_ld")
    NR = 16
    for f in range(12):
        a(f"ds_read_b128 {vr(OF+4*(f%NR),4)}, v{t3} offset:{1024*f}")
    for f in range(32):
        if f + 12 < 32:
            a(f"ds_read_b128 {vr(OF+4*((f+12)%NR),4)}, v{t3} offset:{1024*(f+12)}")
            a("s_waitcnt lgkmcnt(12)")
        else:
            a(f"s_waitcnt lgkmcnt({31-f})")
        mfma(a, vr(ACC,16), vr(WOF+4*f,4), vr(OF+4*(f%NR),4), "0" if f == 0 else vr(ACC,16))
    a("s_nop 7")
    a("s_nop 3")
    for i in range(8):
        a(f"v_cvt_pk_bf16_f32 v{D+i}, v{ACC+2*i}, v{ACC+2*i+1}")
    a(f"v_permlane32_swap_b32 v{D}, v{D+2}")
    a(f"v_permlane32_swap_b32 v{D+1}, v{D+3}")
    a(f"v_permlane32_swap_b32 v{D+4}, v{D+6}")
    a(f"v_permlane32_swap_b32 v{D+5}, v{D+7}")
    a(f"buffer_store_dwordx4 {vr(D,4)}, v{t4}, {sr(OUT)}, s{sKV} offen")
    set_exec(a, HI, 0)
    a(f"buffer_store_dwordx4 {vr(D+4,4)}, v{t4}, {sr(OUT)}, s{sKV} offen offset:32")
    set_exec(a, 0, HI)
    a(f"buffer_store_dwordx2 {vr(D+4,2)}, v{t4}, {sr(OUT)}, s{sKV} offen offset:32")
    ts("out_st")
    if TS:
        a("s_waitcnt vmcnt(0)")
        ts("end")
    if TS and TSG == 0: ts.dump()
    a.lab("L_end")
    a("s_endpgm")
    for n in range(npick[0]):
        a.lab(f"L_slow{n}")
        a(f"ds_read_b32 v15, v{vMk}")
        a("s_waitcnt lgkmcnt(0)")
        a(f"v_readfirstlane_b32 s{sRDY}, v15")
        a("s_nop 0")
        a(f"s_and_b32 s{sAV}, s{sRDY}, s{sTODO}")
        a(f"s_cbranch_scc0 L_slow{n}")
        a(f"s_branch L_back{n}")
    a.lab("L_fallback")
    a(f"s_mov_b32 s{sA}, s3")
    kv_poll_addr(a, vP1, t0)
    a(f"s_lshl_b32 s6, s{sW}, {FSH}")
    a(f"v_subrev_u32 v{vP1}, s6, v{vP1}")
    for w in range(4):
        poll(a, f"L_pollfb{w}", vP1, "0xf", 0, WS, "0xffff", off=w << FSH)
    a(f"s_mov_b32 s3, s{sA}")
    a(f"v_mov_b32 v{t0}, 0xff800000")
    a(f"s_mov_b32 s{sKV}, 0")
    SS = S0
    a.lab("L_fb1")
    ldk(0)
    a(f"s_add_u32 s{sKV}, s{sKV}, 0x10000")
    a("s_waitcnt vmcnt(0)")
    mfma(a, vr(SS,16), vr(KV,4), vr(Q3,4), "0")
    mfma(a, vr(SS,16), vr(KV+4,4), vr(Q3+4,4), vr(SS,16))
    a("s_nop 15")
    for r in range(0, 16, 2):
        a(f"v_max3_f32 v{t0}, v{t0}, v{SS+r}, v{SS+r+1}")
    a(f"s_cmp_lt_u32 s{sKV}, {KV_BYTES}")
    a("s_cbranch_scc1 L_fb1")
    a(f"v_mov_b32 v{t1}, v{t0}")
    a("s_nop 1")
    a(f"v_permlane32_swap_b32 v{t0}, v{t1}")
    a("s_nop 1")
    a(f"v_max_f32 v{t0}, v{t0}, v{t1}")
    for r in range(16):
        a(f"v_mov_b32 v{F+r}, 0")
    a(f"s_mov_b32 s{sKV}, 0")
    a.lab("L_fb2")
    ldk(0); ldv(0)
    a(f"s_add_u32 s{sKV}, s{sKV}, 0x10000")
    a("s_waitcnt vmcnt(0)")
    mfma(a, vr(SS,16), vr(KV,4), vr(Q3,4), "0")
    mfma(a, vr(SS,16), vr(KV+4,4), vr(Q3+4,4), vr(SS,16))
    a("s_nop 15")
    for r in range(16):
        a(f"v_sub_f32 v{SS+r}, v{SS+r}, v{t0}")
    for r in range(16):
        a(f"v_exp_f32 v{SS+r}, v{SS+r}")
    a("s_nop 0")
    for i in range(8):
        a(f"v_cvt_pk_bf16_f32 v{P+i}, v{SS+2*i}, v{SS+2*i+1}")
    a("s_nop 1")
    mfma(a, vr(F,16), vr(KV+8,4), vr(P,4), vr(F,16))
    mfma(a, vr(F,16), vr(KV+12,4), vr(P+4,4), vr(F,16))
    a(f"s_cmp_lt_u32 s{sKV}, {KV_BYTES}")
    a("s_cbranch_scc1 L_fb2")
    a("s_nop 15")
    a("s_branch L_norm")
    if TS:
        open("stamps.txt", "w").write(",".join(ts.names))
    return name

def main():
    a = A()
    name = kernel(a)
    head = open(f"cdna_kernels/{NAME}.s.ref").read().split("; Override")[0]
    out = head
    out += f"; @launch grid=(256,1,1) block=(512,1,1) lds={LDS_BYTES}\n"
    out += '.amdgcn_target "amdgcn-amd-amdhsa--gfx950"\n.text\n'
    out += a.text()
    out += f""".section .rodata,"a"
.p2align 6
.amdhsa_kernel {name}
  .amdhsa_next_free_vgpr 256
  .amdhsa_next_free_sgpr 102
  .amdhsa_accum_offset 256
  .amdhsa_group_segment_fixed_size 0
  .amdhsa_kernarg_size 48
  .amdhsa_user_sgpr_count 2
  .amdhsa_user_sgpr_kernarg_segment_ptr 1
  .amdhsa_system_sgpr_workgroup_id_x 1
.end_amdhsa_kernel
"""
    o = [x for x in sys.argv[1:] if not x.startswith("--")]
    path = o[0] if o else f"cdna_kernels/{NAME}.s"
    open(path, "w").write(out)
main()
```

```python
import sys, struct, math

NAME = "standalone__softmax_full_mha__prompt"
FL_OFF = 5 << 20
O_OFF = 6 << 20
TS_OFF = 8 << 20
WS_BYTES = 268435456
X_BYTES = 2048 * 448 * 2
W_BYTES = 448 * 1344 * 2
WO_BYTES = 448 * 448 * 2
OUT_BYTES = 2048 * 448 * 2
KV_BYTES = 4 << 20
V_BASE = 28672
V_LINE = 1152
V_PLANE = 7 * V_LINE
QSCALE = 28 ** -0.5 * math.log2(math.e)

def opt(name, default):
    for arg in sys.argv:
        if arg.startswith(f"--{name}="):
            return int(arg.split("=")[1])
    return default
TS = "--ts" in sys.argv
TSG = opt("tsg", 0)
MAP = opt("maph", 3)
FSH = opt("fsh", 8)
FLAGPOS = opt("flagpos", 20)
NQ = [int(c) for c in "%08d" % opt("nq", 700)]
assert sum(NQ) == 7
SLEEP = opt("sleep", 1)
LA = opt("la", 2)
PF = opt("pf", 0)
ROT = opt("rot", 1)
PREPOLL = opt("prepoll", 1)

def f32bits(x):
    return struct.unpack("<I", struct.pack("<f", x))[0]

class A:
    def __init__(self):
        self.l = []
    def __call__(self, s):
        for line in s.strip("\n").split("\n"):
            self.l.append("    " + line.strip())
    def lab(self, n):
        self.l.append(n + ":")
    def raw(self, s):
        self.l.append(s)
    def text(self):
        return "\n".join(self.l) + "\n"

def vr(b, n, k="v"):
    return f"{k}[{b}:{b+n-1}]"
def sr(b):
    return f"s[{b}:{b+3}]"

def srd(a, d, lo, hi, nbytes):
    a(f"s_mov_b32 s{d}, s{lo}")
    a(f"s_and_b32 s{d+1}, s{hi}, 0xffff")
    a(f"s_mov_b32 s{d+2}, {nbytes}")
    a(f"s_mov_b32 s{d+3}, 0x20000")

HI = "0xffffffff"
def set_exec(a, lo, hi):
    if lo == HI and hi == HI:
        a("s_mov_b64 exec, -1")
    elif hi == 0 and lo in (1, "0xf"):
        a(f"s_mov_b64 exec, {int(str(lo), 0)}")
    else:
        a(f"s_mov_b32 exec_lo, {lo}")
        a(f"s_mov_b32 exec_hi, {hi}")

class Stamps:
    def __init__(self, a):
        self.a = a; self.idx = {}; self.names = []
    def __call__(self, name, cyc=False, grp=0):
        if not TS: return
        if name != "start" and grp != TSG: return
        nm = name + ("(cyc)" if cyc else "")
        if nm not in self.idx:
            self.idx[nm] = len(self.names); self.names.append(nm)
        b = 66 + 2 * self.idx[nm]
        assert b + 1 < 102
        self.a(f"s_memtime s[{b}:{b+1}]" if cyc else f"s_memrealtime s[{b}:{b+1}]")
    def dump(self):
        if not TS: return
        a = self.a
        sp = [x for x in sys.argv if x.startswith("--spin=")]
        if sp:
            hi, lo, m = sp[0][7:].split(",")
            a("s_waitcnt lgkmcnt(0)")
            if lo == "G":
                a("v_mov_b32 v2, 0")
                a(f"buffer_load_dword v4, v2, {sr(DBG)}, 0 offen offset:192 sc1")
                a("s_waitcnt vmcnt(0)")
                a("v_readfirstlane_b32 s4, v4")
                a("s_nop 0")
                a("s_not_b32 s4, s4")
                a(f"s_sub_u32 s3, s{66+2*self.idx[hi]}, s4")
            else:
                a(f"s_sub_u32 s3, s{66+2*self.idx[hi]}, s{66+2*self.idx[lo]}")
            only = opt("only", -1)
            if only >= 0:
                a("s_and_b32 s4, s2, 7")
                a(f"s_cmp_eq_u32 s4, {only}")
                a("s_cselect_b32 s3, s3, 0")
            a(f"s_mul_i32 s3, s3, {m}")
            a(f"s_add_u32 s3, s3, s{66+2*self.idx['end' if TSG == 0 else 'h_stage']}")
            a.lab("L_spin")
            a("s_memrealtime s[4:5]")
            a("s_waitcnt lgkmcnt(0)")
            a("s_sub_u32 s4, s4, s3")
            a("s_cmp_lt_i32 s4, 0")
            a("s_cbranch_scc1 L_spin")
            return
        if "--dbg" in sys.argv:
            sel = ["start", "start", "c0", "kv_mm", "b7", "q_done", "kv0", "att1", "o_flag", "o_ld", "end"]
            a("s_waitcnt lgkmcnt(0)")
            a(f"s_cmp_lg_u32 s{sW}, 0")
            a("s_cbranch_scc1 L_end")
            a("s_mov_b64 exec, 1")
            a("v_mov_b32 v2, 0")
            for i, nm in enumerate(sel):
                a(f"v_mov_b32 v4, s{66+2*self.idx[nm]}")
                if i == 0: a("v_not_b32 v4, v4")
                a(f"buffer_atomic_umax v4, v2, {sr(DBG)}, 0 offen offset:{8+4*i} sc1")
                a("s_nop 1")
            for i, nm in enumerate(["end", "kv0", "c0"]):
                a(f"s_sub_u32 s3, s{66+2*self.idx[nm]}, s66")
                a("v_mov_b32 v4, s3")
                a(f"buffer_atomic_umax v4, v2, {sr(DBG)}, 0 offen offset:{52+4*i} sc1")
                a("s_nop 1")
            a("s_waitcnt vmcnt(0)")
            return
        a("s_waitcnt lgkmcnt(0)")
        a(f"s_lshl_b32 s3, s2, 2")
        a(f"s_add_u32 s3, s3, s{sW}")
        a(f"s_lshl_b32 s3, s3, 7")
        a(f"s_add_u32 s3, s3, {TS_OFF}")
        a("s_mov_b64 exec, 1")
        a("v_mov_b32 v2, 0")
        for i in range(18):
            a(f"v_mov_b32 v4, s{66+2*i}")
            a(f"buffer_store_dword v4, v2, {sr(WS)}, s3 offen offset:{4*i}")
            a("s_nop 1")
        a("s_waitcnt vmcnt(0)")

X, W, WO, OUT, DBG, WS, KVS = 16, 20, 24, 28, 32, 36, 40
sH, sB, sW, sT = 44, 45, 46, 47
sKC, sXB, sWB, sXM, sWM = 48, 49, 50, 51, 52
sRDY, sTODO, sAV, sRET = 48, 49, 50, 64
sA, sBb = 53, 54
sKV, sIT, sWQ, sWoS, sCNT = 55, 56, 57, 58, 59
sKQ, sLD = 60, 61
WQS = KVS
sT3, sCS4 = 62, 63
L_WKV, L_WQ, L_XR = 0, 57344, 86016
L_WO, L_CMB = 0, 114688
LDS_BYTES = 163840
vXR = [2, 3, 4, 5]
vWR = [6, 7]
vQR, vOne, vFl, vFl2, vP1, vMk = 8, 9, 10, 11, 12, 13
vKo, vV0, vV1 = 14, 16, 17
vT = [18, 19, 20, 21, 22, 23]
A0, A1 = 24, 40
AQ = A0
XF = 56
WF = 168
PK = 200
Q, S0, P, KV, O = 40, 72, 104, 112, 176
S = [S0, S0 + 16]

def decode_hb(a):
    nhg = 16 >> MAP
    lg = int(math.log2(nhg))
    a(f"s_and_b32 s{sH}, s2, {nhg-1}")
    a(f"s_lshl_b32 s{sH}, s{sH}, {MAP}")
    a(f"s_lshr_b32 s3, s2, 3")
    a(f"s_and_b32 s{sB}, s3, {(1<<MAP)-1}")
    a(f"s_add_u32 s{sH}, s{sH}, s{sB}")
    a(f"s_lshr_b32 s3, s3, {MAP}")
    a(f"s_and_b32 s{sB}, s2, 7")
    a(f"s_lshr_b32 s{sB}, s{sB}, {lg}")
    a(f"s_mul_i32 s{sB}, s{sB}, {32>>MAP}")
    a(f"s_add_u32 s{sB}, s{sB}, s3")

def mfma(a, d, x, y, c):
    a(f"v_mfma_f32_32x32x16_bf16 {d}, {x}, {y}, {c}")

def flag_read(a, vaddr, srdn, off=0):
    a("v_mov_b32 v15, 0")
    a(f"buffer_atomic_or v15, v{vaddr}, {sr(srdn)}, 0 offen offset:{off} sc0 sc1")

def poll(a, label, vaddr, lo, hi, srdn, smask, off=0, atomic=True):
    a(f"s_mov_b32 s{sCNT}, 0x100000")
    set_exec(a, lo, hi)
    a(f"s_branch {label}_in")
    a.lab(label)
    if SLEEP: a(f"s_sleep {SLEEP}")
    a.lab(label + "_in")
    if atomic: flag_read(a, vaddr, srdn, off)
    else: a(f"buffer_load_dword v15, v{vaddr}, {sr(srdn)}, 0 offen offset:{off} sc1")
    a(f"s_sub_u32 s{sCNT}, s{sCNT}, 1")
    a(f"s_cbranch_scc1 {label}_done")
    a("s_waitcnt vmcnt(0)")
    a(f"v_and_b32 v15, {smask}, v15")
    a(f"v_cmp_ne_u32 vcc, {smask}, v15")
    a(f"s_cbranch_vccnz {label}")
    a.lab(label + "_done")
    set_exec(a, HI, HI)

def kv_poll_addr(a, vd, t0):
    a(f"s_mul_i32 s4, s{sH}, 56")
    a("s_and_b32 s5, s4, 0xfffffff0")
    a(f"v_mov_b32 v{t0}, s5")
    a("s_add_u32 s5, s5, 62")
    a(f"v_writelane_b32 v{t0}, s5, 1")
    a("s_add_u32 s5, s4, 896")
    a(f"v_writelane_b32 v{t0}, s5, 2")
    a("s_add_u32 s5, s4, 950")
    a(f"v_writelane_b32 v{t0}, s5, 3")
    a(f"v_lshrrev_b32 v{t0}, 7, v{t0}")
    a(f"v_lshlrev_b32 v{t0}, {FSH+4}, v{t0}")
    a(f"s_and_b32 s3, s{sH}, 3")
    a(f"s_lshl2_add_u32 s3, s3, s{sW}")
    a(f"s_lshl_b32 s3, s3, {FSH}")
    a(f"s_add_u32 s3, s3, {FL_OFF}")
    a(f"v_add_u32 v{vd}, s3, v{t0}")

def mask_addr(a, vd):
    a(f"s_add_u32 s3, s{sW}, 3")
    a("s_and_b32 s3, s3, 3")
    a("s_mul_i32 s3, s3, 12288")
    a(f"s_add_u32 s3, s3, {L_CMB + 8192}")
    a(f"v_mov_b32 v{vd}, s3")

def helper(a, ts):
    vX = [2, 3, 4, 5]
    vW0, vW1, vWq = 6, 7, 8
    vZ, vOn, vP, vM, vWo, vF = 9, 10, 11, 12, 13, 14
    a("v_lshrrev_b32 v7, 3, v0")
    a("v_mul_u32_u24 v2, 896, v7")
    a("v_and_b32 v6, 7, v0")
    a("v_lshrrev_b32 v4, 4, v0")
    a("v_xor_b32 v3, v6, v4")
    a("v_lshl_add_u32 v2, v3, 4, v2")
    a("v_xor_b32 v3, 64, v2")
    a("v_add_u32 v3, 6144, v3")
    a("v_and_b32 v4, 1, v4")
    a("v_lshlrev_b32 v4, 2, v4")
    a("v_xor_b32 v6, v6, v4")
    a("v_mul_u32_u24 v7, 2688, v7")
    a(f"v_lshl_add_u32 v{vW0}, v6, 4, v7")
    a(f"v_add_u32 v{vW1}, {8*2688-1024}, v{vW0}")
    a("v_add_u32 v4, 12288, v2")
    a("v_add_u32 v5, 12288, v3")
    a(f"s_mul_i32 s{sXB}, s{sT}, 28672")
    a(f"s_mul_i32 s{sWQ}, s{sW}, 43008")
    a(f"s_lshl_b32 s{sWB}, s{sH}, 7")
    a(f"s_add_u32 s{sWB}, s{sWB}, s{sWQ}")
    a(f"s_add_u32 s{sWB}, s{sWB}, 896")
    a(f"s_lshl_b32 s{sXM}, s{sW}, 14")
    a(f"s_add_u32 s{sXM}, s{sXM}, {L_XR}")
    a(f"s_lshl_b32 s{sWM}, s{sW}, 11")
    a(f"s_lshl_b32 s3, s{sB}, 1")
    a(f"s_add_u32 s3, s3, s{sH}")
    a(f"s_mul_i32 s{sA}, s3, 37")
    a(f"s_lshr_b32 s{sA}, s{sA}, 8")
    a(f"s_mul_i32 s{sA}, s{sA}, 7")
    a(f"s_sub_u32 s{sKC}, s3, s{sA}")
    a(f"s_mov_b32 s{sKQ}, s{sKC}")
    a(f"s_mov_b32 s{X+2}, {X_BYTES}")
    a(f"s_mov_b32 s{X+3}, 0x20000")
    a(f"s_cmp_lt_u32 s{sH}, 14")
    a(f"s_cselect_b32 s{W+2}, {W_BYTES}, 0")
    a(f"s_mov_b32 s{W+3}, 0x20000")
    a("s_waitcnt lgkmcnt(0)")
    a(f"s_mov_b32 s{X}, s4")
    a(f"s_and_b32 s{X+1}, s5, 0xffff")
    a(f"s_mov_b32 s{W}, s6")
    a(f"s_and_b32 s{W+1}, s7, 0xffff")
    def adv_kc():
        a(f"s_add_u32 s{sKC}, s{sKC}, 1")
        a(f"s_cmp_eq_u32 s{sKC}, 7")
        a(f"s_cselect_b32 s{sKC}, 0, s{sKC}")
    def issue(c):
        a(f"s_mul_i32 s{sBb}, s{sKC}, 172032")
        a(f"s_add_u32 m0, s{sWM}, {L_WKV + c*8192}")
        a(f"s_add_u32 s{sBb}, s{sBb}, s{sWB}")
        a(f"buffer_load_dwordx4 v{vW0}, {sr(W)}, s{sBb} offen lds")
        a(f"buffer_load_dwordx4 v{vW1}, {sr(W)}, s{sBb} offen offset:1024 lds")
        a(f"s_lshl_b32 s{sA}, s{sKC}, 7")
        a(f"s_add_u32 m0, s{sXM}, {(c%4)*4096}")
        a(f"s_add_u32 s{sA}, s{sA}, s{sXB}")
        for q in range(4):
            a(f"buffer_load_dwordx4 v{vX[q]}, {sr(X)}, s{sA} offen offset:{1024*q} lds")
        adv_kc()
    for c in range(2): issue(c)
    ts("h_iss", grp=1)
    srd(a, WS, 14, 15, WS_BYTES)
    srd(a, DBG, 12, 13, 256)
    srd(a, WO, 8, 9, WO_BYTES)
    a("v_lshlrev_b32 v1, 4, v0")
    a("v_and_b32 v15, 3, v0")
    a(f"v_lshrrev_b32 v{vWq}, 2, v0")
    a(f"v_mul_u32_u24 v{vWq}, 2688, v{vWq}")
    a(f"v_lshl_add_u32 v{vWq}, v15, 4, v{vWq}")
    a(f"s_mul_i32 s3, s{sH}, 56")
    a("s_and_b32 s3, s3, 0xfffffff0")
    a(f"s_add_u32 s{sWQ}, s{sWQ}, s3")
    a(f"v_mov_b32 v{vZ}, 0")
    kv_poll_addr(a, vP, 16)
    mask_addr(a, vM)
    srd(a, WQS, 6, 7, W_BYTES)
    a(f"s_lshr_b32 s{sIT}, s{sWM}, 1")
    qn = [0]
    def issue_q():
        c = qn[0]; qn[0] += 1
        a(f"s_mul_i32 s{sBb}, s{sKQ}, 172032")
        a(f"s_add_u32 m0, s{sIT}, {L_WQ + c*4096}")
        a(f"s_add_u32 s{sBb}, s{sBb}, s{sWQ}")
        a(f"buffer_load_dwordx4 v{vWq}, {sr(WQS)}, s{sBb} offen lds")
        a(f"s_add_u32 s{sKQ}, s{sKQ}, 1")
        a(f"s_cmp_eq_u32 s{sKQ}, 7")
        a(f"s_cselect_b32 s{sKQ}, 0, s{sKQ}")
    order = [0]*6 + [1]*6
    for c in range(7):
        if c + 2 < 7:
            issue(c + 2); order += [c + 2] * 6
        for i in range(NQ[c]):
            issue_q(); order.append(-1)
        last = max(i for i, x in enumerate(order) if x == c)
        a(f"s_waitcnt vmcnt({len(order) - 1 - last})")
        ts(f"w{c}", grp=1)
        a("s_barrier")
    if NQ[7]:
        a("s_barrier")
        for i in range(NQ[7]): issue_q()
    if TS and TSG == 1:
        ts("h_b6", grp=1)
        a("s_waitcnt vmcnt(0)")
        ts("h_q", grp=1)
    a(f"s_cmp_lg_u32 s{sW}, 0")
    a("s_cbranch_scc1 L_pollgo_done")
    poll(a, "L_pollgo", vZ, 1, 0, DBG, 1, atomic=False)
    a("s_waitcnt vmcnt(0)")
    ts("h_wq", grp=1)
    a("s_barrier")
    def poll_mask():
        set_exec(a, "0xf", 0)
        flag_read(a, vP, WS)
        a("s_waitcnt vmcnt(0)")
        a("v_readlane_b32 s4, v15, 0")
        a("v_readlane_b32 s5, v15, 1")
        a("v_readlane_b32 s6, v15, 2")
        a("v_readlane_b32 s7, v15, 3")
        a("s_and_b32 s4, s4, s5")
        a("s_and_b32 s6, s6, s7")
        a("s_and_b32 s4, s4, s6")
        a("s_lshl_b32 s5, s4, 16")
        a("s_or_b32 s4, s4, s5")
        a(f"s_lshr_b32 s4, s4, s{sB}")
        a("s_and_b32 s4, s4, 0xffff")
        a("s_cmp_eq_u32 s4, 0xffff")
        a("s_cselect_b32 s4, 0x7ffff, s4")
        a("v_mov_b32 v15, s4")
        a(f"ds_write_b32 v{vM}, v15")
        set_exec(a, HI, HI)
    if PREPOLL:
        a(f"s_sleep {PREPOLL}")
        poll_mask()
    else:
        a(f"ds_write_b32 v{vM}, v{vZ}")
        a("s_mov_b32 s4, 0")
    a("s_waitcnt lgkmcnt(0)")
    a("s_barrier")
    a(f"s_mov_b32 s{sCNT}, 0x100000")
    a.lab("L_hpoll")
    a("s_cmp_eq_u32 s4, 0x7ffff")
    a("s_cbranch_scc1 L_hpoll_done")
    a(f"s_sub_u32 s{sCNT}, s{sCNT}, 1")
    a("s_cbranch_scc1 L_hpoll_giveup")
    poll_mask()
    if SLEEP: a(f"s_sleep {SLEEP}")
    a("s_branch L_hpoll")
    a.lab("L_hpoll_giveup")
    a("v_mov_b32 v15, 0x7ffff")
    a(f"ds_write_b32 v{vM}, v15")
    a.lab("L_hpoll_done")
    ts("h_all", grp=1)
    a("v_lshrrev_b32 v16, 4, v0")
    a(f"v_mul_u32_u24 v{vWo}, 896, v16")
    a("v_lshlrev_b32 v16, 2, v16")
    a("v_and_b32 v17, 15, v0")
    a("v_xor_b32 v16, v16, v17")
    a(f"v_lshl_add_u32 v{vWo}, v16, 4, v{vWo}")
    a(f"s_mul_i32 s{sWoS}, s{sCS4}, 224")
    a(f"s_and_b32 s{sWoS}, s{sWoS}, 0xffffffc0")
    a(f"s_mul_i32 s3, s{sW}, {28*3584}")
    a(f"s_add_u32 s{sWoS}, s{sWoS}, s3")
    a(f"s_mul_i32 s3, s{sW}, {28*1024}")
    a(f"s_add_u32 m0, s3, {L_WO}")
    a(f"s_mov_b32 s{sIT}, 28")
    a("s_sleep 16")
    a.lab("L_wo")
    a("s_sleep 3")
    a(f"buffer_load_dwordx4 v{vWo}, {sr(WO)}, s{sWoS} offen lds")
    a("s_add_u32 m0, m0, 1024")
    a(f"s_add_u32 s{sWoS}, s{sWoS}, 3584")
    a(f"s_sub_u32 s{sIT}, s{sIT}, 1")
    a(f"s_cmp_lg_u32 s{sIT}, 0")
    a("s_cbranch_scc1 L_wo")
    a(f"s_lshl_b32 s3, s{sT3}, {FSH}")
    a(f"s_add_u32 s3, s3, {FL_OFF + (256 << FSH)}")
    a(f"v_mov_b32 v{vP}, s3")
    a(f"s_lshl_b32 s4, s{sW}, 2")
    a("s_lshl_b32 s4, 15, s4")
    a(f"s_lshl_b32 s3, s{sT3}, 2")
    a(f"s_add_u32 s3, s3, s{sW}")
    a("s_lshl_b32 s3, s3, 13")
    a(f"s_add_u32 s3, s3, {O_OFF}")
    a(f"s_add_u32 s{sA}, s3, 4096")
    a(f"s_lshl_b32 s{sBb}, s{sW}, 13")
    a(f"s_add_u32 s{sBb}, s{sBb}, {L_CMB}")
    a(f"v_add_u32 v{vM}, s{sBb}, v1")
    a("s_waitcnt vmcnt(0) lgkmcnt(0)")
    ts("h_wo", grp=1)
    a("s_barrier")
    poll(a, "L_poll2", vP, 1, 0, WS, "s4")
    ts("h_poll2", grp=1)
    for f in range(8):
        a(f"buffer_load_dwordx4 {vr(32+4*f,4)}, v1, {sr(WS)}, {'s3' if f < 4 else 's%d' % sA} offen offset:{1024*(f%4)} sc1")
    a("s_barrier")
    for f in range(8):
        a(f"s_waitcnt vmcnt({7-f})")
        a(f"ds_write_b128 v{vM}, {vr(32+4*f,4)} offset:{1024*f}")
    a("s_waitcnt lgkmcnt(0)")
    ts("h_stage", grp=1)
    a("s_barrier")
    if TS and TSG == 1: ts.dump()
    a("s_endpgm")

def kernel(a):
    name = NAME + "_kernel"
    a.raw(f".globl {name}")
    a.raw(".p2align 8")
    a.raw(f".type {name},@function")
    a.lab(name)
    ts = Stamps(a)
    ts("start")
    a("s_cmp_ge_u32 s2, 256")
    a("s_cbranch_scc1 L_end")
    a("s_load_dwordx8 s[4:11], s[0:1], 0")
    a("s_load_dwordx4 s[12:15], s[0:1], 32")
    a("v_lshrrev_b32 v1, 6, v0")
    a("v_and_b32 v0, 63, v0")
    a(f"v_readfirstlane_b32 s{sA}, v1")
    decode_hb(a)
    a(f"s_and_b32 s{sW}, s{sA}, 3")
    a(f"s_lshl_b32 s{sT}, s{sB}, 2")
    a(f"s_and_b32 s{sT3}, s{sH}, 3")
    a(f"s_add_u32 s{sT3}, s{sT3}, s{sT}")
    a(f"s_add_u32 s{sT}, s{sT}, s{sW}")
    a(f"s_lshr_b32 s{sCS4}, s{sH}, 2")
    a(f"s_cmp_lt_u32 s{sA}, 4")
    a("s_cbranch_scc1 L_compute")
    helper(a, ts)
    a.lab("L_compute")
    t0, t1, t2, t3, t4, t5 = vT
    a("s_waitcnt lgkmcnt(0)")
    srd(a, WS, 14, 15, WS_BYTES)
    srd(a, DBG, 12, 13, 256)
    a("v_mov_b32 v250, 1")
    a("v_mov_b32 v251, 0")
    a(f"v_lshlrev_b32 v252, {FSH}, v0")
    a(f"s_lshl_b32 s{sLD}, s{sW}, 3")
    a(f"s_or_b32 s{sLD}, s{sLD}, s2")
    a(f"s_cmp_ge_u32 s{sLD}, 8")
    a("s_cbranch_scc1 L_nocand")
    set_exec(a, 1, 0)
    a(f"buffer_atomic_add v250, v251, {sr(DBG)}, 0 offen offset:128 sc0 sc1")
    if any(x.startswith("--spin=") for x in sys.argv):
        a("v_mov_b32 v253, s66")
        a("v_not_b32 v253, v253")
        a(f"buffer_atomic_umax v253, v251, {sr(DBG)}, 0 offen offset:192 sc1")
    set_exec(a, HI, HI)
    a.lab("L_nocand")
    a("v_lshlrev_b32 v1, 4, v0")
    a("v_and_b32 v15, 3, v0")
    a("v_and_b32 v2, 31, v0")
    a(f"v_lshlrev_b32 v{vV0}, 4, v2")
    a("v_lshlrev_b32 v2, 7, v2")
    a("v_bfe_u32 v3, v0, 1, 3")
    a("v_lshrrev_b32 v4, 5, v0")
    a(f"v_mul_u32_u24 v{vV1}, {V_PLANE}, v4")
    a(f"v_add_u32 v{vV0}, v{vV0}, v{vV1}")
    a("v_xor_b32 v3, v3, v4")
    a("v_lshl_add_u32 v2, v3, 4, v2")
    a(f"s_lshl_b32 s3, s{sW}, 14")
    a(f"s_add_u32 s3, s3, {L_XR}")
    a("v_add_u32 v2, s3, v2")
    a("v_xor_b32 v3, 32, v2")
    a("v_xor_b32 v5, 96, v2")
    a(f"v_bfe_u32 v{t0}, v0, 2, 2")
    a(f"v_lshl_add_u32 v{t1}, v4, 3, v{t0}")
    a("v_xor_b32 v4, 64, v2")
    a(f"v_bfe_u32 v{t2}, v0, 4, 1")
    a(f"v_lshlrev_b32 v{t2}, 5, v{t2}")
    a(f"v_lshrrev_b32 v{t3}, 1, v15")
    a(f"v_and_b32 v{t4}, 1, v15")
    a(f"v_lshl_add_u32 v{t3}, v{t4}, 1, v{t3}")
    a(f"v_lshl_add_u32 v{t3}, v{t3}, 3, v{t2}")
    a(f"v_lshl_add_u32 v{t4}, v15, 3, v{t2}")
    a(f"v_lshl_add_u32 v{vQR}, v{t1}, 6, v{t3}")
    a(f"v_add_u32 v{vQR}, {L_WQ}, v{vQR}")
    a(f"s_cmp_lt_u32 s{sH}, 7")
    a("s_cselect_b64 vcc, -1, 0")
    a(f"v_cndmask_b32 v{t3}, v{t4}, v{t3}, vcc")
    a(f"v_lshrrev_b32 v{t0}, 1, v{t0}")
    a(f"v_lshl_add_u32 v{t3}, v{t0}, 6, v{t3}")
    a(f"v_lshl_add_u32 v{vWR[0]}, v{t1}, 7, v{t3}")
    a(f"v_xor_b32 v{vWR[1]}, 64, v{vWR[0]}")
    mask_addr(a, vMk)
    a(f"s_lshl_b32 s3, 1, s{sB}")
    a(f"v_mov_b32 v{vOne}, s3")
    a(f"s_lshl_b32 s3, s{sH}, 4")
    a(f"s_add_u32 s3, s3, s{sW}")
    a(f"v_lshl_add_u32 v{vP1}, v0, 2, s3")
    a(f"v_lshlrev_b32 v{vP1}, {FSH}, v{vP1}")
    a(f"v_add_u32 v{vP1}, {FL_OFF}, v{vP1}")
    a(f"s_lshl_b32 s{sA}, s{sT}, {FSH}")
    a(f"s_add_u32 s{sA}, s{sA}, {FL_OFF + (256 << FSH)}")
    a(f"v_mov_b32 v{vFl2}, s{sA}")
    a(f"v_lshrrev_b32 v{vFl}, 3, v0")
    a(f"v_mul_u32_u24 v{vFl}, {V_PLANE}, v{vFl}")
    a(f"v_and_b32 v{t0}, 7, v0")
    a(f"v_lshl_add_u32 v{vFl}, v{t0}, 4, v{vFl}")
    a(f"v_cmp_eq_u32 vcc, 0, v{t0}")
    a(f"v_mov_b32 v{t1}, 0x3f803f80")
    a("s_nop 0")
    for r in range(4):
        a(f"v_cndmask_b32 v{216+r}, 0, v{t1}, vcc")
    srd(a, OUT, 10, 11, OUT_BYTES)
    srd(a, KVS, 14, 15, KV_BYTES)
    def rd(c, i):
        a(f"ds_read_b128 {vr(XF+16*c+4*i,4)}, v{vXR[i]} offset:{(c%4)*4096}")
        for p in range(2):
            for r in range(2):
                a(f"ds_read_b64_tr_b16 {vr(WF+8*i+4*p+2*r,2)}, v{vWR[p]} offset:{L_WKV + (c*4+i)*2048 + r*512}")
    def phase1a(kind):
        def mm(c, i):
            x = vr(XF+16*c+4*i, 4)
            first = (c == 0 and i == 0)
            for p, acc in ((0, A0), (1, A1)):
                w = vr(WF+8*i+4*p, 4)
                if kind == "K": mfma(a, vr(acc,16), w, x, "0" if first else vr(acc,16))
                else: mfma(a, vr(acc,16), x, w, "0" if first else vr(acc,16))
        for c in range(7):
            a("s_barrier")
            if c == 0: ts("c0")
            rd(c, 0); rd(c, 1)
            if c == 0:
                a("s_waitcnt vmcnt(0)")
                a(f"v_readfirstlane_b32 s{sLD}, v250")
                a(f"s_mov_b32 s3, {FL_OFF}")
                a(f"s_cmp_lg_u32 s{sLD}, 0")
                a(f"s_cbranch_scc1 L_noclear{kind}")
                for i in range(5):
                    a(f"buffer_store_dword v251, v252, {sr(WS)}, s3 offen sc1")
                    a(f"s_add_u32 s3, s3, {64 << FSH}")
                a.lab(f"L_noclear{kind}")
            if c == 4:
                a(f"s_cmp_lg_u32 s{sLD}, 0")
                a(f"s_cbranch_scc1 L_nogo{kind}")
                a("v_mov_b32 v250, 1")
                a("s_waitcnt vmcnt(0)")
                set_exec(a, 1, 0)
                a(f"buffer_store_dword v250, v251, {sr(DBG)}, 0 offen sc1")
                set_exec(a, HI, HI)
                a.lab(f"L_nogo{kind}")
            if c > 0: mm(c-1, 2)
            rd(c, 2)
            if c > 0: mm(c-1, 3)
            a("s_waitcnt lgkmcnt(10)")
            rd(c, 3)
            mm(c, 0)
            a("s_waitcnt lgkmcnt(10)")
            mm(c, 1)
            a("s_waitcnt lgkmcnt(0)")
        mm(6, 2); mm(6, 3)
        ts("kv_mm")
        a(f"s_lshl_b32 s{sKV}, s{sT}, 16")
        if kind == "K":
            a(f"s_lshl_b32 s3, s{sH}, 12")
            a(f"s_add_u32 s3, s3, s{sKV}")
            a("s_nop 7")
        else:
            a(f"s_mul_i32 s3, s{sH}, {V_LINE}")
            a(f"s_add_u32 s3, s3, s{sKV}")
            a(f"s_add_u32 s3, s3, {V_BASE - 7*V_LINE}")
            a(f"s_add_u32 s{sA}, s3, {2*V_PLANE}")
            a(f"s_cmp_lt_u32 s{sH}, 14")
            a(f"s_cselect_b32 s{KVS+2}, {KV_BYTES}, 0")
            set_exec(a, HI, 0)
            a(f"buffer_store_dwordx4 v[216:219], v{vFl}, {sr(KVS)}, s3 offen offset:1024 sc1")
            set_exec(a, HI, HI)
        for p, acc in ((0, A0), (1, A1)):
            for f in range(2):
                for i in range(4):
                    a(f"v_cvt_pk_bf16_f32 v{PK+8*p+4*f+i}, v{acc+8*f+2*i}, v{acc+8*f+2*i+1}")
                d = vr(PK+8*p+4*f, 4)
                if kind == "K":
                    a(f"buffer_store_dwordx4 {d}, v1, {sr(KVS)}, s3 offen offset:{2048*p+1024*f} sc1")
                else:
                    a(f"buffer_store_dwordx4 {d}, v{vV0}, {sr(KVS)}, {'s3' if f == 0 else 's%d' % sA} offen offset:{512*p} sc1")
    a(f"s_cmp_lt_u32 s{sH}, 7")
    a("s_cbranch_scc0 L_vline")
    phase1a("K")
    a("s_branch L_q")
    a.lab("L_vline")
    phase1a("V")
    a.lab("L_q")
    ts("kv_st")
    if NQ[7]: a("s_barrier")
    a(f"s_mul_i32 s4, s{sH}, 56")
    a("s_lshr_b32 s5, s4, 4")
    a("s_lshl_b32 s5, s5, 9")
    a(f"v_add_u32 v{vKo}, s5, v1")
    a("s_lshr_b32 s4, s4, 1")
    a(f"v_and_b32 v{t0}, 31, v0")
    a(f"v_add_u32 v{t1}, s4, v{t0}")
    a(f"v_lshrrev_b32 v{t2}, 6, v{t1}")
    a(f"v_lshl_add_u32 v{t1}, v{t2}, 3, v{t1}")
    a("s_lshr_b32 s5, s4, 6")
    a("s_mul_i32 s5, s5, 72")
    a("s_add_u32 s5, s5, 36")
    a(f"v_add_u32 v{t2}, s5, v{t0}")
    a(f"v_cmp_gt_u32 vcc, 28, v{t0}")
    a(f"v_add_u32 v{vV1}, {V_BASE}, v{vV1}")
    a("s_nop 0")
    a(f"v_cndmask_b32 v{t1}, v{t2}, v{t1}, vcc")
    a(f"v_lshl_add_u32 v{vV0}, v{t1}, 4, v{vV1}")
    a(f"v_add_u32 v{vV1}, {2*V_PLANE}, v{vV0}")
    for r in range(220, 240):
        a(f"v_mov_b32 v{r}, 0")
    a(f"s_mov_b32 s{KVS+2}, {KV_BYTES}")
    a("s_barrier")
    ts("b7")
    def rdq(s):
        for r in range(2):
            a(f"ds_read_b64_tr_b16 {vr(WF+4*(s%8)+2*r,2)}, v{vQR} offset:{s*1024 + r*256}")
    for s in range(6): rdq(s)
    for s in range(28):
        if s + 6 < 28:
            rdq(s + 6)
            a("s_waitcnt lgkmcnt(12)")
        else:
            a(f"s_waitcnt lgkmcnt({2*(27-s)})")
        mfma(a, vr(AQ,16), vr(WF+4*(s%8),4), vr(XF+4*s,4), "0" if s == 0 else vr(AQ,16))
        if s + 1 == FLAGPOS:
            a("s_waitcnt vmcnt(0)")
            set_exec(a, "0xf", 0)
            a(f"buffer_atomic_or v{vOne}, v{vP1}, {sr(WS)}, 0 offen sc1")
            set_exec(a, HI, HI)
            ts("kv_flag")
    ts("q_mm")
    a(f"s_mov_b32 s3, {f32bits(QSCALE):#x}")
    a(f"s_lshl_b32 s{sA}, s{sW}, 11")
    a(f"s_add_u32 s{sA}, s{sA}, {L_CMB}")
    a(f"v_add_u32 v{t0}, s{sA}, v1")
    for r in range(176, 184):
        a(f"v_mov_b32 v{r}, 0")
    for r in range(16):
        a(f"v_mul_f32 v{AQ+r}, s3, v{AQ+r}")
    Q3 = Q + 24
    for i in range(8):
        a(f"v_cvt_pk_bf16_f32 v{Q3+i}, v{AQ+2*i}, v{AQ+2*i+1}")
    a(f"s_bitcmp1_b32 s{sH}, 0")
    a("s_cselect_b32 exec_lo, -1, 0")
    a("s_mov_b32 exec_hi, 0")
    a(f"v_mov_b32 v{Q3}, 0")
    a(f"v_mov_b32 v{Q3+1}, 0")
    a("s_cselect_b32 exec_hi, 0, -1")
    a("s_mov_b32 exec_lo, 0")
    a(f"v_mov_b32 v{Q3+6}, 0")
    a(f"v_mov_b32 v{Q3+7}, 0")
    set_exec(a, HI, HI)
    a(f"ds_write_b128 v{t0}, {vr(Q3,4)}")
    a(f"ds_write_b128 v{t0}, {vr(Q3+4,4)} offset:1024")
    for i in range(3):
        a(f"s_add_u32 s{sA}, s{sW}, {1+i}")
        a(f"s_and_b32 s{sA}, s{sA}, 3")
        a(f"s_lshl_b32 s{sA}, s{sA}, 11")
        a(f"s_add_u32 s{sA}, s{sA}, {L_CMB}")
        a(f"v_add_u32 v{vT[1+i]}, s{sA}, v1")
    for r in range(4):
        a(f"v_mov_b32 v{KV+48+12+r}, 0")
    a(f"s_mov_b32 s{sRDY}, 0")
    a(f"s_mov_b32 s{sTODO}, 0x7ffff")
    a("s_waitcnt lgkmcnt(0)")
    a("s_barrier")
    for i in range(3):
        a(f"ds_read_b128 {vr(Q+8*i,4)}, v{vT[1+i]}")
        a(f"ds_read_b128 {vr(Q+8*i+4,4)}, v{vT[1+i]} offset:1024")
    ts("q_done")
    def ldk(slot):
        for f in range(2):
            a(f"buffer_load_dwordx4 {vr(KV+16*slot+4*f,4)}, v{vKo}, {sr(KVS)}, s{sKV} offen offset:{1024*f} sc1")
    def ldv(slot):
        a(f"buffer_load_dwordx4 {vr(KV+16*slot+8,4)}, v{vV0}, {sr(KVS)}, s{sKV} offen sc1")
        a(f"buffer_load_dwordx4 {vr(KV+16*slot+12,4)}, v{vV1}, {sr(KVS)}, s{sKV} offen sc1")
    npick = [0]
    def pick_ops():
        n = npick[0]; npick[0] += 1
        def p0(): a(f"s_and_b32 s{sAV}, s{sRDY}, s{sTODO}")
        def p1():
            a(f"s_cbranch_scc0 L_slow{n}")
            a.lab(f"L_back{n}")
        def p2(): a(f"s_ff1_i32_b32 s{sAV}, s{sAV}")
        def p3(): a(f"s_bitset0_b32 s{sTODO}, s{sAV}")
        def p4(): a(f"s_lshl2_add_u32 s{sBb}, s{sAV}, s{sT}")
        def p5(): a(f"s_and_b32 s{sBb}, s{sBb}, 63")
        def p6(): a(f"s_and_b32 s{sAV}, s{sAV}, 16")
        def p7(): a(f"s_lshl2_add_u32 s{sBb}, s{sAV}, s{sBb}")
        def p8(): a(f"s_lshl_b32 s{sKV}, s{sBb}, 16")
        return [p0, p1, p2, p3, p4, p5, p6, p7, p8]
    for sl in range(3):
        for f in pick_ops(): f()
        ldk(sl); ldv(sl)
        if sl == 0: ts("pick0")
    for f in pick_ops(): f()
    for r in range(184, 220):
        a(f"v_mov_b32 v{r}, 0")
    for r in range(4):
        a(f"v_mov_b32 v{P+4+r}, 0")
    a(f"s_mov_b32 s{sIT}, 3")
    vC = vT[1:4]; vCR = vT[4]
    a("s_waitcnt lgkmcnt(0)")
    for i in range(3):
        a(f"s_add_u32 s3, s{sW}, {1+i}")
        a("s_and_b32 s3, s3, 3")
        a("s_mul_i32 s3, s3, 12288")
        a(f"s_add_u32 s3, s3, {L_CMB + 4096*i}")
        a(f"v_add_u32 v{vC[i]}, s3, v1")
    a(f"s_mul_i32 s3, s{sW}, 12288")
    a(f"s_add_u32 s3, s3, {L_CMB}")
    a(f"v_add_u32 v{vCR}, s3, v1")
    a("s_waitcnt vmcnt(8)")
    ts("kv0")
    def mS(part, t):
        slot = (t // 4) % 4; qt = t % 4
        d = vr(S[t % 2], 16)
        mfma(a, d, vr(KV+16*slot+4*part,4), vr(Q+8*qt+4*part,4), "0" if part == 0 else d)
    def mPV(part, t):
        slot = (t // 4) % 4; qt = t % 4
        d = vr(O + 16*qt, 16)
        mfma(a, d, vr(KV+16*slot+8+4*part,4), vr(P+4*part,4), d)
    def EC(t, g):
        s = S[t % 2] + 4*g
        for r in range(4):
            a(f"v_exp_f32 v{s+r}, v{s+r}")
        a(f"v_cvt_pk_bf16_f32 v{P+2*g}, v{s}, v{s+1}")
        a(f"v_cvt_pk_bf16_f32 v{P+2*g+1}, v{s+2}, v{s+3}")
    mS(0, 0); mS(1, 0)
    ts("att0", cyc=True)
    a("s_nop 7")
    a("s_nop 3")
    a.raw(".p2align 6")
    a.lab("L_loop")
    def tile(j, last=False):
        fs = [None] * 16
        if not last:
            fs[11] = lambda: a("s_waitcnt vmcnt(8)")
            po = pick_ops()
            for k, f in enumerate(po): fs[2 + k] = f
            if j == 2:
                fs[14] = lambda: a(f"s_sub_u32 s{sIT}, s{sIT}, 1")
        else:
            def wr(i, g):
                return lambda: a(f"ds_write_b128 v{vC[i]}, {vr(O+16*i+4*g,4)} offset:{1024*g}")
            for i in range(3):
                fs[4*(i+1) + 3] = wr(i, 0)
                if i < 2:
                    for g in range(1, 4): fs[4*(i+2) + g - 1] = wr(i, g)
        for st in range(4):
            t = 4*j + st
            f = fs[4*st:4*st+4]
            if not (last and st == 3): mS(0, t+1)
            if st == 0 and not last: ldk((j + 3) % 4)
            if f[0]: f[0]()
            EC(t, 0)
            mPV(1, (t - 1) % 16)
            if st == 0 and not last: ldv((j + 3) % 4)
            if f[1]: f[1]()
            EC(t, 1)
            if not (last and st == 3): mS(1, t+1)
            if f[2]: f[2]()
            EC(t, 2)
            mPV(0, t)
            if f[3]: f[3]()
            EC(t, 3)
    for j in range(3): tile(j)
    a("s_cbranch_scc1 L_last")
    tile(3)
    a("s_branch L_loop")
    a.lab("L_last")
    tile(3, last=True)
    a(f"ds_write_b128 v{vC[2]}, {vr(O+32+4,4)} offset:1024")
    a(f"ds_write_b128 v{vC[2]}, {vr(O+32+8,4)} offset:2048")
    mPV(1, 15)
    a(f"ds_write_b128 v{vC[2]}, {vr(O+32+12,4)} offset:3072")
    ts("att1", cyc=True)
    ts("att1")
    a(f"s_mov_b32 s4, {f32bits(2.0**62):#x}")
    a(f"s_mov_b32 s5, {f32bits(2.0**-62):#x}")
    a("s_waitcnt vmcnt(0) lgkmcnt(0)")
    a("s_barrier")
    R = O
    F = O + 48
    for i in range(3):
        for g in range(4):
            a(f"ds_read_b128 {vr(R+16*i+4*g,4)}, v{vCR} offset:{4096*i+1024*g}")
    a(f"s_lshl_b32 s3, s{sT}, 4")
    a(f"s_add_u32 s3, s3, s{sH}")
    a("s_lshl_b32 s3, s3, 11")
    a(f"s_add_u32 s3, s3, {O_OFF}")
    for i in range(3):
        a(f"s_waitcnt lgkmcnt({8-4*i})")
        for r in range(16):
            a(f"v_add_f32 v{F+r}, v{F+r}, v{R+16*i+r}")
    a(f"v_cmp_nge_f32 s[6:7], s4, v{F+12}")
    a(f"v_cmp_nle_f32 vcc, s5, v{F+12}")
    a("s_or_b64 s[6:7], s[6:7], vcc")
    a("s_cmp_lg_u32 s7, 0")
    a("s_cbranch_scc1 L_fallback")
    a.lab("L_norm")
    a(f"v_mov_b32 v{t0}, v{F+12}")
    a(f"v_mov_b32 v{t1}, v{F+12}")
    a("s_nop 1")
    a(f"v_permlane32_swap_b32 v{t0}, v{t1}")
    a("s_nop 1")
    a(f"v_rcp_f32 v{t1}, v{t1}")
    set_exec(a, 0, HI)
    a(f"v_mov_b32 v{F+12}, 0")
    set_exec(a, HI, HI)
    for r in range(16):
        a(f"v_mul_f32 v{F+r}, v{F+r}, v{t1}")
    PO = 240
    for i in range(8):
        a(f"v_cvt_pk_bf16_f32 v{PO+i}, v{F+2*i}, v{F+2*i+1}")
    a(f"buffer_store_dwordx4 {vr(PO,4)}, v1, {sr(WS)}, s3 offen sc1")
    a(f"buffer_store_dwordx4 {vr(PO+4,4)}, v1, {sr(WS)}, s3 offen offset:1024 sc1")
    ts("o_st")
    WOF, OF, ACC, D = 40, 168, 24, 232
    a(f"s_and_b32 s3, s{sCS4}, 1")
    a("s_lshl_b32 s3, s3, 5")
    a(f"s_mul_i32 s{sA}, s{sW}, 56")
    a(f"s_add_u32 s3, s3, s{sA}")
    a(f"v_bfe_u32 v{t0}, v0, 4, 1")
    a(f"v_lshlrev_b32 v{t0}, 5, v{t0}")
    a(f"v_and_b32 v{t1}, 3, v0")
    a(f"v_lshl_add_u32 v{t0}, v{t1}, 3, v{t0}")
    a(f"v_add_u32 v{t0}, s3, v{t0}")
    a(f"v_and_b32 v{t0}, 255, v{t0}")
    a(f"v_bfe_u32 v{t1}, v0, 2, 2")
    a(f"v_lshlrev_b32 v{t2}, 6, v{t1}")
    a(f"v_xor_b32 v{t0}, v{t0}, v{t2}")
    a(f"v_lshl_add_u32 v{t2}, v{t1}, 8, v{t0}")
    a(f"v_lshrrev_b32 v{t1}, 5, v0")
    a(f"v_lshl_add_u32 v{t0}, v{t1}, 10, v{t2}")
    a(f"v_add_u32 v{t1}, 0x10000, v{t0}")
    a(f"v_add_u32 v{t2}, 0x10000, v{t2}")
    def rdwo(hh):
        for u in range(2):
            for r in range(2):
                off = L_WO + (28*hh + 16*u + 8*r) * 256
                base = t0
                if off >= 0x10000:
                    off -= 0x10000; base = t1
                if hh == 15 and u == 1 and r == 1:
                    base = t2
                a(f"ds_read_b64_tr_b16 {vr(WOF+8*hh+4*u+2*r,2)}, v{base} offset:{off}")
    a(f"s_lshl_b32 s3, 1, s{sH}")
    a(f"v_mov_b32 v{vOne}, s3")
    for hh in range(6): rdwo(hh)
    a("s_waitcnt vmcnt(0)")
    set_exec(a, 1, 0)
    a(f"buffer_atomic_or v{vOne}, v{vFl2}, {sr(WS)}, 0 offen sc1")
    set_exec(a, HI, HI)
    ts("o_flag")
    for hh in range(6, 16): rdwo(hh)
    a(f"v_add_u32 v{t3}, {L_CMB}, v1")
    a(f"v_and_b32 v{t4}, 31, v0")
    a(f"v_mul_u32_u24 v{t4}, 896, v{t4}")
    a(f"v_lshrrev_b32 v{t5}, 5, v0")
    a(f"v_lshl_add_u32 v{t4}, v{t5}, 4, v{t4}")
    a(f"s_mul_i32 s{sKV}, s{sT3}, 28672")
    a(f"s_lshl_b32 s{sBb}, s{sCS4}, 2")
    a(f"s_add_u32 s{sBb}, s{sBb}, s{sW}")
    a(f"s_mul_i32 s{sBb}, s{sBb}, 56")
    a(f"s_add_u32 s{sKV}, s{sKV}, s{sBb}")
    a("s_barrier")
    a("s_barrier")
    ts("o_ld")
    NR = 16
    for f in range(12):
        a(f"ds_read_b128 {vr(OF+4*(f%NR),4)}, v{t3} offset:{1024*f}")
    for f in range(32):
        if f + 12 < 32:
            a(f"ds_read_b128 {vr(OF+4*((f+12)%NR),4)}, v{t3} offset:{1024*(f+12)}")
            a("s_waitcnt lgkmcnt(12)")
        else:
            a(f"s_waitcnt lgkmcnt({31-f})")
        mfma(a, vr(ACC,16), vr(WOF+4*f,4), vr(OF+4*(f%NR),4), "0" if f == 0 else vr(ACC,16))
    a("s_nop 7")
    a("s_nop 3")
    for i in range(8):
        a(f"v_cvt_pk_bf16_f32 v{D+i}, v{ACC+2*i}, v{ACC+2*i+1}")
    a(f"v_permlane32_swap_b32 v{D}, v{D+2}")
    a(f"v_permlane32_swap_b32 v{D+1}, v{D+3}")
    a(f"v_permlane32_swap_b32 v{D+4}, v{D+6}")
    a(f"v_permlane32_swap_b32 v{D+5}, v{D+7}")
    a(f"buffer_store_dwordx4 {vr(D,4)}, v{t4}, {sr(OUT)}, s{sKV} offen")
    set_exec(a, HI, 0)
    a(f"buffer_store_dwordx4 {vr(D+4,4)}, v{t4}, {sr(OUT)}, s{sKV} offen offset:32")
    set_exec(a, 0, HI)
    a(f"buffer_store_dwordx2 {vr(D+4,2)}, v{t4}, {sr(OUT)}, s{sKV} offen offset:32")
    ts("out_st")
    if TS:
        a("s_waitcnt vmcnt(0)")
        ts("end")
    if TS and TSG == 0: ts.dump()
    a.lab("L_end")
    a("s_endpgm")
    for n in range(npick[0]):
        a.lab(f"L_slow{n}")
        a(f"ds_read_b32 v15, v{vMk}")
        a("s_waitcnt lgkmcnt(0)")
        a(f"v_readfirstlane_b32 s{sRDY}, v15")
        a("s_nop 0")
        a(f"s_and_b32 s{sAV}, s{sRDY}, s{sTODO}")
        a(f"s_cbranch_scc0 L_slow{n}")
        a(f"s_branch L_back{n}")
    a.lab("L_fallback")
    a(f"s_mov_b32 s{sA}, s3")
    kv_poll_addr(a, vP1, t0)
    a(f"s_lshl_b32 s6, s{sW}, {FSH}")
    a(f"v_subrev_u32 v{vP1}, s6, v{vP1}")
    for w in range(4):
        poll(a, f"L_pollfb{w}", vP1, "0xf", 0, WS, "0xffff", off=w << FSH)
    a(f"s_mov_b32 s3, s{sA}")
    a(f"v_mov_b32 v{t0}, 0xff800000")
    a(f"s_mov_b32 s{sKV}, 0")
    SS = S0
    a.lab("L_fb1")
    ldk(0)
    a(f"s_add_u32 s{sKV}, s{sKV}, 0x10000")
    a("s_waitcnt vmcnt(0)")
    mfma(a, vr(SS,16), vr(KV,4), vr(Q3,4), "0")
    mfma(a, vr(SS,16), vr(KV+4,4), vr(Q3+4,4), vr(SS,16))
    a("s_nop 15")
    for r in range(0, 16, 2):
        a(f"v_max3_f32 v{t0}, v{t0}, v{SS+r}, v{SS+r+1}")
    a(f"s_cmp_lt_u32 s{sKV}, {KV_BYTES}")
    a("s_cbranch_scc1 L_fb1")
    a(f"v_mov_b32 v{t1}, v{t0}")
    a("s_nop 1")
    a(f"v_permlane32_swap_b32 v{t0}, v{t1}")
    a("s_nop 1")
    a(f"v_max_f32 v{t0}, v{t0}, v{t1}")
    for r in range(16):
        a(f"v_mov_b32 v{F+r}, 0")
    a(f"s_mov_b32 s{sKV}, 0")
    a.lab("L_fb2")
    ldk(0); ldv(0)
    a(f"s_add_u32 s{sKV}, s{sKV}, 0x10000")
    a("s_waitcnt vmcnt(0)")
    mfma(a, vr(SS,16), vr(KV,4), vr(Q3,4), "0")
    mfma(a, vr(SS,16), vr(KV+4,4), vr(Q3+4,4), vr(SS,16))
    a("s_nop 15")
    for r in range(16):
        a(f"v_sub_f32 v{SS+r}, v{SS+r}, v{t0}")
    for r in range(16):
        a(f"v_exp_f32 v{SS+r}, v{SS+r}")
    a("s_nop 0")
    for i in range(8):
        a(f"v_cvt_pk_bf16_f32 v{P+i}, v{SS+2*i}, v{SS+2*i+1}")
    a("s_nop 1")
    mfma(a, vr(F,16), vr(KV+8,4), vr(P,4), vr(F,16))
    mfma(a, vr(F,16), vr(KV+12,4), vr(P+4,4), vr(F,16))
    a(f"s_cmp_lt_u32 s{sKV}, {KV_BYTES}")
    a("s_cbranch_scc1 L_fb2")
    a("s_nop 15")
    a("s_branch L_norm")
    if TS:
        open("stamps.txt", "w").write(",".join(ts.names))
    return name

def main():
    a = A()
    name = kernel(a)
    head = open(f"cdna_kernels/{NAME}.s.ref").read().split("; Override")[0]
    out = head
    out += f"; @launch grid=(256,1,1) block=(512,1,1) lds={LDS_BYTES}\n"
    out += '.amdgcn_target "amdgcn-amd-amdhsa--gfx950"\n.text\n'
    out += a.text()
    out += f""".section .rodata,"a"
.p2align 6
.amdhsa_kernel {name}
  .amdhsa_next_free_vgpr 256
  .amdhsa_next_free_sgpr 102
  .amdhsa_accum_offset 256
  .amdhsa_group_segment_fixed_size 0
  .amdhsa_kernarg_size 48
  .amdhsa_user_sgpr_count 2
  .amdhsa_user_sgpr_kernarg_segment_ptr 1
  .amdhsa_system_sgpr_workgroup_id_x 1
.end_amdhsa_kernel
"""
    o = [x for x in sys.argv[1:] if not x.startswith("--")]
    path = o[0] if o else f"cdna_kernels/{NAME}.s"
    open(path, "w").write(out)
main()
```

```python
import sys, struct, math

NAME = "standalone__softmax_full_mha__prompt"
FL_OFF = 5 << 20
O_OFF = 6 << 20
TS_OFF = 8 << 20
WS_BYTES = 268435456
X_BYTES = 2048 * 448 * 2
W_BYTES = 448 * 1344 * 2
WO_BYTES = 448 * 448 * 2
OUT_BYTES = 2048 * 448 * 2
KV_BYTES = 4 << 20
V_BASE = 28672
V_LINE = 1152
V_PLANE = 7 * V_LINE
QSCALE = 28 ** -0.5 * math.log2(math.e)

def opt(name, default):
    for arg in sys.argv:
        if arg.startswith(f"--{name}="):
            return int(arg.split("=")[1])
    return default
TS = "--ts" in sys.argv
TSG = opt("tsg", 0)
MAP = opt("maph", 3)
FSH = opt("fsh", 8)
FLAGPOS = opt("flagpos", 20)
NQ = [int(c) for c in "%08d" % opt("nq", 700)]
assert sum(NQ) == 7
SLEEP = opt("sleep", 1)
LA = opt("la", 2)
PF = opt("pf", 0)
ROT = opt("rot", 1)
PREPOLL = opt("prepoll", 1)

def f32bits(x):
    return struct.unpack("<I", struct.pack("<f", x))[0]

class A:
    def __init__(self):
        self.l = []
    def __call__(self, s):
        for line in s.strip("\n").split("\n"):
            self.l.append("    " + line.strip())
    def lab(self, n):
        self.l.append(n + ":")
    def raw(self, s):
        self.l.append(s)
    def text(self):
        return "\n".join(self.l) + "\n"

def vr(b, n, k="v"):
    return f"{k}[{b}:{b+n-1}]"
def sr(b):
    return f"s[{b}:{b+3}]"

def srd(a, d, lo, hi, nbytes):
    a(f"s_mov_b32 s{d}, s{lo}")
    a(f"s_and_b32 s{d+1}, s{hi}, 0xffff")
    a(f"s_mov_b32 s{d+2}, {nbytes}")
    a(f"s_mov_b32 s{d+3}, 0x20000")

HI = "0xffffffff"
def set_exec(a, lo, hi):
    if lo == HI and hi == HI:
        a("s_mov_b64 exec, -1")
    elif hi == 0 and lo in (1, "0xf"):
        a(f"s_mov_b64 exec, {int(str(lo), 0)}")
    else:
        a(f"s_mov_b32 exec_lo, {lo}")
        a(f"s_mov_b32 exec_hi, {hi}")

class Stamps:
    def __init__(self, a):
        self.a = a; self.idx = {}; self.names = []
    def __call__(self, name, cyc=False, grp=0):
        if not TS: return
        if name != "start" and grp != TSG: return
        nm = name + ("(cyc)" if cyc else "")
        if nm not in self.idx:
            self.idx[nm] = len(self.names); self.names.append(nm)
        b = 66 + 2 * self.idx[nm]
        assert b + 1 < 102
        self.a(f"s_memtime s[{b}:{b+1}]" if cyc else f"s_memrealtime s[{b}:{b+1}]")
    def dump(self):
        if not TS: return
        a = self.a
        sp = [x for x in sys.argv if x.startswith("--spin=")]
        if sp:
            hi, lo, m = sp[0][7:].split(",")
            a("s_waitcnt lgkmcnt(0)")
            if lo == "G":
                a("v_mov_b32 v2, 0")
                a(f"buffer_load_dword v4, v2, {sr(DBG)}, 0 offen offset:192 sc1")
                a("s_waitcnt vmcnt(0)")
                a("v_readfirstlane_b32 s4, v4")
                a("s_nop 0")
                a("s_not_b32 s4, s4")
                a(f"s_sub_u32 s3, s{66+2*self.idx[hi]}, s4")
            else:
                a(f"s_sub_u32 s3, s{66+2*self.idx[hi]}, s{66+2*self.idx[lo]}")
            only = opt("only", -1)
            if only >= 0:
                a("s_and_b32 s4, s2, 7")
                a(f"s_cmp_eq_u32 s4, {only}")
                a("s_cselect_b32 s3, s3, 0")
            a(f"s_mul_i32 s3, s3, {m}")
            a(f"s_add_u32 s3, s3, s{66+2*self.idx['end' if TSG == 0 else 'h_stage']}")
            a.lab("L_spin")
            a("s_memrealtime s[4:5]")
            a("s_waitcnt lgkmcnt(0)")
            a("s_sub_u32 s4, s4, s3")
            a("s_cmp_lt_i32 s4, 0")
            a("s_cbranch_scc1 L_spin")
            return
        if "--dbg" in sys.argv:
            sel = ["start", "start", "c0", "kv_mm", "b7", "q_done", "kv0", "att1", "o_flag", "o_ld", "end"]
            a("s_waitcnt lgkmcnt(0)")
            a(f"s_cmp_lg_u32 s{sW}, 0")
            a("s_cbranch_scc1 L_end")
            a("s_mov_b64 exec, 1")
            a("v_mov_b32 v2, 0")
            for i, nm in enumerate(sel):
                a(f"v_mov_b32 v4, s{66+2*self.idx[nm]}")
                if i == 0: a("v_not_b32 v4, v4")
                a(f"buffer_atomic_umax v4, v2, {sr(DBG)}, 0 offen offset:{8+4*i} sc1")
                a("s_nop 1")
            for i, nm in enumerate(["end", "kv0", "c0"]):
                a(f"s_sub_u32 s3, s{66+2*self.idx[nm]}, s66")
                a("v_mov_b32 v4, s3")
                a(f"buffer_atomic_umax v4, v2, {sr(DBG)}, 0 offen offset:{52+4*i} sc1")
                a("s_nop 1")
            a("s_waitcnt vmcnt(0)")
            return
        a("s_waitcnt lgkmcnt(0)")
        a(f"s_lshl_b32 s3, s2, 2")
        a(f"s_add_u32 s3, s3, s{sW}")
        a(f"s_lshl_b32 s3, s3, 7")
        a(f"s_add_u32 s3, s3, {TS_OFF}")
        a("s_mov_b64 exec, 1")
        a("v_mov_b32 v2, 0")
        for i in range(18):
            a(f"v_mov_b32 v4, s{66+2*i}")
            a(f"buffer_store_dword v4, v2, {sr(WS)}, s3 offen offset:{4*i}")
            a("s_nop 1")
        a("s_waitcnt vmcnt(0)")

X, W, WO, OUT, DBG, WS, KVS = 16, 20, 24, 28, 32, 36, 40
sH, sB, sW, sT = 44, 45, 46, 47
sKC, sXB, sWB, sXM, sWM = 48, 49, 50, 51, 52
sRDY, sTODO, sAV, sRET = 48, 49, 50, 64
sA, sBb = 53, 54
sKV, sIT, sWQ, sWoS, sCNT = 55, 56, 57, 58, 59
sKQ, sLD = 60, 61
WQS = KVS
sT3, sCS4 = 62, 63
L_WKV, L_WQ, L_XR = 0, 57344, 86016
L_WO, L_CMB = 0, 114688
LDS_BYTES = 163840
vXR = [2, 3, 4, 5]
vWR = [6, 7]
vQR, vOne, vFl, vFl2, vP1, vMk = 8, 9, 10, 11, 12, 13
vKo, vV0, vV1 = 14, 16, 17
vT = [18, 19, 20, 21, 22, 23]
A0, A1 = 24, 40
AQ = A0
XF = 56
WF = 168
PK = 200
Q, S0, P, KV, O = 40, 72, 104, 112, 176
S = [S0, S0 + 16]

def decode_hb(a):
    nhg = 16 >> MAP
    lg = int(math.log2(nhg))
    a(f"s_and_b32 s{sH}, s2, {nhg-1}")
    a(f"s_lshl_b32 s{sH}, s{sH}, {MAP}")
    a(f"s_lshr_b32 s3, s2, 3")
    a(f"s_and_b32 s{sB}, s3, {(1<<MAP)-1}")
    a(f"s_add_u32 s{sH}, s{sH}, s{sB}")
    a(f"s_lshr_b32 s3, s3, {MAP}")
    a(f"s_and_b32 s{sB}, s2, 7")
    a(f"s_lshr_b32 s{sB}, s{sB}, {lg}")
    a(f"s_mul_i32 s{sB}, s{sB}, {32>>MAP}")
    a(f"s_add_u32 s{sB}, s{sB}, s3")

def mfma(a, d, x, y, c):
    a(f"v_mfma_f32_32x32x16_bf16 {d}, {x}, {y}, {c}")

def flag_read(a, vaddr, srdn, off=0):
    a("v_mov_b32 v15, 0")
    a(f"buffer_atomic_or v15, v{vaddr}, {sr(srdn)}, 0 offen offset:{off} sc0 sc1")

def poll(a, label, vaddr, lo, hi, srdn, smask, off=0, atomic=True):
    a(f"s_mov_b32 s{sCNT}, 0x100000")
    set_exec(a, lo, hi)
    a(f"s_branch {label}_in")
    a.lab(label)
    if SLEEP: a(f"s_sleep {SLEEP}")
    a.lab(label + "_in")
    if atomic: flag_read(a, vaddr, srdn, off)
    else: a(f"buffer_load_dword v15, v{vaddr}, {sr(srdn)}, 0 offen offset:{off} sc1")
    a(f"s_sub_u32 s{sCNT}, s{sCNT}, 1")
    a(f"s_cbranch_scc1 {label}_done")
    a("s_waitcnt vmcnt(0)")
    a(f"v_and_b32 v15, {smask}, v15")
    a(f"v_cmp_ne_u32 vcc, {smask}, v15")
    a(f"s_cbranch_vccnz {label}")
    a.lab(label + "_done")
    set_exec(a, HI, HI)

def kv_poll_addr(a, vd, t0):
    a(f"s_mul_i32 s4, s{sH}, 56")
    a("s_and_b32 s5, s4, 0xfffffff0")
    a(f"v_mov_b32 v{t0}, s5")
    a("s_add_u32 s5, s5, 62")
    a(f"v_writelane_b32 v{t0}, s5, 1")
    a("s_add_u32 s5, s4, 896")
    a(f"v_writelane_b32 v{t0}, s5, 2")
    a("s_add_u32 s5, s4, 950")
    a(f"v_writelane_b32 v{t0}, s5, 3")
    a(f"v_lshrrev_b32 v{t0}, 7, v{t0}")
    a(f"v_lshlrev_b32 v{t0}, {FSH+4}, v{t0}")
    a(f"s_and_b32 s3, s{sH}, 3")
    a(f"s_lshl2_add_u32 s3, s3, s{sW}")
    a(f"s_lshl_b32 s3, s3, {FSH}")
    a(f"s_add_u32 s3, s3, {FL_OFF}")
    a(f"v_add_u32 v{vd}, s3, v{t0}")

def mask_addr(a, vd):
    a(f"s_add_u32 s3, s{sW}, 3")
    a("s_and_b32 s3, s3, 3")
    a("s_mul_i32 s3, s3, 12288")
    a(f"s_add_u32 s3, s3, {L_CMB + 8192}")
    a(f"v_mov_b32 v{vd}, s3")

def helper(a, ts):
    vX = [2, 3, 4, 5]
    vW0, vW1, vWq = 6, 7, 8
    vZ, vOn, vP, vM, vWo, vF = 9, 10, 11, 12, 13, 14
    a("v_lshrrev_b32 v7, 3, v0")
    a("v_mul_u32_u24 v2, 896, v7")
    a("v_and_b32 v6, 7, v0")
    a("v_lshrrev_b32 v4, 4, v0")
    a("v_xor_b32 v3, v6, v4")
    a("v_lshl_add_u32 v2, v3, 4, v2")
    a("v_xor_b32 v3, 64, v2")
    a("v_add_u32 v3, 6144, v3")
    a("v_and_b32 v4, 1, v4")
    a("v_lshlrev_b32 v4, 2, v4")
    a("v_xor_b32 v6, v6, v4")
    a("v_mul_u32_u24 v7, 2688, v7")
    a(f"v_lshl_add_u32 v{vW0}, v6, 4, v7")
    a(f"v_add_u32 v{vW1}, {8*2688-1024}, v{vW0}")
    a("v_add_u32 v4, 12288, v2")
    a("v_add_u32 v5, 12288, v3")
    a(f"s_mul_i32 s{sXB}, s{sT}, 28672")
    a(f"s_mul_i32 s{sWQ}, s{sW}, 43008")
    a(f"s_lshl_b32 s{sWB}, s{sH}, 7")
    a(f"s_add_u32 s{sWB}, s{sWB}, s{sWQ}")
    a(f"s_add_u32 s{sWB}, s{sWB}, 896")
    a(f"s_lshl_b32 s{sXM}, s{sW}, 14")
    a(f"s_add_u32 s{sXM}, s{sXM}, {L_XR}")
    a(f"s_lshl_b32 s{sWM}, s{sW}, 11")
    a(f"s_lshl_b32 s3, s{sB}, 1")
    a(f"s_add_u32 s3, s3, s{sH}")
    a(f"s_mul_i32 s{sA}, s3, 37")
    a(f"s_lshr_b32 s{sA}, s{sA}, 8")
    a(f"s_mul_i32 s{sA}, s{sA}, 7")
    a(f"s_sub_u32 s{sKC}, s3, s{sA}")
    a(f"s_mov_b32 s{sKQ}, s{sKC}")
    a(f"s_mov_b32 s{X+2}, {X_BYTES}")
    a(f"s_mov_b32 s{X+3}, 0x20000")
    a(f"s_cmp_lt_u32 s{sH}, 14")
    a(f"s_cselect_b32 s{W+2}, {W_BYTES}, 0")
    a(f"s_mov_b32 s{W+3}, 0x20000")
    a("s_waitcnt lgkmcnt(0)")
    a(f"s_mov_b32 s{X}, s4")
    a(f"s_and_b32 s{X+1}, s5, 0xffff")
    a(f"s_mov_b32 s{W}, s6")
    a(f"s_and_b32 s{W+1}, s7, 0xffff")
    def adv_kc():
        a(f"s_add_u32 s{sKC}, s{sKC}, 1")
        a(f"s_cmp_eq_u32 s{sKC}, 7")
        a(f"s_cselect_b32 s{sKC}, 0, s{sKC}")
    def issue(c):
        a(f"s_mul_i32 s{sBb}, s{sKC}, 172032")
        a(f"s_add_u32 m0, s{sWM}, {L_WKV + c*8192}")
        a(f"s_add_u32 s{sBb}, s{sBb}, s{sWB}")
        a(f"buffer_load_dwordx4 v{vW0}, {sr(W)}, s{sBb} offen lds")
        a(f"buffer_load_dwordx4 v{vW1}, {sr(W)}, s{sBb} offen offset:1024 lds")
        a(f"s_lshl_b32 s{sA}, s{sKC}, 7")
        a(f"s_add_u32 m0, s{sXM}, {(c%4)*4096}")
        a(f"s_add_u32 s{sA}, s{sA}, s{sXB}")
        for q in range(4):
            a(f"buffer_load_dwordx4 v{vX[q]}, {sr(X)}, s{sA} offen offset:{1024*q} lds")
        adv_kc()
    for c in range(2): issue(c)
    ts("h_iss", grp=1)
    srd(a, WS, 14, 15, WS_BYTES)
    srd(a, DBG, 12, 13, 256)
    srd(a, WO, 8, 9, WO_BYTES)
    a("v_lshlrev_b32 v1, 4, v0")
    a("v_and_b32 v15, 3, v0")
    a(f"v_lshrrev_b32 v{vWq}, 2, v0")
    a(f"v_mul_u32_u24 v{vWq}, 2688, v{vWq}")
    a(f"v_lshl_add_u32 v{vWq}, v15, 4, v{vWq}")
    a(f"s_mul_i32 s3, s{sH}, 56")
    a("s_and_b32 s3, s3, 0xfffffff0")
    a(f"s_add_u32 s{sWQ}, s{sWQ}, s3")
    a(f"v_mov_b32 v{vZ}, 0")
    kv_poll_addr(a, vP, 16)
    mask_addr(a, vM)
    srd(a, WQS, 6, 7, W_BYTES)
    a(f"s_lshr_b32 s{sIT}, s{sWM}, 1")
    qn = [0]
    def issue_q():
        c = qn[0]; qn[0] += 1
        a(f"s_mul_i32 s{sBb}, s{sKQ}, 172032")
        a(f"s_add_u32 m0, s{sIT}, {L_WQ + c*4096}")
        a(f"s_add_u32 s{sBb}, s{sBb}, s{sWQ}")
        a(f"buffer_load_dwordx4 v{vWq}, {sr(WQS)}, s{sBb} offen lds")
        a(f"s_add_u32 s{sKQ}, s{sKQ}, 1")
        a(f"s_cmp_eq_u32 s{sKQ}, 7")
        a(f"s_cselect_b32 s{sKQ}, 0, s{sKQ}")
    order = [0]*6 + [1]*6
    for c in range(7):
        if c + 2 < 7:
            issue(c + 2); order += [c + 2] * 6
        for i in range(NQ[c]):
            issue_q(); order.append(-1)
        last = max(i for i, x in enumerate(order) if x == c)
        a(f"s_waitcnt vmcnt({len(order) - 1 - last})")
        ts(f"w{c}", grp=1)
        a("s_barrier")
    if NQ[7]:
        a("s_barrier")
        for i in range(NQ[7]): issue_q()
    if TS and TSG == 1:
        ts("h_b6", grp=1)
        a("s_waitcnt vmcnt(0)")
        ts("h_q", grp=1)
    a(f"s_cmp_lg_u32 s{sW}, 0")
    a("s_cbranch_scc1 L_pollgo_done")
    poll(a, "L_pollgo", vZ, 1, 0, DBG, 1, atomic=False)
    a("s_waitcnt vmcnt(0)")
    ts("h_wq", grp=1)
    a("s_barrier")
    def poll_mask():
        set_exec(a, "0xf", 0)
        flag_read(a, vP, WS)
        a("s_waitcnt vmcnt(0)")
        a("v_readlane_b32 s4, v15, 0")
        a("v_readlane_b32 s5, v15, 1")
        a("v_readlane_b32 s6, v15, 2")
        a("v_readlane_b32 s7, v15, 3")
        a("s_and_b32 s4, s4, s5")
        a("s_and_b32 s6, s6, s7")
        a("s_and_b32 s4, s4, s6")
        a("s_lshl_b32 s5, s4, 16")
        a("s_or_b32 s4, s4, s5")
        a(f"s_lshr_b32 s4, s4, s{sB}")
        a("s_and_b32 s4, s4, 0xffff")
        a("s_cmp_eq_u32 s4, 0xffff")
        a("s_cselect_b32 s4, 0x7ffff, s4")
        a("v_mov_b32 v15, s4")
        a(f"ds_write_b32 v{vM}, v15")
        set_exec(a, HI, HI)
    if PREPOLL:
        a(f"s_sleep {PREPOLL}")
        poll_mask()
    else:
        a(f"ds_write_b32 v{vM}, v{vZ}")
        a("s_mov_b32 s4, 0")
    a("s_waitcnt lgkmcnt(0)")
    a("s_barrier")
    a(f"s_mov_b32 s{sCNT}, 0x100000")
    a.lab("L_hpoll")
    a("s_cmp_eq_u32 s4, 0x7ffff")
    a("s_cbranch_scc1 L_hpoll_done")
    a(f"s_sub_u32 s{sCNT}, s{sCNT}, 1")
    a("s_cbranch_scc1 L_hpoll_giveup")
    poll_mask()
    if SLEEP: a(f"s_sleep {SLEEP}")
    a("s_branch L_hpoll")
    a.lab("L_hpoll_giveup")
    a("v_mov_b32 v15, 0x7ffff")
    a(f"ds_write_b32 v{vM}, v15")
    a.lab("L_hpoll_done")
    ts("h_all", grp=1)
    a("v_lshrrev_b32 v16, 4, v0")
    a(f"v_mul_u32_u24 v{vWo}, 896, v16")
    a("v_lshlrev_b32 v16, 2, v16")
    a("v_and_b32 v17, 15, v0")
    a("v_xor_b32 v16, v16, v17")
    a(f"v_lshl_add_u32 v{vWo}, v16, 4, v{vWo}")
    a(f"s_mul_i32 s{sWoS}, s{sCS4}, 224")
    a(f"s_and_b32 s{sWoS}, s{sWoS}, 0xffffffc0")
    a(f"s_mul_i32 s3, s{sW}, {28*3584}")
    a(f"s_add_u32 s{sWoS}, s{sWoS}, s3")
    a(f"s_mul_i32 s3, s{sW}, {28*1024}")
    a(f"s_add_u32 m0, s3, {L_WO}")
    a(f"s_mov_b32 s{sIT}, 28")
    a("s_sleep 16")
    a.lab("L_wo")
    a("s_sleep 3")
    a(f"buffer_load_dwordx4 v{vWo}, {sr(WO)}, s{sWoS} offen lds")
    a("s_add_u32 m0, m0, 1024")
    a(f"s_add_u32 s{sWoS}, s{sWoS}, 3584")
    a(f"s_sub_u32 s{sIT}, s{sIT}, 1")
    a(f"s_cmp_lg_u32 s{sIT}, 0")
    a("s_cbranch_scc1 L_wo")
    a(f"s_lshl_b32 s3, s{sT3}, {FSH}")
    a(f"s_add_u32 s3, s3, {FL_OFF + (256 << FSH)}")
    a(f"v_mov_b32 v{vP}, s3")
    a(f"s_lshl_b32 s4, s{sW}, 2")
    a("s_lshl_b32 s4, 15, s4")
    a(f"s_lshl_b32 s3, s{sT3}, 2")
    a(f"s_add_u32 s3, s3, s{sW}")
    a("s_lshl_b32 s3, s3, 13")
    a(f"s_add_u32 s3, s3, {O_OFF}")
    a(f"s_add_u32 s{sA}, s3, 4096")
    a(f"s_lshl_b32 s{sBb}, s{sW}, 13")
    a(f"s_add_u32 s{sBb}, s{sBb}, {L_CMB}")
    a(f"v_add_u32 v{vM}, s{sBb}, v1")
    a("s_waitcnt vmcnt(0) lgkmcnt(0)")
    ts("h_wo", grp=1)
    a("s_barrier")
    poll(a, "L_poll2", vP, 1, 0, WS, "s4")
    ts("h_poll2", grp=1)
    for f in range(8):
        a(f"buffer_load_dwordx4 {vr(32+4*f,4)}, v1, {sr(WS)}, {'s3' if f < 4 else 's%d' % sA} offen offset:{1024*(f%4)} sc1")
    a("s_barrier")
    for f in range(8):
        a(f"s_waitcnt vmcnt({7-f})")
        a(f"ds_write_b128 v{vM}, {vr(32+4*f,4)} offset:{1024*f}")
    a("s_waitcnt lgkmcnt(0)")
    ts("h_stage", grp=1)
    a("s_barrier")
    if TS and TSG == 1: ts.dump()
    a("s_endpgm")

def kernel(a):
    name = NAME + "_kernel"
    a.raw(f".globl {name}")
    a.raw(".p2align 8")
    a.raw(f".type {name},@function")
    a.lab(name)
    ts = Stamps(a)
    ts("start")
    a("s_cmp_ge_u32 s2, 256")
    a("s_cbranch_scc1 L_end")
    a("s_load_dwordx8 s[4:11], s[0:1], 0")
    a("s_load_dwordx4 s[12:15], s[0:1], 32")
    a("v_lshrrev_b32 v1, 6, v0")
    a("v_and_b32 v0, 63, v0")
    a(f"v_readfirstlane_b32 s{sA}, v1")
    decode_hb(a)
    a(f"s_and_b32 s{sW}, s{sA}, 3")
    a(f"s_lshl_b32 s{sT}, s{sB}, 2")
    a(f"s_and_b32 s{sT3}, s{sH}, 3")
    a(f"s_add_u32 s{sT3}, s{sT3}, s{sT}")
    a(f"s_add_u32 s{sT}, s{sT}, s{sW}")
    a(f"s_lshr_b32 s{sCS4}, s{sH}, 2")
    a(f"s_cmp_lt_u32 s{sA}, 4")
    a("s_cbranch_scc1 L_compute")
    helper(a, ts)
    a.lab("L_compute")
    t0, t1, t2, t3, t4, t5 = vT
    a("s_waitcnt lgkmcnt(0)")
    srd(a, WS, 14, 15, WS_BYTES)
    srd(a, DBG, 12, 13, 256)
    a("v_mov_b32 v250, 1")
    a("v_mov_b32 v251, 0")
    a(f"v_lshlrev_b32 v252, {FSH}, v0")
    a(f"s_lshl_b32 s{sLD}, s{sW}, 3")
    a(f"s_or_b32 s{sLD}, s{sLD}, s2")
    a(f"s_cmp_ge_u32 s{sLD}, 8")
    a("s_cbranch_scc1 L_nocand")
    set_exec(a, 1, 0)
    a(f"buffer_atomic_add v250, v251, {sr(DBG)}, 0 offen offset:128 sc0 sc1")
    if any(x.startswith("--spin=") for x in sys.argv):
        a("v_mov_b32 v253, s66")
        a("v_not_b32 v253, v253")
        a(f"buffer_atomic_umax v253, v251, {sr(DBG)}, 0 offen offset:192 sc1")
    set_exec(a, HI, HI)
    a.lab("L_nocand")
    PB = opt("probe", 0)
    if PB:
        ts("pa"); ts("pb")
        a("s_and_b32 s3, s2, 0xf8" if PB in (1,) else "s_and_b32 s3, s2, 0x78")
        a(f"s_xor_b32 s{sA}, s{sW}, 1")
        a(f"s_or_b32 s3, s3, s{sA}")
        a("s_cmp_lg_u32 s3, 0")
        a("s_cbranch_scc1 L_noprobe")
        a("v_mov_b32 v248, 0")
        a("s_lshl_b32 s3, s2, 8")
        set_exec(a, 1, 0)
        a("s_waitcnt lgkmcnt(0)")
        ts("pa")
        if PB == 1: a(f"buffer_atomic_add v248, v251, {sr(DBG)}, 0 offen offset:64 sc0 sc1")
        if PB == 2:
            a(f"s_add_u32 s3, s3, {(4 << 20)}")
            a(f"buffer_store_dword v248, v251, {sr(WS)}, s3 offen sc1")
        if PB == 3:
            a(f"s_add_u32 s3, s3, {(4 << 20)}")
            a(f"buffer_load_dword v248, v251, {sr(WS)}, s3 offen sc1")
        if PB == 4:
            a(f"s_add_u32 s3, s3, {(4 << 20)}")
            a(f"buffer_atomic_add v248, v251, {sr(WS)}, s3 offen sc0 sc1")
        if PB == 5: a(f"buffer_load_dword v248, v251, {sr(DBG)}, 0 offen offset:64 sc1")
        a("s_waitcnt vmcnt(0)")
        ts("pb")
        set_exec(a, HI, HI)
        a.lab("L_noprobe")
    a("v_lshlrev_b32 v1, 4, v0")
    a("v_and_b32 v15, 3, v0")
    a("v_and_b32 v2, 31, v0")
    a(f"v_lshlrev_b32 v{vV0}, 4, v2")
    a("v_lshlrev_b32 v2, 7, v2")
    a("v_bfe_u32 v3, v0, 1, 3")
    a("v_lshrrev_b32 v4, 5, v0")
    a(f"v_mul_u32_u24 v{vV1}, {V_PLANE}, v4")
    a(f"v_add_u32 v{vV0}, v{vV0}, v{vV1}")
    a("v_xor_b32 v3, v3, v4")
    a("v_lshl_add_u32 v2, v3, 4, v2")
    a(f"s_lshl_b32 s3, s{sW}, 14")
    a(f"s_add_u32 s3, s3, {L_XR}")
    a("v_add_u32 v2, s3, v2")
    a("v_xor_b32 v3, 32, v2")
    a("v_xor_b32 v5, 96, v2")
    a(f"v_bfe_u32 v{t0}, v0, 2, 2")
    a(f"v_lshl_add_u32 v{t1}, v4, 3, v{t0}")
    a("v_xor_b32 v4, 64, v2")
    a(f"v_bfe_u32 v{t2}, v0, 4, 1")
    a(f"v_lshlrev_b32 v{t2}, 5, v{t2}")
    a(f"v_lshrrev_b32 v{t3}, 1, v15")
    a(f"v_and_b32 v{t4}, 1, v15")
    a(f"v_lshl_add_u32 v{t3}, v{t4}, 1, v{t3}")
    a(f"v_lshl_add_u32 v{t3}, v{t3}, 3, v{t2}")
    a(f"v_lshl_add_u32 v{t4}, v15, 3, v{t2}")
    a(f"v_lshl_add_u32 v{vQR}, v{t1}, 6, v{t3}")
    a(f"v_add_u32 v{vQR}, {L_WQ}, v{vQR}")
    a(f"s_cmp_lt_u32 s{sH}, 7")
    a("s_cselect_b64 vcc, -1, 0")
    a(f"v_cndmask_b32 v{t3}, v{t4}, v{t3}, vcc")
    a(f"v_lshrrev_b32 v{t0}, 1, v{t0}")
    a(f"v_lshl_add_u32 v{t3}, v{t0}, 6, v{t3}")
    a(f"v_lshl_add_u32 v{vWR[0]}, v{t1}, 7, v{t3}")
    a(f"v_xor_b32 v{vWR[1]}, 64, v{vWR[0]}")
    mask_addr(a, vMk)
    a(f"s_lshl_b32 s3, 1, s{sB}")
    a(f"v_mov_b32 v{vOne}, s3")
    a(f"s_lshl_b32 s3, s{sH}, 4")
    a(f"s_add_u32 s3, s3, s{sW}")
    a(f"v_lshl_add_u32 v{vP1}, v0, 2, s3")
    a(f"v_lshlrev_b32 v{vP1}, {FSH}, v{vP1}")
    a(f"v_add_u32 v{vP1}, {FL_OFF}, v{vP1}")
    a(f"s_lshl_b32 s{sA}, s{sT}, {FSH}")
    a(f"s_add_u32 s{sA}, s{sA}, {FL_OFF + (256 << FSH)}")
    a(f"v_mov_b32 v{vFl2}, s{sA}")
    a(f"v_lshrrev_b32 v{vFl}, 3, v0")
    a(f"v_mul_u32_u24 v{vFl}, {V_PLANE}, v{vFl}")
    a(f"v_and_b32 v{t0}, 7, v0")
    a(f"v_lshl_add_u32 v{vFl}, v{t0}, 4, v{vFl}")
    a(f"v_cmp_eq_u32 vcc, 0, v{t0}")
    a(f"v_mov_b32 v{t1}, 0x3f803f80")
    a("s_nop 0")
    for r in range(4):
        a(f"v_cndmask_b32 v{216+r}, 0, v{t1}, vcc")
    srd(a, OUT, 10, 11, OUT_BYTES)
    srd(a, KVS, 14, 15, KV_BYTES)
    def rd(c, i):
        a(f"ds_read_b128 {vr(XF+16*c+4*i,4)}, v{vXR[i]} offset:{(c%4)*4096}")
        for p in range(2):
            for r in range(2):
                a(f"ds_read_b64_tr_b16 {vr(WF+8*i+4*p+2*r,2)}, v{vWR[p]} offset:{L_WKV + (c*4+i)*2048 + r*512}")
    def phase1a(kind):
        def mm(c, i):
            x = vr(XF+16*c+4*i, 4)
            first = (c == 0 and i == 0)
            for p, acc in ((0, A0), (1, A1)):
                w = vr(WF+8*i+4*p, 4)
                if kind == "K": mfma(a, vr(acc,16), w, x, "0" if first else vr(acc,16))
                else: mfma(a, vr(acc,16), x, w, "0" if first else vr(acc,16))
        for c in range(7):
            a("s_barrier")
            if c == 0: ts("c0")
            rd(c, 0); rd(c, 1)
            if c == 0:
                a("s_waitcnt vmcnt(0)")
                a(f"v_readfirstlane_b32 s{sLD}, v250")
                a(f"s_mov_b32 s3, {FL_OFF}")
                a(f"s_cmp_lg_u32 s{sLD}, 0")
                a(f"s_cbranch_scc1 L_noclear{kind}")
                for i in range(5):
                    a(f"buffer_store_dword v251, v252, {sr(WS)}, s3 offen sc1")
                    a(f"s_add_u32 s3, s3, {64 << FSH}")
                a.lab(f"L_noclear{kind}")
            if c == 4:
                a(f"s_cmp_lg_u32 s{sLD}, 0")
                a(f"s_cbranch_scc1 L_nogo{kind}")
                a("v_mov_b32 v250, 1")
                a("s_waitcnt vmcnt(0)")
                set_exec(a, 1, 0)
                a(f"buffer_store_dword v250, v251, {sr(DBG)}, 0 offen sc1")
                set_exec(a, HI, HI)
                a.lab(f"L_nogo{kind}")
            if c > 0: mm(c-1, 2)
            rd(c, 2)
            if c > 0: mm(c-1, 3)
            a("s_waitcnt lgkmcnt(10)")
            rd(c, 3)
            mm(c, 0)
            a("s_waitcnt lgkmcnt(10)")
            mm(c, 1)
            a("s_waitcnt lgkmcnt(0)")
        mm(6, 2); mm(6, 3)
        ts("kv_mm")
        a(f"s_lshl_b32 s{sKV}, s{sT}, 16")
        if kind == "K":
            a(f"s_lshl_b32 s3, s{sH}, 12")
            a(f"s_add_u32 s3, s3, s{sKV}")
            a("s_nop 7")
        else:
            a(f"s_mul_i32 s3, s{sH}, {V_LINE}")
            a(f"s_add_u32 s3, s3, s{sKV}")
            a(f"s_add_u32 s3, s3, {V_BASE - 7*V_LINE}")
            a(f"s_add_u32 s{sA}, s3, {2*V_PLANE}")
            a(f"s_cmp_lt_u32 s{sH}, 14")
            a(f"s_cselect_b32 s{KVS+2}, {KV_BYTES}, 0")
            set_exec(a, HI, 0)
            a(f"buffer_store_dwordx4 v[216:219], v{vFl}, {sr(KVS)}, s3 offen offset:1024 sc1")
            set_exec(a, HI, HI)
        for p, acc in ((0, A0), (1, A1)):
            for f in range(2):
                for i in range(4):
                    a(f"v_cvt_pk_bf16_f32 v{PK+8*p+4*f+i}, v{acc+8*f+2*i}, v{acc+8*f+2*i+1}")
                d = vr(PK+8*p+4*f, 4)
                if kind == "K":
                    a(f"buffer_store_dwordx4 {d}, v1, {sr(KVS)}, s3 offen offset:{2048*p+1024*f} sc1")
                else:
                    a(f"buffer_store_dwordx4 {d}, v{vV0}, {sr(KVS)}, {'s3' if f == 0 else 's%d' % sA} offen offset:{512*p} sc1")
    a(f"s_cmp_lt_u32 s{sH}, 7")
    a("s_cbranch_scc0 L_vline")
    phase1a("K")
    a("s_branch L_q")
    a.lab("L_vline")
    phase1a("V")
    a.lab("L_q")
    ts("kv_st")
    if NQ[7]: a("s_barrier")
    a(f"s_mul_i32 s4, s{sH}, 56")
    a("s_lshr_b32 s5, s4, 4")
    a("s_lshl_b32 s5, s5, 9")
    a(f"v_add_u32 v{vKo}, s5, v1")
    a("s_lshr_b32 s4, s4, 1")
    a(f"v_and_b32 v{t0}, 31, v0")
    a(f"v_add_u32 v{t1}, s4, v{t0}")
    a(f"v_lshrrev_b32 v{t2}, 6, v{t1}")
    a(f"v_lshl_add_u32 v{t1}, v{t2}, 3, v{t1}")
    a("s_lshr_b32 s5, s4, 6")
    a("s_mul_i32 s5, s5, 72")
    a("s_add_u32 s5, s5, 36")
    a(f"v_add_u32 v{t2}, s5, v{t0}")
    a(f"v_cmp_gt_u32 vcc, 28, v{t0}")
    a(f"v_add_u32 v{vV1}, {V_BASE}, v{vV1}")
    a("s_nop 0")
    a(f"v_cndmask_b32 v{t1}, v{t2}, v{t1}, vcc")
    a(f"v_lshl_add_u32 v{vV0}, v{t1}, 4, v{vV1}")
    a(f"v_add_u32 v{vV1}, {2*V_PLANE}, v{vV0}")
    for r in range(220, 240):
        a(f"v_mov_b32 v{r}, 0")
    a(f"s_mov_b32 s{KVS+2}, {KV_BYTES}")
    a("s_barrier")
    ts("b7")
    def rdq(s):
        for r in range(2):
            a(f"ds_read_b64_tr_b16 {vr(WF+4*(s%8)+2*r,2)}, v{vQR} offset:{s*1024 + r*256}")
    for s in range(6): rdq(s)
    for s in range(28):
        if s + 6 < 28:
            rdq(s + 6)
            a("s_waitcnt lgkmcnt(12)")
        else:
            a(f"s_waitcnt lgkmcnt({2*(27-s)})")
        mfma(a, vr(AQ,16), vr(WF+4*(s%8),4), vr(XF+4*s,4), "0" if s == 0 else vr(AQ,16))
        if s + 1 == FLAGPOS:
            a("s_waitcnt vmcnt(0)")
            set_exec(a, "0xf", 0)
            a(f"buffer_atomic_or v{vOne}, v{vP1}, {sr(WS)}, 0 offen sc1")
            set_exec(a, HI, HI)
            ts("kv_flag")
    if not opt("probe", 0): ts("q_mm")
    a(f"s_mov_b32 s3, {f32bits(QSCALE):#x}")
    a(f"s_lshl_b32 s{sA}, s{sW}, 11")
    a(f"s_add_u32 s{sA}, s{sA}, {L_CMB}")
    a(f"v_add_u32 v{t0}, s{sA}, v1")
    for r in range(176, 184):
        a(f"v_mov_b32 v{r}, 0")
    for r in range(16):
        a(f"v_mul_f32 v{AQ+r}, s3, v{AQ+r}")
    Q3 = Q + 24
    for i in range(8):
        a(f"v_cvt_pk_bf16_f32 v{Q3+i}, v{AQ+2*i}, v{AQ+2*i+1}")
    a(f"s_bitcmp1_b32 s{sH}, 0")
    a("s_cselect_b32 exec_lo, -1, 0")
    a("s_mov_b32 exec_hi, 0")
    a(f"v_mov_b32 v{Q3}, 0")
    a(f"v_mov_b32 v{Q3+1}, 0")
    a("s_cselect_b32 exec_hi, 0, -1")
    a("s_mov_b32 exec_lo, 0")
    a(f"v_mov_b32 v{Q3+6}, 0")
    a(f"v_mov_b32 v{Q3+7}, 0")
    set_exec(a, HI, HI)
    a(f"ds_write_b128 v{t0}, {vr(Q3,4)}")
    a(f"ds_write_b128 v{t0}, {vr(Q3+4,4)} offset:1024")
    for i in range(3):
        a(f"s_add_u32 s{sA}, s{sW}, {1+i}")
        a(f"s_and_b32 s{sA}, s{sA}, 3")
        a(f"s_lshl_b32 s{sA}, s{sA}, 11")
        a(f"s_add_u32 s{sA}, s{sA}, {L_CMB}")
        a(f"v_add_u32 v{vT[1+i]}, s{sA}, v1")
    for r in range(4):
        a(f"v_mov_b32 v{KV+48+12+r}, 0")
    a(f"s_mov_b32 s{sRDY}, 0")
    a(f"s_mov_b32 s{sTODO}, 0x7ffff")
    a("s_waitcnt lgkmcnt(0)")
    a("s_barrier")
    for i in range(3):
        a(f"ds_read_b128 {vr(Q+8*i,4)}, v{vT[1+i]}")
        a(f"ds_read_b128 {vr(Q+8*i+4,4)}, v{vT[1+i]} offset:1024")
    ts("q_done")
    def ldk(slot):
        for f in range(2):
            a(f"buffer_load_dwordx4 {vr(KV+16*slot+4*f,4)}, v{vKo}, {sr(KVS)}, s{sKV} offen offset:{1024*f} sc1")
    def ldv(slot):
        a(f"buffer_load_dwordx4 {vr(KV+16*slot+8,4)}, v{vV0}, {sr(KVS)}, s{sKV} offen sc1")
        a(f"buffer_load_dwordx4 {vr(KV+16*slot+12,4)}, v{vV1}, {sr(KVS)}, s{sKV} offen sc1")
    npick = [0]
    def pick_ops():
        n = npick[0]; npick[0] += 1
        def p0(): a(f"s_and_b32 s{sAV}, s{sRDY}, s{sTODO}")
        def p1():
            a(f"s_cbranch_scc0 L_slow{n}")
            a.lab(f"L_back{n}")
        def p2(): a(f"s_ff1_i32_b32 s{sAV}, s{sAV}")
        def p3(): a(f"s_bitset0_b32 s{sTODO}, s{sAV}")
        def p4(): a(f"s_lshl2_add_u32 s{sBb}, s{sAV}, s{sT}")
        def p5(): a(f"s_and_b32 s{sBb}, s{sBb}, 63")
        def p6(): a(f"s_and_b32 s{sAV}, s{sAV}, 16")
        def p7(): a(f"s_lshl2_add_u32 s{sBb}, s{sAV}, s{sBb}")
        def p8(): a(f"s_lshl_b32 s{sKV}, s{sBb}, 16")
        return [p0, p1, p2, p3, p4, p5, p6, p7, p8]
    for sl in range(3):
        for f in pick_ops(): f()
        ldk(sl); ldv(sl)
        if sl == 0: ts("pick0")
    for f in pick_ops(): f()
    for r in range(184, 220):
        a(f"v_mov_b32 v{r}, 0")
    for r in range(4):
        a(f"v_mov_b32 v{P+4+r}, 0")
    a(f"s_mov_b32 s{sIT}, 3")
    vC = vT[1:4]; vCR = vT[4]
    a("s_waitcnt lgkmcnt(0)")
    for i in range(3):
        a(f"s_add_u32 s3, s{sW}, {1+i}")
        a("s_and_b32 s3, s3, 3")
        a("s_mul_i32 s3, s3, 12288")
        a(f"s_add_u32 s3, s3, {L_CMB + 4096*i}")
        a(f"v_add_u32 v{vC[i]}, s3, v1")
    a(f"s_mul_i32 s3, s{sW}, 12288")
    a(f"s_add_u32 s3, s3, {L_CMB}")
    a(f"v_add_u32 v{vCR}, s3, v1")
    a("s_waitcnt vmcnt(8)")
    ts("kv0")
    def mS(part, t):
        slot = (t // 4) % 4; qt = t % 4
        d = vr(S[t % 2], 16)
        mfma(a, d, vr(KV+16*slot+4*part,4), vr(Q+8*qt+4*part,4), "0" if part == 0 else d)
    def mPV(part, t):
        slot = (t // 4) % 4; qt = t % 4
        d = vr(O + 16*qt, 16)
        mfma(a, d, vr(KV+16*slot+8+4*part,4), vr(P+4*part,4), d)
    def EC(t, g):
        s = S[t % 2] + 4*g
        for r in range(4):
            a(f"v_exp_f32 v{s+r}, v{s+r}")
        a(f"v_cvt_pk_bf16_f32 v{P+2*g}, v{s}, v{s+1}")
        a(f"v_cvt_pk_bf16_f32 v{P+2*g+1}, v{s+2}, v{s+3}")
    mS(0, 0); mS(1, 0)
    ts("att0", cyc=True)
    a("s_nop 7")
    a("s_nop 3")
    a.raw(".p2align 6")
    a.lab("L_loop")
    def tile(j, last=False):
        fs = [None] * 16
        if not last:
            fs[11] = lambda: a("s_waitcnt vmcnt(8)")
            po = pick_ops()
            for k, f in enumerate(po): fs[2 + k] = f
            if j == 2:
                fs[14] = lambda: a(f"s_sub_u32 s{sIT}, s{sIT}, 1")
        else:
            def wr(i, g):
                return lambda: a(f"ds_write_b128 v{vC[i]}, {vr(O+16*i+4*g,4)} offset:{1024*g}")
            for i in range(3):
                fs[4*(i+1) + 3] = wr(i, 0)
                if i < 2:
                    for g in range(1, 4): fs[4*(i+2) + g - 1] = wr(i, g)
        for st in range(4):
            t = 4*j + st
            f = fs[4*st:4*st+4]
            if not (last and st == 3): mS(0, t+1)
            if st == 0 and not last: ldk((j + 3) % 4)
            if f[0]: f[0]()
            EC(t, 0)
            mPV(1, (t - 1) % 16)
            if st == 0 and not last: ldv((j + 3) % 4)
            if f[1]: f[1]()
            EC(t, 1)
            if not (last and st == 3): mS(1, t+1)
            if f[2]: f[2]()
            EC(t, 2)
            mPV(0, t)
            if f[3]: f[3]()
            EC(t, 3)
    for j in range(3): tile(j)
    a("s_cbranch_scc1 L_last")
    tile(3)
    a("s_branch L_loop")
    a.lab("L_last")
    tile(3, last=True)
    a(f"ds_write_b128 v{vC[2]}, {vr(O+32+4,4)} offset:1024")
    a(f"ds_write_b128 v{vC[2]}, {vr(O+32+8,4)} offset:2048")
    mPV(1, 15)
    a(f"ds_write_b128 v{vC[2]}, {vr(O+32+12,4)} offset:3072")
    ts("att1", cyc=True)
    ts("att1")
    a(f"s_mov_b32 s4, {f32bits(2.0**62):#x}")
    a(f"s_mov_b32 s5, {f32bits(2.0**-62):#x}")
    a("s_waitcnt vmcnt(0) lgkmcnt(0)")
    a("s_barrier")
    R = O
    F = O + 48
    for i in range(3):
        for g in range(4):
            a(f"ds_read_b128 {vr(R+16*i+4*g,4)}, v{vCR} offset:{4096*i+1024*g}")
    a(f"s_lshl_b32 s3, s{sT}, 4")
    a(f"s_add_u32 s3, s3, s{sH}")
    a("s_lshl_b32 s3, s3, 11")
    a(f"s_add_u32 s3, s3, {O_OFF}")
    for i in range(3):
        a(f"s_waitcnt lgkmcnt({8-4*i})")
        for r in range(16):
            a(f"v_add_f32 v{F+r}, v{F+r}, v{R+16*i+r}")
    a(f"v_cmp_nge_f32 s[6:7], s4, v{F+12}")
    a(f"v_cmp_nle_f32 vcc, s5, v{F+12}")
    a("s_or_b64 s[6:7], s[6:7], vcc")
    a("s_cmp_lg_u32 s7, 0")
    a("s_cbranch_scc1 L_fallback")
    a.lab("L_norm")
    a(f"v_mov_b32 v{t0}, v{F+12}")
    a(f"v_mov_b32 v{t1}, v{F+12}")
    a("s_nop 1")
    a(f"v_permlane32_swap_b32 v{t0}, v{t1}")
    a("s_nop 1")
    a(f"v_rcp_f32 v{t1}, v{t1}")
    set_exec(a, 0, HI)
    a(f"v_mov_b32 v{F+12}, 0")
    set_exec(a, HI, HI)
    for r in range(16):
        a(f"v_mul_f32 v{F+r}, v{F+r}, v{t1}")
    PO = 240
    for i in range(8):
        a(f"v_cvt_pk_bf16_f32 v{PO+i}, v{F+2*i}, v{F+2*i+1}")
    a(f"buffer_store_dwordx4 {vr(PO,4)}, v1, {sr(WS)}, s3 offen sc1")
    a(f"buffer_store_dwordx4 {vr(PO+4,4)}, v1, {sr(WS)}, s3 offen offset:1024 sc1")
    ts("o_st")
    WOF, OF, ACC, D = 40, 168, 24, 232
    a(f"s_and_b32 s3, s{sCS4}, 1")
    a("s_lshl_b32 s3, s3, 5")
    a(f"s_mul_i32 s{sA}, s{sW}, 56")
    a(f"s_add_u32 s3, s3, s{sA}")
    a(f"v_bfe_u32 v{t0}, v0, 4, 1")
    a(f"v_lshlrev_b32 v{t0}, 5, v{t0}")
    a(f"v_and_b32 v{t1}, 3, v0")
    a(f"v_lshl_add_u32 v{t0}, v{t1}, 3, v{t0}")
    a(f"v_add_u32 v{t0}, s3, v{t0}")
    a(f"v_and_b32 v{t0}, 255, v{t0}")
    a(f"v_bfe_u32 v{t1}, v0, 2, 2")
    a(f"v_lshlrev_b32 v{t2}, 6, v{t1}")
    a(f"v_xor_b32 v{t0}, v{t0}, v{t2}")
    a(f"v_lshl_add_u32 v{t2}, v{t1}, 8, v{t0}")
    a(f"v_lshrrev_b32 v{t1}, 5, v0")
    a(f"v_lshl_add_u32 v{t0}, v{t1}, 10, v{t2}")
    a(f"v_add_u32 v{t1}, 0x10000, v{t0}")
    a(f"v_add_u32 v{t2}, 0x10000, v{t2}")
    def rdwo(hh):
        for u in range(2):
            for r in range(2):
                off = L_WO + (28*hh + 16*u + 8*r) * 256
                base = t0
                if off >= 0x10000:
                    off -= 0x10000; base = t1
                if hh == 15 and u == 1 and r == 1:
                    base = t2
                a(f"ds_read_b64_tr_b16 {vr(WOF+8*hh+4*u+2*r,2)}, v{base} offset:{off}")
    a(f"s_lshl_b32 s3, 1, s{sH}")
    a(f"v_mov_b32 v{vOne}, s3")
    for hh in range(6): rdwo(hh)
    a("s_waitcnt vmcnt(0)")
    set_exec(a, 1, 0)
    a(f"buffer_atomic_or v{vOne}, v{vFl2}, {sr(WS)}, 0 offen sc1")
    set_exec(a, HI, HI)
    ts("o_flag")
    for hh in range(6, 16): rdwo(hh)
    a(f"v_add_u32 v{t3}, {L_CMB}, v1")
    a(f"v_and_b32 v{t4}, 31, v0")
    a(f"v_mul_u32_u24 v{t4}, 896, v{t4}")
    a(f"v_lshrrev_b32 v{t5}, 5, v0")
    a(f"v_lshl_add_u32 v{t4}, v{t5}, 4, v{t4}")
    a(f"s_mul_i32 s{sKV}, s{sT3}, 28672")
    a(f"s_lshl_b32 s{sBb}, s{sCS4}, 2")
    a(f"s_add_u32 s{sBb}, s{sBb}, s{sW}")
    a(f"s_mul_i32 s{sBb}, s{sBb}, 56")
    a(f"s_add_u32 s{sKV}, s{sKV}, s{sBb}")
    a("s_barrier")
    a("s_barrier")
    ts("o_ld")
    NR = 16
    for f in range(12):
        a(f"ds_read_b128 {vr(OF+4*(f%NR),4)}, v{t3} offset:{1024*f}")
    for f in range(32):
        if f + 12 < 32:
            a(f"ds_read_b128 {vr(OF+4*((f+12)%NR),4)}, v{t3} offset:{1024*(f+12)}")
            a("s_waitcnt lgkmcnt(12)")
        else:
            a(f"s_waitcnt lgkmcnt({31-f})")
        mfma(a, vr(ACC,16), vr(WOF+4*f,4), vr(OF+4*(f%NR),4), "0" if f == 0 else vr(ACC,16))
    a("s_nop 7")
    a("s_nop 3")
    for i in range(8):
        a(f"v_cvt_pk_bf16_f32 v{D+i}, v{ACC+2*i}, v{ACC+2*i+1}")
    a(f"v_permlane32_swap_b32 v{D}, v{D+2}")
    a(f"v_permlane32_swap_b32 v{D+1}, v{D+3}")
    a(f"v_permlane32_swap_b32 v{D+4}, v{D+6}")
    a(f"v_permlane32_swap_b32 v{D+5}, v{D+7}")
    a(f"buffer_store_dwordx4 {vr(D,4)}, v{t4}, {sr(OUT)}, s{sKV} offen")
    set_exec(a, HI, 0)
    a(f"buffer_store_dwordx4 {vr(D+4,4)}, v{t4}, {sr(OUT)}, s{sKV} offen offset:32")
    set_exec(a, 0, HI)
    a(f"buffer_store_dwordx2 {vr(D+4,2)}, v{t4}, {sr(OUT)}, s{sKV} offen offset:32")
    if not opt("probe", 0): ts("out_st")
    if TS:
        a("s_waitcnt vmcnt(0)")
        ts("end")
    if TS and TSG == 0: ts.dump()
    a.lab("L_end")
    a("s_endpgm")
    for n in range(npick[0]):
        a.lab(f"L_slow{n}")
        a(f"ds_read_b32 v15, v{vMk}")
        a("s_waitcnt lgkmcnt(0)")
        a(f"v_readfirstlane_b32 s{sRDY}, v15")
        a("s_nop 0")
        a(f"s_and_b32 s{sAV}, s{sRDY}, s{sTODO}")
        a(f"s_cbranch_scc0 L_slow{n}")
        a(f"s_branch L_back{n}")
    a.lab("L_fallback")
    a(f"s_mov_b32 s{sA}, s3")
    kv_poll_addr(a, vP1, t0)
    a(f"s_lshl_b32 s6, s{sW}, {FSH}")
    a(f"v_subrev_u32 v{vP1}, s6, v{vP1}")
    for w in range(4):
        poll(a, f"L_pollfb{w}", vP1, "0xf", 0, WS, "0xffff", off=w << FSH)
    a(f"s_mov_b32 s3, s{sA}")
    a(f"v_mov_b32 v{t0}, 0xff800000")
    a(f"s_mov_b32 s{sKV}, 0")
    SS = S0
    a.lab("L_fb1")
    ldk(0)
    a(f"s_add_u32 s{sKV}, s{sKV}, 0x10000")
    a("s_waitcnt vmcnt(0)")
    mfma(a, vr(SS,16), vr(KV,4), vr(Q3,4), "0")
    mfma(a, vr(SS,16), vr(KV+4,4), vr(Q3+4,4), vr(SS,16))
    a("s_nop 15")
    for r in range(0, 16, 2):
        a(f"v_max3_f32 v{t0}, v{t0}, v{SS+r}, v{SS+r+1}")
    a(f"s_cmp_lt_u32 s{sKV}, {KV_BYTES}")
    a("s_cbranch_scc1 L_fb1")
    a(f"v_mov_b32 v{t1}, v{t0}")
    a("s_nop 1")
    a(f"v_permlane32_swap_b32 v{t0}, v{t1}")
    a("s_nop 1")
    a(f"v_max_f32 v{t0}, v{t0}, v{t1}")
    for r in range(16):
        a(f"v_mov_b32 v{F+r}, 0")
    a(f"s_mov_b32 s{sKV}, 0")
    a.lab("L_fb2")
    ldk(0); ldv(0)
    a(f"s_add_u32 s{sKV}, s{sKV}, 0x10000")
    a("s_waitcnt vmcnt(0)")
    mfma(a, vr(SS,16), vr(KV,4), vr(Q3,4), "0")
    mfma(a, vr(SS,16), vr(KV+4,4), vr(Q3+4,4), vr(SS,16))
    a("s_nop 15")
    for r in range(16):
        a(f"v_sub_f32 v{SS+r}, v{SS+r}, v{t0}")
    for r in range(16):
        a(f"v_exp_f32 v{SS+r}, v{SS+r}")
    a("s_nop 0")
    for i in range(8):
        a(f"v_cvt_pk_bf16_f32 v{P+i}, v{SS+2*i}, v{SS+2*i+1}")
    a("s_nop 1")
    mfma(a, vr(F,16), vr(KV+8,4), vr(P,4), vr(F,16))
    mfma(a, vr(F,16), vr(KV+12,4), vr(P+4,4), vr(F,16))
    a(f"s_cmp_lt_u32 s{sKV}, {KV_BYTES}")
    a("s_cbranch_scc1 L_fb2")
    a("s_nop 15")
    a("s_branch L_norm")
    if TS:
        open("stamps.txt", "w").write(",".join(ts.names))
    return name

def main():
    a = A()
    name = kernel(a)
    head = open(f"cdna_kernels/{NAME}.s.ref").read().split("; Override")[0]
    out = head
    out += f"; @launch grid=(256,1,1) block=(512,1,1) lds={LDS_BYTES}\n"
    out += '.amdgcn_target "amdgcn-amd-amdhsa--gfx950"\n.text\n'
    out += a.text()
    out += f""".section .rodata,"a"
.p2align 6
.amdhsa_kernel {name}
  .amdhsa_next_free_vgpr 256
  .amdhsa_next_free_sgpr 102
  .amdhsa_accum_offset 256
  .amdhsa_group_segment_fixed_size 0
  .amdhsa_kernarg_size 48
  .amdhsa_user_sgpr_count 2
  .amdhsa_user_sgpr_kernarg_segment_ptr 1
  .amdhsa_system_sgpr_workgroup_id_x 1
.end_amdhsa_kernel
"""
    o = [x for x in sys.argv[1:] if not x.startswith("--")]
    path = o[0] if o else f"cdna_kernels/{NAME}.s"
    open(path, "w").write(out)
main()
```

```python
import sys, struct, math

NAME = "standalone__softmax_full_mha__prompt"
FL_OFF = 5 << 20
O_OFF = 6 << 20
TS_OFF = 8 << 20
WS_BYTES = 268435456
X_BYTES = 2048 * 448 * 2
W_BYTES = 448 * 1344 * 2
WO_BYTES = 448 * 448 * 2
OUT_BYTES = 2048 * 448 * 2
KV_BYTES = 4 << 20
V_BASE = 28672
V_LINE = 1152
V_PLANE = 7 * V_LINE
QSCALE = 28 ** -0.5 * math.log2(math.e)

def opt(name, default):
    for arg in sys.argv:
        if arg.startswith(f"--{name}="):
            return int(arg.split("=")[1])
    return default
TS = "--ts" in sys.argv
TSG = opt("tsg", 0)
MAP = opt("maph", 3)
FSH = opt("fsh", 8)
FLAGPOS = opt("flagpos", 20)
NQ = [int(c) for c in "%08d" % opt("nq", 700)]
assert sum(NQ) == 7
SLEEP = opt("sleep", 1)
LA = opt("la", 2)
LEAD = opt("lead", 1)
GOSL = opt("gosl", 8)
GOAT = opt("goat", 0)
ROT = opt("rot", 1)
PREPOLL = opt("prepoll", 1)

def f32bits(x):
    return struct.unpack("<I", struct.pack("<f", x))[0]

class A:
    def __init__(self):
        self.l = []
    def __call__(self, s):
        for line in s.strip("\n").split("\n"):
            self.l.append("    " + line.strip())
    def lab(self, n):
        self.l.append(n + ":")
    def raw(self, s):
        self.l.append(s)
    def text(self):
        return "\n".join(self.l) + "\n"

def vr(b, n, k="v"):
    return f"{k}[{b}:{b+n-1}]"
def sr(b):
    return f"s[{b}:{b+3}]"

def srd(a, d, lo, hi, nbytes):
    a(f"s_mov_b32 s{d}, s{lo}")
    a(f"s_and_b32 s{d+1}, s{hi}, 0xffff")
    a(f"s_mov_b32 s{d+2}, {nbytes}")
    a(f"s_mov_b32 s{d+3}, 0x20000")

HI = "0xffffffff"
def set_exec(a, lo, hi):
    if lo == HI and hi == HI:
        a("s_mov_b64 exec, -1")
    elif hi == 0 and lo in (1, "0xf"):
        a(f"s_mov_b64 exec, {int(str(lo), 0)}")
    else:
        a(f"s_mov_b32 exec_lo, {lo}")
        a(f"s_mov_b32 exec_hi, {hi}")

class Stamps:
    def __init__(self, a):
        self.a = a; self.idx = {}; self.names = []
    def __call__(self, name, cyc=False, grp=0):
        if not TS: return
        if name != "start" and grp != TSG: return
        nm = name + ("(cyc)" if cyc else "")
        if nm not in self.idx:
            self.idx[nm] = len(self.names); self.names.append(nm)
        b = 66 + 2 * self.idx[nm]
        assert b + 1 < 102
        self.a(f"s_memtime s[{b}:{b+1}]" if cyc else f"s_memrealtime s[{b}:{b+1}]")
    def dump(self):
        if not TS: return
        a = self.a
        sp = [x for x in sys.argv if x.startswith("--spin=")]
        if sp:
            hi, lo, m = sp[0][7:].split(",")
            a("s_waitcnt lgkmcnt(0)")
            if lo == "G":
                a("v_mov_b32 v2, 0")
                a(f"buffer_load_dword v4, v2, {sr(DBG)}, 0 offen offset:192 sc1")
                a("s_waitcnt vmcnt(0)")
                a("v_readfirstlane_b32 s4, v4")
                a("s_nop 0")
                a("s_not_b32 s4, s4")
                a(f"s_sub_u32 s3, s{66+2*self.idx[hi]}, s4")
            else:
                a(f"s_sub_u32 s3, s{66+2*self.idx[hi]}, s{66+2*self.idx[lo]}")
            only = opt("only", -1)
            if only >= 0:
                a("s_and_b32 s4, s2, 7")
                a(f"s_cmp_eq_u32 s4, {only}")
                a("s_cselect_b32 s3, s3, 0")
            a(f"s_mul_i32 s3, s3, {m}")
            a(f"s_add_u32 s3, s3, s{66+2*self.idx['end' if TSG == 0 else 'h_stage']}")
            a.lab("L_spin")
            a("s_memrealtime s[4:5]")
            a("s_waitcnt lgkmcnt(0)")
            a("s_sub_u32 s4, s4, s3")
            a("s_cmp_lt_i32 s4, 0")
            a("s_cbranch_scc1 L_spin")
            return
        if "--dbg" in sys.argv:
            sel = ["start", "start", "c0", "kv_mm", "b7", "q_done", "kv0", "att1", "o_flag", "o_ld", "end"]
            a("s_waitcnt lgkmcnt(0)")
            a(f"s_cmp_lg_u32 s{sW}, 0")
            a("s_cbranch_scc1 L_end")
            a("s_mov_b64 exec, 1")
            a("v_mov_b32 v2, 0")
            for i, nm in enumerate(sel):
                a(f"v_mov_b32 v4, s{66+2*self.idx[nm]}")
                if i == 0: a("v_not_b32 v4, v4")
                a(f"buffer_atomic_umax v4, v2, {sr(DBG)}, 0 offen offset:{8+4*i} sc1")
                a("s_nop 1")
            for i, nm in enumerate(["end", "kv0", "c0"]):
                a(f"s_sub_u32 s3, s{66+2*self.idx[nm]}, s66")
                a("v_mov_b32 v4, s3")
                a(f"buffer_atomic_umax v4, v2, {sr(DBG)}, 0 offen offset:{52+4*i} sc1")
                a("s_nop 1")
            a("s_waitcnt vmcnt(0)")
            return
        a("s_waitcnt lgkmcnt(0)")
        a(f"s_lshl_b32 s3, s2, 2")
        a(f"s_add_u32 s3, s3, s{sW}")
        a(f"s_lshl_b32 s3, s3, 7")
        a(f"s_add_u32 s3, s3, {TS_OFF}")
        a("s_mov_b64 exec, 1")
        a("v_mov_b32 v2, 0")
        for i in range(18):
            a(f"v_mov_b32 v4, s{66+2*i}")
            a(f"buffer_store_dword v4, v2, {sr(WS)}, s3 offen offset:{4*i}")
            a("s_nop 1")
        a("s_waitcnt vmcnt(0)")

X, W, WO, OUT, DBG, WS, KVS = 16, 20, 24, 28, 32, 36, 40
sH, sB, sW, sT = 44, 45, 46, 47
sKC, sXB, sWB, sXM, sWM = 48, 49, 50, 51, 52
sRDY, sTODO, sAV, sRET = 48, 49, 50, 64
sA, sBb = 53, 54
sKV, sIT, sWQ, sWoS, sCNT = 55, 56, 57, 58, 59
sKQ, sLD = 60, 61
WQS = KVS
sT3, sCS4 = 62, 63
L_WKV, L_WQ, L_XR = 0, 57344, 86016
L_WO, L_CMB = 0, 114688
LDS_BYTES = 163840
vXR = [2, 3, 4, 5]
vWR = [6, 7]
vQR, vOne, vFl, vFl2, vP1, vMk = 8, 9, 10, 11, 12, 13
vKo, vV0, vV1 = 14, 16, 17
vT = [18, 19, 20, 21, 22, 23]
A0, A1 = 24, 40
AQ = A0
XF = 56
WF = 168
PK = 200
Q, S0, P, KV, O = 40, 72, 104, 112, 176
S = [S0, S0 + 16]

def decode_hb(a):
    nhg = 16 >> MAP
    lg = int(math.log2(nhg))
    a(f"s_and_b32 s{sH}, s2, {nhg-1}")
    a(f"s_lshl_b32 s{sH}, s{sH}, {MAP}")
    a(f"s_lshr_b32 s3, s2, 3")
    a(f"s_and_b32 s{sB}, s3, {(1<<MAP)-1}")
    a(f"s_add_u32 s{sH}, s{sH}, s{sB}")
    a(f"s_lshr_b32 s3, s3, {MAP}")
    a(f"s_and_b32 s{sB}, s2, 7")
    a(f"s_lshr_b32 s{sB}, s{sB}, {lg}")
    a(f"s_mul_i32 s{sB}, s{sB}, {32>>MAP}")
    a(f"s_add_u32 s{sB}, s{sB}, s3")

def mfma(a, d, x, y, c):
    a(f"v_mfma_f32_32x32x16_bf16 {d}, {x}, {y}, {c}")

def flag_read(a, vaddr, srdn, off=0):
    a("v_mov_b32 v15, 0")
    a(f"buffer_atomic_or v15, v{vaddr}, {sr(srdn)}, 0 offen offset:{off} sc0 sc1")

def poll(a, label, vaddr, lo, hi, srdn, smask, off=0, atomic=True):
    a(f"s_mov_b32 s{sCNT}, 0x100000")
    set_exec(a, lo, hi)
    a(f"s_branch {label}_in")
    a.lab(label)
    if SLEEP: a(f"s_sleep {SLEEP if atomic else GOSL}")
    a.lab(label + "_in")
    if atomic: flag_read(a, vaddr, srdn, off)
    else: a(f"buffer_load_dword v15, v{vaddr}, {sr(srdn)}, 0 offen offset:{off} sc1")
    a(f"s_sub_u32 s{sCNT}, s{sCNT}, 1")
    a(f"s_cbranch_scc1 {label}_done")
    a("s_waitcnt vmcnt(0)")
    a(f"v_and_b32 v15, {smask}, v15")
    a(f"v_cmp_ne_u32 vcc, {smask}, v15")
    a(f"s_cbranch_vccnz {label}")
    a.lab(label + "_done")
    set_exec(a, HI, HI)

def kv_poll_addr(a, vd, t0):
    a(f"s_mul_i32 s4, s{sH}, 56")
    a("s_and_b32 s5, s4, 0xfffffff0")
    a(f"v_mov_b32 v{t0}, s5")
    a("s_add_u32 s5, s5, 62")
    a(f"v_writelane_b32 v{t0}, s5, 1")
    a("s_add_u32 s5, s4, 896")
    a(f"v_writelane_b32 v{t0}, s5, 2")
    a("s_add_u32 s5, s4, 950")
    a(f"v_writelane_b32 v{t0}, s5, 3")
    a(f"v_lshrrev_b32 v{t0}, 7, v{t0}")
    a(f"v_lshlrev_b32 v{t0}, {FSH+4}, v{t0}")
    a(f"s_and_b32 s3, s{sH}, 3")
    a(f"s_lshl2_add_u32 s3, s3, s{sW}")
    a(f"s_lshl_b32 s3, s3, {FSH}")
    a(f"s_add_u32 s3, s3, {FL_OFF}")
    a(f"v_add_u32 v{vd}, s3, v{t0}")

def mask_addr(a, vd):
    a(f"s_add_u32 s3, s{sW}, 3")
    a("s_and_b32 s3, s3, 3")
    a("s_mul_i32 s3, s3, 12288")
    a(f"s_add_u32 s3, s3, {L_CMB + 8192}")
    a(f"v_mov_b32 v{vd}, s3")

def helper(a, ts):
    vX = [2, 3, 4, 5]
    vW0, vW1, vWq = 6, 7, 8
    vZ, vOn, vP, vM, vWo, vF = 9, 10, 11, 12, 13, 14
    a("v_lshrrev_b32 v7, 3, v0")
    a("v_mul_u32_u24 v2, 896, v7")
    a("v_and_b32 v6, 7, v0")
    a("v_lshrrev_b32 v4, 4, v0")
    a("v_xor_b32 v3, v6, v4")
    a("v_lshl_add_u32 v2, v3, 4, v2")
    a("v_xor_b32 v3, 64, v2")
    a("v_add_u32 v3, 6144, v3")
    a("v_and_b32 v4, 1, v4")
    a("v_lshlrev_b32 v4, 2, v4")
    a("v_xor_b32 v6, v6, v4")
    a("v_mul_u32_u24 v7, 2688, v7")
    a(f"v_lshl_add_u32 v{vW0}, v6, 4, v7")
    a(f"v_add_u32 v{vW1}, {8*2688-1024}, v{vW0}")
    a("v_add_u32 v4, 12288, v2")
    a("v_add_u32 v5, 12288, v3")
    a(f"s_mul_i32 s{sXB}, s{sT}, 28672")
    a(f"s_mul_i32 s{sWQ}, s{sW}, 43008")
    a(f"s_lshl_b32 s{sWB}, s{sH}, 7")
    a(f"s_add_u32 s{sWB}, s{sWB}, s{sWQ}")
    a(f"s_add_u32 s{sWB}, s{sWB}, 896")
    a(f"s_lshl_b32 s{sXM}, s{sW}, 14")
    a(f"s_add_u32 s{sXM}, s{sXM}, {L_XR}")
    a(f"s_lshl_b32 s{sWM}, s{sW}, 11")
    a(f"s_lshl_b32 s3, s{sB}, 1")
    a(f"s_add_u32 s3, s3, s{sH}")
    a(f"s_mul_i32 s{sA}, s3, 37")
    a(f"s_lshr_b32 s{sA}, s{sA}, 8")
    a(f"s_mul_i32 s{sA}, s{sA}, 7")
    a(f"s_sub_u32 s{sKC}, s3, s{sA}")
    a(f"s_mov_b32 s{sKQ}, s{sKC}")
    a(f"s_mov_b32 s{X+2}, {X_BYTES}")
    a(f"s_mov_b32 s{X+3}, 0x20000")
    a(f"s_cmp_lt_u32 s{sH}, 14")
    a(f"s_cselect_b32 s{W+2}, {W_BYTES}, 0")
    a(f"s_mov_b32 s{W+3}, 0x20000")
    a("s_waitcnt lgkmcnt(0)")
    a(f"s_mov_b32 s{X}, s4")
    a(f"s_and_b32 s{X+1}, s5, 0xffff")
    a(f"s_mov_b32 s{W}, s6")
    a(f"s_and_b32 s{W+1}, s7, 0xffff")
    def adv_kc():
        a(f"s_add_u32 s{sKC}, s{sKC}, 1")
        a(f"s_cmp_eq_u32 s{sKC}, 7")
        a(f"s_cselect_b32 s{sKC}, 0, s{sKC}")
    def issue(c):
        a(f"s_mul_i32 s{sBb}, s{sKC}, 172032")
        a(f"s_add_u32 m0, s{sWM}, {L_WKV + c*8192}")
        a(f"s_add_u32 s{sBb}, s{sBb}, s{sWB}")
        a(f"buffer_load_dwordx4 v{vW0}, {sr(W)}, s{sBb} offen lds")
        a(f"buffer_load_dwordx4 v{vW1}, {sr(W)}, s{sBb} offen offset:1024 lds")
        a(f"s_lshl_b32 s{sA}, s{sKC}, 7")
        a(f"s_add_u32 m0, s{sXM}, {(c%4)*4096}")
        a(f"s_add_u32 s{sA}, s{sA}, s{sXB}")
        for q in range(4):
            a(f"buffer_load_dwordx4 v{vX[q]}, {sr(X)}, s{sA} offen offset:{1024*q} lds")
        adv_kc()
    for c in range(2): issue(c)
    ts("h_iss", grp=1)
    srd(a, WS, 14, 15, WS_BYTES)
    srd(a, DBG, 12, 13, 256)
    srd(a, WO, 8, 9, WO_BYTES)
    a("v_lshlrev_b32 v1, 4, v0")
    a("v_and_b32 v15, 3, v0")
    a(f"v_lshrrev_b32 v{vWq}, 2, v0")
    a(f"v_mul_u32_u24 v{vWq}, 2688, v{vWq}")
    a(f"v_lshl_add_u32 v{vWq}, v15, 4, v{vWq}")
    a(f"s_mul_i32 s3, s{sH}, 56")
    a("s_and_b32 s3, s3, 0xfffffff0")
    a(f"s_add_u32 s{sWQ}, s{sWQ}, s3")
    a(f"v_mov_b32 v{vZ}, 0")
    kv_poll_addr(a, vP, 16)
    mask_addr(a, vM)
    srd(a, WQS, 6, 7, W_BYTES)
    a(f"s_lshr_b32 s{sIT}, s{sWM}, 1")
    qn = [0]
    def issue_q():
        c = qn[0]; qn[0] += 1
        a(f"s_mul_i32 s{sBb}, s{sKQ}, 172032")
        a(f"s_add_u32 m0, s{sIT}, {L_WQ + c*4096}")
        a(f"s_add_u32 s{sBb}, s{sBb}, s{sWQ}")
        a(f"buffer_load_dwordx4 v{vWq}, {sr(WQS)}, s{sBb} offen lds")
        a(f"s_add_u32 s{sKQ}, s{sKQ}, 1")
        a(f"s_cmp_eq_u32 s{sKQ}, 7")
        a(f"s_cselect_b32 s{sKQ}, 0, s{sKQ}")
    order = [0]*6 + [1]*6
    for c in range(7):
        if c + 2 < 7:
            issue(c + 2); order += [c + 2] * 6
        for i in range(NQ[c]):
            issue_q(); order.append(-1)
        last = max(i for i, x in enumerate(order) if x == c)
        a(f"s_waitcnt vmcnt({len(order) - 1 - last})")
        ts(f"w{c}", grp=1)
        a("s_barrier")
    if NQ[7]:
        a("s_barrier")
        for i in range(NQ[7]): issue_q()
    if TS and TSG == 1:
        ts("h_b6", grp=1)
        a("s_waitcnt vmcnt(0)")
        ts("h_q", grp=1)
    a(f"s_cmp_lg_u32 s{sW}, 0")
    a("s_cbranch_scc1 L_pollgo_done")
    poll(a, "L_pollgo", vZ, 1, 0, DBG, 1, atomic=False)
    a("s_waitcnt vmcnt(0)")
    ts("h_wq", grp=1)
    a("s_barrier")
    def poll_mask():
        set_exec(a, "0xf", 0)
        flag_read(a, vP, WS)
        a("s_waitcnt vmcnt(0)")
        a("v_readlane_b32 s4, v15, 0")
        a("v_readlane_b32 s5, v15, 1")
        a("v_readlane_b32 s6, v15, 2")
        a("v_readlane_b32 s7, v15, 3")
        a("s_and_b32 s4, s4, s5")
        a("s_and_b32 s6, s6, s7")
        a("s_and_b32 s4, s4, s6")
        a("s_lshl_b32 s5, s4, 16")
        a("s_or_b32 s4, s4, s5")
        a(f"s_lshr_b32 s4, s4, s{sB}")
        a("s_and_b32 s4, s4, 0xffff")
        a("s_cmp_eq_u32 s4, 0xffff")
        a("s_cselect_b32 s4, 0x7ffff, s4")
        a("v_mov_b32 v15, s4")
        a(f"ds_write_b32 v{vM}, v15")
        set_exec(a, HI, HI)
    if PREPOLL:
        a(f"s_sleep {PREPOLL}")
        poll_mask()
    else:
        a(f"ds_write_b32 v{vM}, v{vZ}")
        a("s_mov_b32 s4, 0")
    a("s_waitcnt lgkmcnt(0)")
    a("s_barrier")
    a(f"s_mov_b32 s{sCNT}, 0x100000")
    a.lab("L_hpoll")
    a("s_cmp_eq_u32 s4, 0x7ffff")
    a("s_cbranch_scc1 L_hpoll_done")
    a(f"s_sub_u32 s{sCNT}, s{sCNT}, 1")
    a("s_cbranch_scc1 L_hpoll_giveup")
    poll_mask()
    if SLEEP: a(f"s_sleep {SLEEP}")
    a("s_branch L_hpoll")
    a.lab("L_hpoll_giveup")
    a("v_mov_b32 v15, 0x7ffff")
    a(f"ds_write_b32 v{vM}, v15")
    a.lab("L_hpoll_done")
    ts("h_all", grp=1)
    a("v_lshrrev_b32 v16, 4, v0")
    a(f"v_mul_u32_u24 v{vWo}, 896, v16")
    a("v_lshlrev_b32 v16, 2, v16")
    a("v_and_b32 v17, 15, v0")
    a("v_xor_b32 v16, v16, v17")
    a(f"v_lshl_add_u32 v{vWo}, v16, 4, v{vWo}")
    a(f"s_mul_i32 s{sWoS}, s{sCS4}, 224")
    a(f"s_and_b32 s{sWoS}, s{sWoS}, 0xffffffc0")
    a(f"s_mul_i32 s3, s{sW}, {28*3584}")
    a(f"s_add_u32 s{sWoS}, s{sWoS}, s3")
    a(f"s_mul_i32 s3, s{sW}, {28*1024}")
    a(f"s_add_u32 m0, s3, {L_WO}")
    a(f"s_mov_b32 s{sIT}, 28")
    a("s_sleep 16")
    a.lab("L_wo")
    a("s_sleep 3")
    a(f"buffer_load_dwordx4 v{vWo}, {sr(WO)}, s{sWoS} offen lds")
    a("s_add_u32 m0, m0, 1024")
    a(f"s_add_u32 s{sWoS}, s{sWoS}, 3584")
    a(f"s_sub_u32 s{sIT}, s{sIT}, 1")
    a(f"s_cmp_lg_u32 s{sIT}, 0")
    a("s_cbranch_scc1 L_wo")
    a(f"s_lshl_b32 s3, s{sT3}, {FSH}")
    a(f"s_add_u32 s3, s3, {FL_OFF + (256 << FSH)}")
    a(f"v_mov_b32 v{vP}, s3")
    a(f"s_lshl_b32 s4, s{sW}, 2")
    a("s_lshl_b32 s4, 15, s4")
    a(f"s_lshl_b32 s3, s{sT3}, 2")
    a(f"s_add_u32 s3, s3, s{sW}")
    a("s_lshl_b32 s3, s3, 13")
    a(f"s_add_u32 s3, s3, {O_OFF}")
    a(f"s_add_u32 s{sA}, s3, 4096")
    a(f"s_lshl_b32 s{sBb}, s{sW}, 13")
    a(f"s_add_u32 s{sBb}, s{sBb}, {L_CMB}")
    a(f"v_add_u32 v{vM}, s{sBb}, v1")
    a("s_waitcnt vmcnt(0) lgkmcnt(0)")
    ts("h_wo", grp=1)
    a("s_barrier")
    poll(a, "L_poll2", vP, 1, 0, WS, "s4")
    ts("h_poll2", grp=1)
    for f in range(8):
        a(f"buffer_load_dwordx4 {vr(32+4*f,4)}, v1, {sr(WS)}, {'s3' if f < 4 else 's%d' % sA} offen offset:{1024*(f%4)} sc1")
    a("s_barrier")
    for f in range(8):
        a(f"s_waitcnt vmcnt({7-f})")
        a(f"ds_write_b128 v{vM}, {vr(32+4*f,4)} offset:{1024*f}")
    a("s_waitcnt lgkmcnt(0)")
    ts("h_stage", grp=1)
    a("s_barrier")
    if TS and TSG == 1: ts.dump()
    a("s_endpgm")

def kernel(a):
    name = NAME + "_kernel"
    a.raw(f".globl {name}")
    a.raw(".p2align 8")
    a.raw(f".type {name},@function")
    a.lab(name)
    ts = Stamps(a)
    ts("start")
    a("s_cmp_ge_u32 s2, 256")
    a("s_cbranch_scc1 L_end")
    a("s_load_dwordx8 s[4:11], s[0:1], 0")
    a("s_load_dwordx4 s[12:15], s[0:1], 32")
    a("v_lshrrev_b32 v1, 6, v0")
    a("v_and_b32 v0, 63, v0")
    a(f"v_readfirstlane_b32 s{sA}, v1")
    decode_hb(a)
    a(f"s_and_b32 s{sW}, s{sA}, 3")
    a(f"s_lshl_b32 s{sT}, s{sB}, 2")
    a(f"s_and_b32 s{sT3}, s{sH}, 3")
    a(f"s_add_u32 s{sT3}, s{sT3}, s{sT}")
    a(f"s_add_u32 s{sT}, s{sT}, s{sW}")
    a(f"s_lshr_b32 s{sCS4}, s{sH}, 2")
    a(f"s_cmp_lt_u32 s{sA}, 4")
    a("s_cbranch_scc1 L_compute")
    helper(a, ts)
    a.lab("L_compute")
    t0, t1, t2, t3, t4, t5 = vT
    a("s_waitcnt lgkmcnt(0)")
    srd(a, WS, 14, 15, WS_BYTES)
    srd(a, DBG, 12, 13, 256)
    a("v_mov_b32 v250, 1")
    a("v_mov_b32 v251, 0")
    a(f"v_lshlrev_b32 v252, {FSH}, v0")
    a(f"s_lshl_b32 s{sLD}, s{sW}, 3")
    a(f"s_or_b32 s{sLD}, s{sLD}, s2")
    if LEAD == 0:
        a(f"s_cmp_ge_u32 s{sLD}, 8")
        a("s_cbranch_scc1 L_nocand")
        set_exec(a, 1, 0)
        a(f"buffer_atomic_add v250, v251, {sr(DBG)}, 0 offen offset:128 sc0 sc1")
        set_exec(a, HI, HI)
    else:
        a(f"s_cmp_lg_u32 s{sLD}, 0")
        a("s_cbranch_scc1 L_nocand")
        a(f"s_mov_b32 s3, {FL_OFF}")
        for i in range(5):
            a(f"buffer_store_dword v251, v252, {sr(WS)}, s3 offen sc1")
            a(f"s_add_u32 s3, s3, {64 << FSH}")
        if GOAT < 0:
            a("s_waitcnt vmcnt(0)")
            set_exec(a, 1, 0)
            a(f"buffer_store_dword v250, v251, {sr(DBG)}, 0 offen sc1")
            set_exec(a, HI, HI)
    a.lab("L_nocand")
    PB = opt("probe", 0)
    if PB:
        ts("pa"); ts("pb")
        a("s_and_b32 s3, s2, 0xf8" if PB in (1,) else "s_and_b32 s3, s2, 0x78")
        a(f"s_xor_b32 s{sA}, s{sW}, 1")
        a(f"s_or_b32 s3, s3, s{sA}")
        a("s_cmp_lg_u32 s3, 0")
        a("s_cbranch_scc1 L_noprobe")
        a("v_mov_b32 v248, 0")
        a("s_lshl_b32 s3, s2, 8")
        set_exec(a, 1, 0)
        a("s_waitcnt lgkmcnt(0)")
        ts("pa")
        if PB == 1: a(f"buffer_atomic_add v248, v251, {sr(DBG)}, 0 offen offset:64 sc0 sc1")
        if PB == 2:
            a(f"s_add_u32 s3, s3, {(4 << 20)}")
            a(f"buffer_store_dword v248, v251, {sr(WS)}, s3 offen sc1")
        if PB == 3:
            a(f"s_add_u32 s3, s3, {(4 << 20)}")
            a(f"buffer_load_dword v248, v251, {sr(WS)}, s3 offen sc1")
        if PB == 4:
            a(f"s_add_u32 s3, s3, {(4 << 20)}")
            a(f"buffer_atomic_add v248, v251, {sr(WS)}, s3 offen sc0 sc1")
        if PB == 5: a(f"buffer_load_dword v248, v251, {sr(DBG)}, 0 offen offset:64 sc1")
        a("s_waitcnt vmcnt(0)")
        ts("pb")
        set_exec(a, HI, HI)
        a.lab("L_noprobe")
    a("v_lshlrev_b32 v1, 4, v0")
    a("v_and_b32 v15, 3, v0")
    a("v_and_b32 v2, 31, v0")
    a(f"v_lshlrev_b32 v{vV0}, 4, v2")
    a("v_lshlrev_b32 v2, 7, v2")
    a("v_bfe_u32 v3, v0, 1, 3")
    a("v_lshrrev_b32 v4, 5, v0")
    a(f"v_mul_u32_u24 v{vV1}, {V_PLANE}, v4")
    a(f"v_add_u32 v{vV0}, v{vV0}, v{vV1}")
    a("v_xor_b32 v3, v3, v4")
    a("v_lshl_add_u32 v2, v3, 4, v2")
    a(f"s_lshl_b32 s3, s{sW}, 14")
    a(f"s_add_u32 s3, s3, {L_XR}")
    a("v_add_u32 v2, s3, v2")
    a("v_xor_b32 v3, 32, v2")
    a("v_xor_b32 v5, 96, v2")
    a(f"v_bfe_u32 v{t0}, v0, 2, 2")
    a(f"v_lshl_add_u32 v{t1}, v4, 3, v{t0}")
    a("v_xor_b32 v4, 64, v2")
    a(f"v_bfe_u32 v{t2}, v0, 4, 1")
    a(f"v_lshlrev_b32 v{t2}, 5, v{t2}")
    a(f"v_lshrrev_b32 v{t3}, 1, v15")
    a(f"v_and_b32 v{t4}, 1, v15")
    a(f"v_lshl_add_u32 v{t3}, v{t4}, 1, v{t3}")
    a(f"v_lshl_add_u32 v{t3}, v{t3}, 3, v{t2}")
    a(f"v_lshl_add_u32 v{t4}, v15, 3, v{t2}")
    a(f"v_lshl_add_u32 v{vQR}, v{t1}, 6, v{t3}")
    a(f"v_add_u32 v{vQR}, {L_WQ}, v{vQR}")
    a(f"s_cmp_lt_u32 s{sH}, 7")
    a("s_cselect_b64 vcc, -1, 0")
    a(f"v_cndmask_b32 v{t3}, v{t4}, v{t3}, vcc")
    a(f"v_lshrrev_b32 v{t0}, 1, v{t0}")
    a(f"v_lshl_add_u32 v{t3}, v{t0}, 6, v{t3}")
    a(f"v_lshl_add_u32 v{vWR[0]}, v{t1}, 7, v{t3}")
    a(f"v_xor_b32 v{vWR[1]}, 64, v{vWR[0]}")
    mask_addr(a, vMk)
    a(f"s_lshl_b32 s3, 1, s{sB}")
    a(f"v_mov_b32 v{vOne}, s3")
    a(f"s_lshl_b32 s3, s{sH}, 4")
    a(f"s_add_u32 s3, s3, s{sW}")
    a(f"v_lshl_add_u32 v{vP1}, v0, 2, s3")
    a(f"v_lshlrev_b32 v{vP1}, {FSH}, v{vP1}")
    a(f"v_add_u32 v{vP1}, {FL_OFF}, v{vP1}")
    a(f"s_lshl_b32 s{sA}, s{sT}, {FSH}")
    a(f"s_add_u32 s{sA}, s{sA}, {FL_OFF + (256 << FSH)}")
    a(f"v_mov_b32 v{vFl2}, s{sA}")
    a(f"v_lshrrev_b32 v{vFl}, 3, v0")
    a(f"v_mul_u32_u24 v{vFl}, {V_PLANE}, v{vFl}")
    a(f"v_and_b32 v{t0}, 7, v0")
    a(f"v_lshl_add_u32 v{vFl}, v{t0}, 4, v{vFl}")
    a(f"v_cmp_eq_u32 vcc, 0, v{t0}")
    a(f"v_mov_b32 v{t1}, 0x3f803f80")
    a("s_nop 0")
    for r in range(4):
        a(f"v_cndmask_b32 v{216+r}, 0, v{t1}, vcc")
    srd(a, OUT, 10, 11, OUT_BYTES)
    srd(a, KVS, 14, 15, KV_BYTES)
    def rd(c, i):
        a(f"ds_read_b128 {vr(XF+16*c+4*i,4)}, v{vXR[i]} offset:{(c%4)*4096}")
        for p in range(2):
            for r in range(2):
                a(f"ds_read_b64_tr_b16 {vr(WF+8*i+4*p+2*r,2)}, v{vWR[p]} offset:{L_WKV + (c*4+i)*2048 + r*512}")
    def phase1a(kind):
        def mm(c, i):
            x = vr(XF+16*c+4*i, 4)
            first = (c == 0 and i == 0)
            for p, acc in ((0, A0), (1, A1)):
                w = vr(WF+8*i+4*p, 4)
                if kind == "K": mfma(a, vr(acc,16), w, x, "0" if first else vr(acc,16))
                else: mfma(a, vr(acc,16), x, w, "0" if first else vr(acc,16))
        for c in range(7):
            a("s_barrier")
            if c == 0: ts("c0")
            rd(c, 0); rd(c, 1)
            if c == 0 and LEAD == 0:
                a("s_waitcnt vmcnt(0)")
                a(f"v_readfirstlane_b32 s{sLD}, v250")
                a(f"s_mov_b32 s3, {FL_OFF}")
                a(f"s_cmp_lg_u32 s{sLD}, 0")
                a(f"s_cbranch_scc1 L_noclear{kind}")
                for i in range(5):
                    a(f"buffer_store_dword v251, v252, {sr(WS)}, s3 offen sc1")
                    a(f"s_add_u32 s3, s3, {64 << FSH}")
                a.lab(f"L_noclear{kind}")
            if c == (4 if LEAD == 0 else GOAT):
                a(f"s_cmp_lg_u32 s{sLD}, 0")
                a(f"s_cbranch_scc1 L_nogo{kind}")
                a("v_mov_b32 v250, 1")
                a("s_waitcnt vmcnt(0)")
                set_exec(a, 1, 0)
                a(f"buffer_store_dword v250, v251, {sr(DBG)}, 0 offen sc1")
                set_exec(a, HI, HI)
                a.lab(f"L_nogo{kind}")
            if c > 0: mm(c-1, 2)
            rd(c, 2)
            if c > 0: mm(c-1, 3)
            a("s_waitcnt lgkmcnt(10)")
            rd(c, 3)
            mm(c, 0)
            a("s_waitcnt lgkmcnt(10)")
            mm(c, 1)
            a("s_waitcnt lgkmcnt(0)")
        mm(6, 2); mm(6, 3)
        ts("kv_mm")
        a(f"s_lshl_b32 s{sKV}, s{sT}, 16")
        if kind == "K":
            a(f"s_lshl_b32 s3, s{sH}, 12")
            a(f"s_add_u32 s3, s3, s{sKV}")
            a("s_nop 7")
        else:
            a(f"s_mul_i32 s3, s{sH}, {V_LINE}")
            a(f"s_add_u32 s3, s3, s{sKV}")
            a(f"s_add_u32 s3, s3, {V_BASE - 7*V_LINE}")
            a(f"s_add_u32 s{sA}, s3, {2*V_PLANE}")
            a(f"s_cmp_lt_u32 s{sH}, 14")
            a(f"s_cselect_b32 s{KVS+2}, {KV_BYTES}, 0")
            set_exec(a, HI, 0)
            a(f"buffer_store_dwordx4 v[216:219], v{vFl}, {sr(KVS)}, s3 offen offset:1024 sc1")
            set_exec(a, HI, HI)
        for p, acc in ((0, A0), (1, A1)):
            for f in range(2):
                for i in range(4):
                    a(f"v_cvt_pk_bf16_f32 v{PK+8*p+4*f+i}, v{acc+8*f+2*i}, v{acc+8*f+2*i+1}")
                d = vr(PK+8*p+4*f, 4)
                if kind == "K":
                    a(f"buffer_store_dwordx4 {d}, v1, {sr(KVS)}, s3 offen offset:{2048*p+1024*f} sc1")
                else:
                    a(f"buffer_store_dwordx4 {d}, v{vV0}, {sr(KVS)}, {'s3' if f == 0 else 's%d' % sA} offen offset:{512*p} sc1")
    a(f"s_cmp_lt_u32 s{sH}, 7")
    a("s_cbranch_scc0 L_vline")
    phase1a("K")
    a("s_branch L_q")
    a.lab("L_vline")
    phase1a("V")
    a.lab("L_q")
    ts("kv_st")
    if NQ[7]: a("s_barrier")
    a(f"s_mul_i32 s4, s{sH}, 56")
    a("s_lshr_b32 s5, s4, 4")
    a("s_lshl_b32 s5, s5, 9")
    a(f"v_add_u32 v{vKo}, s5, v1")
    a("s_lshr_b32 s4, s4, 1")
    a(f"v_and_b32 v{t0}, 31, v0")
    a(f"v_add_u32 v{t1}, s4, v{t0}")
    a(f"v_lshrrev_b32 v{t2}, 6, v{t1}")
    a(f"v_lshl_add_u32 v{t1}, v{t2}, 3, v{t1}")
    a("s_lshr_b32 s5, s4, 6")
    a("s_mul_i32 s5, s5, 72")
    a("s_add_u32 s5, s5, 36")
    a(f"v_add_u32 v{t2}, s5, v{t0}")
    a(f"v_cmp_gt_u32 vcc, 28, v{t0}")
    a(f"v_add_u32 v{vV1}, {V_BASE}, v{vV1}")
    a("s_nop 0")
    a(f"v_cndmask_b32 v{t1}, v{t2}, v{t1}, vcc")
    a(f"v_lshl_add_u32 v{vV0}, v{t1}, 4, v{vV1}")
    a(f"v_add_u32 v{vV1}, {2*V_PLANE}, v{vV0}")
    for r in range(220, 240):
        a(f"v_mov_b32 v{r}, 0")
    a(f"s_mov_b32 s{KVS+2}, {KV_BYTES}")
    a("s_barrier")
    ts("b7")
    def rdq(s):
        for r in range(2):
            a(f"ds_read_b64_tr_b16 {vr(WF+4*(s%8)+2*r,2)}, v{vQR} offset:{s*1024 + r*256}")
    for s in range(6): rdq(s)
    for s in range(28):
        if s + 6 < 28:
            rdq(s + 6)
            a("s_waitcnt lgkmcnt(12)")
        else:
            a(f"s_waitcnt lgkmcnt({2*(27-s)})")
        mfma(a, vr(AQ,16), vr(WF+4*(s%8),4), vr(XF+4*s,4), "0" if s == 0 else vr(AQ,16))
        if s + 1 == FLAGPOS:
            a("s_waitcnt vmcnt(0)")
            set_exec(a, "0xf", 0)
            a(f"buffer_atomic_or v{vOne}, v{vP1}, {sr(WS)}, 0 offen sc1")
            set_exec(a, HI, HI)
            ts("kv_flag")
    if not opt("probe", 0): ts("q_mm")
    a(f"s_mov_b32 s3, {f32bits(QSCALE):#x}")
    a(f"s_lshl_b32 s{sA}, s{sW}, 11")
    a(f"s_add_u32 s{sA}, s{sA}, {L_CMB}")
    a(f"v_add_u32 v{t0}, s{sA}, v1")
    for r in range(176, 184):
        a(f"v_mov_b32 v{r}, 0")
    for r in range(16):
        a(f"v_mul_f32 v{AQ+r}, s3, v{AQ+r}")
    Q3 = Q + 24
    for i in range(8):
        a(f"v_cvt_pk_bf16_f32 v{Q3+i}, v{AQ+2*i}, v{AQ+2*i+1}")
    a(f"s_bitcmp1_b32 s{sH}, 0")
    a("s_cselect_b32 exec_lo, -1, 0")
    a("s_mov_b32 exec_hi, 0")
    a(f"v_mov_b32 v{Q3}, 0")
    a(f"v_mov_b32 v{Q3+1}, 0")
    a("s_cselect_b32 exec_hi, 0, -1")
    a("s_mov_b32 exec_lo, 0")
    a(f"v_mov_b32 v{Q3+6}, 0")
    a(f"v_mov_b32 v{Q3+7}, 0")
    set_exec(a, HI, HI)
    a(f"ds_write_b128 v{t0}, {vr(Q3,4)}")
    a(f"ds_write_b128 v{t0}, {vr(Q3+4,4)} offset:1024")
    for i in range(3):
        a(f"s_add_u32 s{sA}, s{sW}, {1+i}")
        a(f"s_and_b32 s{sA}, s{sA}, 3")
        a(f"s_lshl_b32 s{sA}, s{sA}, 11")
        a(f"s_add_u32 s{sA}, s{sA}, {L_CMB}")
        a(f"v_add_u32 v{vT[1+i]}, s{sA}, v1")
    for r in range(4):
        a(f"v_mov_b32 v{KV+48+12+r}, 0")
    a(f"s_mov_b32 s{sRDY}, 0")
    a(f"s_mov_b32 s{sTODO}, 0x7ffff")
    a("s_waitcnt lgkmcnt(0)")
    a("s_barrier")
    for i in range(3):
        a(f"ds_read_b128 {vr(Q+8*i,4)}, v{vT[1+i]}")
        a(f"ds_read_b128 {vr(Q+8*i+4,4)}, v{vT[1+i]} offset:1024")
    ts("q_done")
    def ldk(slot):
        for f in range(2):
            a(f"buffer_load_dwordx4 {vr(KV+16*slot+4*f,4)}, v{vKo}, {sr(KVS)}, s{sKV} offen offset:{1024*f} sc1")
    def ldv(slot):
        a(f"buffer_load_dwordx4 {vr(KV+16*slot+8,4)}, v{vV0}, {sr(KVS)}, s{sKV} offen sc1")
        a(f"buffer_load_dwordx4 {vr(KV+16*slot+12,4)}, v{vV1}, {sr(KVS)}, s{sKV} offen sc1")
    npick = [0]
    def pick_ops():
        n = npick[0]; npick[0] += 1
        def p0(): a(f"s_and_b32 s{sAV}, s{sRDY}, s{sTODO}")
        def p1():
            a(f"s_cbranch_scc0 L_slow{n}")
            a.lab(f"L_back{n}")
        def p2(): a(f"s_ff1_i32_b32 s{sAV}, s{sAV}")
        def p3(): a(f"s_bitset0_b32 s{sTODO}, s{sAV}")
        def p4(): a(f"s_lshl2_add_u32 s{sBb}, s{sAV}, s{sT}")
        def p5(): a(f"s_and_b32 s{sBb}, s{sBb}, 63")
        def p6(): a(f"s_and_b32 s{sAV}, s{sAV}, 16")
        def p7(): a(f"s_lshl2_add_u32 s{sBb}, s{sAV}, s{sBb}")
        def p8(): a(f"s_lshl_b32 s{sKV}, s{sBb}, 16")
        return [p0, p1, p2, p3, p4, p5, p6, p7, p8]
    for sl in range(3):
        for f in pick_ops(): f()
        ldk(sl); ldv(sl)
        if sl == 0: ts("pick0")
    for f in pick_ops(): f()
    for r in range(184, 220):
        a(f"v_mov_b32 v{r}, 0")
    for r in range(4):
        a(f"v_mov_b32 v{P+4+r}, 0")
    a(f"s_mov_b32 s{sIT}, 3")
    vC = vT[1:4]; vCR = vT[4]
    a("s_waitcnt lgkmcnt(0)")
    for i in range(3):
        a(f"s_add_u32 s3, s{sW}, {1+i}")
        a("s_and_b32 s3, s3, 3")
        a("s_mul_i32 s3, s3, 12288")
        a(f"s_add_u32 s3, s3, {L_CMB + 4096*i}")
        a(f"v_add_u32 v{vC[i]}, s3, v1")
    a(f"s_mul_i32 s3, s{sW}, 12288")
    a(f"s_add_u32 s3, s3, {L_CMB}")
    a(f"v_add_u32 v{vCR}, s3, v1")
    a("s_waitcnt vmcnt(8)")
    ts("kv0")
    def mS(part, t):
        slot = (t // 4) % 4; qt = t % 4
        d = vr(S[t % 2], 16)
        mfma(a, d, vr(KV+16*slot+4*part,4), vr(Q+8*qt+4*part,4), "0" if part == 0 else d)
    def mPV(part, t):
        slot = (t // 4) % 4; qt = t % 4
        d = vr(O + 16*qt, 16)
        mfma(a, d, vr(KV+16*slot+8+4*part,4), vr(P+4*part,4), d)
    def EC(t, g):
        s = S[t % 2] + 4*g
        for r in range(4):
            a(f"v_exp_f32 v{s+r}, v{s+r}")
        a(f"v_cvt_pk_bf16_f32 v{P+2*g}, v{s}, v{s+1}")
        a(f"v_cvt_pk_bf16_f32 v{P+2*g+1}, v{s+2}, v{s+3}")
    mS(0, 0); mS(1, 0)
    ts("att0", cyc=True)
    a("s_nop 7")
    a("s_nop 3")
    a.raw(".p2align 6")
    a.lab("L_loop")
    def tile(j, last=False):
        fs = [None] * 16
        if not last:
            fs[11] = lambda: a("s_waitcnt vmcnt(8)")
            po = pick_ops()
            for k, f in enumerate(po): fs[2 + k] = f
            if j == 2:
                fs[14] = lambda: a(f"s_sub_u32 s{sIT}, s{sIT}, 1")
        else:
            def wr(i, g):
                return lambda: a(f"ds_write_b128 v{vC[i]}, {vr(O+16*i+4*g,4)} offset:{1024*g}")
            for i in range(3):
                fs[4*(i+1) + 3] = wr(i, 0)
                if i < 2:
                    for g in range(1, 4): fs[4*(i+2) + g - 1] = wr(i, g)
        for st in range(4):
            t = 4*j + st
            f = fs[4*st:4*st+4]
            if not (last and st == 3): mS(0, t+1)
            if st == 0 and not last: ldk((j + 3) % 4)
            if f[0]: f[0]()
            EC(t, 0)
            mPV(1, (t - 1) % 16)
            if st == 0 and not last: ldv((j + 3) % 4)
            if f[1]: f[1]()
            EC(t, 1)
            if not (last and st == 3): mS(1, t+1)
            if f[2]: f[2]()
            EC(t, 2)
            mPV(0, t)
            if f[3]: f[3]()
            EC(t, 3)
    for j in range(3): tile(j)
    a("s_cbranch_scc1 L_last")
    tile(3)
    a("s_branch L_loop")
    a.lab("L_last")
    tile(3, last=True)
    a(f"ds_write_b128 v{vC[2]}, {vr(O+32+4,4)} offset:1024")
    a(f"ds_write_b128 v{vC[2]}, {vr(O+32+8,4)} offset:2048")
    mPV(1, 15)
    a(f"ds_write_b128 v{vC[2]}, {vr(O+32+12,4)} offset:3072")
    ts("att1", cyc=True)
    ts("att1")
    a(f"s_mov_b32 s4, {f32bits(2.0**62):#x}")
    a(f"s_mov_b32 s5, {f32bits(2.0**-62):#x}")
    a("s_waitcnt vmcnt(0) lgkmcnt(0)")
    a("s_barrier")
    R = O
    F = O + 48
    for i in range(3):
        for g in range(4):
            a(f"ds_read_b128 {vr(R+16*i+4*g,4)}, v{vCR} offset:{4096*i+1024*g}")
    a(f"s_lshl_b32 s3, s{sT}, 4")
    a(f"s_add_u32 s3, s3, s{sH}")
    a("s_lshl_b32 s3, s3, 11")
    a(f"s_add_u32 s3, s3, {O_OFF}")
    for i in range(3):
        a(f"s_waitcnt lgkmcnt({8-4*i})")
        for r in range(16):
            a(f"v_add_f32 v{F+r}, v{F+r}, v{R+16*i+r}")
    a(f"v_cmp_nge_f32 s[6:7], s4, v{F+12}")
    a(f"v_cmp_nle_f32 vcc, s5, v{F+12}")
    a("s_or_b64 s[6:7], s[6:7], vcc")
    a("s_cmp_lg_u32 s7, 0")
    a("s_cbranch_scc1 L_fallback")
    a.lab("L_norm")
    a(f"v_mov_b32 v{t0}, v{F+12}")
    a(f"v_mov_b32 v{t1}, v{F+12}")
    a("s_nop 1")
    a(f"v_permlane32_swap_b32 v{t0}, v{t1}")
    a("s_nop 1")
    a(f"v_rcp_f32 v{t1}, v{t1}")
    set_exec(a, 0, HI)
    a(f"v_mov_b32 v{F+12}, 0")
    set_exec(a, HI, HI)
    for r in range(16):
        a(f"v_mul_f32 v{F+r}, v{F+r}, v{t1}")
    PO = 240
    for i in range(8):
        a(f"v_cvt_pk_bf16_f32 v{PO+i}, v{F+2*i}, v{F+2*i+1}")
    a(f"buffer_store_dwordx4 {vr(PO,4)}, v1, {sr(WS)}, s3 offen sc1")
    a(f"buffer_store_dwordx4 {vr(PO+4,4)}, v1, {sr(WS)}, s3 offen offset:1024 sc1")
    ts("o_st")
    WOF, OF, ACC, D = 40, 168, 24, 232
    a(f"s_and_b32 s3, s{sCS4}, 1")
    a("s_lshl_b32 s3, s3, 5")
    a(f"s_mul_i32 s{sA}, s{sW}, 56")
    a(f"s_add_u32 s3, s3, s{sA}")
    a(f"v_bfe_u32 v{t0}, v0, 4, 1")
    a(f"v_lshlrev_b32 v{t0}, 5, v{t0}")
    a(f"v_and_b32 v{t1}, 3, v0")
    a(f"v_lshl_add_u32 v{t0}, v{t1}, 3, v{t0}")
    a(f"v_add_u32 v{t0}, s3, v{t0}")
    a(f"v_and_b32 v{t0}, 255, v{t0}")
    a(f"v_bfe_u32 v{t1}, v0, 2, 2")
    a(f"v_lshlrev_b32 v{t2}, 6, v{t1}")
    a(f"v_xor_b32 v{t0}, v{t0}, v{t2}")
    a(f"v_lshl_add_u32 v{t2}, v{t1}, 8, v{t0}")
    a(f"v_lshrrev_b32 v{t1}, 5, v0")
    a(f"v_lshl_add_u32 v{t0}, v{t1}, 10, v{t2}")
    a(f"v_add_u32 v{t1}, 0x10000, v{t0}")
    a(f"v_add_u32 v{t2}, 0x10000, v{t2}")
    def rdwo(hh):
        for u in range(2):
            for r in range(2):
                off = L_WO + (28*hh + 16*u + 8*r) * 256
                base = t0
                if off >= 0x10000:
                    off -= 0x10000; base = t1
                if hh == 15 and u == 1 and r == 1:
                    base = t2
                a(f"ds_read_b64_tr_b16 {vr(WOF+8*hh+4*u+2*r,2)}, v{base} offset:{off}")
    a(f"s_lshl_b32 s3, 1, s{sH}")
    a(f"v_mov_b32 v{vOne}, s3")
    for hh in range(6): rdwo(hh)
    a("s_waitcnt vmcnt(0)")
    set_exec(a, 1, 0)
    a(f"buffer_atomic_or v{vOne}, v{vFl2}, {sr(WS)}, 0 offen sc1")
    set_exec(a, HI, HI)
    ts("o_flag")
    for hh in range(6, 16): rdwo(hh)
    a(f"v_add_u32 v{t3}, {L_CMB}, v1")
    a(f"v_and_b32 v{t4}, 31, v0")
    a(f"v_mul_u32_u24 v{t4}, 896, v{t4}")
    a(f"v_lshrrev_b32 v{t5}, 5, v0")
    a(f"v_lshl_add_u32 v{t4}, v{t5}, 4, v{t4}")
    a(f"s_mul_i32 s{sKV}, s{sT3}, 28672")
    a(f"s_lshl_b32 s{sBb}, s{sCS4}, 2")
    a(f"s_add_u32 s{sBb}, s{sBb}, s{sW}")
    a(f"s_mul_i32 s{sBb}, s{sBb}, 56")
    a(f"s_add_u32 s{sKV}, s{sKV}, s{sBb}")
    a("s_barrier")
    a("s_barrier")
    ts("o_ld")
    NR = 16
    for f in range(12):
        a(f"ds_read_b128 {vr(OF+4*(f%NR),4)}, v{t3} offset:{1024*f}")
    for f in range(32):
        if f + 12 < 32:
            a(f"ds_read_b128 {vr(OF+4*((f+12)%NR),4)}, v{t3} offset:{1024*(f+12)}")
            a("s_waitcnt lgkmcnt(12)")
        else:
            a(f"s_waitcnt lgkmcnt({31-f})")
        mfma(a, vr(ACC,16), vr(WOF+4*f,4), vr(OF+4*(f%NR),4), "0" if f == 0 else vr(ACC,16))
    a("s_nop 7")
    a("s_nop 3")
    for i in range(8):
        a(f"v_cvt_pk_bf16_f32 v{D+i}, v{ACC+2*i}, v{ACC+2*i+1}")
    a(f"v_permlane32_swap_b32 v{D}, v{D+2}")
    a(f"v_permlane32_swap_b32 v{D+1}, v{D+3}")
    a(f"v_permlane32_swap_b32 v{D+4}, v{D+6}")
    a(f"v_permlane32_swap_b32 v{D+5}, v{D+7}")
    a(f"buffer_store_dwordx4 {vr(D,4)}, v{t4}, {sr(OUT)}, s{sKV} offen")
    set_exec(a, HI, 0)
    a(f"buffer_store_dwordx4 {vr(D+4,4)}, v{t4}, {sr(OUT)}, s{sKV} offen offset:32")
    set_exec(a, 0, HI)
    a(f"buffer_store_dwordx2 {vr(D+4,2)}, v{t4}, {sr(OUT)}, s{sKV} offen offset:32")
    if not opt("probe", 0): ts("out_st")
    if TS:
        a("s_waitcnt vmcnt(0)")
        ts("end")
    if TS and TSG == 0: ts.dump()
    a.lab("L_end")
    a("s_endpgm")
    for n in range(npick[0]):
        a.lab(f"L_slow{n}")
        a(f"ds_read_b32 v15, v{vMk}")
        a("s_waitcnt lgkmcnt(0)")
        a(f"v_readfirstlane_b32 s{sRDY}, v15")
        a("s_nop 0")
        a(f"s_and_b32 s{sAV}, s{sRDY}, s{sTODO}")
        a(f"s_cbranch_scc0 L_slow{n}")
        a(f"s_branch L_back{n}")
    a.lab("L_fallback")
    a(f"s_mov_b32 s{sA}, s3")
    kv_poll_addr(a, vP1, t0)
    a(f"s_lshl_b32 s6, s{sW}, {FSH}")
    a(f"v_subrev_u32 v{vP1}, s6, v{vP1}")
    for w in range(4):
        poll(a, f"L_pollfb{w}", vP1, "0xf", 0, WS, "0xffff", off=w << FSH)
    a(f"s_mov_b32 s3, s{sA}")
    a(f"v_mov_b32 v{t0}, 0xff800000")
    a(f"s_mov_b32 s{sKV}, 0")
    SS = S0
    a.lab("L_fb1")
    ldk(0)
    a(f"s_add_u32 s{sKV}, s{sKV}, 0x10000")
    a("s_waitcnt vmcnt(0)")
    mfma(a, vr(SS,16), vr(KV,4), vr(Q3,4), "0")
    mfma(a, vr(SS,16), vr(KV+4,4), vr(Q3+4,4), vr(SS,16))
    a("s_nop 15")
    for r in range(0, 16, 2):
        a(f"v_max3_f32 v{t0}, v{t0}, v{SS+r}, v{SS+r+1}")
    a(f"s_cmp_lt_u32 s{sKV}, {KV_BYTES}")
    a("s_cbranch_scc1 L_fb1")
    a(f"v_mov_b32 v{t1}, v{t0}")
    a("s_nop 1")
    a(f"v_permlane32_swap_b32 v{t0}, v{t1}")
    a("s_nop 1")
    a(f"v_max_f32 v{t0}, v{t0}, v{t1}")
    for r in range(16):
        a(f"v_mov_b32 v{F+r}, 0")
    a(f"s_mov_b32 s{sKV}, 0")
    a.lab("L_fb2")
    ldk(0); ldv(0)
    a(f"s_add_u32 s{sKV}, s{sKV}, 0x10000")
    a("s_waitcnt vmcnt(0)")
    mfma(a, vr(SS,16), vr(KV,4), vr(Q3,4), "0")
    mfma(a, vr(SS,16), vr(KV+4,4), vr(Q3+4,4), vr(SS,16))
    a("s_nop 15")
    for r in range(16):
        a(f"v_sub_f32 v{SS+r}, v{SS+r}, v{t0}")
    for r in range(16):
        a(f"v_exp_f32 v{SS+r}, v{SS+r}")
    a("s_nop 0")
    for i in range(8):
        a(f"v_cvt_pk_bf16_f32 v{P+i}, v{SS+2*i}, v{SS+2*i+1}")
    a("s_nop 1")
    mfma(a, vr(F,16), vr(KV+8,4), vr(P,4), vr(F,16))
    mfma(a, vr(F,16), vr(KV+12,4), vr(P+4,4), vr(F,16))
    a(f"s_cmp_lt_u32 s{sKV}, {KV_BYTES}")
    a("s_cbranch_scc1 L_fb2")
    a("s_nop 15")
    a("s_branch L_norm")
    if TS:
        open("stamps.txt", "w").write(",".join(ts.names))
    return name

def main():
    a = A()
    name = kernel(a)
    head = open(f"cdna_kernels/{NAME}.s.ref").read().split("; Override")[0]
    out = head
    out += f"; @launch grid=(256,1,1) block=(512,1,1) lds={LDS_BYTES}\n"
    out += '.amdgcn_target "amdgcn-amd-amdhsa--gfx950"\n.text\n'
    out += a.text()
    out += f""".section .rodata,"a"
.p2align 6
.amdhsa_kernel {name}
  .amdhsa_next_free_vgpr 256
  .amdhsa_next_free_sgpr 102
  .amdhsa_accum_offset 256
  .amdhsa_group_segment_fixed_size 0
  .amdhsa_kernarg_size 48
  .amdhsa_user_sgpr_count 2
  .amdhsa_user_sgpr_kernarg_segment_ptr 1
  .amdhsa_system_sgpr_workgroup_id_x 1
.end_amdhsa_kernel
"""
    o = [x for x in sys.argv[1:] if not x.startswith("--")]
    path = o[0] if o else f"cdna_kernels/{NAME}.s"
    open(path, "w").write(out)
main()
```

```python
import sys, struct, math

NAME = "standalone__softmax_full_mha__prompt"
FL_OFF = 5 << 20
O_OFF = 6 << 20
TS_OFF = 8 << 20
WS_BYTES = 12 << 20
X_BYTES = 2048 * 448 * 2
W_BYTES = 448 * 1344 * 2
WO_BYTES = 448 * 448 * 2
OUT_BYTES = 2048 * 448 * 2
KV_BYTES = 4 << 20
V_BASE = 28672
V_LINE = 1152
V_PLANE = 7 * V_LINE
QSCALE = 28 ** -0.5 * math.log2(math.e)

def opt(name, default):
    for arg in sys.argv:
        if arg.startswith(f"--{name}="):
            return int(arg.split("=")[1])
    return default
TS = "--ts" in sys.argv
TSG = opt("tsg", 0)
MAP = opt("maph", 3)
FSH = opt("fsh", 8)
FLAGPOS = opt("flagpos", 20)
NQ = [int(c) for c in "%08d" % opt("nq", 700)]
assert sum(NQ) == 7
SLEEP = opt("sleep", 1)
LA = opt("la", 2)
WSB = opt("wsb", 0) << 20
LEAD = opt("lead", 1)
GOSL = opt("gosl", 8)
GOAT = opt("goat", 0)
ROT = opt("rot", 1)
PREPOLL = opt("prepoll", 1)

def f32bits(x):
    return struct.unpack("<I", struct.pack("<f", x))[0]

class A:
    def __init__(self):
        self.l = []
    def __call__(self, s):
        for line in s.strip("\n").split("\n"):
            self.l.append("    " + line.strip())
    def lab(self, n):
        self.l.append(n + ":")
    def raw(self, s):
        self.l.append(s)
    def text(self):
        return "\n".join(self.l) + "\n"

def vr(b, n, k="v"):
    return f"{k}[{b}:{b+n-1}]"
def sr(b):
    return f"s[{b}:{b+3}]"

def srd(a, d, lo, hi, nbytes):
    a(f"s_mov_b32 s{d}, s{lo}")
    a(f"s_and_b32 s{d+1}, s{hi}, 0xffff")
    a(f"s_mov_b32 s{d+2}, {nbytes}")
    a(f"s_mov_b32 s{d+3}, 0x20000")

HI = "0xffffffff"
def set_exec(a, lo, hi):
    if lo == HI and hi == HI:
        a("s_mov_b64 exec, -1")
    elif hi == 0 and lo in (1, "0xf"):
        a(f"s_mov_b64 exec, {int(str(lo), 0)}")
    else:
        a(f"s_mov_b32 exec_lo, {lo}")
        a(f"s_mov_b32 exec_hi, {hi}")

class Stamps:
    def __init__(self, a):
        self.a = a; self.idx = {}; self.names = []
    def __call__(self, name, cyc=False, grp=0):
        if not TS: return
        if name != "start" and grp != TSG: return
        nm = name + ("(cyc)" if cyc else "")
        if nm not in self.idx:
            self.idx[nm] = len(self.names); self.names.append(nm)
        b = 66 + 2 * self.idx[nm]
        assert b + 1 < 102
        self.a(f"s_memtime s[{b}:{b+1}]" if cyc else f"s_memrealtime s[{b}:{b+1}]")
    def dump(self):
        if not TS: return
        a = self.a
        sp = [x for x in sys.argv if x.startswith("--spin=")]
        if sp:
            hi, lo, m = sp[0][7:].split(",")
            a("s_waitcnt lgkmcnt(0)")
            if lo == "G":
                a("v_mov_b32 v2, 0")
                a(f"buffer_load_dword v4, v2, {sr(DBG)}, 0 offen offset:192 sc1")
                a("s_waitcnt vmcnt(0)")
                a("v_readfirstlane_b32 s4, v4")
                a("s_nop 0")
                a("s_not_b32 s4, s4")
                a(f"s_sub_u32 s3, s{66+2*self.idx[hi]}, s4")
            else:
                a(f"s_sub_u32 s3, s{66+2*self.idx[hi]}, s{66+2*self.idx[lo]}")
            only = opt("only", -1)
            if only >= 0:
                a("s_and_b32 s4, s2, 7")
                a(f"s_cmp_eq_u32 s4, {only}")
                a("s_cselect_b32 s3, s3, 0")
            a(f"s_mul_i32 s3, s3, {m}")
            a(f"s_add_u32 s3, s3, s{66+2*self.idx['end' if TSG == 0 else 'h_stage']}")
            a.lab("L_spin")
            a("s_memrealtime s[4:5]")
            a("s_waitcnt lgkmcnt(0)")
            a("s_sub_u32 s4, s4, s3")
            a("s_cmp_lt_i32 s4, 0")
            a("s_cbranch_scc1 L_spin")
            return
        if "--dbg" in sys.argv:
            sel = ["start", "start", "c0", "kv_mm", "b7", "q_done", "kv0", "att1", "o_flag", "o_ld", "end"]
            a("s_waitcnt lgkmcnt(0)")
            a(f"s_cmp_lg_u32 s{sW}, 0")
            a("s_cbranch_scc1 L_end")
            a("s_mov_b64 exec, 1")
            a("v_mov_b32 v2, 0")
            for i, nm in enumerate(sel):
                a(f"v_mov_b32 v4, s{66+2*self.idx[nm]}")
                if i == 0: a("v_not_b32 v4, v4")
                a(f"buffer_atomic_umax v4, v2, {sr(DBG)}, 0 offen offset:{8+4*i} sc1")
                a("s_nop 1")
            for i, nm in enumerate(["end", "kv0", "c0"]):
                a(f"s_sub_u32 s3, s{66+2*self.idx[nm]}, s66")
                a("v_mov_b32 v4, s3")
                a(f"buffer_atomic_umax v4, v2, {sr(DBG)}, 0 offen offset:{52+4*i} sc1")
                a("s_nop 1")
            a("s_waitcnt vmcnt(0)")
            return
        a("s_waitcnt lgkmcnt(0)")
        a(f"s_lshl_b32 s3, s2, 2")
        a(f"s_add_u32 s3, s3, s{sW}")
        a(f"s_lshl_b32 s3, s3, 7")
        a(f"s_add_u32 s3, s3, {TS_OFF}")
        a("s_mov_b64 exec, 1")
        a("v_mov_b32 v2, 0")
        for i in range(18):
            a(f"v_mov_b32 v4, s{66+2*i}")
            a(f"buffer_store_dword v4, v2, {sr(WS)}, s3 offen offset:{4*i}")
            a("s_nop 1")
        a("s_waitcnt vmcnt(0)")

X, W, WO, OUT, DBG, WS, KVS = 16, 20, 24, 28, 32, 36, 40
sH, sB, sW, sT = 44, 45, 46, 47
sKC, sXB, sWB, sXM, sWM = 48, 49, 50, 51, 52
sRDY, sTODO, sAV, sRET = 48, 49, 50, 64
sA, sBb = 53, 54
sKV, sIT, sWQ, sWoS, sCNT = 55, 56, 57, 58, 59
sKQ, sLD = 60, 61
WQS = KVS
sT3, sCS4 = 62, 63
L_WKV, L_WQ, L_XR = 0, 57344, 86016
L_WO, L_CMB = 0, 114688
LDS_BYTES = 163840
vXR = [2, 3, 4, 5]
vWR = [6, 7]
vQR, vOne, vFl, vFl2, vP1, vMk = 8, 9, 10, 11, 12, 13
vKo, vV0, vV1 = 14, 16, 17
vT = [18, 19, 20, 21, 22, 23]
A0, A1 = 24, 40
AQ = A0
XF = 56
WF = 168
PK = 200
Q, S0, P, KV, O = 40, 72, 104, 112, 176
S = [S0, S0 + 16]

def decode_hb(a):
    nhg = 16 >> MAP
    lg = int(math.log2(nhg))
    a(f"s_and_b32 s{sH}, s2, {nhg-1}")
    a(f"s_lshl_b32 s{sH}, s{sH}, {MAP}")
    a(f"s_lshr_b32 s3, s2, 3")
    a(f"s_and_b32 s{sB}, s3, {(1<<MAP)-1}")
    a(f"s_add_u32 s{sH}, s{sH}, s{sB}")
    a(f"s_lshr_b32 s3, s3, {MAP}")
    a(f"s_and_b32 s{sB}, s2, 7")
    a(f"s_lshr_b32 s{sB}, s{sB}, {lg}")
    a(f"s_mul_i32 s{sB}, s{sB}, {32>>MAP}")
    a(f"s_add_u32 s{sB}, s{sB}, s3")

def mfma(a, d, x, y, c):
    a(f"v_mfma_f32_32x32x16_bf16 {d}, {x}, {y}, {c}")

def flag_read(a, vaddr, srdn, off=0):
    a("v_mov_b32 v15, 0")
    a(f"buffer_atomic_or v15, v{vaddr}, {sr(srdn)}, 0 offen offset:{off} sc0 sc1")

def poll(a, label, vaddr, lo, hi, srdn, smask, off=0, atomic=True):
    a(f"s_mov_b32 s{sCNT}, 0x100000")
    set_exec(a, lo, hi)
    a(f"s_branch {label}_in")
    a.lab(label)
    if SLEEP: a(f"s_sleep {SLEEP if atomic else GOSL}")
    a.lab(label + "_in")
    if atomic: flag_read(a, vaddr, srdn, off)
    else: a(f"buffer_load_dword v15, v{vaddr}, {sr(srdn)}, 0 offen offset:{off} sc1")
    a(f"s_sub_u32 s{sCNT}, s{sCNT}, 1")
    a(f"s_cbranch_scc1 {label}_done")
    a("s_waitcnt vmcnt(0)")
    a(f"v_and_b32 v15, {smask}, v15")
    a(f"v_cmp_ne_u32 vcc, {smask}, v15")
    a(f"s_cbranch_vccnz {label}")
    a.lab(label + "_done")
    set_exec(a, HI, HI)

def kv_poll_addr(a, vd, t0):
    a(f"s_mul_i32 s4, s{sH}, 56")
    a("s_and_b32 s5, s4, 0xfffffff0")
    a(f"v_mov_b32 v{t0}, s5")
    a("s_add_u32 s5, s5, 62")
    a(f"v_writelane_b32 v{t0}, s5, 1")
    a("s_add_u32 s5, s4, 896")
    a(f"v_writelane_b32 v{t0}, s5, 2")
    a("s_add_u32 s5, s4, 950")
    a(f"v_writelane_b32 v{t0}, s5, 3")
    a(f"v_lshrrev_b32 v{t0}, 7, v{t0}")
    a(f"v_lshlrev_b32 v{t0}, {FSH+4}, v{t0}")
    a(f"s_and_b32 s3, s{sH}, 3")
    a(f"s_lshl2_add_u32 s3, s3, s{sW}")
    a(f"s_lshl_b32 s3, s3, {FSH}")
    a(f"s_add_u32 s3, s3, {FL_OFF}")
    a(f"v_add_u32 v{vd}, s3, v{t0}")

def mask_addr(a, vd):
    a(f"s_add_u32 s3, s{sW}, 3")
    a("s_and_b32 s3, s3, 3")
    a("s_mul_i32 s3, s3, 12288")
    a(f"s_add_u32 s3, s3, {L_CMB + 8192}")
    a(f"v_mov_b32 v{vd}, s3")

def helper(a, ts):
    vX = [2, 3, 4, 5]
    vW0, vW1, vWq = 6, 7, 8
    vZ, vOn, vP, vM, vWo, vF = 9, 10, 11, 12, 13, 14
    a("v_lshrrev_b32 v7, 3, v0")
    a("v_mul_u32_u24 v2, 896, v7")
    a("v_and_b32 v6, 7, v0")
    a("v_lshrrev_b32 v4, 4, v0")
    a("v_xor_b32 v3, v6, v4")
    a("v_lshl_add_u32 v2, v3, 4, v2")
    a("v_xor_b32 v3, 64, v2")
    a("v_add_u32 v3, 6144, v3")
    a("v_and_b32 v4, 1, v4")
    a("v_lshlrev_b32 v4, 2, v4")
    a("v_xor_b32 v6, v6, v4")
    a("v_mul_u32_u24 v7, 2688, v7")
    a(f"v_lshl_add_u32 v{vW0}, v6, 4, v7")
    a(f"v_add_u32 v{vW1}, {8*2688-1024}, v{vW0}")
    a("v_add_u32 v4, 12288, v2")
    a("v_add_u32 v5, 12288, v3")
    a(f"s_mul_i32 s{sXB}, s{sT}, 28672")
    a(f"s_mul_i32 s{sWQ}, s{sW}, 43008")
    a(f"s_lshl_b32 s{sWB}, s{sH}, 7")
    a(f"s_add_u32 s{sWB}, s{sWB}, s{sWQ}")
    a(f"s_add_u32 s{sWB}, s{sWB}, 896")
    a(f"s_lshl_b32 s{sXM}, s{sW}, 14")
    a(f"s_add_u32 s{sXM}, s{sXM}, {L_XR}")
    a(f"s_lshl_b32 s{sWM}, s{sW}, 11")
    a(f"s_lshl_b32 s3, s{sB}, 1")
    a(f"s_add_u32 s3, s3, s{sH}")
    a(f"s_mul_i32 s{sA}, s3, 37")
    a(f"s_lshr_b32 s{sA}, s{sA}, 8")
    a(f"s_mul_i32 s{sA}, s{sA}, 7")
    a(f"s_sub_u32 s{sKC}, s3, s{sA}")
    a(f"s_mov_b32 s{sKQ}, s{sKC}")
    a(f"s_mov_b32 s{X+2}, {X_BYTES}")
    a(f"s_mov_b32 s{X+3}, 0x20000")
    a(f"s_cmp_lt_u32 s{sH}, 14")
    a(f"s_cselect_b32 s{W+2}, {W_BYTES}, 0")
    a(f"s_mov_b32 s{W+3}, 0x20000")
    a("s_waitcnt lgkmcnt(0)")
    if WSB:
        a(f"s_add_u32 s14, s14, {WSB}")
        a("s_addc_u32 s15, s15, 0")
    a(f"s_mov_b32 s{X}, s4")
    a(f"s_and_b32 s{X+1}, s5, 0xffff")
    a(f"s_mov_b32 s{W}, s6")
    a(f"s_and_b32 s{W+1}, s7, 0xffff")
    def adv_kc():
        a(f"s_add_u32 s{sKC}, s{sKC}, 1")
        a(f"s_cmp_eq_u32 s{sKC}, 7")
        a(f"s_cselect_b32 s{sKC}, 0, s{sKC}")
    def issue(c):
        a(f"s_mul_i32 s{sBb}, s{sKC}, 172032")
        a(f"s_add_u32 m0, s{sWM}, {L_WKV + c*8192}")
        a(f"s_add_u32 s{sBb}, s{sBb}, s{sWB}")
        a(f"buffer_load_dwordx4 v{vW0}, {sr(W)}, s{sBb} offen lds")
        a(f"buffer_load_dwordx4 v{vW1}, {sr(W)}, s{sBb} offen offset:1024 lds")
        a(f"s_lshl_b32 s{sA}, s{sKC}, 7")
        a(f"s_add_u32 m0, s{sXM}, {(c%4)*4096}")
        a(f"s_add_u32 s{sA}, s{sA}, s{sXB}")
        for q in range(4):
            a(f"buffer_load_dwordx4 v{vX[q]}, {sr(X)}, s{sA} offen offset:{1024*q} lds")
        adv_kc()
    for c in range(2): issue(c)
    ts("h_iss", grp=1)
    srd(a, WS, 14, 15, WS_BYTES)
    srd(a, DBG, 12, 13, 256)
    srd(a, WO, 8, 9, WO_BYTES)
    a("v_lshlrev_b32 v1, 4, v0")
    a("v_and_b32 v15, 3, v0")
    a(f"v_lshrrev_b32 v{vWq}, 2, v0")
    a(f"v_mul_u32_u24 v{vWq}, 2688, v{vWq}")
    a(f"v_lshl_add_u32 v{vWq}, v15, 4, v{vWq}")
    a(f"s_mul_i32 s3, s{sH}, 56")
    a("s_and_b32 s3, s3, 0xfffffff0")
    a(f"s_add_u32 s{sWQ}, s{sWQ}, s3")
    a(f"v_mov_b32 v{vZ}, 0")
    kv_poll_addr(a, vP, 16)
    mask_addr(a, vM)
    srd(a, WQS, 6, 7, W_BYTES)
    a(f"s_lshr_b32 s{sIT}, s{sWM}, 1")
    qn = [0]
    def issue_q():
        c = qn[0]; qn[0] += 1
        a(f"s_mul_i32 s{sBb}, s{sKQ}, 172032")
        a(f"s_add_u32 m0, s{sIT}, {L_WQ + c*4096}")
        a(f"s_add_u32 s{sBb}, s{sBb}, s{sWQ}")
        a(f"buffer_load_dwordx4 v{vWq}, {sr(WQS)}, s{sBb} offen lds")
        a(f"s_add_u32 s{sKQ}, s{sKQ}, 1")
        a(f"s_cmp_eq_u32 s{sKQ}, 7")
        a(f"s_cselect_b32 s{sKQ}, 0, s{sKQ}")
    order = [0]*6 + [1]*6
    for c in range(7):
        if c + 2 < 7:
            issue(c + 2); order += [c + 2] * 6
        for i in range(NQ[c]):
            issue_q(); order.append(-1)
        last = max(i for i, x in enumerate(order) if x == c)
        a(f"s_waitcnt vmcnt({len(order) - 1 - last})")
        ts(f"w{c}", grp=1)
        a("s_barrier")
    if NQ[7]:
        a("s_barrier")
        for i in range(NQ[7]): issue_q()
    if TS and TSG == 1:
        ts("h_b6", grp=1)
        a("s_waitcnt vmcnt(0)")
        ts("h_q", grp=1)
    a(f"s_cmp_lg_u32 s{sW}, 0")
    a("s_cbranch_scc1 L_pollgo_done")
    poll(a, "L_pollgo", vZ, 1, 0, DBG, 1, atomic=False)
    a("s_waitcnt vmcnt(0)")
    ts("h_wq", grp=1)
    a("s_barrier")
    def poll_mask():
        set_exec(a, "0xf", 0)
        flag_read(a, vP, WS)
        a("s_waitcnt vmcnt(0)")
        a("v_readlane_b32 s4, v15, 0")
        a("v_readlane_b32 s5, v15, 1")
        a("v_readlane_b32 s6, v15, 2")
        a("v_readlane_b32 s7, v15, 3")
        a("s_and_b32 s4, s4, s5")
        a("s_and_b32 s6, s6, s7")
        a("s_and_b32 s4, s4, s6")
        a("s_lshl_b32 s5, s4, 16")
        a("s_or_b32 s4, s4, s5")
        a(f"s_lshr_b32 s4, s4, s{sB}")
        a("s_and_b32 s4, s4, 0xffff")
        a("s_cmp_eq_u32 s4, 0xffff")
        a("s_cselect_b32 s4, 0x7ffff, s4")
        a("v_mov_b32 v15, s4")
        a(f"ds_write_b32 v{vM}, v15")
        set_exec(a, HI, HI)
    if PREPOLL:
        a(f"s_sleep {PREPOLL}")
        poll_mask()
    else:
        a(f"ds_write_b32 v{vM}, v{vZ}")
        a("s_mov_b32 s4, 0")
    a("s_waitcnt lgkmcnt(0)")
    a("s_barrier")
    a(f"s_mov_b32 s{sCNT}, 0x100000")
    a.lab("L_hpoll")
    a("s_cmp_eq_u32 s4, 0x7ffff")
    a("s_cbranch_scc1 L_hpoll_done")
    a(f"s_sub_u32 s{sCNT}, s{sCNT}, 1")
    a("s_cbranch_scc1 L_hpoll_giveup")
    poll_mask()
    if SLEEP: a(f"s_sleep {SLEEP}")
    a("s_branch L_hpoll")
    a.lab("L_hpoll_giveup")
    a("v_mov_b32 v15, 0x7ffff")
    a(f"ds_write_b32 v{vM}, v15")
    a.lab("L_hpoll_done")
    ts("h_all", grp=1)
    a("v_lshrrev_b32 v16, 4, v0")
    a(f"v_mul_u32_u24 v{vWo}, 896, v16")
    a("v_lshlrev_b32 v16, 2, v16")
    a("v_and_b32 v17, 15, v0")
    a("v_xor_b32 v16, v16, v17")
    a(f"v_lshl_add_u32 v{vWo}, v16, 4, v{vWo}")
    a(f"s_mul_i32 s{sWoS}, s{sCS4}, 224")
    a(f"s_and_b32 s{sWoS}, s{sWoS}, 0xffffffc0")
    a(f"s_mul_i32 s3, s{sW}, {28*3584}")
    a(f"s_add_u32 s{sWoS}, s{sWoS}, s3")
    a(f"s_mul_i32 s3, s{sW}, {28*1024}")
    a(f"s_add_u32 m0, s3, {L_WO}")
    a(f"s_mov_b32 s{sIT}, 28")
    a("s_sleep 16")
    a.lab("L_wo")
    a("s_sleep 3")
    a(f"buffer_load_dwordx4 v{vWo}, {sr(WO)}, s{sWoS} offen lds")
    a("s_add_u32 m0, m0, 1024")
    a(f"s_add_u32 s{sWoS}, s{sWoS}, 3584")
    a(f"s_sub_u32 s{sIT}, s{sIT}, 1")
    a(f"s_cmp_lg_u32 s{sIT}, 0")
    a("s_cbranch_scc1 L_wo")
    a(f"s_lshl_b32 s3, s{sT3}, {FSH}")
    a(f"s_add_u32 s3, s3, {FL_OFF + (256 << FSH)}")
    a(f"v_mov_b32 v{vP}, s3")
    a(f"s_lshl_b32 s4, s{sW}, 2")
    a("s_lshl_b32 s4, 15, s4")
    a(f"s_lshl_b32 s3, s{sT3}, 2")
    a(f"s_add_u32 s3, s3, s{sW}")
    a("s_lshl_b32 s3, s3, 13")
    a(f"s_add_u32 s3, s3, {O_OFF}")
    a(f"s_add_u32 s{sA}, s3, 4096")
    a(f"s_lshl_b32 s{sBb}, s{sW}, 13")
    a(f"s_add_u32 s{sBb}, s{sBb}, {L_CMB}")
    a(f"v_add_u32 v{vM}, s{sBb}, v1")
    a("s_waitcnt vmcnt(0) lgkmcnt(0)")
    ts("h_wo", grp=1)
    a("s_barrier")
    poll(a, "L_poll2", vP, 1, 0, WS, "s4")
    ts("h_poll2", grp=1)
    for f in range(8):
        a(f"buffer_load_dwordx4 {vr(32+4*f,4)}, v1, {sr(WS)}, {'s3' if f < 4 else 's%d' % sA} offen offset:{1024*(f%4)} sc1")
    a("s_barrier")
    for f in range(8):
        a(f"s_waitcnt vmcnt({7-f})")
        a(f"ds_write_b128 v{vM}, {vr(32+4*f,4)} offset:{1024*f}")
    a("s_waitcnt lgkmcnt(0)")
    ts("h_stage", grp=1)
    a("s_barrier")
    if TS and TSG == 1: ts.dump()
    a("s_endpgm")

def kernel(a):
    name = NAME + "_kernel"
    a.raw(f".globl {name}")
    a.raw(".p2align 8")
    a.raw(f".type {name},@function")
    a.lab(name)
    ts = Stamps(a)
    ts("start")
    a("s_cmp_ge_u32 s2, 256")
    a("s_cbranch_scc1 L_end")
    a("s_load_dwordx8 s[4:11], s[0:1], 0")
    a("s_load_dwordx4 s[12:15], s[0:1], 32")
    a("v_lshrrev_b32 v1, 6, v0")
    a("v_and_b32 v0, 63, v0")
    a(f"v_readfirstlane_b32 s{sA}, v1")
    decode_hb(a)
    a(f"s_and_b32 s{sW}, s{sA}, 3")
    a(f"s_lshl_b32 s{sT}, s{sB}, 2")
    a(f"s_and_b32 s{sT3}, s{sH}, 3")
    a(f"s_add_u32 s{sT3}, s{sT3}, s{sT}")
    a(f"s_add_u32 s{sT}, s{sT}, s{sW}")
    a(f"s_lshr_b32 s{sCS4}, s{sH}, 2")
    a(f"s_cmp_lt_u32 s{sA}, 4")
    a("s_cbranch_scc1 L_compute")
    helper(a, ts)
    a.lab("L_compute")
    t0, t1, t2, t3, t4, t5 = vT
    a("s_waitcnt lgkmcnt(0)")
    if WSB:
        a(f"s_add_u32 s14, s14, {WSB}")
        a("s_addc_u32 s15, s15, 0")
    srd(a, WS, 14, 15, WS_BYTES)
    srd(a, DBG, 12, 13, 256)
    a("v_mov_b32 v250, 1")
    a("v_mov_b32 v251, 0")
    a(f"v_lshlrev_b32 v252, {FSH}, v0")
    a(f"s_lshl_b32 s{sLD}, s{sW}, 3")
    a(f"s_or_b32 s{sLD}, s{sLD}, s2")
    if LEAD == 0:
        a(f"s_cmp_ge_u32 s{sLD}, 8")
        a("s_cbranch_scc1 L_nocand")
        set_exec(a, 1, 0)
        a(f"buffer_atomic_add v250, v251, {sr(DBG)}, 0 offen offset:128 sc0 sc1")
        set_exec(a, HI, HI)
    else:
        a(f"s_cmp_lg_u32 s{sLD}, 0")
        a("s_cbranch_scc1 L_nocand")
        a(f"s_mov_b32 s3, {FL_OFF}")
        for i in range(5):
            a(f"buffer_store_dword v251, v252, {sr(WS)}, s3 offen sc1")
            a(f"s_add_u32 s3, s3, {64 << FSH}")
        if GOAT < 0:
            a("s_waitcnt vmcnt(0)")
            set_exec(a, 1, 0)
            a(f"buffer_store_dword v250, v251, {sr(DBG)}, 0 offen sc1")
            set_exec(a, HI, HI)
    a.lab("L_nocand")
    PB = opt("probe", 0)
    if PB:
        ts("pa"); ts("pb")
        a("s_and_b32 s3, s2, 0xf8" if PB in (1,) else "s_and_b32 s3, s2, 0x78")
        a(f"s_xor_b32 s{sA}, s{sW}, 1")
        a(f"s_or_b32 s3, s3, s{sA}")
        a("s_cmp_lg_u32 s3, 0")
        a("s_cbranch_scc1 L_noprobe")
        a("v_mov_b32 v248, 0")
        a("s_lshl_b32 s3, s2, 8")
        set_exec(a, 1, 0)
        a("s_waitcnt lgkmcnt(0)")
        ts("pa")
        if PB == 1: a(f"buffer_atomic_add v248, v251, {sr(DBG)}, 0 offen offset:64 sc0 sc1")
        if PB == 2:
            a(f"s_add_u32 s3, s3, {(4 << 20)}")
            a(f"buffer_store_dword v248, v251, {sr(WS)}, s3 offen sc1")
        if PB == 3:
            a(f"s_add_u32 s3, s3, {(4 << 20)}")
            a(f"buffer_load_dword v248, v251, {sr(WS)}, s3 offen sc1")
        if PB == 4:
            a(f"s_add_u32 s3, s3, {(4 << 20)}")
            a(f"buffer_atomic_add v248, v251, {sr(WS)}, s3 offen sc0 sc1")
        if PB == 5: a(f"buffer_load_dword v248, v251, {sr(DBG)}, 0 offen offset:64 sc1")
        a("s_waitcnt vmcnt(0)")
        ts("pb")
        set_exec(a, HI, HI)
        a.lab("L_noprobe")
    a("v_lshlrev_b32 v1, 4, v0")
    a("v_and_b32 v15, 3, v0")
    a("v_and_b32 v2, 31, v0")
    a(f"v_lshlrev_b32 v{vV0}, 4, v2")
    a("v_lshlrev_b32 v2, 7, v2")
    a("v_bfe_u32 v3, v0, 1, 3")
    a("v_lshrrev_b32 v4, 5, v0")
    a(f"v_mul_u32_u24 v{vV1}, {V_PLANE}, v4")
    a(f"v_add_u32 v{vV0}, v{vV0}, v{vV1}")
    a("v_xor_b32 v3, v3, v4")
    a("v_lshl_add_u32 v2, v3, 4, v2")
    a(f"s_lshl_b32 s3, s{sW}, 14")
    a(f"s_add_u32 s3, s3, {L_XR}")
    a("v_add_u32 v2, s3, v2")
    a("v_xor_b32 v3, 32, v2")
    a("v_xor_b32 v5, 96, v2")
    a(f"v_bfe_u32 v{t0}, v0, 2, 2")
    a(f"v_lshl_add_u32 v{t1}, v4, 3, v{t0}")
    a("v_xor_b32 v4, 64, v2")
    a(f"v_bfe_u32 v{t2}, v0, 4, 1")
    a(f"v_lshlrev_b32 v{t2}, 5, v{t2}")
    a(f"v_lshrrev_b32 v{t3}, 1, v15")
    a(f"v_and_b32 v{t4}, 1, v15")
    a(f"v_lshl_add_u32 v{t3}, v{t4}, 1, v{t3}")
    a(f"v_lshl_add_u32 v{t3}, v{t3}, 3, v{t2}")
    a(f"v_lshl_add_u32 v{t4}, v15, 3, v{t2}")
    a(f"v_lshl_add_u32 v{vQR}, v{t1}, 6, v{t3}")
    a(f"v_add_u32 v{vQR}, {L_WQ}, v{vQR}")
    a(f"s_cmp_lt_u32 s{sH}, 7")
    a("s_cselect_b64 vcc, -1, 0")
    a(f"v_cndmask_b32 v{t3}, v{t4}, v{t3}, vcc")
    a(f"v_lshrrev_b32 v{t0}, 1, v{t0}")
    a(f"v_lshl_add_u32 v{t3}, v{t0}, 6, v{t3}")
    a(f"v_lshl_add_u32 v{vWR[0]}, v{t1}, 7, v{t3}")
    a(f"v_xor_b32 v{vWR[1]}, 64, v{vWR[0]}")
    mask_addr(a, vMk)
    a(f"s_lshl_b32 s3, 1, s{sB}")
    a(f"v_mov_b32 v{vOne}, s3")
    a(f"s_lshl_b32 s3, s{sH}, 4")
    a(f"s_add_u32 s3, s3, s{sW}")
    a(f"v_lshl_add_u32 v{vP1}, v0, 2, s3")
    a(f"v_lshlrev_b32 v{vP1}, {FSH}, v{vP1}")
    a(f"v_add_u32 v{vP1}, {FL_OFF}, v{vP1}")
    a(f"s_lshl_b32 s{sA}, s{sT}, {FSH}")
    a(f"s_add_u32 s{sA}, s{sA}, {FL_OFF + (256 << FSH)}")
    a(f"v_mov_b32 v{vFl2}, s{sA}")
    a(f"v_lshrrev_b32 v{vFl}, 3, v0")
    a(f"v_mul_u32_u24 v{vFl}, {V_PLANE}, v{vFl}")
    a(f"v_and_b32 v{t0}, 7, v0")
    a(f"v_lshl_add_u32 v{vFl}, v{t0}, 4, v{vFl}")
    a(f"v_cmp_eq_u32 vcc, 0, v{t0}")
    a(f"v_mov_b32 v{t1}, 0x3f803f80")
    a("s_nop 0")
    for r in range(4):
        a(f"v_cndmask_b32 v{216+r}, 0, v{t1}, vcc")
    srd(a, OUT, 10, 11, OUT_BYTES)
    srd(a, KVS, 14, 15, KV_BYTES)
    def rd(c, i):
        a(f"ds_read_b128 {vr(XF+16*c+4*i,4)}, v{vXR[i]} offset:{(c%4)*4096}")
        for p in range(2):
            for r in range(2):
                a(f"ds_read_b64_tr_b16 {vr(WF+8*i+4*p+2*r,2)}, v{vWR[p]} offset:{L_WKV + (c*4+i)*2048 + r*512}")
    def phase1a(kind):
        def mm(c, i):
            x = vr(XF+16*c+4*i, 4)
            first = (c == 0 and i == 0)
            for p, acc in ((0, A0), (1, A1)):
                w = vr(WF+8*i+4*p, 4)
                if kind == "K": mfma(a, vr(acc,16), w, x, "0" if first else vr(acc,16))
                else: mfma(a, vr(acc,16), x, w, "0" if first else vr(acc,16))
        for c in range(7):
            a("s_barrier")
            if c == 0: ts("c0")
            rd(c, 0); rd(c, 1)
            if c == 0 and LEAD == 0:
                a("s_waitcnt vmcnt(0)")
                a(f"v_readfirstlane_b32 s{sLD}, v250")
                a(f"s_mov_b32 s3, {FL_OFF}")
                a(f"s_cmp_lg_u32 s{sLD}, 0")
                a(f"s_cbranch_scc1 L_noclear{kind}")
                for i in range(5):
                    a(f"buffer_store_dword v251, v252, {sr(WS)}, s3 offen sc1")
                    a(f"s_add_u32 s3, s3, {64 << FSH}")
                a.lab(f"L_noclear{kind}")
            if c == (4 if LEAD == 0 else GOAT):
                a(f"s_cmp_lg_u32 s{sLD}, 0")
                a(f"s_cbranch_scc1 L_nogo{kind}")
                a("v_mov_b32 v250, 1")
                a("s_waitcnt vmcnt(0)")
                set_exec(a, 1, 0)
                a(f"buffer_store_dword v250, v251, {sr(DBG)}, 0 offen sc1")
                set_exec(a, HI, HI)
                a.lab(f"L_nogo{kind}")
            if c > 0: mm(c-1, 2)
            rd(c, 2)
            if c > 0: mm(c-1, 3)
            a("s_waitcnt lgkmcnt(10)")
            rd(c, 3)
            mm(c, 0)
            a("s_waitcnt lgkmcnt(10)")
            mm(c, 1)
            a("s_waitcnt lgkmcnt(0)")
        mm(6, 2); mm(6, 3)
        ts("kv_mm")
        a(f"s_lshl_b32 s{sKV}, s{sT}, 16")
        if kind == "K":
            a(f"s_lshl_b32 s3, s{sH}, 12")
            a(f"s_add_u32 s3, s3, s{sKV}")
            a("s_nop 7")
        else:
            a(f"s_mul_i32 s3, s{sH}, {V_LINE}")
            a(f"s_add_u32 s3, s3, s{sKV}")
            a(f"s_add_u32 s3, s3, {V_BASE - 7*V_LINE}")
            a(f"s_add_u32 s{sA}, s3, {2*V_PLANE}")
            a(f"s_cmp_lt_u32 s{sH}, 14")
            a(f"s_cselect_b32 s{KVS+2}, {KV_BYTES}, 0")
            set_exec(a, HI, 0)
            a(f"buffer_store_dwordx4 v[216:219], v{vFl}, {sr(KVS)}, s3 offen offset:1024 sc1")
            set_exec(a, HI, HI)
        for p, acc in ((0, A0), (1, A1)):
            for f in range(2):
                for i in range(4):
                    a(f"v_cvt_pk_bf16_f32 v{PK+8*p+4*f+i}, v{acc+8*f+2*i}, v{acc+8*f+2*i+1}")
                d = vr(PK+8*p+4*f, 4)
                if kind == "K":
                    a(f"buffer_store_dwordx4 {d}, v1, {sr(KVS)}, s3 offen offset:{2048*p+1024*f} sc1")
                else:
                    a(f"buffer_store_dwordx4 {d}, v{vV0}, {sr(KVS)}, {'s3' if f == 0 else 's%d' % sA} offen offset:{512*p} sc1")
    a(f"s_cmp_lt_u32 s{sH}, 7")
    a("s_cbranch_scc0 L_vline")
    phase1a("K")
    a("s_branch L_q")
    a.lab("L_vline")
    phase1a("V")
    a.lab("L_q")
    ts("kv_st")
    if NQ[7]: a("s_barrier")
    a(f"s_mul_i32 s4, s{sH}, 56")
    a("s_lshr_b32 s5, s4, 4")
    a("s_lshl_b32 s5, s5, 9")
    a(f"v_add_u32 v{vKo}, s5, v1")
    a("s_lshr_b32 s4, s4, 1")
    a(f"v_and_b32 v{t0}, 31, v0")
    a(f"v_add_u32 v{t1}, s4, v{t0}")
    a(f"v_lshrrev_b32 v{t2}, 6, v{t1}")
    a(f"v_lshl_add_u32 v{t1}, v{t2}, 3, v{t1}")
    a("s_lshr_b32 s5, s4, 6")
    a("s_mul_i32 s5, s5, 72")
    a("s_add_u32 s5, s5, 36")
    a(f"v_add_u32 v{t2}, s5, v{t0}")
    a(f"v_cmp_gt_u32 vcc, 28, v{t0}")
    a(f"v_add_u32 v{vV1}, {V_BASE}, v{vV1}")
    a("s_nop 0")
    a(f"v_cndmask_b32 v{t1}, v{t2}, v{t1}, vcc")
    a(f"v_lshl_add_u32 v{vV0}, v{t1}, 4, v{vV1}")
    a(f"v_add_u32 v{vV1}, {2*V_PLANE}, v{vV0}")
    for r in range(220, 240):
        a(f"v_mov_b32 v{r}, 0")
    a(f"s_mov_b32 s{KVS+2}, {KV_BYTES}")
    a("s_barrier")
    ts("b7")
    def rdq(s):
        for r in range(2):
            a(f"ds_read_b64_tr_b16 {vr(WF+4*(s%8)+2*r,2)}, v{vQR} offset:{s*1024 + r*256}")
    for s in range(6): rdq(s)
    for s in range(28):
        if s + 6 < 28:
            rdq(s + 6)
            a("s_waitcnt lgkmcnt(12)")
        else:
            a(f"s_waitcnt lgkmcnt({2*(27-s)})")
        mfma(a, vr(AQ,16), vr(WF+4*(s%8),4), vr(XF+4*s,4), "0" if s == 0 else vr(AQ,16))
        if s + 1 == FLAGPOS:
            a("s_waitcnt vmcnt(0)")
            set_exec(a, "0xf", 0)
            a(f"buffer_atomic_or v{vOne}, v{vP1}, {sr(WS)}, 0 offen sc1")
            set_exec(a, HI, HI)
            ts("kv_flag")
    if not opt("probe", 0): ts("q_mm")
    a(f"s_mov_b32 s3, {f32bits(QSCALE):#x}")
    a(f"s_lshl_b32 s{sA}, s{sW}, 11")
    a(f"s_add_u32 s{sA}, s{sA}, {L_CMB}")
    a(f"v_add_u32 v{t0}, s{sA}, v1")
    for r in range(176, 184):
        a(f"v_mov_b32 v{r}, 0")
    for r in range(16):
        a(f"v_mul_f32 v{AQ+r}, s3, v{AQ+r}")
    Q3 = Q + 24
    for i in range(8):
        a(f"v_cvt_pk_bf16_f32 v{Q3+i}, v{AQ+2*i}, v{AQ+2*i+1}")
    a(f"s_bitcmp1_b32 s{sH}, 0")
    a("s_cselect_b32 exec_lo, -1, 0")
    a("s_mov_b32 exec_hi, 0")
    a(f"v_mov_b32 v{Q3}, 0")
    a(f"v_mov_b32 v{Q3+1}, 0")
    a("s_cselect_b32 exec_hi, 0, -1")
    a("s_mov_b32 exec_lo, 0")
    a(f"v_mov_b32 v{Q3+6}, 0")
    a(f"v_mov_b32 v{Q3+7}, 0")
    set_exec(a, HI, HI)
    a(f"ds_write_b128 v{t0}, {vr(Q3,4)}")
    a(f"ds_write_b128 v{t0}, {vr(Q3+4,4)} offset:1024")
    for i in range(3):
        a(f"s_add_u32 s{sA}, s{sW}, {1+i}")
        a(f"s_and_b32 s{sA}, s{sA}, 3")
        a(f"s_lshl_b32 s{sA}, s{sA}, 11")
        a(f"s_add_u32 s{sA}, s{sA}, {L_CMB}")
        a(f"v_add_u32 v{vT[1+i]}, s{sA}, v1")
    for r in range(4):
        a(f"v_mov_b32 v{KV+48+12+r}, 0")
    a(f"s_mov_b32 s{sRDY}, 0")
    a(f"s_mov_b32 s{sTODO}, 0x7ffff")
    a("s_waitcnt lgkmcnt(0)")
    a("s_barrier")
    for i in range(3):
        a(f"ds_read_b128 {vr(Q+8*i,4)}, v{vT[1+i]}")
        a(f"ds_read_b128 {vr(Q+8*i+4,4)}, v{vT[1+i]} offset:1024")
    ts("q_done")
    def ldk(slot):
        for f in range(2):
            a(f"buffer_load_dwordx4 {vr(KV+16*slot+4*f,4)}, v{vKo}, {sr(KVS)}, s{sKV} offen offset:{1024*f} sc1")
    def ldv(slot):
        a(f"buffer_load_dwordx4 {vr(KV+16*slot+8,4)}, v{vV0}, {sr(KVS)}, s{sKV} offen sc1")
        a(f"buffer_load_dwordx4 {vr(KV+16*slot+12,4)}, v{vV1}, {sr(KVS)}, s{sKV} offen sc1")
    npick = [0]
    def pick_ops():
        n = npick[0]; npick[0] += 1
        def p0(): a(f"s_and_b32 s{sAV}, s{sRDY}, s{sTODO}")
        def p1():
            a(f"s_cbranch_scc0 L_slow{n}")
            a.lab(f"L_back{n}")
        def p2(): a(f"s_ff1_i32_b32 s{sAV}, s{sAV}")
        def p3(): a(f"s_bitset0_b32 s{sTODO}, s{sAV}")
        def p4(): a(f"s_lshl2_add_u32 s{sBb}, s{sAV}, s{sT}")
        def p5(): a(f"s_and_b32 s{sBb}, s{sBb}, 63")
        def p6(): a(f"s_and_b32 s{sAV}, s{sAV}, 16")
        def p7(): a(f"s_lshl2_add_u32 s{sBb}, s{sAV}, s{sBb}")
        def p8(): a(f"s_lshl_b32 s{sKV}, s{sBb}, 16")
        return [p0, p1, p2, p3, p4, p5, p6, p7, p8]
    for sl in range(3):
        for f in pick_ops(): f()
        ldk(sl); ldv(sl)
        if sl == 0: ts("pick0")
    for f in pick_ops(): f()
    for r in range(184, 220):
        a(f"v_mov_b32 v{r}, 0")
    for r in range(4):
        a(f"v_mov_b32 v{P+4+r}, 0")
    a(f"s_mov_b32 s{sIT}, 3")
    vC = vT[1:4]; vCR = vT[4]
    a("s_waitcnt lgkmcnt(0)")
    for i in range(3):
        a(f"s_add_u32 s3, s{sW}, {1+i}")
        a("s_and_b32 s3, s3, 3")
        a("s_mul_i32 s3, s3, 12288")
        a(f"s_add_u32 s3, s3, {L_CMB + 4096*i}")
        a(f"v_add_u32 v{vC[i]}, s3, v1")
    a(f"s_mul_i32 s3, s{sW}, 12288")
    a(f"s_add_u32 s3, s3, {L_CMB}")
    a(f"v_add_u32 v{vCR}, s3, v1")
    a("s_waitcnt vmcnt(8)")
    ts("kv0")
    def mS(part, t):
        slot = (t // 4) % 4; qt = t % 4
        d = vr(S[t % 2], 16)
        mfma(a, d, vr(KV+16*slot+4*part,4), vr(Q+8*qt+4*part,4), "0" if part == 0 else d)
    def mPV(part, t):
        slot = (t // 4) % 4; qt = t % 4
        d = vr(O + 16*qt, 16)
        mfma(a, d, vr(KV+16*slot+8+4*part,4), vr(P+4*part,4), d)
    def EC(t, g):
        s = S[t % 2] + 4*g
        for r in range(4):
            a(f"v_exp_f32 v{s+r}, v{s+r}")
        a(f"v_cvt_pk_bf16_f32 v{P+2*g}, v{s}, v{s+1}")
        a(f"v_cvt_pk_bf16_f32 v{P+2*g+1}, v{s+2}, v{s+3}")
    mS(0, 0); mS(1, 0)
    ts("att0", cyc=True)
    a("s_nop 7")
    a("s_nop 3")
    a.raw(".p2align 6")
    a.lab("L_loop")
    def tile(j, last=False):
        fs = [None] * 16
        if not last:
            fs[11] = lambda: a("s_waitcnt vmcnt(8)")
            po = pick_ops()
            for k, f in enumerate(po): fs[2 + k] = f
            if j == 2:
                fs[14] = lambda: a(f"s_sub_u32 s{sIT}, s{sIT}, 1")
        else:
            def wr(i, g):
                return lambda: a(f"ds_write_b128 v{vC[i]}, {vr(O+16*i+4*g,4)} offset:{1024*g}")
            for i in range(3):
                fs[4*(i+1) + 3] = wr(i, 0)
                if i < 2:
                    for g in range(1, 4): fs[4*(i+2) + g - 1] = wr(i, g)
        for st in range(4):
            t = 4*j + st
            f = fs[4*st:4*st+4]
            if not (last and st == 3): mS(0, t+1)
            if st == 0 and not last: ldk((j + 3) % 4)
            if f[0]: f[0]()
            EC(t, 0)
            mPV(1, (t - 1) % 16)
            if st == 0 and not last: ldv((j + 3) % 4)
            if f[1]: f[1]()
            EC(t, 1)
            if not (last and st == 3): mS(1, t+1)
            if f[2]: f[2]()
            EC(t, 2)
            mPV(0, t)
            if f[3]: f[3]()
            EC(t, 3)
    for j in range(3): tile(j)
    a("s_cbranch_scc1 L_last")
    tile(3)
    a("s_branch L_loop")
    a.lab("L_last")
    tile(3, last=True)
    a(f"ds_write_b128 v{vC[2]}, {vr(O+32+4,4)} offset:1024")
    a(f"ds_write_b128 v{vC[2]}, {vr(O+32+8,4)} offset:2048")
    mPV(1, 15)
    a(f"ds_write_b128 v{vC[2]}, {vr(O+32+12,4)} offset:3072")
    ts("att1", cyc=True)
    ts("att1")
    a(f"s_mov_b32 s4, {f32bits(2.0**62):#x}")
    a(f"s_mov_b32 s5, {f32bits(2.0**-62):#x}")
    a("s_waitcnt vmcnt(0) lgkmcnt(0)")
    a("s_barrier")
    R = O
    F = O + 48
    for i in range(3):
        for g in range(4):
            a(f"ds_read_b128 {vr(R+16*i+4*g,4)}, v{vCR} offset:{4096*i+1024*g}")
    a(f"s_lshl_b32 s3, s{sT}, 4")
    a(f"s_add_u32 s3, s3, s{sH}")
    a("s_lshl_b32 s3, s3, 11")
    a(f"s_add_u32 s3, s3, {O_OFF}")
    for i in range(3):
        a(f"s_waitcnt lgkmcnt({8-4*i})")
        for r in range(16):
            a(f"v_add_f32 v{F+r}, v{F+r}, v{R+16*i+r}")
    a(f"v_cmp_nge_f32 s[6:7], s4, v{F+12}")
    a(f"v_cmp_nle_f32 vcc, s5, v{F+12}")
    a("s_or_b64 s[6:7], s[6:7], vcc")
    a("s_cmp_lg_u32 s7, 0")
    a("s_cbranch_scc1 L_fallback")
    a.lab("L_norm")
    a(f"v_mov_b32 v{t0}, v{F+12}")
    a(f"v_mov_b32 v{t1}, v{F+12}")
    a("s_nop 1")
    a(f"v_permlane32_swap_b32 v{t0}, v{t1}")
    a("s_nop 1")
    a(f"v_rcp_f32 v{t1}, v{t1}")
    set_exec(a, 0, HI)
    a(f"v_mov_b32 v{F+12}, 0")
    set_exec(a, HI, HI)
    for r in range(16):
        a(f"v_mul_f32 v{F+r}, v{F+r}, v{t1}")
    PO = 240
    for i in range(8):
        a(f"v_cvt_pk_bf16_f32 v{PO+i}, v{F+2*i}, v{F+2*i+1}")
    a(f"buffer_store_dwordx4 {vr(PO,4)}, v1, {sr(WS)}, s3 offen sc1")
    a(f"buffer_store_dwordx4 {vr(PO+4,4)}, v1, {sr(WS)}, s3 offen offset:1024 sc1")
    ts("o_st")
    WOF, OF, ACC, D = 40, 168, 24, 232
    a(f"s_and_b32 s3, s{sCS4}, 1")
    a("s_lshl_b32 s3, s3, 5")
    a(f"s_mul_i32 s{sA}, s{sW}, 56")
    a(f"s_add_u32 s3, s3, s{sA}")
    a(f"v_bfe_u32 v{t0}, v0, 4, 1")
    a(f"v_lshlrev_b32 v{t0}, 5, v{t0}")
    a(f"v_and_b32 v{t1}, 3, v0")
    a(f"v_lshl_add_u32 v{t0}, v{t1}, 3, v{t0}")
    a(f"v_add_u32 v{t0}, s3, v{t0}")
    a(f"v_and_b32 v{t0}, 255, v{t0}")
    a(f"v_bfe_u32 v{t1}, v0, 2, 2")
    a(f"v_lshlrev_b32 v{t2}, 6, v{t1}")
    a(f"v_xor_b32 v{t0}, v{t0}, v{t2}")
    a(f"v_lshl_add_u32 v{t2}, v{t1}, 8, v{t0}")
    a(f"v_lshrrev_b32 v{t1}, 5, v0")
    a(f"v_lshl_add_u32 v{t0}, v{t1}, 10, v{t2}")
    a(f"v_add_u32 v{t1}, 0x10000, v{t0}")
    a(f"v_add_u32 v{t2}, 0x10000, v{t2}")
    def rdwo(hh):
        for u in range(2):
            for r in range(2):
                off = L_WO + (28*hh + 16*u + 8*r) * 256
                base = t0
                if off >= 0x10000:
                    off -= 0x10000; base = t1
                if hh == 15 and u == 1 and r == 1:
                    base = t2
                a(f"ds_read_b64_tr_b16 {vr(WOF+8*hh+4*u+2*r,2)}, v{base} offset:{off}")
    a(f"s_lshl_b32 s3, 1, s{sH}")
    a(f"v_mov_b32 v{vOne}, s3")
    for hh in range(6): rdwo(hh)
    a("s_waitcnt vmcnt(0)")
    set_exec(a, 1, 0)
    a(f"buffer_atomic_or v{vOne}, v{vFl2}, {sr(WS)}, 0 offen sc1")
    set_exec(a, HI, HI)
    ts("o_flag")
    for hh in range(6, 16): rdwo(hh)
    a(f"v_add_u32 v{t3}, {L_CMB}, v1")
    a(f"v_and_b32 v{t4}, 31, v0")
    a(f"v_mul_u32_u24 v{t4}, 896, v{t4}")
    a(f"v_lshrrev_b32 v{t5}, 5, v0")
    a(f"v_lshl_add_u32 v{t4}, v{t5}, 4, v{t4}")
    a(f"s_mul_i32 s{sKV}, s{sT3}, 28672")
    a(f"s_lshl_b32 s{sBb}, s{sCS4}, 2")
    a(f"s_add_u32 s{sBb}, s{sBb}, s{sW}")
    a(f"s_mul_i32 s{sBb}, s{sBb}, 56")
    a(f"s_add_u32 s{sKV}, s{sKV}, s{sBb}")
    a("s_barrier")
    a("s_barrier")
    ts("o_ld")
    NR = 16
    for f in range(12):
        a(f"ds_read_b128 {vr(OF+4*(f%NR),4)}, v{t3} offset:{1024*f}")
    for f in range(32):
        if f + 12 < 32:
            a(f"ds_read_b128 {vr(OF+4*((f+12)%NR),4)}, v{t3} offset:{1024*(f+12)}")
            a("s_waitcnt lgkmcnt(12)")
        else:
            a(f"s_waitcnt lgkmcnt({31-f})")
        mfma(a, vr(ACC,16), vr(WOF+4*f,4), vr(OF+4*(f%NR),4), "0" if f == 0 else vr(ACC,16))
    a("s_nop 7")
    a("s_nop 3")
    for i in range(8):
        a(f"v_cvt_pk_bf16_f32 v{D+i}, v{ACC+2*i}, v{ACC+2*i+1}")
    a(f"v_permlane32_swap_b32 v{D}, v{D+2}")
    a(f"v_permlane32_swap_b32 v{D+1}, v{D+3}")
    a(f"v_permlane32_swap_b32 v{D+4}, v{D+6}")
    a(f"v_permlane32_swap_b32 v{D+5}, v{D+7}")
    a(f"buffer_store_dwordx4 {vr(D,4)}, v{t4}, {sr(OUT)}, s{sKV} offen")
    set_exec(a, HI, 0)
    a(f"buffer_store_dwordx4 {vr(D+4,4)}, v{t4}, {sr(OUT)}, s{sKV} offen offset:32")
    set_exec(a, 0, HI)
    a(f"buffer_store_dwordx2 {vr(D+4,2)}, v{t4}, {sr(OUT)}, s{sKV} offen offset:32")
    if not opt("probe", 0): ts("out_st")
    if TS:
        a("s_waitcnt vmcnt(0)")
        ts("end")
    if TS and TSG == 0: ts.dump()
    a.lab("L_end")
    a("s_endpgm")
    for n in range(npick[0]):
        a.lab(f"L_slow{n}")
        a(f"ds_read_b32 v15, v{vMk}")
        a("s_waitcnt lgkmcnt(0)")
        a(f"v_readfirstlane_b32 s{sRDY}, v15")
        a("s_nop 0")
        a(f"s_and_b32 s{sAV}, s{sRDY}, s{sTODO}")
        a(f"s_cbranch_scc0 L_slow{n}")
        a(f"s_branch L_back{n}")
    a.lab("L_fallback")
    a(f"s_mov_b32 s{sA}, s3")
    kv_poll_addr(a, vP1, t0)
    a(f"s_lshl_b32 s6, s{sW}, {FSH}")
    a(f"v_subrev_u32 v{vP1}, s6, v{vP1}")
    for w in range(4):
        poll(a, f"L_pollfb{w}", vP1, "0xf", 0, WS, "0xffff", off=w << FSH)
    a(f"s_mov_b32 s3, s{sA}")
    a(f"v_mov_b32 v{t0}, 0xff800000")
    a(f"s_mov_b32 s{sKV}, 0")
    SS = S0
    a.lab("L_fb1")
    ldk(0)
    a(f"s_add_u32 s{sKV}, s{sKV}, 0x10000")
    a("s_waitcnt vmcnt(0)")
    mfma(a, vr(SS,16), vr(KV,4), vr(Q3,4), "0")
    mfma(a, vr(SS,16), vr(KV+4,4), vr(Q3+4,4), vr(SS,16))
    a("s_nop 15")
    for r in range(0, 16, 2):
        a(f"v_max3_f32 v{t0}, v{t0}, v{SS+r}, v{SS+r+1}")
    a(f"s_cmp_lt_u32 s{sKV}, {KV_BYTES}")
    a("s_cbranch_scc1 L_fb1")
    a(f"v_mov_b32 v{t1}, v{t0}")
    a("s_nop 1")
    a(f"v_permlane32_swap_b32 v{t0}, v{t1}")
    a("s_nop 1")
    a(f"v_max_f32 v{t0}, v{t0}, v{t1}")
    for r in range(16):
        a(f"v_mov_b32 v{F+r}, 0")
    a(f"s_mov_b32 s{sKV}, 0")
    a.lab("L_fb2")
    ldk(0); ldv(0)
    a(f"s_add_u32 s{sKV}, s{sKV}, 0x10000")
    a("s_waitcnt vmcnt(0)")
    mfma(a, vr(SS,16), vr(KV,4), vr(Q3,4), "0")
    mfma(a, vr(SS,16), vr(KV+4,4), vr(Q3+4,4), vr(SS,16))
    a("s_nop 15")
    for r in range(16):
        a(f"v_sub_f32 v{SS+r}, v{SS+r}, v{t0}")
    for r in range(16):
        a(f"v_exp_f32 v{SS+r}, v{SS+r}")
    a("s_nop 0")
    for i in range(8):
        a(f"v_cvt_pk_bf16_f32 v{P+i}, v{SS+2*i}, v{SS+2*i+1}")
    a("s_nop 1")
    mfma(a, vr(F,16), vr(KV+8,4), vr(P,4), vr(F,16))
    mfma(a, vr(F,16), vr(KV+12,4), vr(P+4,4), vr(F,16))
    a(f"s_cmp_lt_u32 s{sKV}, {KV_BYTES}")
    a("s_cbranch_scc1 L_fb2")
    a("s_nop 15")
    a("s_branch L_norm")
    if TS:
        open("stamps.txt", "w").write(",".join(ts.names))
    return name

def main():
    a = A()
    name = kernel(a)
    head = open(f"cdna_kernels/{NAME}.s.ref").read().split("; Override")[0]
    out = head
    out += f"; @launch grid=(256,1,1) block=(512,1,1) lds={LDS_BYTES}\n"
    out += '.amdgcn_target "amdgcn-amd-amdhsa--gfx950"\n.text\n'
    out += a.text()
    out += f""".section .rodata,"a"
.p2align 6
.amdhsa_kernel {name}
  .amdhsa_next_free_vgpr 256
  .amdhsa_next_free_sgpr 102
  .amdhsa_accum_offset 256
  .amdhsa_group_segment_fixed_size 0
  .amdhsa_kernarg_size 48
  .amdhsa_user_sgpr_count 2
  .amdhsa_user_sgpr_kernarg_segment_ptr 1
  .amdhsa_system_sgpr_workgroup_id_x 1
.end_amdhsa_kernel
"""
    o = [x for x in sys.argv[1:] if not x.startswith("--")]
    path = o[0] if o else f"cdna_kernels/{NAME}.s"
    open(path, "w").write(out)
main()
```

```python
import sys, struct, math

NAME = "standalone__softmax_full_mha__prompt"
FL_OFF = 5 << 20
EP_OFF = 0xff00
O_OFF = 6 << 20
TS_OFF = 8 << 20
WS_BYTES = 12 << 20
X_BYTES = 2048 * 448 * 2
W_BYTES = 448 * 1344 * 2
WO_BYTES = 448 * 448 * 2
OUT_BYTES = 2048 * 448 * 2
KV_BYTES = 4 << 20
V_BASE = 28672
V_LINE = 1152
V_PLANE = 7 * V_LINE
QSCALE = 28 ** -0.5 * math.log2(math.e)

def opt(name, default):
    for arg in sys.argv:
        if arg.startswith(f"--{name}="):
            return int(arg.split("=")[1])
    return default
TS = "--ts" in sys.argv
TSG = opt("tsg", 0)
MAP = opt("maph", 3)
FSH = opt("fsh", 8)
FLAGPOS = opt("flagpos", 20)
NQ = [int(c) for c in "%08d" % opt("nq", 700)]
assert sum(NQ) == 7
SLEEP = opt("sleep", 1)
LA = opt("la", 2)
BAL = opt("bal", 1)
ROT = opt("rot", 1)
PREPOLL = opt("prepoll", 1)

def f32bits(x):
    return struct.unpack("<I", struct.pack("<f", x))[0]

class A:
    def __init__(self):
        self.l = []
    def __call__(self, s):
        for line in s.strip("\n").split("\n"):
            self.l.append("    " + line.strip())
    def lab(self, n):
        self.l.append(n + ":")
    def raw(self, s):
        self.l.append(s)
    def text(self):
        return "\n".join(self.l) + "\n"

def vr(b, n, k="v"):
    return f"{k}[{b}:{b+n-1}]"
def sr(b):
    return f"s[{b}:{b+3}]"

def srd(a, d, lo, hi, nbytes):
    a(f"s_mov_b32 s{d}, s{lo}")
    a(f"s_and_b32 s{d+1}, s{hi}, 0xffff")
    a(f"s_mov_b32 s{d+2}, {nbytes}")
    a(f"s_mov_b32 s{d+3}, 0x20000")

HI = "0xffffffff"
def set_exec(a, lo, hi):
    if lo == HI and hi == HI:
        a("s_mov_b64 exec, -1")
    elif hi == 0 and lo in (1, "0xf"):
        a(f"s_mov_b64 exec, {int(str(lo), 0)}")
    else:
        a(f"s_mov_b32 exec_lo, {lo}")
        a(f"s_mov_b32 exec_hi, {hi}")

class Stamps:
    def __init__(self, a):
        self.a = a; self.idx = {}; self.names = []
    def __call__(self, name, cyc=False, grp=0):
        if not TS: return
        if name != "start" and grp != TSG: return
        nm = name + ("(cyc)" if cyc else "")
        if nm not in self.idx:
            self.idx[nm] = len(self.names); self.names.append(nm)
        b = 66 + 2 * self.idx[nm]
        assert b + 1 < 102
        self.a(f"s_memtime s[{b}:{b+1}]" if cyc else f"s_memrealtime s[{b}:{b+1}]")
    def dump(self):
        if not TS: return
        a = self.a
        sp = [x for x in sys.argv if x.startswith("--spin=")]
        if sp:
            hi, lo, m = sp[0][7:].split(",")
            a("s_waitcnt lgkmcnt(0)")
            if lo == "G":
                a("v_mov_b32 v2, 0")
                a(f"buffer_load_dword v4, v2, {sr(DBG)}, 0 offen offset:192 sc1")
                a("s_waitcnt vmcnt(0)")
                a("v_readfirstlane_b32 s4, v4")
                a("s_nop 0")
                a("s_not_b32 s4, s4")
                a(f"s_sub_u32 s3, s{66+2*self.idx[hi]}, s4")
            else:
                a(f"s_sub_u32 s3, s{66+2*self.idx[hi]}, s{66+2*self.idx[lo]}")
            only = opt("only", -1)
            if only >= 0:
                a("s_and_b32 s4, s2, 7")
                a(f"s_cmp_eq_u32 s4, {only}")
                a("s_cselect_b32 s3, s3, 0")
            a(f"s_mul_i32 s3, s3, {m}")
            a(f"s_add_u32 s3, s3, s{66+2*self.idx['end' if TSG == 0 else 'h_stage']}")
            a.lab("L_spin")
            a("s_memrealtime s[4:5]")
            a("s_waitcnt lgkmcnt(0)")
            a("s_sub_u32 s4, s4, s3")
            a("s_cmp_lt_i32 s4, 0")
            a("s_cbranch_scc1 L_spin")
            return
        if "--dbg" in sys.argv:
            sel = ["start", "start", "c0", "kv_mm", "b7", "q_done", "kv0", "att1", "o_flag", "o_ld", "end"]
            a("s_waitcnt lgkmcnt(0)")
            a(f"s_cmp_lg_u32 s{sW}, 0")
            a("s_cbranch_scc1 L_end")
            a("s_mov_b64 exec, 1")
            a("v_mov_b32 v2, 0")
            for i, nm in enumerate(sel):
                a(f"v_mov_b32 v4, s{66+2*self.idx[nm]}")
                if i == 0: a("v_not_b32 v4, v4")
                a(f"buffer_atomic_umax v4, v2, {sr(DBG)}, 0 offen offset:{8+4*i} sc1")
                a("s_nop 1")
            for i, nm in enumerate(["end", "kv0", "c0"]):
                a(f"s_sub_u32 s3, s{66+2*self.idx[nm]}, s66")
                a("v_mov_b32 v4, s3")
                a(f"buffer_atomic_umax v4, v2, {sr(DBG)}, 0 offen offset:{52+4*i} sc1")
                a("s_nop 1")
            a("s_waitcnt vmcnt(0)")
            return
        a("s_waitcnt lgkmcnt(0)")
        a(f"s_lshl_b32 s3, s2, 2")
        a(f"s_add_u32 s3, s3, s{sW}")
        a(f"s_lshl_b32 s3, s3, 7")
        a(f"s_add_u32 s3, s3, {TS_OFF}")
        a("s_mov_b64 exec, 1")
        a("v_mov_b32 v2, 0")
        for i in range(18):
            a(f"v_mov_b32 v4, s{66+2*i}")
            a(f"buffer_store_dword v4, v2, {sr(WS)}, s3 offen offset:{4*i}")
            a("s_nop 1")
        a("s_waitcnt vmcnt(0)")

X, W, WO, OUT, DBG, WS, KVS = 16, 20, 24, 28, 32, 36, 40
sH, sB, sW, sT = 44, 45, 46, 47
sKC, sXB, sWB, sXM, sWM = 48, 49, 50, 51, 52
sRDY, sTODO, sAV, sRET = 48, 49, 50, 64
sA, sBb = 53, 54
sKV, sIT, sWQ, sWoS, sCNT = 55, 56, 57, 58, 59
sKQ, sTAG = 60, 61
WQS = KVS
sT3, sCS4 = 62, 63
L_WKV, L_WQ, L_XR = 0, 57344, 86016
L_WO, L_CMB = 0, 114688
LDS_BYTES = 163840
vXR = [2, 3, 4, 5]
vWR = [6, 7]
vQR, vOne, vFl, vFl2, vP1, vMk = 8, 9, 10, 11, 12, 13
vKo, vV0, vV1 = 14, 16, 17
vT = [18, 19, 20, 21, 22, 23]
A0, A1 = 24, 40
AQ = A0
XF = 56
WF = 168
PK = 200
Q, S0, P, KV, O = 40, 72, 104, 112, 176
S = [S0, S0 + 16]

def decode_hb(a):
    nhg = 16 >> MAP
    lg = int(math.log2(nhg))
    a(f"s_and_b32 s{sH}, s2, {nhg-1}")
    a(f"s_lshl_b32 s{sH}, s{sH}, {MAP}")
    a(f"s_lshr_b32 s3, s2, 3")
    a(f"s_and_b32 s{sB}, s3, {(1<<MAP)-1}")
    a(f"s_add_u32 s{sH}, s{sH}, s{sB}")
    a(f"s_lshr_b32 s3, s3, {MAP}")
    a(f"s_and_b32 s{sB}, s2, 7")
    a(f"s_lshr_b32 s{sB}, s{sB}, {lg}")
    a(f"s_mul_i32 s{sB}, s{sB}, {32>>MAP}")
    a(f"s_add_u32 s{sB}, s{sB}, s3")
    if BAL:
        a(f"s_lshr_b32 s3, s{sH}, 3")
        a(f"s_sub_u32 s{sBb}, s{sH}, s3")
        a("s_add_u32 s3, s3, 14")
        a(f"s_and_b32 s{sH}, s{sH}, 7")
        a(f"s_cmp_eq_u32 s{sH}, 7")
        a(f"s_cselect_b32 s{sH}, s3, s{sBb}")

def mfma(a, d, x, y, c):
    a(f"v_mfma_f32_32x32x16_bf16 {d}, {x}, {y}, {c}")

vR = 252
def flag_read(a, vaddr, off=0):
    a(f"v_mov_b32 v{vR}, 0")
    a(f"v_mov_b32 v{vR+1}, 0")
    a(f"buffer_atomic_or_x2 v[{vR}:{vR+1}], v{vaddr}, {sr(WS)}, 0 offen offset:{off} sc0 sc1")

def flag_bits(a):
    a(f"v_cmp_eq_u32 vcc, s{sTAG}, v{vR+1}")
    a("s_nop 1")
    a(f"v_cndmask_b32 v{vR}, 0, v{vR}, vcc")

def poll(a, label, vaddr, lo, hi, smask, off=0):
    a(f"s_mov_b32 s{sCNT}, 0x100000")
    set_exec(a, lo, hi)
    a(f"s_branch {label}_in")
    a.lab(label)
    if SLEEP: a(f"s_sleep {SLEEP}")
    a.lab(label + "_in")
    flag_read(a, vaddr, off)
    a(f"s_sub_u32 s{sCNT}, s{sCNT}, 1")
    a(f"s_cbranch_scc1 {label}_done")
    a("s_waitcnt vmcnt(0)")
    flag_bits(a)
    a(f"v_and_b32 v{vR}, {smask}, v{vR}")
    a(f"v_cmp_ne_u32 vcc, {smask}, v{vR}")
    a(f"s_cbranch_vccnz {label}")
    a.lab(label + "_done")
    set_exec(a, HI, HI)

def flag_set(a, vaddr, sbit, lo):
    a(f"s_lshl_b32 s3, 1, s{sbit}")
    a("v_mov_b32 v250, s3")
    a("v_mov_b32 v251, 0")
    set_exec(a, lo, 0)
    a(f"buffer_atomic_or_x2 v[250:251], v{vaddr}, {sr(WS)}, 0 offen sc0 sc1")
    set_exec(a, HI, HI)

def flag_check(a, label, vaddr, sbit, lo, wait):
    a(f"s_mov_b32 s{sCNT}, 0x100000")
    a(f"s_waitcnt vmcnt({wait})")
    a.lab(label)
    set_exec(a, lo, 0)
    a(f"v_cmp_ne_u32 vcc, s{sTAG}, v251")
    set_exec(a, HI, HI)
    a(f"s_cbranch_vccnz {label}_again")
    a.lab(label + "_ok")
    RETRY.append((label, vaddr, sbit, lo))
RETRY = []
def flag_retries(a):
    for label, vaddr, sbit, lo in RETRY:
        a.lab(label + "_again")
        a(f"s_sub_u32 s{sCNT}, s{sCNT}, 1")
        a(f"s_cbranch_scc1 {label}_ok")
        a("s_sleep 4")
        flag_set(a, vaddr, sbit, lo)
        a("s_waitcnt vmcnt(0)")
        a(f"s_branch {label}")

def kv_poll_addr(a, vd, t0):
    a(f"s_mul_i32 s4, s{sH}, 56")
    a("s_and_b32 s5, s4, 0xfffffff0")
    a(f"v_mov_b32 v{t0}, s5")
    a("s_add_u32 s5, s5, 62")
    a(f"v_writelane_b32 v{t0}, s5, 1")
    a("s_add_u32 s5, s4, 896")
    a(f"v_writelane_b32 v{t0}, s5, 2")
    a("s_add_u32 s5, s4, 950")
    a(f"v_writelane_b32 v{t0}, s5, 3")
    a(f"v_lshrrev_b32 v{t0}, 7, v{t0}")
    a(f"v_lshlrev_b32 v{t0}, {FSH+4}, v{t0}")
    a(f"s_and_b32 s3, s{sH}, 3")
    a(f"s_lshl2_add_u32 s3, s3, s{sW}")
    a(f"s_lshl_b32 s3, s3, {FSH}")
    a(f"s_add_u32 s3, s3, {FL_OFF}")
    a(f"v_add_u32 v{vd}, s3, v{t0}")

def mask_addr(a, vd):
    a(f"s_add_u32 s3, s{sW}, 3")
    a("s_and_b32 s3, s3, 3")
    a("s_mul_i32 s3, s3, 12288")
    a(f"s_add_u32 s3, s3, {L_CMB + 8192}")
    a(f"v_mov_b32 v{vd}, s3")

def helper(a, ts):
    vX = [2, 3, 4, 5]
    vW0, vW1, vWq = 6, 7, 8
    vZ, vOn, vP, vM, vWo, vF = 9, 10, 11, 12, 13, 14
    a("v_lshrrev_b32 v7, 3, v0")
    a("v_mul_u32_u24 v2, 896, v7")
    a("v_and_b32 v6, 7, v0")
    a("v_lshrrev_b32 v4, 4, v0")
    a("v_xor_b32 v3, v6, v4")
    a("v_lshl_add_u32 v2, v3, 4, v2")
    a("v_xor_b32 v3, 64, v2")
    a("v_add_u32 v3, 6144, v3")
    a("v_and_b32 v4, 1, v4")
    a("v_lshlrev_b32 v4, 2, v4")
    a("v_xor_b32 v6, v6, v4")
    a("v_mul_u32_u24 v7, 2688, v7")
    a(f"v_lshl_add_u32 v{vW0}, v6, 4, v7")
    a(f"v_add_u32 v{vW1}, {8*2688-1024}, v{vW0}")
    a("v_add_u32 v4, 12288, v2")
    a("v_add_u32 v5, 12288, v3")
    a(f"s_mul_i32 s{sXB}, s{sT}, 28672")
    a(f"s_mul_i32 s{sWQ}, s{sW}, 43008")
    a(f"s_lshl_b32 s{sWB}, s{sH}, 7")
    a(f"s_add_u32 s{sWB}, s{sWB}, s{sWQ}")
    a(f"s_add_u32 s{sWB}, s{sWB}, 896")
    a(f"s_lshl_b32 s{sXM}, s{sW}, 14")
    a(f"s_add_u32 s{sXM}, s{sXM}, {L_XR}")
    a(f"s_lshl_b32 s{sWM}, s{sW}, 11")
    a(f"s_lshl_b32 s3, s{sB}, 1")
    a(f"s_add_u32 s3, s3, s{sH}")
    a(f"s_mul_i32 s{sA}, s3, 37")
    a(f"s_lshr_b32 s{sA}, s{sA}, 8")
    a(f"s_mul_i32 s{sA}, s{sA}, 7")
    a(f"s_sub_u32 s{sKC}, s3, s{sA}")
    a(f"s_mov_b32 s{sKQ}, s{sKC}")
    a(f"s_mov_b32 s{X+2}, {X_BYTES}")
    a(f"s_mov_b32 s{X+3}, 0x20000")
    a(f"s_cmp_lt_u32 s{sH}, 14")
    a(f"s_cselect_b32 s{W+2}, {W_BYTES}, 0")
    a(f"s_mov_b32 s{W+3}, 0x20000")
    a("s_waitcnt lgkmcnt(0)")
    a(f"s_load_dword s{sTAG}, s[14:15], {EP_OFF}")
    a(f"s_mov_b32 s{X}, s4")
    a(f"s_and_b32 s{X+1}, s5, 0xffff")
    a(f"s_mov_b32 s{W}, s6")
    a(f"s_and_b32 s{W+1}, s7, 0xffff")
    def adv_kc():
        a(f"s_add_u32 s{sKC}, s{sKC}, 1")
        a(f"s_cmp_eq_u32 s{sKC}, 7")
        a(f"s_cselect_b32 s{sKC}, 0, s{sKC}")
    def issue(c):
        a(f"s_mul_i32 s{sBb}, s{sKC}, 172032")
        a(f"s_add_u32 m0, s{sWM}, {L_WKV + c*8192}")
        a(f"s_add_u32 s{sBb}, s{sBb}, s{sWB}")
        a(f"buffer_load_dwordx4 v{vW0}, {sr(W)}, s{sBb} offen lds")
        a(f"buffer_load_dwordx4 v{vW1}, {sr(W)}, s{sBb} offen offset:1024 lds")
        a(f"s_lshl_b32 s{sA}, s{sKC}, 7")
        a(f"s_add_u32 m0, s{sXM}, {(c%4)*4096}")
        a(f"s_add_u32 s{sA}, s{sA}, s{sXB}")
        for q in range(4):
            a(f"buffer_load_dwordx4 v{vX[q]}, {sr(X)}, s{sA} offen offset:{1024*q} lds")
        adv_kc()
    for c in range(2): issue(c)
    ts("h_iss", grp=1)
    srd(a, WS, 14, 15, WS_BYTES)
    srd(a, WO, 8, 9, WO_BYTES)
    a("v_lshlrev_b32 v1, 4, v0")
    a("v_and_b32 v15, 3, v0")
    a(f"v_lshrrev_b32 v{vWq}, 2, v0")
    a(f"v_mul_u32_u24 v{vWq}, 2688, v{vWq}")
    a(f"v_lshl_add_u32 v{vWq}, v15, 4, v{vWq}")
    a(f"s_mul_i32 s3, s{sH}, 56")
    a("s_and_b32 s3, s3, 0xfffffff0")
    a(f"s_add_u32 s{sWQ}, s{sWQ}, s3")
    a(f"v_mov_b32 v{vZ}, 0")
    kv_poll_addr(a, vP, 16)
    mask_addr(a, vM)
    srd(a, WQS, 6, 7, W_BYTES)
    a(f"s_lshr_b32 s{sIT}, s{sWM}, 1")
    qn = [0]
    def issue_q():
        c = qn[0]; qn[0] += 1
        a(f"s_mul_i32 s{sBb}, s{sKQ}, 172032")
        a(f"s_add_u32 m0, s{sIT}, {L_WQ + c*4096}")
        a(f"s_add_u32 s{sBb}, s{sBb}, s{sWQ}")
        a(f"buffer_load_dwordx4 v{vWq}, {sr(WQS)}, s{sBb} offen lds")
        a(f"s_add_u32 s{sKQ}, s{sKQ}, 1")
        a(f"s_cmp_eq_u32 s{sKQ}, 7")
        a(f"s_cselect_b32 s{sKQ}, 0, s{sKQ}")
    order = [0]*6 + [1]*6
    for c in range(7):
        if c + 2 < 7:
            issue(c + 2); order += [c + 2] * 6
        for i in range(NQ[c]):
            issue_q(); order.append(-1)
        last = max(i for i, x in enumerate(order) if x == c)
        a(f"s_waitcnt vmcnt({len(order) - 1 - last})")
        ts(f"w{c}", grp=1)
        a("s_barrier")
    if NQ[7]:
        a("s_barrier")
        for i in range(NQ[7]): issue_q()
    a("s_waitcnt vmcnt(0) lgkmcnt(0)")
    ts("h_wq", grp=1)
    a("s_barrier")
    a(f"s_xor_b32 s{sTAG}, s{sTAG}, 0x5ac3a53c")
    def poll_mask():
        set_exec(a, "0xf", 0)
        flag_read(a, vP)
        a("s_waitcnt vmcnt(0)")
        flag_bits(a)
        a("s_nop 0")
        for i in range(4):
            a(f"v_readlane_b32 s{4+i}, v{vR}, {i}")
        a("s_and_b32 s4, s4, s5")
        a("s_and_b32 s6, s6, s7")
        a("s_and_b32 s4, s4, s6")
        a("s_lshl_b32 s5, s4, 16")
        a("s_or_b32 s4, s4, s5")
        a(f"s_lshr_b32 s4, s4, s{sB}")
        a("s_and_b32 s4, s4, 0xffff")
        a("s_cmp_eq_u32 s4, 0xffff")
        a("s_cselect_b32 s4, 0x7ffff, s4")
        a("v_mov_b32 v15, s4")
        a(f"ds_write_b32 v{vM}, v15")
        set_exec(a, HI, HI)
    if PREPOLL:
        a(f"s_sleep {PREPOLL}")
        poll_mask()
    else:
        a(f"ds_write_b32 v{vM}, v{vZ}")
        a("s_mov_b32 s4, 0")
    a("s_waitcnt lgkmcnt(0)")
    a("s_barrier")
    a(f"s_mov_b32 s{sCNT}, 0x100000")
    a.lab("L_hpoll")
    a("s_cmp_eq_u32 s4, 0x7ffff")
    a("s_cbranch_scc1 L_hpoll_done")
    a(f"s_sub_u32 s{sCNT}, s{sCNT}, 1")
    a("s_cbranch_scc1 L_hpoll_giveup")
    poll_mask()
    if SLEEP: a(f"s_sleep {SLEEP}")
    a("s_branch L_hpoll")
    a.lab("L_hpoll_giveup")
    a("v_mov_b32 v15, 0x7ffff")
    a(f"ds_write_b32 v{vM}, v15")
    a.lab("L_hpoll_done")
    ts("h_all", grp=1)
    a("v_lshrrev_b32 v16, 4, v0")
    a(f"v_mul_u32_u24 v{vWo}, 896, v16")
    a("v_lshlrev_b32 v16, 2, v16")
    a("v_and_b32 v17, 15, v0")
    a("v_xor_b32 v16, v16, v17")
    a(f"v_lshl_add_u32 v{vWo}, v16, 4, v{vWo}")
    a(f"s_mul_i32 s{sWoS}, s{sCS4}, 224")
    a(f"s_and_b32 s{sWoS}, s{sWoS}, 0xffffffc0")
    a(f"s_mul_i32 s3, s{sW}, {28*3584}")
    a(f"s_add_u32 s{sWoS}, s{sWoS}, s3")
    a(f"s_mul_i32 s3, s{sW}, {28*1024}")
    a(f"s_add_u32 m0, s3, {L_WO}")
    a(f"s_mov_b32 s{sIT}, 28")
    a("s_sleep 16")
    a.lab("L_wo")
    a("s_sleep 3")
    a(f"buffer_load_dwordx4 v{vWo}, {sr(WO)}, s{sWoS} offen lds")
    a("s_add_u32 m0, m0, 1024")
    a(f"s_add_u32 s{sWoS}, s{sWoS}, 3584")
    a(f"s_sub_u32 s{sIT}, s{sIT}, 1")
    a(f"s_cmp_lg_u32 s{sIT}, 0")
    a("s_cbranch_scc1 L_wo")
    a(f"s_lshl_b32 s3, s{sT3}, {FSH}")
    a(f"s_add_u32 s3, s3, {FL_OFF + (256 << FSH)}")
    a(f"v_mov_b32 v{vP}, s3")
    a(f"s_lshl_b32 s4, s{sW}, 2")
    a("s_lshl_b32 s4, 15, s4")
    a(f"s_lshl_b32 s3, s{sT3}, 2")
    a(f"s_add_u32 s3, s3, s{sW}")
    a("s_lshl_b32 s3, s3, 13")
    a(f"s_add_u32 s3, s3, {O_OFF}")
    a(f"s_add_u32 s{sA}, s3, 4096")
    a(f"s_lshl_b32 s{sBb}, s{sW}, 13")
    a(f"s_add_u32 s{sBb}, s{sBb}, {L_CMB}")
    a(f"v_add_u32 v{vM}, s{sBb}, v1")
    a("s_waitcnt vmcnt(0) lgkmcnt(0)")
    ts("h_wo", grp=1)
    a("s_barrier")
    poll(a, "L_poll2", vP, 1, 0, "s4")
    ts("h_poll2", grp=1)
    for f in range(8):
        a(f"buffer_load_dwordx4 {vr(32+4*f,4)}, v1, {sr(WS)}, {'s3' if f < 4 else 's%d' % sA} offen offset:{1024*(f%4)} sc1")
    a("s_barrier")
    for f in range(8):
        a(f"s_waitcnt vmcnt({7-f})")
        a(f"ds_write_b128 v{vM}, {vr(32+4*f,4)} offset:{1024*f}")
    a("s_waitcnt lgkmcnt(0)")
    ts("h_stage", grp=1)
    a("s_barrier")
    a(f"s_or_b32 s3, s2, s{sW}")
    a("s_cmp_lg_u32 s3, 0")
    a("s_cbranch_scc1 L_noep")
    a(f"v_lshlrev_b32 v{vP}, {FSH}, v0")
    a(f"v_add_u32 v{vP}, {FL_OFF + (256 << FSH)}, v{vP}")
    poll(a, "L_pollep", vP, HI, HI, "0xffff")
    a(f"s_xor_b32 s3, s{sTAG}, 0x5ac3a53c")
    a("s_add_u32 s3, s3, 0x9e3779b9")
    a("v_mov_b32 v15, s3")
    a(f"v_mov_b32 v{vP}, {EP_OFF}")
    set_exec(a, 1, 0)
    a(f"buffer_store_dword v15, v{vP}, {sr(WS)}, 0 offen sc1")
    a.lab("L_noep")
    if TS and TSG == 1: ts.dump()
    a("s_endpgm")

def kernel(a):
    name = NAME + "_kernel"
    a.raw(f".globl {name}")
    a.raw(".p2align 8")
    a.raw(f".type {name},@function")
    a.lab(name)
    ts = Stamps(a)
    ts("start")
    a("s_cmp_ge_u32 s2, 256")
    a("s_cbranch_scc1 L_end")
    a("s_load_dwordx8 s[4:11], s[0:1], 0")
    a("s_load_dwordx4 s[12:15], s[0:1], 32")
    a("v_lshrrev_b32 v1, 6, v0")
    a("v_and_b32 v0, 63, v0")
    a(f"v_readfirstlane_b32 s{sA}, v1")
    decode_hb(a)
    a(f"s_and_b32 s{sW}, s{sA}, 3")
    a(f"s_lshl_b32 s{sT}, s{sB}, 2")
    a(f"s_and_b32 s{sT3}, s{sH}, 3")
    a(f"s_add_u32 s{sT3}, s{sT3}, s{sT}")
    a(f"s_add_u32 s{sT}, s{sT}, s{sW}")
    a(f"s_lshr_b32 s{sCS4}, s{sH}, 2")
    a(f"s_cmp_lt_u32 s{sA}, 4")
    a("s_cbranch_scc1 L_compute")
    helper(a, ts)
    a.lab("L_compute")
    t0, t1, t2, t3, t4, t5 = vT
    a("s_waitcnt lgkmcnt(0)")
    srd(a, WS, 14, 15, WS_BYTES)
    a(f"s_load_dword s{sTAG}, s[14:15], {EP_OFF}")
    if TS: srd(a, DBG, 12, 13, 256)
    a("v_lshlrev_b32 v1, 4, v0")
    a("v_and_b32 v15, 3, v0")
    a("v_and_b32 v2, 31, v0")
    a(f"v_lshlrev_b32 v{vV0}, 4, v2")
    a("v_lshlrev_b32 v2, 7, v2")
    a("v_bfe_u32 v3, v0, 1, 3")
    a("v_lshrrev_b32 v4, 5, v0")
    a(f"v_mul_u32_u24 v{vV1}, {V_PLANE}, v4")
    a(f"v_add_u32 v{vV0}, v{vV0}, v{vV1}")
    a("v_xor_b32 v3, v3, v4")
    a("v_lshl_add_u32 v2, v3, 4, v2")
    a(f"s_lshl_b32 s3, s{sW}, 14")
    a(f"s_add_u32 s3, s3, {L_XR}")
    a("v_add_u32 v2, s3, v2")
    a("v_xor_b32 v3, 32, v2")
    a("v_xor_b32 v5, 96, v2")
    a(f"v_bfe_u32 v{t0}, v0, 2, 2")
    a(f"v_lshl_add_u32 v{t1}, v4, 3, v{t0}")
    a("v_xor_b32 v4, 64, v2")
    a(f"v_bfe_u32 v{t2}, v0, 4, 1")
    a(f"v_lshlrev_b32 v{t2}, 5, v{t2}")
    a(f"v_lshrrev_b32 v{t3}, 1, v15")
    a(f"v_and_b32 v{t4}, 1, v15")
    a(f"v_lshl_add_u32 v{t3}, v{t4}, 1, v{t3}")
    a(f"v_lshl_add_u32 v{t3}, v{t3}, 3, v{t2}")
    a(f"v_lshl_add_u32 v{t4}, v15, 3, v{t2}")
    a(f"v_lshl_add_u32 v{vQR}, v{t1}, 6, v{t3}")
    a(f"v_add_u32 v{vQR}, {L_WQ}, v{vQR}")
    a(f"s_cmp_lt_u32 s{sH}, 7")
    a("s_cselect_b64 vcc, -1, 0")
    a(f"v_cndmask_b32 v{t3}, v{t4}, v{t3}, vcc")
    a(f"v_lshrrev_b32 v{t0}, 1, v{t0}")
    a(f"v_lshl_add_u32 v{t3}, v{t0}, 6, v{t3}")
    a(f"v_lshl_add_u32 v{vWR[0]}, v{t1}, 7, v{t3}")
    a(f"v_xor_b32 v{vWR[1]}, 64, v{vWR[0]}")
    mask_addr(a, vMk)
    a(f"s_lshl_b32 s3, s{sH}, 4")
    a(f"s_add_u32 s3, s3, s{sW}")
    a(f"v_lshl_add_u32 v{vP1}, v0, 2, s3")
    a(f"v_lshlrev_b32 v{vP1}, {FSH}, v{vP1}")
    a(f"v_add_u32 v{vP1}, {FL_OFF}, v{vP1}")
    a(f"s_lshl_b32 s{sA}, s{sT}, {FSH}")
    a(f"s_add_u32 s{sA}, s{sA}, {FL_OFF + (256 << FSH)}")
    a(f"v_mov_b32 v{vFl2}, s{sA}")
    a(f"v_lshrrev_b32 v{vFl}, 3, v0")
    a(f"v_mul_u32_u24 v{vFl}, {V_PLANE}, v{vFl}")
    a(f"v_and_b32 v{t0}, 7, v0")
    a(f"v_lshl_add_u32 v{vFl}, v{t0}, 4, v{vFl}")
    a(f"v_cmp_eq_u32 vcc, 0, v{t0}")
    a(f"v_mov_b32 v{t1}, 0x3f803f80")
    a("s_nop 0")
    for r in range(4):
        a(f"v_cndmask_b32 v{216+r}, 0, v{t1}, vcc")
    srd(a, OUT, 10, 11, OUT_BYTES)
    srd(a, KVS, 14, 15, KV_BYTES)
    a("s_waitcnt lgkmcnt(0)")
    a(f"s_xor_b32 s{sTAG}, s{sTAG}, 0x5ac3a53c")
    a("v_mov_b32 v250, 0")
    a(f"v_mov_b32 v251, s{sTAG}")
    a(f"s_cmp_ge_u32 s{sB}, 4")
    a("s_cbranch_scc1 L_noopen1")
    a(f"s_lshl_b32 exec_lo, 1, s{sB}")
    a("s_mov_b32 exec_hi, 0")
    a(f"buffer_atomic_swap_x2 v[250:251], v{vP1}, {sr(WS)}, 0 offen sc1")
    a.lab("L_noopen1")
    a(f"s_cmp_lg_u32 s{sH}, 15")
    a("s_cbranch_scc1 L_noopen2")
    set_exec(a, 1, 0)
    a(f"buffer_atomic_swap_x2 v[250:251], v{vFl2}, {sr(WS)}, 0 offen sc1")
    a.lab("L_noopen2")
    set_exec(a, HI, HI)
    def rd(c, i):
        a(f"ds_read_b128 {vr(XF+16*c+4*i,4)}, v{vXR[i]} offset:{(c%4)*4096}")
        for p in range(2):
            for r in range(2):
                a(f"ds_read_b64_tr_b16 {vr(WF+8*i+4*p+2*r,2)}, v{vWR[p]} offset:{L_WKV + (c*4+i)*2048 + r*512}")
    def phase1a(kind):
        def mm(c, i):
            x = vr(XF+16*c+4*i, 4)
            first = (c == 0 and i == 0)
            for p, acc in ((0, A0), (1, A1)):
                w = vr(WF+8*i+4*p, 4)
                if kind == "K": mfma(a, vr(acc,16), w, x, "0" if first else vr(acc,16))
                else: mfma(a, vr(acc,16), x, w, "0" if first else vr(acc,16))
        for c in range(7):
            a("s_barrier")
            if c == 0: ts("c0")
            rd(c, 0); rd(c, 1)
            if c > 0: mm(c-1, 2)
            rd(c, 2)
            if c > 0: mm(c-1, 3)
            a("s_waitcnt lgkmcnt(10)")
            rd(c, 3)
            mm(c, 0)
            a("s_waitcnt lgkmcnt(10)")
            mm(c, 1)
            a("s_waitcnt lgkmcnt(0)")
        mm(6, 2); mm(6, 3)
        ts("kv_mm")
        a(f"s_lshl_b32 s{sKV}, s{sT}, 16")
        if kind == "K":
            a(f"s_lshl_b32 s3, s{sH}, 12")
            a(f"s_add_u32 s3, s3, s{sKV}")
            a("s_nop 7")
        else:
            a(f"s_mul_i32 s3, s{sH}, {V_LINE}")
            a(f"s_add_u32 s3, s3, s{sKV}")
            a(f"s_add_u32 s3, s3, {V_BASE - 7*V_LINE}")
            a(f"s_add_u32 s{sA}, s3, {2*V_PLANE}")
            a(f"s_cmp_lt_u32 s{sH}, 14")
            a(f"s_cselect_b32 s{KVS+2}, {KV_BYTES}, 0")
            set_exec(a, HI, 0)
            a(f"buffer_store_dwordx4 v[216:219], v{vFl}, {sr(KVS)}, s3 offen offset:1024 sc1")
            set_exec(a, HI, HI)
        for p, acc in ((0, A0), (1, A1)):
            for f in range(2):
                for i in range(4):
                    a(f"v_cvt_pk_bf16_f32 v{PK+8*p+4*f+i}, v{acc+8*f+2*i}, v{acc+8*f+2*i+1}")
                d = vr(PK+8*p+4*f, 4)
                if kind == "K":
                    a(f"buffer_store_dwordx4 {d}, v1, {sr(KVS)}, s3 offen offset:{2048*p+1024*f} sc1")
                else:
                    a(f"buffer_store_dwordx4 {d}, v{vV0}, {sr(KVS)}, {'s3' if f == 0 else 's%d' % sA} offen offset:{512*p} sc1")
    a(f"s_cmp_lt_u32 s{sH}, 7")
    a("s_cbranch_scc0 L_vline")
    phase1a("K")
    a("s_branch L_q")
    a.lab("L_vline")
    phase1a("V")
    a.lab("L_q")
    ts("kv_st")
    if NQ[7]: a("s_barrier")
    a(f"s_mul_i32 s4, s{sH}, 56")
    a("s_lshr_b32 s5, s4, 4")
    a("s_lshl_b32 s5, s5, 9")
    a(f"v_add_u32 v{vKo}, s5, v1")
    a("s_lshr_b32 s4, s4, 1")
    a(f"v_and_b32 v{t0}, 31, v0")
    a(f"v_add_u32 v{t1}, s4, v{t0}")
    a(f"v_lshrrev_b32 v{t2}, 6, v{t1}")
    a(f"v_lshl_add_u32 v{t1}, v{t2}, 3, v{t1}")
    a("s_lshr_b32 s5, s4, 6")
    a("s_mul_i32 s5, s5, 72")
    a("s_add_u32 s5, s5, 36")
    a(f"v_add_u32 v{t2}, s5, v{t0}")
    a(f"v_cmp_gt_u32 vcc, 28, v{t0}")
    a(f"v_add_u32 v{vV1}, {V_BASE}, v{vV1}")
    a("s_nop 0")
    a(f"v_cndmask_b32 v{t1}, v{t2}, v{t1}, vcc")
    a(f"v_lshl_add_u32 v{vV0}, v{t1}, 4, v{vV1}")
    a(f"v_add_u32 v{vV1}, {2*V_PLANE}, v{vV0}")
    for r in range(220, 240):
        a(f"v_mov_b32 v{r}, 0")
    a(f"s_mov_b32 s{KVS+2}, {KV_BYTES}")
    a("s_barrier")
    ts("b7")
    def rdq(s):
        for r in range(2):
            a(f"ds_read_b64_tr_b16 {vr(WF+4*(s%8)+2*r,2)}, v{vQR} offset:{s*1024 + r*256}")
    for s in range(6): rdq(s)
    for s in range(28):
        if s + 6 < 28:
            rdq(s + 6)
            a("s_waitcnt lgkmcnt(12)")
        else:
            a(f"s_waitcnt lgkmcnt({2*(27-s)})")
        mfma(a, vr(AQ,16), vr(WF+4*(s%8),4), vr(XF+4*s,4), "0" if s == 0 else vr(AQ,16))
        if s + 1 == FLAGPOS:
            a("s_waitcnt vmcnt(0)")
            flag_set(a, vP1, sB, "0xf")
            ts("kv_flag")
    if not opt("probe", 0): ts("q_mm")
    a(f"s_mov_b32 s3, {f32bits(QSCALE):#x}")
    a(f"s_lshl_b32 s{sA}, s{sW}, 11")
    a(f"s_add_u32 s{sA}, s{sA}, {L_CMB}")
    a(f"v_add_u32 v{t0}, s{sA}, v1")
    for r in range(176, 184):
        a(f"v_mov_b32 v{r}, 0")
    for r in range(16):
        a(f"v_mul_f32 v{AQ+r}, s3, v{AQ+r}")
    Q3 = Q + 24
    for i in range(8):
        a(f"v_cvt_pk_bf16_f32 v{Q3+i}, v{AQ+2*i}, v{AQ+2*i+1}")
    a(f"s_bitcmp1_b32 s{sH}, 0")
    a("s_cselect_b32 exec_lo, -1, 0")
    a("s_mov_b32 exec_hi, 0")
    a(f"v_mov_b32 v{Q3}, 0")
    a(f"v_mov_b32 v{Q3+1}, 0")
    a("s_cselect_b32 exec_hi, 0, -1")
    a("s_mov_b32 exec_lo, 0")
    a(f"v_mov_b32 v{Q3+6}, 0")
    a(f"v_mov_b32 v{Q3+7}, 0")
    set_exec(a, HI, HI)
    a(f"ds_write_b128 v{t0}, {vr(Q3,4)}")
    a(f"ds_write_b128 v{t0}, {vr(Q3+4,4)} offset:1024")
    for i in range(3):
        a(f"s_add_u32 s{sA}, s{sW}, {1+i}")
        a(f"s_and_b32 s{sA}, s{sA}, 3")
        a(f"s_lshl_b32 s{sA}, s{sA}, 11")
        a(f"s_add_u32 s{sA}, s{sA}, {L_CMB}")
        a(f"v_add_u32 v{vT[1+i]}, s{sA}, v1")
    for r in range(4):
        a(f"v_mov_b32 v{KV+48+12+r}, 0")
    a(f"s_mov_b32 s{sRDY}, 0")
    a(f"s_mov_b32 s{sTODO}, 0x7ffff")
    a("s_waitcnt lgkmcnt(0)")
    a("s_barrier")
    for i in range(3):
        a(f"ds_read_b128 {vr(Q+8*i,4)}, v{vT[1+i]}")
        a(f"ds_read_b128 {vr(Q+8*i+4,4)}, v{vT[1+i]} offset:1024")
    ts("q_done")
    flag_check(a, "L_fc1", vP1, sB, "0xf", 0)
    def ldk(slot):
        for f in range(2):
            a(f"buffer_load_dwordx4 {vr(KV+16*slot+4*f,4)}, v{vKo}, {sr(KVS)}, s{sKV} offen offset:{1024*f} sc1")
    def ldv(slot):
        a(f"buffer_load_dwordx4 {vr(KV+16*slot+8,4)}, v{vV0}, {sr(KVS)}, s{sKV} offen sc1")
        a(f"buffer_load_dwordx4 {vr(KV+16*slot+12,4)}, v{vV1}, {sr(KVS)}, s{sKV} offen sc1")
    npick = [0]
    def pick_ops():
        n = npick[0]; npick[0] += 1
        def p0(): a(f"s_and_b32 s{sAV}, s{sRDY}, s{sTODO}")
        def p1():
            a(f"s_cbranch_scc0 L_slow{n}")
            a.lab(f"L_back{n}")
        def p2(): a(f"s_ff1_i32_b32 s{sAV}, s{sAV}")
        def p3(): a(f"s_bitset0_b32 s{sTODO}, s{sAV}")
        def p4(): a(f"s_lshl2_add_u32 s{sBb}, s{sAV}, s{sT}")
        def p5(): a(f"s_and_b32 s{sBb}, s{sBb}, 63")
        def p6(): a(f"s_and_b32 s{sAV}, s{sAV}, 16")
        def p7(): a(f"s_lshl2_add_u32 s{sBb}, s{sAV}, s{sBb}")
        def p8(): a(f"s_lshl_b32 s{sKV}, s{sBb}, 16")
        return [p0, p1, p2, p3, p4, p5, p6, p7, p8]
    for sl in range(3):
        for f in pick_ops(): f()
        ldk(sl); ldv(sl)
        if sl == 0: ts("pick0")
    for f in pick_ops(): f()
    for r in range(184, 220):
        a(f"v_mov_b32 v{r}, 0")
    for r in range(4):
        a(f"v_mov_b32 v{P+4+r}, 0")
    a(f"s_mov_b32 s{sIT}, 3")
    vC = vT[1:4]; vCR = vT[4]
    a("s_waitcnt lgkmcnt(0)")
    for i in range(3):
        a(f"s_add_u32 s3, s{sW}, {1+i}")
        a("s_and_b32 s3, s3, 3")
        a("s_mul_i32 s3, s3, 12288")
        a(f"s_add_u32 s3, s3, {L_CMB + 4096*i}")
        a(f"v_add_u32 v{vC[i]}, s3, v1")
    a(f"s_mul_i32 s3, s{sW}, 12288")
    a(f"s_add_u32 s3, s3, {L_CMB}")
    a(f"v_add_u32 v{vCR}, s3, v1")
    a("s_waitcnt vmcnt(8)")
    ts("kv0")
    def mS(part, t):
        slot = (t // 4) % 4; qt = t % 4
        d = vr(S[t % 2], 16)
        mfma(a, d, vr(KV+16*slot+4*part,4), vr(Q+8*qt+4*part,4), "0" if part == 0 else d)
    def mPV(part, t):
        slot = (t // 4) % 4; qt = t % 4
        d = vr(O + 16*qt, 16)
        mfma(a, d, vr(KV+16*slot+8+4*part,4), vr(P+4*part,4), d)
    def EC(t, g):
        s = S[t % 2] + 4*g
        for r in range(4):
            a(f"v_exp_f32 v{s+r}, v{s+r}")
        a(f"v_cvt_pk_bf16_f32 v{P+2*g}, v{s}, v{s+1}")
        a(f"v_cvt_pk_bf16_f32 v{P+2*g+1}, v{s+2}, v{s+3}")
    mS(0, 0); mS(1, 0)
    ts("att0", cyc=True)
    a("s_nop 7")
    a("s_nop 3")
    a.raw(".p2align 6")
    a.lab("L_loop")
    def tile(j, last=False):
        fs = [None] * 16
        if not last:
            fs[11] = lambda: a("s_waitcnt vmcnt(8)")
            po = pick_ops()
            for k, f in enumerate(po): fs[2 + k] = f
            if j == 2:
                fs[14] = lambda: a(f"s_sub_u32 s{sIT}, s{sIT}, 1")
        else:
            def wr(i, g):
                return lambda: a(f"ds_write_b128 v{vC[i]}, {vr(O+16*i+4*g,4)} offset:{1024*g}")
            for i in range(3):
                fs[4*(i+1) + 3] = wr(i, 0)
                if i < 2:
                    for g in range(1, 4): fs[4*(i+2) + g - 1] = wr(i, g)
        for st in range(4):
            t = 4*j + st
            f = fs[4*st:4*st+4]
            if not (last and st == 3): mS(0, t+1)
            if st == 0 and not last: ldk((j + 3) % 4)
            if f[0]: f[0]()
            EC(t, 0)
            mPV(1, (t - 1) % 16)
            if st == 0 and not last: ldv((j + 3) % 4)
            if f[1]: f[1]()
            EC(t, 1)
            if not (last and st == 3): mS(1, t+1)
            if f[2]: f[2]()
            EC(t, 2)
            mPV(0, t)
            if f[3]: f[3]()
            EC(t, 3)
    for j in range(3): tile(j)
    a("s_cbranch_scc1 L_last")
    tile(3)
    a("s_branch L_loop")
    a.lab("L_last")
    tile(3, last=True)
    a(f"ds_write_b128 v{vC[2]}, {vr(O+32+4,4)} offset:1024")
    a(f"ds_write_b128 v{vC[2]}, {vr(O+32+8,4)} offset:2048")
    mPV(1, 15)
    a(f"ds_write_b128 v{vC[2]}, {vr(O+32+12,4)} offset:3072")
    ts("att1", cyc=True)
    ts("att1")
    a(f"s_mov_b32 s4, {f32bits(2.0**62):#x}")
    a(f"s_mov_b32 s5, {f32bits(2.0**-62):#x}")
    a("s_waitcnt vmcnt(0) lgkmcnt(0)")
    a("s_barrier")
    R = O
    F = O + 48
    for i in range(3):
        for g in range(4):
            a(f"ds_read_b128 {vr(R+16*i+4*g,4)}, v{vCR} offset:{4096*i+1024*g}")
    a(f"s_lshl_b32 s3, s{sT}, 4")
    a(f"s_add_u32 s3, s3, s{sH}")
    a("s_lshl_b32 s3, s3, 11")
    a(f"s_add_u32 s3, s3, {O_OFF}")
    for i in range(3):
        a(f"s_waitcnt lgkmcnt({8-4*i})")
        for r in range(16):
            a(f"v_add_f32 v{F+r}, v{F+r}, v{R+16*i+r}")
    a(f"v_cmp_nge_f32 s[6:7], s4, v{F+12}")
    a(f"v_cmp_nle_f32 vcc, s5, v{F+12}")
    a("s_or_b64 s[6:7], s[6:7], vcc")
    a("s_cmp_lg_u32 s7, 0")
    a("s_cbranch_scc1 L_fallback")
    a.lab("L_norm")
    a(f"v_mov_b32 v{t0}, v{F+12}")
    a(f"v_mov_b32 v{t1}, v{F+12}")
    a("s_nop 1")
    a(f"v_permlane32_swap_b32 v{t0}, v{t1}")
    a("s_nop 1")
    a(f"v_rcp_f32 v{t1}, v{t1}")
    set_exec(a, 0, HI)
    a(f"v_mov_b32 v{F+12}, 0")
    set_exec(a, HI, HI)
    for r in range(16):
        a(f"v_mul_f32 v{F+r}, v{F+r}, v{t1}")
    PO = 240
    for i in range(8):
        a(f"v_cvt_pk_bf16_f32 v{PO+i}, v{F+2*i}, v{F+2*i+1}")
    a(f"buffer_store_dwordx4 {vr(PO,4)}, v1, {sr(WS)}, s3 offen sc1")
    a(f"buffer_store_dwordx4 {vr(PO+4,4)}, v1, {sr(WS)}, s3 offen offset:1024 sc1")
    ts("o_st")
    WOF, OF, ACC, D = 40, 168, 24, 232
    a(f"s_and_b32 s3, s{sCS4}, 1")
    a("s_lshl_b32 s3, s3, 5")
    a(f"s_mul_i32 s{sA}, s{sW}, 56")
    a(f"s_add_u32 s3, s3, s{sA}")
    a(f"v_bfe_u32 v{t0}, v0, 4, 1")
    a(f"v_lshlrev_b32 v{t0}, 5, v{t0}")
    a(f"v_and_b32 v{t1}, 3, v0")
    a(f"v_lshl_add_u32 v{t0}, v{t1}, 3, v{t0}")
    a(f"v_add_u32 v{t0}, s3, v{t0}")
    a(f"v_and_b32 v{t0}, 255, v{t0}")
    a(f"v_bfe_u32 v{t1}, v0, 2, 2")
    a(f"v_lshlrev_b32 v{t2}, 6, v{t1}")
    a(f"v_xor_b32 v{t0}, v{t0}, v{t2}")
    a(f"v_lshl_add_u32 v{t2}, v{t1}, 8, v{t0}")
    a(f"v_lshrrev_b32 v{t1}, 5, v0")
    a(f"v_lshl_add_u32 v{t0}, v{t1}, 10, v{t2}")
    a(f"v_add_u32 v{t1}, 0x10000, v{t0}")
    a(f"v_add_u32 v{t2}, 0x10000, v{t2}")
    def rdwo(hh):
        for u in range(2):
            for r in range(2):
                off = L_WO + (28*hh + 16*u + 8*r) * 256
                base = t0
                if off >= 0x10000:
                    off -= 0x10000; base = t1
                if hh == 15 and u == 1 and r == 1:
                    base = t2
                a(f"ds_read_b64_tr_b16 {vr(WOF+8*hh+4*u+2*r,2)}, v{base} offset:{off}")
    for hh in range(6): rdwo(hh)
    a("s_waitcnt vmcnt(0)")
    flag_set(a, vFl2, sH, 1)
    ts("o_flag")
    for hh in range(6, 16): rdwo(hh)
    a(f"v_add_u32 v{t3}, {L_CMB}, v1")
    a(f"v_and_b32 v{t4}, 31, v0")
    a(f"v_mul_u32_u24 v{t4}, 896, v{t4}")
    a(f"v_lshrrev_b32 v{t5}, 5, v0")
    a(f"v_lshl_add_u32 v{t4}, v{t5}, 4, v{t4}")
    a(f"s_mul_i32 s{sKV}, s{sT3}, 28672")
    a(f"s_lshl_b32 s{sBb}, s{sCS4}, 2")
    a(f"s_add_u32 s{sBb}, s{sBb}, s{sW}")
    a(f"s_mul_i32 s{sBb}, s{sBb}, 56")
    a(f"s_add_u32 s{sKV}, s{sKV}, s{sBb}")
    flag_check(a, "L_fc2", vFl2, sH, 1, 0)
    a("s_barrier")
    a("s_barrier")
    ts("o_ld")
    NR = 16
    for f in range(12):
        a(f"ds_read_b128 {vr(OF+4*(f%NR),4)}, v{t3} offset:{1024*f}")
    for f in range(32):
        if f + 12 < 32:
            a(f"ds_read_b128 {vr(OF+4*((f+12)%NR),4)}, v{t3} offset:{1024*(f+12)}")
            a("s_waitcnt lgkmcnt(12)")
        else:
            a(f"s_waitcnt lgkmcnt({31-f})")
        mfma(a, vr(ACC,16), vr(WOF+4*f,4), vr(OF+4*(f%NR),4), "0" if f == 0 else vr(ACC,16))
    a("s_nop 7")
    a("s_nop 3")
    for i in range(8):
        a(f"v_cvt_pk_bf16_f32 v{D+i}, v{ACC+2*i}, v{ACC+2*i+1}")
    a(f"v_permlane32_swap_b32 v{D}, v{D+2}")
    a(f"v_permlane32_swap_b32 v{D+1}, v{D+3}")
    a(f"v_permlane32_swap_b32 v{D+4}, v{D+6}")
    a(f"v_permlane32_swap_b32 v{D+5}, v{D+7}")
    a(f"buffer_store_dwordx4 {vr(D,4)}, v{t4}, {sr(OUT)}, s{sKV} offen")
    set_exec(a, HI, 0)
    a(f"buffer_store_dwordx4 {vr(D+4,4)}, v{t4}, {sr(OUT)}, s{sKV} offen offset:32")
    set_exec(a, 0, HI)
    a(f"buffer_store_dwordx2 {vr(D+4,2)}, v{t4}, {sr(OUT)}, s{sKV} offen offset:32")
    if not opt("probe", 0): ts("out_st")
    if TS:
        a("s_waitcnt vmcnt(0)")
        ts("end")
    if TS and TSG == 0: ts.dump()
    a.lab("L_end")
    a("s_endpgm")
    for n in range(npick[0]):
        a.lab(f"L_slow{n}")
        a(f"ds_read_b32 v15, v{vMk}")
        a("s_waitcnt lgkmcnt(0)")
        a(f"v_readfirstlane_b32 s{sRDY}, v15")
        a("s_nop 0")
        a(f"s_and_b32 s{sAV}, s{sRDY}, s{sTODO}")
        a(f"s_cbranch_scc0 L_slow{n}")
        a(f"s_branch L_back{n}")
    flag_retries(a)
    a.lab("L_fallback")
    a(f"s_mov_b32 s{sA}, s3")
    kv_poll_addr(a, vP1, t0)
    a(f"s_lshl_b32 s6, s{sW}, {FSH}")
    a(f"v_subrev_u32 v{vP1}, s6, v{vP1}")
    for w in range(4):
        poll(a, f"L_pollfb{w}", vP1, "0xf", 0, "0xffff", off=w << FSH)
    a(f"s_mov_b32 s3, s{sA}")
    a(f"v_mov_b32 v{t0}, 0xff800000")
    a(f"s_mov_b32 s{sKV}, 0")
    SS = S0
    a.lab("L_fb1")
    ldk(0)
    a(f"s_add_u32 s{sKV}, s{sKV}, 0x10000")
    a("s_waitcnt vmcnt(0)")
    mfma(a, vr(SS,16), vr(KV,4), vr(Q3,4), "0")
    mfma(a, vr(SS,16), vr(KV+4,4), vr(Q3+4,4), vr(SS,16))
    a("s_nop 15")
    for r in range(0, 16, 2):
        a(f"v_max3_f32 v{t0}, v{t0}, v{SS+r}, v{SS+r+1}")
    a(f"s_cmp_lt_u32 s{sKV}, {KV_BYTES}")
    a("s_cbranch_scc1 L_fb1")
    a(f"v_mov_b32 v{t1}, v{t0}")
    a("s_nop 1")
    a(f"v_permlane32_swap_b32 v{t0}, v{t1}")
    a("s_nop 1")
    a(f"v_max_f32 v{t0}, v{t0}, v{t1}")
    for r in range(16):
        a(f"v_mov_b32 v{F+r}, 0")
    a(f"s_mov_b32 s{sKV}, 0")
    a.lab("L_fb2")
    ldk(0); ldv(0)
    a(f"s_add_u32 s{sKV}, s{sKV}, 0x10000")
    a("s_waitcnt vmcnt(0)")
    mfma(a, vr(SS,16), vr(KV,4), vr(Q3,4), "0")
    mfma(a, vr(SS,16), vr(KV+4,4), vr(Q3+4,4), vr(SS,16))
    a("s_nop 15")
    for r in range(16):
        a(f"v_sub_f32 v{SS+r}, v{SS+r}, v{t0}")
    for r in range(16):
        a(f"v_exp_f32 v{SS+r}, v{SS+r}")
    a("s_nop 0")
    for i in range(8):
        a(f"v_cvt_pk_bf16_f32 v{P+i}, v{SS+2*i}, v{SS+2*i+1}")
    a("s_nop 1")
    mfma(a, vr(F,16), vr(KV+8,4), vr(P,4), vr(F,16))
    mfma(a, vr(F,16), vr(KV+12,4), vr(P+4,4), vr(F,16))
    a(f"s_cmp_lt_u32 s{sKV}, {KV_BYTES}")
    a("s_cbranch_scc1 L_fb2")
    a("s_nop 15")
    a("s_branch L_norm")
    if TS:
        open("stamps.txt", "w").write(",".join(ts.names))
    return name

def main():
    a = A()
    name = kernel(a)
    head = open(f"cdna_kernels/{NAME}.s.ref").read().split("; Override")[0]
    out = head
    out += f"; @launch grid=(256,1,1) block=(512,1,1) lds={LDS_BYTES}\n"
    out += '.amdgcn_target "amdgcn-amd-amdhsa--gfx950"\n.text\n'
    out += a.text()
    out += f""".section .rodata,"a"
.p2align 6
.amdhsa_kernel {name}
  .amdhsa_next_free_vgpr 256
  .amdhsa_next_free_sgpr 102
  .amdhsa_accum_offset 256
  .amdhsa_group_segment_fixed_size 0
  .amdhsa_kernarg_size 48
  .amdhsa_user_sgpr_count 2
  .amdhsa_user_sgpr_kernarg_segment_ptr 1
  .amdhsa_system_sgpr_workgroup_id_x 1
.end_amdhsa_kernel
"""
    o = [x for x in sys.argv[1:] if not x.startswith("--")]
    path = o[0] if o else f"cdna_kernels/{NAME}.s"
    open(path, "w").write(out)
main()
```

```python
import sys, struct, math

NAME = "standalone__softmax_full_mha__prompt"
FL_OFF = 5 << 20
EP_OFF = 0xff00
O_OFF = 6 << 20
TS_OFF = 8 << 20
WS_BYTES = 12 << 20
X_BYTES = 2048 * 448 * 2
W_BYTES = 448 * 1344 * 2
WO_BYTES = 448 * 448 * 2
OUT_BYTES = 2048 * 448 * 2
KV_BYTES = 4 << 20
V_BASE = 28672
V_LINE = 1152
V_PLANE = 7 * V_LINE
QSCALE = 28 ** -0.5 * math.log2(math.e)

def opt(name, default):
    for arg in sys.argv:
        if arg.startswith(f"--{name}="):
            return int(arg.split("=")[1])
    return default
TS = "--ts" in sys.argv
TSG = opt("tsg", 0)
MAP = opt("maph", 3)
FSH = opt("fsh", 8)
FLAGPOS = opt("flagpos", 20)
NQ = [int(c) for c in "%08d" % opt("nq", 700)]
assert sum(NQ) == 7
SLEEP = opt("sleep", 1)
LA = opt("la", 2)
BAL = opt("bal", 1)
LDF = ["sc1", "sc1 nt", "sc0 sc1", "", "nt"][opt("ldf", 0)]
STF = ["sc1", "sc1 nt", "sc0 sc1", "sc0 sc1 nt"][opt("stf", 0)]
INV = opt("inv", 0)
PW = opt("pw", 0)
PWAT = opt("pwat", -1)
ROT = opt("rot", 1)
PREPOLL = opt("prepoll", 1)

def f32bits(x):
    return struct.unpack("<I", struct.pack("<f", x))[0]

class A:
    def __init__(self):
        self.l = []
    def __call__(self, s):
        for line in s.strip("\n").split("\n"):
            self.l.append("    " + line.strip())
    def lab(self, n):
        self.l.append(n + ":")
    def raw(self, s):
        self.l.append(s)
    def text(self):
        return "\n".join(self.l) + "\n"

def vr(b, n, k="v"):
    return f"{k}[{b}:{b+n-1}]"
def sr(b):
    return f"s[{b}:{b+3}]"

def srd(a, d, lo, hi, nbytes):
    a(f"s_mov_b32 s{d}, s{lo}")
    a(f"s_and_b32 s{d+1}, s{hi}, 0xffff")
    a(f"s_mov_b32 s{d+2}, {nbytes}")
    a(f"s_mov_b32 s{d+3}, 0x20000")

HI = "0xffffffff"
def set_exec(a, lo, hi):
    if lo == HI and hi == HI:
        a("s_mov_b64 exec, -1")
    elif hi == 0 and lo in (1, "0xf"):
        a(f"s_mov_b64 exec, {int(str(lo), 0)}")
    else:
        a(f"s_mov_b32 exec_lo, {lo}")
        a(f"s_mov_b32 exec_hi, {hi}")

class Stamps:
    def __init__(self, a):
        self.a = a; self.idx = {}; self.names = []
    def __call__(self, name, cyc=False, grp=0):
        if not TS: return
        if name != "start" and grp != TSG: return
        nm = name + ("(cyc)" if cyc else "")
        if nm not in self.idx:
            self.idx[nm] = len(self.names); self.names.append(nm)
        b = 66 + 2 * self.idx[nm]
        assert b + 1 < 102
        self.a(f"s_memtime s[{b}:{b+1}]" if cyc else f"s_memrealtime s[{b}:{b+1}]")
    def dump(self):
        if not TS: return
        a = self.a
        sp = [x for x in sys.argv if x.startswith("--spin=")]
        if sp:
            hi, lo, m = sp[0][7:].split(",")
            a("s_waitcnt lgkmcnt(0)")
            if lo == "G":
                a("v_mov_b32 v2, 0")
                a(f"buffer_load_dword v4, v2, {sr(DBG)}, 0 offen offset:192 sc1")
                a("s_waitcnt vmcnt(0)")
                a("v_readfirstlane_b32 s4, v4")
                a("s_nop 0")
                a("s_not_b32 s4, s4")
                a(f"s_sub_u32 s3, s{66+2*self.idx[hi]}, s4")
            else:
                a(f"s_sub_u32 s3, s{66+2*self.idx[hi]}, s{66+2*self.idx[lo]}")
            only = opt("only", -1)
            if only >= 0:
                a("s_and_b32 s4, s2, 7")
                a(f"s_cmp_eq_u32 s4, {only}")
                a("s_cselect_b32 s3, s3, 0")
            a(f"s_mul_i32 s3, s3, {m}")
            a(f"s_add_u32 s3, s3, s{66+2*self.idx['end' if TSG == 0 else 'h_stage']}")
            a.lab("L_spin")
            a("s_memrealtime s[4:5]")
            a("s_waitcnt lgkmcnt(0)")
            a("s_sub_u32 s4, s4, s3")
            a("s_cmp_lt_i32 s4, 0")
            a("s_cbranch_scc1 L_spin")
            return
        if "--dbg" in sys.argv:
            sel = ["start", "start", "c0", "kv_mm", "b7", "q_done", "kv0", "att1", "o_flag", "o_ld", "end"]
            a("s_waitcnt lgkmcnt(0)")
            a(f"s_cmp_lg_u32 s{sW}, 0")
            a("s_cbranch_scc1 L_end")
            a("s_mov_b64 exec, 1")
            a("v_mov_b32 v2, 0")
            for i, nm in enumerate(sel):
                a(f"v_mov_b32 v4, s{66+2*self.idx[nm]}")
                if i == 0: a("v_not_b32 v4, v4")
                a(f"buffer_atomic_umax v4, v2, {sr(DBG)}, 0 offen offset:{8+4*i} sc1")
                a("s_nop 1")
            for i, nm in enumerate(["end", "kv0", "c0"]):
                a(f"s_sub_u32 s3, s{66+2*self.idx[nm]}, s66")
                a("v_mov_b32 v4, s3")
                a(f"buffer_atomic_umax v4, v2, {sr(DBG)}, 0 offen offset:{52+4*i} sc1")
                a("s_nop 1")
            a("s_waitcnt vmcnt(0)")
            return
        a("s_waitcnt lgkmcnt(0)")
        a(f"s_lshl_b32 s3, s2, 2")
        a(f"s_add_u32 s3, s3, s{sW}")
        a(f"s_lshl_b32 s3, s3, 7")
        a(f"s_add_u32 s3, s3, {TS_OFF}")
        a("s_mov_b64 exec, 1")
        a("v_mov_b32 v2, 0")
        for i in range(18):
            a(f"v_mov_b32 v4, s{66+2*i}")
            a(f"buffer_store_dword v4, v2, {sr(WS)}, s3 offen offset:{4*i}")
            a("s_nop 1")
        a("s_waitcnt vmcnt(0)")

X, W, WO, OUT, DBG, WS, KVS = 16, 20, 24, 28, 32, 36, 40
sH, sB, sW, sT = 44, 45, 46, 47
sKC, sXB, sWB, sXM, sWM = 48, 49, 50, 51, 52
sRDY, sTODO, sAV, sRET = 48, 49, 50, 64
sA, sBb = 53, 54
sKV, sIT, sWQ, sWoS, sCNT = 55, 56, 57, 58, 59
sKQ, sTAG = 60, 61
WQS = KVS
sT3, sCS4 = 62, 63
sS0, sS1 = 51, 52
L_WKV, L_WQ, L_XR = 0, 57344, 86016
L_WO, L_CMB = 0, 114688
LDS_BYTES = 163840
vXR = [2, 3, 4, 5]
vWR = [6, 7]
vQR, vOne, vFl, vFl2, vP1, vMk = 8, 9, 10, 11, 12, 13
vKo, vV0, vV1 = 14, 16, 17
vT = [18, 19, 20, 21, 22, 23]
A0, A1 = 24, 40
AQ = A0
XF = 56
WF = 168
PK = 200
Q, S0, P, KV, O = 40, 72, 104, 112, 176
S = [S0, S0 + 16]

def decode_hb(a):
    nhg = 16 >> MAP
    lg = int(math.log2(nhg))
    a(f"s_and_b32 s{sH}, s2, {nhg-1}")
    a(f"s_lshl_b32 s{sH}, s{sH}, {MAP}")
    a(f"s_lshr_b32 s3, s2, 3")
    a(f"s_and_b32 s{sB}, s3, {(1<<MAP)-1}")
    a(f"s_add_u32 s{sH}, s{sH}, s{sB}")
    a(f"s_lshr_b32 s3, s3, {MAP}")
    a(f"s_and_b32 s{sB}, s2, 7")
    a(f"s_lshr_b32 s{sB}, s{sB}, {lg}")
    a(f"s_mul_i32 s{sB}, s{sB}, {32>>MAP}")
    a(f"s_add_u32 s{sB}, s{sB}, s3")
    if BAL:
        a(f"s_lshr_b32 s3, s{sH}, 3")
        a(f"s_sub_u32 s{sBb}, s{sH}, s3")
        a("s_add_u32 s3, s3, 14")
        a(f"s_and_b32 s{sH}, s{sH}, 7")
        a(f"s_cmp_eq_u32 s{sH}, 7")
        a(f"s_cselect_b32 s{sH}, s3, s{sBb}")

def mfma(a, d, x, y, c):
    a(f"v_mfma_f32_32x32x16_bf16 {d}, {x}, {y}, {c}")

vR = 252
def flag_read(a, vaddr, off=0):
    a(f"v_mov_b32 v{vR}, 0")
    a(f"v_mov_b32 v{vR+1}, 0")
    a(f"buffer_atomic_or_x2 v[{vR}:{vR+1}], v{vaddr}, {sr(WS)}, 0 offen offset:{off} sc0 sc1")

def flag_bits(a):
    a(f"v_cmp_eq_u32 vcc, s{sTAG}, v{vR+1}")
    a("s_nop 1")
    a(f"v_cndmask_b32 v{vR}, 0, v{vR}, vcc")

def poll(a, label, vaddr, lo, hi, smask, off=0):
    a(f"s_mov_b32 s{sCNT}, 0x100000")
    set_exec(a, lo, hi)
    a(f"s_branch {label}_in")
    a.lab(label)
    if SLEEP: a(f"s_sleep {SLEEP}")
    a.lab(label + "_in")
    flag_read(a, vaddr, off)
    a(f"s_sub_u32 s{sCNT}, s{sCNT}, 1")
    a(f"s_cbranch_scc1 {label}_done")
    a("s_waitcnt vmcnt(0)")
    flag_bits(a)
    a(f"v_and_b32 v{vR}, {smask}, v{vR}")
    a(f"v_cmp_ne_u32 vcc, {smask}, v{vR}")
    a(f"s_cbranch_vccnz {label}")
    a.lab(label + "_done")
    set_exec(a, HI, HI)

def flag_set(a, vaddr, sbit, lo):
    a(f"s_lshl_b32 s3, 1, s{sbit}")
    a("v_mov_b32 v250, s3")
    a("v_mov_b32 v251, 0")
    set_exec(a, lo, 0)
    a(f"buffer_atomic_or_x2 v[250:251], v{vaddr}, {sr(WS)}, 0 offen sc0 sc1")
    set_exec(a, HI, HI)

def flag_check(a, label, vaddr, sbit, lo, wait):
    a(f"s_mov_b32 s{sCNT}, 0x100000")
    a(f"s_waitcnt vmcnt({wait})")
    a.lab(label)
    set_exec(a, lo, 0)
    a(f"v_cmp_ne_u32 vcc, s{sTAG}, v251")
    set_exec(a, HI, HI)
    a(f"s_cbranch_vccnz {label}_again")
    a.lab(label + "_ok")
    RETRY.append((label, vaddr, sbit, lo))
RETRY = []
def flag_retries(a):
    for label, vaddr, sbit, lo in RETRY:
        a.lab(label + "_again")
        a(f"s_sub_u32 s{sCNT}, s{sCNT}, 1")
        a(f"s_cbranch_scc1 {label}_ok")
        a("s_sleep 4")
        flag_set(a, vaddr, sbit, lo)
        a("s_waitcnt vmcnt(0)")
        a(f"s_branch {label}")

def kv_poll_addr(a, vd, t0):
    a(f"s_mul_i32 s4, s{sH}, 56")
    a("s_and_b32 s5, s4, 0xfffffff0")
    a(f"v_mov_b32 v{t0}, s5")
    a("s_add_u32 s5, s5, 62")
    a(f"v_writelane_b32 v{t0}, s5, 1")
    a("s_add_u32 s5, s4, 896")
    a(f"v_writelane_b32 v{t0}, s5, 2")
    a("s_add_u32 s5, s4, 950")
    a(f"v_writelane_b32 v{t0}, s5, 3")
    a(f"v_lshrrev_b32 v{t0}, 7, v{t0}")
    a(f"v_lshlrev_b32 v{t0}, {FSH+4}, v{t0}")
    a(f"s_and_b32 s3, s{sH}, 3")
    a(f"s_lshl2_add_u32 s3, s3, s{sW}")
    a(f"s_lshl_b32 s3, s3, {FSH}")
    a(f"s_add_u32 s3, s3, {FL_OFF}")
    a(f"v_add_u32 v{vd}, s3, v{t0}")

def mask_addr(a, vd):
    a(f"s_add_u32 s3, s{sW}, 3")
    a("s_and_b32 s3, s3, 3")
    a("s_mul_i32 s3, s3, 12288")
    a(f"s_add_u32 s3, s3, {L_CMB + 8192}")
    a(f"v_mov_b32 v{vd}, s3")

def helper(a, ts):
    vX = [2, 3, 4, 5]
    vW0, vW1, vWq = 6, 7, 8
    vZ, vOn, vP, vM, vWo, vF = 9, 10, 11, 12, 13, 14
    a("v_lshrrev_b32 v7, 3, v0")
    a("v_mul_u32_u24 v2, 896, v7")
    a("v_and_b32 v6, 7, v0")
    a("v_lshrrev_b32 v4, 4, v0")
    a("v_xor_b32 v3, v6, v4")
    a("v_lshl_add_u32 v2, v3, 4, v2")
    a("v_xor_b32 v3, 64, v2")
    a("v_add_u32 v3, 6144, v3")
    a("v_and_b32 v4, 1, v4")
    a("v_lshlrev_b32 v4, 2, v4")
    a("v_xor_b32 v6, v6, v4")
    a("v_mul_u32_u24 v7, 2688, v7")
    a(f"v_lshl_add_u32 v{vW0}, v6, 4, v7")
    a(f"v_add_u32 v{vW1}, {8*2688-1024}, v{vW0}")
    a("v_add_u32 v4, 12288, v2")
    a("v_add_u32 v5, 12288, v3")
    a(f"s_mul_i32 s{sXB}, s{sT}, 28672")
    a(f"s_mul_i32 s{sWQ}, s{sW}, 43008")
    a(f"s_lshl_b32 s{sWB}, s{sH}, 7")
    a(f"s_add_u32 s{sWB}, s{sWB}, s{sWQ}")
    a(f"s_add_u32 s{sWB}, s{sWB}, 896")
    a(f"s_lshl_b32 s{sXM}, s{sW}, 14")
    a(f"s_add_u32 s{sXM}, s{sXM}, {L_XR}")
    a(f"s_lshl_b32 s{sWM}, s{sW}, 11")
    a(f"s_lshl_b32 s3, s{sB}, 1")
    a(f"s_add_u32 s3, s3, s{sH}")
    a(f"s_mul_i32 s{sA}, s3, 37")
    a(f"s_lshr_b32 s{sA}, s{sA}, 8")
    a(f"s_mul_i32 s{sA}, s{sA}, 7")
    a(f"s_sub_u32 s{sKC}, s3, s{sA}")
    a(f"s_mov_b32 s{sKQ}, s{sKC}")
    a(f"s_mov_b32 s{X+2}, {X_BYTES}")
    a(f"s_mov_b32 s{X+3}, 0x20000")
    a(f"s_cmp_lt_u32 s{sH}, 14")
    a(f"s_cselect_b32 s{W+2}, {W_BYTES}, 0")
    a(f"s_mov_b32 s{W+3}, 0x20000")
    a("s_waitcnt lgkmcnt(0)")
    a(f"s_load_dword s{sTAG}, s[14:15], {EP_OFF}")
    a(f"s_mov_b32 s{X}, s4")
    a(f"s_and_b32 s{X+1}, s5, 0xffff")
    a(f"s_mov_b32 s{W}, s6")
    a(f"s_and_b32 s{W+1}, s7, 0xffff")
    def adv_kc():
        a(f"s_add_u32 s{sKC}, s{sKC}, 1")
        a(f"s_cmp_eq_u32 s{sKC}, 7")
        a(f"s_cselect_b32 s{sKC}, 0, s{sKC}")
    def issue(c):
        a(f"s_mul_i32 s{sBb}, s{sKC}, 172032")
        a(f"s_add_u32 m0, s{sWM}, {L_WKV + c*8192}")
        a(f"s_add_u32 s{sBb}, s{sBb}, s{sWB}")
        a(f"buffer_load_dwordx4 v{vW0}, {sr(W)}, s{sBb} offen lds")
        a(f"buffer_load_dwordx4 v{vW1}, {sr(W)}, s{sBb} offen offset:1024 lds")
        a(f"s_lshl_b32 s{sA}, s{sKC}, 7")
        a(f"s_add_u32 m0, s{sXM}, {(c%4)*4096}")
        a(f"s_add_u32 s{sA}, s{sA}, s{sXB}")
        for q in range(4):
            a(f"buffer_load_dwordx4 v{vX[q]}, {sr(X)}, s{sA} offen offset:{1024*q} lds")
        adv_kc()
    if INV == 2:
        a("buffer_inv sc0 sc1")
    if INV == 3:
        a("buffer_inv sc1")
    for c in range(2): issue(c)
    ts("h_iss", grp=1)
    srd(a, WS, 14, 15, WS_BYTES)
    srd(a, WO, 8, 9, WO_BYTES)
    a("v_lshlrev_b32 v1, 4, v0")
    a("v_and_b32 v15, 3, v0")
    a(f"v_lshrrev_b32 v{vWq}, 2, v0")
    a(f"v_mul_u32_u24 v{vWq}, 2688, v{vWq}")
    a(f"v_lshl_add_u32 v{vWq}, v15, 4, v{vWq}")
    a(f"s_mul_i32 s3, s{sH}, 56")
    a("s_and_b32 s3, s3, 0xfffffff0")
    a(f"s_add_u32 s{sWQ}, s{sWQ}, s3")
    a(f"v_mov_b32 v{vZ}, 0")
    kv_poll_addr(a, vP, 16)
    mask_addr(a, vM)
    srd(a, WQS, 6, 7, W_BYTES)
    a(f"s_lshr_b32 s{sIT}, s{sWM}, 1")
    qn = [0]
    def issue_q():
        c = qn[0]; qn[0] += 1
        a(f"s_mul_i32 s{sBb}, s{sKQ}, 172032")
        a(f"s_add_u32 m0, s{sIT}, {L_WQ + c*4096}")
        a(f"s_add_u32 s{sBb}, s{sBb}, s{sWQ}")
        a(f"buffer_load_dwordx4 v{vWq}, {sr(WQS)}, s{sBb} offen lds")
        a(f"s_add_u32 s{sKQ}, s{sKQ}, 1")
        a(f"s_cmp_eq_u32 s{sKQ}, 7")
        a(f"s_cselect_b32 s{sKQ}, 0, s{sKQ}")
    order = [0]*6 + [1]*6
    for c in range(7):
        if c + 2 < 7:
            issue(c + 2); order += [c + 2] * 6
        for i in range(NQ[c]):
            issue_q(); order.append(-1)
        last = max(i for i, x in enumerate(order) if x == c)
        a(f"s_waitcnt vmcnt({len(order) - 1 - last})")
        ts(f"w{c}", grp=1)
        a("s_barrier")
    if NQ[7]:
        a("s_barrier")
        for i in range(NQ[7]): issue_q()
    a("s_waitcnt vmcnt(0) lgkmcnt(0)")
    ts("h_wq", grp=1)
    a("s_barrier")
    a(f"s_xor_b32 s{sTAG}, s{sTAG}, 0x5ac3a53c")
    def poll_mask():
        set_exec(a, "0xf", 0)
        flag_read(a, vP)
        a("s_waitcnt vmcnt(0)")
        flag_bits(a)
        a("s_nop 0")
        for i in range(4):
            a(f"v_readlane_b32 s{4+i}, v{vR}, {i}")
        a("s_and_b32 s4, s4, s5")
        a("s_and_b32 s6, s6, s7")
        a("s_and_b32 s4, s4, s6")
        a("s_lshl_b32 s5, s4, 16")
        a("s_or_b32 s4, s4, s5")
        a(f"s_lshr_b32 s4, s4, s{sB}")
        a("s_and_b32 s4, s4, 0xffff")
        a("s_cmp_eq_u32 s4, 0xffff")
        a("s_cselect_b32 s4, 0x7ffff, s4")
        a("v_mov_b32 v15, s4")
        a(f"ds_write_b32 v{vM}, v15")
        set_exec(a, HI, HI)
    if PREPOLL:
        a(f"s_sleep {PREPOLL}")
        poll_mask()
    else:
        a(f"ds_write_b32 v{vM}, v{vZ}")
        a("s_mov_b32 s4, 0")
    a("s_waitcnt lgkmcnt(0)")
    a("s_barrier")
    a(f"s_mov_b32 s{sCNT}, 0x100000")
    a.lab("L_hpoll")
    a("s_cmp_eq_u32 s4, 0x7ffff")
    a("s_cbranch_scc1 L_hpoll_done")
    a(f"s_sub_u32 s{sCNT}, s{sCNT}, 1")
    a("s_cbranch_scc1 L_hpoll_giveup")
    poll_mask()
    if SLEEP: a(f"s_sleep {SLEEP}")
    a("s_branch L_hpoll")
    a.lab("L_hpoll_giveup")
    a("v_mov_b32 v15, 0x7ffff")
    a(f"ds_write_b32 v{vM}, v15")
    a.lab("L_hpoll_done")
    ts("h_all", grp=1)
    a("v_lshrrev_b32 v16, 4, v0")
    a(f"v_mul_u32_u24 v{vWo}, 896, v16")
    a("v_lshlrev_b32 v16, 2, v16")
    a("v_and_b32 v17, 15, v0")
    a("v_xor_b32 v16, v16, v17")
    a(f"v_lshl_add_u32 v{vWo}, v16, 4, v{vWo}")
    a(f"s_mul_i32 s{sWoS}, s{sCS4}, 224")
    a(f"s_and_b32 s{sWoS}, s{sWoS}, 0xffffffc0")
    a(f"s_mul_i32 s3, s{sW}, {28*3584}")
    a(f"s_add_u32 s{sWoS}, s{sWoS}, s3")
    a(f"s_mul_i32 s3, s{sW}, {28*1024}")
    a(f"s_add_u32 m0, s3, {L_WO}")
    a(f"s_mov_b32 s{sIT}, 28")
    a("s_sleep 16")
    a.lab("L_wo")
    a("s_sleep 3")
    a(f"buffer_load_dwordx4 v{vWo}, {sr(WO)}, s{sWoS} offen lds")
    a("s_add_u32 m0, m0, 1024")
    a(f"s_add_u32 s{sWoS}, s{sWoS}, 3584")
    a(f"s_sub_u32 s{sIT}, s{sIT}, 1")
    a(f"s_cmp_lg_u32 s{sIT}, 0")
    a("s_cbranch_scc1 L_wo")
    a(f"s_lshl_b32 s3, s{sT3}, {FSH}")
    a(f"s_add_u32 s3, s3, {FL_OFF + (256 << FSH)}")
    a(f"v_mov_b32 v{vP}, s3")
    a(f"s_lshl_b32 s4, s{sW}, 2")
    a("s_lshl_b32 s4, 15, s4")
    a(f"s_lshl_b32 s3, s{sT3}, 2")
    a(f"s_add_u32 s3, s3, s{sW}")
    a("s_lshl_b32 s3, s3, 13")
    a(f"s_add_u32 s3, s3, {O_OFF}")
    a(f"s_add_u32 s{sA}, s3, 4096")
    a(f"s_lshl_b32 s{sBb}, s{sW}, 13")
    a(f"s_add_u32 s{sBb}, s{sBb}, {L_CMB}")
    a(f"v_add_u32 v{vM}, s{sBb}, v1")
    a("s_waitcnt vmcnt(0) lgkmcnt(0)")
    ts("h_wo", grp=1)
    a("s_barrier")
    poll(a, "L_poll2", vP, 1, 0, "s4")
    ts("h_poll2", grp=1)
    for f in range(8):
        a(f"buffer_load_dwordx4 {vr(32+4*f,4)}, v1, {sr(WS)}, {'s3' if f < 4 else 's%d' % sA} offen offset:{1024*(f%4)} sc1")
    a("s_barrier")
    for f in range(8):
        a(f"s_waitcnt vmcnt({7-f})")
        a(f"ds_write_b128 v{vM}, {vr(32+4*f,4)} offset:{1024*f}")
    a("s_waitcnt lgkmcnt(0)")
    ts("h_stage", grp=1)
    a("s_barrier")
    a(f"s_or_b32 s3, s2, s{sW}")
    a("s_cmp_lg_u32 s3, 0")
    a("s_cbranch_scc1 L_noep")
    a(f"v_lshlrev_b32 v{vP}, {FSH}, v0")
    a(f"v_add_u32 v{vP}, {FL_OFF + (256 << FSH)}, v{vP}")
    poll(a, "L_pollep", vP, HI, HI, "0xffff")
    a(f"s_xor_b32 s3, s{sTAG}, 0x5ac3a53c")
    a("s_add_u32 s3, s3, 0x9e3779b9")
    a("v_mov_b32 v15, s3")
    a(f"v_mov_b32 v{vP}, {EP_OFF}")
    set_exec(a, 1, 0)
    a(f"buffer_store_dword v15, v{vP}, {sr(WS)}, 0 offen sc1")
    a.lab("L_noep")
    if INV == 1: a("buffer_inv sc0 sc1")
    if TS and TSG == 1: ts.dump()
    a("s_endpgm")

def kernel(a):
    name = NAME + "_kernel"
    a.raw(f".globl {name}")
    a.raw(".p2align 8")
    a.raw(f".type {name},@function")
    a.lab(name)
    ts = Stamps(a)
    ts("start")
    a("s_cmp_ge_u32 s2, 256")
    a("s_cbranch_scc1 L_end")
    a("s_load_dwordx8 s[4:11], s[0:1], 0")
    a("s_load_dwordx4 s[12:15], s[0:1], 32")
    a("v_lshrrev_b32 v1, 6, v0")
    a("v_and_b32 v0, 63, v0")
    a(f"v_readfirstlane_b32 s{sA}, v1")
    decode_hb(a)
    a(f"s_and_b32 s{sW}, s{sA}, 3")
    a(f"s_lshl_b32 s{sT}, s{sB}, 2")
    a(f"s_and_b32 s{sT3}, s{sH}, 3")
    a(f"s_add_u32 s{sT3}, s{sT3}, s{sT}")
    a(f"s_add_u32 s{sT}, s{sT}, s{sW}")
    a(f"s_lshr_b32 s{sCS4}, s{sH}, 2")
    a(f"s_cmp_lt_u32 s{sA}, 4")
    a("s_cbranch_scc1 L_compute")
    helper(a, ts)
    a.lab("L_compute")
    t0, t1, t2, t3, t4, t5 = vT
    a("s_waitcnt lgkmcnt(0)")
    srd(a, WS, 14, 15, WS_BYTES)
    a(f"s_load_dword s{sTAG}, s[14:15], {EP_OFF}")
    if TS: srd(a, DBG, 12, 13, 256)
    a("v_lshlrev_b32 v1, 4, v0")
    a("v_and_b32 v15, 3, v0")
    a("v_and_b32 v2, 31, v0")
    a(f"v_lshlrev_b32 v{vV0}, 4, v2")
    a("v_lshlrev_b32 v2, 7, v2")
    a("v_bfe_u32 v3, v0, 1, 3")
    a("v_lshrrev_b32 v4, 5, v0")
    a(f"v_mul_u32_u24 v{vV1}, {V_PLANE}, v4")
    a(f"v_add_u32 v{vV0}, v{vV0}, v{vV1}")
    a("v_xor_b32 v3, v3, v4")
    a("v_lshl_add_u32 v2, v3, 4, v2")
    a(f"s_lshl_b32 s3, s{sW}, 14")
    a(f"s_add_u32 s3, s3, {L_XR}")
    a("v_add_u32 v2, s3, v2")
    a("v_xor_b32 v3, 32, v2")
    a("v_xor_b32 v5, 96, v2")
    a(f"v_bfe_u32 v{t0}, v0, 2, 2")
    a(f"v_lshl_add_u32 v{t1}, v4, 3, v{t0}")
    a("v_xor_b32 v4, 64, v2")
    a(f"v_bfe_u32 v{t2}, v0, 4, 1")
    a(f"v_lshlrev_b32 v{t2}, 5, v{t2}")
    a(f"v_lshrrev_b32 v{t3}, 1, v15")
    a(f"v_and_b32 v{t4}, 1, v15")
    a(f"v_lshl_add_u32 v{t3}, v{t4}, 1, v{t3}")
    a(f"v_lshl_add_u32 v{t3}, v{t3}, 3, v{t2}")
    a(f"v_lshl_add_u32 v{t4}, v15, 3, v{t2}")
    a(f"v_lshl_add_u32 v{vQR}, v{t1}, 6, v{t3}")
    a(f"v_add_u32 v{vQR}, {L_WQ}, v{vQR}")
    a(f"s_cmp_lt_u32 s{sH}, 7")
    a("s_cselect_b64 vcc, -1, 0")
    a(f"v_cndmask_b32 v{t3}, v{t4}, v{t3}, vcc")
    a(f"v_lshrrev_b32 v{t0}, 1, v{t0}")
    a(f"v_lshl_add_u32 v{t3}, v{t0}, 6, v{t3}")
    a(f"v_lshl_add_u32 v{vWR[0]}, v{t1}, 7, v{t3}")
    a(f"v_xor_b32 v{vWR[1]}, 64, v{vWR[0]}")
    mask_addr(a, vMk)
    a(f"s_lshl_b32 s3, s{sH}, 4")
    a(f"s_add_u32 s3, s3, s{sW}")
    a(f"v_lshl_add_u32 v{vP1}, v0, 2, s3")
    a(f"v_lshlrev_b32 v{vP1}, {FSH}, v{vP1}")
    a(f"v_add_u32 v{vP1}, {FL_OFF}, v{vP1}")
    a(f"s_lshl_b32 s{sA}, s{sT}, {FSH}")
    a(f"s_add_u32 s{sA}, s{sA}, {FL_OFF + (256 << FSH)}")
    a(f"v_mov_b32 v{vFl2}, s{sA}")
    a(f"v_lshrrev_b32 v{vFl}, 3, v0")
    a(f"v_mul_u32_u24 v{vFl}, {V_PLANE}, v{vFl}")
    a(f"v_and_b32 v{t0}, 7, v0")
    a(f"v_lshl_add_u32 v{vFl}, v{t0}, 4, v{vFl}")
    a(f"v_cmp_eq_u32 vcc, 0, v{t0}")
    a(f"v_mov_b32 v{t1}, 0x3f803f80")
    a("s_nop 0")
    for r in range(4):
        a(f"v_cndmask_b32 v{216+r}, 0, v{t1}, vcc")
    srd(a, OUT, 10, 11, OUT_BYTES)
    srd(a, KVS, 14, 15, KV_BYTES)
    a("s_waitcnt lgkmcnt(0)")
    a(f"s_xor_b32 s{sTAG}, s{sTAG}, 0x5ac3a53c")
    a("v_mov_b32 v250, 0")
    a(f"v_mov_b32 v251, s{sTAG}")
    a(f"s_cmp_ge_u32 s{sB}, 4")
    a("s_cbranch_scc1 L_noopen1")
    a(f"s_lshl_b32 exec_lo, 1, s{sB}")
    a("s_mov_b32 exec_hi, 0")
    a(f"buffer_atomic_swap_x2 v[250:251], v{vP1}, {sr(WS)}, 0 offen sc1")
    a.lab("L_noopen1")
    a(f"s_cmp_lg_u32 s{sH}, 15")
    a("s_cbranch_scc1 L_noopen2")
    set_exec(a, 1, 0)
    a(f"buffer_atomic_swap_x2 v[250:251], v{vFl2}, {sr(WS)}, 0 offen sc1")
    a.lab("L_noopen2")
    set_exec(a, HI, HI)
    def rd(c, i):
        a(f"ds_read_b128 {vr(XF+16*c+4*i,4)}, v{vXR[i]} offset:{(c%4)*4096}")
        for p in range(2):
            for r in range(2):
                a(f"ds_read_b64_tr_b16 {vr(WF+8*i+4*p+2*r,2)}, v{vWR[p]} offset:{L_WKV + (c*4+i)*2048 + r*512}")
    def phase1a(kind):
        def mm(c, i):
            x = vr(XF+16*c+4*i, 4)
            first = (c == 0 and i == 0)
            for p, acc in ((0, A0), (1, A1)):
                w = vr(WF+8*i+4*p, 4)
                if kind == "K": mfma(a, vr(acc,16), w, x, "0" if first else vr(acc,16))
                else: mfma(a, vr(acc,16), x, w, "0" if first else vr(acc,16))
        a(f"s_lshl_b32 s{sKV}, s{sT}, 16")
        if kind == "K":
            a(f"s_lshl_b32 s{sS0}, s{sH}, 12")
            a(f"s_add_u32 s{sS0}, s{sS0}, s{sKV}")
        else:
            a(f"s_mul_i32 s{sS0}, s{sH}, {V_LINE}")
            a(f"s_add_u32 s{sS0}, s{sS0}, s{sKV}")
            a(f"s_add_u32 s{sS0}, s{sS0}, {V_BASE - 7*V_LINE}")
            a(f"s_add_u32 s{sS1}, s{sS0}, {2*V_PLANE}")
            a(f"s_cmp_lt_u32 s{sH}, 14")
            a(f"s_cselect_b32 s{KVS+2}, {KV_BYTES}, 0")
        def prewrite():
            if kind == "K":
                a("v_lshlrev_b32 v248, 7, v0")
                set_exec(a, HI, 0)
            else:
                a("v_mul_u32_u24 v248, 0x1c72, v0")
                a("v_lshrrev_b32 v248, 16, v248")
                a(f"v_mul_u32_u24 v248, {V_PLANE - 9*128}, v248")
                a("v_lshl_add_u32 v248, v0, 7, v248")
                set_exec(a, HI, "0xf")
            a("v_mov_b32 v249, 0")
            if PW == 1: a(f"buffer_store_dword v249, v248, {sr(KVS)}, s{sS0} offen sc1")
            if PW == 2: a(f"buffer_atomic_or v249, v248, {sr(KVS)}, s{sS0} offen sc1")
            set_exec(a, HI, HI)
        if PW and PWAT < 0: prewrite()
        for c in range(7):
            a("s_barrier")
            if c == 0: ts("c0")
            if PW and PWAT == c: prewrite()
            rd(c, 0); rd(c, 1)
            if c > 0: mm(c-1, 2)
            rd(c, 2)
            if c > 0: mm(c-1, 3)
            a("s_waitcnt lgkmcnt(10)")
            rd(c, 3)
            mm(c, 0)
            a("s_waitcnt lgkmcnt(10)")
            mm(c, 1)
            a("s_waitcnt lgkmcnt(0)")
        mm(6, 2); mm(6, 3)
        ts("kv_mm")
        if PW: a("s_waitcnt vmcnt(0)")
        if kind == "K":
            a("s_nop 7")
            a("s_nop 2")
        else:
            set_exec(a, HI, 0)
            a(f"buffer_store_dwordx4 v[216:219], v{vFl}, {sr(KVS)}, s{sS0} offen offset:1024 sc1")
            set_exec(a, HI, HI)
            a("s_nop 6")
        for p, acc in ((0, A0), (1, A1)):
            for f in range(2):
                for i in range(4):
                    a(f"v_cvt_pk_bf16_f32 v{PK+8*p+4*f+i}, v{acc+8*f+2*i}, v{acc+8*f+2*i+1}")
                d = vr(PK+8*p+4*f, 4)
                if kind == "K":
                    a(f"buffer_store_dwordx4 {d}, v1, {sr(KVS)}, s{sS0} offen offset:{2048*p+1024*f} {STF}")
                else:
                    a(f"buffer_store_dwordx4 {d}, v{vV0}, {sr(KVS)}, s{sS0 if f == 0 else sS1} offen offset:{512*p} {STF}")
    a(f"s_cmp_lt_u32 s{sH}, 7")
    a("s_cbranch_scc0 L_vline")
    phase1a("K")
    a("s_branch L_q")
    a.lab("L_vline")
    phase1a("V")
    a.lab("L_q")
    ts("kv_st")
    if NQ[7]: a("s_barrier")
    a(f"s_mul_i32 s4, s{sH}, 56")
    a("s_lshr_b32 s5, s4, 4")
    a("s_lshl_b32 s5, s5, 9")
    a(f"v_add_u32 v{vKo}, s5, v1")
    a("s_lshr_b32 s4, s4, 1")
    a(f"v_and_b32 v{t0}, 31, v0")
    a(f"v_add_u32 v{t1}, s4, v{t0}")
    a(f"v_lshrrev_b32 v{t2}, 6, v{t1}")
    a(f"v_lshl_add_u32 v{t1}, v{t2}, 3, v{t1}")
    a("s_lshr_b32 s5, s4, 6")
    a("s_mul_i32 s5, s5, 72")
    a("s_add_u32 s5, s5, 36")
    a(f"v_add_u32 v{t2}, s5, v{t0}")
    a(f"v_cmp_gt_u32 vcc, 28, v{t0}")
    a(f"v_add_u32 v{vV1}, {V_BASE}, v{vV1}")
    a("s_nop 0")
    a(f"v_cndmask_b32 v{t1}, v{t2}, v{t1}, vcc")
    a(f"v_lshl_add_u32 v{vV0}, v{t1}, 4, v{vV1}")
    a(f"v_add_u32 v{vV1}, {2*V_PLANE}, v{vV0}")
    for r in range(220, 240):
        a(f"v_mov_b32 v{r}, 0")
    a(f"s_mov_b32 s{KVS+2}, {KV_BYTES}")
    a("s_barrier")
    ts("b7")
    def rdq(s):
        for r in range(2):
            a(f"ds_read_b64_tr_b16 {vr(WF+4*(s%8)+2*r,2)}, v{vQR} offset:{s*1024 + r*256}")
    for s in range(6): rdq(s)
    for s in range(28):
        if s + 6 < 28:
            rdq(s + 6)
            a("s_waitcnt lgkmcnt(12)")
        else:
            a(f"s_waitcnt lgkmcnt({2*(27-s)})")
        mfma(a, vr(AQ,16), vr(WF+4*(s%8),4), vr(XF+4*s,4), "0" if s == 0 else vr(AQ,16))
        if s + 1 == FLAGPOS:
            a("s_waitcnt vmcnt(0)")
            flag_set(a, vP1, sB, "0xf")
            ts("kv_flag")
    if not opt("probe", 0): ts("q_mm")
    a(f"s_mov_b32 s3, {f32bits(QSCALE):#x}")
    a(f"s_lshl_b32 s{sA}, s{sW}, 11")
    a(f"s_add_u32 s{sA}, s{sA}, {L_CMB}")
    a(f"v_add_u32 v{t0}, s{sA}, v1")
    for r in range(176, 184):
        a(f"v_mov_b32 v{r}, 0")
    for r in range(16):
        a(f"v_mul_f32 v{AQ+r}, s3, v{AQ+r}")
    Q3 = Q + 24
    for i in range(8):
        a(f"v_cvt_pk_bf16_f32 v{Q3+i}, v{AQ+2*i}, v{AQ+2*i+1}")
    a(f"s_bitcmp1_b32 s{sH}, 0")
    a("s_cselect_b32 exec_lo, -1, 0")
    a("s_mov_b32 exec_hi, 0")
    a(f"v_mov_b32 v{Q3}, 0")
    a(f"v_mov_b32 v{Q3+1}, 0")
    a("s_cselect_b32 exec_hi, 0, -1")
    a("s_mov_b32 exec_lo, 0")
    a(f"v_mov_b32 v{Q3+6}, 0")
    a(f"v_mov_b32 v{Q3+7}, 0")
    set_exec(a, HI, HI)
    a(f"ds_write_b128 v{t0}, {vr(Q3,4)}")
    a(f"ds_write_b128 v{t0}, {vr(Q3+4,4)} offset:1024")
    for i in range(3):
        a(f"s_add_u32 s{sA}, s{sW}, {1+i}")
        a(f"s_and_b32 s{sA}, s{sA}, 3")
        a(f"s_lshl_b32 s{sA}, s{sA}, 11")
        a(f"s_add_u32 s{sA}, s{sA}, {L_CMB}")
        a(f"v_add_u32 v{vT[1+i]}, s{sA}, v1")
    for r in range(4):
        a(f"v_mov_b32 v{KV+48+12+r}, 0")
    a(f"s_mov_b32 s{sRDY}, 0")
    a(f"s_mov_b32 s{sTODO}, 0x7ffff")
    a("s_waitcnt lgkmcnt(0)")
    a("s_barrier")
    for i in range(3):
        a(f"ds_read_b128 {vr(Q+8*i,4)}, v{vT[1+i]}")
        a(f"ds_read_b128 {vr(Q+8*i+4,4)}, v{vT[1+i]} offset:1024")
    ts("q_done")
    flag_check(a, "L_fc1", vP1, sB, "0xf", 0)
    def ldk(slot):
        for f in range(2):
            a(f"buffer_load_dwordx4 {vr(KV+16*slot+4*f,4)}, v{vKo}, {sr(KVS)}, s{sKV} offen offset:{1024*f} {LDF}")
    def ldv(slot):
        a(f"buffer_load_dwordx4 {vr(KV+16*slot+8,4)}, v{vV0}, {sr(KVS)}, s{sKV} offen {LDF}")
        a(f"buffer_load_dwordx4 {vr(KV+16*slot+12,4)}, v{vV1}, {sr(KVS)}, s{sKV} offen {LDF}")
    npick = [0]
    def pick_ops():
        n = npick[0]; npick[0] += 1
        def p0(): a(f"s_and_b32 s{sAV}, s{sRDY}, s{sTODO}")
        def p1():
            a(f"s_cbranch_scc0 L_slow{n}")
            a.lab(f"L_back{n}")
        def p2(): a(f"s_ff1_i32_b32 s{sAV}, s{sAV}")
        def p3(): a(f"s_bitset0_b32 s{sTODO}, s{sAV}")
        def p4(): a(f"s_lshl2_add_u32 s{sBb}, s{sAV}, s{sT}")
        def p5(): a(f"s_and_b32 s{sBb}, s{sBb}, 63")
        def p6(): a(f"s_and_b32 s{sAV}, s{sAV}, 16")
        def p7(): a(f"s_lshl2_add_u32 s{sBb}, s{sAV}, s{sBb}")
        def p8(): a(f"s_lshl_b32 s{sKV}, s{sBb}, 16")
        return [p0, p1, p2, p3, p4, p5, p6, p7, p8]
    for sl in range(3):
        for f in pick_ops(): f()
        ldk(sl); ldv(sl)
        if sl == 0: ts("pick0")
    for f in pick_ops(): f()
    for r in range(184, 220):
        a(f"v_mov_b32 v{r}, 0")
    for r in range(4):
        a(f"v_mov_b32 v{P+4+r}, 0")
    a(f"s_mov_b32 s{sIT}, 3")
    vC = vT[1:4]; vCR = vT[4]
    a("s_waitcnt lgkmcnt(0)")
    for i in range(3):
        a(f"s_add_u32 s3, s{sW}, {1+i}")
        a("s_and_b32 s3, s3, 3")
        a("s_mul_i32 s3, s3, 12288")
        a(f"s_add_u32 s3, s3, {L_CMB + 4096*i}")
        a(f"v_add_u32 v{vC[i]}, s3, v1")
    a(f"s_mul_i32 s3, s{sW}, 12288")
    a(f"s_add_u32 s3, s3, {L_CMB}")
    a(f"v_add_u32 v{vCR}, s3, v1")
    a("s_waitcnt vmcnt(8)")
    ts("kv0")
    def mS(part, t):
        slot = (t // 4) % 4; qt = t % 4
        d = vr(S[t % 2], 16)
        mfma(a, d, vr(KV+16*slot+4*part,4), vr(Q+8*qt+4*part,4), "0" if part == 0 else d)
    def mPV(part, t):
        slot = (t // 4) % 4; qt = t % 4
        d = vr(O + 16*qt, 16)
        mfma(a, d, vr(KV+16*slot+8+4*part,4), vr(P+4*part,4), d)
    def EC(t, g):
        s = S[t % 2] + 4*g
        for r in range(4):
            a(f"v_exp_f32 v{s+r}, v{s+r}")
        a(f"v_cvt_pk_bf16_f32 v{P+2*g}, v{s}, v{s+1}")
        a(f"v_cvt_pk_bf16_f32 v{P+2*g+1}, v{s+2}, v{s+3}")
    mS(0, 0); mS(1, 0)
    ts("att0", cyc=True)
    a("s_nop 7")
    a("s_nop 3")
    a.raw(".p2align 6")
    a.lab("L_loop")
    def tile(j, last=False):
        fs = [None] * 16
        if not last:
            fs[11] = lambda: a("s_waitcnt vmcnt(8)")
            po = pick_ops()
            for k, f in enumerate(po): fs[2 + k] = f
            if j == 2:
                fs[14] = lambda: a(f"s_sub_u32 s{sIT}, s{sIT}, 1")
        else:
            def wr(i, g):
                return lambda: a(f"ds_write_b128 v{vC[i]}, {vr(O+16*i+4*g,4)} offset:{1024*g}")
            for i in range(3):
                fs[4*(i+1) + 3] = wr(i, 0)
                if i < 2:
                    for g in range(1, 4): fs[4*(i+2) + g - 1] = wr(i, g)
        for st in range(4):
            t = 4*j + st
            f = fs[4*st:4*st+4]
            if not (last and st == 3): mS(0, t+1)
            if st == 0 and not last: ldk((j + 3) % 4)
            if f[0]: f[0]()
            EC(t, 0)
            mPV(1, (t - 1) % 16)
            if st == 0 and not last: ldv((j + 3) % 4)
            if f[1]: f[1]()
            EC(t, 1)
            if not (last and st == 3): mS(1, t+1)
            if f[2]: f[2]()
            EC(t, 2)
            mPV(0, t)
            if f[3]: f[3]()
            EC(t, 3)
    for j in range(3): tile(j)
    a("s_cbranch_scc1 L_last")
    tile(3)
    a("s_branch L_loop")
    a.lab("L_last")
    tile(3, last=True)
    a(f"ds_write_b128 v{vC[2]}, {vr(O+32+4,4)} offset:1024")
    a(f"ds_write_b128 v{vC[2]}, {vr(O+32+8,4)} offset:2048")
    mPV(1, 15)
    a(f"ds_write_b128 v{vC[2]}, {vr(O+32+12,4)} offset:3072")
    ts("att1", cyc=True)
    ts("att1")
    a(f"s_mov_b32 s4, {f32bits(2.0**62):#x}")
    a(f"s_mov_b32 s5, {f32bits(2.0**-62):#x}")
    a("s_waitcnt vmcnt(0) lgkmcnt(0)")
    a("s_barrier")
    R = O
    F = O + 48
    for i in range(3):
        for g in range(4):
            a(f"ds_read_b128 {vr(R+16*i+4*g,4)}, v{vCR} offset:{4096*i+1024*g}")
    a(f"s_lshl_b32 s3, s{sT}, 4")
    a(f"s_add_u32 s3, s3, s{sH}")
    a("s_lshl_b32 s3, s3, 11")
    a(f"s_add_u32 s3, s3, {O_OFF}")
    for i in range(3):
        a(f"s_waitcnt lgkmcnt({8-4*i})")
        for r in range(16):
            a(f"v_add_f32 v{F+r}, v{F+r}, v{R+16*i+r}")
    a(f"v_cmp_nge_f32 s[6:7], s4, v{F+12}")
    a(f"v_cmp_nle_f32 vcc, s5, v{F+12}")
    a("s_or_b64 s[6:7], s[6:7], vcc")
    a("s_cmp_lg_u32 s7, 0")
    a("s_cbranch_scc1 L_fallback")
    a.lab("L_norm")
    a(f"v_mov_b32 v{t0}, v{F+12}")
    a(f"v_mov_b32 v{t1}, v{F+12}")
    a("s_nop 1")
    a(f"v_permlane32_swap_b32 v{t0}, v{t1}")
    a("s_nop 1")
    a(f"v_rcp_f32 v{t1}, v{t1}")
    set_exec(a, 0, HI)
    a(f"v_mov_b32 v{F+12}, 0")
    set_exec(a, HI, HI)
    for r in range(16):
        a(f"v_mul_f32 v{F+r}, v{F+r}, v{t1}")
    PO = 240
    for i in range(8):
        a(f"v_cvt_pk_bf16_f32 v{PO+i}, v{F+2*i}, v{F+2*i+1}")
    a(f"buffer_store_dwordx4 {vr(PO,4)}, v1, {sr(WS)}, s3 offen sc1")
    a(f"buffer_store_dwordx4 {vr(PO+4,4)}, v1, {sr(WS)}, s3 offen offset:1024 sc1")
    ts("o_st")
    WOF, OF, ACC, D = 40, 168, 24, 232
    a(f"s_and_b32 s3, s{sCS4}, 1")
    a("s_lshl_b32 s3, s3, 5")
    a(f"s_mul_i32 s{sA}, s{sW}, 56")
    a(f"s_add_u32 s3, s3, s{sA}")
    a(f"v_bfe_u32 v{t0}, v0, 4, 1")
    a(f"v_lshlrev_b32 v{t0}, 5, v{t0}")
    a(f"v_and_b32 v{t1}, 3, v0")
    a(f"v_lshl_add_u32 v{t0}, v{t1}, 3, v{t0}")
    a(f"v_add_u32 v{t0}, s3, v{t0}")
    a(f"v_and_b32 v{t0}, 255, v{t0}")
    a(f"v_bfe_u32 v{t1}, v0, 2, 2")
    a(f"v_lshlrev_b32 v{t2}, 6, v{t1}")
    a(f"v_xor_b32 v{t0}, v{t0}, v{t2}")
    a(f"v_lshl_add_u32 v{t2}, v{t1}, 8, v{t0}")
    a(f"v_lshrrev_b32 v{t1}, 5, v0")
    a(f"v_lshl_add_u32 v{t0}, v{t1}, 10, v{t2}")
    a(f"v_add_u32 v{t1}, 0x10000, v{t0}")
    a(f"v_add_u32 v{t2}, 0x10000, v{t2}")
    def rdwo(hh):
        for u in range(2):
            for r in range(2):
                off = L_WO + (28*hh + 16*u + 8*r) * 256
                base = t0
                if off >= 0x10000:
                    off -= 0x10000; base = t1
                if hh == 15 and u == 1 and r == 1:
                    base = t2
                a(f"ds_read_b64_tr_b16 {vr(WOF+8*hh+4*u+2*r,2)}, v{base} offset:{off}")
    for hh in range(6): rdwo(hh)
    a("s_waitcnt vmcnt(0)")
    flag_set(a, vFl2, sH, 1)
    ts("o_flag")
    for hh in range(6, 16): rdwo(hh)
    a(f"v_add_u32 v{t3}, {L_CMB}, v1")
    a(f"v_and_b32 v{t4}, 31, v0")
    a(f"v_mul_u32_u24 v{t4}, 896, v{t4}")
    a(f"v_lshrrev_b32 v{t5}, 5, v0")
    a(f"v_lshl_add_u32 v{t4}, v{t5}, 4, v{t4}")
    a(f"s_mul_i32 s{sKV}, s{sT3}, 28672")
    a(f"s_lshl_b32 s{sBb}, s{sCS4}, 2")
    a(f"s_add_u32 s{sBb}, s{sBb}, s{sW}")
    a(f"s_mul_i32 s{sBb}, s{sBb}, 56")
    a(f"s_add_u32 s{sKV}, s{sKV}, s{sBb}")
    flag_check(a, "L_fc2", vFl2, sH, 1, 0)
    a("s_barrier")
    a("s_barrier")
    ts("o_ld")
    NR = 16
    for f in range(12):
        a(f"ds_read_b128 {vr(OF+4*(f%NR),4)}, v{t3} offset:{1024*f}")
    for f in range(32):
        if f + 12 < 32:
            a(f"ds_read_b128 {vr(OF+4*((f+12)%NR),4)}, v{t3} offset:{1024*(f+12)}")
            a("s_waitcnt lgkmcnt(12)")
        else:
            a(f"s_waitcnt lgkmcnt({31-f})")
        mfma(a, vr(ACC,16), vr(WOF+4*f,4), vr(OF+4*(f%NR),4), "0" if f == 0 else vr(ACC,16))
    a("s_nop 7")
    a("s_nop 3")
    for i in range(8):
        a(f"v_cvt_pk_bf16_f32 v{D+i}, v{ACC+2*i}, v{ACC+2*i+1}")
    a(f"v_permlane32_swap_b32 v{D}, v{D+2}")
    a(f"v_permlane32_swap_b32 v{D+1}, v{D+3}")
    a(f"v_permlane32_swap_b32 v{D+4}, v{D+6}")
    a(f"v_permlane32_swap_b32 v{D+5}, v{D+7}")
    a(f"buffer_store_dwordx4 {vr(D,4)}, v{t4}, {sr(OUT)}, s{sKV} offen")
    set_exec(a, HI, 0)
    a(f"buffer_store_dwordx4 {vr(D+4,4)}, v{t4}, {sr(OUT)}, s{sKV} offen offset:32")
    set_exec(a, 0, HI)
    a(f"buffer_store_dwordx2 {vr(D+4,2)}, v{t4}, {sr(OUT)}, s{sKV} offen offset:32")
    if not opt("probe", 0): ts("out_st")
    if TS:
        a("s_waitcnt vmcnt(0)")
        ts("end")
    if TS and TSG == 0: ts.dump()
    a.lab("L_end")
    a("s_endpgm")
    for n in range(npick[0]):
        a.lab(f"L_slow{n}")
        a(f"ds_read_b32 v15, v{vMk}")
        a("s_waitcnt lgkmcnt(0)")
        a(f"v_readfirstlane_b32 s{sRDY}, v15")
        a("s_nop 0")
        a(f"s_and_b32 s{sAV}, s{sRDY}, s{sTODO}")
        a(f"s_cbranch_scc0 L_slow{n}")
        a(f"s_branch L_back{n}")
    flag_retries(a)
    a.lab("L_fallback")
    a(f"s_mov_b32 s{sA}, s3")
    kv_poll_addr(a, vP1, t0)
    a(f"s_lshl_b32 s6, s{sW}, {FSH}")
    a(f"v_subrev_u32 v{vP1}, s6, v{vP1}")
    for w in range(4):
        poll(a, f"L_pollfb{w}", vP1, "0xf", 0, "0xffff", off=w << FSH)
    a(f"s_mov_b32 s3, s{sA}")
    a(f"v_mov_b32 v{t0}, 0xff800000")
    a(f"s_mov_b32 s{sKV}, 0")
    SS = S0
    a.lab("L_fb1")
    ldk(0)
    a(f"s_add_u32 s{sKV}, s{sKV}, 0x10000")
    a("s_waitcnt vmcnt(0)")
    mfma(a, vr(SS,16), vr(KV,4), vr(Q3,4), "0")
    mfma(a, vr(SS,16), vr(KV+4,4), vr(Q3+4,4), vr(SS,16))
    a("s_nop 15")
    for r in range(0, 16, 2):
        a(f"v_max3_f32 v{t0}, v{t0}, v{SS+r}, v{SS+r+1}")
    a(f"s_cmp_lt_u32 s{sKV}, {KV_BYTES}")
    a("s_cbranch_scc1 L_fb1")
    a(f"v_mov_b32 v{t1}, v{t0}")
    a("s_nop 1")
    a(f"v_permlane32_swap_b32 v{t0}, v{t1}")
    a("s_nop 1")
    a(f"v_max_f32 v{t0}, v{t0}, v{t1}")
    for r in range(16):
        a(f"v_mov_b32 v{F+r}, 0")
    a(f"s_mov_b32 s{sKV}, 0")
    a.lab("L_fb2")
    ldk(0); ldv(0)
    a(f"s_add_u32 s{sKV}, s{sKV}, 0x10000")
    a("s_waitcnt vmcnt(0)")
    mfma(a, vr(SS,16), vr(KV,4), vr(Q3,4), "0")
    mfma(a, vr(SS,16), vr(KV+4,4), vr(Q3+4,4), vr(SS,16))
    a("s_nop 15")
    for r in range(16):
        a(f"v_sub_f32 v{SS+r}, v{SS+r}, v{t0}")
    for r in range(16):
        a(f"v_exp_f32 v{SS+r}, v{SS+r}")
    a("s_nop 0")
    for i in range(8):
        a(f"v_cvt_pk_bf16_f32 v{P+i}, v{SS+2*i}, v{SS+2*i+1}")
    a("s_nop 1")
    mfma(a, vr(F,16), vr(KV+8,4), vr(P,4), vr(F,16))
    mfma(a, vr(F,16), vr(KV+12,4), vr(P+4,4), vr(F,16))
    a(f"s_cmp_lt_u32 s{sKV}, {KV_BYTES}")
    a("s_cbranch_scc1 L_fb2")
    a("s_nop 15")
    a("s_branch L_norm")
    if TS:
        open("stamps.txt", "w").write(",".join(ts.names))
    return name

def main():
    a = A()
    name = kernel(a)
    head = open(f"cdna_kernels/{NAME}.s.ref").read().split("; Override")[0]
    out = head
    out += f"; @launch grid=(256,1,1) block=(512,1,1) lds={LDS_BYTES}\n"
    out += '.amdgcn_target "amdgcn-amd-amdhsa--gfx950"\n.text\n'
    out += a.text()
    out += f""".section .rodata,"a"
.p2align 6
.amdhsa_kernel {name}
  .amdhsa_next_free_vgpr 256
  .amdhsa_next_free_sgpr 102
  .amdhsa_accum_offset 256
  .amdhsa_group_segment_fixed_size 0
  .amdhsa_kernarg_size 48
  .amdhsa_user_sgpr_count 2
  .amdhsa_user_sgpr_kernarg_segment_ptr 1
  .amdhsa_system_sgpr_workgroup_id_x 1
.end_amdhsa_kernel
"""
    o = [x for x in sys.argv[1:] if not x.startswith("--")]
    path = o[0] if o else f"cdna_kernels/{NAME}.s"
    open(path, "w").write(out)
main()
```

```python
import sys, struct, math

NAME = "standalone__softmax_full_mha__prompt"
FL_OFF = 5 << 20
EP_OFF = 0xff00
O_OFF = 6 << 20
TS_OFF = 8 << 20
WS_BYTES = 12 << 20
X_BYTES = 2048 * 448 * 2
W_BYTES = 448 * 1344 * 2
WO_BYTES = 448 * 448 * 2
OUT_BYTES = 2048 * 448 * 2
KV_BYTES = 4 << 20
V_BASE = 28672
V_LINE = 1152
V_PLANE = 7 * V_LINE
QSCALE = 28 ** -0.5 * math.log2(math.e)

def opt(name, default):
    for arg in sys.argv:
        if arg.startswith(f"--{name}="):
            return int(arg.split("=")[1])
    return default
TS = "--ts" in sys.argv
TSG = opt("tsg", 0)
MAP = opt("maph", 3)
FSH = opt("fsh", 8)
FLAGPOS = opt("flagpos", 20)
NQ = [int(c) for c in "%08d" % opt("nq", 700)]
assert sum(NQ) == 7
SLEEP = opt("sleep", 1)
LA = opt("la", 2)
BAL = opt("bal", 1)
LDF = ["sc1", "sc1 nt", "sc0 sc1", "", "nt"][opt("ldf", 0)]
STF = ["sc1", "sc1 nt", "sc0 sc1", "sc0 sc1 nt"][opt("stf", 0)]
INV = opt("inv", 0)
PW = opt("pw", 0)
PWAT = opt("pwat", -1)
ROT = opt("rot", 1)
PREPOLL = opt("prepoll", 1)

def f32bits(x):
    return struct.unpack("<I", struct.pack("<f", x))[0]

class A:
    def __init__(self):
        self.l = []
    def __call__(self, s):
        for line in s.strip("\n").split("\n"):
            self.l.append("    " + line.strip())
    def lab(self, n):
        self.l.append(n + ":")
    def raw(self, s):
        self.l.append(s)
    def text(self):
        return "\n".join(self.l) + "\n"

def vr(b, n, k="v"):
    return f"{k}[{b}:{b+n-1}]"
def sr(b):
    return f"s[{b}:{b+3}]"

def srd(a, d, lo, hi, nbytes):
    a(f"s_mov_b32 s{d}, s{lo}")
    a(f"s_and_b32 s{d+1}, s{hi}, 0xffff")
    a(f"s_mov_b32 s{d+2}, {nbytes}")
    a(f"s_mov_b32 s{d+3}, 0x20000")

HI = "0xffffffff"
def set_exec(a, lo, hi):
    if lo == HI and hi == HI:
        a("s_mov_b64 exec, -1")
    elif hi == 0 and lo in (1, "0xf"):
        a(f"s_mov_b64 exec, {int(str(lo), 0)}")
    else:
        a(f"s_mov_b32 exec_lo, {lo}")
        a(f"s_mov_b32 exec_hi, {hi}")

class Stamps:
    def __init__(self, a):
        self.a = a; self.idx = {}; self.names = []
    def __call__(self, name, cyc=False, grp=0):
        if not TS: return
        if name != "start" and grp != TSG: return
        nm = name + ("(cyc)" if cyc else "")
        if nm not in self.idx:
            self.idx[nm] = len(self.names); self.names.append(nm)
        b = 66 + 2 * self.idx[nm]
        assert b + 1 < 102
        self.a(f"s_memtime s[{b}:{b+1}]" if cyc else f"s_memrealtime s[{b}:{b+1}]")
    def dump(self):
        if not TS: return
        a = self.a
        sp = [x for x in sys.argv if x.startswith("--spin=")]
        if sp:
            hi, lo, m = sp[0][7:].split(",")
            a("s_waitcnt lgkmcnt(0)")
            if lo == "G":
                a("v_mov_b32 v2, 0")
                a(f"buffer_load_dword v4, v2, {sr(DBG)}, 0 offen offset:192 sc1")
                a("s_waitcnt vmcnt(0)")
                a("v_readfirstlane_b32 s4, v4")
                a("s_nop 0")
                a("s_not_b32 s4, s4")
                a(f"s_sub_u32 s3, s{66+2*self.idx[hi]}, s4")
            else:
                a(f"s_sub_u32 s3, s{66+2*self.idx[hi]}, s{66+2*self.idx[lo]}")
            only = opt("only", -1)
            if only >= 0:
                a("s_and_b32 s4, s2, 7")
                a(f"s_cmp_eq_u32 s4, {only}")
                a("s_cselect_b32 s3, s3, 0")
            a(f"s_mul_i32 s3, s3, {m}")
            if opt("fix", 0): a(f"s_mov_b32 s3, {opt('fix', 0)}")
            if opt("rep", -1) >= 0:
                a("s_not_b32 s4, s64")
                a("s_cmp_eq_u32 s4, s65")
                a("s_cselect_b32 s3, s3, 0" if opt("rep", -1) == 1 else "s_cselect_b32 s3, 0, s3")
            if opt("pat", -1) >= 0:
                a("s_cmp_eq_u32 s64, s65")
                a("s_cselect_b32 s3, s3, 0" if opt("pat", -1) == 1 else "s_cselect_b32 s3, 0, s3")
            a(f"s_add_u32 s3, s3, s{66+2*self.idx['end' if TSG == 0 else 'h_stage']}")
            a.lab("L_spin")
            a("s_memrealtime s[4:5]")
            a("s_waitcnt lgkmcnt(0)")
            a("s_sub_u32 s4, s4, s3")
            a("s_cmp_lt_i32 s4, 0")
            a("s_cbranch_scc1 L_spin")
            return
        if "--dbg" in sys.argv:
            sel = ["start", "start", "c0", "kv_mm", "b7", "q_done", "kv0", "att1", "o_flag", "o_ld", "end"]
            a("s_waitcnt lgkmcnt(0)")
            a(f"s_cmp_lg_u32 s{sW}, 0")
            a("s_cbranch_scc1 L_end")
            a("s_mov_b64 exec, 1")
            a("v_mov_b32 v2, 0")
            for i, nm in enumerate(sel):
                a(f"v_mov_b32 v4, s{66+2*self.idx[nm]}")
                if i == 0: a("v_not_b32 v4, v4")
                a(f"buffer_atomic_umax v4, v2, {sr(DBG)}, 0 offen offset:{8+4*i} sc1")
                a("s_nop 1")
            for i, nm in enumerate(["end", "kv0", "c0"]):
                a(f"s_sub_u32 s3, s{66+2*self.idx[nm]}, s66")
                a("v_mov_b32 v4, s3")
                a(f"buffer_atomic_umax v4, v2, {sr(DBG)}, 0 offen offset:{52+4*i} sc1")
                a("s_nop 1")
            a("s_waitcnt vmcnt(0)")
            return
        a("s_waitcnt lgkmcnt(0)")
        a(f"s_lshl_b32 s3, s2, 2")
        a(f"s_add_u32 s3, s3, s{sW}")
        a(f"s_lshl_b32 s3, s3, 7")
        a(f"s_add_u32 s3, s3, {TS_OFF}")
        a("s_mov_b64 exec, 1")
        a("v_mov_b32 v2, 0")
        for i in range(18):
            a(f"v_mov_b32 v4, s{66+2*i}")
            a(f"buffer_store_dword v4, v2, {sr(WS)}, s3 offen offset:{4*i}")
            a("s_nop 1")
        a("s_waitcnt vmcnt(0)")

X, W, WO, OUT, DBG, WS, KVS = 16, 20, 24, 28, 32, 36, 40
sH, sB, sW, sT = 44, 45, 46, 47
sKC, sXB, sWB, sXM, sWM = 48, 49, 50, 51, 52
sRDY, sTODO, sAV, sRET = 48, 49, 50, 64
sA, sBb = 53, 54
sKV, sIT, sWQ, sWoS, sCNT = 55, 56, 57, 58, 59
sKQ, sTAG = 60, 61
WQS = KVS
sT3, sCS4 = 62, 63
sS0, sS1 = 51, 52
L_WKV, L_WQ, L_XR = 0, 57344, 86016
L_WO, L_CMB = 0, 114688
LDS_BYTES = 163840
vXR = [2, 3, 4, 5]
vWR = [6, 7]
vQR, vOne, vFl, vFl2, vP1, vMk = 8, 9, 10, 11, 12, 13
vKo, vV0, vV1 = 14, 16, 17
vT = [18, 19, 20, 21, 22, 23]
A0, A1 = 24, 40
AQ = A0
XF = 56
WF = 168
PK = 200
Q, S0, P, KV, O = 40, 72, 104, 112, 176
S = [S0, S0 + 16]

def decode_hb(a):
    nhg = 16 >> MAP
    lg = int(math.log2(nhg))
    a(f"s_and_b32 s{sH}, s2, {nhg-1}")
    a(f"s_lshl_b32 s{sH}, s{sH}, {MAP}")
    a(f"s_lshr_b32 s3, s2, 3")
    a(f"s_and_b32 s{sB}, s3, {(1<<MAP)-1}")
    a(f"s_add_u32 s{sH}, s{sH}, s{sB}")
    a(f"s_lshr_b32 s3, s3, {MAP}")
    a(f"s_and_b32 s{sB}, s2, 7")
    a(f"s_lshr_b32 s{sB}, s{sB}, {lg}")
    a(f"s_mul_i32 s{sB}, s{sB}, {32>>MAP}")
    a(f"s_add_u32 s{sB}, s{sB}, s3")
    if BAL:
        a(f"s_lshr_b32 s3, s{sH}, 3")
        a(f"s_sub_u32 s{sBb}, s{sH}, s3")
        a("s_add_u32 s3, s3, 14")
        a(f"s_and_b32 s{sH}, s{sH}, 7")
        a(f"s_cmp_eq_u32 s{sH}, 7")
        a(f"s_cselect_b32 s{sH}, s3, s{sBb}")

def mfma(a, d, x, y, c):
    a(f"v_mfma_f32_32x32x16_bf16 {d}, {x}, {y}, {c}")

vR = 252
def flag_read(a, vaddr, off=0):
    a(f"v_mov_b32 v{vR}, 0")
    a(f"v_mov_b32 v{vR+1}, 0")
    a(f"buffer_atomic_or_x2 v[{vR}:{vR+1}], v{vaddr}, {sr(WS)}, 0 offen offset:{off} sc0 sc1")

def flag_bits(a):
    a(f"v_cmp_eq_u32 vcc, s{sTAG}, v{vR+1}")
    a("s_nop 1")
    a(f"v_cndmask_b32 v{vR}, 0, v{vR}, vcc")

def poll(a, label, vaddr, lo, hi, smask, off=0):
    a(f"s_mov_b32 s{sCNT}, 0x100000")
    set_exec(a, lo, hi)
    a(f"s_branch {label}_in")
    a.lab(label)
    if SLEEP: a(f"s_sleep {SLEEP}")
    a.lab(label + "_in")
    flag_read(a, vaddr, off)
    a(f"s_sub_u32 s{sCNT}, s{sCNT}, 1")
    a(f"s_cbranch_scc1 {label}_done")
    a("s_waitcnt vmcnt(0)")
    flag_bits(a)
    a(f"v_and_b32 v{vR}, {smask}, v{vR}")
    a(f"v_cmp_ne_u32 vcc, {smask}, v{vR}")
    a(f"s_cbranch_vccnz {label}")
    a.lab(label + "_done")
    set_exec(a, HI, HI)

def flag_set(a, vaddr, sbit, lo):
    a(f"s_lshl_b32 s3, 1, s{sbit}")
    a("v_mov_b32 v250, s3")
    a("v_mov_b32 v251, 0")
    set_exec(a, lo, 0)
    a(f"buffer_atomic_or_x2 v[250:251], v{vaddr}, {sr(WS)}, 0 offen sc0 sc1")
    set_exec(a, HI, HI)

def flag_check(a, label, vaddr, sbit, lo, wait):
    a(f"s_mov_b32 s{sCNT}, 0x100000")
    a(f"s_waitcnt vmcnt({wait})")
    a.lab(label)
    set_exec(a, lo, 0)
    a(f"v_cmp_ne_u32 vcc, s{sTAG}, v251")
    set_exec(a, HI, HI)
    a(f"s_cbranch_vccnz {label}_again")
    a.lab(label + "_ok")
    RETRY.append((label, vaddr, sbit, lo))
RETRY = []
def flag_retries(a):
    for label, vaddr, sbit, lo in RETRY:
        a.lab(label + "_again")
        a(f"s_sub_u32 s{sCNT}, s{sCNT}, 1")
        a(f"s_cbranch_scc1 {label}_ok")
        a("s_sleep 4")
        flag_set(a, vaddr, sbit, lo)
        a("s_waitcnt vmcnt(0)")
        a(f"s_branch {label}")

def kv_poll_addr(a, vd, t0):
    a(f"s_mul_i32 s4, s{sH}, 56")
    a("s_and_b32 s5, s4, 0xfffffff0")
    a(f"v_mov_b32 v{t0}, s5")
    a("s_add_u32 s5, s5, 62")
    a(f"v_writelane_b32 v{t0}, s5, 1")
    a("s_add_u32 s5, s4, 896")
    a(f"v_writelane_b32 v{t0}, s5, 2")
    a("s_add_u32 s5, s4, 950")
    a(f"v_writelane_b32 v{t0}, s5, 3")
    a(f"v_lshrrev_b32 v{t0}, 7, v{t0}")
    a(f"v_lshlrev_b32 v{t0}, {FSH+4}, v{t0}")
    a(f"s_and_b32 s3, s{sH}, 3")
    a(f"s_lshl2_add_u32 s3, s3, s{sW}")
    a(f"s_lshl_b32 s3, s3, {FSH}")
    a(f"s_add_u32 s3, s3, {FL_OFF}")
    a(f"v_add_u32 v{vd}, s3, v{t0}")

def mask_addr(a, vd):
    a(f"s_add_u32 s3, s{sW}, 3")
    a("s_and_b32 s3, s3, 3")
    a("s_mul_i32 s3, s3, 12288")
    a(f"s_add_u32 s3, s3, {L_CMB + 8192}")
    a(f"v_mov_b32 v{vd}, s3")

def helper(a, ts):
    vX = [2, 3, 4, 5]
    vW0, vW1, vWq = 6, 7, 8
    vZ, vOn, vP, vM, vWo, vF = 9, 10, 11, 12, 13, 14
    a("v_lshrrev_b32 v7, 3, v0")
    a("v_mul_u32_u24 v2, 896, v7")
    a("v_and_b32 v6, 7, v0")
    a("v_lshrrev_b32 v4, 4, v0")
    a("v_xor_b32 v3, v6, v4")
    a("v_lshl_add_u32 v2, v3, 4, v2")
    a("v_xor_b32 v3, 64, v2")
    a("v_add_u32 v3, 6144, v3")
    a("v_and_b32 v4, 1, v4")
    a("v_lshlrev_b32 v4, 2, v4")
    a("v_xor_b32 v6, v6, v4")
    a("v_mul_u32_u24 v7, 2688, v7")
    a(f"v_lshl_add_u32 v{vW0}, v6, 4, v7")
    a(f"v_add_u32 v{vW1}, {8*2688-1024}, v{vW0}")
    a("v_add_u32 v4, 12288, v2")
    a("v_add_u32 v5, 12288, v3")
    a(f"s_mul_i32 s{sXB}, s{sT}, 28672")
    a(f"s_mul_i32 s{sWQ}, s{sW}, 43008")
    a(f"s_lshl_b32 s{sWB}, s{sH}, 7")
    a(f"s_add_u32 s{sWB}, s{sWB}, s{sWQ}")
    a(f"s_add_u32 s{sWB}, s{sWB}, 896")
    a(f"s_lshl_b32 s{sXM}, s{sW}, 14")
    a(f"s_add_u32 s{sXM}, s{sXM}, {L_XR}")
    a(f"s_lshl_b32 s{sWM}, s{sW}, 11")
    a(f"s_lshl_b32 s3, s{sB}, 1")
    a(f"s_add_u32 s3, s3, s{sH}")
    a(f"s_mul_i32 s{sA}, s3, 37")
    a(f"s_lshr_b32 s{sA}, s{sA}, 8")
    a(f"s_mul_i32 s{sA}, s{sA}, 7")
    a(f"s_sub_u32 s{sKC}, s3, s{sA}")
    a(f"s_mov_b32 s{sKQ}, s{sKC}")
    a(f"s_mov_b32 s{X+2}, {X_BYTES}")
    a(f"s_mov_b32 s{X+3}, 0x20000")
    a(f"s_cmp_lt_u32 s{sH}, 14")
    a(f"s_cselect_b32 s{W+2}, {W_BYTES}, 0")
    a(f"s_mov_b32 s{W+3}, 0x20000")
    a("s_waitcnt lgkmcnt(0)")
    a(f"s_load_dword s{sTAG}, s[14:15], {EP_OFF}")
    a(f"s_mov_b32 s{X}, s4")
    a(f"s_and_b32 s{X+1}, s5, 0xffff")
    a(f"s_mov_b32 s{W}, s6")
    a(f"s_and_b32 s{W+1}, s7, 0xffff")
    def adv_kc():
        a(f"s_add_u32 s{sKC}, s{sKC}, 1")
        a(f"s_cmp_eq_u32 s{sKC}, 7")
        a(f"s_cselect_b32 s{sKC}, 0, s{sKC}")
    def issue(c):
        a(f"s_mul_i32 s{sBb}, s{sKC}, 172032")
        a(f"s_add_u32 m0, s{sWM}, {L_WKV + c*8192}")
        a(f"s_add_u32 s{sBb}, s{sBb}, s{sWB}")
        a(f"buffer_load_dwordx4 v{vW0}, {sr(W)}, s{sBb} offen lds")
        a(f"buffer_load_dwordx4 v{vW1}, {sr(W)}, s{sBb} offen offset:1024 lds")
        a(f"s_lshl_b32 s{sA}, s{sKC}, 7")
        a(f"s_add_u32 m0, s{sXM}, {(c%4)*4096}")
        a(f"s_add_u32 s{sA}, s{sA}, s{sXB}")
        for q in range(4):
            a(f"buffer_load_dwordx4 v{vX[q]}, {sr(X)}, s{sA} offen offset:{1024*q} lds")
        adv_kc()
    if INV == 2:
        a("buffer_inv sc0 sc1")
    if INV == 3:
        a("buffer_inv sc1")
    for c in range(2): issue(c)
    ts("h_iss", grp=1)
    srd(a, WS, 14, 15, WS_BYTES)
    srd(a, WO, 8, 9, WO_BYTES)
    a("v_lshlrev_b32 v1, 4, v0")
    a("v_and_b32 v15, 3, v0")
    a(f"v_lshrrev_b32 v{vWq}, 2, v0")
    a(f"v_mul_u32_u24 v{vWq}, 2688, v{vWq}")
    a(f"v_lshl_add_u32 v{vWq}, v15, 4, v{vWq}")
    a(f"s_mul_i32 s3, s{sH}, 56")
    a("s_and_b32 s3, s3, 0xfffffff0")
    a(f"s_add_u32 s{sWQ}, s{sWQ}, s3")
    a(f"v_mov_b32 v{vZ}, 0")
    kv_poll_addr(a, vP, 16)
    mask_addr(a, vM)
    srd(a, WQS, 6, 7, W_BYTES)
    a(f"s_lshr_b32 s{sIT}, s{sWM}, 1")
    qn = [0]
    def issue_q():
        c = qn[0]; qn[0] += 1
        a(f"s_mul_i32 s{sBb}, s{sKQ}, 172032")
        a(f"s_add_u32 m0, s{sIT}, {L_WQ + c*4096}")
        a(f"s_add_u32 s{sBb}, s{sBb}, s{sWQ}")
        a(f"buffer_load_dwordx4 v{vWq}, {sr(WQS)}, s{sBb} offen lds")
        a(f"s_add_u32 s{sKQ}, s{sKQ}, 1")
        a(f"s_cmp_eq_u32 s{sKQ}, 7")
        a(f"s_cselect_b32 s{sKQ}, 0, s{sKQ}")
    order = [0]*6 + [1]*6
    for c in range(7):
        if c + 2 < 7:
            issue(c + 2); order += [c + 2] * 6
        for i in range(NQ[c]):
            issue_q(); order.append(-1)
        last = max(i for i, x in enumerate(order) if x == c)
        a(f"s_waitcnt vmcnt({len(order) - 1 - last})")
        ts(f"w{c}", grp=1)
        a("s_barrier")
    if NQ[7]:
        a("s_barrier")
        for i in range(NQ[7]): issue_q()
    a("s_waitcnt vmcnt(0) lgkmcnt(0)")
    ts("h_wq", grp=1)
    a("s_barrier")
    a(f"s_xor_b32 s{sTAG}, s{sTAG}, 0x5ac3a53c")
    def poll_mask():
        set_exec(a, "0xf", 0)
        flag_read(a, vP)
        a("s_waitcnt vmcnt(0)")
        flag_bits(a)
        a("s_nop 0")
        for i in range(4):
            a(f"v_readlane_b32 s{4+i}, v{vR}, {i}")
        a("s_and_b32 s4, s4, s5")
        a("s_and_b32 s6, s6, s7")
        a("s_and_b32 s4, s4, s6")
        a("s_lshl_b32 s5, s4, 16")
        a("s_or_b32 s4, s4, s5")
        a(f"s_lshr_b32 s4, s4, s{sB}")
        a("s_and_b32 s4, s4, 0xffff")
        a("s_cmp_eq_u32 s4, 0xffff")
        a("s_cselect_b32 s4, 0x7ffff, s4")
        a("v_mov_b32 v15, s4")
        a(f"ds_write_b32 v{vM}, v15")
        set_exec(a, HI, HI)
    if PREPOLL:
        a(f"s_sleep {PREPOLL}")
        poll_mask()
    else:
        a(f"ds_write_b32 v{vM}, v{vZ}")
        a("s_mov_b32 s4, 0")
    a("s_waitcnt lgkmcnt(0)")
    a("s_barrier")
    a(f"s_mov_b32 s{sCNT}, 0x100000")
    a.lab("L_hpoll")
    a("s_cmp_eq_u32 s4, 0x7ffff")
    a("s_cbranch_scc1 L_hpoll_done")
    a(f"s_sub_u32 s{sCNT}, s{sCNT}, 1")
    a("s_cbranch_scc1 L_hpoll_giveup")
    poll_mask()
    if SLEEP: a(f"s_sleep {SLEEP}")
    a("s_branch L_hpoll")
    a.lab("L_hpoll_giveup")
    a("v_mov_b32 v15, 0x7ffff")
    a(f"ds_write_b32 v{vM}, v15")
    a.lab("L_hpoll_done")
    ts("h_all", grp=1)
    a("v_lshrrev_b32 v16, 4, v0")
    a(f"v_mul_u32_u24 v{vWo}, 896, v16")
    a("v_lshlrev_b32 v16, 2, v16")
    a("v_and_b32 v17, 15, v0")
    a("v_xor_b32 v16, v16, v17")
    a(f"v_lshl_add_u32 v{vWo}, v16, 4, v{vWo}")
    a(f"s_mul_i32 s{sWoS}, s{sCS4}, 224")
    a(f"s_and_b32 s{sWoS}, s{sWoS}, 0xffffffc0")
    a(f"s_mul_i32 s3, s{sW}, {28*3584}")
    a(f"s_add_u32 s{sWoS}, s{sWoS}, s3")
    a(f"s_mul_i32 s3, s{sW}, {28*1024}")
    a(f"s_add_u32 m0, s3, {L_WO}")
    a(f"s_mov_b32 s{sIT}, 28")
    a("s_sleep 16")
    a.lab("L_wo")
    a("s_sleep 3")
    a(f"buffer_load_dwordx4 v{vWo}, {sr(WO)}, s{sWoS} offen lds")
    a("s_add_u32 m0, m0, 1024")
    a(f"s_add_u32 s{sWoS}, s{sWoS}, 3584")
    a(f"s_sub_u32 s{sIT}, s{sIT}, 1")
    a(f"s_cmp_lg_u32 s{sIT}, 0")
    a("s_cbranch_scc1 L_wo")
    a(f"s_lshl_b32 s3, s{sT3}, {FSH}")
    a(f"s_add_u32 s3, s3, {FL_OFF + (256 << FSH)}")
    a(f"v_mov_b32 v{vP}, s3")
    a(f"s_lshl_b32 s4, s{sW}, 2")
    a("s_lshl_b32 s4, 15, s4")
    a(f"s_lshl_b32 s3, s{sT3}, 2")
    a(f"s_add_u32 s3, s3, s{sW}")
    a("s_lshl_b32 s3, s3, 13")
    a(f"s_add_u32 s3, s3, {O_OFF}")
    a(f"s_add_u32 s{sA}, s3, 4096")
    a(f"s_lshl_b32 s{sBb}, s{sW}, 13")
    a(f"s_add_u32 s{sBb}, s{sBb}, {L_CMB}")
    a(f"v_add_u32 v{vM}, s{sBb}, v1")
    a("s_waitcnt vmcnt(0) lgkmcnt(0)")
    ts("h_wo", grp=1)
    a("s_barrier")
    poll(a, "L_poll2", vP, 1, 0, "s4")
    ts("h_poll2", grp=1)
    for f in range(8):
        a(f"buffer_load_dwordx4 {vr(32+4*f,4)}, v1, {sr(WS)}, {'s3' if f < 4 else 's%d' % sA} offen offset:{1024*(f%4)} sc1")
    a("s_barrier")
    for f in range(8):
        a(f"s_waitcnt vmcnt({7-f})")
        a(f"ds_write_b128 v{vM}, {vr(32+4*f,4)} offset:{1024*f}")
    a("s_waitcnt lgkmcnt(0)")
    ts("h_stage", grp=1)
    a("s_barrier")
    a(f"s_or_b32 s3, s2, s{sW}")
    a("s_cmp_lg_u32 s3, 0")
    a("s_cbranch_scc1 L_noep")
    a(f"v_lshlrev_b32 v{vP}, {FSH}, v0")
    a(f"v_add_u32 v{vP}, {FL_OFF + (256 << FSH)}, v{vP}")
    poll(a, "L_pollep", vP, HI, HI, "0xffff")
    a(f"s_xor_b32 s3, s{sTAG}, 0x5ac3a53c")
    a("s_add_u32 s3, s3, 0x9e3779b9")
    a("v_mov_b32 v15, s3")
    a(f"v_mov_b32 v{vP}, {EP_OFF}")
    set_exec(a, 1, 0)
    a(f"buffer_store_dword v15, v{vP}, {sr(WS)}, 0 offen sc1")
    if opt("rep", -1) >= 0:
        a("v_not_b32 v16, v15")
        a(f"buffer_store_dword v16, v{vP}, {sr(WS)}, 0 offen offset:4 sc1")
    a.lab("L_noep")
    if INV == 1: a("buffer_inv sc0 sc1")
    if TS and TSG == 1: ts.dump()
    a("s_endpgm")

def kernel(a):
    name = NAME + "_kernel"
    a.raw(f".globl {name}")
    a.raw(".p2align 8")
    a.raw(f".type {name},@function")
    a.lab(name)
    ts = Stamps(a)
    ts("start")
    a("s_cmp_ge_u32 s2, 256")
    a("s_cbranch_scc1 L_end")
    a("s_load_dwordx8 s[4:11], s[0:1], 0")
    a("s_load_dwordx4 s[12:15], s[0:1], 32")
    a("v_lshrrev_b32 v1, 6, v0")
    a("v_and_b32 v0, 63, v0")
    a(f"v_readfirstlane_b32 s{sA}, v1")
    decode_hb(a)
    a(f"s_and_b32 s{sW}, s{sA}, 3")
    a(f"s_lshl_b32 s{sT}, s{sB}, 2")
    a(f"s_and_b32 s{sT3}, s{sH}, 3")
    a(f"s_add_u32 s{sT3}, s{sT3}, s{sT}")
    a(f"s_add_u32 s{sT}, s{sT}, s{sW}")
    a(f"s_lshr_b32 s{sCS4}, s{sH}, 2")
    a(f"s_cmp_lt_u32 s{sA}, 4")
    a("s_cbranch_scc1 L_compute")
    helper(a, ts)
    a.lab("L_compute")
    t0, t1, t2, t3, t4, t5 = vT
    a("s_waitcnt lgkmcnt(0)")
    srd(a, WS, 14, 15, WS_BYTES)
    a(f"s_load_dword s{sTAG}, s[14:15], {EP_OFF}")
    if opt("rep", -1) >= 0: a(f"s_load_dwordx2 s[64:65], s[14:15], {EP_OFF}")
    if TS: srd(a, DBG, 12, 13, 256)
    a("v_lshlrev_b32 v1, 4, v0")
    a("v_and_b32 v15, 3, v0")
    a("v_and_b32 v2, 31, v0")
    a(f"v_lshlrev_b32 v{vV0}, 4, v2")
    a("v_lshlrev_b32 v2, 7, v2")
    a("v_bfe_u32 v3, v0, 1, 3")
    a("v_lshrrev_b32 v4, 5, v0")
    a(f"v_mul_u32_u24 v{vV1}, {V_PLANE}, v4")
    a(f"v_add_u32 v{vV0}, v{vV0}, v{vV1}")
    a("v_xor_b32 v3, v3, v4")
    a("v_lshl_add_u32 v2, v3, 4, v2")
    a(f"s_lshl_b32 s3, s{sW}, 14")
    a(f"s_add_u32 s3, s3, {L_XR}")
    a("v_add_u32 v2, s3, v2")
    a("v_xor_b32 v3, 32, v2")
    a("v_xor_b32 v5, 96, v2")
    a(f"v_bfe_u32 v{t0}, v0, 2, 2")
    a(f"v_lshl_add_u32 v{t1}, v4, 3, v{t0}")
    a("v_xor_b32 v4, 64, v2")
    a(f"v_bfe_u32 v{t2}, v0, 4, 1")
    a(f"v_lshlrev_b32 v{t2}, 5, v{t2}")
    a(f"v_lshrrev_b32 v{t3}, 1, v15")
    a(f"v_and_b32 v{t4}, 1, v15")
    a(f"v_lshl_add_u32 v{t3}, v{t4}, 1, v{t3}")
    a(f"v_lshl_add_u32 v{t3}, v{t3}, 3, v{t2}")
    a(f"v_lshl_add_u32 v{t4}, v15, 3, v{t2}")
    a(f"v_lshl_add_u32 v{vQR}, v{t1}, 6, v{t3}")
    a(f"v_add_u32 v{vQR}, {L_WQ}, v{vQR}")
    a(f"s_cmp_lt_u32 s{sH}, 7")
    a("s_cselect_b64 vcc, -1, 0")
    a(f"v_cndmask_b32 v{t3}, v{t4}, v{t3}, vcc")
    a(f"v_lshrrev_b32 v{t0}, 1, v{t0}")
    a(f"v_lshl_add_u32 v{t3}, v{t0}, 6, v{t3}")
    a(f"v_lshl_add_u32 v{vWR[0]}, v{t1}, 7, v{t3}")
    a(f"v_xor_b32 v{vWR[1]}, 64, v{vWR[0]}")
    mask_addr(a, vMk)
    a(f"s_lshl_b32 s3, s{sH}, 4")
    a(f"s_add_u32 s3, s3, s{sW}")
    a(f"v_lshl_add_u32 v{vP1}, v0, 2, s3")
    a(f"v_lshlrev_b32 v{vP1}, {FSH}, v{vP1}")
    a(f"v_add_u32 v{vP1}, {FL_OFF}, v{vP1}")
    a(f"s_lshl_b32 s{sA}, s{sT}, {FSH}")
    a(f"s_add_u32 s{sA}, s{sA}, {FL_OFF + (256 << FSH)}")
    a(f"v_mov_b32 v{vFl2}, s{sA}")
    a(f"v_lshrrev_b32 v{vFl}, 3, v0")
    a(f"v_mul_u32_u24 v{vFl}, {V_PLANE}, v{vFl}")
    a(f"v_and_b32 v{t0}, 7, v0")
    a(f"v_lshl_add_u32 v{vFl}, v{t0}, 4, v{vFl}")
    a(f"v_cmp_eq_u32 vcc, 0, v{t0}")
    a(f"v_mov_b32 v{t1}, 0x3f803f80")
    a("s_nop 0")
    for r in range(4):
        a(f"v_cndmask_b32 v{216+r}, 0, v{t1}, vcc")
    srd(a, OUT, 10, 11, OUT_BYTES)
    srd(a, KVS, 14, 15, KV_BYTES)
    a("s_waitcnt lgkmcnt(0)")
    a(f"s_xor_b32 s{sTAG}, s{sTAG}, 0x5ac3a53c")
    a("v_mov_b32 v250, 0")
    a(f"v_mov_b32 v251, s{sTAG}")
    a(f"s_cmp_ge_u32 s{sB}, 4")
    a("s_cbranch_scc1 L_noopen1")
    a(f"s_lshl_b32 exec_lo, 1, s{sB}")
    a("s_mov_b32 exec_hi, 0")
    a(f"buffer_atomic_swap_x2 v[250:251], v{vP1}, {sr(WS)}, 0 offen sc1")
    a.lab("L_noopen1")
    a(f"s_cmp_lg_u32 s{sH}, 15")
    a("s_cbranch_scc1 L_noopen2")
    set_exec(a, 1, 0)
    a(f"buffer_atomic_swap_x2 v[250:251], v{vFl2}, {sr(WS)}, 0 offen sc1")
    a.lab("L_noopen2")
    set_exec(a, HI, HI)
    def rd(c, i):
        a(f"ds_read_b128 {vr(XF+16*c+4*i,4)}, v{vXR[i]} offset:{(c%4)*4096}")
        for p in range(2):
            for r in range(2):
                a(f"ds_read_b64_tr_b16 {vr(WF+8*i+4*p+2*r,2)}, v{vWR[p]} offset:{L_WKV + (c*4+i)*2048 + r*512}")
    def phase1a(kind):
        def mm(c, i):
            x = vr(XF+16*c+4*i, 4)
            first = (c == 0 and i == 0)
            for p, acc in ((0, A0), (1, A1)):
                w = vr(WF+8*i+4*p, 4)
                if kind == "K": mfma(a, vr(acc,16), w, x, "0" if first else vr(acc,16))
                else: mfma(a, vr(acc,16), x, w, "0" if first else vr(acc,16))
        a(f"s_lshl_b32 s{sKV}, s{sT}, 16")
        if kind == "K":
            a(f"s_lshl_b32 s{sS0}, s{sH}, 12")
            a(f"s_add_u32 s{sS0}, s{sS0}, s{sKV}")
        else:
            a(f"s_mul_i32 s{sS0}, s{sH}, {V_LINE}")
            a(f"s_add_u32 s{sS0}, s{sS0}, s{sKV}")
            a(f"s_add_u32 s{sS0}, s{sS0}, {V_BASE - 7*V_LINE}")
            a(f"s_add_u32 s{sS1}, s{sS0}, {2*V_PLANE}")
            a(f"s_cmp_lt_u32 s{sH}, 14")
            a(f"s_cselect_b32 s{KVS+2}, {KV_BYTES}, 0")
        def prewrite():
            if kind == "K":
                a("v_lshlrev_b32 v248, 7, v0")
                set_exec(a, HI, 0)
            else:
                a("v_mul_u32_u24 v248, 0x1c72, v0")
                a("v_lshrrev_b32 v248, 16, v248")
                a(f"v_mul_u32_u24 v248, {V_PLANE - 9*128}, v248")
                a("v_lshl_add_u32 v248, v0, 7, v248")
                set_exec(a, HI, "0xf")
            a("v_mov_b32 v249, 0")
            if PW == 1: a(f"buffer_store_dword v249, v248, {sr(KVS)}, s{sS0} offen sc1")
            if PW == 2: a(f"buffer_atomic_or v249, v248, {sr(KVS)}, s{sS0} offen sc1")
            set_exec(a, HI, HI)
        if PW and PWAT < 0: prewrite()
        for c in range(7):
            a("s_barrier")
            if c == 0: ts("c0")
            if PW and PWAT == c: prewrite()
            rd(c, 0); rd(c, 1)
            if c > 0: mm(c-1, 2)
            rd(c, 2)
            if c > 0: mm(c-1, 3)
            a("s_waitcnt lgkmcnt(10)")
            rd(c, 3)
            mm(c, 0)
            a("s_waitcnt lgkmcnt(10)")
            mm(c, 1)
            a("s_waitcnt lgkmcnt(0)")
        mm(6, 2); mm(6, 3)
        ts("kv_mm")
        if PW: a("s_waitcnt vmcnt(0)")
        if kind == "K":
            a("s_nop 7")
            a("s_nop 2")
        else:
            set_exec(a, HI, 0)
            a(f"buffer_store_dwordx4 v[216:219], v{vFl}, {sr(KVS)}, s{sS0} offen offset:1024 sc1")
            set_exec(a, HI, HI)
            a("s_nop 6")
        for p, acc in ((0, A0), (1, A1)):
            for f in range(2):
                for i in range(4):
                    a(f"v_cvt_pk_bf16_f32 v{PK+8*p+4*f+i}, v{acc+8*f+2*i}, v{acc+8*f+2*i+1}")
                d = vr(PK+8*p+4*f, 4)
                if kind == "K":
                    a(f"buffer_store_dwordx4 {d}, v1, {sr(KVS)}, s{sS0} offen offset:{2048*p+1024*f} {STF}")
                else:
                    a(f"buffer_store_dwordx4 {d}, v{vV0}, {sr(KVS)}, s{sS0 if f == 0 else sS1} offen offset:{512*p} {STF}")
    a(f"s_cmp_lt_u32 s{sH}, 7")
    a("s_cbranch_scc0 L_vline")
    phase1a("K")
    a("s_branch L_q")
    a.lab("L_vline")
    phase1a("V")
    a.lab("L_q")
    ts("kv_st")
    if NQ[7]: a("s_barrier")
    a(f"s_mul_i32 s4, s{sH}, 56")
    a("s_lshr_b32 s5, s4, 4")
    a("s_lshl_b32 s5, s5, 9")
    a(f"v_add_u32 v{vKo}, s5, v1")
    a("s_lshr_b32 s4, s4, 1")
    a(f"v_and_b32 v{t0}, 31, v0")
    a(f"v_add_u32 v{t1}, s4, v{t0}")
    a(f"v_lshrrev_b32 v{t2}, 6, v{t1}")
    a(f"v_lshl_add_u32 v{t1}, v{t2}, 3, v{t1}")
    a("s_lshr_b32 s5, s4, 6")
    a("s_mul_i32 s5, s5, 72")
    a("s_add_u32 s5, s5, 36")
    a(f"v_add_u32 v{t2}, s5, v{t0}")
    a(f"v_cmp_gt_u32 vcc, 28, v{t0}")
    a(f"v_add_u32 v{vV1}, {V_BASE}, v{vV1}")
    a("s_nop 0")
    a(f"v_cndmask_b32 v{t1}, v{t2}, v{t1}, vcc")
    a(f"v_lshl_add_u32 v{vV0}, v{t1}, 4, v{vV1}")
    a(f"v_add_u32 v{vV1}, {2*V_PLANE}, v{vV0}")
    for r in range(220, 240):
        a(f"v_mov_b32 v{r}, 0")
    a(f"s_mov_b32 s{KVS+2}, {KV_BYTES}")
    a("s_barrier")
    ts("b7")
    def rdq(s):
        for r in range(2):
            a(f"ds_read_b64_tr_b16 {vr(WF+4*(s%8)+2*r,2)}, v{vQR} offset:{s*1024 + r*256}")
    for s in range(6): rdq(s)
    for s in range(28):
        if s + 6 < 28:
            rdq(s + 6)
            a("s_waitcnt lgkmcnt(12)")
        else:
            a(f"s_waitcnt lgkmcnt({2*(27-s)})")
        mfma(a, vr(AQ,16), vr(WF+4*(s%8),4), vr(XF+4*s,4), "0" if s == 0 else vr(AQ,16))
        if s + 1 == FLAGPOS:
            a("s_waitcnt vmcnt(0)")
            flag_set(a, vP1, sB, "0xf")
            ts("kv_flag")
    if not opt("probe", 0): ts("q_mm")
    a(f"s_mov_b32 s3, {f32bits(QSCALE):#x}")
    a(f"s_lshl_b32 s{sA}, s{sW}, 11")
    a(f"s_add_u32 s{sA}, s{sA}, {L_CMB}")
    a(f"v_add_u32 v{t0}, s{sA}, v1")
    for r in range(176, 184):
        a(f"v_mov_b32 v{r}, 0")
    for r in range(16):
        a(f"v_mul_f32 v{AQ+r}, s3, v{AQ+r}")
    Q3 = Q + 24
    for i in range(8):
        a(f"v_cvt_pk_bf16_f32 v{Q3+i}, v{AQ+2*i}, v{AQ+2*i+1}")
    a(f"s_bitcmp1_b32 s{sH}, 0")
    a("s_cselect_b32 exec_lo, -1, 0")
    a("s_mov_b32 exec_hi, 0")
    a(f"v_mov_b32 v{Q3}, 0")
    a(f"v_mov_b32 v{Q3+1}, 0")
    a("s_cselect_b32 exec_hi, 0, -1")
    a("s_mov_b32 exec_lo, 0")
    a(f"v_mov_b32 v{Q3+6}, 0")
    a(f"v_mov_b32 v{Q3+7}, 0")
    set_exec(a, HI, HI)
    a(f"ds_write_b128 v{t0}, {vr(Q3,4)}")
    a(f"ds_write_b128 v{t0}, {vr(Q3+4,4)} offset:1024")
    for i in range(3):
        a(f"s_add_u32 s{sA}, s{sW}, {1+i}")
        a(f"s_and_b32 s{sA}, s{sA}, 3")
        a(f"s_lshl_b32 s{sA}, s{sA}, 11")
        a(f"s_add_u32 s{sA}, s{sA}, {L_CMB}")
        a(f"v_add_u32 v{vT[1+i]}, s{sA}, v1")
    for r in range(4):
        a(f"v_mov_b32 v{KV+48+12+r}, 0")
    a(f"s_mov_b32 s{sRDY}, 0")
    a(f"s_mov_b32 s{sTODO}, 0x7ffff")
    a("s_waitcnt lgkmcnt(0)")
    a("s_barrier")
    for i in range(3):
        a(f"ds_read_b128 {vr(Q+8*i,4)}, v{vT[1+i]}")
        a(f"ds_read_b128 {vr(Q+8*i+4,4)}, v{vT[1+i]} offset:1024")
    ts("q_done")
    flag_check(a, "L_fc1", vP1, sB, "0xf", 0)
    def ldk(slot):
        for f in range(2):
            a(f"buffer_load_dwordx4 {vr(KV+16*slot+4*f,4)}, v{vKo}, {sr(KVS)}, s{sKV} offen offset:{1024*f} {LDF}")
    def ldv(slot):
        a(f"buffer_load_dwordx4 {vr(KV+16*slot+8,4)}, v{vV0}, {sr(KVS)}, s{sKV} offen {LDF}")
        a(f"buffer_load_dwordx4 {vr(KV+16*slot+12,4)}, v{vV1}, {sr(KVS)}, s{sKV} offen {LDF}")
    npick = [0]
    def pick_ops():
        n = npick[0]; npick[0] += 1
        def p0(): a(f"s_and_b32 s{sAV}, s{sRDY}, s{sTODO}")
        def p1():
            a(f"s_cbranch_scc0 L_slow{n}")
            a.lab(f"L_back{n}")
        def p2(): a(f"s_ff1_i32_b32 s{sAV}, s{sAV}")
        def p3(): a(f"s_bitset0_b32 s{sTODO}, s{sAV}")
        def p4(): a(f"s_lshl2_add_u32 s{sBb}, s{sAV}, s{sT}")
        def p5(): a(f"s_and_b32 s{sBb}, s{sBb}, 63")
        def p6(): a(f"s_and_b32 s{sAV}, s{sAV}, 16")
        def p7(): a(f"s_lshl2_add_u32 s{sBb}, s{sAV}, s{sBb}")
        def p8(): a(f"s_lshl_b32 s{sKV}, s{sBb}, 16")
        return [p0, p1, p2, p3, p4, p5, p6, p7, p8]
    for sl in range(3):
        for f in pick_ops(): f()
        ldk(sl); ldv(sl)
        if sl == 0: ts("pick0")
    for f in pick_ops(): f()
    for r in range(184, 220):
        a(f"v_mov_b32 v{r}, 0")
    for r in range(4):
        a(f"v_mov_b32 v{P+4+r}, 0")
    a(f"s_mov_b32 s{sIT}, 3")
    vC = vT[1:4]; vCR = vT[4]
    a("s_waitcnt lgkmcnt(0)")
    for i in range(3):
        a(f"s_add_u32 s3, s{sW}, {1+i}")
        a("s_and_b32 s3, s3, 3")
        a("s_mul_i32 s3, s3, 12288")
        a(f"s_add_u32 s3, s3, {L_CMB + 4096*i}")
        a(f"v_add_u32 v{vC[i]}, s3, v1")
    a(f"s_mul_i32 s3, s{sW}, 12288")
    a(f"s_add_u32 s3, s3, {L_CMB}")
    a(f"v_add_u32 v{vCR}, s3, v1")
    a("s_waitcnt vmcnt(8)")
    ts("kv0")
    def mS(part, t):
        slot = (t // 4) % 4; qt = t % 4
        d = vr(S[t % 2], 16)
        mfma(a, d, vr(KV+16*slot+4*part,4), vr(Q+8*qt+4*part,4), "0" if part == 0 else d)
    def mPV(part, t):
        slot = (t // 4) % 4; qt = t % 4
        d = vr(O + 16*qt, 16)
        mfma(a, d, vr(KV+16*slot+8+4*part,4), vr(P+4*part,4), d)
    def EC(t, g):
        s = S[t % 2] + 4*g
        for r in range(4):
            a(f"v_exp_f32 v{s+r}, v{s+r}")
        a(f"v_cvt_pk_bf16_f32 v{P+2*g}, v{s}, v{s+1}")
        a(f"v_cvt_pk_bf16_f32 v{P+2*g+1}, v{s+2}, v{s+3}")
    mS(0, 0); mS(1, 0)
    ts("att0", cyc=True)
    a("s_nop 7")
    a("s_nop 3")
    a.raw(".p2align 6")
    a.lab("L_loop")
    def tile(j, last=False):
        fs = [None] * 16
        if not last:
            fs[11] = lambda: a("s_waitcnt vmcnt(8)")
            po = pick_ops()
            for k, f in enumerate(po): fs[2 + k] = f
            if j == 2:
                fs[14] = lambda: a(f"s_sub_u32 s{sIT}, s{sIT}, 1")
        else:
            def wr(i, g):
                return lambda: a(f"ds_write_b128 v{vC[i]}, {vr(O+16*i+4*g,4)} offset:{1024*g}")
            for i in range(3):
                fs[4*(i+1) + 3] = wr(i, 0)
                if i < 2:
                    for g in range(1, 4): fs[4*(i+2) + g - 1] = wr(i, g)
        for st in range(4):
            t = 4*j + st
            f = fs[4*st:4*st+4]
            if not (last and st == 3): mS(0, t+1)
            if st == 0 and not last: ldk((j + 3) % 4)
            if f[0]: f[0]()
            EC(t, 0)
            mPV(1, (t - 1) % 16)
            if st == 0 and not last: ldv((j + 3) % 4)
            if f[1]: f[1]()
            EC(t, 1)
            if not (last and st == 3): mS(1, t+1)
            if f[2]: f[2]()
            EC(t, 2)
            mPV(0, t)
            if f[3]: f[3]()
            EC(t, 3)
    for j in range(3): tile(j)
    a("s_cbranch_scc1 L_last")
    tile(3)
    a("s_branch L_loop")
    a.lab("L_last")
    tile(3, last=True)
    a(f"ds_write_b128 v{vC[2]}, {vr(O+32+4,4)} offset:1024")
    a(f"ds_write_b128 v{vC[2]}, {vr(O+32+8,4)} offset:2048")
    mPV(1, 15)
    a(f"ds_write_b128 v{vC[2]}, {vr(O+32+12,4)} offset:3072")
    ts("att1", cyc=True)
    ts("att1")
    a(f"s_mov_b32 s4, {f32bits(2.0**62):#x}")
    a(f"s_mov_b32 s5, {f32bits(2.0**-62):#x}")
    a("s_waitcnt vmcnt(0) lgkmcnt(0)")
    a("s_barrier")
    R = O
    F = O + 48
    for i in range(3):
        for g in range(4):
            a(f"ds_read_b128 {vr(R+16*i+4*g,4)}, v{vCR} offset:{4096*i+1024*g}")
    a(f"s_lshl_b32 s3, s{sT}, 4")
    a(f"s_add_u32 s3, s3, s{sH}")
    a("s_lshl_b32 s3, s3, 11")
    a(f"s_add_u32 s3, s3, {O_OFF}")
    for i in range(3):
        a(f"s_waitcnt lgkmcnt({8-4*i})")
        for r in range(16):
            a(f"v_add_f32 v{F+r}, v{F+r}, v{R+16*i+r}")
    a(f"v_cmp_nge_f32 s[6:7], s4, v{F+12}")
    a(f"v_cmp_nle_f32 vcc, s5, v{F+12}")
    a("s_or_b64 s[6:7], s[6:7], vcc")
    a("s_cmp_lg_u32 s7, 0")
    a("s_cbranch_scc1 L_fallback")
    a.lab("L_norm")
    a(f"v_mov_b32 v{t0}, v{F+12}")
    a(f"v_mov_b32 v{t1}, v{F+12}")
    a("s_nop 1")
    a(f"v_permlane32_swap_b32 v{t0}, v{t1}")
    a("s_nop 1")
    a(f"v_rcp_f32 v{t1}, v{t1}")
    set_exec(a, 0, HI)
    a(f"v_mov_b32 v{F+12}, 0")
    set_exec(a, HI, HI)
    for r in range(16):
        a(f"v_mul_f32 v{F+r}, v{F+r}, v{t1}")
    PO = 240
    for i in range(8):
        a(f"v_cvt_pk_bf16_f32 v{PO+i}, v{F+2*i}, v{F+2*i+1}")
    a(f"buffer_store_dwordx4 {vr(PO,4)}, v1, {sr(WS)}, s3 offen sc1")
    a(f"buffer_store_dwordx4 {vr(PO+4,4)}, v1, {sr(WS)}, s3 offen offset:1024 sc1")
    ts("o_st")
    WOF, OF, ACC, D = 40, 168, 24, 232
    a(f"s_and_b32 s3, s{sCS4}, 1")
    a("s_lshl_b32 s3, s3, 5")
    a(f"s_mul_i32 s{sA}, s{sW}, 56")
    a(f"s_add_u32 s3, s3, s{sA}")
    a(f"v_bfe_u32 v{t0}, v0, 4, 1")
    a(f"v_lshlrev_b32 v{t0}, 5, v{t0}")
    a(f"v_and_b32 v{t1}, 3, v0")
    a(f"v_lshl_add_u32 v{t0}, v{t1}, 3, v{t0}")
    a(f"v_add_u32 v{t0}, s3, v{t0}")
    a(f"v_and_b32 v{t0}, 255, v{t0}")
    a(f"v_bfe_u32 v{t1}, v0, 2, 2")
    a(f"v_lshlrev_b32 v{t2}, 6, v{t1}")
    a(f"v_xor_b32 v{t0}, v{t0}, v{t2}")
    a(f"v_lshl_add_u32 v{t2}, v{t1}, 8, v{t0}")
    a(f"v_lshrrev_b32 v{t1}, 5, v0")
    a(f"v_lshl_add_u32 v{t0}, v{t1}, 10, v{t2}")
    a(f"v_add_u32 v{t1}, 0x10000, v{t0}")
    a(f"v_add_u32 v{t2}, 0x10000, v{t2}")
    def rdwo(hh):
        for u in range(2):
            for r in range(2):
                off = L_WO + (28*hh + 16*u + 8*r) * 256
                base = t0
                if off >= 0x10000:
                    off -= 0x10000; base = t1
                if hh == 15 and u == 1 and r == 1:
                    base = t2
                a(f"ds_read_b64_tr_b16 {vr(WOF+8*hh+4*u+2*r,2)}, v{base} offset:{off}")
    for hh in range(6): rdwo(hh)
    a("s_waitcnt vmcnt(0)")
    flag_set(a, vFl2, sH, 1)
    ts("o_flag")
    for hh in range(6, 16): rdwo(hh)
    a(f"v_add_u32 v{t3}, {L_CMB}, v1")
    a(f"v_and_b32 v{t4}, 31, v0")
    a(f"v_mul_u32_u24 v{t4}, 896, v{t4}")
    a(f"v_lshrrev_b32 v{t5}, 5, v0")
    a(f"v_lshl_add_u32 v{t4}, v{t5}, 4, v{t4}")
    a(f"s_mul_i32 s{sKV}, s{sT3}, 28672")
    a(f"s_lshl_b32 s{sBb}, s{sCS4}, 2")
    a(f"s_add_u32 s{sBb}, s{sBb}, s{sW}")
    a(f"s_mul_i32 s{sBb}, s{sBb}, 56")
    a(f"s_add_u32 s{sKV}, s{sKV}, s{sBb}")
    flag_check(a, "L_fc2", vFl2, sH, 1, 0)
    a("s_barrier")
    a("s_barrier")
    ts("o_ld")
    NR = 16
    for f in range(12):
        a(f"ds_read_b128 {vr(OF+4*(f%NR),4)}, v{t3} offset:{1024*f}")
    for f in range(32):
        if f + 12 < 32:
            a(f"ds_read_b128 {vr(OF+4*((f+12)%NR),4)}, v{t3} offset:{1024*(f+12)}")
            a("s_waitcnt lgkmcnt(12)")
        else:
            a(f"s_waitcnt lgkmcnt({31-f})")
        mfma(a, vr(ACC,16), vr(WOF+4*f,4), vr(OF+4*(f%NR),4), "0" if f == 0 else vr(ACC,16))
    a("s_nop 7")
    a("s_nop 3")
    for i in range(8):
        a(f"v_cvt_pk_bf16_f32 v{D+i}, v{ACC+2*i}, v{ACC+2*i+1}")
    a(f"v_permlane32_swap_b32 v{D}, v{D+2}")
    a(f"v_permlane32_swap_b32 v{D+1}, v{D+3}")
    a(f"v_permlane32_swap_b32 v{D+4}, v{D+6}")
    a(f"v_permlane32_swap_b32 v{D+5}, v{D+7}")
    a(f"buffer_store_dwordx4 {vr(D,4)}, v{t4}, {sr(OUT)}, s{sKV} offen")
    set_exec(a, HI, 0)
    a(f"buffer_store_dwordx4 {vr(D+4,4)}, v{t4}, {sr(OUT)}, s{sKV} offen offset:32")
    set_exec(a, 0, HI)
    a(f"buffer_store_dwordx2 {vr(D+4,2)}, v{t4}, {sr(OUT)}, s{sKV} offen offset:32")
    if not opt("probe", 0): ts("out_st")
    if TS:
        a("s_waitcnt vmcnt(0)")
        ts("end")
    if TS and TSG == 0: ts.dump()
    a.lab("L_end")
    a("s_endpgm")
    for n in range(npick[0]):
        a.lab(f"L_slow{n}")
        a(f"ds_read_b32 v15, v{vMk}")
        a("s_waitcnt lgkmcnt(0)")
        a(f"v_readfirstlane_b32 s{sRDY}, v15")
        a("s_nop 0")
        a(f"s_and_b32 s{sAV}, s{sRDY}, s{sTODO}")
        a(f"s_cbranch_scc0 L_slow{n}")
        a(f"s_branch L_back{n}")
    flag_retries(a)
    a.lab("L_fallback")
    a(f"s_mov_b32 s{sA}, s3")
    kv_poll_addr(a, vP1, t0)
    a(f"s_lshl_b32 s6, s{sW}, {FSH}")
    a(f"v_subrev_u32 v{vP1}, s6, v{vP1}")
    for w in range(4):
        poll(a, f"L_pollfb{w}", vP1, "0xf", 0, "0xffff", off=w << FSH)
    a(f"s_mov_b32 s3, s{sA}")
    a(f"v_mov_b32 v{t0}, 0xff800000")
    a(f"s_mov_b32 s{sKV}, 0")
    SS = S0
    a.lab("L_fb1")
    ldk(0)
    a(f"s_add_u32 s{sKV}, s{sKV}, 0x10000")
    a("s_waitcnt vmcnt(0)")
    mfma(a, vr(SS,16), vr(KV,4), vr(Q3,4), "0")
    mfma(a, vr(SS,16), vr(KV+4,4), vr(Q3+4,4), vr(SS,16))
    a("s_nop 15")
    for r in range(0, 16, 2):
        a(f"v_max3_f32 v{t0}, v{t0}, v{SS+r}, v{SS+r+1}")
    a(f"s_cmp_lt_u32 s{sKV}, {KV_BYTES}")
    a("s_cbranch_scc1 L_fb1")
    a(f"v_mov_b32 v{t1}, v{t0}")
    a("s_nop 1")
    a(f"v_permlane32_swap_b32 v{t0}, v{t1}")
    a("s_nop 1")
    a(f"v_max_f32 v{t0}, v{t0}, v{t1}")
    for r in range(16):
        a(f"v_mov_b32 v{F+r}, 0")
    a(f"s_mov_b32 s{sKV}, 0")
    a.lab("L_fb2")
    ldk(0); ldv(0)
    a(f"s_add_u32 s{sKV}, s{sKV}, 0x10000")
    a("s_waitcnt vmcnt(0)")
    mfma(a, vr(SS,16), vr(KV,4), vr(Q3,4), "0")
    mfma(a, vr(SS,16), vr(KV+4,4), vr(Q3+4,4), vr(SS,16))
    a("s_nop 15")
    for r in range(16):
        a(f"v_sub_f32 v{SS+r}, v{SS+r}, v{t0}")
    for r in range(16):
        a(f"v_exp_f32 v{SS+r}, v{SS+r}")
    a("s_nop 0")
    for i in range(8):
        a(f"v_cvt_pk_bf16_f32 v{P+i}, v{SS+2*i}, v{SS+2*i+1}")
    a("s_nop 1")
    mfma(a, vr(F,16), vr(KV+8,4), vr(P,4), vr(F,16))
    mfma(a, vr(F,16), vr(KV+12,4), vr(P+4,4), vr(F,16))
    a(f"s_cmp_lt_u32 s{sKV}, {KV_BYTES}")
    a("s_cbranch_scc1 L_fb2")
    a("s_nop 15")
    a("s_branch L_norm")
    if TS:
        open("stamps.txt", "w").write(",".join(ts.names))
    return name

def main():
    a = A()
    name = kernel(a)
    head = open(f"cdna_kernels/{NAME}.s.ref").read().split("; Override")[0]
    out = head
    out += f"; @launch grid=(256,1,1) block=(512,1,1) lds={LDS_BYTES}\n"
    out += '.amdgcn_target "amdgcn-amd-amdhsa--gfx950"\n.text\n'
    out += a.text()
    out += f""".section .rodata,"a"
.p2align 6
.amdhsa_kernel {name}
  .amdhsa_next_free_vgpr 256
  .amdhsa_next_free_sgpr 102
  .amdhsa_accum_offset 256
  .amdhsa_group_segment_fixed_size 0
  .amdhsa_kernarg_size 48
  .amdhsa_user_sgpr_count 2
  .amdhsa_user_sgpr_kernarg_segment_ptr 1
  .amdhsa_system_sgpr_workgroup_id_x 1
.end_amdhsa_kernel
"""
    o = [x for x in sys.argv[1:] if not x.startswith("--")]
    path = o[0] if o else f"cdna_kernels/{NAME}.s"
    open(path, "w").write(out)
main()
```

```python
import sys, struct, math

NAME = "standalone__softmax_full_mha__prompt"
FL_OFF = 5 << 20
EP_OFF = 0xff00
O_OFF = 6 << 20
TS_OFF = 8 << 20
WS_BYTES = 12 << 20
X_BYTES = 2048 * 448 * 2
W_BYTES = 448 * 1344 * 2
WO_BYTES = 448 * 448 * 2
OUT_BYTES = 2048 * 448 * 2
KV_BYTES = 4 << 20
V_BASE = 28672
V_CT = 640
V_PLANE = 14 * V_CT
QSCALE = 28 ** -0.5 * math.log2(math.e)

def opt(name, default):
    for arg in sys.argv:
        if arg.startswith(f"--{name}="):
            return int(arg.split("=")[1])
    return default
TS = "--ts" in sys.argv
TSG = opt("tsg", 0)
MAP = opt("maph", 3)
FSH = opt("fsh", 8)
SLEEP = opt("sleep", 1)
LA = opt("la", 3)
FA = opt("fa", 2)
BAL = opt("bal", 1)
SPF = opt("spf", 1)
ROT = opt("rot", 0)
NBF = opt("nbf", 0)
SL2 = opt("sl2", 6)
SKEW = opt("skew", 1)
PFM = opt("pfm", 0)
PIS = opt("pis", 12)
FBJ = opt("fbj", 1)
WROT = opt("wrot", 1)
WSL = opt("wsl", 3)
THR = opt("thr", 0)
SCP = opt("scp", 0)
SCW = opt("scw", 0)
OSF = ["", "sc1", "nt", "sc0 sc1", "sc1 nt"][opt("osf", 0)]
NOFL = 512

def f32bits(x):
    return struct.unpack("<I", struct.pack("<f", x))[0]

class A:
    def __init__(self):
        self.l = []
    def __call__(self, s):
        for line in s.strip("\n").split("\n"):
            self.l.append("    " + line.strip())
    def lab(self, n):
        self.l.append(n + ":")
    def raw(self, s):
        self.l.append(s)
    def text(self):
        return "\n".join(self.l) + "\n"

def vr(b, n, k="v"):
    return f"{k}[{b}:{b+n-1}]"
def sr(b):
    return f"s[{b}:{b+3}]"

def srd(a, d, lo, hi, nbytes):
    a(f"s_mov_b32 s{d}, s{lo}")
    a(f"s_and_b32 s{d+1}, s{hi}, 0xffff")
    a(f"s_mov_b32 s{d+2}, {nbytes}")
    a(f"s_mov_b32 s{d+3}, 0x20000")

HI = "0xffffffff"
def set_exec(a, lo, hi):
    if lo == HI and hi == HI:
        a("s_mov_b64 exec, -1")
    elif hi == 0 and lo in (1, "0xf"):
        a(f"s_mov_b64 exec, {int(str(lo), 0)}")
    else:
        a(f"s_mov_b32 exec_lo, {lo}")
        a(f"s_mov_b32 exec_hi, {hi}")

class Stamps:
    def __init__(self, a):
        self.a = a; self.idx = {}; self.names = []
    def __call__(self, name, cyc=False, grp=0):
        if not TS: return
        if name != "start" and grp != TSG: return
        nm = name + ("(cyc)" if cyc else "")
        if nm not in self.idx:
            self.idx[nm] = len(self.names); self.names.append(nm)
        b = 66 + 2 * self.idx[nm]
        assert b + 1 < 102
        self.a(f"s_memtime s[{b}:{b+1}]" if cyc else f"s_memrealtime s[{b}:{b+1}]")
    def dump(self):
        if not TS: return
        a = self.a
        sp = [x for x in sys.argv if x.startswith("--spin=")]
        if sp:
            hi, lo, m = sp[0][7:].split(",")
            a("s_waitcnt lgkmcnt(0)")
            if lo == "G":
                a("v_mov_b32 v2, 0")
                a(f"buffer_load_dword v4, v2, {sr(DBG)}, 0 offen offset:192 sc1")
                a("s_waitcnt vmcnt(0)")
                a("v_readfirstlane_b32 s4, v4")
                a("s_nop 0")
                a("s_not_b32 s4, s4")
                a(f"s_sub_u32 s3, s{66+2*self.idx[hi]}, s4")
            else:
                a(f"s_sub_u32 s3, s{66+2*self.idx[hi]}, s{66+2*self.idx[lo]}")
            only = opt("only", -1)
            if only >= 0:
                a("s_and_b32 s4, s2, 7")
                a(f"s_cmp_eq_u32 s4, {only}")
                a("s_cselect_b32 s3, s3, 0")
            a(f"s_mul_i32 s3, s3, {m}")
            if opt("fix", 0): a(f"s_mov_b32 s3, {opt('fix', 0)}")
            if opt("rep", -1) >= 0:
                a("s_not_b32 s4, s64")
                a("s_cmp_eq_u32 s4, s65")
                a("s_cselect_b32 s3, s3, 0" if opt("rep", -1) == 1 else "s_cselect_b32 s3, 0, s3")
            if opt("pat", -1) >= 0:
                a("s_cmp_eq_u32 s64, s65")
                a("s_cselect_b32 s3, s3, 0" if opt("pat", -1) == 1 else "s_cselect_b32 s3, 0, s3")
            a(f"s_add_u32 s3, s3, s{66+2*self.idx['end' if TSG == 0 else 'h_stage']}")
            a.lab("L_spin")
            a("s_memrealtime s[4:5]")
            a("s_waitcnt lgkmcnt(0)")
            a("s_sub_u32 s4, s4, s3")
            a("s_cmp_lt_i32 s4, 0")
            a("s_cbranch_scc1 L_spin")
            return
        if "--dbg" in sys.argv:
            sel = ["start", "start", "c0", "kv_mm", "b7", "q_done", "kv0", "att1", "o_flag", "o_ld", "end"]
            a("s_waitcnt lgkmcnt(0)")
            a(f"s_cmp_lg_u32 s{sW}, 0")
            a("s_cbranch_scc1 L_end")
            a("s_mov_b64 exec, 1")
            a("v_mov_b32 v2, 0")
            for i, nm in enumerate(sel):
                a(f"v_mov_b32 v4, s{66+2*self.idx[nm]}")
                if i == 0: a("v_not_b32 v4, v4")
                a(f"buffer_atomic_umax v4, v2, {sr(DBG)}, 0 offen offset:{8+4*i} sc1")
                a("s_nop 1")
            for i, nm in enumerate(["end", "kv0", "c0"]):
                a(f"s_sub_u32 s3, s{66+2*self.idx[nm]}, s66")
                a("v_mov_b32 v4, s3")
                a(f"buffer_atomic_umax v4, v2, {sr(DBG)}, 0 offen offset:{52+4*i} sc1")
                a("s_nop 1")
            a("s_waitcnt vmcnt(0)")
            return
        a("s_waitcnt lgkmcnt(0)")
        a(f"s_lshl_b32 s3, s2, 2")
        a(f"s_add_u32 s3, s3, s{sW}")
        a(f"s_lshl_b32 s3, s3, 7")
        a(f"s_add_u32 s3, s3, {TS_OFF}")
        a("s_mov_b64 exec, 1")
        a("v_mov_b32 v2, 0")
        for i in range(18):
            a(f"v_mov_b32 v4, s{66+2*i}")
            a(f"buffer_store_dword v4, v2, {sr(WS)}, s3 offen offset:{4*i}")
            a("s_nop 1")
        a("s_waitcnt vmcnt(0)")

X, W, WO, OUT, DBG, WS, KVS = 16, 20, 24, 28, 32, 36, 40
WQS = KVS
sH, sB, sW, sT = 44, 45, 46, 47
sKC, sXB, sWB, sWM = 48, 49, 50, 52
sRDY, sTODO, sAV, sS0, sS1 = 48, 49, 50, 51, 52
sA, sBb = 53, 54
sKV, sIT, sWQ, sWoS, sCNT = 55, 56, 57, 58, 59
sBIT, sTAG = 60, 61
sT3, sCS4 = 62, 63
sROT = 57
L_XA, L_WB, L_WQ = 0, 57344, 114688
L_WO, L_CMB = 0, 114688
LDS_BYTES = 163840
vXA = [2, 3, 4, 5]
vXO = [6, 7, 8, 9]
vWR, vQR, vP1, vFl2, vMk = 10, 11, 12, 13, 14
vKo, vV0, vV1, vPad = 16, 17, 18, 19
vT = [20, 21, 22, 23, 24, 25]
PADC = 26
AK, AQ, WFK, BUF, PKA, PKB = 32, 48, 64, 176, 224, 232
KV, Q, S0, P = 64, 128, 160, 240
OT = [32, 48, 192, 208]
S = [S0, S0 + 16]

def decode_hb(a):
    nhg = 16 >> MAP
    lg = int(math.log2(nhg))
    a(f"s_and_b32 s{sH}, s2, {nhg-1}")
    a(f"s_lshl_b32 s{sH}, s{sH}, {MAP}")
    a(f"s_lshr_b32 s3, s2, 3")
    a(f"s_and_b32 s{sB}, s3, {(1<<MAP)-1}")
    a(f"s_add_u32 s{sH}, s{sH}, s{sB}")
    a(f"s_lshr_b32 s3, s3, {MAP}")
    a(f"s_and_b32 s{sB}, s2, 7")
    a(f"s_lshr_b32 s{sB}, s{sB}, {lg}")
    a(f"s_mul_i32 s{sB}, s{sB}, {32>>MAP}")
    a(f"s_add_u32 s{sB}, s{sB}, s3")
    if BAL:
        a(f"s_lshr_b32 s3, s{sH}, 3")
        a(f"s_sub_u32 s{sBb}, s{sH}, s3")
        a("s_add_u32 s3, s3, 14")
        a(f"s_and_b32 s{sH}, s{sH}, 7")
        a(f"s_cmp_eq_u32 s{sH}, 7")
        a(f"s_cselect_b32 s{sH}, s3, s{sBb}")

def mfma(a, d, x, y, c):
    a(f"v_mfma_f32_32x32x16_bf16 {d}, {x}, {y}, {c}")

vR = 252
def flag_read(a, vaddr, off=0):
    a(f"v_mov_b32 v{vR}, 0")
    a(f"v_mov_b32 v{vR+1}, 0")
    a(f"buffer_atomic_or_x2 v[{vR}:{vR+1}], v{vaddr}, {sr(WS)}, 0 offen offset:{off} sc0 sc1")

def flag_bits(a):
    a(f"v_cmp_eq_u32 vcc, s{sTAG}, v{vR+1}")
    a("s_nop 1")
    a(f"v_cndmask_b32 v{vR}, 0, v{vR}, vcc")

def poll(a, label, vaddr, lo, hi, smask, off=0):
    a(f"s_mov_b32 s{sCNT}, 0x100000")
    set_exec(a, lo, hi)
    a(f"s_branch {label}_in")
    a.lab(label)
    if SLEEP: a(f"s_sleep {SLEEP}")
    a.lab(label + "_in")
    flag_read(a, vaddr, off)
    a(f"s_sub_u32 s{sCNT}, s{sCNT}, 1")
    a(f"s_cbranch_scc1 {label}_done")
    a("s_waitcnt vmcnt(0)")
    flag_bits(a)
    a(f"v_and_b32 v{vR}, {smask}, v{vR}")
    a(f"v_cmp_ne_u32 vcc, {smask}, v{vR}")
    a(f"s_cbranch_vccnz {label}")
    a.lab(label + "_done")
    set_exec(a, HI, HI)

def flag_set(a, vaddr, sbit, lo):
    a(f"s_lshl_b32 s3, 1, s{sbit}")
    a("v_mov_b32 v250, s3")
    a("v_mov_b32 v251, 0")
    set_exec(a, lo, 0)
    a(f"buffer_atomic_or_x2 v[250:251], v{vaddr}, {sr(WS)}, 0 offen sc0 sc1")
    set_exec(a, HI, HI)

def flag_check(a, label, vaddr, sbit, lo, wait):
    a(f"s_mov_b32 s{sCNT}, 0x100000")
    a(f"s_waitcnt vmcnt({wait})")
    a.lab(label)
    set_exec(a, lo, 0)
    a(f"v_cmp_ne_u32 vcc, s{sTAG}, v251")
    set_exec(a, HI, HI)
    a(f"s_cbranch_vccnz {label}_again")
    a.lab(label + "_ok")
    RETRY.append((label, vaddr, sbit, lo))
RETRY = []
def flag_retries(a):
    for label, vaddr, sbit, lo in RETRY:
        a.lab(label + "_again")
        a(f"s_sub_u32 s{sCNT}, s{sCNT}, 1")
        a(f"s_cbranch_scc1 {label}_ok")
        a("s_sleep 4")
        flag_set(a, vaddr, sbit, lo)
        a("s_waitcnt vmcnt(0)")
        a(f"s_branch {label}")

def kv_poll_addr(a, vd, t0):
    a(f"s_mul_i32 s4, s{sH}, 56")
    a("s_and_b32 s5, s4, 0xfffffff0")
    a(f"v_mov_b32 v{t0}, s5")
    a("s_add_u32 s5, s5, 62")
    a(f"v_writelane_b32 v{t0}, s5, 1")
    a("s_add_u32 s5, s4, 896")
    a(f"v_writelane_b32 v{t0}, s5, 2")
    a("s_add_u32 s5, s4, 950")
    a(f"v_writelane_b32 v{t0}, s5, 3")
    a(f"v_lshrrev_b32 v{t0}, 6, v{t0}")
    a(f"v_lshlrev_b32 v{t0}, {FSH+4}, v{t0}")
    a(f"s_and_b32 s3, s{sH}, 3")
    a(f"s_lshl2_add_u32 s3, s3, s{sW}")
    a(f"s_lshl_b32 s3, s3, {FSH}")
    a(f"s_add_u32 s3, s3, {FL_OFF}")
    a(f"v_add_u32 v{vd}, s3, v{t0}")

def mask_addr(a, vd):
    a(f"s_lshl_b32 s3, s{sW}, 12")
    a(f"s_sub_u32 s3, {L_CMB + 45056}, s3")
    a(f"v_mov_b32 v{vd}, s3")

def helper(a, ts):
    vX0, vX1, vW0, vW1, vWq = 2, 3, 6, 7, 8
    vZ, vP, vM, vWo = 9, 11, 12, 13
    a("v_lshrrev_b32 v7, 3, v0")
    a("v_mul_u32_u24 v2, 896, v7")
    a("v_and_b32 v6, 7, v0")
    a("v_lshrrev_b32 v4, 4, v0")
    a("v_xor_b32 v3, v6, v4")
    a("v_lshl_add_u32 v2, v3, 4, v2")
    a("v_xor_b32 v3, 64, v2")
    a("v_add_u32 v3, 6144, v3")
    a("v_and_b32 v4, 1, v4")
    a("v_lshlrev_b32 v4, 2, v4")
    a("v_xor_b32 v6, v6, v4")
    a("v_mul_u32_u24 v7, 2688, v7")
    a(f"v_lshl_add_u32 v{vW0}, v6, 4, v7")
    a(f"v_add_u32 v{vW1}, {8*2688-1024}, v{vW0}")
    a(f"s_lshl3_add_u32 s{sXB}, s{sB}, s{sW}")
    a(f"s_mul_i32 s{sXB}, s{sXB}, {16*896}")
    a(f"s_mul_i32 s{sWQ}, s{sW}, 43008")
    a(f"s_lshl_b32 s{sWB}, s{sH}, 7")
    a(f"s_add_u32 s{sWB}, s{sWB}, s{sWQ}")
    a(f"s_add_u32 s{sWB}, s{sWB}, 896")
    a(f"s_mov_b32 s{sWoS}, {64*896}")
    if SPF:
        a(f"s_cmp_lt_u32 s{sH}, 14")
        a("s_cbranch_scc1 L_nspare")
        if SPF == 1:
            a(f"s_add_u32 s{sXB}, s{sXB}, {64*896}")
            a(f"s_mov_b32 s{sWoS}, {-64*896}")
            a(f"s_and_b32 s3, s{sH}, 1")
            a("s_mul_i32 s3, s3, 3")
            a(f"s_and_b32 s{sWB}, s{sB}, 3")
            a(f"s_add_u32 s{sWB}, s{sWB}, s3")
            a(f"s_lshl_b32 s{sWB}, s{sWB}, 7")
            a(f"s_add_u32 s{sWB}, s{sWB}, s{sWQ}")
        else:
            a(f"s_add_u32 s{sWB}, s{sWQ}, 768")
        a.lab("L_nspare")
    a(f"s_lshl_b32 s{sWM}, s{sW}, 11")
    a(f"s_lshl1_add_u32 s3, s{sB}, s{sH}")
    a(f"s_mul_i32 s{sA}, s3, 37")
    a(f"s_lshr_b32 s{sA}, s{sA}, 8")
    a(f"s_mul_i32 s{sA}, s{sA}, 7")
    a(f"s_sub_u32 s{sKC}, s3, s{sA}")
    a(f"s_mov_b32 s{X+2}, {X_BYTES}")
    a(f"s_mov_b32 s{X+3}, 0x20000")
    if SPF:
        a(f"s_mov_b32 s{W+2}, {W_BYTES}")
    else:
        a(f"s_cmp_lt_u32 s{sH}, 14")
        a(f"s_cselect_b32 s{W+2}, {W_BYTES}, 0")
    a(f"s_mov_b32 s{W+3}, 0x20000")
    a("s_waitcnt lgkmcnt(0)")
    a(f"s_load_dword s{sTAG}, s[14:15], {EP_OFF}")
    a(f"s_mov_b32 s{X}, s4")
    a(f"s_and_b32 s{X+1}, s5, 0xffff")
    a(f"s_mov_b32 s{W}, s6")
    a(f"s_and_b32 s{W+1}, s7, 0xffff")
    def issue(n):
        c = n % 7
        a(f"s_mul_i32 s{sBb}, s{sKC}, 172032")
        if n < 7:
            a(f"s_add_u32 m0, s{sWM}, {L_WB + c*8192}")
            a(f"s_add_u32 s{sBb}, s{sBb}, s{sWB}")
            a(f"buffer_load_dwordx4 v{vW0}, {sr(W)}, s{sBb} offen lds")
            a(f"buffer_load_dwordx4 v{vW1}, {sr(W)}, s{sBb} offen offset:1024 lds")
        else:
            a(f"s_add_u32 m0, s{sIT}, {L_WQ + c*4096}")
            a(f"s_add_u32 s{sBb}, s{sBb}, s{sWQ}")
            a(f"buffer_load_dwordx4 v{vWq}, {sr(WQS)}, s{sBb} offen lds")
        if n == 7: a(f"s_add_u32 s{sXB}, s{sXB}, s{sWoS}")
        a(f"s_lshl_b32 s{sA}, s{sKC}, 7")
        a(f"s_add_u32 m0, s{sWM}, {(L_XA if n < 7 else L_WB) + c*8192}")
        a(f"s_add_u32 s{sA}, s{sA}, s{sXB}")
        a(f"buffer_load_dwordx4 v{vX0}, {sr(X)}, s{sA} offen lds")
        a(f"buffer_load_dwordx4 v{vX1}, {sr(X)}, s{sA} offen offset:1024 lds")
        a(f"s_add_u32 s{sKC}, s{sKC}, 1")
        a(f"s_cmp_eq_u32 s{sKC}, 7")
        a(f"s_cselect_b32 s{sKC}, 0, s{sKC}")
        return [n] * (4 if n < 7 else 3)
    order = []
    for n in range(LA): order += issue(n)
    ts("h_iss", grp=1)
    srd(a, WS, 14, 15, WS_BYTES)
    srd(a, WO, 8, 9, WO_BYTES)
    srd(a, WQS, 6, 7, W_BYTES)
    a("v_lshlrev_b32 v1, 4, v0")
    a("v_and_b32 v15, 3, v0")
    a(f"v_lshrrev_b32 v{vWq}, 2, v0")
    a(f"v_mul_u32_u24 v{vWq}, 2688, v{vWq}")
    a(f"v_lshl_add_u32 v{vWq}, v15, 4, v{vWq}")
    a(f"s_mul_i32 s3, s{sH}, 56")
    a("s_and_b32 s3, s3, 0xfffffff0")
    a(f"s_add_u32 s{sWQ}, s{sWQ}, s3")
    a(f"s_lshr_b32 s{sIT}, s{sWM}, 1")
    a(f"v_mov_b32 v{vZ}, 0")
    kv_poll_addr(a, vP, 16)
    mask_addr(a, vM)
    a(f"ds_write_b32 v{vM}, v{vZ}")
    a(f"s_lshr_b32 s3, s{sB}, 2")
    a(f"s_lshl1_add_u32 s3, s{sB}, s3")
    a(f"s_and_b32 s64, s3, 7")
    def poll_issue():
        set_exec(a, "0xf", 0)
        flag_read(a, vP)
        set_exec(a, HI, HI)
    def poll_take():
        a("s_waitcnt vmcnt(0)")
        flag_bits(a)
        a("s_nop 0")
        for i in range(4):
            a(f"v_readlane_b32 s{4+i}, v{vR}, {i}")
        a("s_and_b32 s4, s4, s5")
        a("s_and_b32 s6, s6, s7")
        a("s_and_b32 s4, s4, s6")
        if ROT:
            a("s_and_b32 s5, s4, 0xff")
            a("s_and_b32 s6, s4, 0xff00")
            a("s_lshl_b32 s6, s6, 8")
            a("s_or_b32 s5, s5, s6")
            a("s_lshl_b32 s6, s5, 8")
            a("s_or_b32 s5, s5, s6")
            a("s_lshr_b32 s5, s5, s64")
            a("s_and_b32 s4, s5, 0xff")
            a("s_lshr_b32 s5, s5, 8")
            a("s_and_b32 s5, s5, 0xff00")
            a("s_or_b32 s4, s4, s5")
        a("s_cmp_eq_u32 s4, 0xffff")
        a("s_cselect_b32 s4, 0x7ffff, s4")
        a("v_mov_b32 v15, s4")
        a(f"ds_write_b32 v{vM}, v15")
    nxt = [LA]
    for n in range(14):
        lim = min(13, n + LA)
        if THR and n <= 7: lim = min(lim, 6 + THR)
        while nxt[0] <= lim:
            order += issue(nxt[0]); nxt[0] += 1
        if n == PIS:
            a("s_waitcnt lgkmcnt(0)")
            a(f"s_xor_b32 s{sTAG}, s{sTAG}, 0x5ac3a53c")
            poll_issue(); order.append(-1)
        last = max(i for i, x in enumerate(order) if x == n)
        a(f"s_waitcnt vmcnt({len(order) - 1 - last})")
        if n in (0, 3, 6, 7, 10, 13): ts(f"w{n}", grp=1)
        a("s_barrier")
    if SCW:
        a("s_lshr_b32 s3, s2, 3")
        a(f"s_lshl2_add_u32 s3, s3, s{sW}")
        a("s_mul_i32 s3, s3, 3136")
        a("s_and_b32 s3, s3, 0xffffff80")
        a("s_add_u32 s8, s8, s3")
        a("s_addc_u32 s9, s9, 0")
        for i in range(25):
            a(f"s_load_dword s10, s[8:9], {128*i}")
    a(f"s_mov_b32 s{sCNT}, 0x100000")
    a(f"s_mov_b32 s{sIT}, 0")
    a("s_branch L_hpoll_in")
    a.lab("L_hpoll")
    a(f"s_sub_u32 s{sCNT}, s{sCNT}, 1")
    a("s_cbranch_scc1 L_hpoll_giveup")
    poll_issue()
    a.lab("L_hpoll_in")
    poll_take()
    a("s_cmp_eq_u32 s4, 0x7ffff")
    a("s_cbranch_scc1 L_hpoll_done")
    a("s_bcnt1_i32_b32 s5, s4")
    a("s_cmp_lt_u32 s5, 4")
    a(f"s_cselect_b32 s5, 1, s{sIT}")
    a("s_cmp_lg_u32 s5, 0")
    a("s_cbranch_scc1 L_hnob8")
    a("s_barrier")
    a(f"s_mov_b32 s{sIT}, 1")
    a.lab("L_hnob8")
    a(f"s_sleep {SLEEP}")
    a(f"s_cmp_eq_u32 s{sIT}, 0")
    a("s_cbranch_scc1 L_hpoll")
    a(f"s_sleep {SL2}")
    a("s_branch L_hpoll")
    a.lab("L_hpoll_giveup")
    a("v_mov_b32 v15, 0x7ffff")
    a(f"ds_write_b32 v{vM}, v15")
    a.lab("L_hpoll_done")
    a(f"s_cmp_lg_u32 s{sIT}, 0")
    a("s_cbranch_scc1 L_hb8done")
    a("s_barrier")
    a.lab("L_hb8done")
    ts("h_all", grp=1)
    a("v_lshrrev_b32 v16, 4, v0")
    a(f"v_mul_u32_u24 v{vWo}, 896, v16")
    a("v_lshlrev_b32 v16, 2, v16")
    a("v_and_b32 v17, 15, v0")
    a("v_xor_b32 v16, v16, v17")
    a(f"v_lshl_add_u32 v{vWo}, v16, 4, v{vWo}")
    a(f"s_mul_i32 s{sWoS}, s{sCS4}, 224")
    a(f"s_and_b32 s{sWoS}, s{sWoS}, 0xffffffc0")
    a(f"s_mul_i32 s3, s{sW}, {28*3584}")
    a(f"s_add_u32 s{sWoS}, s{sWoS}, s3")
    a(f"s_mul_i32 s{sWM}, s{sW}, {28*1024}")
    if WROT:
        a(f"s_and_b32 s{sKC}, s{sT3}, 15")
        a(f"s_mul_i32 s{sKC}, s{sKC}, 7")
        a(f"s_lshr_b32 s{sKC}, s{sKC}, 2")
    else:
        a(f"s_mov_b32 s{sKC}, 0")
    a(f"s_mov_b32 s{sIT}, 28")
    a.lab("L_wo")
    a(f"s_lshl_b32 s3, s{sKC}, 10")
    a(f"s_add_u32 m0, s3, s{sWM}")
    a(f"s_mul_i32 s3, s{sKC}, 3584")
    a(f"s_add_u32 s3, s3, s{sWoS}")
    a(f"buffer_load_dwordx4 v{vWo}, {sr(WO)}, s3 offen lds")
    a(f"s_sleep {WSL}")
    a(f"s_add_u32 s{sKC}, s{sKC}, 1")
    a(f"s_cmp_eq_u32 s{sKC}, 28")
    a(f"s_cselect_b32 s{sKC}, 0, s{sKC}")
    a(f"s_sub_u32 s{sIT}, s{sIT}, 1")
    a(f"s_cmp_lg_u32 s{sIT}, 0")
    a("s_cbranch_scc1 L_wo")
    a(f"s_lshl_b32 s3, s{sT3}, {FSH}")
    a(f"s_add_u32 s3, s3, {FL_OFF + (NOFL << FSH)}")
    a(f"v_mov_b32 v{vP}, s3")
    a(f"s_lshl_b32 s4, s{sW}, 2")
    a("s_lshl_b32 s4, 15, s4")
    a(f"s_lshl_b32 s3, s{sT3}, 2")
    a(f"s_add_u32 s3, s3, s{sW}")
    a("s_lshl_b32 s3, s3, 13")
    a(f"s_add_u32 s3, s3, {O_OFF}")
    a(f"s_add_u32 s{sA}, s3, 4096")
    a(f"s_lshl_b32 s{sBb}, s{sW}, 13")
    a(f"s_add_u32 s{sBb}, s{sBb}, {L_CMB}")
    a(f"v_add_u32 v{vM}, s{sBb}, v1")
    a("s_waitcnt vmcnt(0) lgkmcnt(0)")
    ts("h_wo", grp=1)
    a("s_barrier")
    poll(a, "L_poll2", vP, 1, 0, "s4")
    ts("h_poll2", grp=1)
    for f in range(8):
        a(f"buffer_load_dwordx4 {vr(32+4*f,4)}, v1, {sr(WS)}, {'s3' if f < 4 else 's%d' % sA} offen offset:{1024*(f%4)} sc1")
    a("s_barrier")
    for f in range(8):
        a(f"s_waitcnt vmcnt({7-f})")
        a(f"ds_write_b128 v{vM}, {vr(32+4*f,4)} offset:{1024*f}")
    a("s_waitcnt lgkmcnt(0)")
    ts("h_stage", grp=1)
    a("s_barrier")
    a(f"s_or_b32 s3, s2, s{sW}")
    a("s_cmp_lg_u32 s3, 0")
    a("s_cbranch_scc1 L_noep")
    a(f"v_lshlrev_b32 v{vP}, {FSH}, v0")
    a(f"v_add_u32 v{vP}, {FL_OFF + (NOFL << FSH)}, v{vP}")
    poll(a, "L_pollep", vP, HI, HI, "0xffff")
    a(f"s_xor_b32 s3, s{sTAG}, 0x5ac3a53c")
    a("s_add_u32 s3, s3, 0x9e3779b9")
    a("v_mov_b32 v15, s3")
    a(f"v_mov_b32 v{vP}, {EP_OFF}")
    set_exec(a, 1, 0)
    a(f"buffer_store_dword v15, v{vP}, {sr(WS)}, 0 offen sc1")
    if opt("rep", -1) >= 0:
        a("v_not_b32 v16, v15")
        a(f"buffer_store_dword v16, v{vP}, {sr(WS)}, 0 offen offset:4 sc1")
    a.lab("L_noep")
    if TS and TSG == 1: ts.dump()
    a("s_endpgm")

def kernel(a):
    name = NAME + "_kernel"
    a.raw(f".globl {name}")
    a.raw(".p2align 8")
    a.raw(f".type {name},@function")
    a.lab(name)
    ts = Stamps(a)
    ts("start")
    a("s_cmp_ge_u32 s2, 256")
    a("s_cbranch_scc1 L_end")
    a("s_load_dwordx8 s[4:11], s[0:1], 0")
    a("s_load_dwordx4 s[12:15], s[0:1], 32")
    a("v_lshrrev_b32 v1, 6, v0")
    a("v_and_b32 v0, 63, v0")
    a(f"v_readfirstlane_b32 s{sA}, v1")
    decode_hb(a)
    a(f"s_and_b32 s{sW}, s{sA}, 3")
    a(f"s_lshl_b32 s{sT}, s{sB}, 2")
    a(f"s_and_b32 s{sT3}, s{sH}, 3")
    a(f"s_add_u32 s{sT3}, s{sT3}, s{sT}")
    a(f"s_add_u32 s{sT}, s{sT}, s{sW}")
    a(f"s_lshr_b32 s{sCS4}, s{sH}, 2")
    a(f"s_cmp_lt_u32 s{sA}, 4")
    a("s_cbranch_scc1 L_compute")
    helper(a, ts)
    a.lab("L_compute")
    t0, t1, t2, t3, t4, t5 = vT
    a("s_waitcnt lgkmcnt(0)")
    a(f"s_load_dword s{sTAG}, s[14:15], {EP_OFF}")
    if opt("rep", -1) >= 0: a(f"s_load_dwordx2 s[64:65], s[14:15], {EP_OFF}")
    if SCP:
        a("s_bfe_u32 s3, s2, 0x30003")
        a(f"s_cmp_ge_u32 s{sW}, 2")
        a("s_cbranch_scc1 L_scw")
        a(f"s_lshl4_add_u32 s3, s{sB}, s3")
        a("s_add_u32 s3, s3, 8")
        a(f"s_lshl1_add_u32 s3, s3, s{sW}")
        a("s_mul_i32 s3, s3, 3584")
        a("s_add_u32 s4, s4, s3")
        a("s_addc_u32 s5, s5, 0")
        for i in range(28):
            a(f"s_load_dword s{sCNT}, s[4:5], {128*i}")
        a("s_branch L_scd")
        a.lab("L_scw")
        a(f"s_and_b32 s{sA}, s{sB}, 3")
        a(f"s_lshl2_add_u32 s3, s3, s{sA}")
        a(f"s_lshl1_add_u32 s3, s3, s{sW}")
        a("s_sub_u32 s3, s3, 2")
        a(f"s_mul_i32 s3, s3, {7*2688}")
        a(f"s_and_b32 s{sA}, s2, 1")
        a(f"s_mul_i32 s{sA}, s{sA}, 384")
        a(f"s_add_u32 s3, s3, s{sA}")
        a("s_add_u32 s4, s6, s3")
        a("s_addc_u32 s5, s7, 0")
        for r in range(7):
            for i in range(4):
                a(f"s_load_dword s{sCNT}, s[4:5], {2688*r + 128*i}")
        a.lab("L_scd")
    srd(a, WS, 14, 15, WS_BYTES)
    if TS: srd(a, DBG, 12, 13, 256)
    if SPF == 1:
        a(f"s_cmp_lt_u32 s{sH}, 14")
        a("s_cselect_b32 s3, 0, 2")
        a(f"s_xor_b32 s{sT}, s{sT}, s3")
    a(f"s_and_b32 s4, s{sW}, 1")
    a(f"s_lshr_b32 s5, s{sW}, 1")
    a("v_lshlrev_b32 v1, 4, v0")
    a("v_and_b32 v15, 3, v0")
    a("v_and_b32 v2, 31, v0")
    a(f"v_lshlrev_b32 v{vV0}, 4, v2")
    a("v_lshlrev_b32 v2, 7, v2")
    a("v_bfe_u32 v3, v0, 1, 3")
    a("v_lshrrev_b32 v4, 5, v0")
    a(f"v_mul_u32_u24 v{vV1}, {V_PLANE}, v4")
    a(f"v_add_u32 v{vV0}, v{vV0}, v{vV1}")
    a("v_xor_b32 v3, v3, v4")
    a("v_lshl_add_u32 v2, v3, 4, v2")
    a("s_lshl_b32 s3, s4, 12")
    a("v_add_u32 v2, s3, v2")
    a(f"v_bfe_u32 v{t0}, v0, 2, 2")
    a(f"v_lshl_add_u32 v{t1}, v4, 3, v{t0}")
    a("v_xor_b32 v3, 32, v2")
    a("v_xor_b32 v4, 64, v2")
    a("v_xor_b32 v5, 96, v2")
    a(f"s_mul_i32 s3, s5, {L_WB}")
    for i in range(4):
        a(f"v_add_u32 v{vXO[i]}, s3, v{vXA[i]}")
    a(f"v_bfe_u32 v{t2}, v0, 4, 1")
    a(f"v_lshlrev_b32 v{t2}, 5, v{t2}")
    a(f"v_lshrrev_b32 v{t3}, 1, v15")
    a(f"v_and_b32 v{t4}, 1, v15")
    a(f"v_lshl_add_u32 v{t3}, v{t4}, 1, v{t3}")
    a(f"v_lshl_add_u32 v{t3}, v{t3}, 3, v{t2}")
    a(f"v_lshl_add_u32 v{t4}, v15, 3, v{t2}")
    a(f"v_lshl_add_u32 v{vQR}, v{t1}, 6, v{t3}")
    a(f"v_add_u32 v{vQR}, {L_WQ}, v{vQR}")
    a(f"s_cmp_lt_u32 s{sH}, 7")
    a("s_cselect_b64 vcc, -1, 0")
    a(f"v_cndmask_b32 v{t3}, v{t4}, v{t3}, vcc")
    a(f"v_lshrrev_b32 v{t0}, 1, v{t0}")
    a(f"v_xor_b32 v{t0}, s5, v{t0}")
    a(f"v_lshl_add_u32 v{t3}, v{t0}, 6, v{t3}")
    a(f"v_lshl_add_u32 v{vWR}, v{t1}, 7, v{t3}")
    a(f"v_add_u32 v{vWR}, {L_WB}, v{vWR}")
    mask_addr(a, vMk)
    a(f"s_lshl1_add_u32 s5, s{sH}, s5")
    a(f"s_and_b32 s3, s{sB}, 1")
    a("s_lshl1_add_u32 s4, s3, s4")
    a(f"s_lshr_b32 s{sBIT}, s{sB}, 1")
    a(f"s_lshl4_add_u32 s{sS0}, s4, s{sBIT}")
    a(f"s_lshl_b32 s{sS0}, s{sS0}, 16")
    a("s_lshl4_add_u32 s3, s5, s4")
    a(f"v_lshl_add_u32 v{vP1}, v0, 2, s3")
    a(f"v_lshlrev_b32 v{vP1}, {FSH}, v{vP1}")
    a(f"v_add_u32 v{vP1}, {FL_OFF}, v{vP1}")
    a(f"s_lshl_b32 s{sA}, s{sT}, {FSH}")
    a(f"s_add_u32 s{sA}, s{sA}, {FL_OFF + (NOFL << FSH)}")
    a(f"v_mov_b32 v{vFl2}, s{sA}")
    a(f"v_lshrrev_b32 v{vPad}, 3, v0")
    a(f"v_mul_u32_u24 v{vPad}, {V_PLANE}, v{vPad}")
    a(f"v_and_b32 v{t0}, 7, v0")
    a(f"v_lshl_add_u32 v{vPad}, v{t0}, 4, v{vPad}")
    a(f"v_cmp_eq_u32 vcc, 0, v{t0}")
    a(f"v_mov_b32 v{t1}, 0x3f803f80")
    a("s_nop 0")
    for r in range(4):
        a(f"v_cndmask_b32 v{PADC+r}, 0, v{t1}, vcc")
    srd(a, OUT, 10, 11, OUT_BYTES)
    srd(a, KVS, 14, 15, KV_BYTES)
    a("s_waitcnt lgkmcnt(0)")
    a(f"s_xor_b32 s{sTAG}, s{sTAG}, 0x5ac3a53c")
    a("v_mov_b32 v250, 0")
    a(f"v_mov_b32 v251, s{sTAG}")
    a(f"s_cmp_ge_u32 s{sB}, 2")
    a("s_cbranch_scc1 L_noopen1")
    set_exec(a, "0xf", 0)
    a(f"buffer_atomic_swap_x2 v[250:251], v{vP1}, {sr(WS)}, 0 offen sc1")
    a.lab("L_noopen1")
    a(f"s_cmp_lg_u32 s{sH}, 15")
    a("s_cbranch_scc1 L_noopen2")
    set_exec(a, 1, 0)
    a(f"buffer_atomic_swap_x2 v[250:251], v{vFl2}, {sr(WS)}, 0 offen sc1")
    a.lab("L_noopen2")
    set_exec(a, HI, HI)
    def ldk(slot):
        for f in range(2):
            a(f"buffer_load_dwordx4 {vr(KV+16*slot+4*f,4)}, v{vKo}, {sr(X)}, s{sKV} offen offset:{1024*f} sc1")
    def ldv(slot):
        a(f"buffer_load_dwordx4 {vr(KV+16*slot+8,4)}, v{t4}, {sr(X)}, s{sKV} offen sc1")
        a(f"buffer_load_dwordx4 {vr(KV+16*slot+12,4)}, v{t5}, {sr(X)}, s{sKV} offen sc1")
    npick = [0]
    def pick_ops():
        n = npick[0]; npick[0] += 1
        def p0(): a(f"s_and_b32 s{sAV}, s{sRDY}, s{sTODO}")
        def p1():
            a(f"s_cbranch_scc0 L_slow{n}")
            a.lab(f"L_back{n}")
        def p2(): a(f"s_ff1_i32_b32 s{sAV}, s{sAV}")
        def p3(): a(f"s_bitset0_b32 s{sTODO}, s{sAV}")
        def p4(): a(f"s_lshl_b32 s{sKV}, s{sAV}, 16")
        if not ROT: return [p0, p1, p2, p3, p4]
        def r0(): a(f"s_add_u32 s{sBb}, s{sAV}, s{sROT}")
        def r1(): a(f"s_and_b32 s{sBb}, s{sBb}, 7")
        def r2(): a(f"s_and_b32 s{sAV}, s{sAV}, 24")
        def r3(): a(f"s_or_b32 s{sAV}, s{sAV}, s{sBb}")
        return [p0, p1, p2, p3, r0, r1, r2, r3, p4]
    a(f"s_lshl_b32 s3, s{sW}, 20")
    a(f"s_add_u32 s{X}, s14, s3")
    a(f"s_addc_u32 s{X+1}, s15, 0")
    a(f"s_and_b32 s{X+1}, s{X+1}, 0xffff")
    a(f"s_mov_b32 s{X+2}, {1 << 20}")
    a(f"s_mov_b32 s{X+3}, 0x20000")
    a(f"s_mul_i32 s6, s{sH}, 56")
    a("s_lshr_b32 s7, s6, 4")
    a("s_lshl_b32 s7, s7, 9")
    a(f"v_add_u32 v{vKo}, s7, v1")
    a("s_lshr_b32 s6, s6, 1")
    a(f"v_and_b32 v{t0}, 31, v0")
    a(f"v_add_u32 v{t1}, s6, v{t0}")
    a(f"v_lshrrev_b32 v{t2}, 5, v{t1}")
    a(f"v_lshl_add_u32 v{t1}, v{t2}, 3, v{t1}")
    a("s_lshr_b32 s7, s6, 5")
    a("s_mul_i32 s7, s7, 40")
    a("s_add_u32 s7, s7, 4")
    a(f"v_add_u32 v{t2}, s7, v{t0}")
    a(f"v_cmp_gt_u32 vcc, 28, v{t0}")
    a(f"v_add_u32 v{t5}, {V_BASE}, v{vV1}")
    a("s_nop 0")
    a(f"v_cndmask_b32 v{t1}, v{t2}, v{t1}, vcc")
    a(f"v_lshl_add_u32 v{t4}, v{t1}, 4, v{t5}")
    a(f"v_add_u32 v{t5}, {2*V_PLANE}, v{t4}")
    a(f"s_lshr_b32 s3, s{sB}, 2")
    a(f"s_lshl1_add_u32 s3, s{sB}, s3")
    a(f"s_and_b32 s{sROT}, s3, 7")
    a(f"s_mov_b32 s{sRDY}, 0")
    a(f"s_mov_b32 s{sTODO}, 0x7ffff")
    a(f"v_add_u32 v{t0}, v{vMk}, v1")
    a(f"s_mul_i32 s3, s{sW}, 12288")
    a(f"s_add_u32 s11, s3, {L_CMB}")
    for i in range(3):
        a(f"s_add_u32 s{sA}, s{sW}, {1+i}")
        a(f"s_and_b32 s{sA}, s{sA}, 3")
        a(f"s_mul_i32 s3, s{sA}, 12288")
        a(f"s_add_u32 s{8+i}, s3, {L_CMB + 4096*i}")
        a(f"s_lshl_b32 s{sA}, s{sA}, 12")
        a(f"s_sub_u32 s{sA}, {L_CMB + 45056}, s{sA}")
        a(f"v_add_u32 v{vT[1+i]}, s{sA}, v1")
    a("v_mov_b32 v30, 0")
    a("v_mov_b32 v31, 0")
    for r in (P+4, P+6):
        a(f"v_pk_mov_b32 {vr(r,2)}, v[30:31], v[30:31]")
    def fill3():
        for sl in range(3):
            for f in pick_ops(): f()
            ldk(sl); ldv(sl)
    def publish(kind, pk):
        if kind == "V":
            a(f"s_add_u32 s{sS1}, s{sS0}, {2*V_PLANE}")
            set_exec(a, HI, 0)
            a(f"buffer_store_dwordx4 {vr(PADC,4)}, v{vPad}, {sr(KVS)}, s{sS0} offen offset:512 sc1")
            set_exec(a, HI, HI)
        for f in range(2):
            for i in range(4):
                a(f"v_cvt_pk_bf16_f32 v{pk+4*f+i}, v{AK+8*f+2*i}, v{AK+8*f+2*i+1}")
            if kind == "K":
                a(f"buffer_store_dwordx4 {vr(pk+4*f,4)}, v1, {sr(KVS)}, s{sS0} offen offset:{1024*f} sc1")
            else:
                a(f"buffer_store_dwordx4 {vr(pk+4*f,4)}, v{vV0}, {sr(KVS)}, s{sS0 if f == 0 else sS1} offen sc1")
    def phase1(kind):
        if kind == "K":
            a("s_lshl_b32 s3, s5, 11")
            a(f"s_add_u32 s{sS0}, s{sS0}, s3")
        else:
            a(f"s_mul_i32 s3, s5, {V_CT}")
            a(f"s_add_u32 s{sS0}, s{sS0}, s3")
            a(f"s_add_u32 s{sS0}, s{sS0}, {V_BASE - 14*V_CT}")
            a(f"s_cmp_lt_u32 s{sH}, 14")
            a(f"s_cselect_b32 s{KVS+2}, {KV_BYTES}, 0")
        def kvm(w, x, first):
            c = "0" if first else vr(AK,16)
            if kind == "K": mfma(a, vr(AK,16), w, x, c)
            else: mfma(a, vr(AK,16), x, w, c)
        def rdA(c, i):
            a(f"ds_read_b128 {vr(BUF+4*i,4)}, v{vXA[i]} offset:{c*8192}")
            for r in range(2):
                a(f"ds_read_b64_tr_b16 {vr(WFK+16*c+4*i+2*r,2)}, v{vWR} offset:{(c*4+i)*2048 + r*512}")
        def mmA(c, i):
            kvm(vr(WFK+16*c+4*i,4), vr(BUF+4*i,4), c == 0 and i == 0)
        def rdB(c, i):
            a(f"ds_read_b128 {vr(BUF+12*i,4)}, v{vXA[i]} offset:{c*8192}")
            a(f"ds_read_b128 {vr(BUF+12*i+4,4)}, v{vXO[i]} offset:{c*8192}")
            for r in range(2):
                a(f"ds_read_b64_tr_b16 {vr(BUF+12*i+8+2*r,2)}, v{vQR} offset:{(c*4+i)*1024 + r*256}")
        def mmB(c, i):
            first = c == 0 and i == 0
            kvm(vr(WFK+16*c+4*i,4), vr(BUF+12*i,4), first)
            mfma(a, vr(AQ,16), vr(BUF+12*i+8,4), vr(BUF+12*i+4,4), "0" if first else vr(AQ,16))
        def loop(rd, mm, nr, hook, second=False):
            for c in range(7):
                sk = SKEW and 0 < c < 6
                a("s_barrier")
                hook(c)
                lastB = second and c == 6
                rd(c, 0); rd(c, 1)
                if sk: mm(c-1, 2)
                rd(c, 2)
                if sk: mm(c-1, 3)
                a(f"s_waitcnt lgkmcnt({2*nr})")
                rd(c, 3)
                mm(c, 0)
                a(f"s_waitcnt lgkmcnt({2*nr})")
                mm(c, 1)
                if not (SKEW and c < 5):
                    a(f"s_waitcnt lgkmcnt({nr})")
                    if lastB: a(f"ds_read_b32 v15, v{vMk}")
                    mm(c, 2)
                a("s_waitcnt lgkmcnt(0)")
                if not (SKEW and c < 5):
                    mm(c, 3)
        loop(rdA, mmA, 3, lambda c: ts("c0") if c == 0 else None)
        ts("a_mm")
        for i in range(4):
            a(f"v_add_u32 v{vXA[i]}, {L_WB}, v{vXA[i]}")
        a("s_nop 7")
        publish(kind, PKA)
        a(f"s_add_u32 s{sS0}, s{sS0}, {8 << 16}")
        ts("a_st")
        def hookB(c):
            if c == FA + 1:
                a("s_waitcnt vmcnt(0)")
                flag_set(a, vP1, sBIT, "0xf")
                ts("a_flag")
            if c == 6:
                flag_check(a, f"L_fc1{kind}", vP1, sBIT, "0xf", 0)
        loop(rdB, mmB, 4, hookB, True)
    a(f"s_cmp_lt_u32 s{sH}, 7")
    a("s_cbranch_scc0 L_vline")
    phase1("K")
    a("s_branch L_q")
    a.lab("L_vline")
    phase1("V")
    a.lab("L_q")
    ts("b_mm")
    a(f"v_readfirstlane_b32 s{sRDY}, v15")
    a("s_nop 0")
    a(f"s_bcnt1_i32_b32 s{sIT}, s{sRDY}")
    a(f"s_cmp_lt_u32 s{sIT}, 3")
    a("s_cbranch_scc1 L_noearly")
    fill3()
    a.lab("L_noearly")
    a(f"s_mov_b32 s4, {f32bits(QSCALE):#x}")
    a("s_mov_b32 s5, s4")
    for o in OT[2:]:
        for r in range(0, 10, 2):
            a(f"v_pk_mov_b32 {vr(o+r,2)}, v[30:31], v[30:31]")
    for r in range(0, 16, 2):
        a(f"v_pk_mul_f32 {vr(AQ+r,2)}, {vr(AQ+r,2)}, s[4:5]")
    Q3 = Q + 24
    for i in range(8):
        a(f"v_cvt_pk_bf16_f32 v{Q3+i}, v{AQ+2*i}, v{AQ+2*i+1}")
    a(f"s_bitcmp1_b32 s{sH}, 0")
    a("s_cselect_b32 exec_lo, -1, 0")
    a("s_mov_b32 exec_hi, 0")
    a(f"v_pk_mov_b32 {vr(Q3,2)}, v[30:31], v[30:31]")
    a("s_cselect_b32 exec_hi, 0, -1")
    a("s_mov_b32 exec_lo, 0")
    a(f"v_pk_mov_b32 {vr(Q3+6,2)}, v[30:31], v[30:31]")
    set_exec(a, HI, HI)
    a(f"ds_write_b128 v{t0}, {vr(Q3,4)} offset:2048")
    a(f"ds_write_b128 v{t0}, {vr(Q3+4,4)} offset:3072")
    a(f"s_cmp_ge_u32 s{sIT}, 3")
    a("s_cbranch_scc1 L_filled")
    fill3()
    a.lab("L_filled")
    for f in pick_ops(): f()
    a("s_waitcnt lgkmcnt(0)")
    ts("q_done")
    a("s_barrier")
    for i in range(3):
        a(f"ds_read_b128 {vr(Q+8*i,4)}, v{vT[1+i]} offset:2048")
        a(f"ds_read_b128 {vr(Q+8*i+4,4)}, v{vT[1+i]} offset:3072")
    a(f"s_cmp_lt_u32 s{sH}, 7")
    a("s_cbranch_scc0 L_pubv")
    publish("K", PKB)
    a("s_branch L_pubd")
    a.lab("L_pubv")
    publish("V", PKB)
    a.lab("L_pubd")
    a(f"s_mov_b32 s{sIT}, 3")
    a(f"s_add_u32 s{sBIT}, s{sBIT}, 8")
    vC = [2, 3, 4]; vCR = 5
    a("s_waitcnt vmcnt(10) lgkmcnt(0)")
    ts("kv0")
    def mS(part, t):
        slot = (t // 4) % 4; qt = t % 4
        d = vr(S[t % 2], 16)
        mfma(a, d, vr(KV+16*slot+4*part,4), vr(Q+8*qt+4*part,4), "0" if part == 0 else d)
    def mPV(part, t):
        slot = (t // 4) % 4; qt = t % 4
        d = vr(OT[qt], 16)
        mfma(a, d, vr(KV+16*slot+8+4*part,4), vr(P+4*part,4), d)
    def EC(t, g):
        s = S[t % 2] + 4*g
        for r in range(4):
            a(f"v_exp_f32 v{s+r}, v{s+r}")
        a(f"v_cvt_pk_bf16_f32 v{P+2*g}, v{s}, v{s+1}")
        a(f"v_cvt_pk_bf16_f32 v{P+2*g+1}, v{s+2}, v{s+3}")
    mS(0, 0)
    zr = [o + r for o in OT[2:] for r in range(10, 16, 2)] + [KV+60, KV+62] + [o + r for o in OT[:2] for r in range(0, 16, 2)]
    for r in zr[:7]:
        a(f"v_pk_mov_b32 {vr(r,2)}, v[30:31], v[30:31]")
    mS(1, 0)
    for r in zr[7:]:
        a(f"v_pk_mov_b32 {vr(r,2)}, v[30:31], v[30:31]")
    ts("att0", cyc=True)
    a.raw(".p2align 6")
    a.lab("L_loop")
    def tile(j, last=False):
        fs = [None] * 16
        if not last:
            fs[11] = lambda: a("s_waitcnt vmcnt(8)")
            po = pick_ops()
            if PFM:
                fs[2] = lambda: a(f"ds_read_b32 v15, v{vMk}")
                fs[4] = lambda: a("s_waitcnt lgkmcnt(0)")
                fs[5] = lambda: a(f"v_readfirstlane_b32 s{sRDY}, v15")
            for k, f in enumerate(po): fs[(6 if PFM else 2) + k] = f
            if j == FBJ:
                fs[12] = lambda: a(f"s_cmp_eq_u32 s{sIT}, 3")
                def br():
                    a("s_cbranch_scc1 L_flagb")
                    a.lab("L_flagb_back")
                fs[13] = br
            if j == 2:
                fs[14] = lambda: a(f"s_sub_u32 s{sIT}, s{sIT}, 1")
        else:
            def wr(i, g):
                return lambda: a(f"ds_write_b128 v{vC[i]}, {vr(OT[i]+4*g,4)} offset:{1024*g}")
            for i in range(3):
                fs[4*(i+1) + 3] = wr(i, 0)
                if i < 2:
                    for g in range(1, 4): fs[4*(i+2) + g - 1] = wr(i, g)
        for st in range(4):
            t = 4*j + st
            f = fs[4*st:4*st+4]
            if not (last and st == 3): mS(0, t+1)
            if st == 0 and not last: ldk((j + 3) % 4)
            if f[0]: f[0]()
            EC(t, 0)
            mPV(1, (t - 1) % 16)
            if st == 0 and not last: ldv((j + 3) % 4)
            if f[1]: f[1]()
            EC(t, 1)
            if not (last and st == 3): mS(1, t+1)
            if f[2]: f[2]()
            EC(t, 2)
            mPV(0, t)
            if f[3]: f[3]()
            EC(t, 3)
    def tstamp(j):
        if not (TS and TSG == 2): return
        for trip in range(4):
            a(f"s_cmp_lg_u32 s{sIT}, {3 - trip - (1 if j == 3 else 0)}")
            a(f"s_cbranch_scc1 L_ts{j}_{trip}")
            ts(f"t{4*trip + j:02d}", cyc=True, grp=2)
            a.lab(f"L_ts{j}_{trip}")
    if TS and TSG == 2:
        for n in range(16):
            ts.idx[f"t{n:02d}(cyc)"] = len(ts.names); ts.names.append(f"t{n:02d}(cyc)")
    for j in range(3):
        tstamp(j); tile(j)
    a("s_cbranch_scc1 L_last")
    tstamp(3)
    tile(3)
    a("s_branch L_loop")
    a.lab("L_last")
    ts("t15", cyc=True, grp=2)
    for i in range(3):
        a(f"v_add_u32 v{vC[i]}, s{8+i}, v1")
    a(f"v_add_u32 v{vCR}, s11, v1")
    tile(3, last=True)
    a(f"ds_write_b128 v{vC[2]}, {vr(OT[2]+4,4)} offset:1024")
    a(f"ds_write_b128 v{vC[2]}, {vr(OT[2]+8,4)} offset:2048")
    mPV(1, 15)
    a(f"ds_write_b128 v{vC[2]}, {vr(OT[2]+12,4)} offset:3072")
    ts("att1", cyc=True)
    ts("t16", cyc=True, grp=2)
    ts("att1")
    a(f"s_mov_b32 s4, {f32bits(2.0**62):#x}")
    a(f"s_mov_b32 s5, {f32bits(2.0**-62):#x}")
    a("s_waitcnt vmcnt(0) lgkmcnt(0)")
    a("s_barrier")
    F = OT[3]
    for i in range(3):
        for g in range(4):
            a(f"ds_read_b128 {vr(OT[i]+4*g,4)}, v{vCR} offset:{4096*i+1024*g}")
    a(f"s_lshl_b32 s3, s{sT}, 4")
    a(f"s_add_u32 s3, s3, s{sH}")
    a("s_lshl_b32 s3, s3, 11")
    a(f"s_add_u32 s3, s3, {O_OFF}")
    for i in range(3):
        a(f"s_waitcnt lgkmcnt({8-4*i})")
        for r in range(0, 16, 2):
            a(f"v_pk_add_f32 {vr(F+r,2)}, {vr(F+r,2)}, {vr(OT[i]+r,2)}")
    a(f"v_cmp_nge_f32 s[6:7], s4, v{F+12}")
    a(f"v_cmp_nle_f32 vcc, s5, v{F+12}")
    a("s_or_b64 s[6:7], s[6:7], vcc")
    a("s_cmp_lg_u32 s7, 0")
    a("s_cbranch_scc1 L_fallback")
    a.lab("L_norm")
    a(f"v_mov_b32 v{t0}, v{F+12}")
    a(f"v_mov_b32 v{t1}, v{F+12}")
    a("s_nop 1")
    a(f"v_permlane32_swap_b32 v{t0}, v{t1}")
    a("s_nop 1")
    a(f"v_rcp_f32 v{t1}, v{t1}")
    set_exec(a, 0, HI)
    a(f"v_mov_b32 v{F+12}, 0")
    set_exec(a, HI, HI)
    for r in range(0, 16, 2):
        a(f"v_pk_mul_f32 {vr(F+r,2)}, {vr(F+r,2)}, {vr(t0,2)} op_sel:[0,1] op_sel_hi:[1,1]")
    PO = 232
    for i in range(8):
        a(f"v_cvt_pk_bf16_f32 v{PO+i}, v{F+2*i}, v{F+2*i+1}")
    a(f"buffer_store_dwordx4 {vr(PO,4)}, v1, {sr(WS)}, s3 offen sc1")
    a(f"buffer_store_dwordx4 {vr(PO+4,4)}, v1, {sr(WS)}, s3 offen offset:1024 sc1")
    ts("o_st")
    WOF, OF, ACC, D = 64, 192, 32, 48
    a(f"s_and_b32 s3, s{sCS4}, 1")
    a("s_lshl_b32 s3, s3, 5")
    a(f"s_mul_i32 s{sA}, s{sW}, 56")
    a(f"s_add_u32 s3, s3, s{sA}")
    a(f"v_bfe_u32 v{t0}, v0, 4, 1")
    a(f"v_lshlrev_b32 v{t0}, 5, v{t0}")
    a(f"v_and_b32 v{t1}, 3, v0")
    a(f"v_lshl_add_u32 v{t0}, v{t1}, 3, v{t0}")
    a(f"v_add_u32 v{t0}, s3, v{t0}")
    a(f"v_and_b32 v{t0}, 255, v{t0}")
    a(f"v_bfe_u32 v{t1}, v0, 2, 2")
    a(f"v_lshlrev_b32 v{t2}, 6, v{t1}")
    a(f"v_xor_b32 v{t0}, v{t0}, v{t2}")
    a(f"v_lshl_add_u32 v{t2}, v{t1}, 8, v{t0}")
    a(f"v_lshrrev_b32 v{t1}, 5, v0")
    a(f"v_lshl_add_u32 v{t0}, v{t1}, 10, v{t2}")
    a(f"v_add_u32 v{t1}, 0x10000, v{t0}")
    a(f"v_add_u32 v{t2}, 0x10000, v{t2}")
    def rdwo(hh):
        for u in range(2):
            for r in range(2):
                off = L_WO + (28*hh + 16*u + 8*r) * 256
                base = t0
                if off >= 0x10000:
                    off -= 0x10000; base = t1
                if hh == 15 and u == 1 and r == 1:
                    base = t2
                a(f"ds_read_b64_tr_b16 {vr(WOF+8*hh+4*u+2*r,2)}, v{base} offset:{off}")
    for hh in range(6): rdwo(hh)
    a("s_waitcnt vmcnt(0)")
    flag_set(a, vFl2, sH, 1)
    ts("o_flag")
    for hh in range(6, 16): rdwo(hh)
    a(f"v_add_u32 v{t3}, {L_CMB}, v1")
    a(f"v_and_b32 v{t4}, 31, v0")
    a(f"v_mul_u32_u24 v{t4}, 896, v{t4}")
    a(f"v_lshrrev_b32 v{t5}, 5, v0")
    a(f"v_lshl_add_u32 v{t4}, v{t5}, 4, v{t4}")
    a(f"s_mul_i32 s{sKV}, s{sT3}, 28672")
    a(f"s_lshl_b32 s{sBb}, s{sCS4}, 2")
    a(f"s_add_u32 s{sBb}, s{sBb}, s{sW}")
    a(f"s_mul_i32 s{sBb}, s{sBb}, 56")
    a(f"s_add_u32 s{sKV}, s{sKV}, s{sBb}")
    flag_check(a, "L_fc2", vFl2, sH, 1, 0)
    a("s_barrier")
    a("s_barrier")
    ts("o_ld")
    NR, PD = 12, 10
    for f in range(PD):
        a(f"ds_read_b128 {vr(OF+4*(f%NR),4)}, v{t3} offset:{1024*f}")
    for f in range(32):
        if f + PD < 32:
            a(f"ds_read_b128 {vr(OF+4*((f+PD)%NR),4)}, v{t3} offset:{1024*(f+PD)}")
            a(f"s_waitcnt lgkmcnt({PD})")
        else:
            a(f"s_waitcnt lgkmcnt({31-f})")
        mfma(a, vr(ACC,16), vr(WOF+4*f,4), vr(OF+4*(f%NR),4), "0" if f == 0 else vr(ACC,16))
    a("s_nop 7")
    a("s_nop 3")
    for i in range(8):
        a(f"v_cvt_pk_bf16_f32 v{D+i}, v{ACC+2*i}, v{ACC+2*i+1}")
    a(f"v_permlane32_swap_b32 v{D}, v{D+2}")
    a(f"v_permlane32_swap_b32 v{D+1}, v{D+3}")
    a(f"v_permlane32_swap_b32 v{D+4}, v{D+6}")
    a(f"v_permlane32_swap_b32 v{D+5}, v{D+7}")
    a(f"buffer_store_dwordx4 {vr(D,4)}, v{t4}, {sr(OUT)}, s{sKV} offen {OSF}")
    set_exec(a, HI, 0)
    a(f"buffer_store_dwordx4 {vr(D+4,4)}, v{t4}, {sr(OUT)}, s{sKV} offen offset:32 {OSF}")
    set_exec(a, 0, HI)
    a(f"buffer_store_dwordx2 {vr(D+4,2)}, v{t4}, {sr(OUT)}, s{sKV} offen offset:32 {OSF}")
    if TS:
        a("s_waitcnt vmcnt(0)")
        ts("end")
    if TS and TSG in (0, 2): ts.dump()
    a.lab("L_end")
    a("s_endpgm")
    a.lab("L_flagb")
    if FBJ == 0: a("s_waitcnt vmcnt(4)")
    a(f"s_lshl_b32 s3, 1, s{sBIT}")
    a("v_mov_b32 v250, s3")
    set_exec(a, "0xf", 0)
    a(f"buffer_atomic_or v250, v{vP1}, {sr(WS)}, 0 offen sc1")
    set_exec(a, HI, HI)
    a("s_branch L_flagb_back")
    for n in range(npick[0]):
        a.lab(f"L_slow{n}")
        a(f"ds_read_b32 v15, v{vMk}")
        a("s_waitcnt lgkmcnt(0)")
        a(f"v_readfirstlane_b32 s{sRDY}, v15")
        a("s_nop 0")
        a(f"s_and_b32 s{sAV}, s{sRDY}, s{sTODO}")
        a(f"s_cbranch_scc0 L_slow{n}")
        a(f"s_branch L_back{n}")
    flag_retries(a)
    a.lab("L_fallback")
    srd(a, X, 14, 15, KV_BYTES)
    a(f"v_mov_b32 v{t0}, 0xff800000")
    a(f"s_mov_b32 s{sKV}, 0")
    SS = S0
    a.lab("L_fb1")
    ldk(0)
    a(f"s_add_u32 s{sKV}, s{sKV}, 0x10000")
    a("s_waitcnt vmcnt(0)")
    mfma(a, vr(SS,16), vr(KV,4), vr(Q3,4), "0")
    mfma(a, vr(SS,16), vr(KV+4,4), vr(Q3+4,4), vr(SS,16))
    a("s_nop 15")
    for r in range(0, 16, 2):
        a(f"v_max3_f32 v{t0}, v{t0}, v{SS+r}, v{SS+r+1}")
    a(f"s_cmp_lt_u32 s{sKV}, {KV_BYTES}")
    a("s_cbranch_scc1 L_fb1")
    a(f"v_mov_b32 v{t1}, v{t0}")
    a("s_nop 1")
    a(f"v_permlane32_swap_b32 v{t0}, v{t1}")
    a("s_nop 1")
    a(f"v_max_f32 v{t0}, v{t0}, v{t1}")
    for r in range(16):
        a(f"v_mov_b32 v{F+r}, 0")
    a(f"s_mov_b32 s{sKV}, 0")
    a.lab("L_fb2")
    ldk(0); ldv(0)
    a(f"s_add_u32 s{sKV}, s{sKV}, 0x10000")
    a("s_waitcnt vmcnt(0)")
    mfma(a, vr(SS,16), vr(KV,4), vr(Q3,4), "0")
    mfma(a, vr(SS,16), vr(KV+4,4), vr(Q3+4,4), vr(SS,16))
    a("s_nop 15")
    for r in range(16):
        a(f"v_sub_f32 v{SS+r}, v{SS+r}, v{t0}")
    for r in range(16):
        a(f"v_exp_f32 v{SS+r}, v{SS+r}")
    a("s_nop 0")
    for i in range(8):
        a(f"v_cvt_pk_bf16_f32 v{P+i}, v{SS+2*i}, v{SS+2*i+1}")
    a("s_nop 1")
    mfma(a, vr(F,16), vr(KV+8,4), vr(P,4), vr(F,16))
    mfma(a, vr(F,16), vr(KV+12,4), vr(P+4,4), vr(F,16))
    a(f"s_cmp_lt_u32 s{sKV}, {KV_BYTES}")
    a("s_cbranch_scc1 L_fb2")
    a("s_nop 15")
    a("s_branch L_norm")
    if TS:
        open("stamps.txt", "w").write(",".join(ts.names))
    return name

def main():
    a = A()
    name = kernel(a)
    head = open(f"cdna_kernels/{NAME}.s.ref").read().split("; Override")[0]
    out = head
    out += f"; @launch grid=(256,1,1) block=(512,1,1) lds={LDS_BYTES}\n"
    out += '.amdgcn_target "amdgcn-amd-amdhsa--gfx950"\n.text\n'
    out += a.text()
    out += f""".section .rodata,"a"
.p2align 6
.amdhsa_kernel {name}
  .amdhsa_next_free_vgpr 256
  .amdhsa_next_free_sgpr 102
  .amdhsa_accum_offset 256
  .amdhsa_group_segment_fixed_size 0
  .amdhsa_kernarg_size 48
  .amdhsa_user_sgpr_count 2
  .amdhsa_user_sgpr_kernarg_segment_ptr 1
  .amdhsa_system_sgpr_workgroup_id_x 1
.end_amdhsa_kernel
"""
    o = [x for x in sys.argv[1:] if not x.startswith("--")]
    path = o[0] if o else f"cdna_kernels/{NAME}.s"
    open(path, "w").write(out)
main()
```

```python
import sys, struct, math

NAME = "standalone__softmax_full_mha__prompt"
FL_OFF = 5 << 20
EP_OFF = 0xff00
O_OFF = 6 << 20
TS_OFF = 8 << 20
WS_BYTES = 12 << 20
X_BYTES = 2048 * 448 * 2
W_BYTES = 448 * 1344 * 2
WO_BYTES = 448 * 448 * 2
OUT_BYTES = 2048 * 448 * 2
KV_BYTES = 4 << 20
V_BASE = 28672
V_CT = 640
V_PLANE = 14 * V_CT
QSCALE = 28 ** -0.5 * math.log2(math.e)

def opt(name, default):
    for arg in sys.argv:
        if arg.startswith(f"--{name}="):
            return int(arg.split("=")[1])
    return default
TS = "--ts" in sys.argv
TSG = opt("tsg", 0)
MAP = opt("maph", 3)
FSH = opt("fsh", 8)
SLEEP = opt("sleep", 1)
LA = opt("la", 3)
FA = opt("fa", 2)
BAL = opt("bal", 1)
SPF = opt("spf", 1)
ROT = opt("rot", 0)
NBF = opt("nbf", 0)
SL2 = opt("sl2", 2)
SKEW = opt("skew", 1)
PFM = opt("pfm", 0)
PIS = opt("pis", 12)
FBJ = opt("fbj", 1)
WROT = opt("wrot", 1)
WSL = opt("wsl", 3)
THR = opt("thr", 0)
CPF = opt("cpf", 0)
PADE = opt("pade", 0)
EB = opt("eb", 6)
PDA = opt("pda", 0)
PDB = opt("pdb", 3)
VPF = opt("vpf", -1)
SCP = opt("scp", 0)
SCW = opt("scw", 0)
OSF = ["", "sc1", "nt", "sc0 sc1", "sc1 nt"][opt("osf", 0)]
NOFL = 512

def f32bits(x):
    return struct.unpack("<I", struct.pack("<f", x))[0]

class A:
    def __init__(self):
        self.l = []
    def __call__(self, s):
        for line in s.strip("\n").split("\n"):
            self.l.append("    " + line.strip())
    def lab(self, n):
        self.l.append(n + ":")
    def raw(self, s):
        self.l.append(s)
    def text(self):
        return "\n".join(self.l) + "\n"

def vr(b, n, k="v"):
    return f"{k}[{b}:{b+n-1}]"
def sr(b):
    return f"s[{b}:{b+3}]"

def srd(a, d, lo, hi, nbytes):
    a(f"s_mov_b32 s{d}, s{lo}")
    a(f"s_and_b32 s{d+1}, s{hi}, 0xffff")
    a(f"s_mov_b32 s{d+2}, {nbytes}")
    a(f"s_mov_b32 s{d+3}, 0x20000")

HI = "0xffffffff"
def set_exec(a, lo, hi):
    if lo == HI and hi == HI:
        a("s_mov_b64 exec, -1")
    elif hi == 0 and lo in (1, "0xf"):
        a(f"s_mov_b64 exec, {int(str(lo), 0)}")
    else:
        a(f"s_mov_b32 exec_lo, {lo}")
        a(f"s_mov_b32 exec_hi, {hi}")

class Stamps:
    def __init__(self, a):
        self.a = a; self.idx = {}; self.names = []
    def __call__(self, name, cyc=False, grp=0):
        if not TS: return
        if name != "start" and grp != TSG: return
        nm = name + ("(cyc)" if cyc else "")
        if nm not in self.idx:
            self.idx[nm] = len(self.names); self.names.append(nm)
        b = 66 + 2 * self.idx[nm]
        assert b + 1 < 102
        self.a(f"s_memtime s[{b}:{b+1}]" if cyc else f"s_memrealtime s[{b}:{b+1}]")
    def dump(self):
        if not TS: return
        a = self.a
        sp = [x for x in sys.argv if x.startswith("--spin=")]
        if sp:
            hi, lo, m = sp[0][7:].split(",")
            a("s_waitcnt lgkmcnt(0)")
            if lo == "G":
                a("v_mov_b32 v2, 0")
                a(f"buffer_load_dword v4, v2, {sr(DBG)}, 0 offen offset:192 sc1")
                a("s_waitcnt vmcnt(0)")
                a("v_readfirstlane_b32 s4, v4")
                a("s_nop 0")
                a("s_not_b32 s4, s4")
                a(f"s_sub_u32 s3, s{66+2*self.idx[hi]}, s4")
            else:
                a(f"s_sub_u32 s3, s{66+2*self.idx[hi]}, s{66+2*self.idx[lo]}")
            only = opt("only", -1)
            if only >= 0:
                a("s_and_b32 s4, s2, 7")
                a(f"s_cmp_eq_u32 s4, {only}")
                a("s_cselect_b32 s3, s3, 0")
            a(f"s_mul_i32 s3, s3, {m}")
            if opt("fix", 0): a(f"s_mov_b32 s3, {opt('fix', 0)}")
            if opt("rep", -1) >= 0:
                a("s_not_b32 s4, s64")
                a("s_cmp_eq_u32 s4, s65")
                a("s_cselect_b32 s3, s3, 0" if opt("rep", -1) == 1 else "s_cselect_b32 s3, 0, s3")
            if opt("pat", -1) >= 0:
                a("s_cmp_eq_u32 s64, s65")
                a("s_cselect_b32 s3, s3, 0" if opt("pat", -1) == 1 else "s_cselect_b32 s3, 0, s3")
            a(f"s_add_u32 s3, s3, s{66+2*self.idx['end' if TSG == 0 else 'h_stage']}")
            a.lab("L_spin")
            a("s_memrealtime s[4:5]")
            a("s_waitcnt lgkmcnt(0)")
            a("s_sub_u32 s4, s4, s3")
            a("s_cmp_lt_i32 s4, 0")
            a("s_cbranch_scc1 L_spin")
            return
        if "--dbg" in sys.argv:
            sel = ["start", "start", "c0", "kv_mm", "b7", "q_done", "kv0", "att1", "o_flag", "o_ld", "end"]
            a("s_waitcnt lgkmcnt(0)")
            a(f"s_cmp_lg_u32 s{sW}, 0")
            a("s_cbranch_scc1 L_end")
            a("s_mov_b64 exec, 1")
            a("v_mov_b32 v2, 0")
            for i, nm in enumerate(sel):
                a(f"v_mov_b32 v4, s{66+2*self.idx[nm]}")
                if i == 0: a("v_not_b32 v4, v4")
                a(f"buffer_atomic_umax v4, v2, {sr(DBG)}, 0 offen offset:{8+4*i} sc1")
                a("s_nop 1")
            for i, nm in enumerate(["end", "kv0", "c0"]):
                a(f"s_sub_u32 s3, s{66+2*self.idx[nm]}, s66")
                a("v_mov_b32 v4, s3")
                a(f"buffer_atomic_umax v4, v2, {sr(DBG)}, 0 offen offset:{52+4*i} sc1")
                a("s_nop 1")
            a("s_waitcnt vmcnt(0)")
            return
        a("s_waitcnt lgkmcnt(0)")
        a(f"s_lshl_b32 s3, s2, 2")
        a(f"s_add_u32 s3, s3, s{sW}")
        a(f"s_lshl_b32 s3, s3, 7")
        a(f"s_add_u32 s3, s3, {TS_OFF}")
        a("s_mov_b64 exec, 1")
        a("v_mov_b32 v2, 0")
        for i in range(18):
            a(f"v_mov_b32 v4, s{66+2*i}")
            a(f"buffer_store_dword v4, v2, {sr(WS)}, s3 offen offset:{4*i}")
            a("s_nop 1")
        a("s_waitcnt vmcnt(0)")

X, W, WO, OUT, DBG, WS, KVS = 16, 20, 24, 28, 32, 36, 40
WQS = KVS
sH, sB, sW, sT = 44, 45, 46, 47
sKC, sXB, sWB, sWM = 48, 49, 50, 52
sRDY, sTODO, sAV, sS0, sS1 = 48, 49, 50, 51, 52
sA, sBb = 53, 54
sKV, sIT, sWQ, sWoS, sCNT = 55, 56, 57, 58, 59
sBIT, sTAG = 60, 61
sKQ = 51
sT3, sCS4 = 62, 63
sROT = 57
L_XA, L_WB, L_WQ = 0, 57344, 114688
L_WO, L_CMB = 0, 114688
LDS_BYTES = 163840
vXA = [2, 3, 4, 5]
vXO = [6, 7, 8, 9]
vWR, vQR, vP1, vFl2, vMk = 10, 11, 12, 13, 14
vKo, vV0, vV1, vPad = 16, 17, 18, 19
vT = [20, 21, 22, 23, 24, 25]
PADC = 26
AK, AQ, WFK, BUF, PKA, PKB = 32, 48, 64, 176, 224, 232
KV, Q, S0, P = 64, 128, 160, 240
OT = [32, 48, 192, 208]
S = [S0, S0 + 16]

def decode_hb(a):
    nhg = 16 >> MAP
    lg = int(math.log2(nhg))
    a(f"s_and_b32 s{sH}, s2, {nhg-1}")
    a(f"s_lshl_b32 s{sH}, s{sH}, {MAP}")
    a(f"s_lshr_b32 s3, s2, 3")
    a(f"s_and_b32 s{sB}, s3, {(1<<MAP)-1}")
    a(f"s_add_u32 s{sH}, s{sH}, s{sB}")
    a(f"s_lshr_b32 s3, s3, {MAP}")
    a(f"s_and_b32 s{sB}, s2, 7")
    a(f"s_lshr_b32 s{sB}, s{sB}, {lg}")
    a(f"s_mul_i32 s{sB}, s{sB}, {32>>MAP}")
    a(f"s_add_u32 s{sB}, s{sB}, s3")
    if BAL:
        a(f"s_lshr_b32 s3, s{sH}, 3")
        a(f"s_sub_u32 s{sBb}, s{sH}, s3")
        a("s_add_u32 s3, s3, 14")
        a(f"s_and_b32 s{sH}, s{sH}, 7")
        a(f"s_cmp_eq_u32 s{sH}, 7")
        a(f"s_cselect_b32 s{sH}, s3, s{sBb}")

def mfma(a, d, x, y, c):
    a(f"v_mfma_f32_32x32x16_bf16 {d}, {x}, {y}, {c}")

vR = 252
def flag_read(a, vaddr, off=0):
    a(f"v_mov_b32 v{vR}, 0")
    a(f"v_mov_b32 v{vR+1}, 0")
    a(f"buffer_atomic_or_x2 v[{vR}:{vR+1}], v{vaddr}, {sr(WS)}, 0 offen offset:{off} sc0 sc1")

def flag_bits(a):
    a(f"v_cmp_eq_u32 vcc, s{sTAG}, v{vR+1}")
    a("s_nop 1")
    a(f"v_cndmask_b32 v{vR}, 0, v{vR}, vcc")

def poll(a, label, vaddr, lo, hi, smask, off=0):
    a(f"s_mov_b32 s{sCNT}, 0x100000")
    set_exec(a, lo, hi)
    a(f"s_branch {label}_in")
    a.lab(label)
    if SLEEP: a(f"s_sleep {SLEEP}")
    a.lab(label + "_in")
    flag_read(a, vaddr, off)
    a(f"s_sub_u32 s{sCNT}, s{sCNT}, 1")
    a(f"s_cbranch_scc1 {label}_done")
    a("s_waitcnt vmcnt(0)")
    flag_bits(a)
    a(f"v_and_b32 v{vR}, {smask}, v{vR}")
    a(f"v_cmp_ne_u32 vcc, {smask}, v{vR}")
    a(f"s_cbranch_vccnz {label}")
    a.lab(label + "_done")
    set_exec(a, HI, HI)

def flag_set(a, vaddr, sbit, lo):
    a(f"s_lshl_b32 s3, 1, s{sbit}")
    a("v_mov_b32 v250, s3")
    a("v_mov_b32 v251, 0")
    set_exec(a, lo, 0)
    a(f"buffer_atomic_or_x2 v[250:251], v{vaddr}, {sr(WS)}, 0 offen sc0 sc1")
    set_exec(a, HI, HI)

def flag_check(a, label, vaddr, sbit, lo, wait):
    a(f"s_mov_b32 s{sCNT}, 0x100000")
    a(f"s_waitcnt vmcnt({wait})")
    a.lab(label)
    set_exec(a, lo, 0)
    a(f"v_cmp_ne_u32 vcc, s{sTAG}, v251")
    set_exec(a, HI, HI)
    a(f"s_cbranch_vccnz {label}_again")
    a.lab(label + "_ok")
    RETRY.append((label, vaddr, sbit, lo))
RETRY = []
def flag_retries(a):
    for label, vaddr, sbit, lo in RETRY:
        a.lab(label + "_again")
        a(f"s_sub_u32 s{sCNT}, s{sCNT}, 1")
        a(f"s_cbranch_scc1 {label}_ok")
        a("s_sleep 4")
        flag_set(a, vaddr, sbit, lo)
        a("s_waitcnt vmcnt(0)")
        a(f"s_branch {label}")

def kv_poll_addr(a, vd, t0):
    a(f"s_mul_i32 s4, s{sH}, 56")
    a("s_and_b32 s5, s4, 0xfffffff0")
    a(f"v_mov_b32 v{t0}, s5")
    a("s_add_u32 s5, s5, 62")
    a(f"v_writelane_b32 v{t0}, s5, 1")
    a("s_add_u32 s5, s4, 896")
    a(f"v_writelane_b32 v{t0}, s5, 2")
    a("s_add_u32 s5, s4, 950")
    a(f"v_writelane_b32 v{t0}, s5, 3")
    a(f"v_lshrrev_b32 v{t0}, 6, v{t0}")
    a(f"v_lshlrev_b32 v{t0}, {FSH+4}, v{t0}")
    a(f"s_and_b32 s3, s{sH}, 3")
    a(f"s_lshl2_add_u32 s3, s3, s{sW}")
    a(f"s_lshl_b32 s3, s3, {FSH}")
    a(f"s_add_u32 s3, s3, {FL_OFF}")
    a(f"v_add_u32 v{vd}, s3, v{t0}")

def mask_addr(a, vd):
    a(f"s_lshl_b32 s3, s{sW}, 12")
    a(f"s_sub_u32 s3, {L_CMB + 45056}, s3")
    a(f"v_mov_b32 v{vd}, s3")

def helper(a, ts):
    vX0, vX1, vW0, vW1, vWq = 2, 3, 6, 7, 8
    vZ, vP, vM, vWo = 9, 11, 12, 13
    a("v_lshrrev_b32 v7, 3, v0")
    a("v_mul_u32_u24 v2, 896, v7")
    a("v_and_b32 v6, 7, v0")
    a("v_lshrrev_b32 v4, 4, v0")
    a("v_xor_b32 v3, v6, v4")
    a("v_lshl_add_u32 v2, v3, 4, v2")
    a("v_xor_b32 v3, 64, v2")
    a("v_add_u32 v3, 6144, v3")
    a("v_and_b32 v4, 1, v4")
    a("v_lshlrev_b32 v4, 2, v4")
    a("v_xor_b32 v6, v6, v4")
    a("v_mul_u32_u24 v7, 2688, v7")
    a(f"v_lshl_add_u32 v{vW0}, v6, 4, v7")
    a(f"v_add_u32 v{vW1}, {8*2688-1024}, v{vW0}")
    a(f"s_lshl3_add_u32 s{sXB}, s{sB}, s{sW}")
    a(f"s_mul_i32 s{sXB}, s{sXB}, {16*896}")
    a(f"s_mul_i32 s{sWQ}, s{sW}, 43008")
    a(f"s_lshl_b32 s{sWB}, s{sH}, 7")
    a(f"s_add_u32 s{sWB}, s{sWB}, s{sWQ}")
    a(f"s_add_u32 s{sWB}, s{sWB}, 896")
    a(f"s_mov_b32 s{sWoS}, {64*896}")
    if SPF:
        a(f"s_cmp_lt_u32 s{sH}, 14")
        a("s_cbranch_scc1 L_nspare")
        if SPF in (1, 3, 4):
            a(f"s_add_u32 s{sXB}, s{sXB}, {64*896}")
            a(f"s_mov_b32 s{sWoS}, {-64*896}")
        if SPF in (1, 3, 4):
            a(f"s_and_b32 s3, s{sH}, 1")
            a("s_mul_i32 s3, s3, 3")
            a(f"s_and_b32 s{sWB}, s{sB}, 3")
            a(f"s_add_u32 s{sWB}, s{sWB}, s3")
            a(f"s_lshl_b32 s{sWB}, s{sWB}, 7")
            a(f"s_add_u32 s{sWB}, s{sWB}, s{sWQ}")
        else:
            a(f"s_add_u32 s{sWB}, s{sWQ}, 768")
        a.lab("L_nspare")
    a(f"s_lshl_b32 s{sWM}, s{sW}, 11")
    a(f"s_lshl1_add_u32 s3, s{sB}, s{sH}")
    a(f"s_mul_i32 s{sA}, s3, 37")
    a(f"s_lshr_b32 s{sA}, s{sA}, 8")
    a(f"s_mul_i32 s{sA}, s{sA}, 7")
    a(f"s_sub_u32 s{sKC}, s3, s{sA}")
    a(f"s_mov_b32 s{X+2}, {X_BYTES}")
    a(f"s_mov_b32 s{X+3}, 0x20000")
    if SPF in (1, 2):
        a(f"s_mov_b32 s{W+2}, {W_BYTES}")
    else:
        a(f"s_cmp_lt_u32 s{sH}, 14")
        a(f"s_cselect_b32 s{W+2}, {W_BYTES}, 0")
    a(f"s_mov_b32 s{W+3}, 0x20000")
    a("s_waitcnt lgkmcnt(0)")
    a(f"s_load_dword s{sTAG}, s[14:15], {EP_OFF}")
    a(f"s_mov_b32 s{X}, s4")
    a(f"s_and_b32 s{X+1}, s5, 0xffff")
    a(f"s_mov_b32 s{W}, s6")
    a(f"s_and_b32 s{W+1}, s7, 0xffff")
    def adv(r):
        a(f"s_add_u32 s{r}, s{r}, 1")
        a(f"s_cmp_eq_u32 s{r}, 7")
        a(f"s_cselect_b32 s{r}, 0, s{r}")
    def issue(u):
        kind, c = u[0], int(u[1])
        if kind == "A":
            if SPF == 4 and c == opt("spw", 4): a(f"s_mov_b32 s{W+2}, {W_BYTES}")
            a(f"s_mul_i32 s{sBb}, s{sKC}, 172032")
            a(f"s_add_u32 m0, s{sWM}, {L_WB + c*8192}")
            a(f"s_add_u32 s{sBb}, s{sBb}, s{sWB}")
            a(f"buffer_load_dwordx4 v{vW0}, {sr(W)}, s{sBb} offen lds")
            a(f"buffer_load_dwordx4 v{vW1}, {sr(W)}, s{sBb} offen offset:1024 lds")
        if kind == "Q":
            a(f"s_mul_i32 s{sBb}, s{sKQ}, 172032")
            a(f"s_add_u32 m0, s{sIT}, {L_WQ + c*4096}")
            a(f"s_add_u32 s{sBb}, s{sBb}, s{sWQ}")
            a(f"buffer_load_dwordx4 v{vWq}, {sr(WQS)}, s{sBb} offen lds")
            adv(sKQ)
            return [u]
        if u == "B0": a(f"s_add_u32 s{sXB}, s{sXB}, s{sWoS}")
        a(f"s_lshl_b32 s{sA}, s{sKC}, 7")
        a(f"s_add_u32 m0, s{sWM}, {(L_XA if kind == 'A' else L_WB) + c*8192}")
        a(f"s_add_u32 s{sA}, s{sA}, s{sXB}")
        a(f"buffer_load_dwordx4 v{vX0}, {sr(X)}, s{sA} offen lds")
        a(f"buffer_load_dwordx4 v{vX1}, {sr(X)}, s{sA} offen offset:1024 lds")
        adv(sKC)
        return [u] * (4 if kind == "A" else 2)
    a(f"s_mov_b32 s{sKQ}, s{sKC}")
    order = []
    for u in ("A0", "A1", "A2"): order += issue(u)
    ts("h_iss", grp=1)
    srd(a, WS, 14, 15, WS_BYTES)
    srd(a, WO, 8, 9, WO_BYTES)
    srd(a, WQS, 6, 7, W_BYTES)
    a("v_lshlrev_b32 v1, 4, v0")
    a("v_and_b32 v15, 3, v0")
    a(f"v_lshrrev_b32 v{vWq}, 2, v0")
    a(f"v_mul_u32_u24 v{vWq}, 2688, v{vWq}")
    a(f"v_lshl_add_u32 v{vWq}, v15, 4, v{vWq}")
    a(f"s_mul_i32 s3, s{sH}, 56")
    a("s_and_b32 s3, s3, 0xfffffff0")
    a(f"s_add_u32 s{sWQ}, s{sWQ}, s3")
    a(f"s_lshr_b32 s{sIT}, s{sWM}, 1")
    a(f"v_mov_b32 v{vZ}, 0")
    kv_poll_addr(a, vP, 16)
    mask_addr(a, vM)
    a(f"ds_write_b32 v{vM}, v{vZ}")
    a(f"s_lshr_b32 s3, s{sB}, 2")
    a(f"s_lshl1_add_u32 s3, s{sB}, s3")
    a(f"s_and_b32 s64, s3, 7")
    def poll_issue():
        set_exec(a, "0xf", 0)
        flag_read(a, vP)
        set_exec(a, HI, HI)
    def poll_take():
        a("s_waitcnt vmcnt(0)")
        flag_bits(a)
        a("s_nop 0")
        for i in range(4):
            a(f"v_readlane_b32 s{4+i}, v{vR}, {i}")
        a("s_and_b32 s4, s4, s5")
        a("s_and_b32 s6, s6, s7")
        a("s_and_b32 s4, s4, s6")
        if ROT:
            a("s_and_b32 s5, s4, 0xff")
            a("s_and_b32 s6, s4, 0xff00")
            a("s_lshl_b32 s6, s6, 8")
            a("s_or_b32 s5, s5, s6")
            a("s_lshl_b32 s6, s5, 8")
            a("s_or_b32 s5, s5, s6")
            a("s_lshr_b32 s5, s5, s64")
            a("s_and_b32 s4, s5, 0xff")
            a("s_lshr_b32 s5, s5, 8")
            a("s_and_b32 s5, s5, 0xff00")
            a("s_or_b32 s4, s4, s5")
        a("s_cmp_eq_u32 s4, 0xffff")
        a("s_cselect_b32 s4, 0x7ffff, s4")
        a("v_mov_b32 v15, s4")
        a(f"ds_write_b32 v{vM}, v15")
    PLANS = {
      0: [(["A3"], "A0"), (["A4"], "A1"), (["A5"], "A2"), (["A6"], "A3"), (["B0", "B1"], "A4"), (["B2", "B3"], "A5"), (["B4"], "A6"),
          (["B5"], "B1"), (["B6", "Q0", "Q1"], "B3"), (["Q2", "Q3"], "B5"), (["Q4", "Q5", "Q6"], "Q1"), ([], "Q3"), (["P"], "Q5"), ([], "Q6")],
      1: [(["A3"], "A0"), (["A4"], "A1"), (["A5"], "A2"), (["A6"], "A3"), (["B0", "B1"], "A4"), (["B2", "B3"], "A5"), (["B4", "Q0"], "A6"),
          (["B5", "Q1"], "B1"), (["B6", "Q2", "Q3"], "B3"), (["Q4", "Q5"], "B5"), (["Q6"], "B6"), ([], "Q3"), (["P"], "Q5"), ([], "Q6")],
      3: [(["A3"], "A0"), (["A4"], "A1"), (["A5"], "A2"), (["A6"], "A3"), (["B0", "B1"], "A4"), (["B2", "B3"], "A5"), (["B4"], "A6"),
          (["B5"], "B1"), (["B6", "Q0", "Q1"], "B3"), (["Q2", "Q3", "Q4"], "B5"), (["Q5", "Q6"], "Q1"), (["P"], "Q3"), ([], "Q5"), ([], "Q6")],
      2: [(["A3"], "A0"), (["A4"], "A1"), (["A5"], "A2"), (["A6"], "A3"), (["B0"], "A4"), (["B1", "B2"], "A5"), (["B3"], "A6"),
          ([], "B1"), (["B4", "B5", "B6", "Q0", "Q1"], "B3"), (["Q2", "Q3"], "B5"), (["Q4", "Q5", "Q6"], "Q1"), ([], "Q3"), (["P"], "Q5"), ([], "Q6")],
    }
    for n, (us, need) in enumerate(PLANS[opt("plan", 3)]):
        for u in us:
            if u == "P":
                a("s_waitcnt lgkmcnt(0)")
                a(f"s_xor_b32 s{sTAG}, s{sTAG}, 0x5ac3a53c")
                poll_issue(); order.append(u)
            else:
                order += issue(u)
        last = max(i for i, x in enumerate(order) if x == need)
        a(f"s_waitcnt vmcnt({len(order) - 1 - last})")
        if n in (0, 3, 6, 7, 10, 13): ts(f"w{n}", grp=1)
        a("s_barrier")
    if SCW:
        a("s_lshr_b32 s3, s2, 3")
        a(f"s_lshl2_add_u32 s3, s3, s{sW}")
        a("s_mul_i32 s3, s3, 3136")
        a("s_and_b32 s3, s3, 0xffffff80")
        a("s_add_u32 s8, s8, s3")
        a("s_addc_u32 s9, s9, 0")
        for i in range(25):
            a(f"s_load_dword s10, s[8:9], {128*i}")
    a(f"s_mov_b32 s{sCNT}, 0x100000")
    a(f"s_mov_b32 s{sIT}, 0")
    a("s_branch L_hpoll_in")
    a.lab("L_hpoll")
    a(f"s_sub_u32 s{sCNT}, s{sCNT}, 1")
    a("s_cbranch_scc1 L_hpoll_giveup")
    poll_issue()
    a.lab("L_hpoll_in")
    poll_take()
    a("s_cmp_eq_u32 s4, 0x7ffff")
    a("s_cbranch_scc1 L_hpoll_done")
    a("s_bcnt1_i32_b32 s5, s4")
    a("s_cmp_lt_u32 s5, 2")
    a(f"s_cselect_b32 s5, 1, s{sIT}")
    a("s_cmp_lg_u32 s5, 0")
    a("s_cbranch_scc1 L_hnob8")
    a("s_barrier")
    a(f"s_mov_b32 s{sIT}, 1")
    a.lab("L_hnob8")
    a(f"s_sleep {SLEEP}")
    a(f"s_cmp_eq_u32 s{sIT}, 0")
    a("s_cbranch_scc1 L_hpoll")
    a(f"s_sleep {SL2}")
    a("s_branch L_hpoll")
    a.lab("L_hpoll_giveup")
    a("v_mov_b32 v15, 0x7ffff")
    a(f"ds_write_b32 v{vM}, v15")
    a.lab("L_hpoll_done")
    a(f"s_cmp_lg_u32 s{sIT}, 0")
    a("s_cbranch_scc1 L_hb8done")
    a("s_barrier")
    a.lab("L_hb8done")
    ts("h_all", grp=1)
    a("v_lshrrev_b32 v16, 4, v0")
    a(f"v_mul_u32_u24 v{vWo}, 896, v16")
    a("v_lshlrev_b32 v16, 2, v16")
    a("v_and_b32 v17, 15, v0")
    a("v_xor_b32 v16, v16, v17")
    a(f"v_lshl_add_u32 v{vWo}, v16, 4, v{vWo}")
    a(f"s_mul_i32 s{sWoS}, s{sCS4}, 224")
    a(f"s_and_b32 s{sWoS}, s{sWoS}, 0xffffffc0")
    a(f"s_mul_i32 s3, s{sW}, {28*3584}")
    a(f"s_add_u32 s{sWoS}, s{sWoS}, s3")
    a(f"s_mul_i32 s{sWM}, s{sW}, {28*1024}")
    if WROT:
        a(f"s_and_b32 s{sKC}, s{sT3}, 15")
        a(f"s_mul_i32 s{sKC}, s{sKC}, 7")
        a(f"s_lshr_b32 s{sKC}, s{sKC}, 2")
    else:
        a(f"s_mov_b32 s{sKC}, 0")
    a(f"s_mov_b32 s{sIT}, 28")
    a.lab("L_wo")
    a(f"s_lshl_b32 s3, s{sKC}, 10")
    a(f"s_add_u32 m0, s3, s{sWM}")
    a(f"s_mul_i32 s3, s{sKC}, 3584")
    a(f"s_add_u32 s3, s3, s{sWoS}")
    a(f"buffer_load_dwordx4 v{vWo}, {sr(WO)}, s3 offen lds")
    a(f"s_sleep {WSL}")
    a(f"s_add_u32 s{sKC}, s{sKC}, 1")
    a(f"s_cmp_eq_u32 s{sKC}, 28")
    a(f"s_cselect_b32 s{sKC}, 0, s{sKC}")
    a(f"s_sub_u32 s{sIT}, s{sIT}, 1")
    a(f"s_cmp_lg_u32 s{sIT}, 0")
    a("s_cbranch_scc1 L_wo")
    a(f"s_lshl_b32 s3, s{sT3}, {FSH}")
    a(f"s_add_u32 s3, s3, {FL_OFF + (NOFL << FSH)}")
    a(f"v_mov_b32 v{vP}, s3")
    a(f"s_lshl_b32 s4, s{sW}, 2")
    a("s_lshl_b32 s4, 15, s4")
    a(f"s_lshl_b32 s3, s{sT3}, 2")
    a(f"s_add_u32 s3, s3, s{sW}")
    a("s_lshl_b32 s3, s3, 13")
    a(f"s_add_u32 s3, s3, {O_OFF}")
    a(f"s_add_u32 s{sA}, s3, 4096")
    a(f"s_lshl_b32 s{sBb}, s{sW}, 13")
    a(f"s_add_u32 s{sBb}, s{sBb}, {L_CMB}")
    a(f"v_add_u32 v{vM}, s{sBb}, v1")
    a("s_waitcnt vmcnt(0) lgkmcnt(0)")
    ts("h_wo", grp=1)
    a("s_barrier")
    poll(a, "L_poll2", vP, 1, 0, "s4")
    ts("h_poll2", grp=1)
    for f in range(8):
        a(f"buffer_load_dwordx4 {vr(32+4*f,4)}, v1, {sr(WS)}, {'s3' if f < 4 else 's%d' % sA} offen offset:{1024*(f%4)} sc1")
    a("s_barrier")
    for f in range(8):
        a(f"s_waitcnt vmcnt({7-f})")
        a(f"ds_write_b128 v{vM}, {vr(32+4*f,4)} offset:{1024*f}")
    a("s_waitcnt lgkmcnt(0)")
    ts("h_stage", grp=1)
    a("s_barrier")
    a(f"s_or_b32 s3, s2, s{sW}")
    a("s_cmp_lg_u32 s3, 0")
    a("s_cbranch_scc1 L_noep")
    a(f"v_lshlrev_b32 v{vP}, {FSH}, v0")
    a(f"v_add_u32 v{vP}, {FL_OFF + (NOFL << FSH)}, v{vP}")
    poll(a, "L_pollep", vP, HI, HI, "0xffff")
    a(f"s_xor_b32 s3, s{sTAG}, 0x5ac3a53c")
    a("s_add_u32 s3, s3, 0x9e3779b9")
    a("v_mov_b32 v15, s3")
    a(f"v_mov_b32 v{vP}, {EP_OFF}")
    set_exec(a, 1, 0)
    a(f"buffer_store_dword v15, v{vP}, {sr(WS)}, 0 offen sc1")
    if opt("rep", -1) >= 0:
        a("v_not_b32 v16, v15")
        a(f"buffer_store_dword v16, v{vP}, {sr(WS)}, 0 offen offset:4 sc1")
    a.lab("L_noep")
    if TS and TSG == 1: ts.dump()
    a("s_endpgm")

def kernel(a):
    name = NAME + "_kernel"
    a.raw(f".globl {name}")
    a.raw(".p2align 8")
    a.raw(f".type {name},@function")
    a.lab(name)
    ts = Stamps(a)
    ts("start")
    a("s_cmp_ge_u32 s2, 256")
    a("s_cbranch_scc1 L_end")
    a("s_load_dwordx8 s[4:11], s[0:1], 0")
    a("s_load_dwordx4 s[12:15], s[0:1], 32")
    a("v_lshrrev_b32 v1, 6, v0")
    a("v_and_b32 v0, 63, v0")
    a(f"v_readfirstlane_b32 s{sA}, v1")
    decode_hb(a)
    a(f"s_and_b32 s{sW}, s{sA}, 3")
    a(f"s_lshl_b32 s{sT}, s{sB}, 2")
    a(f"s_and_b32 s{sT3}, s{sH}, 3")
    a(f"s_add_u32 s{sT3}, s{sT3}, s{sT}")
    a(f"s_add_u32 s{sT}, s{sT}, s{sW}")
    a(f"s_lshr_b32 s{sCS4}, s{sH}, 2")
    a(f"s_cmp_lt_u32 s{sA}, 4")
    a("s_cbranch_scc1 L_compute")
    helper(a, ts)
    a.lab("L_compute")
    t0, t1, t2, t3, t4, t5 = vT
    if CPF:
        a(f"s_cmp_lt_u32 s{sH}, {14 if CPF == 1 else 0}")
        a("s_cbranch_scc1 L_nocpf")
        a("s_getpc_b64 s[20:21]")
        a(f"s_lshl_b32 s3, s{sW}, 12")
        a("v_lshl_add_u32 v254, v0, 6, s3")
        a(f"v_min_u32 v254, L_codeend - L_compute - 64, v254")
        a("global_load_dword v255, v254, s[20:21]")
        a.lab("L_nocpf")
    a("s_waitcnt lgkmcnt(0)")
    a(f"s_load_dword s{sTAG}, s[14:15], {EP_OFF}")
    if opt("rep", -1) >= 0: a(f"s_load_dwordx2 s[64:65], s[14:15], {EP_OFF}")
    if SCP:
        a("s_bfe_u32 s3, s2, 0x30003")
        a(f"s_cmp_ge_u32 s{sW}, 2")
        a("s_cbranch_scc1 L_scw")
        a(f"s_lshl4_add_u32 s3, s{sB}, s3")
        a("s_add_u32 s3, s3, 8")
        a(f"s_lshl1_add_u32 s3, s3, s{sW}")
        a("s_mul_i32 s3, s3, 3584")
        a("s_add_u32 s4, s4, s3")
        a("s_addc_u32 s5, s5, 0")
        for i in range(28):
            a(f"s_load_dword s{sCNT}, s[4:5], {128*i}")
        a("s_branch L_scd")
        a.lab("L_scw")
        a(f"s_and_b32 s{sA}, s{sB}, 3")
        a(f"s_lshl2_add_u32 s3, s3, s{sA}")
        a(f"s_lshl1_add_u32 s3, s3, s{sW}")
        a("s_sub_u32 s3, s3, 2")
        a(f"s_mul_i32 s3, s3, {7*2688}")
        a(f"s_and_b32 s{sA}, s2, 1")
        a(f"s_mul_i32 s{sA}, s{sA}, 384")
        a(f"s_add_u32 s3, s3, s{sA}")
        a("s_add_u32 s4, s6, s3")
        a("s_addc_u32 s5, s7, 0")
        for r in range(7):
            for i in range(4):
                a(f"s_load_dword s{sCNT}, s[4:5], {2688*r + 128*i}")
        a.lab("L_scd")
    srd(a, WS, 14, 15, WS_BYTES)
    if TS: srd(a, DBG, 12, 13, 256)
    if SPF in (1, 3, 4):
        a(f"s_cmp_lt_u32 s{sH}, 14")
        a("s_cselect_b32 s3, 0, 2")
        a(f"s_xor_b32 s{sT}, s{sT}, s3")
    a(f"s_and_b32 s4, s{sW}, 1")
    a(f"s_lshr_b32 s5, s{sW}, 1")
    a("v_lshlrev_b32 v1, 4, v0")
    a("v_and_b32 v15, 3, v0")
    a("v_and_b32 v2, 31, v0")
    a(f"v_lshlrev_b32 v{vV0}, 4, v2")
    a("v_lshlrev_b32 v2, 7, v2")
    a("v_bfe_u32 v3, v0, 1, 3")
    a("v_lshrrev_b32 v4, 5, v0")
    a(f"v_mul_u32_u24 v{vV1}, {V_PLANE}, v4")
    a(f"v_add_u32 v{vV0}, v{vV0}, v{vV1}")
    a("v_xor_b32 v3, v3, v4")
    a("v_lshl_add_u32 v2, v3, 4, v2")
    a("s_lshl_b32 s3, s4, 12")
    a("v_add_u32 v2, s3, v2")
    a(f"v_bfe_u32 v{t0}, v0, 2, 2")
    a(f"v_lshl_add_u32 v{t1}, v4, 3, v{t0}")
    a("v_xor_b32 v3, 32, v2")
    a("v_xor_b32 v4, 64, v2")
    a("v_xor_b32 v5, 96, v2")
    a(f"s_mul_i32 s3, s5, {L_WB}")
    for i in range(4):
        a(f"v_add_u32 v{vXO[i]}, s3, v{vXA[i]}")
    a(f"v_bfe_u32 v{t2}, v0, 4, 1")
    a(f"v_lshlrev_b32 v{t2}, 5, v{t2}")
    a(f"v_lshrrev_b32 v{t3}, 1, v15")
    a(f"v_and_b32 v{t4}, 1, v15")
    a(f"v_lshl_add_u32 v{t3}, v{t4}, 1, v{t3}")
    a(f"v_lshl_add_u32 v{t3}, v{t3}, 3, v{t2}")
    a(f"v_lshl_add_u32 v{t4}, v15, 3, v{t2}")
    a(f"v_lshl_add_u32 v{vQR}, v{t1}, 6, v{t3}")
    a(f"v_add_u32 v{vQR}, {L_WQ}, v{vQR}")
    a(f"s_cmp_lt_u32 s{sH}, 7")
    a("s_cselect_b64 vcc, -1, 0")
    a(f"v_cndmask_b32 v{t3}, v{t4}, v{t3}, vcc")
    a(f"v_lshrrev_b32 v{t0}, 1, v{t0}")
    a(f"v_xor_b32 v{t0}, s5, v{t0}")
    a(f"v_lshl_add_u32 v{t3}, v{t0}, 6, v{t3}")
    a(f"v_lshl_add_u32 v{vWR}, v{t1}, 7, v{t3}")
    a(f"v_add_u32 v{vWR}, {L_WB}, v{vWR}")
    mask_addr(a, vMk)
    a(f"s_lshl1_add_u32 s5, s{sH}, s5")
    a(f"s_and_b32 s3, s{sB}, 1")
    a("s_lshl1_add_u32 s4, s3, s4")
    a(f"s_lshr_b32 s{sBIT}, s{sB}, 1")
    a(f"s_lshl4_add_u32 s{sS0}, s4, s{sBIT}")
    a(f"s_lshl_b32 s{sS0}, s{sS0}, 16")
    a("s_lshl4_add_u32 s3, s5, s4")
    a(f"v_lshl_add_u32 v{vP1}, v0, 2, s3")
    a(f"v_lshlrev_b32 v{vP1}, {FSH}, v{vP1}")
    a(f"v_add_u32 v{vP1}, {FL_OFF}, v{vP1}")
    a(f"s_lshl_b32 s{sA}, s{sT}, {FSH}")
    a(f"s_add_u32 s{sA}, s{sA}, {FL_OFF + (NOFL << FSH)}")
    a(f"v_mov_b32 v{vFl2}, s{sA}")
    a(f"v_bfe_u32 v{vPad}, v0, 3, 2")
    a(f"v_mul_u32_u24 v{vPad}, {V_PLANE}, v{vPad}")
    a(f"v_lshrrev_b32 v{t0}, 5, v0")
    a(f"v_lshl_add_u32 v{vPad}, v{t0}, 19, v{vPad}")
    a(f"v_and_b32 v{t0}, 7, v0")
    a(f"v_lshl_add_u32 v{vPad}, v{t0}, 4, v{vPad}")
    a(f"v_cmp_eq_u32 vcc, 0, v{t0}")
    a(f"v_mov_b32 v{t1}, 0x3f803f80")
    a("s_nop 0")
    for r in range(4):
        a(f"v_cndmask_b32 v{PADC+r}, 0, v{t1}, vcc")
    srd(a, OUT, 10, 11, OUT_BYTES)
    srd(a, KVS, 14, 15, KV_BYTES)
    a("s_waitcnt lgkmcnt(0)")
    a(f"s_xor_b32 s{sTAG}, s{sTAG}, 0x5ac3a53c")
    a("v_mov_b32 v250, 0")
    a(f"v_mov_b32 v251, s{sTAG}")
    a(f"s_cmp_ge_u32 s{sB}, 2")
    a("s_cbranch_scc1 L_noopen1")
    set_exec(a, "0xf", 0)
    a(f"buffer_atomic_swap_x2 v[250:251], v{vP1}, {sr(WS)}, 0 offen sc1")
    a.lab("L_noopen1")
    a(f"s_cmp_lg_u32 s{sH}, 15")
    a("s_cbranch_scc1 L_noopen2")
    set_exec(a, 1, 0)
    a(f"buffer_atomic_swap_x2 v[250:251], v{vFl2}, {sr(WS)}, 0 offen sc1")
    a.lab("L_noopen2")
    set_exec(a, HI, HI)
    def ldk(slot):
        for f in range(2):
            a(f"buffer_load_dwordx4 {vr(KV+16*slot+4*f,4)}, v{vKo}, {sr(X)}, s{sKV} offen offset:{1024*f} sc1")
    def ldv(slot):
        a(f"buffer_load_dwordx4 {vr(KV+16*slot+8,4)}, v{t4}, {sr(X)}, s{sKV} offen sc1")
        a(f"buffer_load_dwordx4 {vr(KV+16*slot+12,4)}, v{t5}, {sr(X)}, s{sKV} offen sc1")
    npick = [0]
    def pick_ops():
        n = npick[0]; npick[0] += 1
        def p0(): a(f"s_and_b32 s{sAV}, s{sRDY}, s{sTODO}")
        def p1():
            a(f"s_cbranch_scc0 L_slow{n}")
            a.lab(f"L_back{n}")
        def p2(): a(f"s_ff1_i32_b32 s{sAV}, s{sAV}")
        def p3(): a(f"s_bitset0_b32 s{sTODO}, s{sAV}")
        def p4(): a(f"s_lshl_b32 s{sKV}, s{sAV}, 16")
        if not ROT: return [p0, p1, p2, p3, p4]
        def r0(): a(f"s_add_u32 s{sBb}, s{sAV}, s{sROT}")
        def r1(): a(f"s_and_b32 s{sBb}, s{sBb}, 7")
        def r2(): a(f"s_and_b32 s{sAV}, s{sAV}, 24")
        def r3(): a(f"s_or_b32 s{sAV}, s{sAV}, s{sBb}")
        return [p0, p1, p2, p3, r0, r1, r2, r3, p4]
    a(f"s_lshl_b32 s3, s{sW}, 20")
    a(f"s_add_u32 s{X}, s14, s3")
    a(f"s_addc_u32 s{X+1}, s15, 0")
    a(f"s_and_b32 s{X+1}, s{X+1}, 0xffff")
    a(f"s_mov_b32 s{X+2}, {1 << 20}")
    a(f"s_mov_b32 s{X+3}, 0x20000")
    a(f"s_mul_i32 s6, s{sH}, 56")
    a("s_lshr_b32 s7, s6, 4")
    a("s_lshl_b32 s7, s7, 9")
    a(f"v_add_u32 v{vKo}, s7, v1")
    a("s_lshr_b32 s6, s6, 1")
    a(f"v_and_b32 v{t0}, 31, v0")
    a(f"v_add_u32 v{t1}, s6, v{t0}")
    a(f"v_lshrrev_b32 v{t2}, 5, v{t1}")
    a(f"v_lshl_add_u32 v{t1}, v{t2}, 3, v{t1}")
    a("s_lshr_b32 s7, s6, 5")
    a("s_mul_i32 s7, s7, 40")
    a("s_add_u32 s7, s7, 4")
    a(f"v_add_u32 v{t2}, s7, v{t0}")
    a(f"v_cmp_gt_u32 vcc, 28, v{t0}")
    a(f"v_add_u32 v{t5}, {V_BASE}, v{vV1}")
    a("s_nop 0")
    a(f"v_cndmask_b32 v{t1}, v{t2}, v{t1}, vcc")
    a(f"v_lshl_add_u32 v{t4}, v{t1}, 4, v{t5}")
    a(f"v_add_u32 v{t5}, {2*V_PLANE}, v{t4}")
    a(f"s_lshr_b32 s3, s{sB}, 2")
    a(f"s_lshl1_add_u32 s3, s{sB}, s3")
    a(f"s_and_b32 s{sROT}, s3, 7")
    a(f"s_mov_b32 s{sRDY}, 0")
    a(f"s_mov_b32 s{sTODO}, 0x7ffff")
    a(f"v_add_u32 v{t0}, v{vMk}, v1")
    a(f"s_mul_i32 s3, s{sW}, 12288")
    a(f"s_add_u32 s11, s3, {L_CMB}")
    for i in range(3):
        a(f"s_add_u32 s{sA}, s{sW}, {1+i}")
        a(f"s_and_b32 s{sA}, s{sA}, 3")
        a(f"s_mul_i32 s3, s{sA}, 12288")
        a(f"s_add_u32 s{8+i}, s3, {L_CMB + 4096*i}")
        a(f"s_lshl_b32 s{sA}, s{sA}, 12")
        a(f"s_sub_u32 s{sA}, {L_CMB + 45056}, s{sA}")
        a(f"v_add_u32 v{vT[1+i]}, s{sA}, v1")
    a("v_mov_b32 v30, 0")
    a("v_mov_b32 v31, 0")
    for r in (P+4, P+6):
        a(f"v_pk_mov_b32 {vr(r,2)}, v[30:31], v[30:31]")
    def fill3():
        for sl in range(3):
            for f in pick_ops(): f()
            ldk(sl); ldv(sl)
    def publish(kind, pk):
        if kind == "V":
            a(f"s_add_u32 s{sS1}, s{sS0}, {2*V_PLANE}")
            if not PADE:
                set_exec(a, HI, 0)
                a(f"buffer_store_dwordx4 {vr(PADC,4)}, v{vPad}, {sr(KVS)}, s{sS0} offen offset:512 sc1")
                set_exec(a, HI, HI)
        for f in range(2):
            for i in range(4):
                a(f"v_cvt_pk_bf16_f32 v{pk+4*f+i}, v{AK+8*f+2*i}, v{AK+8*f+2*i+1}")
            if kind == "K":
                a(f"buffer_store_dwordx4 {vr(pk+4*f,4)}, v1, {sr(KVS)}, s{sS0} offen offset:{1024*f} sc1")
            else:
                a(f"buffer_store_dwordx4 {vr(pk+4*f,4)}, v{vV0}, {sr(KVS)}, s{sS0 if f == 0 else sS1} offen sc1")
    def phase1(kind):
        if kind == "K":
            a("s_lshl_b32 s3, s5, 11")
            a(f"s_add_u32 s{sS0}, s{sS0}, s3")
        else:
            a(f"s_mul_i32 s3, s5, {V_CT}")
            a(f"s_add_u32 s{sS0}, s{sS0}, s3")
            a(f"s_add_u32 s{sS0}, s{sS0}, {V_BASE - 14*V_CT}")
            a(f"s_cmp_lt_u32 s{sH}, 14")
            a(f"s_cselect_b32 s{KVS+2}, {KV_BYTES}, 0")
            if PADE:
                a(f"buffer_store_dwordx4 {vr(PADC,4)}, v{vPad}, {sr(KVS)}, s{sS0} offen offset:512 sc1")
        def kvm(w, x, first):
            c = "0" if first else vr(AK,16)
            if kind == "K": mfma(a, vr(AK,16), w, x, c)
            else: mfma(a, vr(AK,16), x, w, c)
        def rdA(c, i):
            a(f"ds_read_b128 {vr(BUF+4*i,4)}, v{vXA[i]} offset:{c*8192}")
            for r in range(2):
                a(f"ds_read_b64_tr_b16 {vr(WFK+16*c+4*i+2*r,2)}, v{vWR} offset:{(c*4+i)*2048 + r*512}")
        def mmA(c, i):
            kvm(vr(WFK+16*c+4*i,4), vr(BUF+4*i,4), c == 0 and i == 0)
        def loop(rd, mm, nr, hook, second=False):
            D = PDB if second else PDA
            if D:
                for s_ in range(-D, 28):
                    n = s_ + D
                    if n < 28:
                        if n % 4 == 0:
                            a("s_barrier")
                            hook(n // 4)
                        rd(n // 4, n % 4)
                    if second and s_ == 25: a(f"ds_read_b32 v15, v{vMk}")
                    if s_ >= 0:
                        left = min(27, n) - s_
                        extra = 1 if (second and s_ in (25, 26)) else 0
                        a(f"s_waitcnt lgkmcnt({nr*left + extra})")
                        mm(s_ // 4, s_ % 4)
                return
            for c in range(7):
                sk = SKEW and 0 < c < 6
                a("s_barrier")
                hook(c)
                lastB = second and c == 6
                rd(c, 0); rd(c, 1)
                if sk: mm(c-1, 2)
                rd(c, 2)
                if sk: mm(c-1, 3)
                a(f"s_waitcnt lgkmcnt({2*nr})")
                rd(c, 3)
                mm(c, 0)
                a(f"s_waitcnt lgkmcnt({2*nr})")
                mm(c, 1)
                if not (SKEW and c < 5):
                    a(f"s_waitcnt lgkmcnt({nr})")
                    if lastB: a(f"ds_read_b32 v15, v{vMk}")
                    mm(c, 2)
                a("s_waitcnt lgkmcnt(0)")
                if not (SKEW and c < 5):
                    mm(c, 3)
        loop(rdA, mmA, 3, lambda c: ts("c0") if c == 0 else None)
        ts("a_mm")
        for i in range(4):
            a(f"v_add_u32 v{vXA[i]}, {L_WB}, v{vXA[i]}")
        a("s_nop 7")
        publish(kind, PKA)
        a(f"s_add_u32 s{sS0}, s{sS0}, {8 << 16}")
        ts("a_st")
        steps = [("B", s_) for s_ in range(28)] + [("Q", s_) for s_ in range(28)]
        bar = {("B", 0): 0, ("B", 8): 1, ("B", 16): 2, ("B", 24): 3, ("Q", 8): 4, ("Q", 16): 5, ("Q", 24): 6}
        NB = 6
        D = 4
        def cnt(st): return 1 if st[0] == "B" else 3
        for k in range(-D, len(steps)):
            n = k + D
            if n < len(steps):
                st = steps[n]; c, i = st[1] // 4, st[1] % 4
                if st in bar:
                    a("s_barrier")
                    if bar[st] == FA:
                        a("s_waitcnt vmcnt(0)")
                        flag_set(a, vP1, sBIT, "0xf")
                        ts("a_flag")
                    if bar[st] == 6:
                        flag_check(a, f"L_fc1{kind}", vP1, sBIT, "0xf", (2 if (kind == "K" or PADE) else 3) if EB >= 0 else 0)
                b = BUF + 8 * (n % NB)
                if st[0] == "B":
                    a(f"ds_read_b128 {vr(b,4)}, v{vXA[i]} offset:{c*8192}")
                else:
                    a(f"ds_read_b128 {vr(b,4)}, v{vXO[i]} offset:{c*8192}")
                    for r in range(2):
                        a(f"ds_read_b64_tr_b16 {vr(b+4+2*r,2)}, v{vQR} offset:{st[1]*1024 + r*256}")
            if k == len(steps) - 3: a(f"ds_read_b32 v15, v{vMk}")
            if k >= 0:
                st = steps[k]; b = BUF + 8 * (k % NB)
                left = sum(cnt(x) for x in steps[k+1:n+1]) + (1 if k in (len(steps)-3, len(steps)-2) else 0)
                a(f"s_waitcnt lgkmcnt({left})")
                if st[0] == "B":
                    kvm(vr(WFK+4*st[1],4), vr(b,4), st[1] == 0)
                else:
                    mfma(a, vr(AQ,16), vr(b+4,4), vr(b,4), "0" if st[1] == 0 else vr(AQ,16))
                    if st[1] == EB: publish(kind, PKB)
    a(f"s_cmp_lt_u32 s{sH}, 7")
    a("s_cbranch_scc0 L_vline")
    phase1("K")
    a("s_branch L_q")
    a.lab("L_vline")
    phase1("V")
    a.lab("L_q")
    ts("b_mm")
    def flagb(w):
        a(f"s_lshl_b32 s3, 0x100, s{sBIT}")
        a("v_mov_b32 v250, s3")
        if w is not None: a(f"s_waitcnt vmcnt({w})")
        set_exec(a, "0xf", 0)
        a(f"buffer_atomic_or v250, v{vP1}, {sr(WS)}, 0 offen sc1")
        set_exec(a, HI, HI)
        ts("b_flag")
    FBL = opt("fbl", 0)
    if EB >= 0 and FBL == 0: flagb(0)
    def fill(sl):
        for f in pick_ops(): f()
        ldk(sl); ldv(sl)
    a(f"v_readfirstlane_b32 s{sRDY}, v15")
    a("s_nop 0")
    a(f"s_mov_b32 s{sIT}, s{sRDY}")
    a(f"s_cmp_eq_u32 s{sIT}, 0")
    a("s_cbranch_scc1 L_noearly")
    fill(0)
    a.lab("L_noearly")
    if EB >= 0 and FBL == 1: flagb(4)
    a(f"s_mov_b32 s4, {f32bits(QSCALE):#x}")
    a("s_mov_b32 s5, s4")
    for o in OT[2:]:
        for r in range(0, 10, 2):
            a(f"v_pk_mov_b32 {vr(o+r,2)}, v[30:31], v[30:31]")
    for r in range(0, 16, 2):
        a(f"v_pk_mul_f32 {vr(AQ+r,2)}, {vr(AQ+r,2)}, s[4:5]")
    Q3 = Q + 24
    for i in range(8):
        a(f"v_cvt_pk_bf16_f32 v{Q3+i}, v{AQ+2*i}, v{AQ+2*i+1}")
    a(f"s_bitcmp1_b32 s{sH}, 0")
    a("s_cselect_b32 exec_lo, -1, 0")
    a("s_mov_b32 exec_hi, 0")
    a(f"v_pk_mov_b32 {vr(Q3,2)}, v[30:31], v[30:31]")
    a("s_cselect_b32 exec_hi, 0, -1")
    a("s_mov_b32 exec_lo, 0")
    a(f"v_pk_mov_b32 {vr(Q3+6,2)}, v[30:31], v[30:31]")
    set_exec(a, HI, HI)
    a(f"ds_write_b128 v{t0}, {vr(Q3,4)} offset:2048")
    a(f"ds_write_b128 v{t0}, {vr(Q3+4,4)} offset:3072")
    a(f"s_cmp_lg_u32 s{sIT}, 0")
    a("s_cbranch_scc1 L_filled")
    fill(0)
    a.lab("L_filled")
    if FBL == 2: flagb(4)
    fill(1)
    a("s_waitcnt lgkmcnt(0)")
    ts("q_done")
    a("s_barrier")
    for i in range(3):
        a(f"ds_read_b128 {vr(Q+8*i,4)}, v{vT[1+i]} offset:2048")
        a(f"ds_read_b128 {vr(Q+8*i+4,4)}, v{vT[1+i]} offset:3072")
    zr = [o + r for o in OT[2:] for r in range(10, 16, 2)] + [KV+60, KV+62] + [o + r for o in OT[:2] for r in range(0, 16, 2)]
    for r in zr[:12]:
        a(f"v_pk_mov_b32 {vr(r,2)}, v[30:31], v[30:31]")
    if EB < 0:
        a(f"s_cmp_lt_u32 s{sH}, 7")
        a("s_cbranch_scc0 L_pubv")
        publish("K", PKB)
        a("s_branch L_pubd")
        a.lab("L_pubv")
        publish("V", PKB)
        a.lab("L_pubd")
    a(f"s_mov_b32 s{sIT}, 3")
    if EB < 0: a(f"s_add_u32 s{sBIT}, s{sBIT}, 8")
    vC = [2, 3, 4]; vCR = 5
    a("s_waitcnt vmcnt(4) lgkmcnt(0)")
    ts("kv0")
    def mS(part, t):
        slot = (t // 4) % 4; qt = t % 4
        d = vr(S[t % 2], 16)
        mfma(a, d, vr(KV+16*slot+4*part,4), vr(Q+8*qt+4*part,4), "0" if part == 0 else d)
    def mPV(part, t):
        slot = (t // 4) % 4; qt = t % 4
        d = vr(OT[qt], 16)
        mfma(a, d, vr(KV+16*slot+8+4*part,4), vr(P+4*part,4), d)
    def EC(t, g):
        s = S[t % 2] + 4*g
        for r in range(4):
            a(f"v_exp_f32 v{s+r}, v{s+r}")
        a(f"v_cvt_pk_bf16_f32 v{P+2*g}, v{s}, v{s+1}")
        a(f"v_cvt_pk_bf16_f32 v{P+2*g+1}, v{s+2}, v{s+3}")
    mS(0, 0)
    for r in zr[12:18]:
        a(f"v_pk_mov_b32 {vr(r,2)}, v[30:31], v[30:31]")
    mS(1, 0)
    fill(2)
    for f in pick_ops(): f()
    for r in zr[18:]:
        a(f"v_pk_mov_b32 {vr(r,2)}, v[30:31], v[30:31]")
    ts("att0", cyc=True)
    a.raw(".p2align 6")
    a.lab("L_loop")
    def tile(j, last=False):
        fs = [None] * 16
        if not last:
            fs[11] = lambda: a("s_waitcnt vmcnt(8)")
            po = pick_ops()
            if PFM:
                fs[2] = lambda: a(f"ds_read_b32 v15, v{vMk}")
                fs[4] = lambda: a("s_waitcnt lgkmcnt(0)")
                fs[5] = lambda: a(f"v_readfirstlane_b32 s{sRDY}, v15")
            for k, f in enumerate(po): fs[(6 if PFM else 2) + k] = f
            if j == FBJ and EB < 0:
                fs[12] = lambda: a(f"s_cmp_eq_u32 s{sIT}, 3")
                def br():
                    a("s_cbranch_scc1 L_flagb")
                    a.lab("L_flagb_back")
                fs[13] = br
            if j == 2:
                fs[14] = lambda: a(f"s_sub_u32 s{sIT}, s{sIT}, 1")
        else:
            def wr(i, g):
                return lambda: a(f"ds_write_b128 v{vC[i]}, {vr(OT[i]+4*g,4)} offset:{1024*g}")
            for i in range(3):
                fs[4*(i+1) + 3] = wr(i, 0)
                if i < 2:
                    for g in range(1, 4): fs[4*(i+2) + g - 1] = wr(i, g)
        for st in range(4):
            t = 4*j + st
            f = fs[4*st:4*st+4]
            if not (last and st == 3): mS(0, t+1)
            if st == 0 and not last: ldk((j + 3) % 4)
            if f[0]: f[0]()
            EC(t, 0)
            mPV(1, (t - 1) % 16)
            if st == 0 and not last: ldv((j + 3) % 4)
            if f[1]: f[1]()
            EC(t, 1)
            if not (last and st == 3): mS(1, t+1)
            if f[2]: f[2]()
            EC(t, 2)
            mPV(0, t)
            if f[3]: f[3]()
            EC(t, 3)
    def tstamp(j):
        if not (TS and TSG == 2): return
        for trip in range(4):
            a(f"s_cmp_lg_u32 s{sIT}, {3 - trip - (1 if j == 3 else 0)}")
            a(f"s_cbranch_scc1 L_ts{j}_{trip}")
            ts(f"t{4*trip + j:02d}", cyc=True, grp=2)
            a.lab(f"L_ts{j}_{trip}")
    if TS and TSG == 2:
        for n in range(16):
            ts.idx[f"t{n:02d}(cyc)"] = len(ts.names); ts.names.append(f"t{n:02d}(cyc)")
    for j in range(3):
        tstamp(j); tile(j)
    a("s_cbranch_scc1 L_last")
    tstamp(3)
    tile(3)
    a("s_branch L_loop")
    a.lab("L_last")
    ts("t15", cyc=True, grp=2)
    for i in range(3):
        a(f"v_add_u32 v{vC[i]}, s{8+i}, v1")
    a(f"v_add_u32 v{vCR}, s11, v1")
    tile(3, last=True)
    a(f"ds_write_b128 v{vC[2]}, {vr(OT[2]+4,4)} offset:1024")
    a(f"ds_write_b128 v{vC[2]}, {vr(OT[2]+8,4)} offset:2048")
    mPV(1, 15)
    a(f"ds_write_b128 v{vC[2]}, {vr(OT[2]+12,4)} offset:3072")
    ts("att1", cyc=True)
    ts("t16", cyc=True, grp=2)
    ts("att1")
    a(f"s_mov_b32 s4, {f32bits(2.0**62):#x}")
    a(f"s_mov_b32 s5, {f32bits(2.0**-62):#x}")
    a("s_waitcnt vmcnt(0) lgkmcnt(0)")
    a("s_barrier")
    F = OT[3]
    for i in range(3):
        for g in range(4):
            a(f"ds_read_b128 {vr(OT[i]+4*g,4)}, v{vCR} offset:{4096*i+1024*g}")
    a(f"s_lshl_b32 s3, s{sT}, 4")
    a(f"s_add_u32 s3, s3, s{sH}")
    a("s_lshl_b32 s3, s3, 11")
    a(f"s_add_u32 s3, s3, {O_OFF}")
    for i in range(3):
        a(f"s_waitcnt lgkmcnt({8-4*i})")
        for r in range(0, 16, 2):
            a(f"v_pk_add_f32 {vr(F+r,2)}, {vr(F+r,2)}, {vr(OT[i]+r,2)}")
    a(f"v_cmp_nge_f32 s[6:7], s4, v{F+12}")
    a(f"v_cmp_nle_f32 vcc, s5, v{F+12}")
    a("s_or_b64 s[6:7], s[6:7], vcc")
    a("s_cmp_lg_u32 s7, 0")
    a("s_cbranch_scc1 L_fallback")
    a.lab("L_norm")
    a(f"v_mov_b32 v{t0}, v{F+12}")
    a(f"v_mov_b32 v{t1}, v{F+12}")
    a("s_nop 1")
    a(f"v_permlane32_swap_b32 v{t0}, v{t1}")
    a("s_nop 1")
    a(f"v_rcp_f32 v{t1}, v{t1}")
    set_exec(a, 0, HI)
    a(f"v_mov_b32 v{F+12}, 0")
    set_exec(a, HI, HI)
    for r in range(0, 16, 2):
        a(f"v_pk_mul_f32 {vr(F+r,2)}, {vr(F+r,2)}, {vr(t0,2)} op_sel:[0,1] op_sel_hi:[1,1]")
    PO = 232
    for i in range(8):
        a(f"v_cvt_pk_bf16_f32 v{PO+i}, v{F+2*i}, v{F+2*i+1}")
    a(f"buffer_store_dwordx4 {vr(PO,4)}, v1, {sr(WS)}, s3 offen sc1")
    a(f"buffer_store_dwordx4 {vr(PO+4,4)}, v1, {sr(WS)}, s3 offen offset:1024 sc1")
    ts("o_st")
    WOF, OF, ACC, D = 64, 192, 32, 48
    a(f"s_and_b32 s3, s{sCS4}, 1")
    a("s_lshl_b32 s3, s3, 5")
    a(f"s_mul_i32 s{sA}, s{sW}, 56")
    a(f"s_add_u32 s3, s3, s{sA}")
    a(f"v_bfe_u32 v{t0}, v0, 4, 1")
    a(f"v_lshlrev_b32 v{t0}, 5, v{t0}")
    a(f"v_and_b32 v{t1}, 3, v0")
    a(f"v_lshl_add_u32 v{t0}, v{t1}, 3, v{t0}")
    a(f"v_add_u32 v{t0}, s3, v{t0}")
    a(f"v_and_b32 v{t0}, 255, v{t0}")
    a(f"v_bfe_u32 v{t1}, v0, 2, 2")
    a(f"v_lshlrev_b32 v{t2}, 6, v{t1}")
    a(f"v_xor_b32 v{t0}, v{t0}, v{t2}")
    a(f"v_lshl_add_u32 v{t2}, v{t1}, 8, v{t0}")
    a(f"v_lshrrev_b32 v{t1}, 5, v0")
    a(f"v_lshl_add_u32 v{t0}, v{t1}, 10, v{t2}")
    a(f"v_add_u32 v{t1}, 0x10000, v{t0}")
    a(f"v_add_u32 v{t2}, 0x10000, v{t2}")
    def rdwo(hh):
        for u in range(2):
            for r in range(2):
                off = L_WO + (28*hh + 16*u + 8*r) * 256
                base = t0
                if off >= 0x10000:
                    off -= 0x10000; base = t1
                if hh == 15 and u == 1 and r == 1:
                    base = t2
                a(f"ds_read_b64_tr_b16 {vr(WOF+8*hh+4*u+2*r,2)}, v{base} offset:{off}")
    for hh in range(6): rdwo(hh)
    a("s_waitcnt vmcnt(0)")
    flag_set(a, vFl2, sH, 1)
    ts("o_flag")
    for hh in range(6, 16): rdwo(hh)
    a(f"v_add_u32 v{t3}, {L_CMB}, v1")
    a(f"v_and_b32 v{t4}, 31, v0")
    a(f"v_mul_u32_u24 v{t4}, 896, v{t4}")
    a(f"v_lshrrev_b32 v{t5}, 5, v0")
    a(f"v_lshl_add_u32 v{t4}, v{t5}, 4, v{t4}")
    a(f"s_mul_i32 s{sKV}, s{sT3}, 28672")
    a(f"s_lshl_b32 s{sBb}, s{sCS4}, 2")
    a(f"s_add_u32 s{sBb}, s{sBb}, s{sW}")
    a(f"s_mul_i32 s{sBb}, s{sBb}, 56")
    a(f"s_add_u32 s{sKV}, s{sKV}, s{sBb}")
    flag_check(a, "L_fc2", vFl2, sH, 1, 0)
    a("s_barrier")
    a("s_barrier")
    ts("o_ld")
    NR, PD = 12, 10
    for f in range(PD):
        a(f"ds_read_b128 {vr(OF+4*(f%NR),4)}, v{t3} offset:{1024*f}")
    for f in range(32):
        if f + PD < 32:
            a(f"ds_read_b128 {vr(OF+4*((f+PD)%NR),4)}, v{t3} offset:{1024*(f+PD)}")
            a(f"s_waitcnt lgkmcnt({PD})")
        else:
            a(f"s_waitcnt lgkmcnt({31-f})")
        mfma(a, vr(ACC,16), vr(WOF+4*f,4), vr(OF+4*(f%NR),4), "0" if f == 0 else vr(ACC,16))
    a("s_nop 7")
    a("s_nop 3")
    for i in range(8):
        a(f"v_cvt_pk_bf16_f32 v{D+i}, v{ACC+2*i}, v{ACC+2*i+1}")
    a(f"v_permlane32_swap_b32 v{D}, v{D+2}")
    a(f"v_permlane32_swap_b32 v{D+1}, v{D+3}")
    a(f"v_permlane32_swap_b32 v{D+4}, v{D+6}")
    a(f"v_permlane32_swap_b32 v{D+5}, v{D+7}")
    a(f"buffer_store_dwordx4 {vr(D,4)}, v{t4}, {sr(OUT)}, s{sKV} offen {OSF}")
    set_exec(a, HI, 0)
    a(f"buffer_store_dwordx4 {vr(D+4,4)}, v{t4}, {sr(OUT)}, s{sKV} offen offset:32 {OSF}")
    set_exec(a, 0, HI)
    a(f"buffer_store_dwordx2 {vr(D+4,2)}, v{t4}, {sr(OUT)}, s{sKV} offen offset:32 {OSF}")
    if TS:
        a("s_waitcnt vmcnt(0)")
        ts("end")
    if TS and TSG in (0, 2): ts.dump()
    a.lab("L_end")
    a("s_endpgm")
    if EB < 0:
        a.lab("L_flagb")
        if FBJ == 0: a("s_waitcnt vmcnt(4)")
        a(f"s_lshl_b32 s3, 1, s{sBIT}")
        a("v_mov_b32 v250, s3")
        set_exec(a, "0xf", 0)
        a(f"buffer_atomic_or v250, v{vP1}, {sr(WS)}, 0 offen sc1")
        set_exec(a, HI, HI)
        a("s_branch L_flagb_back")
    for n in range(npick[0]):
        a.lab(f"L_slow{n}")
        a(f"ds_read_b32 v15, v{vMk}")
        a("s_waitcnt lgkmcnt(0)")
        a(f"v_readfirstlane_b32 s{sRDY}, v15")
        a("s_nop 0")
        a(f"s_and_b32 s{sAV}, s{sRDY}, s{sTODO}")
        a(f"s_cbranch_scc0 L_slow{n}")
        a(f"s_branch L_back{n}")
    flag_retries(a)
    a.lab("L_fallback")
    srd(a, X, 14, 15, KV_BYTES)
    a(f"v_mov_b32 v{t0}, 0xff800000")
    a(f"s_mov_b32 s{sKV}, 0")
    SS = S0
    a.lab("L_fb1")
    ldk(0)
    a(f"s_add_u32 s{sKV}, s{sKV}, 0x10000")
    a("s_waitcnt vmcnt(0)")
    mfma(a, vr(SS,16), vr(KV,4), vr(Q3,4), "0")
    mfma(a, vr(SS,16), vr(KV+4,4), vr(Q3+4,4), vr(SS,16))
    a("s_nop 15")
    for r in range(0, 16, 2):
        a(f"v_max3_f32 v{t0}, v{t0}, v{SS+r}, v{SS+r+1}")
    a(f"s_cmp_lt_u32 s{sKV}, {KV_BYTES}")
    a("s_cbranch_scc1 L_fb1")
    a(f"v_mov_b32 v{t1}, v{t0}")
    a("s_nop 1")
    a(f"v_permlane32_swap_b32 v{t0}, v{t1}")
    a("s_nop 1")
    a(f"v_max_f32 v{t0}, v{t0}, v{t1}")
    for r in range(16):
        a(f"v_mov_b32 v{F+r}, 0")
    a(f"s_mov_b32 s{sKV}, 0")
    a.lab("L_fb2")
    ldk(0); ldv(0)
    a(f"s_add_u32 s{sKV}, s{sKV}, 0x10000")
    a("s_waitcnt vmcnt(0)")
    mfma(a, vr(SS,16), vr(KV,4), vr(Q3,4), "0")
    mfma(a, vr(SS,16), vr(KV+4,4), vr(Q3+4,4), vr(SS,16))
    a("s_nop 15")
    for r in range(16):
        a(f"v_sub_f32 v{SS+r}, v{SS+r}, v{t0}")
    for r in range(16):
        a(f"v_exp_f32 v{SS+r}, v{SS+r}")
    a("s_nop 0")
    for i in range(8):
        a(f"v_cvt_pk_bf16_f32 v{P+i}, v{SS+2*i}, v{SS+2*i+1}")
    a("s_nop 1")
    mfma(a, vr(F,16), vr(KV+8,4), vr(P,4), vr(F,16))
    mfma(a, vr(F,16), vr(KV+12,4), vr(P+4,4), vr(F,16))
    a(f"s_cmp_lt_u32 s{sKV}, {KV_BYTES}")
    a("s_cbranch_scc1 L_fb2")
    a("s_nop 15")
    a("s_branch L_norm")
    a.lab("L_codeend")
    if TS:
        open("stamps.txt", "w").write(",".join(ts.names))
    return name

def main():
    a = A()
    name = kernel(a)
    head = open(f"cdna_kernels/{NAME}.s.ref").read().split("; Override")[0]
    out = head
    out += f"; @launch grid=(256,1,1) block=(512,1,1) lds={LDS_BYTES}\n"
    out += '.amdgcn_target "amdgcn-amd-amdhsa--gfx950"\n.text\n'
    out += a.text()
    out += f""".section .rodata,"a"
.p2align 6
.amdhsa_kernel {name}
  .amdhsa_next_free_vgpr 256
  .amdhsa_next_free_sgpr 102
  .amdhsa_accum_offset 256
  .amdhsa_group_segment_fixed_size 0
  .amdhsa_kernarg_size 48
  .amdhsa_user_sgpr_count 2
  .amdhsa_user_sgpr_kernarg_segment_ptr 1
  .amdhsa_system_sgpr_workgroup_id_x 1
.end_amdhsa_kernel
"""
    o = [x for x in sys.argv[1:] if not x.startswith("--")]
    path = o[0] if o else f"cdna_kernels/{NAME}.s"
    open(path, "w").write(out)
main()
```

```python
import sys, struct, math

NAME = "standalone__softmax_full_mha__prompt"
FL_OFF = 5 << 20
EP_OFF = 0xff00
O_OFF = 6 << 20
TS_OFF = 8 << 20
WS_BYTES = 12 << 20
X_BYTES = 2048 * 448 * 2
W_BYTES = 448 * 1344 * 2
WO_BYTES = 448 * 448 * 2
OUT_BYTES = 2048 * 448 * 2
KV_BYTES = 4 << 20
V_BASE = 28672
V_CT = 640
V_PLANE = 14 * V_CT
QSCALE = 28 ** -0.5 * math.log2(math.e)

def opt(name, default):
    for arg in sys.argv:
        if arg.startswith(f"--{name}="):
            return int(arg.split("=")[1])
    return default
TS = "--ts" in sys.argv
TSG = opt("tsg", 0)
MAP = opt("maph", 3)
FSH = opt("fsh", 8)
SLEEP = opt("sleep", 0)
LA = opt("la", 3)
FA = opt("fa", 2)
BAL = opt("bal", 1)
SPF = opt("spf", 1)
ROT = opt("rot", 0)
NBF = opt("nbf", 0)
SL2 = opt("sl2", 0)
SKEW = opt("skew", 1)
PFM = opt("pfm", 0)
PIS = opt("pis", 12)
FBJ = opt("fbj", 1)
WROT = opt("wrot", 1)
WSL = opt("wsl", 3)
THR = opt("thr", 0)
CPF = opt("cpf", 0)
LDM = opt("ldm", 0)
NOBR = opt("nobr", 0)
WPACE = opt("wpace", 1)
PH = opt("ph", 1)
PADE = opt("pade", 0)
EB = opt("eb", 6)
PDA = opt("pda", 0)
PDB = opt("pdb", 3)
VPF = opt("vpf", -1)
SCP = opt("scp", 0)
SCW = opt("scw", 0)
OSF = ["", "sc1", "nt", "sc0 sc1", "sc1 nt"][opt("osf", 0)]
NOFL = 512

def f32bits(x):
    return struct.unpack("<I", struct.pack("<f", x))[0]

class A:
    def __init__(self):
        self.l = []
    def __call__(self, s):
        for line in s.strip("\n").split("\n"):
            self.l.append("    " + line.strip())
    def lab(self, n):
        self.l.append(n + ":")
    def raw(self, s):
        self.l.append(s)
    def text(self):
        return "\n".join(self.l) + "\n"

def vr(b, n, k="v"):
    return f"{k}[{b}:{b+n-1}]"
def sr(b):
    return f"s[{b}:{b+3}]"

def srd(a, d, lo, hi, nbytes):
    a(f"s_mov_b32 s{d}, s{lo}")
    a(f"s_and_b32 s{d+1}, s{hi}, 0xffff")
    a(f"s_mov_b32 s{d+2}, {nbytes}")
    a(f"s_mov_b32 s{d+3}, 0x20000")

HI = "0xffffffff"
def set_exec(a, lo, hi):
    if lo == HI and hi == HI:
        a("s_mov_b64 exec, -1")
    elif hi == 0 and lo in (1, "0xf", "0x1f"):
        a(f"s_mov_b64 exec, {int(str(lo), 0)}")
    else:
        a(f"s_mov_b32 exec_lo, {lo}")
        a(f"s_mov_b32 exec_hi, {hi}")

class Stamps:
    def __init__(self, a):
        self.a = a; self.idx = {}; self.names = []
    def __call__(self, name, cyc=False, grp=0):
        if not TS: return
        if name != "start" and grp != TSG: return
        nm = name + ("(cyc)" if cyc else "")
        if nm not in self.idx:
            self.idx[nm] = len(self.names); self.names.append(nm)
        b = 66 + 2 * self.idx[nm]
        assert b + 1 < 102
        self.a(f"s_memtime s[{b}:{b+1}]" if cyc else f"s_memrealtime s[{b}:{b+1}]")
    def dump(self):
        if not TS: return
        a = self.a
        sp = [x for x in sys.argv if x.startswith("--spin=")]
        if sp:
            hi, lo, m = sp[0][7:].split(",")
            a("s_waitcnt lgkmcnt(0)")
            if lo == "G":
                a("v_mov_b32 v2, 0")
                a(f"buffer_load_dword v4, v2, {sr(DBG)}, 0 offen offset:192 sc1")
                a("s_waitcnt vmcnt(0)")
                a("v_readfirstlane_b32 s4, v4")
                a("s_nop 0")
                a("s_not_b32 s4, s4")
                a(f"s_sub_u32 s3, s{66+2*self.idx[hi]}, s4")
            else:
                a(f"s_sub_u32 s3, s{66+2*self.idx[hi]}, s{66+2*self.idx[lo]}")
            only = opt("only", -1)
            if only >= 0:
                a("s_and_b32 s4, s2, 7")
                a(f"s_cmp_eq_u32 s4, {only}")
                a("s_cselect_b32 s3, s3, 0")
            a(f"s_mul_i32 s3, s3, {m}")
            if opt("fix", 0): a(f"s_mov_b32 s3, {opt('fix', 0)}")
            if opt("rep", -1) >= 0:
                a("s_not_b32 s4, s64")
                a("s_cmp_eq_u32 s4, s65")
                a("s_cselect_b32 s3, s3, 0" if opt("rep", -1) == 1 else "s_cselect_b32 s3, 0, s3")
            if opt("pat", -1) >= 0:
                a("s_cmp_eq_u32 s64, s65")
                a("s_cselect_b32 s3, s3, 0" if opt("pat", -1) == 1 else "s_cselect_b32 s3, 0, s3")
            a(f"s_add_u32 s3, s3, s{66+2*self.idx['end' if TSG == 0 else 'h_stage']}")
            a.lab("L_spin")
            a("s_memrealtime s[4:5]")
            a("s_waitcnt lgkmcnt(0)")
            a("s_sub_u32 s4, s4, s3")
            a("s_cmp_lt_i32 s4, 0")
            a("s_cbranch_scc1 L_spin")
            return
        if "--dbg" in sys.argv:
            sel = ["start", "start", "c0", "kv_mm", "b7", "q_done", "kv0", "att1", "o_flag", "o_ld", "end"]
            a("s_waitcnt lgkmcnt(0)")
            a(f"s_cmp_lg_u32 s{sW}, 0")
            a("s_cbranch_scc1 L_end")
            a("s_mov_b64 exec, 1")
            a("v_mov_b32 v2, 0")
            for i, nm in enumerate(sel):
                a(f"v_mov_b32 v4, s{66+2*self.idx[nm]}")
                if i == 0: a("v_not_b32 v4, v4")
                a(f"buffer_atomic_umax v4, v2, {sr(DBG)}, 0 offen offset:{8+4*i} sc1")
                a("s_nop 1")
            for i, nm in enumerate(["end", "kv0", "c0"]):
                a(f"s_sub_u32 s3, s{66+2*self.idx[nm]}, s66")
                a("v_mov_b32 v4, s3")
                a(f"buffer_atomic_umax v4, v2, {sr(DBG)}, 0 offen offset:{52+4*i} sc1")
                a("s_nop 1")
            a("s_waitcnt vmcnt(0)")
            return
        a("s_waitcnt lgkmcnt(0)")
        a(f"s_lshl_b32 s3, s2, 2")
        a(f"s_add_u32 s3, s3, s{sW}")
        a(f"s_lshl_b32 s3, s3, 7")
        a(f"s_add_u32 s3, s3, {TS_OFF}")
        a("s_mov_b64 exec, 1")
        a("v_mov_b32 v2, 0")
        for i in range(18):
            a(f"v_mov_b32 v4, s{66+2*i}")
            a(f"buffer_store_dword v4, v2, {sr(WS)}, s3 offen offset:{4*i}")
            a("s_nop 1")
        a("s_waitcnt vmcnt(0)")

X, W, WO, OUT, DBG, WS, KVS = 16, 20, 24, 28, 32, 36, 40
WQS = KVS
sH, sB, sW, sT = 44, 45, 46, 47
sKC, sXB, sWB, sWM = 48, 49, 50, 52
sRDY, sTODO, sAV, sS0, sS1 = 48, 49, 50, 51, 52
sA, sBb = 53, 54
sKV, sIT, sWQ, sWoS, sCNT = 55, 56, 57, 58, 59
sBIT, sTAG = 60, 61
sKQ = 51
sT3, sCS4 = 62, 63
sROT = 57
L_XA, L_WB, L_WQ = 0, 57344, 114688
L_WO, L_CMB = 0, 114688
LDS_BYTES = 163840
vXA = [2, 3, 4, 5]
vXO = [6, 7, 8, 9]
vWR, vQR, vP1, vFl2, vMk = 10, 11, 12, 13, 14
vKo, vV0, vV1, vPad = 16, 17, 18, 19
vT = [20, 21, 22, 23, 24, 25]
PADC = 26
AK, AQ, WFK, BUF, PKA, PKB = 32, 48, 64, 176, 224, 232
KV, Q, S0, P = 64, 128, 160, 240
OT = [32, 48, 192, 208]
S = [S0, S0 + 16]

def decode_hb(a):
    nhg = 16 >> MAP
    lg = int(math.log2(nhg))
    a(f"s_and_b32 s{sH}, s2, {nhg-1}")
    a(f"s_lshl_b32 s{sH}, s{sH}, {MAP}")
    a(f"s_lshr_b32 s3, s2, 3")
    a(f"s_and_b32 s{sB}, s3, {(1<<MAP)-1}")
    a(f"s_add_u32 s{sH}, s{sH}, s{sB}")
    a(f"s_lshr_b32 s3, s3, {MAP}")
    a(f"s_and_b32 s{sB}, s2, 7")
    a(f"s_lshr_b32 s{sB}, s{sB}, {lg}")
    a(f"s_mul_i32 s{sB}, s{sB}, {32>>MAP}")
    a(f"s_add_u32 s{sB}, s{sB}, s3")
    if BAL:
        a(f"s_lshr_b32 s3, s{sH}, 3")
        a(f"s_sub_u32 s{sBb}, s{sH}, s3")
        a("s_add_u32 s3, s3, 14")
        a(f"s_and_b32 s{sH}, s{sH}, 7")
        a(f"s_cmp_eq_u32 s{sH}, 7")
        a(f"s_cselect_b32 s{sH}, s3, s{sBb}")

def mfma(a, d, x, y, c):
    a(f"v_mfma_f32_32x32x16_bf16 {d}, {x}, {y}, {c}")

vR = 252
def flag_read(a, vaddr, off=0):
    a(f"v_mov_b32 v{vR}, 0")
    a(f"v_mov_b32 v{vR+1}, 0")
    a(f"buffer_atomic_or_x2 v[{vR}:{vR+1}], v{vaddr}, {sr(WS)}, 0 offen offset:{off} sc0 sc1")

def flag_bits(a):
    a(f"v_cmp_eq_u32 vcc, s{sTAG}, v{vR+1}")
    a("s_nop 1")
    a(f"v_cndmask_b32 v{vR}, 0, v{vR}, vcc")

def poll(a, label, vaddr, lo, hi, smask, off=0):
    a(f"s_mov_b32 s{sCNT}, 0x100000")
    set_exec(a, lo, hi)
    a(f"s_branch {label}_in")
    a.lab(label)
    if SLEEP: a(f"s_sleep {SLEEP}")
    a.lab(label + "_in")
    flag_read(a, vaddr, off)
    a(f"s_sub_u32 s{sCNT}, s{sCNT}, 1")
    a(f"s_cbranch_scc1 {label}_done")
    a("s_waitcnt vmcnt(0)")
    flag_bits(a)
    a(f"v_and_b32 v{vR}, {smask}, v{vR}")
    a(f"v_cmp_ne_u32 vcc, {smask}, v{vR}")
    a(f"s_cbranch_vccnz {label}")
    a.lab(label + "_done")
    set_exec(a, HI, HI)

def flag_set(a, vaddr, sbit, lo):
    a(f"s_lshl_b32 s3, 1, s{sbit}")
    a("v_mov_b32 v250, s3")
    a("v_mov_b32 v251, 0")
    a("v_writelane_b32 v250, 0, 4")
    set_exec(a, lo, 0)
    a(f"buffer_atomic_or_x2 v[250:251], v{vaddr}, {sr(WS)}, 0 offen sc0 sc1")
    set_exec(a, HI, HI)

def flag_check(a, label, vaddr, sbit, lo, wait):
    a(f"s_mov_b32 s{sCNT}, 0x100000")
    a(f"s_waitcnt vmcnt({wait})")
    a.lab(label)
    set_exec(a, lo, 0)
    a(f"v_cmp_ne_u32 vcc, s{sTAG}, v251")
    set_exec(a, HI, HI)
    a(f"s_cbranch_vccnz {label}_again")
    a.lab(label + "_ok")
    RETRY.append((label, vaddr, sbit, lo))
RETRY = []
def flag_retries(a):
    for label, vaddr, sbit, lo in RETRY:
        a.lab(label + "_again")
        a(f"s_sub_u32 s{sCNT}, s{sCNT}, 1")
        a(f"s_cbranch_scc1 {label}_ok")
        flag_set(a, vaddr, sbit, lo)
        a("s_waitcnt vmcnt(0)")
        a(f"s_branch {label}")

def kv_poll_addr(a, vd, t0):
    a(f"s_mul_i32 s4, s{sH}, 56")
    a("s_and_b32 s5, s4, 0xfffffff0")
    a(f"v_mov_b32 v{t0}, s5")
    a("s_add_u32 s5, s5, 62")
    a(f"v_writelane_b32 v{t0}, s5, 1")
    a("s_add_u32 s5, s4, 896")
    a(f"v_writelane_b32 v{t0}, s5, 2")
    a("s_add_u32 s5, s4, 950")
    a(f"v_writelane_b32 v{t0}, s5, 3")
    a(f"v_lshrrev_b32 v{t0}, 6, v{t0}")
    a(f"v_lshlrev_b32 v{t0}, {FSH+4}, v{t0}")
    a(f"s_and_b32 s3, s{sH}, 3")
    a(f"s_lshl2_add_u32 s3, s3, s{sW}")
    a(f"s_lshl_b32 s3, s3, {FSH}")
    a(f"s_add_u32 s3, s3, {FL_OFF}")
    a(f"v_add_u32 v{vd}, s3, v{t0}")

def mask_addr(a, vd):
    a(f"s_lshl_b32 s3, s{sW}, 12")
    a(f"s_sub_u32 s3, {L_CMB + 45056}, s3")
    a(f"v_mov_b32 v{vd}, s3")

def helper(a, ts):
    vX0, vX1, vW0, vW1, vWq = 2, 3, 6, 7, 8
    vZ, vP, vM, vWo = 9, 11, 12, 13
    a("v_lshrrev_b32 v7, 3, v0")
    a("v_mul_u32_u24 v2, 896, v7")
    a("v_and_b32 v6, 7, v0")
    a("v_lshrrev_b32 v4, 4, v0")
    a("v_xor_b32 v3, v6, v4")
    a("v_lshl_add_u32 v2, v3, 4, v2")
    a("v_xor_b32 v3, 64, v2")
    a("v_add_u32 v3, 6144, v3")
    a("v_and_b32 v4, 1, v4")
    a("v_lshlrev_b32 v4, 2, v4")
    a("v_xor_b32 v6, v6, v4")
    a("v_mul_u32_u24 v7, 2688, v7")
    a(f"v_lshl_add_u32 v{vW0}, v6, 4, v7")
    a(f"v_add_u32 v{vW1}, {8*2688-1024}, v{vW0}")
    a(f"s_lshl3_add_u32 s{sXB}, s{sB}, s{sW}")
    a(f"s_mul_i32 s{sXB}, s{sXB}, {16*896}")
    a(f"s_mul_i32 s{sWQ}, s{sW}, 43008")
    a(f"s_lshl_b32 s{sWB}, s{sH}, 7")
    a(f"s_add_u32 s{sWB}, s{sWB}, s{sWQ}")
    a(f"s_add_u32 s{sWB}, s{sWB}, 896")
    a(f"s_mov_b32 s{sWoS}, {64*896}")
    if SPF:
        a(f"s_cmp_lt_u32 s{sH}, 14")
        a("s_cbranch_scc1 L_nspare")
        if SPF in (1, 3, 4):
            a(f"s_add_u32 s{sXB}, s{sXB}, {64*896}")
            a(f"s_mov_b32 s{sWoS}, {-64*896}")
        if SPF in (1, 3, 4):
            a(f"s_and_b32 s3, s{sH}, 1")
            a("s_mul_i32 s3, s3, 3")
            a(f"s_and_b32 s{sWB}, s{sB}, 3")
            a(f"s_add_u32 s{sWB}, s{sWB}, s3")
            a(f"s_lshl_b32 s{sWB}, s{sWB}, 7")
            a(f"s_add_u32 s{sWB}, s{sWB}, s{sWQ}")
        else:
            a(f"s_add_u32 s{sWB}, s{sWQ}, 768")
        a.lab("L_nspare")
    a(f"s_lshl_b32 s{sWM}, s{sW}, 11")
    a(f"s_lshl1_add_u32 s3, s{sB}, s{sH}")
    a(f"s_mul_i32 s{sA}, s3, 37")
    a(f"s_lshr_b32 s{sA}, s{sA}, 8")
    a(f"s_mul_i32 s{sA}, s{sA}, 7")
    a(f"s_sub_u32 s{sKC}, s3, s{sA}")
    a(f"s_mov_b32 s{X+2}, {X_BYTES}")
    a(f"s_mov_b32 s{X+3}, 0x20000")
    if SPF in (1, 2):
        a(f"s_mov_b32 s{W+2}, {W_BYTES}")
    else:
        a(f"s_cmp_lt_u32 s{sH}, 14")
        a(f"s_cselect_b32 s{W+2}, {W_BYTES}, 0")
    a(f"s_mov_b32 s{W+3}, 0x20000")
    a("s_waitcnt lgkmcnt(0)")
    a(f"s_load_dword s{sTAG}, s[14:15], {EP_OFF}")
    a(f"s_mov_b32 s{X}, s4")
    a(f"s_and_b32 s{X+1}, s5, 0xffff")
    a(f"s_mov_b32 s{W}, s6")
    a(f"s_and_b32 s{W+1}, s7, 0xffff")
    def adv(r):
        a(f"s_add_u32 s{r}, s{r}, 1")
        a(f"s_cmp_eq_u32 s{r}, 7")
        a(f"s_cselect_b32 s{r}, 0, s{r}")
    def issue(u):
        kind, c = u[0], int(u[1])
        if kind == "A":
            if SPF == 4 and c == opt("spw", 4): a(f"s_mov_b32 s{W+2}, {W_BYTES}")
            a(f"s_mul_i32 s{sBb}, s{sKC}, 172032")
            a(f"s_add_u32 m0, s{sWM}, {L_WB + c*8192}")
            a(f"s_add_u32 s{sBb}, s{sBb}, s{sWB}")
            a(f"buffer_load_dwordx4 v{vW0}, {sr(W)}, s{sBb} offen lds")
            a(f"buffer_load_dwordx4 v{vW1}, {sr(W)}, s{sBb} offen offset:1024 lds")
        if kind == "Q":
            a(f"s_mul_i32 s{sBb}, s{sKQ}, 172032")
            a(f"s_add_u32 m0, s{sIT}, {L_WQ + c*4096}")
            a(f"s_add_u32 s{sBb}, s{sBb}, s{sWQ}")
            a(f"buffer_load_dwordx4 v{vWq}, {sr(WQS)}, s{sBb} offen lds")
            adv(sKQ)
            return [u]
        if u == "B0": a(f"s_add_u32 s{sXB}, s{sXB}, s{sWoS}")
        a(f"s_lshl_b32 s{sA}, s{sKC}, 7")
        a(f"s_add_u32 m0, s{sWM}, {(L_XA if kind == 'A' else L_WB) + c*8192}")
        a(f"s_add_u32 s{sA}, s{sA}, s{sXB}")
        a(f"buffer_load_dwordx4 v{vX0}, {sr(X)}, s{sA} offen lds")
        a(f"buffer_load_dwordx4 v{vX1}, {sr(X)}, s{sA} offen offset:1024 lds")
        adv(sKC)
        return [u] * (4 if kind == "A" else 2)
    a(f"s_mov_b32 s{sKQ}, s{sKC}")
    order = []
    for u in ("A0", "A1", "A2"): order += issue(u)
    ts("h_iss", grp=1)
    srd(a, WS, 14, 15, WS_BYTES)
    srd(a, WO, 8, 9, WO_BYTES)
    srd(a, WQS, 6, 7, W_BYTES)
    a("v_lshlrev_b32 v1, 4, v0")
    a("v_and_b32 v15, 3, v0")
    a(f"v_lshrrev_b32 v{vWq}, 2, v0")
    a(f"v_mul_u32_u24 v{vWq}, 2688, v{vWq}")
    a(f"v_lshl_add_u32 v{vWq}, v15, 4, v{vWq}")
    a(f"s_mul_i32 s3, s{sH}, 56")
    a("s_and_b32 s3, s3, 0xfffffff0")
    a(f"s_add_u32 s{sWQ}, s{sWQ}, s3")
    a(f"s_lshr_b32 s{sIT}, s{sWM}, 1")
    a(f"v_mov_b32 v{vZ}, 0")
    kv_poll_addr(a, vP, 16)
    mask_addr(a, vM)
    a(f"ds_write_b32 v{vM}, v{vZ}")
    a(f"s_lshr_b32 s3, s{sB}, 2")
    a(f"s_lshl1_add_u32 s3, s{sB}, s3")
    a(f"s_and_b32 s64, s3, 7")
    def poll_issue():
        set_exec(a, "0xf", 0)
        flag_read(a, vP)
        set_exec(a, HI, HI)
    def poll_take():
        a("s_waitcnt vmcnt(0)")
        flag_bits(a)
        a("s_nop 0")
        for i in range(4):
            a(f"v_readlane_b32 s{4+i}, v{vR}, {i}")
        a("s_and_b32 s4, s4, s5")
        a("s_and_b32 s6, s6, s7")
        a("s_and_b32 s4, s4, s6")
        if ROT:
            a("s_and_b32 s5, s4, 0xff")
            a("s_and_b32 s6, s4, 0xff00")
            a("s_lshl_b32 s6, s6, 8")
            a("s_or_b32 s5, s5, s6")
            a("s_lshl_b32 s6, s5, 8")
            a("s_or_b32 s5, s5, s6")
            a("s_lshr_b32 s5, s5, s64")
            a("s_and_b32 s4, s5, 0xff")
            a("s_lshr_b32 s5, s5, 8")
            a("s_and_b32 s5, s5, 0xff00")
            a("s_or_b32 s4, s4, s5")
        a("s_cmp_eq_u32 s4, 0xffff")
        a("s_cselect_b32 s4, 0x7ffff, s4")
        a("v_mov_b32 v15, s4")
        a(f"ds_write_b32 v{vM}, v15")
    PLANS = {
      0: [(["A3"], "A0"), (["A4"], "A1"), (["A5"], "A2"), (["A6"], "A3"), (["B0", "B1"], "A4"), (["B2", "B3"], "A5"), (["B4"], "A6"),
          (["B5"], "B1"), (["B6", "Q0", "Q1"], "B3"), (["Q2", "Q3"], "B5"), (["Q4", "Q5", "Q6"], "Q1"), ([], "Q3"), (["P"], "Q5"), ([], "Q6")],
      1: [(["A3"], "A0"), (["A4"], "A1"), (["A5"], "A2"), (["A6"], "A3"), (["B0", "B1"], "A4"), (["B2", "B3"], "A5"), (["B4", "Q0"], "A6"),
          (["B5", "Q1"], "B1"), (["B6", "Q2", "Q3"], "B3"), (["Q4", "Q5"], "B5"), (["Q6"], "B6"), ([], "Q3"), (["P"], "Q5"), ([], "Q6")],
      3: [(["A3"], "A0"), (["A4"], "A1"), (["A5"], "A2"), (["A6"], "A3"), (["B0", "B1"], "A4"), (["B2", "B3"], "A5"), (["B4"], "A6"),
          (["B5"], "B1"), (["B6", "Q0", "Q1"], "B3"), (["Q2", "Q3", "Q4"], "B5"), (["Q5", "Q6"], "Q1"), (["P"], "Q3"), ([], "Q5"), ([], "Q6")],
      2: [(["A3"], "A0"), (["A4"], "A1"), (["A5"], "A2"), (["A6"], "A3"), (["B0"], "A4"), (["B1", "B2"], "A5"), (["B3"], "A6"),
          ([], "B1"), (["B4", "B5", "B6", "Q0", "Q1"], "B3"), (["Q2", "Q3"], "B5"), (["Q4", "Q5", "Q6"], "Q1"), ([], "Q3"), (["P"], "Q5"), ([], "Q6")],
    }
    for n, (us, need) in enumerate(PLANS[opt("plan", 3)]):
        for u in us:
            if u == "P":
                a("s_waitcnt lgkmcnt(0)")
                a(f"s_xor_b32 s{sTAG}, s{sTAG}, 0x5ac3a53c")
                poll_issue(); order.append(u)
            else:
                order += issue(u)
        last = max(i for i, x in enumerate(order) if x == need)
        a(f"s_waitcnt vmcnt({len(order) - 1 - last})")
        if n in (0, 3, 6, 7, 10, 13): ts(f"w{n}", grp=1)
        a("s_barrier")
    if SCW:
        a("s_lshr_b32 s3, s2, 3")
        a(f"s_lshl2_add_u32 s3, s3, s{sW}")
        a("s_mul_i32 s3, s3, 3136")
        a("s_and_b32 s3, s3, 0xffffff80")
        a("s_add_u32 s8, s8, s3")
        a("s_addc_u32 s9, s9, 0")
        for i in range(25):
            a(f"s_load_dword s10, s[8:9], {128*i}")
    a(f"s_mov_b32 s{sCNT}, 0x100000")
    a(f"s_mov_b32 s{sIT}, 0")
    a("s_branch L_hpoll_in")
    a.lab("L_hpoll")
    a(f"s_sub_u32 s{sCNT}, s{sCNT}, 1")
    a("s_cbranch_scc1 L_hpoll_giveup")
    poll_issue()
    a.lab("L_hpoll_in")
    poll_take()
    a("s_cmp_eq_u32 s4, 0x7ffff")
    a("s_cbranch_scc1 L_hpoll_done")
    a("s_bcnt1_i32_b32 s5, s4")
    a("s_cmp_lt_u32 s5, 2")
    a(f"s_cselect_b32 s5, 1, s{sIT}")
    a("s_cmp_lg_u32 s5, 0")
    a("s_cbranch_scc1 L_hnob8")
    a("s_barrier")
    a(f"s_mov_b32 s{sIT}, 1")
    a.lab("L_hnob8")
    if SLEEP: a(f"s_sleep {SLEEP}")
    if SL2:
        a(f"s_cmp_eq_u32 s{sIT}, 0")
        a("s_cbranch_scc1 L_hpoll")
        a(f"s_sleep {SL2}")
    a("s_branch L_hpoll")
    a.lab("L_hpoll_giveup")
    a("v_mov_b32 v15, 0x7ffff")
    a(f"ds_write_b32 v{vM}, v15")
    a.lab("L_hpoll_done")
    a(f"s_cmp_lg_u32 s{sIT}, 0")
    a("s_cbranch_scc1 L_hb8done")
    a("s_barrier")
    a.lab("L_hb8done")
    ts("h_all", grp=1)
    a("v_lshrrev_b32 v16, 4, v0")
    a(f"v_mul_u32_u24 v{vWo}, 896, v16")
    a("v_lshlrev_b32 v16, 2, v16")
    a("v_and_b32 v17, 15, v0")
    a("v_xor_b32 v16, v16, v17")
    a(f"v_lshl_add_u32 v{vWo}, v16, 4, v{vWo}")
    a(f"s_mul_i32 s{sWoS}, s{sCS4}, 224")
    a(f"s_and_b32 s{sWoS}, s{sWoS}, 0xffffffc0")
    a(f"s_mul_i32 s3, s{sW}, {28*3584}")
    a(f"s_add_u32 s{sWoS}, s{sWoS}, s3")
    a(f"s_mul_i32 s{sWM}, s{sW}, {28*1024}")
    if WROT:
        a(f"s_and_b32 s{sKC}, s{sT3}, 15")
        a(f"s_mul_i32 s{sKC}, s{sKC}, 7")
        a(f"s_lshr_b32 s{sKC}, s{sKC}, 2")
    else:
        a(f"s_mov_b32 s{sKC}, 0")
    a(f"s_mov_b32 s{sIT}, 28")
    a.lab("L_wo")
    a(f"s_lshl_b32 s3, s{sKC}, 10")
    a(f"s_add_u32 m0, s3, s{sWM}")
    a(f"s_mul_i32 s3, s{sKC}, 3584")
    a(f"s_add_u32 s3, s3, s{sWoS}")
    a(f"buffer_load_dwordx4 v{vWo}, {sr(WO)}, s3 offen lds")
    if WPACE >= 0: a(f"s_waitcnt vmcnt({WPACE})")
    else: a(f"s_sleep {WSL}")
    a(f"s_add_u32 s{sKC}, s{sKC}, 1")
    a(f"s_cmp_eq_u32 s{sKC}, 28")
    a(f"s_cselect_b32 s{sKC}, 0, s{sKC}")
    a(f"s_sub_u32 s{sIT}, s{sIT}, 1")
    a(f"s_cmp_lg_u32 s{sIT}, 0")
    a("s_cbranch_scc1 L_wo")
    a(f"s_lshl_b32 s3, s{sT3}, {FSH}")
    a(f"s_add_u32 s3, s3, {FL_OFF + (NOFL << FSH)}")
    a(f"v_mov_b32 v{vP}, s3")
    a(f"s_lshl_b32 s4, s{sW}, 2")
    a("s_lshl_b32 s4, 15, s4")
    a(f"s_lshl_b32 s3, s{sT3}, 2")
    a(f"s_add_u32 s3, s3, s{sW}")
    a("s_lshl_b32 s3, s3, 13")
    a(f"s_add_u32 s3, s3, {O_OFF}")
    a(f"s_add_u32 s{sA}, s3, 4096")
    a(f"s_lshl_b32 s{sBb}, s{sW}, 13")
    a(f"s_add_u32 s{sBb}, s{sBb}, {L_CMB}")
    a(f"v_add_u32 v{vM}, s{sBb}, v1")
    a("s_waitcnt vmcnt(0) lgkmcnt(0)")
    ts("h_wo", grp=1)
    a("s_barrier")
    if not PH:
        poll(a, "L_poll2", vP, 1, 0, "s4")
        ts("h_poll2", grp=1)
        for f in range(8):
            a(f"buffer_load_dwordx4 {vr(32+4*f,4)}, v1, {sr(WS)}, {'s3' if f < 4 else 's%d' % sA} offen offset:{1024*(f%4)} sc1")
        a("s_barrier")
        for f in range(8):
            a(f"s_waitcnt vmcnt({7-f})")
            a(f"ds_write_b128 v{vM}, {vr(32+4*f,4)} offset:{1024*f}")
    else:
        sSH, sHAVE, sNEW = sKC, sWM, sWQ
        a(f"s_lshl_b32 s{sSH}, s{sW}, 2")
        a(f"s_mov_b32 s{sHAVE}, 0")
        a(f"s_mov_b32 s{sCNT}, 0x100000")
        a.lab("L_og")
        set_exec(a, 1, 0)
        flag_read(a, vP)
        set_exec(a, HI, HI)
        a("s_waitcnt vmcnt(0)")
        a(f"v_readfirstlane_b32 s4, v{vR}")
        a(f"v_readfirstlane_b32 s5, v{vR+1}")
        a("s_nop 0")
        a(f"s_lshr_b32 s4, s4, s{sSH}")
        a("s_and_b32 s4, s4, 15")
        a(f"s_cmp_eq_u32 s5, s{sTAG}")
        a("s_cselect_b32 s4, s4, 0")
        a(f"s_sub_u32 s{sCNT}, s{sCNT}, 1")
        a("s_cselect_b32 s4, 15, s4")
        a(f"s_andn2_b32 s{sNEW}, s4, s{sHAVE}")
        a("s_cbranch_scc0 L_og")
        a(f"s_or_b32 s{sHAVE}, s{sHAVE}, s4")
        for i in range(4):
            a(f"s_bitcmp0_b32 s{sNEW}, {i}")
            a(f"s_cbranch_scc1 L_ol{i}")
            for u in range(2):
                a(f"buffer_load_dwordx4 {vr(32+8*i+4*u,4)}, v1, {sr(WS)}, {'s3' if i < 2 else 's%d' % sA} offen offset:{2048*(i%2)+1024*u} sc1")
            a.lab(f"L_ol{i}")
        a(f"s_cmp_lg_u32 s{sHAVE}, 15")
        a("s_cbranch_scc1 L_og")
        ts("h_poll2", grp=1)
        a("s_barrier")
        for ph in range(2):
            if ph == 1: a("s_waitcnt vmcnt(0)")
            for i in range(4):
                a(f"s_bitcmp{1-ph}_b32 s{sNEW}, {i}")
                a(f"s_cbranch_scc1 L_ow{ph}{i}")
                for u in range(2):
                    a(f"ds_write_b128 v{vM}, {vr(32+8*i+4*u,4)} offset:{2048*i+1024*u}")
                a.lab(f"L_ow{ph}{i}")
    a("s_waitcnt lgkmcnt(0)")
    ts("h_stage", grp=1)
    a("s_barrier")
    a(f"s_or_b32 s3, s2, s{sW}")
    a("s_cmp_lg_u32 s3, 0")
    a("s_cbranch_scc1 L_noep")
    a(f"v_lshlrev_b32 v{vP}, {FSH}, v0")
    a(f"v_add_u32 v{vP}, {FL_OFF + (NOFL << FSH)}, v{vP}")
    poll(a, "L_pollep", vP, HI, HI, "0xffff")
    a(f"s_xor_b32 s3, s{sTAG}, 0x5ac3a53c")
    a("s_add_u32 s3, s3, 0x9e3779b9")
    a("v_mov_b32 v15, s3")
    a(f"v_mov_b32 v{vP}, {EP_OFF}")
    set_exec(a, 1, 0)
    a(f"buffer_store_dword v15, v{vP}, {sr(WS)}, 0 offen sc1")
    if opt("rep", -1) >= 0:
        a("v_not_b32 v16, v15")
        a(f"buffer_store_dword v16, v{vP}, {sr(WS)}, 0 offen offset:4 sc1")
    a.lab("L_noep")
    if TS and TSG == 1: ts.dump()
    a("s_endpgm")

def kernel(a):
    name = NAME + "_kernel"
    a.raw(f".globl {name}")
    a.raw(".p2align 8")
    a.raw(f".type {name},@function")
    a.lab(name)
    ts = Stamps(a)
    ts("start")
    a("s_cmp_ge_u32 s2, 256")
    a("s_cbranch_scc1 L_end")
    a("s_load_dwordx8 s[4:11], s[0:1], 0")
    a("s_load_dwordx4 s[12:15], s[0:1], 32")
    a("v_lshrrev_b32 v1, 6, v0")
    a("v_and_b32 v0, 63, v0")
    a(f"v_readfirstlane_b32 s{sA}, v1")
    decode_hb(a)
    a(f"s_and_b32 s{sW}, s{sA}, 3")
    a(f"s_lshl_b32 s{sT}, s{sB}, 2")
    a(f"s_and_b32 s{sT3}, s{sH}, 3")
    a(f"s_add_u32 s{sT3}, s{sT3}, s{sT}")
    a(f"s_add_u32 s{sT}, s{sT}, s{sW}")
    a(f"s_lshr_b32 s{sCS4}, s{sH}, 2")
    a(f"s_cmp_lt_u32 s{sA}, 4")
    a("s_cbranch_scc1 L_compute")
    helper(a, ts)
    a.lab("L_compute")
    t0, t1, t2, t3, t4, t5 = vT
    if CPF:
        a(f"s_cmp_lt_u32 s{sH}, {14 if CPF == 1 else 0}")
        a("s_cbranch_scc1 L_nocpf")
        a("s_getpc_b64 s[20:21]")
        a(f"s_lshl_b32 s3, s{sW}, 12")
        a("v_lshl_add_u32 v254, v0, 6, s3")
        a(f"v_min_u32 v254, L_codeend - L_compute - 64, v254")
        a("global_load_dword v255, v254, s[20:21]")
        a.lab("L_nocpf")
    a("s_waitcnt lgkmcnt(0)")
    a(f"s_load_dword s{sTAG}, s[14:15], {EP_OFF}")
    if opt("rep", -1) >= 0: a(f"s_load_dwordx2 s[64:65], s[14:15], {EP_OFF}")
    if SCP:
        a("s_bfe_u32 s3, s2, 0x30003")
        a(f"s_cmp_ge_u32 s{sW}, 2")
        a("s_cbranch_scc1 L_scw")
        a(f"s_lshl4_add_u32 s3, s{sB}, s3")
        a("s_add_u32 s3, s3, 8")
        a(f"s_lshl1_add_u32 s3, s3, s{sW}")
        a("s_mul_i32 s3, s3, 3584")
        a("s_add_u32 s4, s4, s3")
        a("s_addc_u32 s5, s5, 0")
        for i in range(28):
            a(f"s_load_dword s{sCNT}, s[4:5], {128*i}")
        a("s_branch L_scd")
        a.lab("L_scw")
        a(f"s_and_b32 s{sA}, s{sB}, 3")
        a(f"s_lshl2_add_u32 s3, s3, s{sA}")
        a(f"s_lshl1_add_u32 s3, s3, s{sW}")
        a("s_sub_u32 s3, s3, 2")
        a(f"s_mul_i32 s3, s3, {7*2688}")
        a(f"s_and_b32 s{sA}, s2, 1")
        a(f"s_mul_i32 s{sA}, s{sA}, 384")
        a(f"s_add_u32 s3, s3, s{sA}")
        a("s_add_u32 s4, s6, s3")
        a("s_addc_u32 s5, s7, 0")
        for r in range(7):
            for i in range(4):
                a(f"s_load_dword s{sCNT}, s[4:5], {2688*r + 128*i}")
        a.lab("L_scd")
    srd(a, WS, 14, 15, WS_BYTES)
    if TS: srd(a, DBG, 12, 13, 256)
    if SPF in (1, 3, 4):
        a(f"s_cmp_lt_u32 s{sH}, 14")
        a("s_cselect_b32 s3, 0, 2")
        a(f"s_xor_b32 s{sT}, s{sT}, s3")
    a(f"s_and_b32 s4, s{sW}, 1")
    a(f"s_lshr_b32 s5, s{sW}, 1")
    a("v_lshlrev_b32 v1, 4, v0")
    a("v_and_b32 v15, 3, v0")
    a("v_and_b32 v2, 31, v0")
    a(f"v_lshlrev_b32 v{vV0}, 4, v2")
    a("v_lshlrev_b32 v2, 7, v2")
    a("v_bfe_u32 v3, v0, 1, 3")
    a("v_lshrrev_b32 v4, 5, v0")
    a(f"v_mul_u32_u24 v{vV1}, {V_PLANE}, v4")
    a(f"v_add_u32 v{vV0}, v{vV0}, v{vV1}")
    a("v_xor_b32 v3, v3, v4")
    a("v_lshl_add_u32 v2, v3, 4, v2")
    a("s_lshl_b32 s3, s4, 12")
    a("v_add_u32 v2, s3, v2")
    a(f"v_bfe_u32 v{t0}, v0, 2, 2")
    a(f"v_lshl_add_u32 v{t1}, v4, 3, v{t0}")
    a("v_xor_b32 v3, 32, v2")
    a("v_xor_b32 v4, 64, v2")
    a("v_xor_b32 v5, 96, v2")
    a(f"s_mul_i32 s3, s5, {L_WB}")
    for i in range(4):
        a(f"v_add_u32 v{vXO[i]}, s3, v{vXA[i]}")
    a(f"v_bfe_u32 v{t2}, v0, 4, 1")
    a(f"v_lshlrev_b32 v{t2}, 5, v{t2}")
    a(f"v_lshrrev_b32 v{t3}, 1, v15")
    a(f"v_and_b32 v{t4}, 1, v15")
    a(f"v_lshl_add_u32 v{t3}, v{t4}, 1, v{t3}")
    a(f"v_lshl_add_u32 v{t3}, v{t3}, 3, v{t2}")
    a(f"v_lshl_add_u32 v{t4}, v15, 3, v{t2}")
    a(f"v_lshl_add_u32 v{vQR}, v{t1}, 6, v{t3}")
    a(f"v_add_u32 v{vQR}, {L_WQ}, v{vQR}")
    a(f"s_cmp_lt_u32 s{sH}, 7")
    a("s_cselect_b64 vcc, -1, 0")
    a(f"v_cndmask_b32 v{t3}, v{t4}, v{t3}, vcc")
    a(f"v_lshrrev_b32 v{t0}, 1, v{t0}")
    a(f"v_xor_b32 v{t0}, s5, v{t0}")
    a(f"v_lshl_add_u32 v{t3}, v{t0}, 6, v{t3}")
    a(f"v_lshl_add_u32 v{vWR}, v{t1}, 7, v{t3}")
    a(f"v_add_u32 v{vWR}, {L_WB}, v{vWR}")
    mask_addr(a, vMk)
    a(f"s_lshl1_add_u32 s5, s{sH}, s5")
    a(f"s_and_b32 s3, s{sB}, 1")
    a("s_lshl1_add_u32 s4, s3, s4")
    a(f"s_lshr_b32 s{sBIT}, s{sB}, 1")
    a(f"s_lshl4_add_u32 s{sS0}, s4, s{sBIT}")
    a(f"s_lshl_b32 s{sS0}, s{sS0}, 16")
    a("s_lshl4_add_u32 s3, s5, s4")
    a(f"v_lshl_add_u32 v{vP1}, v0, 2, s3")
    a(f"v_lshlrev_b32 v{vP1}, {FSH}, v{vP1}")
    a(f"v_add_u32 v{vP1}, {FL_OFF}, v{vP1}")
    a(f"s_lshl_b32 s{sA}, s{sT}, {FSH}")
    a(f"s_add_u32 s{sA}, s{sA}, {FL_OFF + (NOFL << FSH)}")
    a(f"v_mov_b32 v{vFl2}, s{sA}")
    a(f"v_writelane_b32 v{vP1}, s{sA}, 4")
    a(f"v_bfe_u32 v{vPad}, v0, 3, 2")
    a(f"v_mul_u32_u24 v{vPad}, {V_PLANE}, v{vPad}")
    a(f"v_lshrrev_b32 v{t0}, 5, v0")
    a(f"v_lshl_add_u32 v{vPad}, v{t0}, 19, v{vPad}")
    a(f"v_and_b32 v{t0}, 7, v0")
    a(f"v_lshl_add_u32 v{vPad}, v{t0}, 4, v{vPad}")
    a(f"v_cmp_eq_u32 vcc, 0, v{t0}")
    a(f"v_mov_b32 v{t1}, 0x3f803f80")
    a("s_nop 0")
    for r in range(4):
        a(f"v_cndmask_b32 v{PADC+r}, 0, v{t1}, vcc")
    srd(a, OUT, 10, 11, OUT_BYTES)
    srd(a, KVS, 14, 15, KV_BYTES)
    a("s_waitcnt lgkmcnt(0)")
    a(f"s_xor_b32 s{sTAG}, s{sTAG}, 0x5ac3a53c")
    a("v_mov_b32 v250, 0")
    a(f"v_mov_b32 v251, s{sTAG}")
    a(f"s_cmp_ge_u32 s{sB}, 2")
    a("s_cbranch_scc1 L_noopen1")
    set_exec(a, "0xf", 0)
    a(f"buffer_atomic_swap_x2 v[250:251], v{vP1}, {sr(WS)}, 0 offen sc1")
    a.lab("L_noopen1")
    a(f"s_cmp_lg_u32 s{sH}, 15")
    a("s_cbranch_scc1 L_noopen2")
    set_exec(a, 1, 0)
    a(f"buffer_atomic_swap_x2 v[250:251], v{vFl2}, {sr(WS)}, 0 offen sc1")
    a.lab("L_noopen2")
    set_exec(a, HI, HI)
    def ldk(slot):
        for f in range(2):
            a(f"buffer_load_dwordx4 {vr(KV+16*slot+4*f,4)}, v{vKo}, {sr(X)}, s{sKV} offen offset:{1024*f} sc1")
    def ldv(slot):
        a(f"buffer_load_dwordx4 {vr(KV+16*slot+8,4)}, v{t4}, {sr(X)}, s{sKV} offen sc1")
        a(f"buffer_load_dwordx4 {vr(KV+16*slot+12,4)}, v{t5}, {sr(X)}, s{sKV} offen sc1")
    npick = [0]
    def pick_ops():
        n = npick[0]; npick[0] += 1
        def p0(): a(f"s_and_b32 s{sAV}, s{sRDY}, s{sTODO}")
        def p1():
            if not (NOBR and n >= 5): a(f"s_cbranch_scc0 L_slow{n}")
            a.lab(f"L_back{n}")
        def p2(): a(f"s_ff1_i32_b32 s{sAV}, s{sAV}")
        def p3(): a(f"s_bitset0_b32 s{sTODO}, s{sAV}")
        def p4(): a(f"s_lshl_b32 s{sKV}, s{sAV}, 16")
        if not ROT: return [p0, p1, p2, p3, p4]
        def r0(): a(f"s_add_u32 s{sBb}, s{sAV}, s{sROT}")
        def r1(): a(f"s_and_b32 s{sBb}, s{sBb}, 7")
        def r2(): a(f"s_and_b32 s{sAV}, s{sAV}, 24")
        def r3(): a(f"s_or_b32 s{sAV}, s{sAV}, s{sBb}")
        return [p0, p1, p2, p3, r0, r1, r2, r3, p4]
    a(f"s_lshl_b32 s3, s{sW}, 20")
    a(f"s_add_u32 s{X}, s14, s3")
    a(f"s_addc_u32 s{X+1}, s15, 0")
    a(f"s_and_b32 s{X+1}, s{X+1}, 0xffff")
    a(f"s_mov_b32 s{X+2}, {1 << 20}")
    a(f"s_mov_b32 s{X+3}, 0x20000")
    a(f"s_mul_i32 s6, s{sH}, 56")
    a("s_lshr_b32 s7, s6, 4")
    a("s_lshl_b32 s7, s7, 9")
    a(f"v_add_u32 v{vKo}, s7, v1")
    a("s_lshr_b32 s6, s6, 1")
    a(f"v_and_b32 v{t0}, 31, v0")
    a(f"v_add_u32 v{t1}, s6, v{t0}")
    a(f"v_lshrrev_b32 v{t2}, 5, v{t1}")
    a(f"v_lshl_add_u32 v{t1}, v{t2}, 3, v{t1}")
    a("s_lshr_b32 s7, s6, 5")
    a("s_mul_i32 s7, s7, 40")
    a("s_add_u32 s7, s7, 4")
    a(f"v_add_u32 v{t2}, s7, v{t0}")
    a(f"v_cmp_gt_u32 vcc, 28, v{t0}")
    a(f"v_add_u32 v{t5}, {V_BASE}, v{vV1}")
    a("s_nop 0")
    a(f"v_cndmask_b32 v{t1}, v{t2}, v{t1}, vcc")
    a(f"v_lshl_add_u32 v{t4}, v{t1}, 4, v{t5}")
    a(f"v_add_u32 v{t5}, {2*V_PLANE}, v{t4}")
    a(f"s_lshr_b32 s3, s{sB}, 2")
    a(f"s_lshl1_add_u32 s3, s{sB}, s3")
    a(f"s_and_b32 s{sROT}, s3, 7")
    a(f"s_mov_b32 s{sRDY}, 0")
    a(f"s_mov_b32 s{sTODO}, 0x7ffff")
    a(f"v_add_u32 v{t0}, v{vMk}, v1")
    a(f"s_mul_i32 s3, s{sW}, 12288")
    a(f"s_add_u32 s11, s3, {L_CMB}")
    for i in range(3):
        a(f"s_add_u32 s{sA}, s{sW}, {1+i}")
        a(f"s_and_b32 s{sA}, s{sA}, 3")
        a(f"s_mul_i32 s3, s{sA}, 12288")
        a(f"s_add_u32 s{8+i}, s3, {L_CMB + 4096*i}")
        a(f"s_lshl_b32 s{sA}, s{sA}, 12")
        a(f"s_sub_u32 s{sA}, {L_CMB + 45056}, s{sA}")
        a(f"v_add_u32 v{vT[1+i]}, s{sA}, v1")
    a("v_mov_b32 v30, 0")
    a("v_mov_b32 v31, 0")
    for r in (P+4, P+6):
        a(f"v_pk_mov_b32 {vr(r,2)}, v[30:31], v[30:31]")
    def fill3():
        for sl in range(3):
            for f in pick_ops(): f()
            ldk(sl); ldv(sl)
    def publish(kind, pk):
        if kind == "V":
            a(f"s_add_u32 s{sS1}, s{sS0}, {2*V_PLANE}")
            if not PADE:
                set_exec(a, HI, 0)
                a(f"buffer_store_dwordx4 {vr(PADC,4)}, v{vPad}, {sr(KVS)}, s{sS0} offen offset:512 sc1")
                set_exec(a, HI, HI)
        for f in range(2):
            for i in range(4):
                a(f"v_cvt_pk_bf16_f32 v{pk+4*f+i}, v{AK+8*f+2*i}, v{AK+8*f+2*i+1}")
            if kind == "K":
                a(f"buffer_store_dwordx4 {vr(pk+4*f,4)}, v1, {sr(KVS)}, s{sS0} offen offset:{1024*f} sc1")
            else:
                a(f"buffer_store_dwordx4 {vr(pk+4*f,4)}, v{vV0}, {sr(KVS)}, s{sS0 if f == 0 else sS1} offen sc1")
    def phase1(kind):
        if kind == "K":
            a("s_lshl_b32 s3, s5, 11")
            a(f"s_add_u32 s{sS0}, s{sS0}, s3")
        else:
            a(f"s_mul_i32 s3, s5, {V_CT}")
            a(f"s_add_u32 s{sS0}, s{sS0}, s3")
            a(f"s_add_u32 s{sS0}, s{sS0}, {V_BASE - 14*V_CT}")
            a(f"s_cmp_lt_u32 s{sH}, 14")
            a(f"s_cselect_b32 s{KVS+2}, {KV_BYTES}, 0")
            if PADE:
                a(f"buffer_store_dwordx4 {vr(PADC,4)}, v{vPad}, {sr(KVS)}, s{sS0} offen offset:512 sc1")
        def kvm(w, x, first):
            c = "0" if first else vr(AK,16)
            if kind == "K": mfma(a, vr(AK,16), w, x, c)
            else: mfma(a, vr(AK,16), x, w, c)
        def rdA(c, i):
            a(f"ds_read_b128 {vr(BUF+4*i,4)}, v{vXA[i]} offset:{c*8192}")
            for r in range(2):
                a(f"ds_read_b64_tr_b16 {vr(WFK+16*c+4*i+2*r,2)}, v{vWR} offset:{(c*4+i)*2048 + r*512}")
        def mmA(c, i):
            kvm(vr(WFK+16*c+4*i,4), vr(BUF+4*i,4), c == 0 and i == 0)
        def loop(rd, mm, nr, hook, second=False):
            D = PDB if second else PDA
            if D:
                for s_ in range(-D, 28):
                    n = s_ + D
                    if n < 28:
                        if n % 4 == 0:
                            a("s_barrier")
                            hook(n // 4)
                        rd(n // 4, n % 4)
                    if second and s_ == 25: a(f"ds_read_b32 v15, v{vMk}")
                    if s_ >= 0:
                        left = min(27, n) - s_
                        extra = 1 if (second and s_ in (25, 26)) else 0
                        a(f"s_waitcnt lgkmcnt({nr*left + extra})")
                        mm(s_ // 4, s_ % 4)
                return
            for c in range(7):
                sk = SKEW and 0 < c < 6
                a("s_barrier")
                hook(c)
                lastB = second and c == 6
                rd(c, 0); rd(c, 1)
                if sk: mm(c-1, 2)
                rd(c, 2)
                if sk: mm(c-1, 3)
                a(f"s_waitcnt lgkmcnt({2*nr})")
                rd(c, 3)
                mm(c, 0)
                a(f"s_waitcnt lgkmcnt({2*nr})")
                mm(c, 1)
                if not (SKEW and c < 5):
                    a(f"s_waitcnt lgkmcnt({nr})")
                    if lastB: a(f"ds_read_b32 v15, v{vMk}")
                    mm(c, 2)
                a("s_waitcnt lgkmcnt(0)")
                if not (SKEW and c < 5):
                    mm(c, 3)
        loop(rdA, mmA, 3, lambda c: ts("c0") if c == 0 else None)
        ts("a_mm")
        for i in range(4):
            a(f"v_add_u32 v{vXA[i]}, {L_WB}, v{vXA[i]}")
        a("s_nop 7")
        publish(kind, PKA)
        a(f"s_add_u32 s{sS0}, s{sS0}, {8 << 16}")
        ts("a_st")
        steps = [("B", s_) for s_ in range(28)] + [("Q", s_) for s_ in range(28)]
        bar = {("B", 0): 0, ("B", 8): 1, ("B", 16): 2, ("B", 24): 3, ("Q", 8): 4, ("Q", 16): 5, ("Q", 24): 6}
        NB = 6
        D = 4
        def cnt(st): return 1 if st[0] == "B" else 3
        for k in range(-D, len(steps)):
            n = k + D
            if n < len(steps):
                st = steps[n]; c, i = st[1] // 4, st[1] % 4
                if st in bar:
                    a("s_barrier")
                    if bar[st] == FA:
                        a("s_waitcnt vmcnt(0)")
                        flag_set(a, vP1, sBIT, "0x1f")
                        ts("a_flag")
                    if bar[st] == 6:
                        flag_check(a, f"L_fc1{kind}", vP1, sBIT, "0x1f", (2 if (kind == "K" or PADE) else 3) if EB >= 0 else 0)
                b = BUF + 8 * (n % NB)
                if st[0] == "B":
                    a(f"ds_read_b128 {vr(b,4)}, v{vXA[i]} offset:{c*8192}")
                else:
                    a(f"ds_read_b128 {vr(b,4)}, v{vXO[i]} offset:{c*8192}")
                    for r in range(2):
                        a(f"ds_read_b64_tr_b16 {vr(b+4+2*r,2)}, v{vQR} offset:{st[1]*1024 + r*256}")
            if k == len(steps) - 3: a(f"ds_read_b32 v15, v{vMk}")
            if k >= 0:
                st = steps[k]; b = BUF + 8 * (k % NB)
                left = sum(cnt(x) for x in steps[k+1:n+1]) + (1 if k in (len(steps)-3, len(steps)-2) else 0)
                a(f"s_waitcnt lgkmcnt({left})")
                if st[0] == "B":
                    kvm(vr(WFK+4*st[1],4), vr(b,4), st[1] == 0)
                else:
                    mfma(a, vr(AQ,16), vr(b+4,4), vr(b,4), "0" if st[1] == 0 else vr(AQ,16))
                    if st[1] == EB: publish(kind, PKB)
    a(f"s_cmp_lt_u32 s{sH}, 7")
    a("s_cbranch_scc0 L_vline")
    phase1("K")
    a("s_branch L_q")
    a.lab("L_vline")
    phase1("V")
    a.lab("L_q")
    ts("b_mm")
    def flagb(w):
        a(f"s_lshl_b32 s3, 0x100, s{sBIT}")
        a("v_mov_b32 v250, s3")
        if w is not None: a(f"s_waitcnt vmcnt({w})")
        set_exec(a, "0xf", 0)
        a(f"buffer_atomic_or v250, v{vP1}, {sr(WS)}, 0 offen sc1")
        set_exec(a, HI, HI)
        ts("b_flag")
    FBL = opt("fbl", 0)
    if EB >= 0 and FBL == 0: flagb(0)
    def fill(sl):
        for f in pick_ops(): f()
        ldk(sl); ldv(sl)
    a(f"v_readfirstlane_b32 s{sRDY}, v15")
    a("s_nop 0")
    a(f"s_mov_b32 s{sIT}, s{sRDY}")
    a(f"s_cmp_eq_u32 s{sIT}, 0")
    a("s_cbranch_scc1 L_noearly")
    fill(0)
    a.lab("L_noearly")
    if EB >= 0 and FBL == 1: flagb(4)
    a(f"s_mov_b32 s4, {f32bits(QSCALE):#x}")
    a("s_mov_b32 s5, s4")
    for o in OT[2:]:
        for r in range(0, 10, 2):
            a(f"v_pk_mov_b32 {vr(o+r,2)}, v[30:31], v[30:31]")
    for r in range(0, 16, 2):
        a(f"v_pk_mul_f32 {vr(AQ+r,2)}, {vr(AQ+r,2)}, s[4:5]")
    Q3 = Q + 24
    for i in range(8):
        a(f"v_cvt_pk_bf16_f32 v{Q3+i}, v{AQ+2*i}, v{AQ+2*i+1}")
    a(f"s_bitcmp1_b32 s{sH}, 0")
    a("s_cselect_b32 exec_lo, -1, 0")
    a("s_mov_b32 exec_hi, 0")
    a(f"v_pk_mov_b32 {vr(Q3,2)}, v[30:31], v[30:31]")
    a("s_cselect_b32 exec_hi, 0, -1")
    a("s_mov_b32 exec_lo, 0")
    a(f"v_pk_mov_b32 {vr(Q3+6,2)}, v[30:31], v[30:31]")
    set_exec(a, HI, HI)
    a(f"ds_write_b128 v{t0}, {vr(Q3,4)} offset:2048")
    a(f"ds_write_b128 v{t0}, {vr(Q3+4,4)} offset:3072")
    a(f"s_cmp_lg_u32 s{sIT}, 0")
    a("s_cbranch_scc1 L_filled")
    fill(0)
    a.lab("L_filled")
    if FBL == 2: flagb(4)
    fill(1)
    a("s_waitcnt lgkmcnt(0)")
    ts("q_done")
    a("s_barrier")
    for i in range(3):
        a(f"ds_read_b128 {vr(Q+8*i,4)}, v{vT[1+i]} offset:2048")
        a(f"ds_read_b128 {vr(Q+8*i+4,4)}, v{vT[1+i]} offset:3072")
    zr = [o + r for o in OT[2:] for r in range(10, 16, 2)] + [KV+60, KV+62] + [o + r for o in OT[:2] for r in range(0, 16, 2)]
    for r in zr[:12]:
        a(f"v_pk_mov_b32 {vr(r,2)}, v[30:31], v[30:31]")
    if EB < 0:
        a(f"s_cmp_lt_u32 s{sH}, 7")
        a("s_cbranch_scc0 L_pubv")
        publish("K", PKB)
        a("s_branch L_pubd")
        a.lab("L_pubv")
        publish("V", PKB)
        a.lab("L_pubd")
    a(f"s_mov_b32 s{sIT}, 3")
    if EB < 0: a(f"s_add_u32 s{sBIT}, s{sBIT}, 8")
    vC = [2, 3, 4]; vCR = 5
    a("s_waitcnt vmcnt(4) lgkmcnt(0)")
    ts("kv0")
    def mS(part, t):
        slot = (t // 4) % 4; qt = t % 4
        d = vr(S[t % 2], 16)
        mfma(a, d, vr(KV+16*slot+4*part,4), vr(Q+8*qt+4*part,4), "0" if part == 0 else d)
    def mPV(part, t):
        slot = (t // 4) % 4; qt = t % 4
        d = vr(OT[qt], 16)
        mfma(a, d, vr(KV+16*slot+8+4*part,4), vr(P+4*part,4), d)
    def EC(t, g):
        s = S[t % 2] + 4*g
        for r in range(4):
            a(f"v_exp_f32 v{s+r}, v{s+r}")
        a(f"v_cvt_pk_bf16_f32 v{P+2*g}, v{s}, v{s+1}")
        a(f"v_cvt_pk_bf16_f32 v{P+2*g+1}, v{s+2}, v{s+3}")
    mS(0, 0)
    for r in zr[12:18]:
        a(f"v_pk_mov_b32 {vr(r,2)}, v[30:31], v[30:31]")
    mS(1, 0)
    fill(2)
    for f in pick_ops(): f()
    for r in zr[18:]:
        a(f"v_pk_mov_b32 {vr(r,2)}, v[30:31], v[30:31]")
    ts("att0", cyc=True)
    a.raw(".p2align 6")
    a.lab("L_loop")
    def tile(j, last=False):
        fs = [None] * 16
        if not last:
            fs[11] = lambda: a("s_waitcnt vmcnt(8)")
            po = pick_ops()
            if PFM:
                fs[2] = lambda: a(f"ds_read_b32 v15, v{vMk}")
                fs[4] = lambda: a("s_waitcnt lgkmcnt(0)")
                fs[5] = lambda: a(f"v_readfirstlane_b32 s{sRDY}, v15")
            for k, f in enumerate(po): fs[(6 if (PFM or LDM == 2) else 2) + k] = f
            if j == FBJ and EB < 0:
                fs[12] = lambda: a(f"s_cmp_eq_u32 s{sIT}, 3")
                def br():
                    a("s_cbranch_scc1 L_flagb")
                    a.lab("L_flagb_back")
                fs[13] = br
            if j == 2:
                fs[14] = lambda: a(f"s_sub_u32 s{sIT}, s{sIT}, 1")
        else:
            def wr(i, g):
                return lambda: a(f"ds_write_b128 v{vC[i]}, {vr(OT[i]+4*g,4)} offset:{1024*g}")
            for i in range(3):
                fs[4*(i+1) + 3] = wr(i, 0)
                if i < 2:
                    for g in range(1, 4): fs[4*(i+2) + g - 1] = wr(i, g)
        for st in range(4):
            t = 4*j + st
            f = fs[4*st:4*st+4]
            if not (last and st == 3): mS(0, t+1)
            if st == 0 and not last and LDM == 0: ldk((j + 3) % 4)
            if st == 1 and not last and LDM == 2: ldv((j + 3) % 4); ldk((j + 3) % 4)
            if f[0]: f[0]()
            EC(t, 0)
            mPV(1, (t - 1) % 16)
            if st == 0 and not last and LDM in (0, 1): ldv((j + 3) % 4)
            if st == 0 and not last and LDM == 1: ldk((j + 3) % 4)
            if f[1]: f[1]()
            EC(t, 1)
            if not (last and st == 3): mS(1, t+1)
            if f[2]: f[2]()
            EC(t, 2)
            mPV(0, t)
            if f[3]: f[3]()
            EC(t, 3)
    def tstamp(j):
        if not (TS and TSG == 2): return
        for trip in range(4):
            a(f"s_cmp_lg_u32 s{sIT}, {3 - trip - (1 if j == 3 else 0)}")
            a(f"s_cbranch_scc1 L_ts{j}_{trip}")
            ts(f"t{4*trip + j:02d}", cyc=True, grp=2)
            a.lab(f"L_ts{j}_{trip}")
    if TS and TSG == 2:
        for n in range(16):
            ts.idx[f"t{n:02d}(cyc)"] = len(ts.names); ts.names.append(f"t{n:02d}(cyc)")
    for j in range(3):
        tstamp(j); tile(j)
    a("s_cbranch_scc1 L_last")
    tstamp(3)
    tile(3)
    a("s_branch L_loop")
    a.lab("L_last")
    ts("t15", cyc=True, grp=2)
    for i in range(3):
        a(f"v_add_u32 v{vC[i]}, s{8+i}, v1")
    a(f"v_add_u32 v{vCR}, s11, v1")
    tile(3, last=True)
    a(f"ds_write_b128 v{vC[2]}, {vr(OT[2]+4,4)} offset:1024")
    a(f"ds_write_b128 v{vC[2]}, {vr(OT[2]+8,4)} offset:2048")
    mPV(1, 15)
    a(f"ds_write_b128 v{vC[2]}, {vr(OT[2]+12,4)} offset:3072")
    ts("att1", cyc=True)
    ts("t16", cyc=True, grp=2)
    ts("att1")
    a(f"s_mov_b32 s4, {f32bits(2.0**62):#x}")
    a(f"s_mov_b32 s5, {f32bits(2.0**-62):#x}")
    a("s_waitcnt vmcnt(0) lgkmcnt(0)")
    a("s_barrier")
    F = OT[3]
    for i in range(3):
        for g in range(4):
            a(f"ds_read_b128 {vr(OT[i]+4*g,4)}, v{vCR} offset:{4096*i+1024*g}")
    a(f"s_lshl_b32 s3, s{sT}, 4")
    a(f"s_add_u32 s3, s3, s{sH}")
    a("s_lshl_b32 s3, s3, 11")
    a(f"s_add_u32 s3, s3, {O_OFF}")
    for i in range(3):
        a(f"s_waitcnt lgkmcnt({8-4*i})")
        for r in range(0, 16, 2):
            a(f"v_pk_add_f32 {vr(F+r,2)}, {vr(F+r,2)}, {vr(OT[i]+r,2)}")
    a(f"v_cmp_nge_f32 s[6:7], s4, v{F+12}")
    a(f"v_cmp_nle_f32 vcc, s5, v{F+12}")
    a("s_or_b64 s[6:7], s[6:7], vcc")
    a("s_cmp_lg_u32 s7, 0")
    if not NOBR: a("s_cbranch_scc1 L_fallback")
    a.lab("L_norm")
    a(f"v_mov_b32 v{t0}, v{F+12}")
    a(f"v_mov_b32 v{t1}, v{F+12}")
    a("s_nop 1")
    a(f"v_permlane32_swap_b32 v{t0}, v{t1}")
    a("s_nop 1")
    a(f"v_rcp_f32 v{t1}, v{t1}")
    set_exec(a, 0, HI)
    a(f"v_mov_b32 v{F+12}, 0")
    set_exec(a, HI, HI)
    for r in range(0, 16, 2):
        a(f"v_pk_mul_f32 {vr(F+r,2)}, {vr(F+r,2)}, {vr(t0,2)} op_sel:[0,1] op_sel_hi:[1,1]")
    PO = 232
    for i in range(8):
        a(f"v_cvt_pk_bf16_f32 v{PO+i}, v{F+2*i}, v{F+2*i+1}")
    a(f"buffer_store_dwordx4 {vr(PO,4)}, v1, {sr(WS)}, s3 offen sc1")
    a(f"buffer_store_dwordx4 {vr(PO+4,4)}, v1, {sr(WS)}, s3 offen offset:1024 sc1")
    ts("o_st")
    WOF, OF, ACC, D = 64, 192, 32, 48
    a(f"s_and_b32 s3, s{sCS4}, 1")
    a("s_lshl_b32 s3, s3, 5")
    a(f"s_mul_i32 s{sA}, s{sW}, 56")
    a(f"s_add_u32 s3, s3, s{sA}")
    a(f"v_bfe_u32 v{t0}, v0, 4, 1")
    a(f"v_lshlrev_b32 v{t0}, 5, v{t0}")
    a(f"v_and_b32 v{t1}, 3, v0")
    a(f"v_lshl_add_u32 v{t0}, v{t1}, 3, v{t0}")
    a(f"v_add_u32 v{t0}, s3, v{t0}")
    a(f"v_and_b32 v{t0}, 255, v{t0}")
    a(f"v_bfe_u32 v{t1}, v0, 2, 2")
    a(f"v_lshlrev_b32 v{t2}, 6, v{t1}")
    a(f"v_xor_b32 v{t0}, v{t0}, v{t2}")
    a(f"v_lshl_add_u32 v{t2}, v{t1}, 8, v{t0}")
    a(f"v_lshrrev_b32 v{t1}, 5, v0")
    a(f"v_lshl_add_u32 v{t0}, v{t1}, 10, v{t2}")
    a(f"v_add_u32 v{t1}, 0x10000, v{t0}")
    a(f"v_add_u32 v{t2}, 0x10000, v{t2}")
    def rdwo(hh):
        for u in range(2):
            for r in range(2):
                off = L_WO + (28*hh + 16*u + 8*r) * 256
                base = t0
                if off >= 0x10000:
                    off -= 0x10000; base = t1
                if hh == 15 and u == 1 and r == 1:
                    base = t2
                a(f"ds_read_b64_tr_b16 {vr(WOF+8*hh+4*u+2*r,2)}, v{base} offset:{off}")
    a(f"s_lshl_b32 s3, 1, s{sH}")
    a("v_mov_b32 v250, s3")
    NPRE = opt("npre", 6)
    for hh in range(NPRE): rdwo(hh)
    a("s_waitcnt vmcnt(0)")
    set_exec(a, 1, 0)
    a(f"buffer_atomic_or v250, v{vFl2}, {sr(WS)}, 0 offen sc1")
    set_exec(a, HI, HI)
    ts("o_flag")
    for hh in range(NPRE, 16): rdwo(hh)
    a(f"v_add_u32 v{t3}, {L_CMB}, v1")
    a(f"v_and_b32 v{t4}, 31, v0")
    a(f"v_mul_u32_u24 v{t4}, 896, v{t4}")
    a(f"v_lshrrev_b32 v{t5}, 5, v0")
    a(f"v_lshl_add_u32 v{t4}, v{t5}, 4, v{t4}")
    a(f"s_mul_i32 s{sKV}, s{sT3}, 28672")
    a(f"s_lshl_b32 s{sBb}, s{sCS4}, 2")
    a(f"s_add_u32 s{sBb}, s{sBb}, s{sW}")
    a(f"s_mul_i32 s{sBb}, s{sBb}, 56")
    a(f"s_add_u32 s{sKV}, s{sKV}, s{sBb}")
    a("s_barrier")
    a("s_barrier")
    ts("o_ld")
    NR, PD = 12, 10
    for f in range(PD):
        a(f"ds_read_b128 {vr(OF+4*(f%NR),4)}, v{t3} offset:{1024*f}")
    for f in range(32):
        if f + PD < 32:
            a(f"ds_read_b128 {vr(OF+4*((f+PD)%NR),4)}, v{t3} offset:{1024*(f+PD)}")
            a(f"s_waitcnt lgkmcnt({PD})")
        else:
            a(f"s_waitcnt lgkmcnt({31-f})")
        mfma(a, vr(ACC,16), vr(WOF+4*f,4), vr(OF+4*(f%NR),4), "0" if f == 0 else vr(ACC,16))
    a("s_nop 7")
    a("s_nop 3")
    for i in range(8):
        a(f"v_cvt_pk_bf16_f32 v{D+i}, v{ACC+2*i}, v{ACC+2*i+1}")
    a(f"v_permlane32_swap_b32 v{D}, v{D+2}")
    a(f"v_permlane32_swap_b32 v{D+1}, v{D+3}")
    a(f"v_permlane32_swap_b32 v{D+4}, v{D+6}")
    a(f"v_permlane32_swap_b32 v{D+5}, v{D+7}")
    a(f"buffer_store_dwordx4 {vr(D,4)}, v{t4}, {sr(OUT)}, s{sKV} offen {OSF}")
    set_exec(a, HI, 0)
    a(f"buffer_store_dwordx4 {vr(D+4,4)}, v{t4}, {sr(OUT)}, s{sKV} offen offset:32 {OSF}")
    set_exec(a, 0, HI)
    a(f"buffer_store_dwordx2 {vr(D+4,2)}, v{t4}, {sr(OUT)}, s{sKV} offen offset:32 {OSF}")
    if TS:
        a("s_waitcnt vmcnt(0)")
        ts("end")
    if TS and TSG in (0, 2): ts.dump()
    a.lab("L_end")
    a("s_endpgm")
    if EB < 0:
        a.lab("L_flagb")
        if FBJ == 0: a("s_waitcnt vmcnt(4)")
        a(f"s_lshl_b32 s3, 1, s{sBIT}")
        a("v_mov_b32 v250, s3")
        set_exec(a, "0xf", 0)
        a(f"buffer_atomic_or v250, v{vP1}, {sr(WS)}, 0 offen sc1")
        set_exec(a, HI, HI)
        a("s_branch L_flagb_back")
    for n in range(npick[0]):
        a.lab(f"L_slow{n}")
        a(f"ds_read_b32 v15, v{vMk}")
        a("s_waitcnt lgkmcnt(0)")
        a(f"v_readfirstlane_b32 s{sRDY}, v15")
        a("s_nop 0")
        a(f"s_and_b32 s{sAV}, s{sRDY}, s{sTODO}")
        a(f"s_cbranch_scc0 L_slow{n}")
        a(f"s_branch L_back{n}")
    flag_retries(a)
    a.lab("L_fallback")
    srd(a, X, 14, 15, KV_BYTES)
    a(f"v_mov_b32 v{t0}, 0xff800000")
    a(f"s_mov_b32 s{sKV}, 0")
    SS = S0
    a.lab("L_fb1")
    ldk(0)
    a(f"s_add_u32 s{sKV}, s{sKV}, 0x10000")
    a("s_waitcnt vmcnt(0)")
    mfma(a, vr(SS,16), vr(KV,4), vr(Q3,4), "0")
    mfma(a, vr(SS,16), vr(KV+4,4), vr(Q3+4,4), vr(SS,16))
    a("s_nop 15")
    for r in range(0, 16, 2):
        a(f"v_max3_f32 v{t0}, v{t0}, v{SS+r}, v{SS+r+1}")
    a(f"s_cmp_lt_u32 s{sKV}, {KV_BYTES}")
    a("s_cbranch_scc1 L_fb1")
    a(f"v_mov_b32 v{t1}, v{t0}")
    a("s_nop 1")
    a(f"v_permlane32_swap_b32 v{t0}, v{t1}")
    a("s_nop 1")
    a(f"v_max_f32 v{t0}, v{t0}, v{t1}")
    for r in range(16):
        a(f"v_mov_b32 v{F+r}, 0")
    a(f"s_mov_b32 s{sKV}, 0")
    a.lab("L_fb2")
    ldk(0); ldv(0)
    a(f"s_add_u32 s{sKV}, s{sKV}, 0x10000")
    a("s_waitcnt vmcnt(0)")
    mfma(a, vr(SS,16), vr(KV,4), vr(Q3,4), "0")
    mfma(a, vr(SS,16), vr(KV+4,4), vr(Q3+4,4), vr(SS,16))
    a("s_nop 15")
    for r in range(16):
        a(f"v_sub_f32 v{SS+r}, v{SS+r}, v{t0}")
    for r in range(16):
        a(f"v_exp_f32 v{SS+r}, v{SS+r}")
    a("s_nop 0")
    for i in range(8):
        a(f"v_cvt_pk_bf16_f32 v{P+i}, v{SS+2*i}, v{SS+2*i+1}")
    a("s_nop 1")
    mfma(a, vr(F,16), vr(KV+8,4), vr(P,4), vr(F,16))
    mfma(a, vr(F,16), vr(KV+12,4), vr(P+4,4), vr(F,16))
    a(f"s_cmp_lt_u32 s{sKV}, {KV_BYTES}")
    a("s_cbranch_scc1 L_fb2")
    a("s_nop 15")
    a("s_branch L_norm")
    a.lab("L_codeend")
    if TS:
        open("stamps.txt", "w").write(",".join(ts.names))
    return name

def main():
    a = A()
    name = kernel(a)
    head = open(f"cdna_kernels/{NAME}.s.ref").read().split("; Override")[0]
    out = head
    out += f"; @launch grid=(256,1,1) block=(512,1,1) lds={LDS_BYTES}\n"
    out += '.amdgcn_target "amdgcn-amd-amdhsa--gfx950"\n.text\n'
    out += a.text()
    out += f""".section .rodata,"a"
.p2align 6
.amdhsa_kernel {name}
  .amdhsa_next_free_vgpr 256
  .amdhsa_next_free_sgpr 102
  .amdhsa_accum_offset 256
  .amdhsa_group_segment_fixed_size 0
  .amdhsa_kernarg_size 48
  .amdhsa_user_sgpr_count 2
  .amdhsa_user_sgpr_kernarg_segment_ptr 1
  .amdhsa_system_sgpr_workgroup_id_x 1
.end_amdhsa_kernel
"""
    o = [x for x in sys.argv[1:] if not x.startswith("--")]
    path = o[0] if o else f"cdna_kernels/{NAME}.s"
    open(path, "w").write(out)
main()
```

```python
import sys, struct, math

NAME = "standalone__softmax_full_mha__prompt"
FL_OFF = 5 << 20
EP_OFF = 0xff00
O_OFF = 6 << 20
TS_OFF = 8 << 20
WS_BYTES = 12 << 20
X_BYTES = 2048 * 448 * 2
W_BYTES = 448 * 1344 * 2
WO_BYTES = 448 * 448 * 2
OUT_BYTES = 2048 * 448 * 2
KV_BYTES = 4 << 20
V_BASE = 28672
V_CT = 640
V_PLANE = 14 * V_CT
QSCALE = 28 ** -0.5 * math.log2(math.e)

def opt(name, default):
    for arg in sys.argv:
        if arg.startswith(f"--{name}="):
            return int(arg.split("=")[1])
    return default
TS = "--ts" in sys.argv
TSG = opt("tsg", 0)
MAP = opt("maph", 3)
FSH = opt("fsh", 8)
SLEEP = opt("sleep", 0)
LA = opt("la", 3)
FA = opt("fa", 2)
BAL = opt("bal", 1)
SPF = opt("spf", 1)
ROT = opt("rot", 0)
NBF = opt("nbf", 0)
SL2 = opt("sl2", 0)
SKEW = opt("skew", 1)
PFM = opt("pfm", 0)
PIS = opt("pis", 12)
FBJ = opt("fbj", 1)
WROT = opt("wrot", 1)
WSL = opt("wsl", 3)
THR = opt("thr", 0)
CPF = opt("cpf", 0)
LDM = opt("ldm", 0)
NOBR = opt("nobr", 0)
WPACE = opt("wpace", 2)
PH = opt("ph", 1)
PADE = opt("pade", 0)
EB = opt("eb", 6)
PDA = opt("pda", 0)
PDB = opt("pdb", 3)
VPF = opt("vpf", -1)
SCP = opt("scp", 0)
SCW = opt("scw", 0)
OSF = ["", "sc1", "nt", "sc0 sc1", "sc1 nt"][opt("osf", 0)]
NOFL = 512

def f32bits(x):
    return struct.unpack("<I", struct.pack("<f", x))[0]

class A:
    def __init__(self):
        self.l = []
    def __call__(self, s):
        for line in s.strip("\n").split("\n"):
            self.l.append("    " + line.strip())
    def lab(self, n):
        self.l.append(n + ":")
    def raw(self, s):
        self.l.append(s)
    def text(self):
        return "\n".join(self.l) + "\n"

def vr(b, n, k="v"):
    return f"{k}[{b}:{b+n-1}]"
def sr(b):
    return f"s[{b}:{b+3}]"

def srd(a, d, lo, hi, nbytes):
    a(f"s_mov_b32 s{d}, s{lo}")
    a(f"s_and_b32 s{d+1}, s{hi}, 0xffff")
    a(f"s_mov_b32 s{d+2}, {nbytes}")
    a(f"s_mov_b32 s{d+3}, 0x20000")

HI = "0xffffffff"
def set_exec(a, lo, hi):
    if lo == HI and hi == HI:
        a("s_mov_b64 exec, -1")
    elif hi == 0 and lo in (1, "0xf", "0x1f"):
        a(f"s_mov_b64 exec, {int(str(lo), 0)}")
    else:
        a(f"s_mov_b32 exec_lo, {lo}")
        a(f"s_mov_b32 exec_hi, {hi}")

class Stamps:
    def __init__(self, a):
        self.a = a; self.idx = {}; self.names = []
    def __call__(self, name, cyc=False, grp=0):
        if not TS: return
        if name != "start" and grp != TSG: return
        nm = name + ("(cyc)" if cyc else "")
        if nm not in self.idx:
            self.idx[nm] = len(self.names); self.names.append(nm)
        b = 66 + 2 * self.idx[nm]
        assert b + 1 < 102
        self.a(f"s_memtime s[{b}:{b+1}]" if cyc else f"s_memrealtime s[{b}:{b+1}]")
    def dump(self):
        if not TS: return
        a = self.a
        sp = [x for x in sys.argv if x.startswith("--spin=")]
        if sp:
            hi, lo, m = sp[0][7:].split(",")
            a("s_waitcnt lgkmcnt(0)")
            if lo == "G":
                a("v_mov_b32 v2, 0")
                a(f"buffer_load_dword v4, v2, {sr(DBG)}, 0 offen offset:192 sc1")
                a("s_waitcnt vmcnt(0)")
                a("v_readfirstlane_b32 s4, v4")
                a("s_nop 0")
                a("s_not_b32 s4, s4")
                a(f"s_sub_u32 s3, s{66+2*self.idx[hi]}, s4")
            else:
                a(f"s_sub_u32 s3, s{66+2*self.idx[hi]}, s{66+2*self.idx[lo]}")
            only = opt("only", -1)
            if only >= 0:
                a("s_and_b32 s4, s2, 7")
                a(f"s_cmp_eq_u32 s4, {only}")
                a("s_cselect_b32 s3, s3, 0")
            a(f"s_mul_i32 s3, s3, {m}")
            if opt("fix", 0): a(f"s_mov_b32 s3, {opt('fix', 0)}")
            if opt("rep", -1) >= 0:
                a("s_not_b32 s4, s64")
                a("s_cmp_eq_u32 s4, s65")
                a("s_cselect_b32 s3, s3, 0" if opt("rep", -1) == 1 else "s_cselect_b32 s3, 0, s3")
            if opt("pat", -1) >= 0:
                a("s_cmp_eq_u32 s64, s65")
                a("s_cselect_b32 s3, s3, 0" if opt("pat", -1) == 1 else "s_cselect_b32 s3, 0, s3")
            a(f"s_add_u32 s3, s3, s{66+2*self.idx['end' if TSG == 0 else 'h_stage']}")
            a.lab("L_spin")
            a("s_memrealtime s[4:5]")
            a("s_waitcnt lgkmcnt(0)")
            a("s_sub_u32 s4, s4, s3")
            a("s_cmp_lt_i32 s4, 0")
            a("s_cbranch_scc1 L_spin")
            return
        if "--dbg" in sys.argv:
            sel = ["start", "start", "c0", "kv_mm", "b7", "q_done", "kv0", "att1", "o_flag", "o_ld", "end"]
            a("s_waitcnt lgkmcnt(0)")
            a(f"s_cmp_lg_u32 s{sW}, 0")
            a("s_cbranch_scc1 L_end")
            a("s_mov_b64 exec, 1")
            a("v_mov_b32 v2, 0")
            for i, nm in enumerate(sel):
                a(f"v_mov_b32 v4, s{66+2*self.idx[nm]}")
                if i == 0: a("v_not_b32 v4, v4")
                a(f"buffer_atomic_umax v4, v2, {sr(DBG)}, 0 offen offset:{8+4*i} sc1")
                a("s_nop 1")
            for i, nm in enumerate(["end", "kv0", "c0"]):
                a(f"s_sub_u32 s3, s{66+2*self.idx[nm]}, s66")
                a("v_mov_b32 v4, s3")
                a(f"buffer_atomic_umax v4, v2, {sr(DBG)}, 0 offen offset:{52+4*i} sc1")
                a("s_nop 1")
            a("s_waitcnt vmcnt(0)")
            return
        a("s_waitcnt lgkmcnt(0)")
        a(f"s_lshl_b32 s3, s2, 2")
        a(f"s_add_u32 s3, s3, s{sW}")
        a(f"s_lshl_b32 s3, s3, 7")
        a(f"s_add_u32 s3, s3, {TS_OFF}")
        a("s_mov_b64 exec, 1")
        a("v_mov_b32 v2, 0")
        for i in range(18):
            a(f"v_mov_b32 v4, s{66+2*i}")
            a(f"buffer_store_dword v4, v2, {sr(WS)}, s3 offen offset:{4*i}")
            a("s_nop 1")
        a("s_waitcnt vmcnt(0)")

X, W, WO, OUT, DBG, WS, KVS = 16, 20, 24, 28, 32, 36, 40
WQS = KVS
sH, sB, sW, sT = 44, 45, 46, 47
sKC, sXB, sWB, sWM = 48, 49, 50, 52
sRDY, sTODO, sAV, sS0, sS1 = 48, 49, 50, 51, 52
sA, sBb = 53, 54
sKV, sIT, sWQ, sWoS, sCNT = 55, 56, 57, 58, 59
sBIT, sTAG = 60, 61
sKQ = 51
sT3, sCS4 = 62, 63
sROT = 57
L_XA, L_WB, L_WQ = 0, 57344, 114688
L_WO, L_CMB = 0, 114688
LDS_BYTES = 163840
vXA = [2, 3, 4, 5]
vXO = [6, 7, 8, 9]
vWR, vQR, vP1, vFl2, vMk = 10, 11, 12, 13, 14
vKo, vV0, vV1, vPad = 16, 17, 18, 19
vT = [20, 21, 22, 23, 24, 25]
PADC = 26
AK, AQ, WFK, BUF, PKA, PKB = 32, 48, 64, 176, 224, 232
KV, Q, S0, P = 64, 128, 160, 240
OT = [32, 48, 192, 208]
S = [S0, S0 + 16]

def decode_hb(a):
    nhg = 16 >> MAP
    lg = int(math.log2(nhg))
    a(f"s_and_b32 s{sH}, s2, {nhg-1}")
    a(f"s_lshl_b32 s{sH}, s{sH}, {MAP}")
    a(f"s_lshr_b32 s3, s2, 3")
    a(f"s_and_b32 s{sB}, s3, {(1<<MAP)-1}")
    a(f"s_add_u32 s{sH}, s{sH}, s{sB}")
    a(f"s_lshr_b32 s3, s3, {MAP}")
    a(f"s_and_b32 s{sB}, s2, 7")
    a(f"s_lshr_b32 s{sB}, s{sB}, {lg}")
    a(f"s_mul_i32 s{sB}, s{sB}, {32>>MAP}")
    a(f"s_add_u32 s{sB}, s{sB}, s3")
    if BAL:
        a(f"s_lshr_b32 s3, s{sH}, 3")
        a(f"s_sub_u32 s{sBb}, s{sH}, s3")
        a("s_add_u32 s3, s3, 14")
        a(f"s_and_b32 s{sH}, s{sH}, 7")
        a(f"s_cmp_eq_u32 s{sH}, 7")
        a(f"s_cselect_b32 s{sH}, s3, s{sBb}")

def mfma(a, d, x, y, c):
    a(f"v_mfma_f32_32x32x16_bf16 {d}, {x}, {y}, {c}")

vR = 252
def flag_read(a, vaddr, off=0):
    a(f"v_mov_b32 v{vR}, 0")
    a(f"v_mov_b32 v{vR+1}, 0")
    a(f"buffer_atomic_or_x2 v[{vR}:{vR+1}], v{vaddr}, {sr(WS)}, 0 offen offset:{off} sc0 sc1")

def flag_bits(a):
    a(f"v_cmp_eq_u32 vcc, s{sTAG}, v{vR+1}")
    a("s_nop 1")
    a(f"v_cndmask_b32 v{vR}, 0, v{vR}, vcc")

def poll(a, label, vaddr, lo, hi, smask, off=0):
    a(f"s_mov_b32 s{sCNT}, 0x100000")
    set_exec(a, lo, hi)
    a(f"s_branch {label}_in")
    a.lab(label)
    if SLEEP: a(f"s_sleep {SLEEP}")
    a.lab(label + "_in")
    flag_read(a, vaddr, off)
    a(f"s_sub_u32 s{sCNT}, s{sCNT}, 1")
    a(f"s_cbranch_scc1 {label}_done")
    a("s_waitcnt vmcnt(0)")
    flag_bits(a)
    a(f"v_and_b32 v{vR}, {smask}, v{vR}")
    a(f"v_cmp_ne_u32 vcc, {smask}, v{vR}")
    a(f"s_cbranch_vccnz {label}")
    a.lab(label + "_done")
    set_exec(a, HI, HI)

def flag_set(a, vaddr, sbit, lo):
    a(f"s_lshl_b32 s3, 1, s{sbit}")
    a("v_mov_b32 v250, s3")
    a("v_mov_b32 v251, 0")
    a("v_writelane_b32 v250, 0, 4")
    set_exec(a, lo, 0)
    a(f"buffer_atomic_or_x2 v[250:251], v{vaddr}, {sr(WS)}, 0 offen sc0 sc1")
    set_exec(a, HI, HI)

def flag_check(a, label, vaddr, sbit, lo, wait):
    a(f"s_mov_b32 s{sCNT}, 0x100000")
    a(f"s_waitcnt vmcnt({wait})")
    a.lab(label)
    set_exec(a, lo, 0)
    a(f"v_cmp_ne_u32 vcc, s{sTAG}, v251")
    set_exec(a, HI, HI)
    a(f"s_cbranch_vccnz {label}_again")
    a.lab(label + "_ok")
    RETRY.append((label, vaddr, sbit, lo))
RETRY = []
def flag_retries(a):
    for label, vaddr, sbit, lo in RETRY:
        a.lab(label + "_again")
        a(f"s_sub_u32 s{sCNT}, s{sCNT}, 1")
        a(f"s_cbranch_scc1 {label}_ok")
        flag_set(a, vaddr, sbit, lo)
        a("s_waitcnt vmcnt(0)")
        a(f"s_branch {label}")

def kv_poll_addr(a, vd, t0):
    a(f"s_mul_i32 s4, s{sH}, 56")
    a("s_and_b32 s5, s4, 0xfffffff0")
    a(f"v_mov_b32 v{t0}, s5")
    a("s_add_u32 s5, s5, 62")
    a(f"v_writelane_b32 v{t0}, s5, 1")
    a("s_add_u32 s5, s4, 896")
    a(f"v_writelane_b32 v{t0}, s5, 2")
    a("s_add_u32 s5, s4, 950")
    a(f"v_writelane_b32 v{t0}, s5, 3")
    a(f"v_lshrrev_b32 v{t0}, 6, v{t0}")
    a(f"v_lshlrev_b32 v{t0}, {FSH+4}, v{t0}")
    a(f"s_and_b32 s3, s{sH}, 3")
    a(f"s_lshl2_add_u32 s3, s3, s{sW}")
    a(f"s_lshl_b32 s3, s3, {FSH}")
    a(f"s_add_u32 s3, s3, {FL_OFF}")
    a(f"v_add_u32 v{vd}, s3, v{t0}")

def mask_addr(a, vd):
    a(f"s_lshl_b32 s3, s{sW}, 12")
    a(f"s_sub_u32 s3, {L_CMB + 45056}, s3")
    a(f"v_mov_b32 v{vd}, s3")

def helper(a, ts):
    vX0, vX1, vW0, vW1, vWq = 2, 3, 6, 7, 8
    vZ, vP, vM, vWo = 9, 11, 12, 13
    a("v_lshrrev_b32 v7, 3, v0")
    a("v_mul_u32_u24 v2, 896, v7")
    a("v_and_b32 v6, 7, v0")
    a("v_lshrrev_b32 v4, 4, v0")
    a("v_xor_b32 v3, v6, v4")
    a("v_lshl_add_u32 v2, v3, 4, v2")
    a("v_xor_b32 v3, 64, v2")
    a("v_add_u32 v3, 6144, v3")
    a("v_and_b32 v4, 1, v4")
    a("v_lshlrev_b32 v4, 2, v4")
    a("v_xor_b32 v6, v6, v4")
    a("v_mul_u32_u24 v7, 2688, v7")
    a(f"v_lshl_add_u32 v{vW0}, v6, 4, v7")
    a(f"v_add_u32 v{vW1}, {8*2688-1024}, v{vW0}")
    a(f"s_lshl3_add_u32 s{sXB}, s{sB}, s{sW}")
    a(f"s_mul_i32 s{sXB}, s{sXB}, {16*896}")
    a(f"s_mul_i32 s{sWQ}, s{sW}, 43008")
    a(f"s_lshl_b32 s{sWB}, s{sH}, 7")
    a(f"s_add_u32 s{sWB}, s{sWB}, s{sWQ}")
    a(f"s_add_u32 s{sWB}, s{sWB}, 896")
    a(f"s_mov_b32 s{sWoS}, {64*896}")
    if SPF:
        a(f"s_cmp_lt_u32 s{sH}, 14")
        a("s_cbranch_scc1 L_nspare")
        if SPF in (1, 3, 4):
            a(f"s_add_u32 s{sXB}, s{sXB}, {64*896}")
            a(f"s_mov_b32 s{sWoS}, {-64*896}")
        if SPF in (1, 3, 4):
            a(f"s_and_b32 s3, s{sH}, 1")
            a("s_mul_i32 s3, s3, 3")
            a(f"s_and_b32 s{sWB}, s{sB}, 3")
            a(f"s_add_u32 s{sWB}, s{sWB}, s3")
            a(f"s_lshl_b32 s{sWB}, s{sWB}, 7")
            a(f"s_add_u32 s{sWB}, s{sWB}, s{sWQ}")
        else:
            a(f"s_add_u32 s{sWB}, s{sWQ}, 768")
        a.lab("L_nspare")
    a(f"s_lshl_b32 s{sWM}, s{sW}, 11")
    a(f"s_lshl1_add_u32 s3, s{sB}, s{sH}")
    a(f"s_mul_i32 s{sA}, s3, 37")
    a(f"s_lshr_b32 s{sA}, s{sA}, 8")
    a(f"s_mul_i32 s{sA}, s{sA}, 7")
    a(f"s_sub_u32 s{sKC}, s3, s{sA}")
    a(f"s_mov_b32 s{X+2}, {X_BYTES}")
    a(f"s_mov_b32 s{X+3}, 0x20000")
    if SPF in (1, 2):
        a(f"s_mov_b32 s{W+2}, {W_BYTES}")
    else:
        a(f"s_cmp_lt_u32 s{sH}, 14")
        a(f"s_cselect_b32 s{W+2}, {W_BYTES}, 0")
    a(f"s_mov_b32 s{W+3}, 0x20000")
    a("s_waitcnt lgkmcnt(0)")
    a(f"s_load_dword s{sTAG}, s[14:15], {EP_OFF}")
    a(f"s_mov_b32 s{X}, s4")
    a(f"s_and_b32 s{X+1}, s5, 0xffff")
    a(f"s_mov_b32 s{W}, s6")
    a(f"s_and_b32 s{W+1}, s7, 0xffff")
    def adv(r):
        a(f"s_add_u32 s{r}, s{r}, 1")
        a(f"s_cmp_eq_u32 s{r}, 7")
        a(f"s_cselect_b32 s{r}, 0, s{r}")
    def issue(u):
        kind, c = u[0], int(u[1])
        if kind == "A":
            if SPF == 4 and c == opt("spw", 4): a(f"s_mov_b32 s{W+2}, {W_BYTES}")
            a(f"s_mul_i32 s{sBb}, s{sKC}, 172032")
            a(f"s_add_u32 m0, s{sWM}, {L_WB + c*8192}")
            a(f"s_add_u32 s{sBb}, s{sBb}, s{sWB}")
            a(f"buffer_load_dwordx4 v{vW0}, {sr(W)}, s{sBb} offen lds")
            a(f"buffer_load_dwordx4 v{vW1}, {sr(W)}, s{sBb} offen offset:1024 lds")
        if kind == "Q":
            a(f"s_mul_i32 s{sBb}, s{sKQ}, 172032")
            a(f"s_add_u32 m0, s{sIT}, {L_WQ + c*4096}")
            a(f"s_add_u32 s{sBb}, s{sBb}, s{sWQ}")
            a(f"buffer_load_dwordx4 v{vWq}, {sr(WQS)}, s{sBb} offen lds")
            adv(sKQ)
            return [u]
        if u == "B0": a(f"s_add_u32 s{sXB}, s{sXB}, s{sWoS}")
        a(f"s_lshl_b32 s{sA}, s{sKC}, 7")
        a(f"s_add_u32 m0, s{sWM}, {(L_XA if kind == 'A' else L_WB) + c*8192}")
        a(f"s_add_u32 s{sA}, s{sA}, s{sXB}")
        a(f"buffer_load_dwordx4 v{vX0}, {sr(X)}, s{sA} offen lds")
        a(f"buffer_load_dwordx4 v{vX1}, {sr(X)}, s{sA} offen offset:1024 lds")
        adv(sKC)
        return [u] * (4 if kind == "A" else 2)
    a(f"s_mov_b32 s{sKQ}, s{sKC}")
    order = []
    for u in ("A0", "A1", "A2"): order += issue(u)
    ts("h_iss", grp=1)
    srd(a, WS, 14, 15, WS_BYTES)
    srd(a, WO, 8, 9, WO_BYTES)
    srd(a, WQS, 6, 7, W_BYTES)
    a("v_lshlrev_b32 v1, 4, v0")
    a("v_and_b32 v15, 3, v0")
    a(f"v_lshrrev_b32 v{vWq}, 2, v0")
    a(f"v_mul_u32_u24 v{vWq}, 2688, v{vWq}")
    a(f"v_lshl_add_u32 v{vWq}, v15, 4, v{vWq}")
    a(f"s_mul_i32 s3, s{sH}, 56")
    a("s_and_b32 s3, s3, 0xfffffff0")
    a(f"s_add_u32 s{sWQ}, s{sWQ}, s3")
    a(f"s_lshr_b32 s{sIT}, s{sWM}, 1")
    a(f"v_mov_b32 v{vZ}, 0")
    kv_poll_addr(a, vP, 16)
    mask_addr(a, vM)
    a(f"ds_write_b32 v{vM}, v{vZ}")
    a(f"s_lshr_b32 s3, s{sB}, 2")
    a(f"s_lshl1_add_u32 s3, s{sB}, s3")
    a(f"s_and_b32 s64, s3, 7")
    def poll_issue():
        set_exec(a, "0xf", 0)
        flag_read(a, vP)
        set_exec(a, HI, HI)
    def poll_take():
        a("s_waitcnt vmcnt(0)")
        flag_bits(a)
        a("s_nop 0")
        for i in range(4):
            a(f"v_readlane_b32 s{4+i}, v{vR}, {i}")
        a("s_and_b32 s4, s4, s5")
        a("s_and_b32 s6, s6, s7")
        a("s_and_b32 s4, s4, s6")
        if ROT:
            a("s_and_b32 s5, s4, 0xff")
            a("s_and_b32 s6, s4, 0xff00")
            a("s_lshl_b32 s6, s6, 8")
            a("s_or_b32 s5, s5, s6")
            a("s_lshl_b32 s6, s5, 8")
            a("s_or_b32 s5, s5, s6")
            a("s_lshr_b32 s5, s5, s64")
            a("s_and_b32 s4, s5, 0xff")
            a("s_lshr_b32 s5, s5, 8")
            a("s_and_b32 s5, s5, 0xff00")
            a("s_or_b32 s4, s4, s5")
        a("s_cmp_eq_u32 s4, 0xffff")
        a("s_cselect_b32 s4, 0x7ffff, s4")
        a("v_mov_b32 v15, s4")
        a(f"ds_write_b32 v{vM}, v15")
    PLANS = {
      0: [(["A3"], "A0"), (["A4"], "A1"), (["A5"], "A2"), (["A6"], "A3"), (["B0", "B1"], "A4"), (["B2", "B3"], "A5"), (["B4"], "A6"),
          (["B5"], "B1"), (["B6", "Q0", "Q1"], "B3"), (["Q2", "Q3"], "B5"), (["Q4", "Q5", "Q6"], "Q1"), ([], "Q3"), (["P"], "Q5"), ([], "Q6")],
      1: [(["A3"], "A0"), (["A4"], "A1"), (["A5"], "A2"), (["A6"], "A3"), (["B0", "B1"], "A4"), (["B2", "B3"], "A5"), (["B4", "Q0"], "A6"),
          (["B5", "Q1"], "B1"), (["B6", "Q2", "Q3"], "B3"), (["Q4", "Q5"], "B5"), (["Q6"], "B6"), ([], "Q3"), (["P"], "Q5"), ([], "Q6")],
      3: [(["A3"], "A0"), (["A4"], "A1"), (["A5"], "A2"), (["A6"], "A3"), (["B0", "B1"], "A4"), (["B2", "B3"], "A5"), (["B4"], "A6"),
          (["B5"], "B1"), (["B6", "Q0", "Q1"], "B3"), (["Q2", "Q3", "Q4"], "B5"), (["Q5", "Q6"], "Q1"), (["P"], "Q3"), ([], "Q5"), ([], "Q6")],
      2: [(["A3"], "A0"), (["A4"], "A1"), (["A5"], "A2"), (["A6"], "A3"), (["B0"], "A4"), (["B1", "B2"], "A5"), (["B3"], "A6"),
          ([], "B1"), (["B4", "B5", "B6", "Q0", "Q1"], "B3"), (["Q2", "Q3"], "B5"), (["Q4", "Q5", "Q6"], "Q1"), ([], "Q3"), (["P"], "Q5"), ([], "Q6")],
    }
    for n, (us, need) in enumerate(PLANS[opt("plan", 3)]):
        for u in us:
            if u == "P":
                a("s_waitcnt lgkmcnt(0)")
                a(f"s_xor_b32 s{sTAG}, s{sTAG}, 0x5ac3a53c")
                poll_issue(); order.append(u)
            else:
                order += issue(u)
        if n == 6: a("s_waitcnt lgkmcnt(0)")
        last = max(i for i, x in enumerate(order) if x == need)
        a(f"s_waitcnt vmcnt({len(order) - 1 - last})")
        if n in (0, 3, 6, 7, 10, 13): ts(f"w{n}", grp=1)
        a("s_barrier")
    if SCW:
        a("s_lshr_b32 s3, s2, 3")
        a(f"s_lshl2_add_u32 s3, s3, s{sW}")
        a("s_mul_i32 s3, s3, 3136")
        a("s_and_b32 s3, s3, 0xffffff80")
        a("s_add_u32 s8, s8, s3")
        a("s_addc_u32 s9, s9, 0")
        for i in range(25):
            a(f"s_load_dword s10, s[8:9], {128*i}")
    a(f"s_mov_b32 s{sCNT}, 0x100000")
    a(f"s_mov_b32 s{sIT}, 0")
    a("s_branch L_hpoll_in")
    a.lab("L_hpoll")
    a(f"s_sub_u32 s{sCNT}, s{sCNT}, 1")
    a("s_cbranch_scc1 L_hpoll_giveup")
    poll_issue()
    a.lab("L_hpoll_in")
    poll_take()
    a("s_cmp_eq_u32 s4, 0x7ffff")
    a("s_cbranch_scc1 L_hpoll_done")
    a("s_bcnt1_i32_b32 s5, s4")
    a("s_cmp_lt_u32 s5, 2")
    a(f"s_cselect_b32 s5, 1, s{sIT}")
    a("s_cmp_lg_u32 s5, 0")
    a("s_cbranch_scc1 L_hnob8")
    a("s_barrier")
    a(f"s_mov_b32 s{sIT}, 1")
    a.lab("L_hnob8")
    if SLEEP: a(f"s_sleep {SLEEP}")
    if SL2:
        a(f"s_cmp_eq_u32 s{sIT}, 0")
        a("s_cbranch_scc1 L_hpoll")
        a(f"s_sleep {SL2}")
    a("s_branch L_hpoll")
    a.lab("L_hpoll_giveup")
    a("v_mov_b32 v15, 0x7ffff")
    a(f"ds_write_b32 v{vM}, v15")
    a.lab("L_hpoll_done")
    a(f"s_cmp_lg_u32 s{sIT}, 0")
    a("s_cbranch_scc1 L_hb8done")
    a("s_barrier")
    a.lab("L_hb8done")
    ts("h_all", grp=1)
    a(f"s_or_b32 s3, s2, s{sW}")
    a("s_cmp_lg_u32 s3, 0")
    a("s_cbranch_scc1 L_noep")
    a("v_lshrrev_b32 v16, 2, v0")
    a("v_and_b32 v17, 3, v0")
    a("v_lshl_add_u32 v16, v16, 4, v17")
    a(f"v_lshlrev_b32 v16, {FSH}, v16")
    a(f"v_add_u32 v16, {FL_OFF}, v16")
    poll(a, "L_pollep0", 16, HI, HI, "0xff")
    a(f"v_add_u32 v16, {256 << FSH}, v16")
    poll(a, "L_pollep1", 16, HI, HI, "0xff")
    a(f"s_xor_b32 s3, s{sTAG}, 0x5ac3a53c")
    a("s_add_u32 s3, s3, 0x9e3779b9")
    a("v_mov_b32 v17, s3")
    a(f"v_mov_b32 v16, {EP_OFF}")
    set_exec(a, 1, 0)
    a(f"buffer_store_dword v17, v16, {sr(WS)}, 0 offen sc1")
    if opt("rep", -1) >= 0:
        a("v_not_b32 v18, v17")
        a(f"buffer_store_dword v18, v16, {sr(WS)}, 0 offen offset:4 sc1")
    set_exec(a, HI, HI)
    a("s_nop 0")
    a.lab("L_noep")
    a("v_lshrrev_b32 v16, 4, v0")
    a(f"v_mul_u32_u24 v{vWo}, 896, v16")
    a("v_lshlrev_b32 v16, 2, v16")
    a("v_and_b32 v17, 15, v0")
    a("v_xor_b32 v16, v16, v17")
    a(f"v_lshl_add_u32 v{vWo}, v16, 4, v{vWo}")
    a(f"s_mul_i32 s{sWoS}, s{sCS4}, 224")
    a(f"s_and_b32 s{sWoS}, s{sWoS}, 0xffffffc0")
    a(f"s_mul_i32 s3, s{sW}, {28*3584}")
    a(f"s_add_u32 s{sWoS}, s{sWoS}, s3")
    a(f"s_mul_i32 s{sWM}, s{sW}, {28*1024}")
    if WROT:
        a(f"s_and_b32 s{sKC}, s{sT3}, 15")
        a(f"s_mul_i32 s{sKC}, s{sKC}, 7")
        a(f"s_lshr_b32 s{sKC}, s{sKC}, 2")
    else:
        a(f"s_mov_b32 s{sKC}, 0")
    a(f"s_mov_b32 s{sIT}, 28")
    a.lab("L_wo")
    a(f"s_lshl_b32 s3, s{sKC}, 10")
    a(f"s_add_u32 m0, s3, s{sWM}")
    a(f"s_mul_i32 s3, s{sKC}, 3584")
    a(f"s_add_u32 s3, s3, s{sWoS}")
    a(f"buffer_load_dwordx4 v{vWo}, {sr(WO)}, s3 offen lds")
    if WPACE >= 0: a(f"s_waitcnt vmcnt({WPACE})")
    else: a(f"s_sleep {WSL}")
    a(f"s_add_u32 s{sKC}, s{sKC}, 1")
    a(f"s_cmp_eq_u32 s{sKC}, 28")
    a(f"s_cselect_b32 s{sKC}, 0, s{sKC}")
    a(f"s_sub_u32 s{sIT}, s{sIT}, 1")
    a(f"s_cmp_lg_u32 s{sIT}, 0")
    a("s_cbranch_scc1 L_wo")
    a(f"s_lshl_b32 s3, s{sT3}, {FSH}")
    a(f"s_add_u32 s3, s3, {FL_OFF + (NOFL << FSH)}")
    a(f"v_mov_b32 v{vP}, s3")
    a(f"s_lshl_b32 s4, s{sW}, 2")
    a("s_lshl_b32 s4, 15, s4")
    a(f"s_lshl_b32 s3, s{sT3}, 2")
    a(f"s_add_u32 s3, s3, s{sW}")
    a("s_lshl_b32 s3, s3, 13")
    a(f"s_add_u32 s3, s3, {O_OFF}")
    a(f"s_add_u32 s{sA}, s3, 4096")
    a(f"s_lshl_b32 s{sBb}, s{sW}, 13")
    a(f"s_add_u32 s{sBb}, s{sBb}, {L_CMB}")
    a(f"v_add_u32 v{vM}, s{sBb}, v1")
    a("s_waitcnt vmcnt(0) lgkmcnt(0)")
    ts("h_wo", grp=1)
    a("s_barrier")
    if not PH:
        poll(a, "L_poll2", vP, 1, 0, "s4")
        ts("h_poll2", grp=1)
        for f in range(8):
            a(f"buffer_load_dwordx4 {vr(32+4*f,4)}, v1, {sr(WS)}, {'s3' if f < 4 else 's%d' % sA} offen offset:{1024*(f%4)} sc1")
        a("s_barrier")
        for f in range(8):
            a(f"s_waitcnt vmcnt({7-f})")
            a(f"ds_write_b128 v{vM}, {vr(32+4*f,4)} offset:{1024*f}")
    else:
        sSH, sHAVE, sNEW = sKC, sWM, sWQ
        a(f"s_lshl_b32 s{sSH}, s{sW}, 2")
        a(f"s_mov_b32 s{sHAVE}, 0")
        a(f"s_mov_b32 s{sCNT}, 0x100000")
        a.lab("L_og")
        set_exec(a, 1, 0)
        flag_read(a, vP)
        set_exec(a, HI, HI)
        a("s_waitcnt vmcnt(0)")
        a(f"v_readfirstlane_b32 s4, v{vR}")
        a(f"v_readfirstlane_b32 s5, v{vR+1}")
        a("s_nop 0")
        a(f"s_lshr_b32 s4, s4, s{sSH}")
        a("s_and_b32 s4, s4, 15")
        a(f"s_cmp_eq_u32 s5, s{sTAG}")
        a("s_cselect_b32 s4, s4, 0")
        a(f"s_sub_u32 s{sCNT}, s{sCNT}, 1")
        a("s_cselect_b32 s4, 15, s4")
        a(f"s_andn2_b32 s{sNEW}, s4, s{sHAVE}")
        a("s_cbranch_scc0 L_og")
        a(f"s_or_b32 s{sHAVE}, s{sHAVE}, s4")
        for i in range(4):
            a(f"s_bitcmp0_b32 s{sNEW}, {i}")
            a(f"s_cbranch_scc1 L_ol{i}")
            for u in range(2):
                a(f"buffer_load_dwordx4 {vr(32+8*i+4*u,4)}, v1, {sr(WS)}, {'s3' if i < 2 else 's%d' % sA} offen offset:{2048*(i%2)+1024*u} sc1")
            a.lab(f"L_ol{i}")
        a(f"s_cmp_lg_u32 s{sHAVE}, 15")
        a("s_cbranch_scc1 L_og")
        ts("h_poll2", grp=1)
        a("s_barrier")
        for ph in range(2):
            if ph == 1: a("s_waitcnt vmcnt(0)")
            for i in range(4):
                a(f"s_bitcmp{1-ph}_b32 s{sNEW}, {i}")
                a(f"s_cbranch_scc1 L_ow{ph}{i}")
                for u in range(2):
                    a(f"ds_write_b128 v{vM}, {vr(32+8*i+4*u,4)} offset:{2048*i+1024*u}")
                a.lab(f"L_ow{ph}{i}")
    a("s_waitcnt lgkmcnt(0)")
    ts("h_stage", grp=1)
    a("s_barrier")
    if TS and TSG == 1: ts.dump()
    a("s_endpgm")

def kernel(a):
    name = NAME + "_kernel"
    a.raw(f".globl {name}")
    a.raw(".p2align 8")
    a.raw(f".type {name},@function")
    a.lab(name)
    ts = Stamps(a)
    ts("start")
    a("s_cmp_ge_u32 s2, 256")
    a("s_cbranch_scc1 L_end")
    a("s_load_dwordx8 s[4:11], s[0:1], 0")
    a("s_load_dwordx4 s[12:15], s[0:1], 32")
    a("v_lshrrev_b32 v1, 6, v0")
    a("v_and_b32 v0, 63, v0")
    a(f"v_readfirstlane_b32 s{sA}, v1")
    decode_hb(a)
    a(f"s_and_b32 s{sW}, s{sA}, 3")
    a(f"s_lshl_b32 s{sT}, s{sB}, 2")
    a(f"s_and_b32 s{sT3}, s{sH}, 3")
    a(f"s_add_u32 s{sT3}, s{sT3}, s{sT}")
    a(f"s_add_u32 s{sT}, s{sT}, s{sW}")
    a(f"s_lshr_b32 s{sCS4}, s{sH}, 2")
    a(f"s_cmp_lt_u32 s{sA}, 4")
    a("s_cbranch_scc1 L_compute")
    helper(a, ts)
    a.lab("L_compute")
    t0, t1, t2, t3, t4, t5 = vT
    if CPF:
        a(f"s_cmp_lt_u32 s{sH}, {14 if CPF == 1 else 0}")
        a("s_cbranch_scc1 L_nocpf")
        a("s_getpc_b64 s[20:21]")
        a(f"s_lshl_b32 s3, s{sW}, 12")
        a("v_lshl_add_u32 v254, v0, 6, s3")
        a(f"v_min_u32 v254, L_codeend - L_compute - 64, v254")
        a("global_load_dword v255, v254, s[20:21]")
        a.lab("L_nocpf")
    a("s_waitcnt lgkmcnt(0)")
    a(f"s_load_dword s{sTAG}, s[14:15], {EP_OFF}")
    if opt("rep", -1) >= 0: a(f"s_load_dwordx2 s[64:65], s[14:15], {EP_OFF}")
    if SCP:
        a("s_bfe_u32 s3, s2, 0x30003")
        a(f"s_cmp_ge_u32 s{sW}, 2")
        a("s_cbranch_scc1 L_scw")
        a(f"s_lshl4_add_u32 s3, s{sB}, s3")
        a("s_add_u32 s3, s3, 8")
        a(f"s_lshl1_add_u32 s3, s3, s{sW}")
        a("s_mul_i32 s3, s3, 3584")
        a("s_add_u32 s4, s4, s3")
        a("s_addc_u32 s5, s5, 0")
        for i in range(28):
            a(f"s_load_dword s{sCNT}, s[4:5], {128*i}")
        a("s_branch L_scd")
        a.lab("L_scw")
        a(f"s_and_b32 s{sA}, s{sB}, 3")
        a(f"s_lshl2_add_u32 s3, s3, s{sA}")
        a(f"s_lshl1_add_u32 s3, s3, s{sW}")
        a("s_sub_u32 s3, s3, 2")
        a(f"s_mul_i32 s3, s3, {7*2688}")
        a(f"s_and_b32 s{sA}, s2, 1")
        a(f"s_mul_i32 s{sA}, s{sA}, 384")
        a(f"s_add_u32 s3, s3, s{sA}")
        a("s_add_u32 s4, s6, s3")
        a("s_addc_u32 s5, s7, 0")
        for r in range(7):
            for i in range(4):
                a(f"s_load_dword s{sCNT}, s[4:5], {2688*r + 128*i}")
        a.lab("L_scd")
    srd(a, WS, 14, 15, WS_BYTES)
    if TS: srd(a, DBG, 12, 13, 256)
    if SPF in (1, 3, 4):
        a(f"s_cmp_lt_u32 s{sH}, 14")
        a("s_cselect_b32 s3, 0, 2")
        a(f"s_xor_b32 s{sT}, s{sT}, s3")
    a(f"s_and_b32 s4, s{sW}, 1")
    a(f"s_lshr_b32 s5, s{sW}, 1")
    a("v_lshlrev_b32 v1, 4, v0")
    a("v_and_b32 v15, 3, v0")
    a("v_and_b32 v2, 31, v0")
    a(f"v_lshlrev_b32 v{vV0}, 4, v2")
    a("v_lshlrev_b32 v2, 7, v2")
    a("v_bfe_u32 v3, v0, 1, 3")
    a("v_lshrrev_b32 v4, 5, v0")
    a(f"v_mul_u32_u24 v{vV1}, {V_PLANE}, v4")
    a(f"v_add_u32 v{vV0}, v{vV0}, v{vV1}")
    a("v_xor_b32 v3, v3, v4")
    a("v_lshl_add_u32 v2, v3, 4, v2")
    a("s_lshl_b32 s3, s4, 12")
    a("v_add_u32 v2, s3, v2")
    a(f"v_bfe_u32 v{t0}, v0, 2, 2")
    a(f"v_lshl_add_u32 v{t1}, v4, 3, v{t0}")
    a("v_xor_b32 v3, 32, v2")
    a("v_xor_b32 v4, 64, v2")
    a("v_xor_b32 v5, 96, v2")
    a(f"s_mul_i32 s3, s5, {L_WB}")
    for i in range(4):
        a(f"v_add_u32 v{vXO[i]}, s3, v{vXA[i]}")
    a(f"v_bfe_u32 v{t2}, v0, 4, 1")
    a(f"v_lshlrev_b32 v{t2}, 5, v{t2}")
    a(f"v_lshrrev_b32 v{t3}, 1, v15")
    a(f"v_and_b32 v{t4}, 1, v15")
    a(f"v_lshl_add_u32 v{t3}, v{t4}, 1, v{t3}")
    a(f"v_lshl_add_u32 v{t3}, v{t3}, 3, v{t2}")
    a(f"v_lshl_add_u32 v{t4}, v15, 3, v{t2}")
    a(f"v_lshl_add_u32 v{vQR}, v{t1}, 6, v{t3}")
    a(f"v_add_u32 v{vQR}, {L_WQ}, v{vQR}")
    a(f"s_cmp_lt_u32 s{sH}, 7")
    a("s_cselect_b64 vcc, -1, 0")
    a(f"v_cndmask_b32 v{t3}, v{t4}, v{t3}, vcc")
    a(f"v_lshrrev_b32 v{t0}, 1, v{t0}")
    a(f"v_xor_b32 v{t0}, s5, v{t0}")
    a(f"v_lshl_add_u32 v{t3}, v{t0}, 6, v{t3}")
    a(f"v_lshl_add_u32 v{vWR}, v{t1}, 7, v{t3}")
    a(f"v_add_u32 v{vWR}, {L_WB}, v{vWR}")
    mask_addr(a, vMk)
    a(f"s_lshl1_add_u32 s5, s{sH}, s5")
    a(f"s_and_b32 s3, s{sB}, 1")
    a("s_lshl1_add_u32 s4, s3, s4")
    a(f"s_lshr_b32 s{sBIT}, s{sB}, 1")
    a(f"s_lshl4_add_u32 s{sS0}, s4, s{sBIT}")
    a(f"s_lshl_b32 s{sS0}, s{sS0}, 16")
    a("s_lshl4_add_u32 s3, s5, s4")
    a(f"v_lshl_add_u32 v{vP1}, v0, 2, s3")
    a(f"v_lshlrev_b32 v{vP1}, {FSH}, v{vP1}")
    a(f"v_add_u32 v{vP1}, {FL_OFF}, v{vP1}")
    a(f"s_lshl_b32 s{sA}, s{sT}, {FSH}")
    a(f"s_add_u32 s{sA}, s{sA}, {FL_OFF + (NOFL << FSH)}")
    a(f"v_mov_b32 v{vFl2}, s{sA}")
    a(f"v_writelane_b32 v{vP1}, s{sA}, 4")
    a(f"v_bfe_u32 v{vPad}, v0, 3, 2")
    a(f"v_mul_u32_u24 v{vPad}, {V_PLANE}, v{vPad}")
    a(f"v_lshrrev_b32 v{t0}, 5, v0")
    a(f"v_lshl_add_u32 v{vPad}, v{t0}, 19, v{vPad}")
    a(f"v_and_b32 v{t0}, 7, v0")
    a(f"v_lshl_add_u32 v{vPad}, v{t0}, 4, v{vPad}")
    a(f"v_cmp_eq_u32 vcc, 0, v{t0}")
    a(f"v_mov_b32 v{t1}, 0x3f803f80")
    a("s_nop 0")
    for r in range(4):
        a(f"v_cndmask_b32 v{PADC+r}, 0, v{t1}, vcc")
    srd(a, OUT, 10, 11, OUT_BYTES)
    srd(a, KVS, 14, 15, KV_BYTES)
    a("s_waitcnt lgkmcnt(0)")
    a(f"s_xor_b32 s{sTAG}, s{sTAG}, 0x5ac3a53c")
    a("v_mov_b32 v250, 0")
    a(f"v_mov_b32 v251, s{sTAG}")
    a(f"s_cmp_ge_u32 s{sB}, 2")
    a("s_cbranch_scc1 L_noopen1")
    set_exec(a, "0xf", 0)
    a(f"buffer_atomic_swap_x2 v[250:251], v{vP1}, {sr(WS)}, 0 offen sc1")
    a.lab("L_noopen1")
    a(f"s_cmp_lg_u32 s{sH}, 15")
    a("s_cbranch_scc1 L_noopen2")
    set_exec(a, 1, 0)
    a(f"buffer_atomic_swap_x2 v[250:251], v{vFl2}, {sr(WS)}, 0 offen sc1")
    a.lab("L_noopen2")
    set_exec(a, HI, HI)
    def ldk(slot):
        for f in range(2):
            a(f"buffer_load_dwordx4 {vr(KV+16*slot+4*f,4)}, v{vKo}, {sr(X)}, s{sKV} offen offset:{1024*f} sc1")
    def ldv(slot):
        a(f"buffer_load_dwordx4 {vr(KV+16*slot+8,4)}, v{t4}, {sr(X)}, s{sKV} offen sc1")
        a(f"buffer_load_dwordx4 {vr(KV+16*slot+12,4)}, v{t5}, {sr(X)}, s{sKV} offen sc1")
    npick = [0]
    def pick_ops():
        n = npick[0]; npick[0] += 1
        def p0(): a(f"s_and_b32 s{sAV}, s{sRDY}, s{sTODO}")
        def p1():
            if not (NOBR and n >= 5): a(f"s_cbranch_scc0 L_slow{n}")
            a.lab(f"L_back{n}")
        def p2(): a(f"s_ff1_i32_b32 s{sAV}, s{sAV}")
        def p3(): a(f"s_bitset0_b32 s{sTODO}, s{sAV}")
        def p4(): a(f"s_lshl_b32 s{sKV}, s{sAV}, 16")
        if not ROT: return [p0, p1, p2, p3, p4]
        def r0(): a(f"s_add_u32 s{sBb}, s{sAV}, s{sROT}")
        def r1(): a(f"s_and_b32 s{sBb}, s{sBb}, 7")
        def r2(): a(f"s_and_b32 s{sAV}, s{sAV}, 24")
        def r3(): a(f"s_or_b32 s{sAV}, s{sAV}, s{sBb}")
        return [p0, p1, p2, p3, r0, r1, r2, r3, p4]
    a(f"s_lshl_b32 s3, s{sW}, 20")
    a(f"s_add_u32 s{X}, s14, s3")
    a(f"s_addc_u32 s{X+1}, s15, 0")
    a(f"s_and_b32 s{X+1}, s{X+1}, 0xffff")
    a(f"s_mov_b32 s{X+2}, {1 << 20}")
    a(f"s_mov_b32 s{X+3}, 0x20000")
    a(f"s_mul_i32 s6, s{sH}, 56")
    a("s_lshr_b32 s7, s6, 4")
    a("s_lshl_b32 s7, s7, 9")
    a(f"v_add_u32 v{vKo}, s7, v1")
    a("s_lshr_b32 s6, s6, 1")
    a(f"v_and_b32 v{t0}, 31, v0")
    a(f"v_add_u32 v{t1}, s6, v{t0}")
    a(f"v_lshrrev_b32 v{t2}, 5, v{t1}")
    a(f"v_lshl_add_u32 v{t1}, v{t2}, 3, v{t1}")
    a("s_lshr_b32 s7, s6, 5")
    a("s_mul_i32 s7, s7, 40")
    a("s_add_u32 s7, s7, 4")
    a(f"v_add_u32 v{t2}, s7, v{t0}")
    a(f"v_cmp_gt_u32 vcc, 28, v{t0}")
    a(f"v_add_u32 v{t5}, {V_BASE}, v{vV1}")
    a("s_nop 0")
    a(f"v_cndmask_b32 v{t1}, v{t2}, v{t1}, vcc")
    a(f"v_lshl_add_u32 v{t4}, v{t1}, 4, v{t5}")
    a(f"v_add_u32 v{t5}, {2*V_PLANE}, v{t4}")
    a(f"s_lshr_b32 s3, s{sB}, 2")
    a(f"s_lshl1_add_u32 s3, s{sB}, s3")
    a(f"s_and_b32 s{sROT}, s3, 7")
    a(f"s_mov_b32 s{sRDY}, 0")
    a(f"s_mov_b32 s{sTODO}, 0x7ffff")
    a(f"v_add_u32 v{t0}, v{vMk}, v1")
    a(f"s_mul_i32 s3, s{sW}, 12288")
    a(f"s_add_u32 s11, s3, {L_CMB}")
    for i in range(3):
        a(f"s_add_u32 s{sA}, s{sW}, {1+i}")
        a(f"s_and_b32 s{sA}, s{sA}, 3")
        a(f"s_mul_i32 s3, s{sA}, 12288")
        a(f"s_add_u32 s{8+i}, s3, {L_CMB + 4096*i}")
        a(f"s_lshl_b32 s{sA}, s{sA}, 12")
        a(f"s_sub_u32 s{sA}, {L_CMB + 45056}, s{sA}")
        a(f"v_add_u32 v{vT[1+i]}, s{sA}, v1")
    a("v_mov_b32 v30, 0")
    a("v_mov_b32 v31, 0")
    for r in (P+4, P+6):
        a(f"v_pk_mov_b32 {vr(r,2)}, v[30:31], v[30:31]")
    def fill3():
        for sl in range(3):
            for f in pick_ops(): f()
            ldk(sl); ldv(sl)
    def publish(kind, pk):
        if kind == "V":
            a(f"s_add_u32 s{sS1}, s{sS0}, {2*V_PLANE}")
            if not PADE:
                set_exec(a, HI, 0)
                a(f"buffer_store_dwordx4 {vr(PADC,4)}, v{vPad}, {sr(KVS)}, s{sS0} offen offset:512 sc1")
                set_exec(a, HI, HI)
        for f in range(2):
            for i in range(4):
                a(f"v_cvt_pk_bf16_f32 v{pk+4*f+i}, v{AK+8*f+2*i}, v{AK+8*f+2*i+1}")
            if kind == "K":
                a(f"buffer_store_dwordx4 {vr(pk+4*f,4)}, v1, {sr(KVS)}, s{sS0} offen offset:{1024*f} sc1")
            else:
                a(f"buffer_store_dwordx4 {vr(pk+4*f,4)}, v{vV0}, {sr(KVS)}, s{sS0 if f == 0 else sS1} offen sc1")
    def phase1(kind):
        if kind == "K":
            a("s_lshl_b32 s3, s5, 11")
            a(f"s_add_u32 s{sS0}, s{sS0}, s3")
        else:
            a(f"s_mul_i32 s3, s5, {V_CT}")
            a(f"s_add_u32 s{sS0}, s{sS0}, s3")
            a(f"s_add_u32 s{sS0}, s{sS0}, {V_BASE - 14*V_CT}")
            a(f"s_cmp_lt_u32 s{sH}, 14")
            a(f"s_cselect_b32 s{KVS+2}, {KV_BYTES}, 0")
            if PADE:
                a(f"buffer_store_dwordx4 {vr(PADC,4)}, v{vPad}, {sr(KVS)}, s{sS0} offen offset:512 sc1")
        def kvm(w, x, first):
            c = "0" if first else vr(AK,16)
            if kind == "K": mfma(a, vr(AK,16), w, x, c)
            else: mfma(a, vr(AK,16), x, w, c)
        def rdA(c, i):
            a(f"ds_read_b128 {vr(BUF+4*i,4)}, v{vXA[i]} offset:{c*8192}")
            for r in range(2):
                a(f"ds_read_b64_tr_b16 {vr(WFK+16*c+4*i+2*r,2)}, v{vWR} offset:{(c*4+i)*2048 + r*512}")
        def mmA(c, i):
            kvm(vr(WFK+16*c+4*i,4), vr(BUF+4*i,4), c == 0 and i == 0)
        def loop(rd, mm, nr, hook, second=False):
            D = PDB if second else PDA
            if D:
                for s_ in range(-D, 28):
                    n = s_ + D
                    if n < 28:
                        if n % 4 == 0:
                            a("s_barrier")
                            hook(n // 4)
                        rd(n // 4, n % 4)
                    if second and s_ == 25: a(f"ds_read_b32 v15, v{vMk}")
                    if s_ >= 0:
                        left = min(27, n) - s_
                        extra = 1 if (second and s_ in (25, 26)) else 0
                        a(f"s_waitcnt lgkmcnt({nr*left + extra})")
                        mm(s_ // 4, s_ % 4)
                return
            for c in range(7):
                sk = SKEW and 0 < c < 6
                a("s_barrier")
                hook(c)
                lastB = second and c == 6
                rd(c, 0); rd(c, 1)
                if sk: mm(c-1, 2)
                rd(c, 2)
                if sk: mm(c-1, 3)
                a(f"s_waitcnt lgkmcnt({2*nr})")
                rd(c, 3)
                mm(c, 0)
                a(f"s_waitcnt lgkmcnt({2*nr})")
                mm(c, 1)
                if not (SKEW and c < 5):
                    a(f"s_waitcnt lgkmcnt({nr})")
                    if lastB: a(f"ds_read_b32 v15, v{vMk}")
                    mm(c, 2)
                a("s_waitcnt lgkmcnt(0)")
                if not (SKEW and c < 5):
                    mm(c, 3)
        loop(rdA, mmA, 3, lambda c: ts("c0") if c == 0 else None)
        ts("a_mm")
        for i in range(4):
            a(f"v_add_u32 v{vXA[i]}, {L_WB}, v{vXA[i]}")
        a("s_nop 7")
        publish(kind, PKA)
        a(f"s_add_u32 s{sS0}, s{sS0}, {8 << 16}")
        ts("a_st")
        steps = [("B", s_) for s_ in range(28)] + [("Q", s_) for s_ in range(28)]
        bar = {("B", 0): 0, ("B", 8): 1, ("B", 16): 2, ("B", 24): 3, ("Q", 8): 4, ("Q", 16): 5, ("Q", 24): 6}
        NB = 6
        D = 4
        def cnt(st): return 1 if st[0] == "B" else 3
        for k in range(-D, len(steps)):
            n = k + D
            if n < len(steps):
                st = steps[n]; c, i = st[1] // 4, st[1] % 4
                if st in bar:
                    a("s_barrier")
                    if bar[st] == FA:
                        a("s_waitcnt vmcnt(0)")
                        flag_set(a, vP1, sBIT, "0x1f")
                        ts("a_flag")
                    if bar[st] == 6:
                        flag_check(a, f"L_fc1{kind}", vP1, sBIT, "0x1f", (2 if (kind == "K" or PADE) else 3) if EB >= 0 else 0)
                b = BUF + 8 * (n % NB)
                if st[0] == "B":
                    a(f"ds_read_b128 {vr(b,4)}, v{vXA[i]} offset:{c*8192}")
                else:
                    a(f"ds_read_b128 {vr(b,4)}, v{vXO[i]} offset:{c*8192}")
                    for r in range(2):
                        a(f"ds_read_b64_tr_b16 {vr(b+4+2*r,2)}, v{vQR} offset:{st[1]*1024 + r*256}")
            if k == len(steps) - 3: a(f"ds_read_b32 v15, v{vMk}")
            if k >= 0:
                st = steps[k]; b = BUF + 8 * (k % NB)
                left = sum(cnt(x) for x in steps[k+1:n+1]) + (1 if k in (len(steps)-3, len(steps)-2) else 0)
                a(f"s_waitcnt lgkmcnt({left})")
                if st[0] == "B":
                    kvm(vr(WFK+4*st[1],4), vr(b,4), st[1] == 0)
                else:
                    mfma(a, vr(AQ,16), vr(b+4,4), vr(b,4), "0" if st[1] == 0 else vr(AQ,16))
                    if st[1] == EB: publish(kind, PKB)
    a(f"s_cmp_lt_u32 s{sH}, 7")
    a("s_cbranch_scc0 L_vline")
    phase1("K")
    a("s_branch L_q")
    a.lab("L_vline")
    phase1("V")
    a.lab("L_q")
    ts("b_mm")
    def flagb(w):
        a(f"s_lshl_b32 s3, 0x100, s{sBIT}")
        a("v_mov_b32 v250, s3")
        if w is not None: a(f"s_waitcnt vmcnt({w})")
        set_exec(a, "0xf", 0)
        a(f"buffer_atomic_or v250, v{vP1}, {sr(WS)}, 0 offen sc1")
        set_exec(a, HI, HI)
        ts("b_flag")
    FBL = opt("fbl", 0)
    if EB >= 0 and FBL == 0: flagb(0)
    def fill(sl):
        for f in pick_ops(): f()
        ldk(sl); ldv(sl)
    a(f"v_readfirstlane_b32 s{sRDY}, v15")
    a("s_nop 0")
    a(f"s_mov_b32 s{sIT}, s{sRDY}")
    a(f"s_cmp_eq_u32 s{sIT}, 0")
    a("s_cbranch_scc1 L_noearly")
    fill(0)
    a.lab("L_noearly")
    if EB >= 0 and FBL == 1: flagb(4)
    a(f"s_mov_b32 s4, {f32bits(QSCALE):#x}")
    a("s_mov_b32 s5, s4")
    for o in OT[2:]:
        for r in range(0, 10, 2):
            a(f"v_pk_mov_b32 {vr(o+r,2)}, v[30:31], v[30:31]")
    for r in range(0, 16, 2):
        a(f"v_pk_mul_f32 {vr(AQ+r,2)}, {vr(AQ+r,2)}, s[4:5]")
    Q3 = Q + 24
    for i in range(8):
        a(f"v_cvt_pk_bf16_f32 v{Q3+i}, v{AQ+2*i}, v{AQ+2*i+1}")
    a(f"s_bitcmp1_b32 s{sH}, 0")
    a("s_cselect_b32 exec_lo, -1, 0")
    a("s_mov_b32 exec_hi, 0")
    a(f"v_pk_mov_b32 {vr(Q3,2)}, v[30:31], v[30:31]")
    a("s_cselect_b32 exec_hi, 0, -1")
    a("s_mov_b32 exec_lo, 0")
    a(f"v_pk_mov_b32 {vr(Q3+6,2)}, v[30:31], v[30:31]")
    set_exec(a, HI, HI)
    a(f"ds_write_b128 v{t0}, {vr(Q3,4)} offset:2048")
    a(f"ds_write_b128 v{t0}, {vr(Q3+4,4)} offset:3072")
    a(f"s_cmp_lg_u32 s{sIT}, 0")
    a("s_cbranch_scc1 L_filled")
    fill(0)
    a.lab("L_filled")
    if FBL == 2: flagb(4)
    fill(1)
    a("s_waitcnt lgkmcnt(0)")
    ts("q_done")
    a("s_barrier")
    for i in range(3):
        a(f"ds_read_b128 {vr(Q+8*i,4)}, v{vT[1+i]} offset:2048")
        a(f"ds_read_b128 {vr(Q+8*i+4,4)}, v{vT[1+i]} offset:3072")
    zr = [o + r for o in OT[2:] for r in range(10, 16, 2)] + [KV+60, KV+62] + [o + r for o in OT[:2] for r in range(0, 16, 2)]
    for r in zr[:12]:
        a(f"v_pk_mov_b32 {vr(r,2)}, v[30:31], v[30:31]")
    if EB < 0:
        a(f"s_cmp_lt_u32 s{sH}, 7")
        a("s_cbranch_scc0 L_pubv")
        publish("K", PKB)
        a("s_branch L_pubd")
        a.lab("L_pubv")
        publish("V", PKB)
        a.lab("L_pubd")
    a(f"s_mov_b32 s{sIT}, 3")
    if EB < 0: a(f"s_add_u32 s{sBIT}, s{sBIT}, 8")
    vC = [2, 3, 4]; vCR = 5
    a("s_waitcnt vmcnt(4) lgkmcnt(0)")
    ts("kv0")
    def mS(part, t):
        slot = (t // 4) % 4; qt = t % 4
        d = vr(S[t % 2], 16)
        mfma(a, d, vr(KV+16*slot+4*part,4), vr(Q+8*qt+4*part,4), "0" if part == 0 else d)
    def mPV(part, t):
        slot = (t // 4) % 4; qt = t % 4
        d = vr(OT[qt], 16)
        mfma(a, d, vr(KV+16*slot+8+4*part,4), vr(P+4*part,4), d)
    def EC(t, g):
        s = S[t % 2] + 4*g
        for r in range(4):
            a(f"v_exp_f32 v{s+r}, v{s+r}")
        a(f"v_cvt_pk_bf16_f32 v{P+2*g}, v{s}, v{s+1}")
        a(f"v_cvt_pk_bf16_f32 v{P+2*g+1}, v{s+2}, v{s+3}")
    mS(0, 0)
    for r in zr[12:18]:
        a(f"v_pk_mov_b32 {vr(r,2)}, v[30:31], v[30:31]")
    mS(1, 0)
    fill(2)
    for f in pick_ops(): f()
    for r in zr[18:]:
        a(f"v_pk_mov_b32 {vr(r,2)}, v[30:31], v[30:31]")
    ts("att0", cyc=True)
    a.raw(".p2align 6")
    a.lab("L_loop")
    def tile(j, last=False):
        fs = [None] * 16
        if not last:
            fs[11] = lambda: a("s_waitcnt vmcnt(8)")
            po = pick_ops()
            if PFM:
                fs[2] = lambda: a(f"ds_read_b32 v15, v{vMk}")
                fs[4] = lambda: a("s_waitcnt lgkmcnt(0)")
                fs[5] = lambda: a(f"v_readfirstlane_b32 s{sRDY}, v15")
            for k, f in enumerate(po): fs[(6 if (PFM or LDM == 2) else 2) + k] = f
            if j == FBJ and EB < 0:
                fs[12] = lambda: a(f"s_cmp_eq_u32 s{sIT}, 3")
                def br():
                    a("s_cbranch_scc1 L_flagb")
                    a.lab("L_flagb_back")
                fs[13] = br
            if j == 2:
                fs[14] = lambda: a(f"s_sub_u32 s{sIT}, s{sIT}, 1")
        else:
            def wr(i, g):
                return lambda: a(f"ds_write_b128 v{vC[i]}, {vr(OT[i]+4*g,4)} offset:{1024*g}")
            for i in range(3):
                fs[4*(i+1) + 3] = wr(i, 0)
                if i < 2:
                    for g in range(1, 4): fs[4*(i+2) + g - 1] = wr(i, g)
        for st in range(4):
            t = 4*j + st
            f = fs[4*st:4*st+4]
            if not (last and st == 3): mS(0, t+1)
            if st == 0 and not last and LDM == 0: ldk((j + 3) % 4)
            if st == 1 and not last and LDM == 2: ldv((j + 3) % 4); ldk((j + 3) % 4)
            if f[0]: f[0]()
            EC(t, 0)
            mPV(1, (t - 1) % 16)
            if st == 0 and not last and LDM in (0, 1): ldv((j + 3) % 4)
            if st == 0 and not last and LDM == 1: ldk((j + 3) % 4)
            if f[1]: f[1]()
            EC(t, 1)
            if not (last and st == 3): mS(1, t+1)
            if f[2]: f[2]()
            EC(t, 2)
            mPV(0, t)
            if f[3]: f[3]()
            EC(t, 3)
    def tstamp(j):
        if not (TS and TSG == 2): return
        for trip in range(4):
            a(f"s_cmp_lg_u32 s{sIT}, {3 - trip - (1 if j == 3 else 0)}")
            a(f"s_cbranch_scc1 L_ts{j}_{trip}")
            ts(f"t{4*trip + j:02d}", cyc=True, grp=2)
            a.lab(f"L_ts{j}_{trip}")
    if TS and TSG == 2:
        for n in range(16):
            ts.idx[f"t{n:02d}(cyc)"] = len(ts.names); ts.names.append(f"t{n:02d}(cyc)")
    for j in range(3):
        tstamp(j); tile(j)
    a("s_cbranch_scc1 L_last")
    tstamp(3)
    tile(3)
    a("s_branch L_loop")
    a.lab("L_last")
    ts("t15", cyc=True, grp=2)
    for i in range(3):
        a(f"v_add_u32 v{vC[i]}, s{8+i}, v1")
    a(f"v_add_u32 v{vCR}, s11, v1")
    tile(3, last=True)
    a(f"ds_write_b128 v{vC[2]}, {vr(OT[2]+4,4)} offset:1024")
    a(f"ds_write_b128 v{vC[2]}, {vr(OT[2]+8,4)} offset:2048")
    mPV(1, 15)
    a(f"ds_write_b128 v{vC[2]}, {vr(OT[2]+12,4)} offset:3072")
    ts("att1", cyc=True)
    ts("t16", cyc=True, grp=2)
    ts("att1")
    a(f"s_mov_b32 s4, {f32bits(2.0**62):#x}")
    a(f"s_mov_b32 s5, {f32bits(2.0**-62):#x}")
    a("s_waitcnt vmcnt(0) lgkmcnt(0)")
    a("s_barrier")
    F = OT[3]
    for i in range(3):
        for g in range(4):
            a(f"ds_read_b128 {vr(OT[i]+4*g,4)}, v{vCR} offset:{4096*i+1024*g}")
    a(f"s_lshl_b32 s3, s{sT}, 4")
    a(f"s_add_u32 s3, s3, s{sH}")
    a("s_lshl_b32 s3, s3, 11")
    a(f"s_add_u32 s3, s3, {O_OFF}")
    for i in range(3):
        a(f"s_waitcnt lgkmcnt({8-4*i})")
        for r in range(0, 16, 2):
            a(f"v_pk_add_f32 {vr(F+r,2)}, {vr(F+r,2)}, {vr(OT[i]+r,2)}")
    a(f"v_cmp_nge_f32 s[6:7], s4, v{F+12}")
    a(f"v_cmp_nle_f32 vcc, s5, v{F+12}")
    a("s_or_b64 s[6:7], s[6:7], vcc")
    a("s_cmp_lg_u32 s7, 0")
    if not NOBR: a("s_cbranch_scc1 L_fallback")
    a.lab("L_norm")
    a(f"v_mov_b32 v{t0}, v{F+12}")
    a(f"v_mov_b32 v{t1}, v{F+12}")
    a("s_nop 1")
    a(f"v_permlane32_swap_b32 v{t0}, v{t1}")
    a("s_nop 1")
    a(f"v_rcp_f32 v{t1}, v{t1}")
    set_exec(a, 0, HI)
    a(f"v_mov_b32 v{F+12}, 0")
    set_exec(a, HI, HI)
    for r in range(0, 16, 2):
        a(f"v_pk_mul_f32 {vr(F+r,2)}, {vr(F+r,2)}, {vr(t0,2)} op_sel:[0,1] op_sel_hi:[1,1]")
    PO = 232
    for i in range(8):
        a(f"v_cvt_pk_bf16_f32 v{PO+i}, v{F+2*i}, v{F+2*i+1}")
    a(f"buffer_store_dwordx4 {vr(PO,4)}, v1, {sr(WS)}, s3 offen sc1")
    a(f"buffer_store_dwordx4 {vr(PO+4,4)}, v1, {sr(WS)}, s3 offen offset:1024 sc1")
    ts("o_st")
    WOF, OF, ACC, D = 64, 192, 32, 48
    a(f"s_and_b32 s3, s{sCS4}, 1")
    a("s_lshl_b32 s3, s3, 5")
    a(f"s_mul_i32 s{sA}, s{sW}, 56")
    a(f"s_add_u32 s3, s3, s{sA}")
    a(f"v_bfe_u32 v{t0}, v0, 4, 1")
    a(f"v_lshlrev_b32 v{t0}, 5, v{t0}")
    a(f"v_and_b32 v{t1}, 3, v0")
    a(f"v_lshl_add_u32 v{t0}, v{t1}, 3, v{t0}")
    a(f"v_add_u32 v{t0}, s3, v{t0}")
    a(f"v_and_b32 v{t0}, 255, v{t0}")
    a(f"v_bfe_u32 v{t1}, v0, 2, 2")
    a(f"v_lshlrev_b32 v{t2}, 6, v{t1}")
    a(f"v_xor_b32 v{t0}, v{t0}, v{t2}")
    a(f"v_lshl_add_u32 v{t2}, v{t1}, 8, v{t0}")
    a(f"v_lshrrev_b32 v{t1}, 5, v0")
    a(f"v_lshl_add_u32 v{t0}, v{t1}, 10, v{t2}")
    a(f"v_add_u32 v{t1}, 0x10000, v{t0}")
    a(f"v_add_u32 v{t2}, 0x10000, v{t2}")
    def rdwo(hh):
        for u in range(2):
            for r in range(2):
                off = L_WO + (28*hh + 16*u + 8*r) * 256
                base = t0
                if off >= 0x10000:
                    off -= 0x10000; base = t1
                if hh == 15 and u == 1 and r == 1:
                    base = t2
                a(f"ds_read_b64_tr_b16 {vr(WOF+8*hh+4*u+2*r,2)}, v{base} offset:{off}")
    a(f"s_lshl_b32 s3, 1, s{sH}")
    a("v_mov_b32 v250, s3")
    NPRE = opt("npre", 6)
    for hh in range(NPRE): rdwo(hh)
    a("s_waitcnt vmcnt(0)")
    set_exec(a, 1, 0)
    a(f"buffer_atomic_or v250, v{vFl2}, {sr(WS)}, 0 offen sc1")
    set_exec(a, HI, HI)
    ts("o_flag")
    for hh in range(NPRE, 16): rdwo(hh)
    a(f"v_add_u32 v{t3}, {L_CMB}, v1")
    a(f"v_and_b32 v{t4}, 31, v0")
    a(f"v_mul_u32_u24 v{t4}, 896, v{t4}")
    a(f"v_lshrrev_b32 v{t5}, 5, v0")
    a(f"v_lshl_add_u32 v{t4}, v{t5}, 4, v{t4}")
    a(f"s_mul_i32 s{sKV}, s{sT3}, 28672")
    a(f"s_lshl_b32 s{sBb}, s{sCS4}, 2")
    a(f"s_add_u32 s{sBb}, s{sBb}, s{sW}")
    a(f"s_mul_i32 s{sBb}, s{sBb}, 56")
    a(f"s_add_u32 s{sKV}, s{sKV}, s{sBb}")
    a("s_barrier")
    a("s_barrier")
    ts("o_ld")
    NR, PD = 12, 10
    for f in range(PD):
        a(f"ds_read_b128 {vr(OF+4*(f%NR),4)}, v{t3} offset:{1024*f}")
    for f in range(32):
        if f + PD < 32:
            a(f"ds_read_b128 {vr(OF+4*((f+PD)%NR),4)}, v{t3} offset:{1024*(f+PD)}")
            a(f"s_waitcnt lgkmcnt({PD})")
        else:
            a(f"s_waitcnt lgkmcnt({31-f})")
        mfma(a, vr(ACC,16), vr(WOF+4*f,4), vr(OF+4*(f%NR),4), "0" if f == 0 else vr(ACC,16))
    a("s_nop 7")
    a("s_nop 3")
    for i in range(8):
        a(f"v_cvt_pk_bf16_f32 v{D+i}, v{ACC+2*i}, v{ACC+2*i+1}")
    a(f"v_permlane32_swap_b32 v{D}, v{D+2}")
    a(f"v_permlane32_swap_b32 v{D+1}, v{D+3}")
    a(f"v_permlane32_swap_b32 v{D+4}, v{D+6}")
    a(f"v_permlane32_swap_b32 v{D+5}, v{D+7}")
    a(f"buffer_store_dwordx4 {vr(D,4)}, v{t4}, {sr(OUT)}, s{sKV} offen {OSF}")
    set_exec(a, HI, 0)
    a(f"buffer_store_dwordx4 {vr(D+4,4)}, v{t4}, {sr(OUT)}, s{sKV} offen offset:32 {OSF}")
    set_exec(a, 0, HI)
    a(f"buffer_store_dwordx2 {vr(D+4,2)}, v{t4}, {sr(OUT)}, s{sKV} offen offset:32 {OSF}")
    if TS:
        a("s_waitcnt vmcnt(0)")
        ts("end")
    if TS and TSG in (0, 2): ts.dump()
    a.lab("L_end")
    a("s_endpgm")
    if EB < 0:
        a.lab("L_flagb")
        if FBJ == 0: a("s_waitcnt vmcnt(4)")
        a(f"s_lshl_b32 s3, 1, s{sBIT}")
        a("v_mov_b32 v250, s3")
        set_exec(a, "0xf", 0)
        a(f"buffer_atomic_or v250, v{vP1}, {sr(WS)}, 0 offen sc1")
        set_exec(a, HI, HI)
        a("s_branch L_flagb_back")
    for n in range(npick[0]):
        a.lab(f"L_slow{n}")
        a(f"ds_read_b32 v15, v{vMk}")
        a("s_waitcnt lgkmcnt(0)")
        a(f"v_readfirstlane_b32 s{sRDY}, v15")
        a("s_nop 0")
        a(f"s_and_b32 s{sAV}, s{sRDY}, s{sTODO}")
        a(f"s_cbranch_scc0 L_slow{n}")
        a(f"s_branch L_back{n}")
    flag_retries(a)
    a.lab("L_fallback")
    srd(a, X, 14, 15, KV_BYTES)
    a(f"v_mov_b32 v{t0}, 0xff800000")
    a(f"s_mov_b32 s{sKV}, 0")
    SS = S0
    a.lab("L_fb1")
    ldk(0)
    a(f"s_add_u32 s{sKV}, s{sKV}, 0x10000")
    a("s_waitcnt vmcnt(0)")
    mfma(a, vr(SS,16), vr(KV,4), vr(Q3,4), "0")
    mfma(a, vr(SS,16), vr(KV+4,4), vr(Q3+4,4), vr(SS,16))
    a("s_nop 15")
    for r in range(0, 16, 2):
        a(f"v_max3_f32 v{t0}, v{t0}, v{SS+r}, v{SS+r+1}")
    a(f"s_cmp_lt_u32 s{sKV}, {KV_BYTES}")
    a("s_cbranch_scc1 L_fb1")
    a(f"v_mov_b32 v{t1}, v{t0}")
    a("s_nop 1")
    a(f"v_permlane32_swap_b32 v{t0}, v{t1}")
    a("s_nop 1")
    a(f"v_max_f32 v{t0}, v{t0}, v{t1}")
    for r in range(16):
        a(f"v_mov_b32 v{F+r}, 0")
    a(f"s_mov_b32 s{sKV}, 0")
    a.lab("L_fb2")
    ldk(0); ldv(0)
    a(f"s_add_u32 s{sKV}, s{sKV}, 0x10000")
    a("s_waitcnt vmcnt(0)")
    mfma(a, vr(SS,16), vr(KV,4), vr(Q3,4), "0")
    mfma(a, vr(SS,16), vr(KV+4,4), vr(Q3+4,4), vr(SS,16))
    a("s_nop 15")
    for r in range(16):
        a(f"v_sub_f32 v{SS+r}, v{SS+r}, v{t0}")
    for r in range(16):
        a(f"v_exp_f32 v{SS+r}, v{SS+r}")
    a("s_nop 0")
    for i in range(8):
        a(f"v_cvt_pk_bf16_f32 v{P+i}, v{SS+2*i}, v{SS+2*i+1}")
    a("s_nop 1")
    mfma(a, vr(F,16), vr(KV+8,4), vr(P,4), vr(F,16))
    mfma(a, vr(F,16), vr(KV+12,4), vr(P+4,4), vr(F,16))
    a(f"s_cmp_lt_u32 s{sKV}, {KV_BYTES}")
    a("s_cbranch_scc1 L_fb2")
    a("s_nop 15")
    a("s_branch L_norm")
    a.lab("L_codeend")
    if TS:
        open("stamps.txt", "w").write(",".join(ts.names))
    return name

def main():
    a = A()
    name = kernel(a)
    head = open(f"cdna_kernels/{NAME}.s.ref").read().split("; Override")[0]
    out = head
    out += f"; @launch grid=(256,1,1) block=(512,1,1) lds={LDS_BYTES}\n"
    out += '.amdgcn_target "amdgcn-amd-amdhsa--gfx950"\n.text\n'
    out += a.text()
    out += f""".section .rodata,"a"
.p2align 6
.amdhsa_kernel {name}
  .amdhsa_next_free_vgpr 256
  .amdhsa_next_free_sgpr 102
  .amdhsa_accum_offset 256
  .amdhsa_group_segment_fixed_size 0
  .amdhsa_kernarg_size 48
  .amdhsa_user_sgpr_count 2
  .amdhsa_user_sgpr_kernarg_segment_ptr 1
  .amdhsa_system_sgpr_workgroup_id_x 1
.end_amdhsa_kernel
"""
    o = [x for x in sys.argv[1:] if not x.startswith("--")]
    path = o[0] if o else f"cdna_kernels/{NAME}.s"
    open(path, "w").write(out)
main()
```

```python
import sys, struct, math

NAME = "standalone__softmax_full_mha__prompt"
FL_OFF = 5 << 20
EP_OFF = 0xff00
O_OFF = 6 << 20
TS_OFF = 8 << 20
WS_BYTES = 12 << 20
X_BYTES = 2048 * 448 * 2
W_BYTES = 448 * 1344 * 2
WO_BYTES = 448 * 448 * 2
OUT_BYTES = 2048 * 448 * 2
KV_BYTES = 4 << 20
V_BASE = 28672
V_CT = 640
V_PLANE = 14 * V_CT
QSCALE = 28 ** -0.5 * math.log2(math.e)

def opt(name, default):
    for arg in sys.argv:
        if arg.startswith(f"--{name}="):
            return int(arg.split("=")[1])
    return default
TS = "--ts" in sys.argv
TSG = opt("tsg", 0)
MAP = opt("maph", 3)
FSH = opt("fsh", 8)
SLEEP = opt("sleep", 0)
LA = opt("la", 3)
FA = opt("fa", 2)
BAL = opt("bal", 1)
SPF = opt("spf", 1)
ROT = opt("rot", 0)
NBF = opt("nbf", 0)
SL2 = opt("sl2", 0)
SKEW = opt("skew", 1)
PFM = opt("pfm", 0)
PIS = opt("pis", 12)
FBJ = opt("fbj", 1)
WROT = opt("wrot", 1)
WSL = opt("wsl", 3)
THR = opt("thr", 0)
CPF = opt("cpf", 0)
LDM = opt("ldm", 0)
NOBR = opt("nobr", 0)
WPACE = opt("wpace", 2)
PH = opt("ph", 1)
PADE = opt("pade", 0)
EB = opt("eb", 6)
PDA = opt("pda", 0)
PDB = opt("pdb", 3)
VPF = opt("vpf", -1)
SCP = opt("scp", 0)
SCW = opt("scw", 0)
OSF = ["", "sc1", "nt", "sc0 sc1", "sc1 nt"][opt("osf", 0)]
NOFL = 512

def f32bits(x):
    return struct.unpack("<I", struct.pack("<f", x))[0]

class A:
    def __init__(self):
        self.l = []
    def __call__(self, s):
        for line in s.strip("\n").split("\n"):
            self.l.append("    " + line.strip())
    def lab(self, n):
        self.l.append(n + ":")
    def raw(self, s):
        self.l.append(s)
    def text(self):
        return "\n".join(self.l) + "\n"

def vr(b, n, k="v"):
    return f"{k}[{b}:{b+n-1}]"
def sr(b):
    return f"s[{b}:{b+3}]"

def srd(a, d, lo, hi, nbytes):
    a(f"s_mov_b32 s{d}, s{lo}")
    a(f"s_and_b32 s{d+1}, s{hi}, 0xffff")
    a(f"s_mov_b32 s{d+2}, {nbytes}")
    a(f"s_mov_b32 s{d+3}, 0x20000")

HI = "0xffffffff"
def set_exec(a, lo, hi):
    if lo == HI and hi == HI:
        a("s_mov_b64 exec, -1")
    elif hi == 0 and lo in (1, "0xf", "0x1f"):
        a(f"s_mov_b64 exec, {int(str(lo), 0)}")
    else:
        a(f"s_mov_b32 exec_lo, {lo}")
        a(f"s_mov_b32 exec_hi, {hi}")

class Stamps:
    def __init__(self, a):
        self.a = a; self.idx = {}; self.names = []
    def __call__(self, name, cyc=False, grp=0):
        if not TS: return
        if name != "start" and grp != TSG: return
        nm = name + ("(cyc)" if cyc else "")
        if nm not in self.idx:
            self.idx[nm] = len(self.names); self.names.append(nm)
        b = 66 + 2 * self.idx[nm]
        assert b + 1 < 102
        self.a(f"s_memtime s[{b}:{b+1}]" if cyc else f"s_memrealtime s[{b}:{b+1}]")
    def dump(self):
        if not TS: return
        a = self.a
        sp = [x for x in sys.argv if x.startswith("--spin=")]
        if sp:
            hi, lo, m = sp[0][7:].split(",")
            a("s_waitcnt lgkmcnt(0)")
            if lo == "G":
                a("v_mov_b32 v2, 0")
                a(f"buffer_load_dword v4, v2, {sr(DBG)}, 0 offen offset:192 sc1")
                a("s_waitcnt vmcnt(0)")
                a("v_readfirstlane_b32 s4, v4")
                a("s_nop 0")
                a("s_not_b32 s4, s4")
                a(f"s_sub_u32 s3, s{66+2*self.idx[hi]}, s4")
            else:
                a(f"s_sub_u32 s3, s{66+2*self.idx[hi]}, s{66+2*self.idx[lo]}")
            only = opt("only", -1)
            if only >= 0:
                a("s_and_b32 s4, s2, 7")
                a(f"s_cmp_eq_u32 s4, {only}")
                a("s_cselect_b32 s3, s3, 0")
            a(f"s_mul_i32 s3, s3, {m}")
            if opt("fix", 0): a(f"s_mov_b32 s3, {opt('fix', 0)}")
            if opt("rep", -1) >= 0:
                a("s_not_b32 s4, s64")
                a("s_cmp_eq_u32 s4, s65")
                a("s_cselect_b32 s3, s3, 0" if opt("rep", -1) == 1 else "s_cselect_b32 s3, 0, s3")
            if opt("pat", -1) >= 0:
                a("s_cmp_eq_u32 s64, s65")
                a("s_cselect_b32 s3, s3, 0" if opt("pat", -1) == 1 else "s_cselect_b32 s3, 0, s3")
            a(f"s_add_u32 s3, s3, s{66+2*self.idx['end' if TSG == 0 else 'h_stage']}")
            a.lab("L_spin")
            a("s_memrealtime s[4:5]")
            a("s_waitcnt lgkmcnt(0)")
            a("s_sub_u32 s4, s4, s3")
            a("s_cmp_lt_i32 s4, 0")
            a("s_cbranch_scc1 L_spin")
            return
        if "--dbg" in sys.argv:
            sel = ["start", "start", "c0", "kv_mm", "b7", "q_done", "kv0", "att1", "o_flag", "o_ld", "end"]
            a("s_waitcnt lgkmcnt(0)")
            a(f"s_cmp_lg_u32 s{sW}, 0")
            a("s_cbranch_scc1 L_end")
            a("s_mov_b64 exec, 1")
            a("v_mov_b32 v2, 0")
            for i, nm in enumerate(sel):
                a(f"v_mov_b32 v4, s{66+2*self.idx[nm]}")
                if i == 0: a("v_not_b32 v4, v4")
                a(f"buffer_atomic_umax v4, v2, {sr(DBG)}, 0 offen offset:{8+4*i} sc1")
                a("s_nop 1")
            for i, nm in enumerate(["end", "kv0", "c0"]):
                a(f"s_sub_u32 s3, s{66+2*self.idx[nm]}, s66")
                a("v_mov_b32 v4, s3")
                a(f"buffer_atomic_umax v4, v2, {sr(DBG)}, 0 offen offset:{52+4*i} sc1")
                a("s_nop 1")
            a("s_waitcnt vmcnt(0)")
            return
        a("s_waitcnt lgkmcnt(0)")
        a(f"s_lshl_b32 s3, s2, 2")
        a(f"s_add_u32 s3, s3, s{sW}")
        a(f"s_lshl_b32 s3, s3, 7")
        a(f"s_add_u32 s3, s3, {TS_OFF}")
        a("s_mov_b64 exec, 1")
        a("v_mov_b32 v2, 0")
        for i in range(18):
            a(f"v_mov_b32 v4, s{66+2*i}")
            a(f"buffer_store_dword v4, v2, {sr(WS)}, s3 offen offset:{4*i}")
            a("s_nop 1")
        a("s_waitcnt vmcnt(0)")

X, W, WO, OUT, DBG, WS, KVS = 16, 20, 24, 28, 32, 36, 40
WQS = KVS
sH, sB, sW, sT = 44, 45, 46, 47
sKC, sXB, sWB, sWM = 48, 49, 50, 52
sRDY, sTODO, sAV, sS0, sS1 = 48, 49, 50, 51, 52
sA, sBb = 53, 54
sKV, sIT, sWQ, sWoS, sCNT = 55, 56, 57, 58, 59
sBIT, sTAG = 60, 61
sKQ = 51
sT3, sCS4 = 62, 63
sROT = 57
L_XA, L_WB, L_WQ = 0, 57344, 114688
L_WO, L_CMB = 0, 114688
LDS_BYTES = 163840
vXA = [2, 3, 4, 5]
vXO = [6, 7, 8, 9]
vWR, vQR, vP1, vFl2, vMk = 10, 11, 12, 13, 14
vKo, vV0, vV1, vPad = 16, 17, 18, 19
vT = [20, 21, 22, 23, 24, 25]
PADC = 26
AK, AQ, WFK, BUF, PKA, PKB = 32, 48, 64, 176, 224, 232
KV, Q, S0, P = 64, 128, 160, 240
OT = [32, 48, 192, 208]
S = [S0, S0 + 16]

def decode_hb(a):
    nhg = 16 >> MAP
    lg = int(math.log2(nhg))
    a(f"s_and_b32 s{sH}, s2, {nhg-1}")
    a(f"s_lshl_b32 s{sH}, s{sH}, {MAP}")
    a(f"s_lshr_b32 s3, s2, 3")
    a(f"s_and_b32 s{sB}, s3, {(1<<MAP)-1}")
    a(f"s_add_u32 s{sH}, s{sH}, s{sB}")
    a(f"s_lshr_b32 s3, s3, {MAP}")
    a(f"s_and_b32 s{sB}, s2, 7")
    a(f"s_lshr_b32 s{sB}, s{sB}, {lg}")
    a(f"s_mul_i32 s{sB}, s{sB}, {32>>MAP}")
    a(f"s_add_u32 s{sB}, s{sB}, s3")
    if BAL:
        a(f"s_lshr_b32 s3, s{sH}, 3")
        a(f"s_sub_u32 s{sBb}, s{sH}, s3")
        a("s_add_u32 s3, s3, 14")
        a(f"s_and_b32 s{sH}, s{sH}, 7")
        a(f"s_cmp_eq_u32 s{sH}, 7")
        a(f"s_cselect_b32 s{sH}, s3, s{sBb}")

def mfma(a, d, x, y, c):
    a(f"v_mfma_f32_32x32x16_bf16 {d}, {x}, {y}, {c}")

vR = 252
def flag_read(a, vaddr, off=0):
    a(f"v_mov_b32 v{vR}, 0")
    a(f"v_mov_b32 v{vR+1}, 0")
    a(f"buffer_atomic_or_x2 v[{vR}:{vR+1}], v{vaddr}, {sr(WS)}, 0 offen offset:{off} sc0 sc1")

def flag_bits(a):
    a(f"v_cmp_eq_u32 vcc, s{sTAG}, v{vR+1}")
    a("s_nop 1")
    a(f"v_cndmask_b32 v{vR}, 0, v{vR}, vcc")

def poll(a, label, vaddr, lo, hi, smask, off=0):
    a(f"s_mov_b32 s{sCNT}, 0x100000")
    set_exec(a, lo, hi)
    a(f"s_branch {label}_in")
    a.lab(label)
    if SLEEP: a(f"s_sleep {SLEEP}")
    a.lab(label + "_in")
    flag_read(a, vaddr, off)
    a(f"s_sub_u32 s{sCNT}, s{sCNT}, 1")
    a(f"s_cbranch_scc1 {label}_done")
    a("s_waitcnt vmcnt(0)")
    flag_bits(a)
    a(f"v_and_b32 v{vR}, {smask}, v{vR}")
    a(f"v_cmp_ne_u32 vcc, {smask}, v{vR}")
    a(f"s_cbranch_vccnz {label}")
    a.lab(label + "_done")
    set_exec(a, HI, HI)

def flag_set(a, vaddr, sbit, lo):
    a(f"s_lshl_b32 s3, 1, s{sbit}")
    a("v_mov_b32 v250, s3")
    a("v_mov_b32 v251, 0")
    a("v_writelane_b32 v250, 0, 4")
    set_exec(a, lo, 0)
    a(f"buffer_atomic_or_x2 v[250:251], v{vaddr}, {sr(WS)}, 0 offen sc0 sc1")
    set_exec(a, HI, HI)

def flag_check(a, label, vaddr, sbit, lo, wait):
    a(f"s_mov_b32 s{sCNT}, 0x100000")
    a(f"s_waitcnt vmcnt({wait})")
    a.lab(label)
    set_exec(a, lo, 0)
    a(f"v_cmp_ne_u32 vcc, s{sTAG}, v251")
    set_exec(a, HI, HI)
    a(f"s_cbranch_vccnz {label}_again")
    a.lab(label + "_ok")
    RETRY.append((label, vaddr, sbit, lo))
RETRY = []
def flag_retries(a):
    for label, vaddr, sbit, lo in RETRY:
        a.lab(label + "_again")
        a(f"s_sub_u32 s{sCNT}, s{sCNT}, 1")
        a(f"s_cbranch_scc1 {label}_ok")
        flag_set(a, vaddr, sbit, lo)
        a("s_waitcnt vmcnt(0)")
        a(f"s_branch {label}")

def kv_poll_addr(a, vd, t0):
    a(f"s_mul_i32 s4, s{sH}, 56")
    a("s_and_b32 s5, s4, 0xfffffff0")
    a(f"v_mov_b32 v{t0}, s5")
    a("s_add_u32 s5, s5, 62")
    a(f"v_writelane_b32 v{t0}, s5, 1")
    a("s_add_u32 s5, s4, 896")
    a(f"v_writelane_b32 v{t0}, s5, 2")
    a("s_add_u32 s5, s4, 950")
    a(f"v_writelane_b32 v{t0}, s5, 3")
    a(f"v_lshrrev_b32 v{t0}, 6, v{t0}")
    a(f"v_lshlrev_b32 v{t0}, {FSH+4}, v{t0}")
    a(f"s_and_b32 s3, s{sH}, 3")
    a(f"s_lshl2_add_u32 s3, s3, s{sW}")
    a(f"s_lshl_b32 s3, s3, {FSH}")
    a(f"s_add_u32 s3, s3, {FL_OFF}")
    a(f"v_add_u32 v{vd}, s3, v{t0}")

def mask_addr(a, vd):
    a(f"s_lshl_b32 s3, s{sW}, 12")
    a(f"s_sub_u32 s3, {L_CMB + 45056}, s3")
    a(f"v_mov_b32 v{vd}, s3")

def helper(a, ts):
    vX0, vX1, vW0, vW1, vWq = 2, 3, 6, 7, 8
    vZ, vP, vM, vWo = 9, 11, 12, 13
    a.raw("; ---- helper waves: LDS-DMA of x / weights, flag polling, Wo staging, O gathering")
    a("v_lshrrev_b32 v7, 3, v0")
    a("v_mul_u32_u24 v2, 896, v7")
    a("v_and_b32 v6, 7, v0")
    a("v_lshrrev_b32 v4, 4, v0")
    a("v_xor_b32 v3, v6, v4")
    a("v_lshl_add_u32 v2, v3, 4, v2")
    a("v_xor_b32 v3, 64, v2")
    a("v_add_u32 v3, 6144, v3")
    a("v_and_b32 v4, 1, v4")
    a("v_lshlrev_b32 v4, 2, v4")
    a("v_xor_b32 v6, v6, v4")
    a("v_mul_u32_u24 v7, 2688, v7")
    a(f"v_lshl_add_u32 v{vW0}, v6, 4, v7")
    a(f"v_add_u32 v{vW1}, {8*2688-1024}, v{vW0}")
    a(f"s_lshl3_add_u32 s{sXB}, s{sB}, s{sW}")
    a(f"s_mul_i32 s{sXB}, s{sXB}, {16*896}")
    a(f"s_mul_i32 s{sWQ}, s{sW}, 43008")
    a(f"s_lshl_b32 s{sWB}, s{sH}, 7")
    a(f"s_add_u32 s{sWB}, s{sWB}, s{sWQ}")
    a(f"s_add_u32 s{sWB}, s{sWB}, 896")
    a(f"s_mov_b32 s{sWoS}, {64*896}")
    if SPF:
        a(f"s_cmp_lt_u32 s{sH}, 14")
        a("s_cbranch_scc1 L_nspare")
        if SPF in (1, 3, 4):
            a(f"s_add_u32 s{sXB}, s{sXB}, {64*896}")
            a(f"s_mov_b32 s{sWoS}, {-64*896}")
        if SPF in (1, 3, 4):
            a(f"s_and_b32 s3, s{sH}, 1")
            a("s_mul_i32 s3, s3, 3")
            a(f"s_and_b32 s{sWB}, s{sB}, 3")
            a(f"s_add_u32 s{sWB}, s{sWB}, s3")
            a(f"s_lshl_b32 s{sWB}, s{sWB}, 7")
            a(f"s_add_u32 s{sWB}, s{sWB}, s{sWQ}")
        else:
            a(f"s_add_u32 s{sWB}, s{sWQ}, 768")
        a.lab("L_nspare")
    a(f"s_lshl_b32 s{sWM}, s{sW}, 11")
    a(f"s_lshl1_add_u32 s3, s{sB}, s{sH}")
    a(f"s_mul_i32 s{sA}, s3, 37")
    a(f"s_lshr_b32 s{sA}, s{sA}, 8")
    a(f"s_mul_i32 s{sA}, s{sA}, 7")
    a(f"s_sub_u32 s{sKC}, s3, s{sA}")
    a(f"s_mov_b32 s{X+2}, {X_BYTES}")
    a(f"s_mov_b32 s{X+3}, 0x20000")
    if SPF in (1, 2):
        a(f"s_mov_b32 s{W+2}, {W_BYTES}")
    else:
        a(f"s_cmp_lt_u32 s{sH}, 14")
        a(f"s_cselect_b32 s{W+2}, {W_BYTES}, 0")
    a(f"s_mov_b32 s{W+3}, 0x20000")
    a("s_waitcnt lgkmcnt(0)")
    a(f"s_load_dword s{sTAG}, s[14:15], {EP_OFF}")
    a(f"s_mov_b32 s{X}, s4")
    a(f"s_and_b32 s{X+1}, s5, 0xffff")
    a(f"s_mov_b32 s{W}, s6")
    a(f"s_and_b32 s{W+1}, s7, 0xffff")
    def adv(r):
        a(f"s_add_u32 s{r}, s{r}, 1")
        a(f"s_cmp_eq_u32 s{r}, 7")
        a(f"s_cselect_b32 s{r}, 0, s{r}")
    def issue(u):
        kind, c = u[0], int(u[1])
        if kind == "A":
            if SPF == 4 and c == opt("spw", 4): a(f"s_mov_b32 s{W+2}, {W_BYTES}")
            a(f"s_mul_i32 s{sBb}, s{sKC}, 172032")
            a(f"s_add_u32 m0, s{sWM}, {L_WB + c*8192}")
            a(f"s_add_u32 s{sBb}, s{sBb}, s{sWB}")
            a(f"buffer_load_dwordx4 v{vW0}, {sr(W)}, s{sBb} offen lds")
            a(f"buffer_load_dwordx4 v{vW1}, {sr(W)}, s{sBb} offen offset:1024 lds")
        if kind == "Q":
            a(f"s_mul_i32 s{sBb}, s{sKQ}, 172032")
            a(f"s_add_u32 m0, s{sIT}, {L_WQ + c*4096}")
            a(f"s_add_u32 s{sBb}, s{sBb}, s{sWQ}")
            a(f"buffer_load_dwordx4 v{vWq}, {sr(WQS)}, s{sBb} offen lds")
            adv(sKQ)
            return [u]
        if u == "B0": a(f"s_add_u32 s{sXB}, s{sXB}, s{sWoS}")
        a(f"s_lshl_b32 s{sA}, s{sKC}, 7")
        a(f"s_add_u32 m0, s{sWM}, {(L_XA if kind == 'A' else L_WB) + c*8192}")
        a(f"s_add_u32 s{sA}, s{sA}, s{sXB}")
        a(f"buffer_load_dwordx4 v{vX0}, {sr(X)}, s{sA} offen lds")
        a(f"buffer_load_dwordx4 v{vX1}, {sr(X)}, s{sA} offen offset:1024 lds")
        adv(sKC)
        return [u] * (4 if kind == "A" else 2)
    a(f"s_mov_b32 s{sKQ}, s{sKC}")
    order = []
    MPF = opt("mpf", -1)
    def touch():
        a(f"s_cmp_ge_u32 s{sW}, 2")
        a("s_cbranch_scc1 L_td")
        a(f"s_cmp_eq_u32 s{sW}, 1")
        a("s_cbranch_scc1 L_tw")
        a(f"s_lshl_b32 s3, s{sB}, 5")
        a(f"s_add_u32 s3, s3, s{sH}")
        a("s_add_u32 s3, s3, 16")
        a("s_mul_i32 s3, s3, 3584")
        a("v_lshlrev_b32 v20, 7, v0")
        set_exec(a, "0x0fffffff", 0)
        a(f"buffer_load_dword v21, v20, {sr(X)}, s3 offen")
        a("s_branch L_td")
        a.lab("L_tw")
        a("s_mul_i32 s3, s2, 5376")
        a("v_lshrrev_b32 v20, 3, v0")
        a("v_mul_u32_u24 v20, 2688, v20")
        a("v_and_b32 v21, 7, v0")
        a("v_lshl_add_u32 v20, v21, 7, v20")
        set_exec(a, "0x7f7f", 0)
        a(f"buffer_load_dword v21, v20, {sr(W)}, s3 offen")
        a.lab("L_td")
        set_exec(a, HI, HI)
    for i, u in enumerate(("A0", "A1", "A2")):
        if MPF == i: touch()
        order += issue(u)
    ts("h_iss", grp=1)
    srd(a, WS, 14, 15, WS_BYTES)
    srd(a, WO, 8, 9, WO_BYTES)
    srd(a, WQS, 6, 7, W_BYTES)
    a("v_lshlrev_b32 v1, 4, v0")
    a("v_and_b32 v15, 3, v0")
    a(f"v_lshrrev_b32 v{vWq}, 2, v0")
    a(f"v_mul_u32_u24 v{vWq}, 2688, v{vWq}")
    a(f"v_lshl_add_u32 v{vWq}, v15, 4, v{vWq}")
    a(f"s_mul_i32 s3, s{sH}, 56")
    a("s_and_b32 s3, s3, 0xfffffff0")
    a(f"s_add_u32 s{sWQ}, s{sWQ}, s3")
    a(f"s_lshr_b32 s{sIT}, s{sWM}, 1")
    a(f"v_mov_b32 v{vZ}, 0")
    kv_poll_addr(a, vP, 16)
    mask_addr(a, vM)
    a(f"ds_write_b32 v{vM}, v{vZ}")
    a(f"s_lshr_b32 s3, s{sB}, 2")
    a(f"s_lshl1_add_u32 s3, s{sB}, s3")
    a(f"s_and_b32 s64, s3, 7")
    def poll_issue():
        set_exec(a, "0xf", 0)
        flag_read(a, vP)
        set_exec(a, HI, HI)
    def poll_take():
        a("s_waitcnt vmcnt(0)")
        flag_bits(a)
        a("s_nop 0")
        for i in range(4):
            a(f"v_readlane_b32 s{4+i}, v{vR}, {i}")
        a("s_and_b32 s4, s4, s5")
        a("s_and_b32 s6, s6, s7")
        a("s_and_b32 s4, s4, s6")
        if ROT:
            a("s_and_b32 s5, s4, 0xff")
            a("s_and_b32 s6, s4, 0xff00")
            a("s_lshl_b32 s6, s6, 8")
            a("s_or_b32 s5, s5, s6")
            a("s_lshl_b32 s6, s5, 8")
            a("s_or_b32 s5, s5, s6")
            a("s_lshr_b32 s5, s5, s64")
            a("s_and_b32 s4, s5, 0xff")
            a("s_lshr_b32 s5, s5, 8")
            a("s_and_b32 s5, s5, 0xff00")
            a("s_or_b32 s4, s4, s5")
        a("s_cmp_eq_u32 s4, 0xffff")
        a("s_cselect_b32 s4, 0x7ffff, s4")
        a("v_mov_b32 v15, s4")
        a(f"ds_write_b32 v{vM}, v15")
    PLANS = {
      0: [(["A3"], "A0"), (["A4"], "A1"), (["A5"], "A2"), (["A6"], "A3"), (["B0", "B1"], "A4"), (["B2", "B3"], "A5"), (["B4"], "A6"),
          (["B5"], "B1"), (["B6", "Q0", "Q1"], "B3"), (["Q2", "Q3"], "B5"), (["Q4", "Q5", "Q6"], "Q1"), ([], "Q3"), (["P"], "Q5"), ([], "Q6")],
      1: [(["A3"], "A0"), (["A4"], "A1"), (["A5"], "A2"), (["A6"], "A3"), (["B0", "B1"], "A4"), (["B2", "B3"], "A5"), (["B4", "Q0"], "A6"),
          (["B5", "Q1"], "B1"), (["B6", "Q2", "Q3"], "B3"), (["Q4", "Q5"], "B5"), (["Q6"], "B6"), ([], "Q3"), (["P"], "Q5"), ([], "Q6")],
      3: [(["A3"], "A0"), (["A4"], "A1"), (["A5"], "A2"), (["A6"], "A3"), (["B0", "B1"], "A4"), (["B2", "B3"], "A5"), (["B4"], "A6"),
          (["B5"], "B1"), (["B6", "Q0", "Q1"], "B3"), (["Q2", "Q3", "Q4"], "B5"), (["Q5", "Q6"], "Q1"), (["P"], "Q3"), ([], "Q5"), ([], "Q6")],
      4: [(["A3"], "A0"), (["A4"], "A1"), (["A5"], "A2"), (["A6"], "A3"), (["B0", "B1"], "A4"), (["B2", "B3"], "A5"), (["B4"], "A6"),
          (["B5"], "B1"), (["B6", "Q0", "Q1", "Q2", "Q3"], "B3"), (["Q4", "Q5", "Q6"], "B5"), ([], "Q1"), (["P"], "Q3"), ([], "Q5"), ([], "Q6")],
      5: [(["A3"], "A0"), (["A4"], "A1"), (["A5"], "A2"), (["A6"], "A3"), (["B0", "B1"], "A4"), (["B2", "B3"], "A5"), (["B4"], "A6"),
          (["B5"], "B1"), (["B6"], "B3"), ([], "B5"), (["Q0", "Q1", "Q2", "Q3", "Q4", "Q5", "Q6"], "Q1"), (["P"], "Q3"), ([], "Q5"), ([], "Q6")],
      6: [(["A3"], "A0"), (["A4"], "A1"), (["A5"], "A2"), (["A6"], "A3"), (["Q0", "B0"], "A4"), (["Q1", "B1", "B2"], "A5"), (["Q2", "B3"], "A6"),
          ([], "B1"), (["B4", "B5", "B6", "Q3"], "B3"), (["Q4", "Q5", "Q6"], "B5"), ([], "B6"), (["P"], "Q3"), ([], "Q5"), ([], "Q6")],
      2: [(["A3"], "A0"), (["A4"], "A1"), (["A5"], "A2"), (["A6"], "A3"), (["B0"], "A4"), (["B1", "B2"], "A5"), (["B3"], "A6"),
          ([], "B1"), (["B4", "B5", "B6", "Q0", "Q1"], "B3"), (["Q2", "Q3"], "B5"), (["Q4", "Q5", "Q6"], "Q1"), ([], "Q3"), (["P"], "Q5"), ([], "Q6")],
    }
    for n, (us, need) in enumerate(PLANS[opt("plan", 3)]):
        for u in us:
            if u == "P":
                a("s_waitcnt lgkmcnt(0)")
                a(f"s_xor_b32 s{sTAG}, s{sTAG}, 0x5ac3a53c")
                poll_issue(); order.append(u)
            else:
                order += issue(u)
        if n == 6: a("s_waitcnt lgkmcnt(0)")
        last = max(i for i, x in enumerate(order) if x == need)
        a(f"s_waitcnt vmcnt({len(order) - 1 - last})")
        if n in (0, 3, 6, 7, 10, 13): ts(f"w{n}", grp=1)
        a("s_barrier")
    if SCW:
        a("s_lshr_b32 s3, s2, 3")
        a(f"s_lshl2_add_u32 s3, s3, s{sW}")
        a("s_mul_i32 s3, s3, 3136")
        a("s_and_b32 s3, s3, 0xffffff80")
        a("s_add_u32 s8, s8, s3")
        a("s_addc_u32 s9, s9, 0")
        for i in range(25):
            a(f"s_load_dword s10, s[8:9], {128*i}")
    a(f"s_mov_b32 s{sCNT}, 0x100000")
    a.raw("; ---- helper: poll the K/V flag words, pass the list of published key tiles through LDS")
    a(f"s_mov_b32 s{sIT}, 0")
    a("s_branch L_hpoll_in")
    a.lab("L_hpoll")
    a(f"s_sub_u32 s{sCNT}, s{sCNT}, 1")
    a("s_cbranch_scc1 L_hpoll_giveup")
    poll_issue()
    a.lab("L_hpoll_in")
    poll_take()
    a("s_cmp_eq_u32 s4, 0x7ffff")
    a("s_cbranch_scc1 L_hpoll_done")
    a("s_bcnt1_i32_b32 s5, s4")
    a("s_cmp_lt_u32 s5, 2")
    a(f"s_cselect_b32 s5, 1, s{sIT}")
    a("s_cmp_lg_u32 s5, 0")
    a("s_cbranch_scc1 L_hnob8")
    a("s_barrier")
    a(f"s_mov_b32 s{sIT}, 1")
    a.lab("L_hnob8")
    if SLEEP: a(f"s_sleep {SLEEP}")
    if SL2:
        a(f"s_cmp_eq_u32 s{sIT}, 0")
        a("s_cbranch_scc1 L_hpoll")
        a(f"s_sleep {SL2}")
    a("s_branch L_hpoll")
    a.lab("L_hpoll_giveup")
    a("v_mov_b32 v15, 0x7ffff")
    a(f"ds_write_b32 v{vM}, v15")
    a.lab("L_hpoll_done")
    a(f"s_cmp_lg_u32 s{sIT}, 0")
    a("s_cbranch_scc1 L_hb8done")
    a("s_barrier")
    a.lab("L_hb8done")
    ts("h_all", grp=1)
    a(f"s_or_b32 s3, s2, s{sW}")
    a("s_cmp_lg_u32 s3, 0")
    a("s_cbranch_scc1 L_noep")
    a("v_lshrrev_b32 v16, 2, v0")
    a("v_and_b32 v17, 3, v0")
    a("v_lshl_add_u32 v16, v16, 4, v17")
    a(f"v_lshlrev_b32 v16, {FSH}, v16")
    a(f"v_add_u32 v16, {FL_OFF}, v16")
    poll(a, "L_pollep0", 16, HI, HI, "0xff")
    a(f"v_add_u32 v16, {256 << FSH}, v16")
    poll(a, "L_pollep1", 16, HI, HI, "0xff")
    a(f"s_xor_b32 s3, s{sTAG}, 0x5ac3a53c")
    a("s_add_u32 s3, s3, 0x9e3779b9")
    a("v_mov_b32 v17, s3")
    a(f"v_mov_b32 v16, {EP_OFF}")
    set_exec(a, 1, 0)
    a(f"buffer_store_dword v17, v16, {sr(WS)}, 0 offen sc1")
    if opt("rep", -1) >= 0:
        a("v_not_b32 v18, v17")
        a(f"buffer_store_dword v18, v16, {sr(WS)}, 0 offen offset:4 sc1")
    set_exec(a, HI, HI)
    a("s_nop 0")
    a.lab("L_noep")
    a.raw("; ---- helper: Wo window -> LDS")
    a("v_lshrrev_b32 v16, 4, v0")
    a(f"v_mul_u32_u24 v{vWo}, 896, v16")
    a("v_lshlrev_b32 v16, 2, v16")
    a("v_and_b32 v17, 15, v0")
    a("v_xor_b32 v16, v16, v17")
    a(f"v_lshl_add_u32 v{vWo}, v16, 4, v{vWo}")
    a(f"s_mul_i32 s{sWoS}, s{sCS4}, 224")
    a(f"s_and_b32 s{sWoS}, s{sWoS}, 0xffffffc0")
    a(f"s_mul_i32 s3, s{sW}, {28*3584}")
    a(f"s_add_u32 s{sWoS}, s{sWoS}, s3")
    a(f"s_mul_i32 s{sWM}, s{sW}, {28*1024}")
    if WROT:
        a(f"s_and_b32 s{sKC}, s{sT3}, 15")
        a(f"s_mul_i32 s{sKC}, s{sKC}, 7")
        a(f"s_lshr_b32 s{sKC}, s{sKC}, 2")
    else:
        a(f"s_mov_b32 s{sKC}, 0")
    a(f"s_mov_b32 s{sIT}, 28")
    a.lab("L_wo")
    a(f"s_lshl_b32 s3, s{sKC}, 10")
    a(f"s_add_u32 m0, s3, s{sWM}")
    a(f"s_mul_i32 s3, s{sKC}, 3584")
    a(f"s_add_u32 s3, s3, s{sWoS}")
    a(f"buffer_load_dwordx4 v{vWo}, {sr(WO)}, s3 offen lds")
    if WPACE >= 0: a(f"s_waitcnt vmcnt({WPACE})")
    else: a(f"s_sleep {WSL}")
    a(f"s_add_u32 s{sKC}, s{sKC}, 1")
    a(f"s_cmp_eq_u32 s{sKC}, 28")
    a(f"s_cselect_b32 s{sKC}, 0, s{sKC}")
    a(f"s_sub_u32 s{sIT}, s{sIT}, 1")
    a(f"s_cmp_lg_u32 s{sIT}, 0")
    a("s_cbranch_scc1 L_wo")
    a(f"s_lshl_b32 s3, s{sT3}, {FSH}")
    a(f"s_add_u32 s3, s3, {FL_OFF + (NOFL << FSH)}")
    a(f"v_mov_b32 v{vP}, s3")
    a(f"s_lshl_b32 s4, s{sW}, 2")
    a("s_lshl_b32 s4, 15, s4")
    a(f"s_lshl_b32 s3, s{sT3}, 2")
    a(f"s_add_u32 s3, s3, s{sW}")
    a("s_lshl_b32 s3, s3, 13")
    a(f"s_add_u32 s3, s3, {O_OFF}")
    a(f"s_add_u32 s{sA}, s3, 4096")
    a(f"s_lshl_b32 s{sBb}, s{sW}, 13")
    a(f"s_add_u32 s{sBb}, s{sBb}, {L_CMB}")
    a(f"v_add_u32 v{vM}, s{sBb}, v1")
    a("s_waitcnt vmcnt(0) lgkmcnt(0)")
    ts("h_wo", grp=1)
    a("s_barrier")
    if not PH:
        poll(a, "L_poll2", vP, 1, 0, "s4")
        ts("h_poll2", grp=1)
        for f in range(8):
            a(f"buffer_load_dwordx4 {vr(32+4*f,4)}, v1, {sr(WS)}, {'s3' if f < 4 else 's%d' % sA} offen offset:{1024*(f%4)} sc1")
        a("s_barrier")
        for f in range(8):
            a(f"s_waitcnt vmcnt({7-f})")
            a(f"ds_write_b128 v{vM}, {vr(32+4*f,4)} offset:{1024*f}")
    else:
        a.raw("; ---- helper: gather the O tiles of four heads, stage them in LDS")
        sSH, sHAVE, sNEW = sKC, sWM, sWQ
        a(f"s_lshl_b32 s{sSH}, s{sW}, 2")
        a(f"s_mov_b32 s{sHAVE}, 0")
        a(f"s_mov_b32 s{sCNT}, 0x100000")
        a.lab("L_og")
        set_exec(a, 1, 0)
        flag_read(a, vP)
        set_exec(a, HI, HI)
        a("s_waitcnt vmcnt(0)")
        a(f"v_readfirstlane_b32 s4, v{vR}")
        a(f"v_readfirstlane_b32 s5, v{vR+1}")
        a("s_nop 0")
        a(f"s_lshr_b32 s4, s4, s{sSH}")
        a("s_and_b32 s4, s4, 15")
        a(f"s_cmp_eq_u32 s5, s{sTAG}")
        a("s_cselect_b32 s4, s4, 0")
        a(f"s_sub_u32 s{sCNT}, s{sCNT}, 1")
        a("s_cselect_b32 s4, 15, s4")
        a(f"s_andn2_b32 s{sNEW}, s4, s{sHAVE}")
        a("s_cbranch_scc0 L_og")
        a(f"s_or_b32 s{sHAVE}, s{sHAVE}, s4")
        for i in range(4):
            a(f"s_bitcmp0_b32 s{sNEW}, {i}")
            a(f"s_cbranch_scc1 L_ol{i}")
            for u in range(2):
                a(f"buffer_load_dwordx4 {vr(32+8*i+4*u,4)}, v1, {sr(WS)}, {'s3' if i < 2 else 's%d' % sA} offen offset:{2048*(i%2)+1024*u} sc1")
            a.lab(f"L_ol{i}")
        a(f"s_cmp_lg_u32 s{sHAVE}, 15")
        a("s_cbranch_scc1 L_og")
        ts("h_poll2", grp=1)
        a("s_barrier")
        for ph in range(2):
            if ph == 1: a("s_waitcnt vmcnt(0)")
            for i in range(4):
                a(f"s_bitcmp{1-ph}_b32 s{sNEW}, {i}")
                a(f"s_cbranch_scc1 L_ow{ph}{i}")
                for u in range(2):
                    a(f"ds_write_b128 v{vM}, {vr(32+8*i+4*u,4)} offset:{2048*i+1024*u}")
                a.lab(f"L_ow{ph}{i}")
    a("s_waitcnt lgkmcnt(0)")
    ts("h_stage", grp=1)
    a("s_barrier")
    if TS and TSG == 1: ts.dump()
    a("s_endpgm")

def kernel(a):
    name = NAME + "_kernel"
    a.raw(f".globl {name}")
    a.raw(".p2align 8")
    a.raw(f".type {name},@function")
    a.lab(name)
    ts = Stamps(a)
    ts("start")
    a("s_cmp_ge_u32 s2, 256")
    a("s_cbranch_scc1 L_end")
    a("s_load_dwordx8 s[4:11], s[0:1], 0")
    a("s_load_dwordx4 s[12:15], s[0:1], 32")
    a("v_lshrrev_b32 v1, 6, v0")
    a("v_and_b32 v0, 63, v0")
    a(f"v_readfirstlane_b32 s{sA}, v1")
    decode_hb(a)
    a(f"s_and_b32 s{sW}, s{sA}, 3")
    a(f"s_lshl_b32 s{sT}, s{sB}, 2")
    a(f"s_and_b32 s{sT3}, s{sH}, 3")
    a(f"s_add_u32 s{sT3}, s{sT3}, s{sT}")
    a(f"s_add_u32 s{sT}, s{sT}, s{sW}")
    a(f"s_lshr_b32 s{sCS4}, s{sH}, 2")
    a(f"s_cmp_lt_u32 s{sA}, 4")
    a("s_cbranch_scc1 L_compute")
    helper(a, ts)
    a.raw("; ---- compute waves")
    a.lab("L_compute")
    t0, t1, t2, t3, t4, t5 = vT
    if CPF:
        a(f"s_cmp_lt_u32 s{sH}, {14 if CPF == 1 else 0}")
        a("s_cbranch_scc1 L_nocpf")
        a("s_getpc_b64 s[20:21]")
        a(f"s_lshl_b32 s3, s{sW}, 12")
        a("v_lshl_add_u32 v254, v0, 6, s3")
        a(f"v_min_u32 v254, L_codeend - L_compute - 64, v254")
        a("global_load_dword v255, v254, s[20:21]")
        a.lab("L_nocpf")
    a("s_waitcnt lgkmcnt(0)")
    a(f"s_load_dword s{sTAG}, s[14:15], {EP_OFF}")
    if opt("rep", -1) >= 0: a(f"s_load_dwordx2 s[64:65], s[14:15], {EP_OFF}")
    if SCP:
        a("s_bfe_u32 s3, s2, 0x30003")
        a(f"s_cmp_ge_u32 s{sW}, 2")
        a("s_cbranch_scc1 L_scw")
        a(f"s_lshl4_add_u32 s3, s{sB}, s3")
        a("s_add_u32 s3, s3, 8")
        a(f"s_lshl1_add_u32 s3, s3, s{sW}")
        a("s_mul_i32 s3, s3, 3584")
        a("s_add_u32 s4, s4, s3")
        a("s_addc_u32 s5, s5, 0")
        for i in range(28):
            a(f"s_load_dword s{sCNT}, s[4:5], {128*i}")
        a("s_branch L_scd")
        a.lab("L_scw")
        a(f"s_and_b32 s{sA}, s{sB}, 3")
        a(f"s_lshl2_add_u32 s3, s3, s{sA}")
        a(f"s_lshl1_add_u32 s3, s3, s{sW}")
        a("s_sub_u32 s3, s3, 2")
        a(f"s_mul_i32 s3, s3, {7*2688}")
        a(f"s_and_b32 s{sA}, s2, 1")
        a(f"s_mul_i32 s{sA}, s{sA}, 384")
        a(f"s_add_u32 s3, s3, s{sA}")
        a("s_add_u32 s4, s6, s3")
        a("s_addc_u32 s5, s7, 0")
        for r in range(7):
            for i in range(4):
                a(f"s_load_dword s{sCNT}, s[4:5], {2688*r + 128*i}")
        a.lab("L_scd")
    srd(a, WS, 14, 15, WS_BYTES)
    if TS: srd(a, DBG, 12, 13, 256)
    if SPF in (1, 3, 4):
        a(f"s_cmp_lt_u32 s{sH}, 14")
        a("s_cselect_b32 s3, 0, 2")
        a(f"s_xor_b32 s{sT}, s{sT}, s3")
    a(f"s_and_b32 s4, s{sW}, 1")
    a(f"s_lshr_b32 s5, s{sW}, 1")
    a("v_lshlrev_b32 v1, 4, v0")
    a("v_and_b32 v15, 3, v0")
    a("v_and_b32 v2, 31, v0")
    a(f"v_lshlrev_b32 v{vV0}, 4, v2")
    a("v_lshlrev_b32 v2, 7, v2")
    a("v_bfe_u32 v3, v0, 1, 3")
    a("v_lshrrev_b32 v4, 5, v0")
    a(f"v_mul_u32_u24 v{vV1}, {V_PLANE}, v4")
    a(f"v_add_u32 v{vV0}, v{vV0}, v{vV1}")
    a("v_xor_b32 v3, v3, v4")
    a("v_lshl_add_u32 v2, v3, 4, v2")
    a("s_lshl_b32 s3, s4, 12")
    a("v_add_u32 v2, s3, v2")
    a(f"v_bfe_u32 v{t0}, v0, 2, 2")
    a(f"v_lshl_add_u32 v{t1}, v4, 3, v{t0}")
    a("v_xor_b32 v3, 32, v2")
    a("v_xor_b32 v4, 64, v2")
    a("v_xor_b32 v5, 96, v2")
    a(f"s_mul_i32 s3, s5, {L_WB}")
    for i in range(4):
        a(f"v_add_u32 v{vXO[i]}, s3, v{vXA[i]}")
    a(f"v_bfe_u32 v{t2}, v0, 4, 1")
    a(f"v_lshlrev_b32 v{t2}, 5, v{t2}")
    a(f"v_lshrrev_b32 v{t3}, 1, v15")
    a(f"v_and_b32 v{t4}, 1, v15")
    a(f"v_lshl_add_u32 v{t3}, v{t4}, 1, v{t3}")
    a(f"v_lshl_add_u32 v{t3}, v{t3}, 3, v{t2}")
    a(f"v_lshl_add_u32 v{t4}, v15, 3, v{t2}")
    a(f"v_lshl_add_u32 v{vQR}, v{t1}, 6, v{t3}")
    a(f"v_add_u32 v{vQR}, {L_WQ}, v{vQR}")
    a(f"s_cmp_lt_u32 s{sH}, 7")
    a("s_cselect_b64 vcc, -1, 0")
    a(f"v_cndmask_b32 v{t3}, v{t4}, v{t3}, vcc")
    a(f"v_lshrrev_b32 v{t0}, 1, v{t0}")
    a(f"v_xor_b32 v{t0}, s5, v{t0}")
    a(f"v_lshl_add_u32 v{t3}, v{t0}, 6, v{t3}")
    a(f"v_lshl_add_u32 v{vWR}, v{t1}, 7, v{t3}")
    a(f"v_add_u32 v{vWR}, {L_WB}, v{vWR}")
    mask_addr(a, vMk)
    a(f"s_lshl1_add_u32 s5, s{sH}, s5")
    a(f"s_and_b32 s3, s{sB}, 1")
    a("s_lshl1_add_u32 s4, s3, s4")
    a(f"s_lshr_b32 s{sBIT}, s{sB}, 1")
    a(f"s_lshl4_add_u32 s{sS0}, s4, s{sBIT}")
    a(f"s_lshl_b32 s{sS0}, s{sS0}, 16")
    a("s_lshl4_add_u32 s3, s5, s4")
    a(f"v_lshl_add_u32 v{vP1}, v0, 2, s3")
    a(f"v_lshlrev_b32 v{vP1}, {FSH}, v{vP1}")
    a(f"v_add_u32 v{vP1}, {FL_OFF}, v{vP1}")
    a(f"s_lshl_b32 s{sA}, s{sT}, {FSH}")
    a(f"s_add_u32 s{sA}, s{sA}, {FL_OFF + (NOFL << FSH)}")
    a(f"v_mov_b32 v{vFl2}, s{sA}")
    a(f"v_writelane_b32 v{vP1}, s{sA}, 4")
    a(f"v_bfe_u32 v{vPad}, v0, 3, 2")
    a(f"v_mul_u32_u24 v{vPad}, {V_PLANE}, v{vPad}")
    a(f"v_lshrrev_b32 v{t0}, 5, v0")
    a(f"v_lshl_add_u32 v{vPad}, v{t0}, 19, v{vPad}")
    a(f"v_and_b32 v{t0}, 7, v0")
    a(f"v_lshl_add_u32 v{vPad}, v{t0}, 4, v{vPad}")
    a(f"v_cmp_eq_u32 vcc, 0, v{t0}")
    a(f"v_mov_b32 v{t1}, 0x3f803f80")
    a("s_nop 0")
    for r in range(4):
        a(f"v_cndmask_b32 v{PADC+r}, 0, v{t1}, vcc")
    srd(a, OUT, 10, 11, OUT_BYTES)
    srd(a, KVS, 14, 15, KV_BYTES)
    a.raw("; ---- open the flag words for this launch")
    a("s_waitcnt lgkmcnt(0)")
    a(f"s_xor_b32 s{sTAG}, s{sTAG}, 0x5ac3a53c")
    a("v_mov_b32 v250, 0")
    a(f"v_mov_b32 v251, s{sTAG}")
    a(f"s_cmp_ge_u32 s{sB}, 2")
    a("s_cbranch_scc1 L_noopen1")
    set_exec(a, "0xf", 0)
    a(f"buffer_atomic_swap_x2 v[250:251], v{vP1}, {sr(WS)}, 0 offen sc1")
    a.lab("L_noopen1")
    a(f"s_cmp_lg_u32 s{sH}, 15")
    a("s_cbranch_scc1 L_noopen2")
    set_exec(a, 1, 0)
    a(f"buffer_atomic_swap_x2 v[250:251], v{vFl2}, {sr(WS)}, 0 offen sc1")
    a.lab("L_noopen2")
    set_exec(a, HI, HI)
    def ldk(slot):
        for f in range(2):
            a(f"buffer_load_dwordx4 {vr(KV+16*slot+4*f,4)}, v{vKo}, {sr(X)}, s{sKV} offen offset:{1024*f} sc1")
    def ldv(slot):
        a(f"buffer_load_dwordx4 {vr(KV+16*slot+8,4)}, v{t4}, {sr(X)}, s{sKV} offen sc1")
        a(f"buffer_load_dwordx4 {vr(KV+16*slot+12,4)}, v{t5}, {sr(X)}, s{sKV} offen sc1")
    npick = [0]
    def pick_ops():
        n = npick[0]; npick[0] += 1
        def p0(): a(f"s_and_b32 s{sAV}, s{sRDY}, s{sTODO}")
        def p1():
            if not (NOBR and n >= 5): a(f"s_cbranch_scc0 L_slow{n}")
            a.lab(f"L_back{n}")
        def p2(): a(f"s_ff1_i32_b32 s{sAV}, s{sAV}")
        def p3(): a(f"s_bitset0_b32 s{sTODO}, s{sAV}")
        def p4(): a(f"s_lshl_b32 s{sKV}, s{sAV}, 16")
        if not ROT: return [p0, p1, p2, p3, p4]
        def r0(): a(f"s_add_u32 s{sBb}, s{sAV}, s{sROT}")
        def r1(): a(f"s_and_b32 s{sBb}, s{sBb}, 7")
        def r2(): a(f"s_and_b32 s{sAV}, s{sAV}, 24")
        def r3(): a(f"s_or_b32 s{sAV}, s{sAV}, s{sBb}")
        return [p0, p1, p2, p3, r0, r1, r2, r3, p4]
    a(f"s_lshl_b32 s3, s{sW}, 20")
    a(f"s_add_u32 s{X}, s14, s3")
    a(f"s_addc_u32 s{X+1}, s15, 0")
    a(f"s_and_b32 s{X+1}, s{X+1}, 0xffff")
    a(f"s_mov_b32 s{X+2}, {1 << 20}")
    a(f"s_mov_b32 s{X+3}, 0x20000")
    a(f"s_mul_i32 s6, s{sH}, 56")
    a("s_lshr_b32 s7, s6, 4")
    a("s_lshl_b32 s7, s7, 9")
    a(f"v_add_u32 v{vKo}, s7, v1")
    a("s_lshr_b32 s6, s6, 1")
    a(f"v_and_b32 v{t0}, 31, v0")
    a(f"v_add_u32 v{t1}, s6, v{t0}")
    a(f"v_lshrrev_b32 v{t2}, 5, v{t1}")
    a(f"v_lshl_add_u32 v{t1}, v{t2}, 3, v{t1}")
    a("s_lshr_b32 s7, s6, 5")
    a("s_mul_i32 s7, s7, 40")
    a("s_add_u32 s7, s7, 4")
    a(f"v_add_u32 v{t2}, s7, v{t0}")
    a(f"v_cmp_gt_u32 vcc, 28, v{t0}")
    a(f"v_add_u32 v{t5}, {V_BASE}, v{vV1}")
    a("s_nop 0")
    a(f"v_cndmask_b32 v{t1}, v{t2}, v{t1}, vcc")
    a(f"v_lshl_add_u32 v{t4}, v{t1}, 4, v{t5}")
    a(f"v_add_u32 v{t5}, {2*V_PLANE}, v{t4}")
    a(f"s_lshr_b32 s3, s{sB}, 2")
    a(f"s_lshl1_add_u32 s3, s{sB}, s3")
    a(f"s_and_b32 s{sROT}, s3, 7")
    a(f"s_mov_b32 s{sRDY}, 0")
    a(f"s_mov_b32 s{sTODO}, 0x7ffff")
    a(f"v_add_u32 v{t0}, v{vMk}, v1")
    a(f"s_mul_i32 s3, s{sW}, 12288")
    a(f"s_add_u32 s11, s3, {L_CMB}")
    for i in range(3):
        a(f"s_add_u32 s{sA}, s{sW}, {1+i}")
        a(f"s_and_b32 s{sA}, s{sA}, 3")
        a(f"s_mul_i32 s3, s{sA}, 12288")
        a(f"s_add_u32 s{8+i}, s3, {L_CMB + 4096*i}")
        a(f"s_lshl_b32 s{sA}, s{sA}, 12")
        a(f"s_sub_u32 s{sA}, {L_CMB + 45056}, s{sA}")
        a(f"v_add_u32 v{vT[1+i]}, s{sA}, v1")
    a("v_mov_b32 v30, 0")
    a("v_mov_b32 v31, 0")
    for r in (P+4, P+6):
        a(f"v_pk_mov_b32 {vr(r,2)}, v[30:31], v[30:31]")
    def fill3():
        for sl in range(3):
            for f in pick_ops(): f()
            ldk(sl); ldv(sl)
    def publish(kind, pk):
        if kind == "V":
            a(f"s_add_u32 s{sS1}, s{sS0}, {2*V_PLANE}")
            if not PADE:
                set_exec(a, HI, 0)
                a(f"buffer_store_dwordx4 {vr(PADC,4)}, v{vPad}, {sr(KVS)}, s{sS0} offen offset:512 sc1")
                set_exec(a, HI, HI)
        for f in range(2):
            for i in range(4):
                a(f"v_cvt_pk_bf16_f32 v{pk+4*f+i}, v{AK+8*f+2*i}, v{AK+8*f+2*i+1}")
            if kind == "K":
                a(f"buffer_store_dwordx4 {vr(pk+4*f,4)}, v1, {sr(KVS)}, s{sS0} offen offset:{1024*f} sc1")
            else:
                a(f"buffer_store_dwordx4 {vr(pk+4*f,4)}, v{vV0}, {sr(KVS)}, s{sS0 if f == 0 else sS1} offen sc1")
    def phase1(kind):
        if kind == "K":
            a("s_lshl_b32 s3, s5, 11")
            a(f"s_add_u32 s{sS0}, s{sS0}, s3")
        else:
            a(f"s_mul_i32 s3, s5, {V_CT}")
            a(f"s_add_u32 s{sS0}, s{sS0}, s3")
            a(f"s_add_u32 s{sS0}, s{sS0}, {V_BASE - 14*V_CT}")
            a(f"s_cmp_lt_u32 s{sH}, 14")
            a(f"s_cselect_b32 s{KVS+2}, {KV_BYTES}, 0")
            if PADE:
                a(f"buffer_store_dwordx4 {vr(PADC,4)}, v{vPad}, {sr(KVS)}, s{sS0} offen offset:512 sc1")
        def kvm(w, x, first):
            c = "0" if first else vr(AK,16)
            if kind == "K": mfma(a, vr(AK,16), w, x, c)
            else: mfma(a, vr(AK,16), x, w, c)
        def rdA(c, i):
            a(f"ds_read_b128 {vr(BUF+4*i,4)}, v{vXA[i]} offset:{c*8192}")
            for r in range(2):
                a(f"ds_read_b64_tr_b16 {vr(WFK+16*c+4*i+2*r,2)}, v{vWR} offset:{(c*4+i)*2048 + r*512}")
        def mmA(c, i):
            kvm(vr(WFK+16*c+4*i,4), vr(BUF+4*i,4), c == 0 and i == 0)
        def loop(rd, mm, nr, hook, second=False):
            D = PDB if second else PDA
            if D:
                for s_ in range(-D, 28):
                    n = s_ + D
                    if n < 28:
                        if n % 4 == 0:
                            a("s_barrier")
                            hook(n // 4)
                        rd(n // 4, n % 4)
                    if second and s_ == 25: a(f"ds_read_b32 v15, v{vMk}")
                    if s_ >= 0:
                        left = min(27, n) - s_
                        extra = 1 if (second and s_ in (25, 26)) else 0
                        a(f"s_waitcnt lgkmcnt({nr*left + extra})")
                        mm(s_ // 4, s_ % 4)
                return
            for c in range(7):
                sk = SKEW and 0 < c < 6
                a("s_barrier")
                hook(c)
                lastB = second and c == 6
                rd(c, 0); rd(c, 1)
                if sk: mm(c-1, 2)
                rd(c, 2)
                if sk: mm(c-1, 3)
                a(f"s_waitcnt lgkmcnt({2*nr})")
                rd(c, 3)
                mm(c, 0)
                a(f"s_waitcnt lgkmcnt({2*nr})")
                mm(c, 1)
                if not (SKEW and c < 5):
                    a(f"s_waitcnt lgkmcnt({nr})")
                    if lastB: a(f"ds_read_b32 v15, v{vMk}")
                    mm(c, 2)
                a("s_waitcnt lgkmcnt(0)")
                if not (SKEW and c < 5):
                    mm(c, 3)
        loop(rdA, mmA, 3, lambda c: ts("c0") if c == 0 else None)
        ts("a_mm")
        for i in range(4):
            a(f"v_add_u32 v{vXA[i]}, {L_WB}, v{vXA[i]}")
        a("s_nop 7")
        publish(kind, PKA)
        a(f"s_add_u32 s{sS0}, s{sS0}, {8 << 16}")
        ts("a_st")
        steps = [("B", s_) for s_ in range(28)] + [("Q", s_) for s_ in range(28)]
        bar = {("B", 0): 0, ("B", 8): 1, ("B", 16): 2, ("B", 24): 3, ("Q", 8): 4, ("Q", 16): 5, ("Q", 24): 6}
        NB = 6
        D = opt("pd2", 4)
        def cnt(st): return 1 if st[0] == "B" else 3
        a(f"s_mov_b32 s{sIT}, 0")
        def try_flag(c, force):
            if force:
                a(f"s_cmp_lg_u32 s{sIT}, 0")
            else:
                a("s_getreg_b32 s3, hwreg(HW_REG_IB_STS, 0, 4)")
                a(f"s_or_b32 s3, s3, s{sIT}")
            a(f"s_cbranch_scc1 L_nf{kind}{c}")
            a("s_waitcnt vmcnt(0)")
            flag_set(a, vP1, sBIT, "0x1f")
            a(f"s_mov_b32 s{sIT}, 1")
            ts("a_flag")
            a.lab(f"L_nf{kind}{c}")
        for k in range(-D, len(steps)):
            n = k + D
            if n < len(steps):
                st = steps[n]; c, i = st[1] // 4, st[1] % 4
                if st in bar:
                    a("s_barrier")
                    if NBF:
                        if bar[st] == 3: try_flag(99, True)
                    elif bar[st] == FA:
                        a("s_waitcnt vmcnt(0)")
                        flag_set(a, vP1, sBIT, "0x1f")
                        ts("a_flag")
                    if bar[st] == 6:
                        flag_check(a, f"L_fc1{kind}", vP1, sBIT, "0x1f", (2 if (kind == "K" or PADE) else 3) if EB >= 0 else 0)
                b = BUF + 8 * (n % NB)
                if st[0] == "B":
                    a(f"ds_read_b128 {vr(b,4)}, v{vXA[i]} offset:{c*8192}")
                else:
                    a(f"ds_read_b128 {vr(b,4)}, v{vXO[i]} offset:{c*8192}")
                    for r in range(2):
                        a(f"ds_read_b64_tr_b16 {vr(b+4+2*r,2)}, v{vQR} offset:{st[1]*1024 + r*256}")
            if k == len(steps) - 3: a(f"ds_read_b32 v15, v{vMk}")
            if k >= 0:
                st = steps[k]; b = BUF + 8 * (k % NB)
                left = sum(cnt(x) for x in steps[k+1:n+1]) + (1 if k in (len(steps)-3, len(steps)-2) else 0)
                a(f"s_waitcnt lgkmcnt({left})")
                if st[0] == "B":
                    kvm(vr(WFK+4*st[1],4), vr(b,4), st[1] == 0)
                    if NBF and st[1] in (9, 12, 15, 18): try_flag(st[1], False)
                    if NBF == 2 and st[1] == 19: try_flag(st[1], True)
                else:
                    mfma(a, vr(AQ,16), vr(b+4,4), vr(b,4), "0" if st[1] == 0 else vr(AQ,16))
                    if st[1] == EB: publish(kind, PKB)
    a(f"s_cmp_lt_u32 s{sH}, 7")
    a("s_cbranch_scc0 L_vline")
    a.raw("; ---- phase 1, K line")
    phase1("K")
    a("s_branch L_q")
    a.lab("L_vline")
    a.raw("; ---- phase 1, V line")
    phase1("V")
    a.lab("L_q")
    a.raw("; ---- second-half flag, Q epilogue and exchange, first key tiles")
    ts("b_mm")
    def flagb(w):
        a(f"s_lshl_b32 s3, 0x100, s{sBIT}")
        a("v_mov_b32 v250, s3")
        if w is not None: a(f"s_waitcnt vmcnt({w})")
        set_exec(a, "0xf", 0)
        a(f"buffer_atomic_or v250, v{vP1}, {sr(WS)}, 0 offen sc1")
        set_exec(a, HI, HI)
        ts("b_flag")
    FBL = opt("fbl", 0)
    if EB >= 0 and FBL == 0: flagb(0)
    def fill(sl):
        for f in pick_ops(): f()
        ldk(sl); ldv(sl)
    a(f"v_readfirstlane_b32 s{sRDY}, v15")
    a("s_nop 0")
    a(f"s_mov_b32 s{sIT}, s{sRDY}")
    a(f"s_cmp_eq_u32 s{sIT}, 0")
    a("s_cbranch_scc1 L_noearly")
    fill(0)
    a.lab("L_noearly")
    if EB >= 0 and FBL == 1: flagb(4)
    a(f"s_mov_b32 s4, {f32bits(QSCALE):#x}")
    a("s_mov_b32 s5, s4")
    for o in OT[2:]:
        for r in range(0, 10, 2):
            a(f"v_pk_mov_b32 {vr(o+r,2)}, v[30:31], v[30:31]")
    for r in range(0, 16, 2):
        a(f"v_pk_mul_f32 {vr(AQ+r,2)}, {vr(AQ+r,2)}, s[4:5]")
    Q3 = Q + 24
    for i in range(8):
        a(f"v_cvt_pk_bf16_f32 v{Q3+i}, v{AQ+2*i}, v{AQ+2*i+1}")
    a(f"s_bitcmp1_b32 s{sH}, 0")
    a("s_cselect_b32 exec_lo, -1, 0")
    a("s_mov_b32 exec_hi, 0")
    a(f"v_pk_mov_b32 {vr(Q3,2)}, v[30:31], v[30:31]")
    a("s_cselect_b32 exec_hi, 0, -1")
    a("s_mov_b32 exec_lo, 0")
    a(f"v_pk_mov_b32 {vr(Q3+6,2)}, v[30:31], v[30:31]")
    set_exec(a, HI, HI)
    a(f"ds_write_b128 v{t0}, {vr(Q3,4)} offset:2048")
    a(f"ds_write_b128 v{t0}, {vr(Q3+4,4)} offset:3072")
    a(f"s_cmp_lg_u32 s{sIT}, 0")
    a("s_cbranch_scc1 L_filled")
    fill(0)
    a.lab("L_filled")
    if FBL == 2: flagb(4)
    fill(1)
    a("s_waitcnt lgkmcnt(0)")
    ts("q_done")
    a("s_barrier")
    for i in range(3):
        a(f"ds_read_b128 {vr(Q+8*i,4)}, v{vT[1+i]} offset:2048")
        a(f"ds_read_b128 {vr(Q+8*i+4,4)}, v{vT[1+i]} offset:3072")
    zr = [o + r for o in OT[2:] for r in range(10, 16, 2)] + [KV+60, KV+62] + [o + r for o in OT[:2] for r in range(0, 16, 2)]
    for r in zr[:12]:
        a(f"v_pk_mov_b32 {vr(r,2)}, v[30:31], v[30:31]")
    if EB < 0:
        a(f"s_cmp_lt_u32 s{sH}, 7")
        a("s_cbranch_scc0 L_pubv")
        publish("K", PKB)
        a("s_branch L_pubd")
        a.lab("L_pubv")
        publish("V", PKB)
        a.lab("L_pubd")
    a(f"s_mov_b32 s{sIT}, 3")
    if EB < 0: a(f"s_add_u32 s{sBIT}, s{sBIT}, 8")
    vC = [2, 3, 4]; vCR = 5
    a("s_waitcnt vmcnt(4) lgkmcnt(0)")
    ts("kv0")
    def mS(part, t):
        slot = (t // 4) % 4; qt = t % 4
        d = vr(S[t % 2], 16)
        mfma(a, d, vr(KV+16*slot+4*part,4), vr(Q+8*qt+4*part,4), "0" if part == 0 else d)
    def mPV(part, t):
        slot = (t // 4) % 4; qt = t % 4
        d = vr(OT[qt], 16)
        mfma(a, d, vr(KV+16*slot+8+4*part,4), vr(P+4*part,4), d)
    def EC(t, g):
        s = S[t % 2] + 4*g
        for r in range(4):
            a(f"v_exp_f32 v{s+r}, v{s+r}")
        a(f"v_cvt_pk_bf16_f32 v{P+2*g}, v{s}, v{s+1}")
        a(f"v_cvt_pk_bf16_f32 v{P+2*g+1}, v{s+2}, v{s+3}")
    mS(0, 0)
    for r in zr[12:18]:
        a(f"v_pk_mov_b32 {vr(r,2)}, v[30:31], v[30:31]")
    mS(1, 0)
    fill(2)
    for f in pick_ops(): f()
    for r in zr[18:]:
        a(f"v_pk_mov_b32 {vr(r,2)}, v[30:31], v[30:31]")
    ts("att0", cyc=True)
    a.raw("; ---- phase 2: attention, 4 key tiles x 4 query tiles per trip")
    a.raw(".p2align 6")
    a.lab("L_loop")
    def tile(j, last=False):
        fs = [None] * 16
        if not last:
            fs[11] = lambda: a("s_waitcnt vmcnt(8)")
            po = pick_ops()
            if PFM:
                fs[2] = lambda: a(f"ds_read_b32 v15, v{vMk}")
                fs[4] = lambda: a("s_waitcnt lgkmcnt(0)")
                fs[5] = lambda: a(f"v_readfirstlane_b32 s{sRDY}, v15")
            for k, f in enumerate(po): fs[(6 if (PFM or LDM == 2) else 2) + k] = f
            if j == FBJ and EB < 0:
                fs[12] = lambda: a(f"s_cmp_eq_u32 s{sIT}, 3")
                def br():
                    a("s_cbranch_scc1 L_flagb")
                    a.lab("L_flagb_back")
                fs[13] = br
            if j == 2:
                fs[14] = lambda: a(f"s_sub_u32 s{sIT}, s{sIT}, 1")
        else:
            def wr(i, g):
                return lambda: a(f"ds_write_b128 v{vC[i]}, {vr(OT[i]+4*g,4)} offset:{1024*g}")
            for i in range(3):
                fs[4*(i+1) + 3] = wr(i, 0)
                if i < 2:
                    for g in range(1, 4): fs[4*(i+2) + g - 1] = wr(i, g)
        for st in range(4):
            t = 4*j + st
            f = fs[4*st:4*st+4]
            if not (last and st == 3): mS(0, t+1)
            if st == 0 and not last and LDM == 0: ldk((j + 3) % 4)
            if st == 1 and not last and LDM == 2: ldv((j + 3) % 4); ldk((j + 3) % 4)
            if f[0]: f[0]()
            EC(t, 0)
            mPV(1, (t - 1) % 16)
            if st == 0 and not last and LDM in (0, 1): ldv((j + 3) % 4)
            if st == 0 and not last and LDM == 1: ldk((j + 3) % 4)
            if f[1]: f[1]()
            EC(t, 1)
            if not (last and st == 3): mS(1, t+1)
            if f[2]: f[2]()
            EC(t, 2)
            mPV(0, t)
            if f[3]: f[3]()
            EC(t, 3)
    def tstamp(j):
        if not (TS and TSG == 2): return
        for trip in range(4):
            a(f"s_cmp_lg_u32 s{sIT}, {3 - trip - (1 if j == 3 else 0)}")
            a(f"s_cbranch_scc1 L_ts{j}_{trip}")
            ts(f"t{4*trip + j:02d}", cyc=True, grp=2)
            a.lab(f"L_ts{j}_{trip}")
    if TS and TSG == 2:
        for n in range(16):
            ts.idx[f"t{n:02d}(cyc)"] = len(ts.names); ts.names.append(f"t{n:02d}(cyc)")
    for j in range(3):
        tstamp(j); tile(j)
    a("s_cbranch_scc1 L_last")
    tstamp(3)
    tile(3)
    a("s_branch L_loop")
    a.lab("L_last")
    ts("t15", cyc=True, grp=2)
    for i in range(3):
        a(f"v_add_u32 v{vC[i]}, s{8+i}, v1")
    a(f"v_add_u32 v{vCR}, s11, v1")
    tile(3, last=True)
    a(f"ds_write_b128 v{vC[2]}, {vr(OT[2]+4,4)} offset:1024")
    a(f"ds_write_b128 v{vC[2]}, {vr(OT[2]+8,4)} offset:2048")
    mPV(1, 15)
    a(f"ds_write_b128 v{vC[2]}, {vr(OT[2]+12,4)} offset:3072")
    ts("att1", cyc=True)
    ts("t16", cyc=True, grp=2)
    ts("att1")
    a.raw("; ---- combine the four partial results")
    a(f"s_mov_b32 s4, {f32bits(2.0**62):#x}")
    a(f"s_mov_b32 s5, {f32bits(2.0**-62):#x}")
    a("s_waitcnt vmcnt(0) lgkmcnt(0)")
    a("s_barrier")
    F = OT[3]
    for i in range(3):
        for g in range(4):
            a(f"ds_read_b128 {vr(OT[i]+4*g,4)}, v{vCR} offset:{4096*i+1024*g}")
    a(f"s_lshl_b32 s3, s{sT}, 4")
    a(f"s_add_u32 s3, s3, s{sH}")
    a("s_lshl_b32 s3, s3, 11")
    a(f"s_add_u32 s3, s3, {O_OFF}")
    for i in range(3):
        a(f"s_waitcnt lgkmcnt({8-4*i})")
        for r in range(0, 16, 2):
            a(f"v_pk_add_f32 {vr(F+r,2)}, {vr(F+r,2)}, {vr(OT[i]+r,2)}")
    a.raw("; ---- softmax guard: row sums must be well inside the fp32 range, else redo with the true max")
    a(f"v_cmp_nge_f32 s[6:7], s4, v{F+12}")
    a(f"v_cmp_nle_f32 vcc, s5, v{F+12}")
    a("s_or_b64 s[6:7], s[6:7], vcc")
    a("s_cmp_lg_u32 s7, 0")
    if not NOBR: a("s_cbranch_scc1 L_fallback")
    a.lab("L_norm")
    a(f"v_mov_b32 v{t0}, v{F+12}")
    a(f"v_mov_b32 v{t1}, v{F+12}")
    a("s_nop 1")
    a(f"v_permlane32_swap_b32 v{t0}, v{t1}")
    a("s_nop 1")
    a(f"v_rcp_f32 v{t1}, v{t1}")
    set_exec(a, 0, HI)
    a(f"v_mov_b32 v{F+12}, 0")
    set_exec(a, HI, HI)
    for r in range(0, 16, 2):
        a(f"v_pk_mul_f32 {vr(F+r,2)}, {vr(F+r,2)}, {vr(t0,2)} op_sel:[0,1] op_sel_hi:[1,1]")
    PO = 232
    for i in range(8):
        a(f"v_cvt_pk_bf16_f32 v{PO+i}, v{F+2*i}, v{F+2*i+1}")
    a(f"buffer_store_dwordx4 {vr(PO,4)}, v1, {sr(WS)}, s3 offen sc1")
    a(f"buffer_store_dwordx4 {vr(PO+4,4)}, v1, {sr(WS)}, s3 offen offset:1024 sc1")
    ts("o_st")
    a.raw("; ---- phase 3: output projection")
    WOF, OF, ACC, D = 64, 192, 32, 48
    a(f"s_and_b32 s3, s{sCS4}, 1")
    a("s_lshl_b32 s3, s3, 5")
    a(f"s_mul_i32 s{sA}, s{sW}, 56")
    a(f"s_add_u32 s3, s3, s{sA}")
    a(f"v_bfe_u32 v{t0}, v0, 4, 1")
    a(f"v_lshlrev_b32 v{t0}, 5, v{t0}")
    a(f"v_and_b32 v{t1}, 3, v0")
    a(f"v_lshl_add_u32 v{t0}, v{t1}, 3, v{t0}")
    a(f"v_add_u32 v{t0}, s3, v{t0}")
    a(f"v_and_b32 v{t0}, 255, v{t0}")
    a(f"v_bfe_u32 v{t1}, v0, 2, 2")
    a(f"v_lshlrev_b32 v{t2}, 6, v{t1}")
    a(f"v_xor_b32 v{t0}, v{t0}, v{t2}")
    a(f"v_lshl_add_u32 v{t2}, v{t1}, 8, v{t0}")
    a(f"v_lshrrev_b32 v{t1}, 5, v0")
    a(f"v_lshl_add_u32 v{t0}, v{t1}, 10, v{t2}")
    a(f"v_add_u32 v{t1}, 0x10000, v{t0}")
    a(f"v_add_u32 v{t2}, 0x10000, v{t2}")
    def rdwo(hh):
        for u in range(2):
            for r in range(2):
                off = L_WO + (28*hh + 16*u + 8*r) * 256
                base = t0
                if off >= 0x10000:
                    off -= 0x10000; base = t1
                if hh == 15 and u == 1 and r == 1:
                    base = t2
                a(f"ds_read_b64_tr_b16 {vr(WOF+8*hh+4*u+2*r,2)}, v{base} offset:{off}")
    a(f"s_lshl_b32 s3, 1, s{sH}")
    a("v_mov_b32 v250, s3")
    NPRE = opt("npre", 6)
    for hh in range(NPRE): rdwo(hh)
    a("s_waitcnt vmcnt(0)")
    set_exec(a, 1, 0)
    a(f"buffer_atomic_or v250, v{vFl2}, {sr(WS)}, 0 offen sc1")
    set_exec(a, HI, HI)
    ts("o_flag")
    for hh in range(NPRE, 16): rdwo(hh)
    a(f"v_add_u32 v{t3}, {L_CMB}, v1")
    a(f"v_and_b32 v{t4}, 31, v0")
    a(f"v_mul_u32_u24 v{t4}, 896, v{t4}")
    a(f"v_lshrrev_b32 v{t5}, 5, v0")
    a(f"v_lshl_add_u32 v{t4}, v{t5}, 4, v{t4}")
    a(f"s_mul_i32 s{sKV}, s{sT3}, 28672")
    a(f"s_lshl_b32 s{sBb}, s{sCS4}, 2")
    a(f"s_add_u32 s{sBb}, s{sBb}, s{sW}")
    a(f"s_mul_i32 s{sBb}, s{sBb}, 56")
    a(f"s_add_u32 s{sKV}, s{sKV}, s{sBb}")
    a("s_barrier")
    a("s_barrier")
    ts("o_ld")
    NR, PD = 12, 10
    for f in range(PD):
        a(f"ds_read_b128 {vr(OF+4*(f%NR),4)}, v{t3} offset:{1024*f}")
    for f in range(32):
        if f + PD < 32:
            a(f"ds_read_b128 {vr(OF+4*((f+PD)%NR),4)}, v{t3} offset:{1024*(f+PD)}")
            a(f"s_waitcnt lgkmcnt({PD})")
        else:
            a(f"s_waitcnt lgkmcnt({31-f})")
        mfma(a, vr(ACC,16), vr(WOF+4*f,4), vr(OF+4*(f%NR),4), "0" if f == 0 else vr(ACC,16))
    a("s_nop 7")
    a("s_nop 3")
    for i in range(8):
        a(f"v_cvt_pk_bf16_f32 v{D+i}, v{ACC+2*i}, v{ACC+2*i+1}")
    a(f"v_permlane32_swap_b32 v{D}, v{D+2}")
    a(f"v_permlane32_swap_b32 v{D+1}, v{D+3}")
    a(f"v_permlane32_swap_b32 v{D+4}, v{D+6}")
    a(f"v_permlane32_swap_b32 v{D+5}, v{D+7}")
    a(f"buffer_store_dwordx4 {vr(D,4)}, v{t4}, {sr(OUT)}, s{sKV} offen {OSF}")
    set_exec(a, HI, 0)
    a(f"buffer_store_dwordx4 {vr(D+4,4)}, v{t4}, {sr(OUT)}, s{sKV} offen offset:32 {OSF}")
    set_exec(a, 0, HI)
    a(f"buffer_store_dwordx2 {vr(D+4,2)}, v{t4}, {sr(OUT)}, s{sKV} offen offset:32 {OSF}")
    if TS:
        a("s_waitcnt vmcnt(0)")
        ts("end")
    if TS and TSG in (0, 2): ts.dump()
    a.lab("L_end")
    a("s_endpgm")
    if EB < 0:
        a.lab("L_flagb")
        if FBJ == 0: a("s_waitcnt vmcnt(4)")
        a(f"s_lshl_b32 s3, 1, s{sBIT}")
        a("v_mov_b32 v250, s3")
        set_exec(a, "0xf", 0)
        a(f"buffer_atomic_or v250, v{vP1}, {sr(WS)}, 0 offen sc1")
        set_exec(a, HI, HI)
        a("s_branch L_flagb_back")
    for n in range(npick[0]):
        a.lab(f"L_slow{n}")
        a(f"ds_read_b32 v15, v{vMk}")
        a("s_waitcnt lgkmcnt(0)")
        a(f"v_readfirstlane_b32 s{sRDY}, v15")
        a("s_nop 0")
        a(f"s_and_b32 s{sAV}, s{sRDY}, s{sTODO}")
        a(f"s_cbranch_scc0 L_slow{n}")
        a(f"s_branch L_back{n}")
    flag_retries(a)
    a.raw("; ---- fallback: true row max (pass 1), then exp(s - max) (pass 2) over all keys")
    a.lab("L_fallback")
    srd(a, X, 14, 15, KV_BYTES)
    a(f"v_mov_b32 v{t0}, 0xff800000")
    a(f"s_mov_b32 s{sKV}, 0")
    SS = S0
    a.lab("L_fb1")
    ldk(0)
    a(f"s_add_u32 s{sKV}, s{sKV}, 0x10000")
    a("s_waitcnt vmcnt(0)")
    mfma(a, vr(SS,16), vr(KV,4), vr(Q3,4), "0")
    mfma(a, vr(SS,16), vr(KV+4,4), vr(Q3+4,4), vr(SS,16))
    a("s_nop 15")
    for r in range(0, 16, 2):
        a(f"v_max3_f32 v{t0}, v{t0}, v{SS+r}, v{SS+r+1}")
    a(f"s_cmp_lt_u32 s{sKV}, {KV_BYTES}")
    a("s_cbranch_scc1 L_fb1")
    a(f"v_mov_b32 v{t1}, v{t0}")
    a("s_nop 1")
    a(f"v_permlane32_swap_b32 v{t0}, v{t1}")
    a("s_nop 1")
    a(f"v_max_f32 v{t0}, v{t0}, v{t1}")
    for r in range(16):
        a(f"v_mov_b32 v{F+r}, 0")
    a(f"s_mov_b32 s{sKV}, 0")
    a.lab("L_fb2")
    ldk(0); ldv(0)
    a(f"s_add_u32 s{sKV}, s{sKV}, 0x10000")
    a("s_waitcnt vmcnt(0)")
    mfma(a, vr(SS,16), vr(KV,4), vr(Q3,4), "0")
    mfma(a, vr(SS,16), vr(KV+4,4), vr(Q3+4,4), vr(SS,16))
    a("s_nop 15")
    for r in range(16):
        a(f"v_sub_f32 v{SS+r}, v{SS+r}, v{t0}")
    for r in range(16):
        a(f"v_exp_f32 v{SS+r}, v{SS+r}")
    a("s_nop 0")
    for i in range(8):
        a(f"v_cvt_pk_bf16_f32 v{P+i}, v{SS+2*i}, v{SS+2*i+1}")
    a("s_nop 1")
    mfma(a, vr(F,16), vr(KV+8,4), vr(P,4), vr(F,16))
    mfma(a, vr(F,16), vr(KV+12,4), vr(P+4,4), vr(F,16))
    a(f"s_cmp_lt_u32 s{sKV}, {KV_BYTES}")
    a("s_cbranch_scc1 L_fb2")
    a("s_nop 15")
    a("s_branch L_norm")
    a.lab("L_codeend")
    if TS:
        open("stamps.txt", "w").write(",".join(ts.names))
    return name

DOC = r'''
; ---------------------------------------------------------------------------------------------------------------
;           Softmax guard: softmax is shift invariant, the fast path uses the shift 0 and CHECKS at run time that
; readers poll with returning atomics and then use sc1 loads.  Flag words are {bits, tag}; the tag comes from an
; ---------------------------------------------------------------------------------------------------------------
'''

def main():
    a = A()
    name = kernel(a)
    head = open(f"cdna_kernels/{NAME}.s.ref").read().split("; Override")[0]
    out = head
    out += f"; @launch grid=(256,1,1) block=(512,1,1) lds={LDS_BYTES}\n"
    out += '.amdgcn_target "amdgcn-amd-amdhsa--gfx950"\n' + DOC.lstrip("\n") + '.text\n'
    out += a.text()
    out += f""".section .rodata,"a"
.p2align 6
.amdhsa_kernel {name}
  .amdhsa_next_free_vgpr 256
  .amdhsa_next_free_sgpr 102
  .amdhsa_accum_offset 256
  .amdhsa_group_segment_fixed_size 0
  .amdhsa_kernarg_size 48
  .amdhsa_user_sgpr_count 2
  .amdhsa_user_sgpr_kernarg_segment_ptr 1
  .amdhsa_system_sgpr_workgroup_id_x 1
.end_amdhsa_kernel
"""
    o = [x for x in sys.argv[1:] if not x.startswith("--")]
    path = o[0] if o else f"cdna_kernels/{NAME}.s"
    open(path, "w").write(out)
main()
```

```python
import sys, struct, math

NAME = "standalone__softmax_full_mha__prompt"
FL_OFF = 5 << 20
EP_OFF = 0xff00
O_OFF = 6 << 20
TS_OFF = 8 << 20
WS_BYTES = 12 << 20
X_BYTES = 2048 * 448 * 2
W_BYTES = 448 * 1344 * 2
WO_BYTES = 448 * 448 * 2
OUT_BYTES = 2048 * 448 * 2
KV_BYTES = 4 << 20
V_BASE = 28672
V_CT = 640
V_PLANE = 14 * V_CT
QSCALE = 28 ** -0.5 * math.log2(math.e)

def opt(name, default):
    for arg in sys.argv:
        if arg.startswith(f"--{name}="):
            return int(arg.split("=")[1])
    return default
TS = "--ts" in sys.argv
TSG = opt("tsg", 0)
MAP = opt("maph", 3)
FSH = opt("fsh", 8)
SLEEP = opt("sleep", 0)
LA = opt("la", 3)
FA = opt("fa", 2)
BAL = opt("bal", 1)
SPF = opt("spf", 1)
ROT = opt("rot", 0)
NBF = opt("nbf", 0)
SL2 = opt("sl2", 0)
SKEW = opt("skew", 1)
PFM = opt("pfm", 0)
PIS = opt("pis", 12)
FBJ = opt("fbj", 1)
WROT = opt("wrot", 1)
WSL = opt("wsl", 3)
THR = opt("thr", 0)
CPF = opt("cpf", 0)
LDM = opt("ldm", 0)
NOBR = opt("nobr", 0)
WPACE = opt("wpace", 2)
PH = opt("ph", 1)
AL3 = opt("al3", 1)
PADE = opt("pade", 0)
EB = opt("eb", 6)
PDA = opt("pda", 0)
PDB = opt("pdb", 3)
VPF = opt("vpf", -1)
SCP = opt("scp", 0)
SCW = opt("scw", 0)
OSF = ["", "sc1", "nt", "sc0 sc1", "sc1 nt"][opt("osf", 0)]
NOFL = 512

def f32bits(x):
    return struct.unpack("<I", struct.pack("<f", x))[0]

class A:
    def __init__(self):
        self.l = []
    def __call__(self, s):
        for line in s.strip("\n").split("\n"):
            self.l.append("    " + line.strip())
    def lab(self, n):
        self.l.append(n + ":")
    def raw(self, s):
        self.l.append(s)
    def text(self):
        return "\n".join(self.l) + "\n"

def vr(b, n, k="v"):
    return f"{k}[{b}:{b+n-1}]"
def sr(b):
    return f"s[{b}:{b+3}]"

def srd(a, d, lo, hi, nbytes):
    a(f"s_mov_b32 s{d}, s{lo}")
    a(f"s_and_b32 s{d+1}, s{hi}, 0xffff")
    a(f"s_mov_b32 s{d+2}, {nbytes}")
    a(f"s_mov_b32 s{d+3}, 0x20000")

HI = "0xffffffff"
def set_exec(a, lo, hi):
    if lo == HI and hi == HI:
        a("s_mov_b64 exec, -1")
    elif hi == 0 and lo in (1, "0xf", "0x1f"):
        a(f"s_mov_b64 exec, {int(str(lo), 0)}")
    else:
        a(f"s_mov_b32 exec_lo, {lo}")
        a(f"s_mov_b32 exec_hi, {hi}")

class Stamps:
    def __init__(self, a):
        self.a = a; self.idx = {}; self.names = []
    def __call__(self, name, cyc=False, grp=0):
        if not TS: return
        if name != "start" and grp != TSG: return
        nm = name + ("(cyc)" if cyc else "")
        if nm not in self.idx:
            self.idx[nm] = len(self.names); self.names.append(nm)
        b = 66 + 2 * self.idx[nm]
        assert b + 1 < 102
        self.a(f"s_memtime s[{b}:{b+1}]" if cyc else f"s_memrealtime s[{b}:{b+1}]")
    def dump(self):
        if not TS: return
        a = self.a
        sp = [x for x in sys.argv if x.startswith("--spin=")]
        if sp:
            hi, lo, m = sp[0][7:].split(",")
            a("s_waitcnt lgkmcnt(0)")
            if lo == "G":
                a("v_mov_b32 v2, 0")
                a(f"buffer_load_dword v4, v2, {sr(DBG)}, 0 offen offset:192 sc1")
                a("s_waitcnt vmcnt(0)")
                a("v_readfirstlane_b32 s4, v4")
                a("s_nop 0")
                a("s_not_b32 s4, s4")
                a(f"s_sub_u32 s3, s{66+2*self.idx[hi]}, s4")
            else:
                a(f"s_sub_u32 s3, s{66+2*self.idx[hi]}, s{66+2*self.idx[lo]}")
            only = opt("only", -1)
            if only >= 0:
                a("s_and_b32 s4, s2, 7")
                a(f"s_cmp_eq_u32 s4, {only}")
                a("s_cselect_b32 s3, s3, 0")
            a(f"s_mul_i32 s3, s3, {m}")
            if opt("fix", 0): a(f"s_mov_b32 s3, {opt('fix', 0)}")
            if opt("rep", -1) >= 0:
                a("s_not_b32 s4, s64")
                a("s_cmp_eq_u32 s4, s65")
                a("s_cselect_b32 s3, s3, 0" if opt("rep", -1) == 1 else "s_cselect_b32 s3, 0, s3")
            if opt("pat", -1) >= 0:
                a("s_cmp_eq_u32 s64, s65")
                a("s_cselect_b32 s3, s3, 0" if opt("pat", -1) == 1 else "s_cselect_b32 s3, 0, s3")
            a(f"s_add_u32 s3, s3, s{66+2*self.idx['end' if TSG == 0 else 'h_stage']}")
            a.lab("L_spin")
            a("s_memrealtime s[4:5]")
            a("s_waitcnt lgkmcnt(0)")
            a("s_sub_u32 s4, s4, s3")
            a("s_cmp_lt_i32 s4, 0")
            a("s_cbranch_scc1 L_spin")
            return
        if "--dbg" in sys.argv:
            sel = ["start", "start", "c0", "kv_mm", "b7", "q_done", "kv0", "att1", "o_flag", "o_ld", "end"]
            a("s_waitcnt lgkmcnt(0)")
            a(f"s_cmp_lg_u32 s{sW}, 0")
            a("s_cbranch_scc1 L_end")
            a("s_mov_b64 exec, 1")
            a("v_mov_b32 v2, 0")
            for i, nm in enumerate(sel):
                a(f"v_mov_b32 v4, s{66+2*self.idx[nm]}")
                if i == 0: a("v_not_b32 v4, v4")
                a(f"buffer_atomic_umax v4, v2, {sr(DBG)}, 0 offen offset:{8+4*i} sc1")
                a("s_nop 1")
            for i, nm in enumerate(["end", "kv0", "c0"]):
                a(f"s_sub_u32 s3, s{66+2*self.idx[nm]}, s66")
                a("v_mov_b32 v4, s3")
                a(f"buffer_atomic_umax v4, v2, {sr(DBG)}, 0 offen offset:{52+4*i} sc1")
                a("s_nop 1")
            a("s_waitcnt vmcnt(0)")
            return
        a("s_waitcnt lgkmcnt(0)")
        a(f"s_lshl_b32 s3, s2, 2")
        a(f"s_add_u32 s3, s3, s{sW}")
        a(f"s_lshl_b32 s3, s3, 7")
        a(f"s_add_u32 s3, s3, {TS_OFF}")
        a("s_mov_b64 exec, 1")
        a("v_mov_b32 v2, 0")
        for i in range(18):
            a(f"v_mov_b32 v4, s{66+2*i}")
            a(f"buffer_store_dword v4, v2, {sr(WS)}, s3 offen offset:{4*i}")
            a("s_nop 1")
        a("s_waitcnt vmcnt(0)")

X, W, WO, OUT, DBG, WS, KVS = 16, 20, 24, 28, 32, 36, 40
WQS = KVS
sH, sB, sW, sT = 44, 45, 46, 47
sKC, sXB, sWB, sWM = 48, 49, 50, 52
sRDY, sTODO, sAV, sS0, sS1 = 48, 49, 50, 51, 52
sA, sBb = 53, 54
sKV, sIT, sWQ, sWoS, sCNT = 55, 56, 57, 58, 59
sBIT, sTAG = 60, 61
sKQ = 51
sT3, sCS4 = 62, 63
sROT = 57
L_XA, L_WB, L_WQ = 0, 57344, 114688
L_WO, L_CMB = 0, 114688
LDS_BYTES = 163840
vXA = [2, 3, 4, 5]
vXO = [6, 7, 8, 9]
vWR, vQR, vP1, vFl2, vMk = 10, 11, 12, 13, 14
vKo, vV0, vV1, vPad = 16, 17, 18, 19
vT = [20, 21, 22, 23, 24, 25]
PADC = 26
AK, AQ, WFK, BUF, PKA, PKB = 32, 48, 64, 176, 224, 232
KV, Q, S0, P = 64, 128, 160, 240
OT = [32, 48, 192, 208]
S = [S0, S0 + 16]

def decode_hb(a):
    nhg = 16 >> MAP
    lg = int(math.log2(nhg))
    a(f"s_and_b32 s{sH}, s2, {nhg-1}")
    a(f"s_lshl_b32 s{sH}, s{sH}, {MAP}")
    a(f"s_lshr_b32 s3, s2, 3")
    a(f"s_and_b32 s{sB}, s3, {(1<<MAP)-1}")
    a(f"s_add_u32 s{sH}, s{sH}, s{sB}")
    a(f"s_lshr_b32 s3, s3, {MAP}")
    a(f"s_and_b32 s{sB}, s2, 7")
    a(f"s_lshr_b32 s{sB}, s{sB}, {lg}")
    a(f"s_mul_i32 s{sB}, s{sB}, {32>>MAP}")
    a(f"s_add_u32 s{sB}, s{sB}, s3")
    if BAL:
        a(f"s_lshr_b32 s3, s{sH}, 3")
        a(f"s_sub_u32 s{sBb}, s{sH}, s3")
        a("s_add_u32 s3, s3, 14")
        a(f"s_and_b32 s{sH}, s{sH}, 7")
        a(f"s_cmp_eq_u32 s{sH}, 7")
        a(f"s_cselect_b32 s{sH}, s3, s{sBb}")

def mfma(a, d, x, y, c):
    a(f"v_mfma_f32_32x32x16_bf16 {d}, {x}, {y}, {c}")

vR = 252
def flag_read(a, vaddr, off=0):
    a(f"v_mov_b32 v{vR}, 0")
    a(f"v_mov_b32 v{vR+1}, 0")
    a(f"buffer_atomic_or_x2 v[{vR}:{vR+1}], v{vaddr}, {sr(WS)}, 0 offen offset:{off} sc0 sc1")

def flag_bits(a):
    a(f"v_cmp_eq_u32 vcc, s{sTAG}, v{vR+1}")
    a("s_nop 1")
    a(f"v_cndmask_b32 v{vR}, 0, v{vR}, vcc")

def poll(a, label, vaddr, lo, hi, smask, off=0):
    a(f"s_mov_b32 s{sCNT}, 0x100000")
    set_exec(a, lo, hi)
    a(f"s_branch {label}_in")
    a.lab(label)
    if SLEEP: a(f"s_sleep {SLEEP}")
    a.lab(label + "_in")
    flag_read(a, vaddr, off)
    a(f"s_sub_u32 s{sCNT}, s{sCNT}, 1")
    a(f"s_cbranch_scc1 {label}_done")
    a("s_waitcnt vmcnt(0)")
    flag_bits(a)
    a(f"v_and_b32 v{vR}, {smask}, v{vR}")
    a(f"v_cmp_ne_u32 vcc, {smask}, v{vR}")
    a(f"s_cbranch_vccnz {label}")
    a.lab(label + "_done")
    set_exec(a, HI, HI)

def flag_set(a, vaddr, sbit, lo):
    a(f"s_lshl_b32 s3, 1, s{sbit}")
    a("v_mov_b32 v250, s3")
    a("v_mov_b32 v251, 0")
    a("v_writelane_b32 v250, 0, 4")
    set_exec(a, lo, 0)
    a(f"buffer_atomic_or_x2 v[250:251], v{vaddr}, {sr(WS)}, 0 offen sc0 sc1")
    set_exec(a, HI, HI)

def flag_check(a, label, vaddr, sbit, lo, wait):
    a(f"s_mov_b32 s{sCNT}, 0x100000")
    a(f"s_waitcnt vmcnt({wait})")
    a.lab(label)
    set_exec(a, lo, 0)
    a(f"v_cmp_ne_u32 vcc, s{sTAG}, v251")
    set_exec(a, HI, HI)
    a(f"s_cbranch_vccnz {label}_again")
    a.lab(label + "_ok")
    RETRY.append((label, vaddr, sbit, lo))
RETRY = []
def flag_retries(a):
    for label, vaddr, sbit, lo in RETRY:
        a.lab(label + "_again")
        a(f"s_sub_u32 s{sCNT}, s{sCNT}, 1")
        a(f"s_cbranch_scc1 {label}_ok")
        flag_set(a, vaddr, sbit, lo)
        a("s_waitcnt vmcnt(0)")
        a(f"s_branch {label}")

def kv_poll_addr(a, vd, t0):
    a(f"s_mul_i32 s4, s{sH}, 56")
    a("s_and_b32 s5, s4, 0xfffffff0")
    a(f"v_mov_b32 v{t0}, s5")
    a("s_add_u32 s5, s5, 62")
    a(f"v_writelane_b32 v{t0}, s5, 1")
    a("s_add_u32 s5, s4, 896")
    a(f"v_writelane_b32 v{t0}, s5, 2")
    a("s_add_u32 s5, s4, 950")
    a(f"v_writelane_b32 v{t0}, s5, 3")
    a(f"v_lshrrev_b32 v{t0}, 6, v{t0}")
    a(f"v_lshlrev_b32 v{t0}, {FSH+4}, v{t0}")
    a(f"s_and_b32 s3, s{sH}, 3")
    a(f"s_lshl2_add_u32 s3, s3, s{sW}")
    a(f"s_lshl_b32 s3, s3, {FSH}")
    a(f"s_add_u32 s3, s3, {FL_OFF}")
    a(f"v_add_u32 v{vd}, s3, v{t0}")

def mask_addr(a, vd):
    a(f"s_lshl_b32 s3, s{sW}, 12")
    a(f"s_sub_u32 s3, {L_CMB + 45056}, s3")
    a(f"v_mov_b32 v{vd}, s3")

def helper(a, ts):
    vX0, vX1, vW0, vW1, vWq = 2, 3, 6, 7, 8
    vZ, vP, vM, vWo = 9, 11, 12, 13
    a.raw("; ---- helper waves: LDS-DMA of x / weights, flag polling, Wo staging, O gathering")
    a("v_lshrrev_b32 v7, 3, v0")
    a("v_mul_u32_u24 v2, 896, v7")
    a("v_and_b32 v6, 7, v0")
    a("v_lshrrev_b32 v4, 4, v0")
    a("v_xor_b32 v3, v6, v4")
    a("v_lshl_add_u32 v2, v3, 4, v2")
    a("v_xor_b32 v3, 64, v2")
    a("v_add_u32 v3, 6144, v3")
    a("v_and_b32 v4, 1, v4")
    a("v_lshlrev_b32 v4, 2, v4")
    a("v_xor_b32 v6, v6, v4")
    a("v_mul_u32_u24 v7, 2688, v7")
    a(f"v_lshl_add_u32 v{vW0}, v6, 4, v7")
    a(f"v_add_u32 v{vW1}, {8*2688-1024}, v{vW0}")
    a(f"s_lshl3_add_u32 s{sXB}, s{sB}, s{sW}")
    a(f"s_mul_i32 s{sXB}, s{sXB}, {16*896}")
    a(f"s_mul_i32 s{sWQ}, s{sW}, 43008")
    a(f"s_lshl_b32 s{sWB}, s{sH}, 7")
    a(f"s_add_u32 s{sWB}, s{sWB}, s{sWQ}")
    a(f"s_add_u32 s{sWB}, s{sWB}, 896")
    a(f"s_mov_b32 s{sWoS}, {64*896}")
    if SPF:
        a(f"s_cmp_lt_u32 s{sH}, 14")
        a("s_cbranch_scc1 L_nspare")
        if SPF in (1, 3, 4):
            a(f"s_add_u32 s{sXB}, s{sXB}, {64*896}")
            a(f"s_mov_b32 s{sWoS}, {-64*896}")
        if SPF in (1, 3, 4):
            a(f"s_and_b32 s3, s{sH}, 1")
            a("s_mul_i32 s3, s3, 3")
            a(f"s_and_b32 s{sWB}, s{sB}, 3")
            a(f"s_add_u32 s{sWB}, s{sWB}, s3")
            a(f"s_lshl_b32 s{sWB}, s{sWB}, 7")
            a(f"s_add_u32 s{sWB}, s{sWB}, s{sWQ}")
        else:
            a(f"s_add_u32 s{sWB}, s{sWQ}, 768")
        a.lab("L_nspare")
    a(f"s_lshl_b32 s{sWM}, s{sW}, 11")
    a(f"s_lshl1_add_u32 s3, s{sB}, s{sH}")
    a(f"s_mul_i32 s{sA}, s3, 37")
    a(f"s_lshr_b32 s{sA}, s{sA}, 8")
    a(f"s_mul_i32 s{sA}, s{sA}, 7")
    a(f"s_sub_u32 s{sKC}, s3, s{sA}")
    a(f"s_mov_b32 s{X+2}, {X_BYTES}")
    a(f"s_mov_b32 s{X+3}, 0x20000")
    if SPF in (1, 2):
        a(f"s_mov_b32 s{W+2}, {W_BYTES}")
    else:
        a(f"s_cmp_lt_u32 s{sH}, 14")
        a(f"s_cselect_b32 s{W+2}, {W_BYTES}, 0")
    a(f"s_mov_b32 s{W+3}, 0x20000")
    a("s_waitcnt lgkmcnt(0)")
    a(f"s_load_dword s{sTAG}, s[14:15], {EP_OFF}")
    a(f"s_mov_b32 s{X}, s4")
    a(f"s_and_b32 s{X+1}, s5, 0xffff")
    a(f"s_mov_b32 s{W}, s6")
    a(f"s_and_b32 s{W+1}, s7, 0xffff")
    def adv(r):
        a(f"s_add_u32 s{r}, s{r}, 1")
        a(f"s_cmp_eq_u32 s{r}, 7")
        a(f"s_cselect_b32 s{r}, 0, s{r}")
    def issue(u):
        kind, c = u[0], int(u[1])
        if kind == "A":
            if SPF == 4 and c == opt("spw", 4): a(f"s_mov_b32 s{W+2}, {W_BYTES}")
            a(f"s_mul_i32 s{sBb}, s{sKC}, 172032")
            a(f"s_add_u32 m0, s{sWM}, {L_WB + c*8192}")
            a(f"s_add_u32 s{sBb}, s{sBb}, s{sWB}")
            a(f"buffer_load_dwordx4 v{vW0}, {sr(W)}, s{sBb} offen lds")
            a(f"buffer_load_dwordx4 v{vW1}, {sr(W)}, s{sBb} offen offset:1024 lds")
        if kind == "Q":
            a(f"s_mul_i32 s{sBb}, s{sKQ}, 172032")
            a(f"s_add_u32 m0, s{sIT}, {L_WQ + c*4096}")
            a(f"s_add_u32 s{sBb}, s{sBb}, s{sWQ}")
            a(f"buffer_load_dwordx4 v{vWq}, {sr(WQS)}, s{sBb} offen lds")
            adv(sKQ)
            return [u]
        if u == "B0": a(f"s_add_u32 s{sXB}, s{sXB}, s{sWoS}")
        a(f"s_lshl_b32 s{sA}, s{sKC}, 7")
        a(f"s_add_u32 m0, s{sWM}, {(L_XA if kind == 'A' else L_WB) + c*8192}")
        a(f"s_add_u32 s{sA}, s{sA}, s{sXB}")
        a(f"buffer_load_dwordx4 v{vX0}, {sr(X)}, s{sA} offen lds")
        a(f"buffer_load_dwordx4 v{vX1}, {sr(X)}, s{sA} offen offset:1024 lds")
        adv(sKC)
        return [u] * (4 if kind == "A" else 2)
    a(f"s_mov_b32 s{sKQ}, s{sKC}")
    order = []
    MPF = opt("mpf", -1)
    def touch():
        a(f"s_cmp_ge_u32 s{sW}, 2")
        a("s_cbranch_scc1 L_td")
        a(f"s_cmp_eq_u32 s{sW}, 1")
        a("s_cbranch_scc1 L_tw")
        a(f"s_lshl_b32 s3, s{sB}, 5")
        a(f"s_add_u32 s3, s3, s{sH}")
        a("s_add_u32 s3, s3, 16")
        a("s_mul_i32 s3, s3, 3584")
        a("v_lshlrev_b32 v20, 7, v0")
        set_exec(a, "0x0fffffff", 0)
        a(f"buffer_load_dword v21, v20, {sr(X)}, s3 offen")
        a("s_branch L_td")
        a.lab("L_tw")
        a("s_mul_i32 s3, s2, 5376")
        a("v_lshrrev_b32 v20, 3, v0")
        a("v_mul_u32_u24 v20, 2688, v20")
        a("v_and_b32 v21, 7, v0")
        a("v_lshl_add_u32 v20, v21, 7, v20")
        set_exec(a, "0x7f7f", 0)
        a(f"buffer_load_dword v21, v20, {sr(W)}, s3 offen")
        a.lab("L_td")
        set_exec(a, HI, HI)
    for i, u in enumerate(("A0", "A1", "A2")):
        if MPF == i: touch()
        order += issue(u)
    ts("h_iss", grp=1)
    srd(a, WS, 14, 15, WS_BYTES)
    srd(a, WO, 8, 9, WO_BYTES)
    srd(a, WQS, 6, 7, W_BYTES)
    a("v_lshlrev_b32 v1, 4, v0")
    a("v_and_b32 v15, 3, v0")
    a(f"v_lshrrev_b32 v{vWq}, 2, v0")
    a(f"v_mul_u32_u24 v{vWq}, 2688, v{vWq}")
    a(f"v_lshl_add_u32 v{vWq}, v15, 4, v{vWq}")
    a(f"s_mul_i32 s3, s{sH}, 56")
    a("s_and_b32 s3, s3, 0xfffffff0")
    a(f"s_add_u32 s{sWQ}, s{sWQ}, s3")
    a(f"s_lshr_b32 s{sIT}, s{sWM}, 1")
    a(f"v_mov_b32 v{vZ}, 0")
    kv_poll_addr(a, vP, 16)
    mask_addr(a, vM)
    a(f"ds_write_b32 v{vM}, v{vZ}")
    a(f"s_lshr_b32 s3, s{sB}, 2")
    a(f"s_lshl1_add_u32 s3, s{sB}, s3")
    a(f"s_and_b32 s64, s3, 7")
    def poll_issue():
        set_exec(a, "0xf", 0)
        flag_read(a, vP)
        set_exec(a, HI, HI)
    def poll_take():
        a("s_waitcnt vmcnt(0)")
        flag_bits(a)
        a("s_nop 0")
        for i in range(4):
            a(f"v_readlane_b32 s{4+i}, v{vR}, {i}")
        a("s_and_b32 s4, s4, s5")
        a("s_and_b32 s6, s6, s7")
        a("s_and_b32 s4, s4, s6")
        if ROT:
            a("s_and_b32 s5, s4, 0xff")
            a("s_and_b32 s6, s4, 0xff00")
            a("s_lshl_b32 s6, s6, 8")
            a("s_or_b32 s5, s5, s6")
            a("s_lshl_b32 s6, s5, 8")
            a("s_or_b32 s5, s5, s6")
            a("s_lshr_b32 s5, s5, s64")
            a("s_and_b32 s4, s5, 0xff")
            a("s_lshr_b32 s5, s5, 8")
            a("s_and_b32 s5, s5, 0xff00")
            a("s_or_b32 s4, s4, s5")
        a("s_cmp_eq_u32 s4, 0xffff")
        a("s_cselect_b32 s4, 0x7ffff, s4")
        a("v_mov_b32 v15, s4")
        a(f"ds_write_b32 v{vM}, v15")
    PLANS = {
      0: [(["A3"], "A0"), (["A4"], "A1"), (["A5"], "A2"), (["A6"], "A3"), (["B0", "B1"], "A4"), (["B2", "B3"], "A5"), (["B4"], "A6"),
          (["B5"], "B1"), (["B6", "Q0", "Q1"], "B3"), (["Q2", "Q3"], "B5"), (["Q4", "Q5", "Q6"], "Q1"), ([], "Q3"), (["P"], "Q5"), ([], "Q6")],
      1: [(["A3"], "A0"), (["A4"], "A1"), (["A5"], "A2"), (["A6"], "A3"), (["B0", "B1"], "A4"), (["B2", "B3"], "A5"), (["B4", "Q0"], "A6"),
          (["B5", "Q1"], "B1"), (["B6", "Q2", "Q3"], "B3"), (["Q4", "Q5"], "B5"), (["Q6"], "B6"), ([], "Q3"), (["P"], "Q5"), ([], "Q6")],
      3: [(["A3"], "A0"), (["A4"], "A1"), (["A5"], "A2"), (["A6"], "A3"), (["B0", "B1"], "A4"), (["B2", "B3"], "A5"), (["B4"], "A6"),
          (["B5"], "B1"), (["B6", "Q0", "Q1"], "B3"), (["Q2", "Q3", "Q4"], "B5"), (["Q5", "Q6"], "Q1"), (["P"], "Q3"), ([], "Q5"), ([], "Q6")],
      4: [(["A3"], "A0"), (["A4"], "A1"), (["A5"], "A2"), (["A6"], "A3"), (["B0", "B1"], "A4"), (["B2", "B3"], "A5"), (["B4"], "A6"),
          (["B5"], "B1"), (["B6", "Q0", "Q1", "Q2", "Q3"], "B3"), (["Q4", "Q5", "Q6"], "B5"), ([], "Q1"), (["P"], "Q3"), ([], "Q5"), ([], "Q6")],
      5: [(["A3"], "A0"), (["A4"], "A1"), (["A5"], "A2"), (["A6"], "A3"), (["B0", "B1"], "A4"), (["B2", "B3"], "A5"), (["B4"], "A6"),
          (["B5"], "B1"), (["B6"], "B3"), ([], "B5"), (["Q0", "Q1", "Q2", "Q3", "Q4", "Q5", "Q6"], "Q1"), (["P"], "Q3"), ([], "Q5"), ([], "Q6")],
      6: [(["A3"], "A0"), (["A4"], "A1"), (["A5"], "A2"), (["A6"], "A3"), (["Q0", "B0"], "A4"), (["Q1", "B1", "B2"], "A5"), (["Q2", "B3"], "A6"),
          ([], "B1"), (["B4", "B5", "B6", "Q3"], "B3"), (["Q4", "Q5", "Q6"], "B5"), ([], "B6"), (["P"], "Q3"), ([], "Q5"), ([], "Q6")],
      2: [(["A3"], "A0"), (["A4"], "A1"), (["A5"], "A2"), (["A6"], "A3"), (["B0"], "A4"), (["B1", "B2"], "A5"), (["B3"], "A6"),
          ([], "B1"), (["B4", "B5", "B6", "Q0", "Q1"], "B3"), (["Q2", "Q3"], "B5"), (["Q4", "Q5", "Q6"], "Q1"), ([], "Q3"), (["P"], "Q5"), ([], "Q6")],
    }
    for n, (us, need) in enumerate(PLANS[opt("plan", 3)]):
        for u in us:
            if u == "P":
                a("s_waitcnt lgkmcnt(0)")
                a(f"s_xor_b32 s{sTAG}, s{sTAG}, 0x5ac3a53c")
                poll_issue(); order.append(u)
            else:
                order += issue(u)
        if n == 6: a("s_waitcnt lgkmcnt(0)")
        last = max(i for i, x in enumerate(order) if x == need)
        a(f"s_waitcnt vmcnt({len(order) - 1 - last})")
        if n in (0, 3, 6, 7, 10, 13): ts(f"w{n}", grp=1)
        a("s_barrier")
    if SCW:
        a("s_lshr_b32 s3, s2, 3")
        a(f"s_lshl2_add_u32 s3, s3, s{sW}")
        a("s_mul_i32 s3, s3, 3136")
        a("s_and_b32 s3, s3, 0xffffff80")
        a("s_add_u32 s8, s8, s3")
        a("s_addc_u32 s9, s9, 0")
        for i in range(25):
            a(f"s_load_dword s10, s[8:9], {128*i}")
    a(f"s_mov_b32 s{sCNT}, 0x100000")
    a.raw("; ---- helper: poll the K/V flag words, pass the list of published key tiles through LDS")
    a(f"s_mov_b32 s{sIT}, 0")
    a("s_branch L_hpoll_in")
    a.lab("L_hpoll")
    a(f"s_sub_u32 s{sCNT}, s{sCNT}, 1")
    a("s_cbranch_scc1 L_hpoll_giveup")
    poll_issue()
    a.lab("L_hpoll_in")
    poll_take()
    a("s_cmp_eq_u32 s4, 0x7ffff")
    a("s_cbranch_scc1 L_hpoll_done")
    a("s_bcnt1_i32_b32 s5, s4")
    a("s_cmp_lt_u32 s5, 2")
    a(f"s_cselect_b32 s5, 1, s{sIT}")
    a("s_cmp_lg_u32 s5, 0")
    a("s_cbranch_scc1 L_hnob8")
    a("s_barrier")
    a(f"s_mov_b32 s{sIT}, 1")
    a.lab("L_hnob8")
    if SLEEP: a(f"s_sleep {SLEEP}")
    if SL2:
        a(f"s_cmp_eq_u32 s{sIT}, 0")
        a("s_cbranch_scc1 L_hpoll")
        a(f"s_sleep {SL2}")
    a("s_branch L_hpoll")
    a.lab("L_hpoll_giveup")
    a("v_mov_b32 v15, 0x7ffff")
    a(f"ds_write_b32 v{vM}, v15")
    a.lab("L_hpoll_done")
    a(f"s_cmp_lg_u32 s{sIT}, 0")
    a("s_cbranch_scc1 L_hb8done")
    a("s_barrier")
    a.lab("L_hb8done")
    ts("h_all", grp=1)
    a(f"s_or_b32 s3, s2, s{sW}")
    a("s_cmp_lg_u32 s3, 0")
    a("s_cbranch_scc1 L_noep")
    a("v_lshrrev_b32 v16, 2, v0")
    a("v_and_b32 v17, 3, v0")
    a("v_lshl_add_u32 v16, v16, 4, v17")
    a(f"v_lshlrev_b32 v16, {FSH}, v16")
    a(f"v_add_u32 v16, {FL_OFF}, v16")
    poll(a, "L_pollep0", 16, HI, HI, "0xff")
    a(f"v_add_u32 v16, {256 << FSH}, v16")
    poll(a, "L_pollep1", 16, HI, HI, "0xff")
    a(f"s_xor_b32 s3, s{sTAG}, 0x5ac3a53c")
    a("s_add_u32 s3, s3, 0x9e3779b9")
    a("v_mov_b32 v17, s3")
    a(f"v_mov_b32 v16, {EP_OFF}")
    set_exec(a, 1, 0)
    a(f"buffer_store_dword v17, v16, {sr(WS)}, 0 offen sc1")
    if opt("rep", -1) >= 0:
        a("v_not_b32 v18, v17")
        a(f"buffer_store_dword v18, v16, {sr(WS)}, 0 offen offset:4 sc1")
    set_exec(a, HI, HI)
    a("s_nop 0")
    a.lab("L_noep")
    a.raw("; ---- helper: Wo window -> LDS")
    a("v_lshrrev_b32 v16, 4, v0")
    a(f"v_mul_u32_u24 v{vWo}, 896, v16")
    a("v_lshlrev_b32 v16, 2, v16")
    a("v_and_b32 v17, 15, v0")
    a("v_xor_b32 v16, v16, v17")
    a(f"v_lshl_add_u32 v{vWo}, v16, 4, v{vWo}")
    if AL3:
        a(f"s_lshl_b32 s{sWoS}, s{sCS4}, 8")
    else:
        a(f"s_mul_i32 s{sWoS}, s{sCS4}, 224")
        a(f"s_and_b32 s{sWoS}, s{sWoS}, 0xffffffc0")
    a(f"s_mul_i32 s3, s{sW}, {28*3584}")
    a(f"s_add_u32 s{sWoS}, s{sWoS}, s3")
    a(f"s_mul_i32 s{sWM}, s{sW}, {28*1024}")
    if WROT:
        a(f"s_and_b32 s{sKC}, s{sT3}, 15")
        a(f"s_mul_i32 s{sKC}, s{sKC}, 7")
        a(f"s_lshr_b32 s{sKC}, s{sKC}, 2")
    else:
        a(f"s_mov_b32 s{sKC}, 0")
    a(f"s_mov_b32 s{sIT}, 28")
    a.lab("L_wo")
    a(f"s_lshl_b32 s3, s{sKC}, 10")
    a(f"s_add_u32 m0, s3, s{sWM}")
    a(f"s_mul_i32 s3, s{sKC}, 3584")
    a(f"s_add_u32 s3, s3, s{sWoS}")
    a(f"buffer_load_dwordx4 v{vWo}, {sr(WO)}, s3 offen lds")
    if WPACE >= 0: a(f"s_waitcnt vmcnt({WPACE})")
    else: a(f"s_sleep {WSL}")
    a(f"s_add_u32 s{sKC}, s{sKC}, 1")
    a(f"s_cmp_eq_u32 s{sKC}, 28")
    a(f"s_cselect_b32 s{sKC}, 0, s{sKC}")
    a(f"s_sub_u32 s{sIT}, s{sIT}, 1")
    a(f"s_cmp_lg_u32 s{sIT}, 0")
    a("s_cbranch_scc1 L_wo")
    a(f"s_lshl_b32 s3, s{sT3}, {FSH}")
    a(f"s_add_u32 s3, s3, {FL_OFF + (NOFL << FSH)}")
    a(f"v_mov_b32 v{vP}, s3")
    a(f"s_lshl_b32 s4, s{sW}, 2")
    a("s_lshl_b32 s4, 15, s4")
    a(f"s_lshl_b32 s3, s{sT3}, 2")
    a(f"s_add_u32 s3, s3, s{sW}")
    a("s_lshl_b32 s3, s3, 13")
    a(f"s_add_u32 s3, s3, {O_OFF}")
    a(f"s_add_u32 s{sA}, s3, 4096")
    a(f"s_lshl_b32 s{sBb}, s{sW}, 13")
    a(f"s_add_u32 s{sBb}, s{sBb}, {L_CMB}")
    a(f"v_add_u32 v{vM}, s{sBb}, v1")
    a("s_waitcnt vmcnt(0) lgkmcnt(0)")
    ts("h_wo", grp=1)
    a("s_barrier")
    if not PH:
        poll(a, "L_poll2", vP, 1, 0, "s4")
        ts("h_poll2", grp=1)
        for f in range(8):
            a(f"buffer_load_dwordx4 {vr(32+4*f,4)}, v1, {sr(WS)}, {'s3' if f < 4 else 's%d' % sA} offen offset:{1024*(f%4)} sc1")
        a("s_barrier")
        for f in range(8):
            a(f"s_waitcnt vmcnt({7-f})")
            a(f"ds_write_b128 v{vM}, {vr(32+4*f,4)} offset:{1024*f}")
    else:
        a.raw("; ---- helper: gather the O tiles of four heads, stage them in LDS")
        sSH, sHAVE, sNEW = sKC, sWM, sWQ
        a(f"s_lshl_b32 s{sSH}, s{sW}, 2")
        a(f"s_mov_b32 s{sHAVE}, 0")
        a(f"s_mov_b32 s{sCNT}, 0x100000")
        a.lab("L_og")
        set_exec(a, 1, 0)
        flag_read(a, vP)
        set_exec(a, HI, HI)
        a("s_waitcnt vmcnt(0)")
        a(f"v_readfirstlane_b32 s4, v{vR}")
        a(f"v_readfirstlane_b32 s5, v{vR+1}")
        a("s_nop 0")
        a(f"s_lshr_b32 s4, s4, s{sSH}")
        a("s_and_b32 s4, s4, 15")
        a(f"s_cmp_eq_u32 s5, s{sTAG}")
        a("s_cselect_b32 s4, s4, 0")
        a(f"s_sub_u32 s{sCNT}, s{sCNT}, 1")
        a("s_cselect_b32 s4, 15, s4")
        a(f"s_andn2_b32 s{sNEW}, s4, s{sHAVE}")
        a("s_cbranch_scc0 L_og")
        a(f"s_or_b32 s{sHAVE}, s{sHAVE}, s4")
        for i in range(4):
            a(f"s_bitcmp0_b32 s{sNEW}, {i}")
            a(f"s_cbranch_scc1 L_ol{i}")
            for u in range(2):
                a(f"buffer_load_dwordx4 {vr(32+8*i+4*u,4)}, v1, {sr(WS)}, {'s3' if i < 2 else 's%d' % sA} offen offset:{2048*(i%2)+1024*u} sc1")
            a.lab(f"L_ol{i}")
        a(f"s_cmp_lg_u32 s{sHAVE}, 15")
        a("s_cbranch_scc1 L_og")
        ts("h_poll2", grp=1)
        a("s_barrier")
        for ph in range(2):
            if ph == 1: a("s_waitcnt vmcnt(0)")
            for i in range(4):
                a(f"s_bitcmp{1-ph}_b32 s{sNEW}, {i}")
                a(f"s_cbranch_scc1 L_ow{ph}{i}")
                for u in range(2):
                    a(f"ds_write_b128 v{vM}, {vr(32+8*i+4*u,4)} offset:{2048*i+1024*u}")
                a.lab(f"L_ow{ph}{i}")
    a("s_waitcnt lgkmcnt(0)")
    ts("h_stage", grp=1)
    a("s_barrier")
    if TS and TSG == 1: ts.dump()
    a("s_endpgm")

def kernel(a):
    name = NAME + "_kernel"
    a.raw(f".globl {name}")
    a.raw(".p2align 8")
    a.raw(f".type {name},@function")
    a.lab(name)
    ts = Stamps(a)
    ts("start")
    a("s_cmp_ge_u32 s2, 256")
    a("s_cbranch_scc1 L_end")
    a("s_load_dwordx8 s[4:11], s[0:1], 0")
    a("s_load_dwordx4 s[12:15], s[0:1], 32")
    a("v_lshrrev_b32 v1, 6, v0")
    a("v_and_b32 v0, 63, v0")
    a(f"v_readfirstlane_b32 s{sA}, v1")
    decode_hb(a)
    a(f"s_and_b32 s{sW}, s{sA}, 3")
    a(f"s_lshl_b32 s{sT}, s{sB}, 2")
    a(f"s_and_b32 s{sT3}, s{sH}, 3")
    a(f"s_add_u32 s{sT3}, s{sT3}, s{sT}")
    a(f"s_add_u32 s{sT}, s{sT}, s{sW}")
    a(f"s_lshr_b32 s{sCS4}, s{sH}, 2")
    a(f"s_cmp_lt_u32 s{sA}, 4")
    a("s_cbranch_scc1 L_compute")
    helper(a, ts)
    a.raw("; ---- compute waves")
    a.lab("L_compute")
    t0, t1, t2, t3, t4, t5 = vT
    if CPF:
        a(f"s_cmp_lt_u32 s{sH}, {14 if CPF == 1 else 0}")
        a("s_cbranch_scc1 L_nocpf")
        a("s_getpc_b64 s[20:21]")
        a(f"s_lshl_b32 s3, s{sW}, 12")
        a("v_lshl_add_u32 v254, v0, 6, s3")
        a(f"v_min_u32 v254, L_codeend - L_compute - 64, v254")
        a("global_load_dword v255, v254, s[20:21]")
        a.lab("L_nocpf")
    a("s_waitcnt lgkmcnt(0)")
    a(f"s_load_dword s{sTAG}, s[14:15], {EP_OFF}")
    if opt("rep", -1) >= 0: a(f"s_load_dwordx2 s[64:65], s[14:15], {EP_OFF}")
    if SCP:
        a("s_bfe_u32 s3, s2, 0x30003")
        a(f"s_cmp_ge_u32 s{sW}, 2")
        a("s_cbranch_scc1 L_scw")
        a(f"s_lshl4_add_u32 s3, s{sB}, s3")
        a("s_add_u32 s3, s3, 8")
        a(f"s_lshl1_add_u32 s3, s3, s{sW}")
        a("s_mul_i32 s3, s3, 3584")
        a("s_add_u32 s4, s4, s3")
        a("s_addc_u32 s5, s5, 0")
        for i in range(28):
            a(f"s_load_dword s{sCNT}, s[4:5], {128*i}")
        a("s_branch L_scd")
        a.lab("L_scw")
        a(f"s_and_b32 s{sA}, s{sB}, 3")
        a(f"s_lshl2_add_u32 s3, s3, s{sA}")
        a(f"s_lshl1_add_u32 s3, s3, s{sW}")
        a("s_sub_u32 s3, s3, 2")
        a(f"s_mul_i32 s3, s3, {7*2688}")
        a(f"s_and_b32 s{sA}, s2, 1")
        a(f"s_mul_i32 s{sA}, s{sA}, 384")
        a(f"s_add_u32 s3, s3, s{sA}")
        a("s_add_u32 s4, s6, s3")
        a("s_addc_u32 s5, s7, 0")
        for r in range(7):
            for i in range(4):
                a(f"s_load_dword s{sCNT}, s[4:5], {2688*r + 128*i}")
        a.lab("L_scd")
    srd(a, WS, 14, 15, WS_BYTES)
    if TS: srd(a, DBG, 12, 13, 256)
    if SPF in (1, 3, 4):
        a(f"s_cmp_lt_u32 s{sH}, 14")
        a("s_cselect_b32 s3, 0, 2")
        a(f"s_xor_b32 s{sT}, s{sT}, s3")
    a(f"s_and_b32 s4, s{sW}, 1")
    a(f"s_lshr_b32 s5, s{sW}, 1")
    a("v_lshlrev_b32 v1, 4, v0")
    a("v_and_b32 v15, 3, v0")
    a("v_and_b32 v2, 31, v0")
    a(f"v_lshlrev_b32 v{vV0}, 4, v2")
    a("v_lshlrev_b32 v2, 7, v2")
    a("v_bfe_u32 v3, v0, 1, 3")
    a("v_lshrrev_b32 v4, 5, v0")
    a(f"v_mul_u32_u24 v{vV1}, {V_PLANE}, v4")
    a(f"v_add_u32 v{vV0}, v{vV0}, v{vV1}")
    a("v_xor_b32 v3, v3, v4")
    a("v_lshl_add_u32 v2, v3, 4, v2")
    a("s_lshl_b32 s3, s4, 12")
    a("v_add_u32 v2, s3, v2")
    a(f"v_bfe_u32 v{t0}, v0, 2, 2")
    a(f"v_lshl_add_u32 v{t1}, v4, 3, v{t0}")
    a("v_xor_b32 v3, 32, v2")
    a("v_xor_b32 v4, 64, v2")
    a("v_xor_b32 v5, 96, v2")
    a(f"s_mul_i32 s3, s5, {L_WB}")
    for i in range(4):
        a(f"v_add_u32 v{vXO[i]}, s3, v{vXA[i]}")
    a(f"v_bfe_u32 v{t2}, v0, 4, 1")
    a(f"v_lshlrev_b32 v{t2}, 5, v{t2}")
    a(f"v_lshrrev_b32 v{t3}, 1, v15")
    a(f"v_and_b32 v{t4}, 1, v15")
    a(f"v_lshl_add_u32 v{t3}, v{t4}, 1, v{t3}")
    a(f"v_lshl_add_u32 v{t3}, v{t3}, 3, v{t2}")
    a(f"v_lshl_add_u32 v{t4}, v15, 3, v{t2}")
    a(f"v_lshl_add_u32 v{vQR}, v{t1}, 6, v{t3}")
    a(f"v_add_u32 v{vQR}, {L_WQ}, v{vQR}")
    a(f"s_cmp_lt_u32 s{sH}, 7")
    a("s_cselect_b64 vcc, -1, 0")
    a(f"v_cndmask_b32 v{t3}, v{t4}, v{t3}, vcc")
    a(f"v_lshrrev_b32 v{t0}, 1, v{t0}")
    a(f"v_xor_b32 v{t0}, s5, v{t0}")
    a(f"v_lshl_add_u32 v{t3}, v{t0}, 6, v{t3}")
    a(f"v_lshl_add_u32 v{vWR}, v{t1}, 7, v{t3}")
    a(f"v_add_u32 v{vWR}, {L_WB}, v{vWR}")
    mask_addr(a, vMk)
    a(f"s_lshl1_add_u32 s5, s{sH}, s5")
    a(f"s_and_b32 s3, s{sB}, 1")
    a("s_lshl1_add_u32 s4, s3, s4")
    a(f"s_lshr_b32 s{sBIT}, s{sB}, 1")
    a(f"s_lshl4_add_u32 s{sS0}, s4, s{sBIT}")
    a(f"s_lshl_b32 s{sS0}, s{sS0}, 16")
    a("s_lshl4_add_u32 s3, s5, s4")
    a(f"v_lshl_add_u32 v{vP1}, v0, 2, s3")
    a(f"v_lshlrev_b32 v{vP1}, {FSH}, v{vP1}")
    a(f"v_add_u32 v{vP1}, {FL_OFF}, v{vP1}")
    a(f"s_lshl_b32 s{sA}, s{sT}, {FSH}")
    a(f"s_add_u32 s{sA}, s{sA}, {FL_OFF + (NOFL << FSH)}")
    a(f"v_mov_b32 v{vFl2}, s{sA}")
    a(f"v_writelane_b32 v{vP1}, s{sA}, 4")
    a(f"v_bfe_u32 v{vPad}, v0, 3, 2")
    a(f"v_mul_u32_u24 v{vPad}, {V_PLANE}, v{vPad}")
    a(f"v_lshrrev_b32 v{t0}, 5, v0")
    a(f"v_lshl_add_u32 v{vPad}, v{t0}, 19, v{vPad}")
    a(f"v_and_b32 v{t0}, 7, v0")
    a(f"v_lshl_add_u32 v{vPad}, v{t0}, 4, v{vPad}")
    a(f"v_cmp_eq_u32 vcc, 0, v{t0}")
    a(f"v_mov_b32 v{t1}, 0x3f803f80")
    a("s_nop 0")
    for r in range(4):
        a(f"v_cndmask_b32 v{PADC+r}, 0, v{t1}, vcc")
    srd(a, OUT, 10, 11, OUT_BYTES)
    srd(a, KVS, 14, 15, KV_BYTES)
    a.raw("; ---- open the flag words for this launch")
    a("s_waitcnt lgkmcnt(0)")
    a(f"s_xor_b32 s{sTAG}, s{sTAG}, 0x5ac3a53c")
    a("v_mov_b32 v250, 0")
    a(f"v_mov_b32 v251, s{sTAG}")
    a(f"s_cmp_ge_u32 s{sB}, 2")
    a("s_cbranch_scc1 L_noopen1")
    set_exec(a, "0xf", 0)
    a(f"buffer_atomic_swap_x2 v[250:251], v{vP1}, {sr(WS)}, 0 offen sc1")
    a.lab("L_noopen1")
    a(f"s_cmp_lg_u32 s{sH}, 15")
    a("s_cbranch_scc1 L_noopen2")
    set_exec(a, 1, 0)
    a(f"buffer_atomic_swap_x2 v[250:251], v{vFl2}, {sr(WS)}, 0 offen sc1")
    a.lab("L_noopen2")
    set_exec(a, HI, HI)
    def ldk(slot):
        for f in range(2):
            a(f"buffer_load_dwordx4 {vr(KV+16*slot+4*f,4)}, v{vKo}, {sr(X)}, s{sKV} offen offset:{1024*f} sc1")
    def ldv(slot):
        a(f"buffer_load_dwordx4 {vr(KV+16*slot+8,4)}, v{t4}, {sr(X)}, s{sKV} offen sc1")
        a(f"buffer_load_dwordx4 {vr(KV+16*slot+12,4)}, v{t5}, {sr(X)}, s{sKV} offen sc1")
    npick = [0]
    def pick_ops():
        n = npick[0]; npick[0] += 1
        def p0(): a(f"s_and_b32 s{sAV}, s{sRDY}, s{sTODO}")
        def p1():
            if not (NOBR and n >= 5): a(f"s_cbranch_scc0 L_slow{n}")
            a.lab(f"L_back{n}")
        def p2(): a(f"s_ff1_i32_b32 s{sAV}, s{sAV}")
        def p3(): a(f"s_bitset0_b32 s{sTODO}, s{sAV}")
        def p4(): a(f"s_lshl_b32 s{sKV}, s{sAV}, 16")
        if not ROT: return [p0, p1, p2, p3, p4]
        def r0(): a(f"s_add_u32 s{sBb}, s{sAV}, s{sROT}")
        def r1(): a(f"s_and_b32 s{sBb}, s{sBb}, 7")
        def r2(): a(f"s_and_b32 s{sAV}, s{sAV}, 24")
        def r3(): a(f"s_or_b32 s{sAV}, s{sAV}, s{sBb}")
        return [p0, p1, p2, p3, r0, r1, r2, r3, p4]
    a(f"s_lshl_b32 s3, s{sW}, 20")
    a(f"s_add_u32 s{X}, s14, s3")
    a(f"s_addc_u32 s{X+1}, s15, 0")
    a(f"s_and_b32 s{X+1}, s{X+1}, 0xffff")
    a(f"s_mov_b32 s{X+2}, {1 << 20}")
    a(f"s_mov_b32 s{X+3}, 0x20000")
    a(f"s_mul_i32 s6, s{sH}, 56")
    a("s_lshr_b32 s7, s6, 4")
    a("s_lshl_b32 s7, s7, 9")
    a(f"v_add_u32 v{vKo}, s7, v1")
    a("s_lshr_b32 s6, s6, 1")
    a(f"v_and_b32 v{t0}, 31, v0")
    a(f"v_add_u32 v{t1}, s6, v{t0}")
    a(f"v_lshrrev_b32 v{t2}, 5, v{t1}")
    a(f"v_lshl_add_u32 v{t1}, v{t2}, 3, v{t1}")
    a("s_lshr_b32 s7, s6, 5")
    a("s_mul_i32 s7, s7, 40")
    a("s_add_u32 s7, s7, 4")
    a(f"v_add_u32 v{t2}, s7, v{t0}")
    a(f"v_cmp_gt_u32 vcc, 28, v{t0}")
    a(f"v_add_u32 v{t5}, {V_BASE}, v{vV1}")
    a("s_nop 0")
    a(f"v_cndmask_b32 v{t1}, v{t2}, v{t1}, vcc")
    a(f"v_lshl_add_u32 v{t4}, v{t1}, 4, v{t5}")
    a(f"v_add_u32 v{t5}, {2*V_PLANE}, v{t4}")
    a(f"s_lshr_b32 s3, s{sB}, 2")
    a(f"s_lshl1_add_u32 s3, s{sB}, s3")
    a(f"s_and_b32 s{sROT}, s3, 7")
    a(f"s_mov_b32 s{sRDY}, 0")
    a(f"s_mov_b32 s{sTODO}, 0x7ffff")
    a(f"v_add_u32 v{t0}, v{vMk}, v1")
    a(f"s_mul_i32 s3, s{sW}, 12288")
    a(f"s_add_u32 s11, s3, {L_CMB}")
    for i in range(3):
        a(f"s_add_u32 s{sA}, s{sW}, {1+i}")
        a(f"s_and_b32 s{sA}, s{sA}, 3")
        a(f"s_mul_i32 s3, s{sA}, 12288")
        a(f"s_add_u32 s{8+i}, s3, {L_CMB + 4096*i}")
        a(f"s_lshl_b32 s{sA}, s{sA}, 12")
        a(f"s_sub_u32 s{sA}, {L_CMB + 45056}, s{sA}")
        a(f"v_add_u32 v{vT[1+i]}, s{sA}, v1")
    a("v_mov_b32 v30, 0")
    a("v_mov_b32 v31, 0")
    for r in (P+4, P+6):
        a(f"v_pk_mov_b32 {vr(r,2)}, v[30:31], v[30:31]")
    def fill3():
        for sl in range(3):
            for f in pick_ops(): f()
            ldk(sl); ldv(sl)
    def publish(kind, pk):
        if kind == "V":
            a(f"s_add_u32 s{sS1}, s{sS0}, {2*V_PLANE}")
            if not PADE:
                set_exec(a, HI, 0)
                a(f"buffer_store_dwordx4 {vr(PADC,4)}, v{vPad}, {sr(KVS)}, s{sS0} offen offset:512 sc1")
                set_exec(a, HI, HI)
        for f in range(2):
            for i in range(4):
                a(f"v_cvt_pk_bf16_f32 v{pk+4*f+i}, v{AK+8*f+2*i}, v{AK+8*f+2*i+1}")
            if kind == "K":
                a(f"buffer_store_dwordx4 {vr(pk+4*f,4)}, v1, {sr(KVS)}, s{sS0} offen offset:{1024*f} sc1")
            else:
                a(f"buffer_store_dwordx4 {vr(pk+4*f,4)}, v{vV0}, {sr(KVS)}, s{sS0 if f == 0 else sS1} offen sc1")
    def phase1(kind):
        if kind == "K":
            a("s_lshl_b32 s3, s5, 11")
            a(f"s_add_u32 s{sS0}, s{sS0}, s3")
        else:
            a(f"s_mul_i32 s3, s5, {V_CT}")
            a(f"s_add_u32 s{sS0}, s{sS0}, s3")
            a(f"s_add_u32 s{sS0}, s{sS0}, {V_BASE - 14*V_CT}")
            a(f"s_cmp_lt_u32 s{sH}, 14")
            a(f"s_cselect_b32 s{KVS+2}, {KV_BYTES}, 0")
            if PADE:
                a(f"buffer_store_dwordx4 {vr(PADC,4)}, v{vPad}, {sr(KVS)}, s{sS0} offen offset:512 sc1")
        def kvm(w, x, first):
            c = "0" if first else vr(AK,16)
            if kind == "K": mfma(a, vr(AK,16), w, x, c)
            else: mfma(a, vr(AK,16), x, w, c)
        def rdA(c, i):
            a(f"ds_read_b128 {vr(BUF+4*i,4)}, v{vXA[i]} offset:{c*8192}")
            for r in range(2):
                a(f"ds_read_b64_tr_b16 {vr(WFK+16*c+4*i+2*r,2)}, v{vWR} offset:{(c*4+i)*2048 + r*512}")
        def mmA(c, i):
            kvm(vr(WFK+16*c+4*i,4), vr(BUF+4*i,4), c == 0 and i == 0)
        def loop(rd, mm, nr, hook, second=False):
            D = PDB if second else PDA
            if D:
                for s_ in range(-D, 28):
                    n = s_ + D
                    if n < 28:
                        if n % 4 == 0:
                            a("s_barrier")
                            hook(n // 4)
                        rd(n // 4, n % 4)
                    if second and s_ == 25: a(f"ds_read_b32 v15, v{vMk}")
                    if s_ >= 0:
                        left = min(27, n) - s_
                        extra = 1 if (second and s_ in (25, 26)) else 0
                        a(f"s_waitcnt lgkmcnt({nr*left + extra})")
                        mm(s_ // 4, s_ % 4)
                return
            for c in range(7):
                sk = SKEW and 0 < c < 6
                a("s_barrier")
                hook(c)
                lastB = second and c == 6
                rd(c, 0); rd(c, 1)
                if sk: mm(c-1, 2)
                rd(c, 2)
                if sk: mm(c-1, 3)
                a(f"s_waitcnt lgkmcnt({2*nr})")
                rd(c, 3)
                mm(c, 0)
                a(f"s_waitcnt lgkmcnt({2*nr})")
                mm(c, 1)
                if not (SKEW and c < 5):
                    a(f"s_waitcnt lgkmcnt({nr})")
                    if lastB: a(f"ds_read_b32 v15, v{vMk}")
                    mm(c, 2)
                a("s_waitcnt lgkmcnt(0)")
                if not (SKEW and c < 5):
                    mm(c, 3)
        loop(rdA, mmA, 3, lambda c: ts("c0") if c == 0 else None)
        ts("a_mm")
        for i in range(4):
            a(f"v_add_u32 v{vXA[i]}, {L_WB}, v{vXA[i]}")
        a("s_nop 7")
        publish(kind, PKA)
        a(f"s_add_u32 s{sS0}, s{sS0}, {8 << 16}")
        ts("a_st")
        steps = [("B", s_) for s_ in range(28)] + [("Q", s_) for s_ in range(28)]
        bar = {("B", 0): 0, ("B", 8): 1, ("B", 16): 2, ("B", 24): 3, ("Q", 8): 4, ("Q", 16): 5, ("Q", 24): 6}
        NB = 6
        D = opt("pd2", 4)
        def cnt(st): return 1 if st[0] == "B" else 3
        a(f"s_mov_b32 s{sIT}, 0")
        def try_flag(c, force):
            if force:
                a(f"s_cmp_lg_u32 s{sIT}, 0")
            else:
                a("s_getreg_b32 s3, hwreg(HW_REG_IB_STS, 0, 4)")
                a(f"s_or_b32 s3, s3, s{sIT}")
            a(f"s_cbranch_scc1 L_nf{kind}{c}")
            a("s_waitcnt vmcnt(0)")
            flag_set(a, vP1, sBIT, "0x1f")
            a(f"s_mov_b32 s{sIT}, 1")
            ts("a_flag")
            a.lab(f"L_nf{kind}{c}")
        for k in range(-D, len(steps)):
            n = k + D
            if n < len(steps):
                st = steps[n]; c, i = st[1] // 4, st[1] % 4
                if st in bar:
                    a("s_barrier")
                    if NBF:
                        if bar[st] == 3: try_flag(99, True)
                    elif bar[st] == FA:
                        a("s_waitcnt vmcnt(0)")
                        flag_set(a, vP1, sBIT, "0x1f")
                        ts("a_flag")
                    if bar[st] == 6:
                        flag_check(a, f"L_fc1{kind}", vP1, sBIT, "0x1f", (2 if (kind == "K" or PADE) else 3) if EB >= 0 else 0)
                b = BUF + 8 * (n % NB)
                if st[0] == "B":
                    a(f"ds_read_b128 {vr(b,4)}, v{vXA[i]} offset:{c*8192}")
                else:
                    a(f"ds_read_b128 {vr(b,4)}, v{vXO[i]} offset:{c*8192}")
                    for r in range(2):
                        a(f"ds_read_b64_tr_b16 {vr(b+4+2*r,2)}, v{vQR} offset:{st[1]*1024 + r*256}")
            if k == len(steps) - 3: a(f"ds_read_b32 v15, v{vMk}")
            if k >= 0:
                st = steps[k]; b = BUF + 8 * (k % NB)
                left = sum(cnt(x) for x in steps[k+1:n+1]) + (1 if k in (len(steps)-3, len(steps)-2) else 0)
                a(f"s_waitcnt lgkmcnt({left})")
                if st[0] == "B":
                    kvm(vr(WFK+4*st[1],4), vr(b,4), st[1] == 0)
                    if NBF and st[1] in (9, 12, 15, 18): try_flag(st[1], False)
                    if NBF == 2 and st[1] == 19: try_flag(st[1], True)
                else:
                    mfma(a, vr(AQ,16), vr(b+4,4), vr(b,4), "0" if st[1] == 0 else vr(AQ,16))
                    if st[1] == EB: publish(kind, PKB)
    a(f"s_cmp_lt_u32 s{sH}, 7")
    a("s_cbranch_scc0 L_vline")
    a.raw("; ---- phase 1, K line")
    phase1("K")
    a("s_branch L_q")
    a.lab("L_vline")
    a.raw("; ---- phase 1, V line")
    phase1("V")
    a.lab("L_q")
    a.raw("; ---- second-half flag, Q epilogue and exchange, first key tiles")
    ts("b_mm")
    def flagb(w):
        a(f"s_lshl_b32 s3, 0x100, s{sBIT}")
        a("v_mov_b32 v250, s3")
        if w is not None: a(f"s_waitcnt vmcnt({w})")
        set_exec(a, "0xf", 0)
        a(f"buffer_atomic_or v250, v{vP1}, {sr(WS)}, 0 offen sc1")
        set_exec(a, HI, HI)
        ts("b_flag")
    FBL = opt("fbl", 0)
    if EB >= 0 and FBL == 0: flagb(0)
    def fill(sl):
        for f in pick_ops(): f()
        ldk(sl); ldv(sl)
    a(f"v_readfirstlane_b32 s{sRDY}, v15")
    a("s_nop 0")
    a(f"s_mov_b32 s{sIT}, s{sRDY}")
    a(f"s_cmp_eq_u32 s{sIT}, 0")
    a("s_cbranch_scc1 L_noearly")
    fill(0)
    a.lab("L_noearly")
    if EB >= 0 and FBL == 1: flagb(4)
    a(f"s_mov_b32 s4, {f32bits(QSCALE):#x}")
    a("s_mov_b32 s5, s4")
    for o in OT[2:]:
        for r in range(0, 10, 2):
            a(f"v_pk_mov_b32 {vr(o+r,2)}, v[30:31], v[30:31]")
    for r in range(0, 16, 2):
        a(f"v_pk_mul_f32 {vr(AQ+r,2)}, {vr(AQ+r,2)}, s[4:5]")
    Q3 = Q + 24
    for i in range(8):
        a(f"v_cvt_pk_bf16_f32 v{Q3+i}, v{AQ+2*i}, v{AQ+2*i+1}")
    a(f"s_bitcmp1_b32 s{sH}, 0")
    a("s_cselect_b32 exec_lo, -1, 0")
    a("s_mov_b32 exec_hi, 0")
    a(f"v_pk_mov_b32 {vr(Q3,2)}, v[30:31], v[30:31]")
    a("s_cselect_b32 exec_hi, 0, -1")
    a("s_mov_b32 exec_lo, 0")
    a(f"v_pk_mov_b32 {vr(Q3+6,2)}, v[30:31], v[30:31]")
    set_exec(a, HI, HI)
    a(f"ds_write_b128 v{t0}, {vr(Q3,4)} offset:2048")
    a(f"ds_write_b128 v{t0}, {vr(Q3+4,4)} offset:3072")
    a(f"s_cmp_lg_u32 s{sIT}, 0")
    a("s_cbranch_scc1 L_filled")
    fill(0)
    a.lab("L_filled")
    if FBL == 2: flagb(4)
    fill(1)
    a("s_waitcnt lgkmcnt(0)")
    ts("q_done")
    a("s_barrier")
    for i in range(3):
        a(f"ds_read_b128 {vr(Q+8*i,4)}, v{vT[1+i]} offset:2048")
        a(f"ds_read_b128 {vr(Q+8*i+4,4)}, v{vT[1+i]} offset:3072")
    zr = [o + r for o in OT[2:] for r in range(10, 16, 2)] + [KV+60, KV+62] + [o + r for o in OT[:2] for r in range(0, 16, 2)]
    for r in zr[:12]:
        a(f"v_pk_mov_b32 {vr(r,2)}, v[30:31], v[30:31]")
    if EB < 0:
        a(f"s_cmp_lt_u32 s{sH}, 7")
        a("s_cbranch_scc0 L_pubv")
        publish("K", PKB)
        a("s_branch L_pubd")
        a.lab("L_pubv")
        publish("V", PKB)
        a.lab("L_pubd")
    a(f"s_mov_b32 s{sIT}, 3")
    if EB < 0: a(f"s_add_u32 s{sBIT}, s{sBIT}, 8")
    vC = [2, 3, 4]; vCR = 5
    a("s_waitcnt vmcnt(4) lgkmcnt(0)")
    ts("kv0")
    def mS(part, t):
        slot = (t // 4) % 4; qt = t % 4
        d = vr(S[t % 2], 16)
        mfma(a, d, vr(KV+16*slot+4*part,4), vr(Q+8*qt+4*part,4), "0" if part == 0 else d)
    def mPV(part, t):
        slot = (t // 4) % 4; qt = t % 4
        d = vr(OT[qt], 16)
        mfma(a, d, vr(KV+16*slot+8+4*part,4), vr(P+4*part,4), d)
    def EC(t, g):
        s = S[t % 2] + 4*g
        for r in range(4):
            a(f"v_exp_f32 v{s+r}, v{s+r}")
        a(f"v_cvt_pk_bf16_f32 v{P+2*g}, v{s}, v{s+1}")
        a(f"v_cvt_pk_bf16_f32 v{P+2*g+1}, v{s+2}, v{s+3}")
    mS(0, 0)
    for r in zr[12:18]:
        a(f"v_pk_mov_b32 {vr(r,2)}, v[30:31], v[30:31]")
    mS(1, 0)
    fill(2)
    for f in pick_ops(): f()
    for r in zr[18:]:
        a(f"v_pk_mov_b32 {vr(r,2)}, v[30:31], v[30:31]")
    ts("att0", cyc=True)
    a.raw("; ---- phase 2: attention, 4 key tiles x 4 query tiles per trip")
    a.raw(".p2align 6")
    a.lab("L_loop")
    def tile(j, last=False):
        fs = [None] * 16
        if not last:
            fs[11] = lambda: a("s_waitcnt vmcnt(8)")
            po = pick_ops()
            if PFM:
                fs[2] = lambda: a(f"ds_read_b32 v15, v{vMk}")
                fs[4] = lambda: a("s_waitcnt lgkmcnt(0)")
                fs[5] = lambda: a(f"v_readfirstlane_b32 s{sRDY}, v15")
            for k, f in enumerate(po): fs[(6 if (PFM or LDM == 2) else 2) + k] = f
            if j == FBJ and EB < 0:
                fs[12] = lambda: a(f"s_cmp_eq_u32 s{sIT}, 3")
                def br():
                    a("s_cbranch_scc1 L_flagb")
                    a.lab("L_flagb_back")
                fs[13] = br
            if j == 2:
                fs[14] = lambda: a(f"s_sub_u32 s{sIT}, s{sIT}, 1")
        else:
            def wr(i, g):
                return lambda: a(f"ds_write_b128 v{vC[i]}, {vr(OT[i]+4*g,4)} offset:{1024*g}")
            for i in range(3):
                fs[4*(i+1) + 3] = wr(i, 0)
                if i < 2:
                    for g in range(1, 4): fs[4*(i+2) + g - 1] = wr(i, g)
        for st in range(4):
            t = 4*j + st
            f = fs[4*st:4*st+4]
            if not (last and st == 3): mS(0, t+1)
            if st == 0 and not last and LDM == 0: ldk((j + 3) % 4)
            if st == 1 and not last and LDM == 2: ldv((j + 3) % 4); ldk((j + 3) % 4)
            if f[0]: f[0]()
            EC(t, 0)
            mPV(1, (t - 1) % 16)
            if st == 0 and not last and LDM in (0, 1): ldv((j + 3) % 4)
            if st == 0 and not last and LDM == 1: ldk((j + 3) % 4)
            if f[1]: f[1]()
            EC(t, 1)
            if not (last and st == 3): mS(1, t+1)
            if f[2]: f[2]()
            EC(t, 2)
            mPV(0, t)
            if f[3]: f[3]()
            EC(t, 3)
    def tstamp(j):
        if not (TS and TSG == 2): return
        for trip in range(4):
            a(f"s_cmp_lg_u32 s{sIT}, {3 - trip - (1 if j == 3 else 0)}")
            a(f"s_cbranch_scc1 L_ts{j}_{trip}")
            ts(f"t{4*trip + j:02d}", cyc=True, grp=2)
            a.lab(f"L_ts{j}_{trip}")
    if TS and TSG == 2:
        for n in range(16):
            ts.idx[f"t{n:02d}(cyc)"] = len(ts.names); ts.names.append(f"t{n:02d}(cyc)")
    for j in range(3):
        tstamp(j); tile(j)
    a("s_cbranch_scc1 L_last")
    tstamp(3)
    tile(3)
    a("s_branch L_loop")
    a.lab("L_last")
    ts("t15", cyc=True, grp=2)
    for i in range(3):
        a(f"v_add_u32 v{vC[i]}, s{8+i}, v1")
    a(f"v_add_u32 v{vCR}, s11, v1")
    tile(3, last=True)
    a(f"ds_write_b128 v{vC[2]}, {vr(OT[2]+4,4)} offset:1024")
    a(f"ds_write_b128 v{vC[2]}, {vr(OT[2]+8,4)} offset:2048")
    mPV(1, 15)
    a(f"ds_write_b128 v{vC[2]}, {vr(OT[2]+12,4)} offset:3072")
    ts("att1", cyc=True)
    ts("t16", cyc=True, grp=2)
    ts("att1")
    a.raw("; ---- combine the four partial results")
    a(f"s_mov_b32 s4, {f32bits(2.0**62):#x}")
    a(f"s_mov_b32 s5, {f32bits(2.0**-62):#x}")
    a("s_waitcnt vmcnt(0) lgkmcnt(0)")
    a("s_barrier")
    F = OT[3]
    for i in range(3):
        for g in range(4):
            a(f"ds_read_b128 {vr(OT[i]+4*g,4)}, v{vCR} offset:{4096*i+1024*g}")
    a(f"s_lshl_b32 s3, s{sT}, 4")
    a(f"s_add_u32 s3, s3, s{sH}")
    a("s_lshl_b32 s3, s3, 11")
    a(f"s_add_u32 s3, s3, {O_OFF}")
    for i in range(3):
        a(f"s_waitcnt lgkmcnt({8-4*i})")
        for r in range(0, 16, 2):
            a(f"v_pk_add_f32 {vr(F+r,2)}, {vr(F+r,2)}, {vr(OT[i]+r,2)}")
    a.raw("; ---- softmax guard: row sums must be well inside the fp32 range, else redo with the true max")
    a(f"v_cmp_nge_f32 s[6:7], s4, v{F+12}")
    a(f"v_cmp_nle_f32 vcc, s5, v{F+12}")
    a("s_or_b64 s[6:7], s[6:7], vcc")
    a("s_cmp_lg_u32 s7, 0")
    if not NOBR: a("s_cbranch_scc1 L_fallback")
    a.lab("L_norm")
    a(f"v_mov_b32 v{t0}, v{F+12}")
    a(f"v_mov_b32 v{t1}, v{F+12}")
    a("s_nop 1")
    a(f"v_permlane32_swap_b32 v{t0}, v{t1}")
    a("s_nop 1")
    a(f"v_rcp_f32 v{t1}, v{t1}")
    set_exec(a, 0, HI)
    a(f"v_mov_b32 v{F+12}, 0")
    set_exec(a, HI, HI)
    for r in range(0, 16, 2):
        a(f"v_pk_mul_f32 {vr(F+r,2)}, {vr(F+r,2)}, {vr(t0,2)} op_sel:[0,1] op_sel_hi:[1,1]")
    PO = 232
    for i in range(8):
        a(f"v_cvt_pk_bf16_f32 v{PO+i}, v{F+2*i}, v{F+2*i+1}")
    a(f"buffer_store_dwordx4 {vr(PO,4)}, v1, {sr(WS)}, s3 offen sc1")
    a(f"buffer_store_dwordx4 {vr(PO+4,4)}, v1, {sr(WS)}, s3 offen offset:1024 sc1")
    ts("o_st")
    a.raw("; ---- phase 3: output projection")
    WOF, OF, ACC, D = 64, 192, 32, 48
    if AL3:
        a(f"s_lshl_b32 s3, s{sW}, 6")
    else:
        a(f"s_and_b32 s3, s{sCS4}, 1")
        a("s_lshl_b32 s3, s3, 5")
        a(f"s_mul_i32 s{sA}, s{sW}, 56")
        a(f"s_add_u32 s3, s3, s{sA}")
    a(f"v_bfe_u32 v{t0}, v0, 4, 1")
    a(f"v_lshlrev_b32 v{t0}, 5, v{t0}")
    a(f"v_and_b32 v{t1}, 3, v0")
    a(f"v_lshl_add_u32 v{t0}, v{t1}, 3, v{t0}")
    a(f"v_add_u32 v{t0}, s3, v{t0}")
    a(f"v_and_b32 v{t0}, 255, v{t0}")
    a(f"v_bfe_u32 v{t1}, v0, 2, 2")
    a(f"v_lshlrev_b32 v{t2}, 6, v{t1}")
    a(f"v_xor_b32 v{t0}, v{t0}, v{t2}")
    a(f"v_lshl_add_u32 v{t2}, v{t1}, 8, v{t0}")
    a(f"v_lshrrev_b32 v{t1}, 5, v0")
    a(f"v_lshl_add_u32 v{t0}, v{t1}, 10, v{t2}")
    a(f"v_add_u32 v{t1}, 0x10000, v{t0}")
    a(f"v_add_u32 v{t2}, 0x10000, v{t2}")
    def rdwo(hh):
        for u in range(2):
            for r in range(2):
                off = L_WO + (28*hh + 16*u + 8*r) * 256
                base = t0
                if off >= 0x10000:
                    off -= 0x10000; base = t1
                if hh == 15 and u == 1 and r == 1:
                    base = t2
                a(f"ds_read_b64_tr_b16 {vr(WOF+8*hh+4*u+2*r,2)}, v{base} offset:{off}")
    a(f"s_lshl_b32 s3, 1, s{sH}")
    a("v_mov_b32 v250, s3")
    NPRE = opt("npre", 6)
    for hh in range(NPRE): rdwo(hh)
    a("s_waitcnt vmcnt(0)")
    set_exec(a, 1, 0)
    a(f"buffer_atomic_or v250, v{vFl2}, {sr(WS)}, 0 offen sc1")
    set_exec(a, HI, HI)
    ts("o_flag")
    for hh in range(NPRE, 16): rdwo(hh)
    a(f"v_add_u32 v{t3}, {L_CMB}, v1")
    a(f"v_and_b32 v{t4}, 31, v0")
    a(f"v_mul_u32_u24 v{t4}, 896, v{t4}")
    a(f"v_lshrrev_b32 v{t5}, 5, v0")
    a(f"v_lshl_add_u32 v{t4}, v{t5}, 4, v{t4}")
    a(f"s_mul_i32 s{sKV}, s{sT3}, 28672")
    a(f"s_lshl_b32 s{sBb}, s{sCS4}, 2")
    a(f"s_add_u32 s{sBb}, s{sBb}, s{sW}")
    if AL3:
        a(f"s_cmp_lt_u32 s{sBb}, 14")
        a(f"s_cselect_b32 s{OUT+2}, {OUT_BYTES}, 0")
    a(f"s_mul_i32 s{sBb}, s{sBb}, {64 if AL3 else 56}")
    a(f"s_add_u32 s{sKV}, s{sKV}, s{sBb}")
    a("s_barrier")
    a("s_barrier")
    ts("o_ld")
    NR, PD = 12, 10
    for f in range(PD):
        a(f"ds_read_b128 {vr(OF+4*(f%NR),4)}, v{t3} offset:{1024*f}")
    for f in range(32):
        if f + PD < 32:
            a(f"ds_read_b128 {vr(OF+4*((f+PD)%NR),4)}, v{t3} offset:{1024*(f+PD)}")
            a(f"s_waitcnt lgkmcnt({PD})")
        else:
            a(f"s_waitcnt lgkmcnt({31-f})")
        mfma(a, vr(ACC,16), vr(WOF+4*f,4), vr(OF+4*(f%NR),4), "0" if f == 0 else vr(ACC,16))
    a("s_nop 7")
    a("s_nop 3")
    for i in range(8):
        a(f"v_cvt_pk_bf16_f32 v{D+i}, v{ACC+2*i}, v{ACC+2*i+1}")
    a(f"v_permlane32_swap_b32 v{D}, v{D+2}")
    a(f"v_permlane32_swap_b32 v{D+1}, v{D+3}")
    a(f"v_permlane32_swap_b32 v{D+4}, v{D+6}")
    a(f"v_permlane32_swap_b32 v{D+5}, v{D+7}")
    a(f"buffer_store_dwordx4 {vr(D,4)}, v{t4}, {sr(OUT)}, s{sKV} offen {OSF}")
    if AL3:
        a(f"buffer_store_dwordx4 {vr(D+4,4)}, v{t4}, {sr(OUT)}, s{sKV} offen offset:32 {OSF}")
    else:
        set_exec(a, HI, 0)
        a(f"buffer_store_dwordx4 {vr(D+4,4)}, v{t4}, {sr(OUT)}, s{sKV} offen offset:32 {OSF}")
        set_exec(a, 0, HI)
        a(f"buffer_store_dwordx2 {vr(D+4,2)}, v{t4}, {sr(OUT)}, s{sKV} offen offset:32 {OSF}")
    if TS:
        a("s_waitcnt vmcnt(0)")
        ts("end")
    if TS and TSG in (0, 2): ts.dump()
    a.lab("L_end")
    a("s_endpgm")
    if EB < 0:
        a.lab("L_flagb")
        if FBJ == 0: a("s_waitcnt vmcnt(4)")
        a(f"s_lshl_b32 s3, 1, s{sBIT}")
        a("v_mov_b32 v250, s3")
        set_exec(a, "0xf", 0)
        a(f"buffer_atomic_or v250, v{vP1}, {sr(WS)}, 0 offen sc1")
        set_exec(a, HI, HI)
        a("s_branch L_flagb_back")
    for n in range(npick[0]):
        a.lab(f"L_slow{n}")
        a(f"ds_read_b32 v15, v{vMk}")
        a("s_waitcnt lgkmcnt(0)")
        a(f"v_readfirstlane_b32 s{sRDY}, v15")
        a("s_nop 0")
        a(f"s_and_b32 s{sAV}, s{sRDY}, s{sTODO}")
        a(f"s_cbranch_scc0 L_slow{n}")
        a(f"s_branch L_back{n}")
    flag_retries(a)
    a.raw("; ---- fallback: true row max (pass 1), then exp(s - max) (pass 2) over all keys")
    a.lab("L_fallback")
    srd(a, X, 14, 15, KV_BYTES)
    a(f"v_mov_b32 v{t0}, 0xff800000")
    a(f"s_mov_b32 s{sKV}, 0")
    SS = S0
    a.lab("L_fb1")
    ldk(0)
    a(f"s_add_u32 s{sKV}, s{sKV}, 0x10000")
    a("s_waitcnt vmcnt(0)")
    mfma(a, vr(SS,16), vr(KV,4), vr(Q3,4), "0")
    mfma(a, vr(SS,16), vr(KV+4,4), vr(Q3+4,4), vr(SS,16))
    a("s_nop 15")
    for r in range(0, 16, 2):
        a(f"v_max3_f32 v{t0}, v{t0}, v{SS+r}, v{SS+r+1}")
    a(f"s_cmp_lt_u32 s{sKV}, {KV_BYTES}")
    a("s_cbranch_scc1 L_fb1")
    a(f"v_mov_b32 v{t1}, v{t0}")
    a("s_nop 1")
    a(f"v_permlane32_swap_b32 v{t0}, v{t1}")
    a("s_nop 1")
    a(f"v_max_f32 v{t0}, v{t0}, v{t1}")
    for r in range(16):
        a(f"v_mov_b32 v{F+r}, 0")
    a(f"s_mov_b32 s{sKV}, 0")
    a.lab("L_fb2")
    ldk(0); ldv(0)
    a(f"s_add_u32 s{sKV}, s{sKV}, 0x10000")
    a("s_waitcnt vmcnt(0)")
    mfma(a, vr(SS,16), vr(KV,4), vr(Q3,4), "0")
    mfma(a, vr(SS,16), vr(KV+4,4), vr(Q3+4,4), vr(SS,16))
    a("s_nop 15")
    for r in range(16):
        a(f"v_sub_f32 v{SS+r}, v{SS+r}, v{t0}")
    for r in range(16):
        a(f"v_exp_f32 v{SS+r}, v{SS+r}")
    a("s_nop 0")
    for i in range(8):
        a(f"v_cvt_pk_bf16_f32 v{P+i}, v{SS+2*i}, v{SS+2*i+1}")
    a("s_nop 1")
    mfma(a, vr(F,16), vr(KV+8,4), vr(P,4), vr(F,16))
    mfma(a, vr(F,16), vr(KV+12,4), vr(P+4,4), vr(F,16))
    a(f"s_cmp_lt_u32 s{sKV}, {KV_BYTES}")
    a("s_cbranch_scc1 L_fb2")
    a("s_nop 15")
    a("s_branch L_norm")
    a.lab("L_codeend")
    if TS:
        open("stamps.txt", "w").write(",".join(ts.names))
    return name

DOC = r'''
; ---------------------------------------------------------------------------------------------------------------
;           Softmax guard: softmax is shift invariant, the fast path uses the shift 0 and CHECKS at run time that
; readers poll with returning atomics and then use sc1 loads.  Flag words are {bits, tag}; the tag comes from an
; ---------------------------------------------------------------------------------------------------------------
'''

def main():
    a = A()
    name = kernel(a)
    head = open(f"cdna_kernels/{NAME}.s.ref").read().split("; Override")[0]
    out = head
    out += f"; @launch grid=(256,1,1) block=(512,1,1) lds={LDS_BYTES}\n"
    out += '.amdgcn_target "amdgcn-amd-amdhsa--gfx950"\n' + DOC.lstrip("\n") + '.text\n'
    out += a.text()
    out += f""".section .rodata,"a"
.p2align 6
.amdhsa_kernel {name}
  .amdhsa_next_free_vgpr 256
  .amdhsa_next_free_sgpr 102
  .amdhsa_accum_offset 256
  .amdhsa_group_segment_fixed_size 0
  .amdhsa_kernarg_size 48
  .amdhsa_user_sgpr_count 2
  .amdhsa_user_sgpr_kernarg_segment_ptr 1
  .amdhsa_system_sgpr_workgroup_id_x 1
.end_amdhsa_kernel
"""
    o = [x for x in sys.argv[1:] if not x.startswith("--")]
    path = o[0] if o else f"cdna_kernels/{NAME}.s"
    open(path, "w").write(out)
main()
```

```python
import sys, struct, math

NAME = "standalone__softmax_full_mha__prompt"
FL_OFF = 5 << 20
EP_OFF = 0xff00
O_OFF = 6 << 20
TS_OFF = 8 << 20
WS_BYTES = 12 << 20
X_BYTES = 2048 * 448 * 2
W_BYTES = 448 * 1344 * 2
WO_BYTES = 448 * 448 * 2
OUT_BYTES = 2048 * 448 * 2
KV_BYTES = 4 << 20
V_BASE = 28672
V_CT = 640
V_PLANE = 14 * V_CT
QSCALE = 28 ** -0.5 * math.log2(math.e)

def opt(name, default):
    for arg in sys.argv:
        if arg.startswith(f"--{name}="):
            return int(arg.split("=")[1])
    return default
TS = "--ts" in sys.argv
TSG = opt("tsg", 0)
MAP = opt("maph", 3)
FSH = opt("fsh", 8)
SLEEP = opt("sleep", 0)
LA = opt("la", 3)
FA = opt("fa", 2)
BAL = opt("bal", 1)
SPF = opt("spf", 1)
ROT = opt("rot", 0)
NBF = opt("nbf", 0)
SL2 = opt("sl2", 0)
SKEW = opt("skew", 1)
PFM = opt("pfm", 0)
PIS = opt("pis", 12)
FBJ = opt("fbj", 1)
WROT = opt("wrot", 1)
WSL = opt("wsl", 3)
THR = opt("thr", 0)
CPF = opt("cpf", 0)
LDM = opt("ldm", 0)
NOBR = opt("nobr", 0)
WPACE = opt("wpace", 2)
PH = opt("ph", 1)
AL3 = opt("al3", 1)
CO3 = opt("co3", 1)
PADE = opt("pade", 0)
EB = opt("eb", 6)
PDA = opt("pda", 0)
PDB = opt("pdb", 3)
VPF = opt("vpf", -1)
SCP = opt("scp", 0)
SCW = opt("scw", 0)
OSF = ["", "sc1", "nt", "sc0 sc1", "sc1 nt"][opt("osf", 0)]
NOFL = 512

def f32bits(x):
    return struct.unpack("<I", struct.pack("<f", x))[0]

class A:
    def __init__(self):
        self.l = []
    def __call__(self, s):
        for line in s.strip("\n").split("\n"):
            self.l.append("    " + line.strip())
    def lab(self, n):
        self.l.append(n + ":")
    def raw(self, s):
        self.l.append(s)
    def text(self):
        return "\n".join(self.l) + "\n"

def vr(b, n, k="v"):
    return f"{k}[{b}:{b+n-1}]"
def sr(b):
    return f"s[{b}:{b+3}]"

def srd(a, d, lo, hi, nbytes):
    a(f"s_mov_b32 s{d}, s{lo}")
    a(f"s_and_b32 s{d+1}, s{hi}, 0xffff")
    a(f"s_mov_b32 s{d+2}, {nbytes}")
    a(f"s_mov_b32 s{d+3}, 0x20000")

HI = "0xffffffff"
def set_exec(a, lo, hi):
    if lo == HI and hi == HI:
        a("s_mov_b64 exec, -1")
    elif hi == 0 and lo in (1, "0xf", "0x1f"):
        a(f"s_mov_b64 exec, {int(str(lo), 0)}")
    else:
        a(f"s_mov_b32 exec_lo, {lo}")
        a(f"s_mov_b32 exec_hi, {hi}")

class Stamps:
    def __init__(self, a):
        self.a = a; self.idx = {}; self.names = []
    def __call__(self, name, cyc=False, grp=0):
        if not TS: return
        if name != "start" and grp != TSG: return
        nm = name + ("(cyc)" if cyc else "")
        if nm not in self.idx:
            self.idx[nm] = len(self.names); self.names.append(nm)
        b = 66 + 2 * self.idx[nm]
        assert b + 1 < 102
        self.a(f"s_memtime s[{b}:{b+1}]" if cyc else f"s_memrealtime s[{b}:{b+1}]")
    def dump(self):
        if not TS: return
        a = self.a
        sp = [x for x in sys.argv if x.startswith("--spin=")]
        if sp:
            hi, lo, m = sp[0][7:].split(",")
            a("s_waitcnt lgkmcnt(0)")
            if lo == "G":
                a("v_mov_b32 v2, 0")
                a(f"buffer_load_dword v4, v2, {sr(DBG)}, 0 offen offset:192 sc1")
                a("s_waitcnt vmcnt(0)")
                a("v_readfirstlane_b32 s4, v4")
                a("s_nop 0")
                a("s_not_b32 s4, s4")
                a(f"s_sub_u32 s3, s{66+2*self.idx[hi]}, s4")
            else:
                a(f"s_sub_u32 s3, s{66+2*self.idx[hi]}, s{66+2*self.idx[lo]}")
            only = opt("only", -1)
            if only >= 0:
                a("s_and_b32 s4, s2, 7")
                a(f"s_cmp_eq_u32 s4, {only}")
                a("s_cselect_b32 s3, s3, 0")
            a(f"s_mul_i32 s3, s3, {m}")
            if opt("fix", 0): a(f"s_mov_b32 s3, {opt('fix', 0)}")
            if opt("rep", -1) >= 0:
                a("s_not_b32 s4, s64")
                a("s_cmp_eq_u32 s4, s65")
                a("s_cselect_b32 s3, s3, 0" if opt("rep", -1) == 1 else "s_cselect_b32 s3, 0, s3")
            if opt("pat", -1) >= 0:
                a("s_cmp_eq_u32 s64, s65")
                a("s_cselect_b32 s3, s3, 0" if opt("pat", -1) == 1 else "s_cselect_b32 s3, 0, s3")
            a(f"s_add_u32 s3, s3, s{66+2*self.idx['end' if TSG == 0 else 'h_stage']}")
            a.lab("L_spin")
            a("s_memrealtime s[4:5]")
            a("s_waitcnt lgkmcnt(0)")
            a("s_sub_u32 s4, s4, s3")
            a("s_cmp_lt_i32 s4, 0")
            a("s_cbranch_scc1 L_spin")
            return
        if "--dbg" in sys.argv:
            sel = ["start", "start", "c0", "kv_mm", "b7", "q_done", "kv0", "att1", "o_flag", "o_ld", "end"]
            a("s_waitcnt lgkmcnt(0)")
            a(f"s_cmp_lg_u32 s{sW}, 0")
            a("s_cbranch_scc1 L_end")
            a("s_mov_b64 exec, 1")
            a("v_mov_b32 v2, 0")
            for i, nm in enumerate(sel):
                a(f"v_mov_b32 v4, s{66+2*self.idx[nm]}")
                if i == 0: a("v_not_b32 v4, v4")
                a(f"buffer_atomic_umax v4, v2, {sr(DBG)}, 0 offen offset:{8+4*i} sc1")
                a("s_nop 1")
            for i, nm in enumerate(["end", "kv0", "c0"]):
                a(f"s_sub_u32 s3, s{66+2*self.idx[nm]}, s66")
                a("v_mov_b32 v4, s3")
                a(f"buffer_atomic_umax v4, v2, {sr(DBG)}, 0 offen offset:{52+4*i} sc1")
                a("s_nop 1")
            a("s_waitcnt vmcnt(0)")
            return
        a("s_waitcnt lgkmcnt(0)")
        a(f"s_lshl_b32 s3, s2, 2")
        a(f"s_add_u32 s3, s3, s{sW}")
        a(f"s_lshl_b32 s3, s3, 7")
        a(f"s_add_u32 s3, s3, {TS_OFF}")
        a("s_mov_b64 exec, 1")
        a("v_mov_b32 v2, 0")
        for i in range(18):
            a(f"v_mov_b32 v4, s{66+2*i}")
            a(f"buffer_store_dword v4, v2, {sr(WS)}, s3 offen offset:{4*i}")
            a("s_nop 1")
        a("s_waitcnt vmcnt(0)")

X, W, WO, OUT, DBG, WS, KVS = 16, 20, 24, 28, 32, 36, 40
WQS = KVS
sH, sB, sW, sT = 44, 45, 46, 47
sKC, sXB, sWB, sWM = 48, 49, 50, 52
sRDY, sTODO, sAV, sS0, sS1 = 48, 49, 50, 51, 52
sA, sBb = 53, 54
sKV, sIT, sWQ, sWoS, sCNT = 55, 56, 57, 58, 59
sBIT, sTAG = 60, 61
sKQ = 51
sT3, sCS4 = 62, 63
sROT = 57
L_XA, L_WB, L_WQ = 0, 57344, 114688
L_WO, L_CMB = 0, 114688
LDS_BYTES = 163840
vXA = [2, 3, 4, 5]
vXO = [6, 7, 8, 9]
vWR, vQR, vP1, vFl2, vMk = 10, 11, 12, 13, 14
vKo, vV0, vV1, vPad = 16, 17, 18, 19
vT = [20, 21, 22, 23, 24, 25]
PADC = 26
AK, AQ, WFK, BUF, PKA, PKB = 32, 48, 64, 176, 224, 232
KV, Q, S0, P = 64, 128, 160, 240
OT = [32, 48, 192, 208]
S = [S0, S0 + 16]

def decode_hb(a):
    nhg = 16 >> MAP
    lg = int(math.log2(nhg))
    a(f"s_and_b32 s{sH}, s2, {nhg-1}")
    a(f"s_lshl_b32 s{sH}, s{sH}, {MAP}")
    a(f"s_lshr_b32 s3, s2, 3")
    a(f"s_and_b32 s{sB}, s3, {(1<<MAP)-1}")
    a(f"s_add_u32 s{sH}, s{sH}, s{sB}")
    a(f"s_lshr_b32 s3, s3, {MAP}")
    a(f"s_and_b32 s{sB}, s2, 7")
    a(f"s_lshr_b32 s{sB}, s{sB}, {lg}")
    a(f"s_mul_i32 s{sB}, s{sB}, {32>>MAP}")
    a(f"s_add_u32 s{sB}, s{sB}, s3")
    if BAL:
        a(f"s_lshr_b32 s3, s{sH}, 3")
        a(f"s_sub_u32 s{sBb}, s{sH}, s3")
        a("s_add_u32 s3, s3, 14")
        a(f"s_and_b32 s{sH}, s{sH}, 7")
        a(f"s_cmp_eq_u32 s{sH}, 7")
        a(f"s_cselect_b32 s{sH}, s3, s{sBb}")

def mfma(a, d, x, y, c):
    a(f"v_mfma_f32_32x32x16_bf16 {d}, {x}, {y}, {c}")

vR = 252
def flag_read(a, vaddr, off=0):
    a(f"v_mov_b32 v{vR}, 0")
    a(f"v_mov_b32 v{vR+1}, 0")
    a(f"buffer_atomic_or_x2 v[{vR}:{vR+1}], v{vaddr}, {sr(WS)}, 0 offen offset:{off} sc0 sc1")

def flag_bits(a):
    a(f"v_cmp_eq_u32 vcc, s{sTAG}, v{vR+1}")
    a("s_nop 1")
    a(f"v_cndmask_b32 v{vR}, 0, v{vR}, vcc")

def poll(a, label, vaddr, lo, hi, smask, off=0):
    a(f"s_mov_b32 s{sCNT}, 0x100000")
    set_exec(a, lo, hi)
    a(f"s_branch {label}_in")
    a.lab(label)
    if SLEEP: a(f"s_sleep {SLEEP}")
    a.lab(label + "_in")
    flag_read(a, vaddr, off)
    a(f"s_sub_u32 s{sCNT}, s{sCNT}, 1")
    a(f"s_cbranch_scc1 {label}_done")
    a("s_waitcnt vmcnt(0)")
    flag_bits(a)
    a(f"v_and_b32 v{vR}, {smask}, v{vR}")
    a(f"v_cmp_ne_u32 vcc, {smask}, v{vR}")
    a(f"s_cbranch_vccnz {label}")
    a.lab(label + "_done")
    set_exec(a, HI, HI)

def flag_set(a, vaddr, sbit, lo):
    a(f"s_lshl_b32 s3, 1, s{sbit}")
    a("v_mov_b32 v250, s3")
    a("v_mov_b32 v251, 0")
    a("v_writelane_b32 v250, 0, 4")
    set_exec(a, lo, 0)
    a(f"buffer_atomic_or_x2 v[250:251], v{vaddr}, {sr(WS)}, 0 offen sc0 sc1")
    set_exec(a, HI, HI)

def flag_check(a, label, vaddr, sbit, lo, wait):
    a(f"s_mov_b32 s{sCNT}, 0x100000")
    a(f"s_waitcnt vmcnt({wait})")
    a.lab(label)
    set_exec(a, lo, 0)
    a(f"v_cmp_ne_u32 vcc, s{sTAG}, v251")
    set_exec(a, HI, HI)
    a(f"s_cbranch_vccnz {label}_again")
    a.lab(label + "_ok")
    RETRY.append((label, vaddr, sbit, lo))
RETRY = []
def flag_retries(a):
    for label, vaddr, sbit, lo in RETRY:
        a.lab(label + "_again")
        a(f"s_sub_u32 s{sCNT}, s{sCNT}, 1")
        a(f"s_cbranch_scc1 {label}_ok")
        flag_set(a, vaddr, sbit, lo)
        a("s_waitcnt vmcnt(0)")
        a(f"s_branch {label}")

def kv_poll_addr(a, vd, t0):
    a(f"s_mul_i32 s4, s{sH}, 56")
    a("s_and_b32 s5, s4, 0xfffffff0")
    a(f"v_mov_b32 v{t0}, s5")
    a("s_add_u32 s5, s5, 62")
    a(f"v_writelane_b32 v{t0}, s5, 1")
    a("s_add_u32 s5, s4, 896")
    a(f"v_writelane_b32 v{t0}, s5, 2")
    a("s_add_u32 s5, s4, 950")
    a(f"v_writelane_b32 v{t0}, s5, 3")
    a(f"v_lshrrev_b32 v{t0}, 6, v{t0}")
    a(f"v_lshlrev_b32 v{t0}, {FSH+4}, v{t0}")
    a(f"s_and_b32 s3, s{sH}, 3")
    a(f"s_lshl2_add_u32 s3, s3, s{sW}")
    a(f"s_lshl_b32 s3, s3, {FSH}")
    a(f"s_add_u32 s3, s3, {FL_OFF}")
    a(f"v_add_u32 v{vd}, s3, v{t0}")

def mask_addr(a, vd):
    a(f"s_lshl_b32 s3, s{sW}, 12")
    a(f"s_sub_u32 s3, {L_CMB + 45056}, s3")
    a(f"v_mov_b32 v{vd}, s3")

def helper(a, ts):
    vX0, vX1, vW0, vW1, vWq = 2, 3, 6, 7, 8
    vZ, vP, vM, vWo = 9, 11, 12, 13
    a.raw("; ---- helper waves: LDS-DMA of x / weights, flag polling, Wo staging, O gathering")
    a("v_lshrrev_b32 v7, 3, v0")
    a("v_mul_u32_u24 v2, 896, v7")
    a("v_and_b32 v6, 7, v0")
    a("v_lshrrev_b32 v4, 4, v0")
    a("v_xor_b32 v3, v6, v4")
    a("v_lshl_add_u32 v2, v3, 4, v2")
    a("v_xor_b32 v3, 64, v2")
    a("v_add_u32 v3, 6144, v3")
    a("v_and_b32 v4, 1, v4")
    a("v_lshlrev_b32 v4, 2, v4")
    a("v_xor_b32 v6, v6, v4")
    a("v_mul_u32_u24 v7, 2688, v7")
    a(f"v_lshl_add_u32 v{vW0}, v6, 4, v7")
    a(f"v_add_u32 v{vW1}, {8*2688-1024}, v{vW0}")
    a(f"s_lshl3_add_u32 s{sXB}, s{sB}, s{sW}")
    a(f"s_mul_i32 s{sXB}, s{sXB}, {16*896}")
    a(f"s_mul_i32 s{sWQ}, s{sW}, 43008")
    a(f"s_lshl_b32 s{sWB}, s{sH}, 7")
    a(f"s_add_u32 s{sWB}, s{sWB}, s{sWQ}")
    a(f"s_add_u32 s{sWB}, s{sWB}, 896")
    a(f"s_mov_b32 s{sWoS}, {64*896}")
    if SPF:
        a(f"s_cmp_lt_u32 s{sH}, 14")
        a("s_cbranch_scc1 L_nspare")
        if SPF in (1, 3, 4):
            a(f"s_add_u32 s{sXB}, s{sXB}, {64*896}")
            a(f"s_mov_b32 s{sWoS}, {-64*896}")
        if SPF in (1, 3, 4):
            a(f"s_and_b32 s3, s{sH}, 1")
            a("s_mul_i32 s3, s3, 3")
            a(f"s_and_b32 s{sWB}, s{sB}, 3")
            a(f"s_add_u32 s{sWB}, s{sWB}, s3")
            a(f"s_lshl_b32 s{sWB}, s{sWB}, 7")
            a(f"s_add_u32 s{sWB}, s{sWB}, s{sWQ}")
        else:
            a(f"s_add_u32 s{sWB}, s{sWQ}, 768")
        a.lab("L_nspare")
    a(f"s_lshl_b32 s{sWM}, s{sW}, 11")
    a(f"s_lshl1_add_u32 s3, s{sB}, s{sH}")
    a(f"s_mul_i32 s{sA}, s3, 37")
    a(f"s_lshr_b32 s{sA}, s{sA}, 8")
    a(f"s_mul_i32 s{sA}, s{sA}, 7")
    a(f"s_sub_u32 s{sKC}, s3, s{sA}")
    a(f"s_mov_b32 s{X+2}, {X_BYTES}")
    a(f"s_mov_b32 s{X+3}, 0x20000")
    if SPF in (1, 2):
        a(f"s_mov_b32 s{W+2}, {W_BYTES}")
    else:
        a(f"s_cmp_lt_u32 s{sH}, 14")
        a(f"s_cselect_b32 s{W+2}, {W_BYTES}, 0")
    a(f"s_mov_b32 s{W+3}, 0x20000")
    a("s_waitcnt lgkmcnt(0)")
    a(f"s_load_dword s{sTAG}, s[14:15], {EP_OFF}")
    a(f"s_mov_b32 s{X}, s4")
    a(f"s_and_b32 s{X+1}, s5, 0xffff")
    a(f"s_mov_b32 s{W}, s6")
    a(f"s_and_b32 s{W+1}, s7, 0xffff")
    def adv(r):
        a(f"s_add_u32 s{r}, s{r}, 1")
        a(f"s_cmp_eq_u32 s{r}, 7")
        a(f"s_cselect_b32 s{r}, 0, s{r}")
    def issue(u):
        kind, c = u[0], int(u[1])
        if kind == "A":
            if SPF == 4 and c == opt("spw", 4): a(f"s_mov_b32 s{W+2}, {W_BYTES}")
            a(f"s_mul_i32 s{sBb}, s{sKC}, 172032")
            a(f"s_add_u32 m0, s{sWM}, {L_WB + c*8192}")
            a(f"s_add_u32 s{sBb}, s{sBb}, s{sWB}")
            a(f"buffer_load_dwordx4 v{vW0}, {sr(W)}, s{sBb} offen lds")
            a(f"buffer_load_dwordx4 v{vW1}, {sr(W)}, s{sBb} offen offset:1024 lds")
        if kind == "Q":
            a(f"s_mul_i32 s{sBb}, s{sKQ}, 172032")
            a(f"s_add_u32 m0, s{sIT}, {L_WQ + c*4096}")
            a(f"s_add_u32 s{sBb}, s{sBb}, s{sWQ}")
            a(f"buffer_load_dwordx4 v{vWq}, {sr(WQS)}, s{sBb} offen lds")
            adv(sKQ)
            return [u]
        if u == "B0": a(f"s_add_u32 s{sXB}, s{sXB}, s{sWoS}")
        a(f"s_lshl_b32 s{sA}, s{sKC}, 7")
        a(f"s_add_u32 m0, s{sWM}, {(L_XA if kind == 'A' else L_WB) + c*8192}")
        a(f"s_add_u32 s{sA}, s{sA}, s{sXB}")
        a(f"buffer_load_dwordx4 v{vX0}, {sr(X)}, s{sA} offen lds")
        a(f"buffer_load_dwordx4 v{vX1}, {sr(X)}, s{sA} offen offset:1024 lds")
        adv(sKC)
        return [u] * (4 if kind == "A" else 2)
    a(f"s_mov_b32 s{sKQ}, s{sKC}")
    order = []
    MPF = opt("mpf", -1)
    def touch():
        a(f"s_cmp_ge_u32 s{sW}, 2")
        a("s_cbranch_scc1 L_td")
        a(f"s_cmp_eq_u32 s{sW}, 1")
        a("s_cbranch_scc1 L_tw")
        a(f"s_lshl_b32 s3, s{sB}, 5")
        a(f"s_add_u32 s3, s3, s{sH}")
        a("s_add_u32 s3, s3, 16")
        a("s_mul_i32 s3, s3, 3584")
        a("v_lshlrev_b32 v20, 7, v0")
        set_exec(a, "0x0fffffff", 0)
        a(f"buffer_load_dword v21, v20, {sr(X)}, s3 offen")
        a("s_branch L_td")
        a.lab("L_tw")
        a("s_mul_i32 s3, s2, 5376")
        a("v_lshrrev_b32 v20, 3, v0")
        a("v_mul_u32_u24 v20, 2688, v20")
        a("v_and_b32 v21, 7, v0")
        a("v_lshl_add_u32 v20, v21, 7, v20")
        set_exec(a, "0x7f7f", 0)
        a(f"buffer_load_dword v21, v20, {sr(W)}, s3 offen")
        a.lab("L_td")
        set_exec(a, HI, HI)
    for i, u in enumerate(("A0", "A1", "A2")):
        if MPF == i: touch()
        order += issue(u)
    ts("h_iss", grp=1)
    srd(a, WS, 14, 15, WS_BYTES)
    srd(a, WO, 8, 9, WO_BYTES)
    srd(a, WQS, 6, 7, W_BYTES)
    a("v_lshlrev_b32 v1, 4, v0")
    a("v_and_b32 v15, 3, v0")
    a(f"v_lshrrev_b32 v{vWq}, 2, v0")
    a(f"v_mul_u32_u24 v{vWq}, 2688, v{vWq}")
    a(f"v_lshl_add_u32 v{vWq}, v15, 4, v{vWq}")
    a(f"s_mul_i32 s3, s{sH}, 56")
    a("s_and_b32 s3, s3, 0xfffffff0")
    a(f"s_add_u32 s{sWQ}, s{sWQ}, s3")
    a(f"s_lshr_b32 s{sIT}, s{sWM}, 1")
    a(f"v_mov_b32 v{vZ}, 0")
    kv_poll_addr(a, vP, 16)
    mask_addr(a, vM)
    a(f"ds_write_b32 v{vM}, v{vZ}")
    a(f"s_lshr_b32 s3, s{sB}, 2")
    a(f"s_lshl1_add_u32 s3, s{sB}, s3")
    a(f"s_and_b32 s64, s3, 7")
    def poll_issue():
        set_exec(a, "0xf", 0)
        flag_read(a, vP)
        set_exec(a, HI, HI)
    def poll_take():
        a("s_waitcnt vmcnt(0)")
        flag_bits(a)
        a("s_nop 0")
        for i in range(4):
            a(f"v_readlane_b32 s{4+i}, v{vR}, {i}")
        a("s_and_b32 s4, s4, s5")
        a("s_and_b32 s6, s6, s7")
        a("s_and_b32 s4, s4, s6")
        if ROT:
            a("s_and_b32 s5, s4, 0xff")
            a("s_and_b32 s6, s4, 0xff00")
            a("s_lshl_b32 s6, s6, 8")
            a("s_or_b32 s5, s5, s6")
            a("s_lshl_b32 s6, s5, 8")
            a("s_or_b32 s5, s5, s6")
            a("s_lshr_b32 s5, s5, s64")
            a("s_and_b32 s4, s5, 0xff")
            a("s_lshr_b32 s5, s5, 8")
            a("s_and_b32 s5, s5, 0xff00")
            a("s_or_b32 s4, s4, s5")
        a("s_cmp_eq_u32 s4, 0xffff")
        a("s_cselect_b32 s4, 0x7ffff, s4")
        a("v_mov_b32 v15, s4")
        a(f"ds_write_b32 v{vM}, v15")
    PLANS = {
      0: [(["A3"], "A0"), (["A4"], "A1"), (["A5"], "A2"), (["A6"], "A3"), (["B0", "B1"], "A4"), (["B2", "B3"], "A5"), (["B4"], "A6"),
          (["B5"], "B1"), (["B6", "Q0", "Q1"], "B3"), (["Q2", "Q3"], "B5"), (["Q4", "Q5", "Q6"], "Q1"), ([], "Q3"), (["P"], "Q5"), ([], "Q6")],
      1: [(["A3"], "A0"), (["A4"], "A1"), (["A5"], "A2"), (["A6"], "A3"), (["B0", "B1"], "A4"), (["B2", "B3"], "A5"), (["B4", "Q0"], "A6"),
          (["B5", "Q1"], "B1"), (["B6", "Q2", "Q3"], "B3"), (["Q4", "Q5"], "B5"), (["Q6"], "B6"), ([], "Q3"), (["P"], "Q5"), ([], "Q6")],
      3: [(["A3"], "A0"), (["A4"], "A1"), (["A5"], "A2"), (["A6"], "A3"), (["B0", "B1"], "A4"), (["B2", "B3"], "A5"), (["B4"], "A6"),
          (["B5"], "B1"), (["B6", "Q0", "Q1"], "B3"), (["Q2", "Q3", "Q4"], "B5"), (["Q5", "Q6"], "Q1"), (["P"], "Q3"), ([], "Q5"), ([], "Q6")],
      4: [(["A3"], "A0"), (["A4"], "A1"), (["A5"], "A2"), (["A6"], "A3"), (["B0", "B1"], "A4"), (["B2", "B3"], "A5"), (["B4"], "A6"),
          (["B5"], "B1"), (["B6", "Q0", "Q1", "Q2", "Q3"], "B3"), (["Q4", "Q5", "Q6"], "B5"), ([], "Q1"), (["P"], "Q3"), ([], "Q5"), ([], "Q6")],
      5: [(["A3"], "A0"), (["A4"], "A1"), (["A5"], "A2"), (["A6"], "A3"), (["B0", "B1"], "A4"), (["B2", "B3"], "A5"), (["B4"], "A6"),
          (["B5"], "B1"), (["B6"], "B3"), ([], "B5"), (["Q0", "Q1", "Q2", "Q3", "Q4", "Q5", "Q6"], "Q1"), (["P"], "Q3"), ([], "Q5"), ([], "Q6")],
      6: [(["A3"], "A0"), (["A4"], "A1"), (["A5"], "A2"), (["A6"], "A3"), (["Q0", "B0"], "A4"), (["Q1", "B1", "B2"], "A5"), (["Q2", "B3"], "A6"),
          ([], "B1"), (["B4", "B5", "B6", "Q3"], "B3"), (["Q4", "Q5", "Q6"], "B5"), ([], "B6"), (["P"], "Q3"), ([], "Q5"), ([], "Q6")],
      2: [(["A3"], "A0"), (["A4"], "A1"), (["A5"], "A2"), (["A6"], "A3"), (["B0"], "A4"), (["B1", "B2"], "A5"), (["B3"], "A6"),
          ([], "B1"), (["B4", "B5", "B6", "Q0", "Q1"], "B3"), (["Q2", "Q3"], "B5"), (["Q4", "Q5", "Q6"], "Q1"), ([], "Q3"), (["P"], "Q5"), ([], "Q6")],
    }
    for n, (us, need) in enumerate(PLANS[opt("plan", 3)]):
        for u in us:
            if u == "P":
                a("s_waitcnt lgkmcnt(0)")
                a(f"s_xor_b32 s{sTAG}, s{sTAG}, 0x5ac3a53c")
                poll_issue(); order.append(u)
            else:
                order += issue(u)
        if n == 6: a("s_waitcnt lgkmcnt(0)")
        last = max(i for i, x in enumerate(order) if x == need)
        a(f"s_waitcnt vmcnt({len(order) - 1 - last})")
        if n in (0, 3, 6, 7, 10, 13): ts(f"w{n}", grp=1)
        a("s_barrier")
    if SCW:
        a("s_lshr_b32 s3, s2, 3")
        a(f"s_lshl2_add_u32 s3, s3, s{sW}")
        a("s_mul_i32 s3, s3, 3136")
        a("s_and_b32 s3, s3, 0xffffff80")
        a("s_add_u32 s8, s8, s3")
        a("s_addc_u32 s9, s9, 0")
        for i in range(25):
            a(f"s_load_dword s10, s[8:9], {128*i}")
    a(f"s_mov_b32 s{sCNT}, 0x100000")
    a.raw("; ---- helper: poll the K/V flag words, pass the list of published key tiles through LDS")
    a(f"s_mov_b32 s{sIT}, 0")
    a("s_branch L_hpoll_in")
    a.lab("L_hpoll")
    a(f"s_sub_u32 s{sCNT}, s{sCNT}, 1")
    a("s_cbranch_scc1 L_hpoll_giveup")
    poll_issue()
    a.lab("L_hpoll_in")
    poll_take()
    a("s_cmp_eq_u32 s4, 0x7ffff")
    a("s_cbranch_scc1 L_hpoll_done")
    a("s_bcnt1_i32_b32 s5, s4")
    a("s_cmp_lt_u32 s5, 2")
    a(f"s_cselect_b32 s5, 1, s{sIT}")
    a("s_cmp_lg_u32 s5, 0")
    a("s_cbranch_scc1 L_hnob8")
    a("s_barrier")
    a(f"s_mov_b32 s{sIT}, 1")
    a.lab("L_hnob8")
    if SLEEP: a(f"s_sleep {SLEEP}")
    if SL2:
        a(f"s_cmp_eq_u32 s{sIT}, 0")
        a("s_cbranch_scc1 L_hpoll")
        a(f"s_sleep {SL2}")
    a("s_branch L_hpoll")
    a.lab("L_hpoll_giveup")
    a("v_mov_b32 v15, 0x7ffff")
    a(f"ds_write_b32 v{vM}, v15")
    a.lab("L_hpoll_done")
    a(f"s_cmp_lg_u32 s{sIT}, 0")
    a("s_cbranch_scc1 L_hb8done")
    a("s_barrier")
    a.lab("L_hb8done")
    ts("h_all", grp=1)
    a(f"s_or_b32 s3, s2, s{sW}")
    a("s_cmp_lg_u32 s3, 0")
    a("s_cbranch_scc1 L_noep")
    a("v_lshrrev_b32 v16, 2, v0")
    a("v_and_b32 v17, 3, v0")
    a("v_lshl_add_u32 v16, v16, 4, v17")
    a(f"v_lshlrev_b32 v16, {FSH}, v16")
    a(f"v_add_u32 v16, {FL_OFF}, v16")
    poll(a, "L_pollep0", 16, HI, HI, "0xff")
    a(f"v_add_u32 v16, {256 << FSH}, v16")
    poll(a, "L_pollep1", 16, HI, HI, "0xff")
    a(f"s_xor_b32 s3, s{sTAG}, 0x5ac3a53c")
    a("s_add_u32 s3, s3, 0x9e3779b9")
    a("v_mov_b32 v17, s3")
    a(f"v_mov_b32 v16, {EP_OFF}")
    set_exec(a, 1, 0)
    a(f"buffer_store_dword v17, v16, {sr(WS)}, 0 offen sc1")
    if opt("rep", -1) >= 0:
        a("v_not_b32 v18, v17")
        a(f"buffer_store_dword v18, v16, {sr(WS)}, 0 offen offset:4 sc1")
    set_exec(a, HI, HI)
    a("s_nop 0")
    a.lab("L_noep")
    a.raw("; ---- helper: Wo window -> LDS")
    a("v_lshrrev_b32 v16, 4, v0")
    a(f"v_mul_u32_u24 v{vWo}, 896, v16")
    a("v_lshlrev_b32 v16, 2, v16")
    a("v_and_b32 v17, 15, v0")
    a("v_xor_b32 v16, v16, v17")
    a(f"v_lshl_add_u32 v{vWo}, v16, 4, v{vWo}")
    if AL3:
        a(f"s_lshl_b32 s{sWoS}, s{sCS4}, 8")
    else:
        a(f"s_mul_i32 s{sWoS}, s{sCS4}, 224")
        a(f"s_and_b32 s{sWoS}, s{sWoS}, 0xffffffc0")
    a(f"s_mul_i32 s3, s{sW}, {28*3584}")
    a(f"s_add_u32 s{sWoS}, s{sWoS}, s3")
    a(f"s_mul_i32 s{sWM}, s{sW}, {28*1024}")
    if WROT:
        a(f"s_and_b32 s{sKC}, s{sT3}, 15")
        a(f"s_mul_i32 s{sKC}, s{sKC}, 7")
        a(f"s_lshr_b32 s{sKC}, s{sKC}, 2")
    else:
        a(f"s_mov_b32 s{sKC}, 0")
    a(f"s_mov_b32 s{sIT}, 28")
    a.lab("L_wo")
    a(f"s_lshl_b32 s3, s{sKC}, 10")
    a(f"s_add_u32 m0, s3, s{sWM}")
    a(f"s_mul_i32 s3, s{sKC}, 3584")
    a(f"s_add_u32 s3, s3, s{sWoS}")
    a(f"buffer_load_dwordx4 v{vWo}, {sr(WO)}, s3 offen lds")
    if WPACE >= 0: a(f"s_waitcnt vmcnt({WPACE})")
    else: a(f"s_sleep {WSL}")
    a(f"s_add_u32 s{sKC}, s{sKC}, 1")
    a(f"s_cmp_eq_u32 s{sKC}, 28")
    a(f"s_cselect_b32 s{sKC}, 0, s{sKC}")
    a(f"s_sub_u32 s{sIT}, s{sIT}, 1")
    a(f"s_cmp_lg_u32 s{sIT}, 0")
    a("s_cbranch_scc1 L_wo")
    a(f"s_lshl_b32 s3, s{sT3}, {FSH}")
    a(f"s_add_u32 s3, s3, {FL_OFF + (NOFL << FSH)}")
    a(f"v_mov_b32 v{vP}, s3")
    a(f"s_lshl_b32 s4, s{sW}, 2")
    a("s_lshl_b32 s4, 15, s4")
    a(f"s_lshl_b32 s3, s{sT3}, 2")
    a(f"s_add_u32 s3, s3, s{sW}")
    a("s_lshl_b32 s3, s3, 13")
    a(f"s_add_u32 s3, s3, {O_OFF}")
    a(f"s_add_u32 s{sA}, s3, 4096")
    a(f"s_lshl_b32 s{sBb}, s{sW}, 13")
    a(f"s_add_u32 s{sBb}, s{sBb}, {L_CMB}")
    a(f"v_add_u32 v{vM}, s{sBb}, v1")
    a("s_waitcnt vmcnt(0) lgkmcnt(0)")
    ts("h_wo", grp=1)
    a("s_barrier")
    if not PH:
        poll(a, "L_poll2", vP, 1, 0, "s4")
        ts("h_poll2", grp=1)
        for f in range(8):
            a(f"buffer_load_dwordx4 {vr(32+4*f,4)}, v1, {sr(WS)}, {'s3' if f < 4 else 's%d' % sA} offen offset:{1024*(f%4)} sc1")
        a("s_barrier")
        for f in range(8):
            a(f"s_waitcnt vmcnt({7-f})")
            a(f"ds_write_b128 v{vM}, {vr(32+4*f,4)} offset:{1024*f}")
    else:
        a.raw("; ---- helper: gather the O tiles of four heads, stage them in LDS")
        sSH, sHAVE, sNEW = sKC, sWM, sWQ
        a(f"s_lshl_b32 s{sSH}, s{sW}, 2")
        a(f"s_mov_b32 s{sHAVE}, 0")
        a(f"s_mov_b32 s{sCNT}, 0x100000")
        a.lab("L_og")
        set_exec(a, 1, 0)
        flag_read(a, vP)
        set_exec(a, HI, HI)
        a("s_waitcnt vmcnt(0)")
        a(f"v_readfirstlane_b32 s4, v{vR}")
        a(f"v_readfirstlane_b32 s5, v{vR+1}")
        a("s_nop 0")
        a(f"s_lshr_b32 s4, s4, s{sSH}")
        a("s_and_b32 s4, s4, 15")
        a(f"s_cmp_eq_u32 s5, s{sTAG}")
        a("s_cselect_b32 s4, s4, 0")
        a(f"s_sub_u32 s{sCNT}, s{sCNT}, 1")
        a("s_cselect_b32 s4, 15, s4")
        a(f"s_andn2_b32 s{sNEW}, s4, s{sHAVE}")
        a("s_cbranch_scc0 L_og")
        a(f"s_or_b32 s{sHAVE}, s{sHAVE}, s4")
        for i in range(4):
            a(f"s_bitcmp0_b32 s{sNEW}, {i}")
            a(f"s_cbranch_scc1 L_ol{i}")
            for u in range(2):
                a(f"buffer_load_dwordx4 {vr(32+8*i+4*u,4)}, v1, {sr(WS)}, {'s3' if i < 2 else 's%d' % sA} offen offset:{2048*(i%2)+1024*u} sc1")
            a.lab(f"L_ol{i}")
        a(f"s_cmp_lg_u32 s{sHAVE}, 15")
        a("s_cbranch_scc1 L_og")
        ts("h_poll2", grp=1)
        a("s_barrier")
        for ph in range(2):
            if ph == 1: a("s_waitcnt vmcnt(0)")
            for i in range(4):
                a(f"s_bitcmp{1-ph}_b32 s{sNEW}, {i}")
                a(f"s_cbranch_scc1 L_ow{ph}{i}")
                for u in range(2):
                    a(f"ds_write_b128 v{vM}, {vr(32+8*i+4*u,4)} offset:{2048*i+1024*u}")
                a.lab(f"L_ow{ph}{i}")
    a("s_waitcnt lgkmcnt(0)")
    ts("h_stage", grp=1)
    a("s_barrier")
    if TS and TSG == 1: ts.dump()
    a("s_endpgm")

def kernel(a):
    name = NAME + "_kernel"
    a.raw(f".globl {name}")
    a.raw(".p2align 8")
    a.raw(f".type {name},@function")
    a.lab(name)
    ts = Stamps(a)
    ts("start")
    a("s_cmp_ge_u32 s2, 256")
    a("s_cbranch_scc1 L_end")
    a("s_load_dwordx8 s[4:11], s[0:1], 0")
    a("s_load_dwordx4 s[12:15], s[0:1], 32")
    a("v_lshrrev_b32 v1, 6, v0")
    a("v_and_b32 v0, 63, v0")
    a(f"v_readfirstlane_b32 s{sA}, v1")
    decode_hb(a)
    a(f"s_and_b32 s{sW}, s{sA}, 3")
    a(f"s_lshl_b32 s{sT}, s{sB}, 2")
    a(f"s_and_b32 s{sT3}, s{sH}, 3")
    a(f"s_add_u32 s{sT3}, s{sT3}, s{sT}")
    a(f"s_add_u32 s{sT}, s{sT}, s{sW}")
    a(f"s_lshr_b32 s{sCS4}, s{sH}, 2")
    a(f"s_cmp_lt_u32 s{sA}, 4")
    a("s_cbranch_scc1 L_compute")
    helper(a, ts)
    a.raw("; ---- compute waves")
    a.lab("L_compute")
    t0, t1, t2, t3, t4, t5 = vT
    if CPF:
        a(f"s_cmp_lt_u32 s{sH}, {14 if CPF == 1 else 0}")
        a("s_cbranch_scc1 L_nocpf")
        a("s_getpc_b64 s[20:21]")
        a(f"s_lshl_b32 s3, s{sW}, 12")
        a("v_lshl_add_u32 v254, v0, 6, s3")
        a(f"v_min_u32 v254, L_codeend - L_compute - 64, v254")
        a("global_load_dword v255, v254, s[20:21]")
        a.lab("L_nocpf")
    a("s_waitcnt lgkmcnt(0)")
    a(f"s_load_dword s{sTAG}, s[14:15], {EP_OFF}")
    if opt("rep", -1) >= 0: a(f"s_load_dwordx2 s[64:65], s[14:15], {EP_OFF}")
    if SCP:
        a("s_bfe_u32 s3, s2, 0x30003")
        a(f"s_cmp_ge_u32 s{sW}, 2")
        a("s_cbranch_scc1 L_scw")
        a(f"s_lshl4_add_u32 s3, s{sB}, s3")
        a("s_add_u32 s3, s3, 8")
        a(f"s_lshl1_add_u32 s3, s3, s{sW}")
        a("s_mul_i32 s3, s3, 3584")
        a("s_add_u32 s4, s4, s3")
        a("s_addc_u32 s5, s5, 0")
        for i in range(28):
            a(f"s_load_dword s{sCNT}, s[4:5], {128*i}")
        a("s_branch L_scd")
        a.lab("L_scw")
        a(f"s_and_b32 s{sA}, s{sB}, 3")
        a(f"s_lshl2_add_u32 s3, s3, s{sA}")
        a(f"s_lshl1_add_u32 s3, s3, s{sW}")
        a("s_sub_u32 s3, s3, 2")
        a(f"s_mul_i32 s3, s3, {7*2688}")
        a(f"s_and_b32 s{sA}, s2, 1")
        a(f"s_mul_i32 s{sA}, s{sA}, 384")
        a(f"s_add_u32 s3, s3, s{sA}")
        a("s_add_u32 s4, s6, s3")
        a("s_addc_u32 s5, s7, 0")
        for r in range(7):
            for i in range(4):
                a(f"s_load_dword s{sCNT}, s[4:5], {2688*r + 128*i}")
        a.lab("L_scd")
    srd(a, WS, 14, 15, WS_BYTES)
    if TS: srd(a, DBG, 12, 13, 256)
    if SPF in (1, 3, 4):
        a(f"s_cmp_lt_u32 s{sH}, 14")
        a("s_cselect_b32 s3, 0, 2")
        a(f"s_xor_b32 s{sT}, s{sT}, s3")
    a(f"s_and_b32 s4, s{sW}, 1")
    a(f"s_lshr_b32 s5, s{sW}, 1")
    a("v_lshlrev_b32 v1, 4, v0")
    a("v_and_b32 v15, 3, v0")
    a("v_and_b32 v2, 31, v0")
    a(f"v_lshlrev_b32 v{vV0}, 4, v2")
    a("v_lshlrev_b32 v2, 7, v2")
    a("v_bfe_u32 v3, v0, 1, 3")
    a("v_lshrrev_b32 v4, 5, v0")
    a(f"v_mul_u32_u24 v{vV1}, {V_PLANE}, v4")
    a(f"v_add_u32 v{vV0}, v{vV0}, v{vV1}")
    a("v_xor_b32 v3, v3, v4")
    a("v_lshl_add_u32 v2, v3, 4, v2")
    a("s_lshl_b32 s3, s4, 12")
    a("v_add_u32 v2, s3, v2")
    a(f"v_bfe_u32 v{t0}, v0, 2, 2")
    a(f"v_lshl_add_u32 v{t1}, v4, 3, v{t0}")
    a("v_xor_b32 v3, 32, v2")
    a("v_xor_b32 v4, 64, v2")
    a("v_xor_b32 v5, 96, v2")
    a(f"s_mul_i32 s3, s5, {L_WB}")
    for i in range(4):
        a(f"v_add_u32 v{vXO[i]}, s3, v{vXA[i]}")
    a(f"v_bfe_u32 v{t2}, v0, 4, 1")
    a(f"v_lshlrev_b32 v{t2}, 5, v{t2}")
    a(f"v_lshrrev_b32 v{t3}, 1, v15")
    a(f"v_and_b32 v{t4}, 1, v15")
    a(f"v_lshl_add_u32 v{t3}, v{t4}, 1, v{t3}")
    a(f"v_lshl_add_u32 v{t3}, v{t3}, 3, v{t2}")
    a(f"v_lshl_add_u32 v{t4}, v15, 3, v{t2}")
    a(f"v_lshl_add_u32 v{vQR}, v{t1}, 6, v{t3}")
    a(f"v_add_u32 v{vQR}, {L_WQ}, v{vQR}")
    a(f"s_cmp_lt_u32 s{sH}, 7")
    a("s_cselect_b64 vcc, -1, 0")
    a(f"v_cndmask_b32 v{t3}, v{t4}, v{t3}, vcc")
    a(f"v_lshrrev_b32 v{t0}, 1, v{t0}")
    a(f"v_xor_b32 v{t0}, s5, v{t0}")
    a(f"v_lshl_add_u32 v{t3}, v{t0}, 6, v{t3}")
    a(f"v_lshl_add_u32 v{vWR}, v{t1}, 7, v{t3}")
    a(f"v_add_u32 v{vWR}, {L_WB}, v{vWR}")
    mask_addr(a, vMk)
    a(f"s_lshl1_add_u32 s5, s{sH}, s5")
    a(f"s_and_b32 s3, s{sB}, 1")
    a("s_lshl1_add_u32 s4, s3, s4")
    a(f"s_lshr_b32 s{sBIT}, s{sB}, 1")
    a(f"s_lshl4_add_u32 s{sS0}, s4, s{sBIT}")
    a(f"s_lshl_b32 s{sS0}, s{sS0}, 16")
    a("s_lshl4_add_u32 s3, s5, s4")
    a(f"v_lshl_add_u32 v{vP1}, v0, 2, s3")
    a(f"v_lshlrev_b32 v{vP1}, {FSH}, v{vP1}")
    a(f"v_add_u32 v{vP1}, {FL_OFF}, v{vP1}")
    a(f"s_lshl_b32 s{sA}, s{sT}, {FSH}")
    a(f"s_add_u32 s{sA}, s{sA}, {FL_OFF + (NOFL << FSH)}")
    a(f"v_mov_b32 v{vFl2}, s{sA}")
    a(f"v_writelane_b32 v{vP1}, s{sA}, 4")
    a(f"v_bfe_u32 v{vPad}, v0, 3, 2")
    a(f"v_mul_u32_u24 v{vPad}, {V_PLANE}, v{vPad}")
    a(f"v_lshrrev_b32 v{t0}, 5, v0")
    a(f"v_lshl_add_u32 v{vPad}, v{t0}, 19, v{vPad}")
    a(f"v_and_b32 v{t0}, 7, v0")
    a(f"v_lshl_add_u32 v{vPad}, v{t0}, 4, v{vPad}")
    a(f"v_cmp_eq_u32 vcc, 0, v{t0}")
    a(f"v_mov_b32 v{t1}, 0x3f803f80")
    a("s_nop 0")
    for r in range(4):
        a(f"v_cndmask_b32 v{PADC+r}, 0, v{t1}, vcc")
    srd(a, OUT, 10, 11, OUT_BYTES)
    srd(a, KVS, 14, 15, KV_BYTES)
    a.raw("; ---- open the flag words for this launch")
    a("s_waitcnt lgkmcnt(0)")
    a(f"s_xor_b32 s{sTAG}, s{sTAG}, 0x5ac3a53c")
    a("v_mov_b32 v250, 0")
    a(f"v_mov_b32 v251, s{sTAG}")
    a(f"s_cmp_ge_u32 s{sB}, 2")
    a("s_cbranch_scc1 L_noopen1")
    set_exec(a, "0xf", 0)
    a(f"buffer_atomic_swap_x2 v[250:251], v{vP1}, {sr(WS)}, 0 offen sc1")
    a.lab("L_noopen1")
    a(f"s_cmp_lg_u32 s{sH}, 15")
    a("s_cbranch_scc1 L_noopen2")
    set_exec(a, 1, 0)
    a(f"buffer_atomic_swap_x2 v[250:251], v{vFl2}, {sr(WS)}, 0 offen sc1")
    a.lab("L_noopen2")
    set_exec(a, HI, HI)
    def ldk(slot):
        for f in range(2):
            a(f"buffer_load_dwordx4 {vr(KV+16*slot+4*f,4)}, v{vKo}, {sr(X)}, s{sKV} offen offset:{1024*f} sc1")
    def ldv(slot):
        a(f"buffer_load_dwordx4 {vr(KV+16*slot+8,4)}, v{t4}, {sr(X)}, s{sKV} offen sc1")
        a(f"buffer_load_dwordx4 {vr(KV+16*slot+12,4)}, v{t5}, {sr(X)}, s{sKV} offen sc1")
    npick = [0]
    def pick_ops():
        n = npick[0]; npick[0] += 1
        def p0(): a(f"s_and_b32 s{sAV}, s{sRDY}, s{sTODO}")
        def p1():
            if not (NOBR and n >= 5): a(f"s_cbranch_scc0 L_slow{n}")
            a.lab(f"L_back{n}")
        def p2(): a(f"s_ff1_i32_b32 s{sAV}, s{sAV}")
        def p3(): a(f"s_bitset0_b32 s{sTODO}, s{sAV}")
        def p4(): a(f"s_lshl_b32 s{sKV}, s{sAV}, 16")
        if not ROT: return [p0, p1, p2, p3, p4]
        def r0(): a(f"s_add_u32 s{sBb}, s{sAV}, s{sROT}")
        def r1(): a(f"s_and_b32 s{sBb}, s{sBb}, 7")
        def r2(): a(f"s_and_b32 s{sAV}, s{sAV}, 24")
        def r3(): a(f"s_or_b32 s{sAV}, s{sAV}, s{sBb}")
        return [p0, p1, p2, p3, r0, r1, r2, r3, p4]
    a(f"s_lshl_b32 s3, s{sW}, 20")
    a(f"s_add_u32 s{X}, s14, s3")
    a(f"s_addc_u32 s{X+1}, s15, 0")
    a(f"s_and_b32 s{X+1}, s{X+1}, 0xffff")
    a(f"s_mov_b32 s{X+2}, {1 << 20}")
    a(f"s_mov_b32 s{X+3}, 0x20000")
    a(f"s_mul_i32 s6, s{sH}, 56")
    a("s_lshr_b32 s7, s6, 4")
    a("s_lshl_b32 s7, s7, 9")
    a(f"v_add_u32 v{vKo}, s7, v1")
    a("s_lshr_b32 s6, s6, 1")
    a(f"v_and_b32 v{t0}, 31, v0")
    a(f"v_add_u32 v{t1}, s6, v{t0}")
    a(f"v_lshrrev_b32 v{t2}, 5, v{t1}")
    a(f"v_lshl_add_u32 v{t1}, v{t2}, 3, v{t1}")
    a("s_lshr_b32 s7, s6, 5")
    a("s_mul_i32 s7, s7, 40")
    a("s_add_u32 s7, s7, 4")
    a(f"v_add_u32 v{t2}, s7, v{t0}")
    a(f"v_cmp_gt_u32 vcc, 28, v{t0}")
    a(f"v_add_u32 v{t5}, {V_BASE}, v{vV1}")
    a("s_nop 0")
    a(f"v_cndmask_b32 v{t1}, v{t2}, v{t1}, vcc")
    a(f"v_lshl_add_u32 v{t4}, v{t1}, 4, v{t5}")
    a(f"v_add_u32 v{t5}, {2*V_PLANE}, v{t4}")
    a(f"s_lshr_b32 s3, s{sB}, 2")
    a(f"s_lshl1_add_u32 s3, s{sB}, s3")
    a(f"s_and_b32 s{sROT}, s3, 7")
    a(f"s_mov_b32 s{sRDY}, 0")
    a(f"s_mov_b32 s{sTODO}, 0x7ffff")
    a(f"v_add_u32 v{t0}, v{vMk}, v1")
    a(f"s_mul_i32 s3, s{sW}, 12288")
    a(f"s_add_u32 s11, s3, {L_CMB}")
    for i in range(3):
        a(f"s_add_u32 s{sA}, s{sW}, {1+i}")
        a(f"s_and_b32 s{sA}, s{sA}, 3")
        a(f"s_mul_i32 s3, s{sA}, 12288")
        a(f"s_add_u32 s{8+i}, s3, {L_CMB + 4096*i}")
        a(f"s_lshl_b32 s{sA}, s{sA}, 12")
        a(f"s_sub_u32 s{sA}, {L_CMB + 45056}, s{sA}")
        a(f"v_add_u32 v{vT[1+i]}, s{sA}, v1")
    a("v_mov_b32 v30, 0")
    a("v_mov_b32 v31, 0")
    for r in (P+4, P+6):
        a(f"v_pk_mov_b32 {vr(r,2)}, v[30:31], v[30:31]")
    def fill3():
        for sl in range(3):
            for f in pick_ops(): f()
            ldk(sl); ldv(sl)
    def publish(kind, pk):
        if kind == "V":
            a(f"s_add_u32 s{sS1}, s{sS0}, {2*V_PLANE}")
            if not PADE:
                set_exec(a, HI, 0)
                a(f"buffer_store_dwordx4 {vr(PADC,4)}, v{vPad}, {sr(KVS)}, s{sS0} offen offset:512 sc1")
                set_exec(a, HI, HI)
        for f in range(2):
            for i in range(4):
                a(f"v_cvt_pk_bf16_f32 v{pk+4*f+i}, v{AK+8*f+2*i}, v{AK+8*f+2*i+1}")
            if kind == "K":
                a(f"buffer_store_dwordx4 {vr(pk+4*f,4)}, v1, {sr(KVS)}, s{sS0} offen offset:{1024*f} sc1")
            else:
                a(f"buffer_store_dwordx4 {vr(pk+4*f,4)}, v{vV0}, {sr(KVS)}, s{sS0 if f == 0 else sS1} offen sc1")
    def phase1(kind):
        if kind == "K":
            a("s_lshl_b32 s3, s5, 11")
            a(f"s_add_u32 s{sS0}, s{sS0}, s3")
        else:
            a(f"s_mul_i32 s3, s5, {V_CT}")
            a(f"s_add_u32 s{sS0}, s{sS0}, s3")
            a(f"s_add_u32 s{sS0}, s{sS0}, {V_BASE - 14*V_CT}")
            a(f"s_cmp_lt_u32 s{sH}, 14")
            a(f"s_cselect_b32 s{KVS+2}, {KV_BYTES}, 0")
            if PADE:
                a(f"buffer_store_dwordx4 {vr(PADC,4)}, v{vPad}, {sr(KVS)}, s{sS0} offen offset:512 sc1")
        def kvm(w, x, first):
            c = "0" if first else vr(AK,16)
            if kind == "K": mfma(a, vr(AK,16), w, x, c)
            else: mfma(a, vr(AK,16), x, w, c)
        def rdA(c, i):
            a(f"ds_read_b128 {vr(BUF+4*i,4)}, v{vXA[i]} offset:{c*8192}")
            for r in range(2):
                a(f"ds_read_b64_tr_b16 {vr(WFK+16*c+4*i+2*r,2)}, v{vWR} offset:{(c*4+i)*2048 + r*512}")
        def mmA(c, i):
            kvm(vr(WFK+16*c+4*i,4), vr(BUF+4*i,4), c == 0 and i == 0)
        def loop(rd, mm, nr, hook, second=False):
            D = PDB if second else PDA
            if D:
                for s_ in range(-D, 28):
                    n = s_ + D
                    if n < 28:
                        if n % 4 == 0:
                            a("s_barrier")
                            hook(n // 4)
                        rd(n // 4, n % 4)
                    if second and s_ == 25: a(f"ds_read_b32 v15, v{vMk}")
                    if s_ >= 0:
                        left = min(27, n) - s_
                        extra = 1 if (second and s_ in (25, 26)) else 0
                        a(f"s_waitcnt lgkmcnt({nr*left + extra})")
                        mm(s_ // 4, s_ % 4)
                return
            for c in range(7):
                sk = SKEW and 0 < c < 6
                a("s_barrier")
                hook(c)
                lastB = second and c == 6
                rd(c, 0); rd(c, 1)
                if sk: mm(c-1, 2)
                rd(c, 2)
                if sk: mm(c-1, 3)
                a(f"s_waitcnt lgkmcnt({2*nr})")
                rd(c, 3)
                mm(c, 0)
                a(f"s_waitcnt lgkmcnt({2*nr})")
                mm(c, 1)
                if not (SKEW and c < 5):
                    a(f"s_waitcnt lgkmcnt({nr})")
                    if lastB: a(f"ds_read_b32 v15, v{vMk}")
                    mm(c, 2)
                a("s_waitcnt lgkmcnt(0)")
                if not (SKEW and c < 5):
                    mm(c, 3)
        loop(rdA, mmA, 3, lambda c: ts("c0") if c == 0 else None)
        ts("a_mm")
        for i in range(4):
            a(f"v_add_u32 v{vXA[i]}, {L_WB}, v{vXA[i]}")
        a("s_nop 7")
        publish(kind, PKA)
        a(f"s_add_u32 s{sS0}, s{sS0}, {8 << 16}")
        ts("a_st")
        steps = [("B", s_) for s_ in range(28)] + [("Q", s_) for s_ in range(28)]
        bar = {("B", 0): 0, ("B", 8): 1, ("B", 16): 2, ("B", 24): 3, ("Q", 8): 4, ("Q", 16): 5, ("Q", 24): 6}
        NB = 6
        D = opt("pd2", 4)
        def cnt(st): return 1 if st[0] == "B" else 3
        a(f"s_mov_b32 s{sIT}, 0")
        def try_flag(c, force):
            if force:
                a(f"s_cmp_lg_u32 s{sIT}, 0")
            else:
                a("s_getreg_b32 s3, hwreg(HW_REG_IB_STS, 0, 4)")
                a(f"s_or_b32 s3, s3, s{sIT}")
            a(f"s_cbranch_scc1 L_nf{kind}{c}")
            a("s_waitcnt vmcnt(0)")
            flag_set(a, vP1, sBIT, "0x1f")
            a(f"s_mov_b32 s{sIT}, 1")
            ts("a_flag")
            a.lab(f"L_nf{kind}{c}")
        for k in range(-D, len(steps)):
            n = k + D
            if n < len(steps):
                st = steps[n]; c, i = st[1] // 4, st[1] % 4
                if st in bar:
                    a("s_barrier")
                    if NBF:
                        if bar[st] == 3: try_flag(99, True)
                    elif bar[st] == FA:
                        a("s_waitcnt vmcnt(0)")
                        flag_set(a, vP1, sBIT, "0x1f")
                        ts("a_flag")
                    if bar[st] == 6:
                        flag_check(a, f"L_fc1{kind}", vP1, sBIT, "0x1f", (2 if (kind == "K" or PADE) else 3) if EB >= 0 else 0)
                b = BUF + 8 * (n % NB)
                if st[0] == "B":
                    a(f"ds_read_b128 {vr(b,4)}, v{vXA[i]} offset:{c*8192}")
                else:
                    a(f"ds_read_b128 {vr(b,4)}, v{vXO[i]} offset:{c*8192}")
                    for r in range(2):
                        a(f"ds_read_b64_tr_b16 {vr(b+4+2*r,2)}, v{vQR} offset:{st[1]*1024 + r*256}")
            if k == len(steps) - 3: a(f"ds_read_b32 v15, v{vMk}")
            if k >= 0:
                st = steps[k]; b = BUF + 8 * (k % NB)
                left = sum(cnt(x) for x in steps[k+1:n+1]) + (1 if k in (len(steps)-3, len(steps)-2) else 0)
                a(f"s_waitcnt lgkmcnt({left})")
                if st[0] == "B":
                    kvm(vr(WFK+4*st[1],4), vr(b,4), st[1] == 0)
                    if NBF and st[1] in (9, 12, 15, 18): try_flag(st[1], False)
                    if NBF == 2 and st[1] == 19: try_flag(st[1], True)
                else:
                    mfma(a, vr(AQ,16), vr(b+4,4), vr(b,4), "0" if st[1] == 0 else vr(AQ,16))
                    if st[1] == EB: publish(kind, PKB)
    a(f"s_cmp_lt_u32 s{sH}, 7")
    a("s_cbranch_scc0 L_vline")
    a.raw("; ---- phase 1, K line")
    phase1("K")
    a("s_branch L_q")
    a.lab("L_vline")
    a.raw("; ---- phase 1, V line")
    phase1("V")
    a.lab("L_q")
    a.raw("; ---- second-half flag, Q epilogue and exchange, first key tiles")
    ts("b_mm")
    def flagb(w):
        a(f"s_lshl_b32 s3, 0x100, s{sBIT}")
        a("v_mov_b32 v250, s3")
        if w is not None: a(f"s_waitcnt vmcnt({w})")
        set_exec(a, "0xf", 0)
        a(f"buffer_atomic_or v250, v{vP1}, {sr(WS)}, 0 offen sc1")
        set_exec(a, HI, HI)
        ts("b_flag")
    FBL = opt("fbl", 0)
    if EB >= 0 and FBL == 0: flagb(0)
    def fill(sl):
        for f in pick_ops(): f()
        ldk(sl); ldv(sl)
    a(f"v_readfirstlane_b32 s{sRDY}, v15")
    a("s_nop 0")
    a(f"s_mov_b32 s{sIT}, s{sRDY}")
    a(f"s_cmp_eq_u32 s{sIT}, 0")
    a("s_cbranch_scc1 L_noearly")
    fill(0)
    a.lab("L_noearly")
    if EB >= 0 and FBL == 1: flagb(4)
    a(f"s_mov_b32 s4, {f32bits(QSCALE):#x}")
    a("s_mov_b32 s5, s4")
    for o in OT[2:]:
        for r in range(0, 10, 2):
            a(f"v_pk_mov_b32 {vr(o+r,2)}, v[30:31], v[30:31]")
    for r in range(0, 16, 2):
        a(f"v_pk_mul_f32 {vr(AQ+r,2)}, {vr(AQ+r,2)}, s[4:5]")
    Q3 = Q + 24
    for i in range(8):
        a(f"v_cvt_pk_bf16_f32 v{Q3+i}, v{AQ+2*i}, v{AQ+2*i+1}")
    a(f"s_bitcmp1_b32 s{sH}, 0")
    a("s_cselect_b32 exec_lo, -1, 0")
    a("s_mov_b32 exec_hi, 0")
    a(f"v_pk_mov_b32 {vr(Q3,2)}, v[30:31], v[30:31]")
    a("s_cselect_b32 exec_hi, 0, -1")
    a("s_mov_b32 exec_lo, 0")
    a(f"v_pk_mov_b32 {vr(Q3+6,2)}, v[30:31], v[30:31]")
    set_exec(a, HI, HI)
    a(f"ds_write_b128 v{t0}, {vr(Q3,4)} offset:2048")
    a(f"ds_write_b128 v{t0}, {vr(Q3+4,4)} offset:3072")
    a(f"s_cmp_lg_u32 s{sIT}, 0")
    a("s_cbranch_scc1 L_filled")
    fill(0)
    a.lab("L_filled")
    if FBL == 2: flagb(4)
    fill(1)
    a("s_waitcnt lgkmcnt(0)")
    ts("q_done")
    a("s_barrier")
    for i in range(3):
        a(f"ds_read_b128 {vr(Q+8*i,4)}, v{vT[1+i]} offset:2048")
        a(f"ds_read_b128 {vr(Q+8*i+4,4)}, v{vT[1+i]} offset:3072")
    zr = [o + r for o in OT[2:] for r in range(10, 16, 2)] + [KV+60, KV+62] + [o + r for o in OT[:2] for r in range(0, 16, 2)]
    for r in zr[:12]:
        a(f"v_pk_mov_b32 {vr(r,2)}, v[30:31], v[30:31]")
    if EB < 0:
        a(f"s_cmp_lt_u32 s{sH}, 7")
        a("s_cbranch_scc0 L_pubv")
        publish("K", PKB)
        a("s_branch L_pubd")
        a.lab("L_pubv")
        publish("V", PKB)
        a.lab("L_pubd")
    a(f"s_mov_b32 s{sIT}, 3")
    if EB < 0: a(f"s_add_u32 s{sBIT}, s{sBIT}, 8")
    vC = [2, 3, 4]; vCR = 5
    a("s_waitcnt vmcnt(4) lgkmcnt(0)")
    ts("kv0")
    def mS(part, t):
        slot = (t // 4) % 4; qt = t % 4
        d = vr(S[t % 2], 16)
        mfma(a, d, vr(KV+16*slot+4*part,4), vr(Q+8*qt+4*part,4), "0" if part == 0 else d)
    def mPV(part, t):
        slot = (t // 4) % 4; qt = t % 4
        d = vr(OT[qt], 16)
        mfma(a, d, vr(KV+16*slot+8+4*part,4), vr(P+4*part,4), d)
    def EC(t, g):
        s = S[t % 2] + 4*g
        for r in range(4):
            a(f"v_exp_f32 v{s+r}, v{s+r}")
        a(f"v_cvt_pk_bf16_f32 v{P+2*g}, v{s}, v{s+1}")
        a(f"v_cvt_pk_bf16_f32 v{P+2*g+1}, v{s+2}, v{s+3}")
    mS(0, 0)
    for r in zr[12:18]:
        a(f"v_pk_mov_b32 {vr(r,2)}, v[30:31], v[30:31]")
    mS(1, 0)
    fill(2)
    for f in pick_ops(): f()
    for r in zr[18:]:
        a(f"v_pk_mov_b32 {vr(r,2)}, v[30:31], v[30:31]")
    ts("att0", cyc=True)
    a.raw("; ---- phase 2: attention, 4 key tiles x 4 query tiles per trip")
    a.raw(".p2align 6")
    a.lab("L_loop")
    def tile(j, last=False):
        fs = [None] * 16
        if not last:
            fs[11] = lambda: a("s_waitcnt vmcnt(8)")
            po = pick_ops()
            if PFM:
                fs[2] = lambda: a(f"ds_read_b32 v15, v{vMk}")
                fs[4] = lambda: a("s_waitcnt lgkmcnt(0)")
                fs[5] = lambda: a(f"v_readfirstlane_b32 s{sRDY}, v15")
            for k, f in enumerate(po): fs[(6 if (PFM or LDM == 2) else 2) + k] = f
            if j == FBJ and EB < 0:
                fs[12] = lambda: a(f"s_cmp_eq_u32 s{sIT}, 3")
                def br():
                    a("s_cbranch_scc1 L_flagb")
                    a.lab("L_flagb_back")
                fs[13] = br
            if j == 2:
                fs[14] = lambda: a(f"s_sub_u32 s{sIT}, s{sIT}, 1")
        else:
            def wr(i, g):
                return lambda: a(f"ds_write_b128 v{vC[i]}, {vr(OT[i]+4*g,4)} offset:{1024*g}")
            for i in range(3):
                fs[4*(i+1) + 3] = wr(i, 0)
                if i < 2:
                    for g in range(1, 4): fs[4*(i+2) + g - 1] = wr(i, g)
        for st in range(4):
            t = 4*j + st
            f = fs[4*st:4*st+4]
            if not (last and st == 3): mS(0, t+1)
            if st == 0 and not last and LDM == 0: ldk((j + 3) % 4)
            if st == 1 and not last and LDM == 2: ldv((j + 3) % 4); ldk((j + 3) % 4)
            if f[0]: f[0]()
            EC(t, 0)
            mPV(1, (t - 1) % 16)
            if st == 0 and not last and LDM in (0, 1): ldv((j + 3) % 4)
            if st == 0 and not last and LDM == 1: ldk((j + 3) % 4)
            if f[1]: f[1]()
            EC(t, 1)
            if not (last and st == 3): mS(1, t+1)
            if f[2]: f[2]()
            EC(t, 2)
            mPV(0, t)
            if f[3]: f[3]()
            EC(t, 3)
    def tstamp(j):
        if not (TS and TSG == 2): return
        for trip in range(4):
            a(f"s_cmp_lg_u32 s{sIT}, {3 - trip - (1 if j == 3 else 0)}")
            a(f"s_cbranch_scc1 L_ts{j}_{trip}")
            ts(f"t{4*trip + j:02d}", cyc=True, grp=2)
            a.lab(f"L_ts{j}_{trip}")
    if TS and TSG == 2:
        for n in range(16):
            ts.idx[f"t{n:02d}(cyc)"] = len(ts.names); ts.names.append(f"t{n:02d}(cyc)")
    for j in range(3):
        tstamp(j); tile(j)
    a("s_cbranch_scc1 L_last")
    tstamp(3)
    tile(3)
    a("s_branch L_loop")
    a.lab("L_last")
    ts("t15", cyc=True, grp=2)
    for i in range(3):
        a(f"v_add_u32 v{vC[i]}, s{8+i}, v1")
    a(f"v_add_u32 v{vCR}, s11, v1")
    tile(3, last=True)
    a(f"ds_write_b128 v{vC[2]}, {vr(OT[2]+4,4)} offset:1024")
    a(f"ds_write_b128 v{vC[2]}, {vr(OT[2]+8,4)} offset:2048")
    mPV(1, 15)
    a(f"ds_write_b128 v{vC[2]}, {vr(OT[2]+12,4)} offset:3072")
    ts("att1", cyc=True)
    ts("t16", cyc=True, grp=2)
    ts("att1")
    a.raw("; ---- combine the four partial results")
    a(f"s_mov_b32 s4, {f32bits(2.0**62):#x}")
    a(f"s_mov_b32 s5, {f32bits(2.0**-62):#x}")
    a("s_waitcnt vmcnt(0) lgkmcnt(0)")
    a("s_barrier")
    F = OT[3]
    for i in range(3):
        for g in range(4):
            a(f"ds_read_b128 {vr(OT[i]+4*g,4)}, v{vCR} offset:{4096*i+1024*g}")
    a(f"s_lshl_b32 s3, s{sT}, 4")
    a(f"s_add_u32 s3, s3, s{sH}")
    a("s_lshl_b32 s3, s3, 11")
    a(f"s_add_u32 s3, s3, {O_OFF}")
    for i in range(3):
        a(f"s_waitcnt lgkmcnt({8-4*i})")
        for r in range(0, 16, 2):
            a(f"v_pk_add_f32 {vr(F+r,2)}, {vr(F+r,2)}, {vr(OT[i]+r,2)}")
    a.raw("; ---- softmax guard: row sums must be well inside the fp32 range, else redo with the true max")
    a(f"v_cmp_nge_f32 s[6:7], s4, v{F+12}")
    a(f"v_cmp_nle_f32 vcc, s5, v{F+12}")
    a("s_or_b64 s[6:7], s[6:7], vcc")
    a("s_cmp_lg_u32 s7, 0")
    if not NOBR: a("s_cbranch_scc1 L_fallback")
    a.lab("L_norm")
    a(f"v_mov_b32 v{t0}, v{F+12}")
    a(f"v_mov_b32 v{t1}, v{F+12}")
    a("s_nop 1")
    a(f"v_permlane32_swap_b32 v{t0}, v{t1}")
    a("s_nop 1")
    a(f"v_rcp_f32 v{t1}, v{t1}")
    set_exec(a, 0, HI)
    a(f"v_mov_b32 v{F+12}, 0")
    set_exec(a, HI, HI)
    for r in range(0, 16, 2):
        a(f"v_pk_mul_f32 {vr(F+r,2)}, {vr(F+r,2)}, {vr(t0,2)} op_sel:[0,1] op_sel_hi:[1,1]")
    PO = 232
    for i in range(8):
        a(f"v_cvt_pk_bf16_f32 v{PO+i}, v{F+2*i}, v{F+2*i+1}")
    a(f"buffer_store_dwordx4 {vr(PO,4)}, v1, {sr(WS)}, s3 offen sc1")
    a(f"buffer_store_dwordx4 {vr(PO+4,4)}, v1, {sr(WS)}, s3 offen offset:1024 sc1")
    ts("o_st")
    a.raw("; ---- phase 3: output projection")
    WOF, OF, ACC, D = 64, 192, 32, 48
    if AL3:
        a(f"s_lshl_b32 s3, s{sW}, 6")
    else:
        a(f"s_and_b32 s3, s{sCS4}, 1")
        a("s_lshl_b32 s3, s3, 5")
        a(f"s_mul_i32 s{sA}, s{sW}, 56")
        a(f"s_add_u32 s3, s3, s{sA}")
    a(f"v_bfe_u32 v{t0}, v0, 4, 1")
    a(f"v_lshlrev_b32 v{t0}, 5, v{t0}")
    a(f"v_and_b32 v{t1}, 3, v0")
    a(f"v_lshl_add_u32 v{t0}, v{t1}, 3, v{t0}")
    a(f"v_add_u32 v{t0}, s3, v{t0}")
    a(f"v_and_b32 v{t0}, 255, v{t0}")
    a(f"v_bfe_u32 v{t1}, v0, 2, 2")
    a(f"v_lshlrev_b32 v{t2}, 6, v{t1}")
    a(f"v_xor_b32 v{t0}, v{t0}, v{t2}")
    a(f"v_lshl_add_u32 v{t2}, v{t1}, 8, v{t0}")
    a(f"v_lshrrev_b32 v{t1}, 5, v0")
    a(f"v_lshl_add_u32 v{t0}, v{t1}, 10, v{t2}")
    a(f"v_add_u32 v{t1}, 0x10000, v{t0}")
    a(f"v_add_u32 v{t2}, 0x10000, v{t2}")
    def rdwo(hh):
        for u in range(2):
            for r in range(2):
                off = L_WO + (28*hh + 16*u + 8*r) * 256
                base = t0
                if off >= 0x10000:
                    off -= 0x10000; base = t1
                if hh == 15 and u == 1 and r == 1:
                    base = t2
                a(f"ds_read_b64_tr_b16 {vr(WOF+8*hh+4*u+2*r,2)}, v{base} offset:{off}")
    a(f"s_lshl_b32 s3, 1, s{sH}")
    a("v_mov_b32 v250, s3")
    NPRE = opt("npre", 6)
    for hh in range(NPRE): rdwo(hh)
    a("s_waitcnt vmcnt(0)")
    set_exec(a, 1, 0)
    a(f"buffer_atomic_or v250, v{vFl2}, {sr(WS)}, 0 offen sc1")
    set_exec(a, HI, HI)
    ts("o_flag")
    for hh in range(NPRE, 16): rdwo(hh)
    a(f"v_add_u32 v{t3}, {L_CMB}, v1")
    L_OUT = L_CMB + 32768
    if CO3:
        a("v_and_b32 v2, 31, v0")
        a("v_lshrrev_b32 v3, 5, v0")
        a(f"s_lshl_b32 s3, s{sW}, 2")
        a("v_add_u32 v3, s3, v3")
        a("v_and_b32 v4, 15, v0")
        a("v_xor_b32 v3, v3, v4")
        a("v_lshlrev_b32 v2, 8, v2")
        a("v_lshl_add_u32 v2, v3, 4, v2")
        a(f"v_add_u32 v2, {L_OUT}, v2")
        a("v_xor_b32 v3, 32, v2")
        a("v_lshrrev_b32 v5, 4, v0")
        a(f"s_lshl_b32 s3, s{sW}, 3")
        a("v_add_u32 v5, s3, v5")
        a(f"v_mul_u32_u24 v{t4}, 896, v5")
        a(f"v_lshl_add_u32 v{t4}, v4, 4, v{t4}")
        a("v_and_b32 v6, 15, v5")
        a("v_xor_b32 v6, v6, v4")
        a("v_lshlrev_b32 v5, 8, v5")
        a("v_lshl_add_u32 v5, v6, 4, v5")
        a(f"v_add_u32 v5, {L_OUT}, v5")
        a("v_xor_b32 v6, 64, v5")
        a(f"s_mul_i32 s{sKV}, s{sT3}, 28672")
        a(f"s_lshl_b32 s3, s{sCS4}, 8")
        a(f"s_add_u32 s{sKV}, s{sKV}, s3")
        a(f"s_cmp_eq_u32 s{sCS4}, 3")
        a("s_cselect_b32 s6, 0x00ff00ff, -1")
        a("s_mov_b32 s7, s6")
    else:
        a(f"v_and_b32 v{t4}, 31, v0")
        a(f"v_mul_u32_u24 v{t4}, 896, v{t4}")
        a(f"v_lshrrev_b32 v{t5}, 5, v0")
        a(f"v_lshl_add_u32 v{t4}, v{t5}, 4, v{t4}")
        a(f"s_mul_i32 s{sKV}, s{sT3}, 28672")
        a(f"s_lshl_b32 s{sBb}, s{sCS4}, 2")
        a(f"s_add_u32 s{sBb}, s{sBb}, s{sW}")
        if AL3:
            a(f"s_cmp_lt_u32 s{sBb}, 14")
            a(f"s_cselect_b32 s{OUT+2}, {OUT_BYTES}, 0")
        a(f"s_mul_i32 s{sBb}, s{sBb}, {64 if AL3 else 56}")
        a(f"s_add_u32 s{sKV}, s{sKV}, s{sBb}")
    a("s_barrier")
    a("s_barrier")
    ts("o_ld")
    NR, PD = 12, 10
    for f in range(PD):
        a(f"ds_read_b128 {vr(OF+4*(f%NR),4)}, v{t3} offset:{1024*f}")
    for f in range(32):
        if f + PD < 32:
            a(f"ds_read_b128 {vr(OF+4*((f+PD)%NR),4)}, v{t3} offset:{1024*(f+PD)}")
            a(f"s_waitcnt lgkmcnt({PD})")
        else:
            a(f"s_waitcnt lgkmcnt({31-f})")
        mfma(a, vr(ACC,16), vr(WOF+4*f,4), vr(OF+4*(f%NR),4), "0" if f == 0 else vr(ACC,16))
    a("s_nop 7")
    a("s_nop 3")
    for i in range(8):
        a(f"v_cvt_pk_bf16_f32 v{D+i}, v{ACC+2*i}, v{ACC+2*i+1}")
    a(f"v_permlane32_swap_b32 v{D}, v{D+2}")
    a(f"v_permlane32_swap_b32 v{D+1}, v{D+3}")
    a(f"v_permlane32_swap_b32 v{D+4}, v{D+6}")
    a(f"v_permlane32_swap_b32 v{D+5}, v{D+7}")
    if CO3:
        a(f"ds_write_b128 v2, {vr(D,4)}")
        a(f"ds_write_b128 v3, {vr(D+4,4)}")
        a("s_waitcnt lgkmcnt(0)")
        a("s_barrier")
        a(f"ds_read_b128 {vr(D+8,4)}, v5")
        a(f"ds_read_b128 {vr(D+12,4)}, v6 offset:1024")
        a("s_mov_b64 exec, s[6:7]")
        a("s_waitcnt lgkmcnt(1)")
        a(f"buffer_store_dwordx4 {vr(D+8,4)}, v{t4}, {sr(OUT)}, s{sKV} offen {OSF}")
        a("s_waitcnt lgkmcnt(0)")
        a(f"buffer_store_dwordx4 {vr(D+12,4)}, v{t4}, {sr(OUT)}, s{sKV} offen offset:3584 {OSF}")
    else:
        a(f"buffer_store_dwordx4 {vr(D,4)}, v{t4}, {sr(OUT)}, s{sKV} offen {OSF}")
        if AL3:
            a(f"buffer_store_dwordx4 {vr(D+4,4)}, v{t4}, {sr(OUT)}, s{sKV} offen offset:32 {OSF}")
        else:
            set_exec(a, HI, 0)
            a(f"buffer_store_dwordx4 {vr(D+4,4)}, v{t4}, {sr(OUT)}, s{sKV} offen offset:32 {OSF}")
            set_exec(a, 0, HI)
            a(f"buffer_store_dwordx2 {vr(D+4,2)}, v{t4}, {sr(OUT)}, s{sKV} offen offset:32 {OSF}")
    if TS:
        a("s_waitcnt vmcnt(0)")
        ts("end")
    if TS and TSG in (0, 2): ts.dump()
    a.lab("L_end")
    a("s_endpgm")
    if EB < 0:
        a.lab("L_flagb")
        if FBJ == 0: a("s_waitcnt vmcnt(4)")
        a(f"s_lshl_b32 s3, 1, s{sBIT}")
        a("v_mov_b32 v250, s3")
        set_exec(a, "0xf", 0)
        a(f"buffer_atomic_or v250, v{vP1}, {sr(WS)}, 0 offen sc1")
        set_exec(a, HI, HI)
        a("s_branch L_flagb_back")
    for n in range(npick[0]):
        a.lab(f"L_slow{n}")
        a(f"ds_read_b32 v15, v{vMk}")
        a("s_waitcnt lgkmcnt(0)")
        a(f"v_readfirstlane_b32 s{sRDY}, v15")
        a("s_nop 0")
        a(f"s_and_b32 s{sAV}, s{sRDY}, s{sTODO}")
        a(f"s_cbranch_scc0 L_slow{n}")
        a(f"s_branch L_back{n}")
    flag_retries(a)
    a.raw("; ---- fallback: true row max (pass 1), then exp(s - max) (pass 2) over all keys")
    a.lab("L_fallback")
    srd(a, X, 14, 15, KV_BYTES)
    a(f"v_mov_b32 v{t0}, 0xff800000")
    a(f"s_mov_b32 s{sKV}, 0")
    SS = S0
    a.lab("L_fb1")
    ldk(0)
    a(f"s_add_u32 s{sKV}, s{sKV}, 0x10000")
    a("s_waitcnt vmcnt(0)")
    mfma(a, vr(SS,16), vr(KV,4), vr(Q3,4), "0")
    mfma(a, vr(SS,16), vr(KV+4,4), vr(Q3+4,4), vr(SS,16))
    a("s_nop 15")
    for r in range(0, 16, 2):
        a(f"v_max3_f32 v{t0}, v{t0}, v{SS+r}, v{SS+r+1}")
    a(f"s_cmp_lt_u32 s{sKV}, {KV_BYTES}")
    a("s_cbranch_scc1 L_fb1")
    a(f"v_mov_b32 v{t1}, v{t0}")
    a("s_nop 1")
    a(f"v_permlane32_swap_b32 v{t0}, v{t1}")
    a("s_nop 1")
    a(f"v_max_f32 v{t0}, v{t0}, v{t1}")
    for r in range(16):
        a(f"v_mov_b32 v{F+r}, 0")
    a(f"s_mov_b32 s{sKV}, 0")
    a.lab("L_fb2")
    ldk(0); ldv(0)
    a(f"s_add_u32 s{sKV}, s{sKV}, 0x10000")
    a("s_waitcnt vmcnt(0)")
    mfma(a, vr(SS,16), vr(KV,4), vr(Q3,4), "0")
    mfma(a, vr(SS,16), vr(KV+4,4), vr(Q3+4,4), vr(SS,16))
    a("s_nop 15")
    for r in range(16):
        a(f"v_sub_f32 v{SS+r}, v{SS+r}, v{t0}")
    for r in range(16):
        a(f"v_exp_f32 v{SS+r}, v{SS+r}")
    a("s_nop 0")
    for i in range(8):
        a(f"v_cvt_pk_bf16_f32 v{P+i}, v{SS+2*i}, v{SS+2*i+1}")
    a("s_nop 1")
    mfma(a, vr(F,16), vr(KV+8,4), vr(P,4), vr(F,16))
    mfma(a, vr(F,16), vr(KV+12,4), vr(P+4,4), vr(F,16))
    a(f"s_cmp_lt_u32 s{sKV}, {KV_BYTES}")
    a("s_cbranch_scc1 L_fb2")
    a("s_nop 15")
    a("s_branch L_norm")
    a.lab("L_codeend")
    if TS:
        open("stamps.txt", "w").write(",".join(ts.names))
    return name

DOC = r'''
; ---------------------------------------------------------------------------------------------------------------
;           Softmax guard: softmax is shift invariant, the fast path uses the shift 0 and CHECKS at run time that
; readers poll with returning atomics and then use sc1 loads.  Flag words are {bits, tag}; the tag comes from an
; ---------------------------------------------------------------------------------------------------------------
'''

def main():
    a = A()
    name = kernel(a)
    head = open(f"cdna_kernels/{NAME}.s.ref").read().split("; Override")[0]
    out = head
    out += f"; @launch grid=(256,1,1) block=(512,1,1) lds={LDS_BYTES}\n"
    out += '.amdgcn_target "amdgcn-amd-amdhsa--gfx950"\n' + DOC.lstrip("\n") + '.text\n'
    out += a.text()
    out += f""".section .rodata,"a"
.p2align 6
.amdhsa_kernel {name}
  .amdhsa_next_free_vgpr 256
  .amdhsa_next_free_sgpr 102
  .amdhsa_accum_offset 256
  .amdhsa_group_segment_fixed_size 0
  .amdhsa_kernarg_size 48
  .amdhsa_user_sgpr_count 2
  .amdhsa_user_sgpr_kernarg_segment_ptr 1
  .amdhsa_system_sgpr_workgroup_id_x 1
.end_amdhsa_kernel
"""
    o = [x for x in sys.argv[1:] if not x.startswith("--")]
    path = o[0] if o else f"cdna_kernels/{NAME}.s"
    open(path, "w").write(out)
main()
```
